```python
import torch

def _softmax(x, axis=-1):
    return torch.softmax(x, dim=axis)
def _gelu(x):
    return torch.nn.functional.gelu(x, approximate="tanh")
def _silu(x):
    return torch.nn.functional.silu(x)
def _sigmoid(x):
    return torch.sigmoid(x)
def _layernorm(x, axis=-1, eps=1e-5):
    m = x.mean(dim=axis, keepdim=True)
    v = x.var(dim=axis, keepdim=True, unbiased=False)
    return (x - m) / torch.sqrt(v + eps)
def _scatter_add(tgt, idx, src, axis=0):
    return tgt.clone().index_add_(axis, idx, src)
def _segment_sum(src, seg, n):
    out = torch.zeros((n,) + src.shape[1:], dtype=src.dtype)
    return out.index_add_(0, seg, src)
def _pad(x, pw):
    flat = tuple(v for pair in reversed(pw) for v in pair)
    return torch.nn.functional.pad(x, flat)

kernel_name = 'recurrent_scan__softmax_full_mha__glu_gated_geglu__prompt'

def setup_inputs():

    _w = (lambda a: (lambda t: t.to(torch.bfloat16) if t.is_floating_point() else t)(torch.as_tensor(a)))
    def _A_setup():
        B, S, D = 1, 2048, 512
        return {
            "x": _w((lambda *s: torch.randn(*s, dtype=torch.bfloat16) * 0.05)(B, S, D)),
            "wqkv": _w((lambda *s: torch.randn(*s, dtype=torch.bfloat16) * 0.2)(D, 3 * D)),
            "wo": _w((lambda *s: torch.randn(*s, dtype=torch.bfloat16) * 0.2)(D, D)),
        }
    _A_in = _A_setup()

    def _B_setup():
        B, S, Dm, Df = 1, 2048, 512, 1376
        return {
            "x": _w((lambda *s: torch.randn(*s, dtype=torch.bfloat16) * 0.05)(B, S, Dm)),
            "w_gate": _w((lambda *s: torch.randn(*s, dtype=torch.bfloat16) * 0.1)(Dm, Df) * (Dm ** -0.5)),
            "w_up": _w((lambda *s: torch.randn(*s, dtype=torch.bfloat16) * 0.1)(Dm, Df) * (Dm ** -0.5)),
            "w_down": _w((lambda *s: torch.randn(*s, dtype=torch.bfloat16) * 0.1)(Df, Dm) * (Df ** -0.5)),
        }
    _B_in = _B_setup()

    return {
        "A_x": _A_in["x"],
        "A_wqkv": _A_in["wqkv"],
        "A_wo": _A_in["wo"],
        "B_x": _B_in["x"],
        "B_w_gate": _B_in["w_gate"],
        "B_w_up": _B_in["w_up"],
        "B_w_down": _B_in["w_down"],
    }

def reference(A_x, A_wqkv, A_wo, B_x, B_w_gate, B_w_up, B_w_down):
    def _A_ref(x, wqkv, wo):
        B, S, D = x.shape
        H = 32; Dh = D // H
        qkv = (lambda x, *d: x.permute(*d))((x @ wqkv).reshape(B, S, 3, H, Dh), 2, 0, 3, 1, 4)
        q, k, v = qkv[0], qkv[1], qkv[2]
        scale = Dh ** -0.5
        scores = torch.einsum("bhqd,bhkd->bhqk", q, k) * scale
        p = _softmax(scores, axis=-1)
        o = torch.einsum("bhqk,bhkd->bhqd", p, v)
        return (lambda x, *d: x.permute(*d))(o, 0, 2, 1, 3).reshape(B, S, D) @ wo

    def _B_ref(x, w_gate, w_up, w_down):
        g = torch.einsum("bsd,df->bsf", x, w_gate)
        u = torch.einsum("bsd,df->bsf", x, w_up)
        h = _gelu(g) * u
        return torch.einsum("bsf,fd->bsd", h, w_down)

    x = A_x
    xn = _layernorm(x, axis=-1)
    s = _A_ref(xn, A_wqkv, A_wo)
    g = _silu(_B_ref(xn, B_w_gate, B_w_up, B_w_down))
    return x + s * g
```

```python
import re

def v(i, n=1):
    return f"v{i}" if n == 1 else f"v[{i}:{i+n-1}]"
def a(i, n=1):
    return f"a{i}" if n == 1 else f"a[{i}:{i+n-1}]"
def s(i, n=1):
    return f"s{i}" if n == 1 else f"s[{i}:{i+n-1}]"

class Asm:
    def __init__(self):
        self.lines = []
        self._uid = 0
    def __call__(self, txt):
        for ln in txt.strip("\n").split("\n"):
            ln = ln.strip()
            if ln:
                self.lines.append("    " + ln)
    def label(self, name):
        self.lines.append(f"{name}:")
    def raw(self, txt):
        self.lines.append(txt)
    def comment(self, txt):
        self.lines.append("    ; " + txt)
    def uid(self, p="L"):
        self._uid += 1
        return f"{p}_{self._uid}"
    def text(self):
        return "\n".join(self.lines) + "\n"

_REG = re.compile(r"\b([vas])(?:(\d+)|\[(\d+):(\d+)\])")
TRANS = ("v_exp_f32", "v_log_f32", "v_rcp_f32", "v_rsq_f32", "v_sqrt_f32", "v_sin_f32", "v_cos_f32",
         "v_exp_f16", "v_rcp_f16", "v_rcp_iflag_f32")

def _regs(op):
    out = set()
    for m in _REG.finditer(op):
        k = m.group(1)
        if m.group(2) is not None:
            out.add((k, int(m.group(2))))
        else:
            for r in range(int(m.group(3)), int(m.group(4)) + 1):
                out.add((k, r))
    if re.search(r"\bvcc\b", op):
        out.add(("s", "vcc"))
    if re.search(r"\bexec\b", op):
        out.add(("s", "exec"))
    if re.search(r"\bm0\b", op):
        out.add(("s", "m0"))
    return out

def _split_ops(rest):
    ops, depth, cur = [], 0, ""
    for ch in rest:
        if ch == "[":
            depth += 1
        if ch == "]":
            depth -= 1
        if ch == "," and depth == 0:
            ops.append(cur.strip()); cur = ""
        else:
            cur += ch
    if cur.strip():
        ops.append(cur.strip())
    return ops

class Ins:
    def __init__(self, line, idx):
        self.line = line; self.idx = idx
        t = line.split(";")[0].strip()
        parts = t.split(None, 1)
        self.op = parts[0]
        rest = parts[1] if len(parts) > 1 else ""
        self.ops = _split_ops(rest)
        op = self.op
        self.is_mfma = op.startswith("v_mfma") or op.startswith("v_smfmac")
        self.is_valu = op.startswith("v_") and not self.is_mfma
        self.is_trans = any(op.startswith(x) for x in TRANS)
        self.is_vmem = op.startswith(("buffer_", "global_", "flat_"))
        self.is_ds = op.startswith("ds_")
        self.is_salu = op.startswith("s_")
        self.w = set(); self.r = set()
        o = self.ops
        self.passes = 0
        self.srcc = set(); self.srcab = set()
        if self.is_mfma:
            self.w = _regs(o[0]); self.srcab = _regs(o[1]) | _regs(o[2]); self.srcc = _regs(o[3])
            if op.startswith("v_smfmac"):
                self.srcab |= self.srcc; self.srcc = set(self.w)
            self.r = self.srcab | self.srcc
            self.passes = 8 if ("32x32x16" in op or "32x32x32" in op) else (4 if ("16x16x32" in op or "16x16x64" in op) else 16)
        elif self.is_valu:
            if op.startswith("v_cmp"):
                self.w = _regs(o[0]); self.r = set().union(*[_regs(x) for x in o[1:]])
                if op.startswith("v_cmpx"): self.w.add(("s", "exec"))
            elif op.startswith(("v_permlane16_swap", "v_permlane32_swap", "v_swap")):
                self.w = _regs(o[0]) | _regs(o[1]); self.r = set(self.w)
            elif op.startswith(("v_add_co", "v_sub_co", "v_addc_co", "v_subb_co", "v_div_scale", "v_mad_u64")):
                self.w = _regs(o[0]) | _regs(o[1]); self.r = set().union(*[_regs(x) for x in o[2:]])
            elif op == "v_nop":
                pass
            else:
                self.w = _regs(o[0]); self.r = set().union(*[_regs(x) for x in o[1:]]) if len(o) > 1 else set()
                if op.startswith(("v_fmac", "v_pk_fmac", "v_dot2c", "v_writelane")) or "dpp" in t or "row_" in t or "quad_perm" in t:
                    self.r |= self.w
                if op.startswith("v_cndmask") and len(o) == 3: self.r.add(("s", "vcc"))
            self.is_dpp = ("row_" in t) or ("quad_perm" in t) or ("wave_" in t)
        elif self.is_vmem:
            lds = bool(re.search(r"\blds\b", t)) or "_lds_" in op
            self.lds_dma = lds
            allr = [_regs(x) for x in o]
            if "load" in op and not lds:
                self.w = allr[0]; self.r = set().union(*allr[1:])
            elif "atomic" in op and "sc0" in t:
                self.w = allr[0]; self.r = set().union(*allr)
            else:
                self.r = set().union(*allr) if allr else set()
            if lds: self.r.add(("s", "m0"))
            self.store_data = set()
            if "store" in op and (op.endswith("x4") or op.endswith("x3")):
                self.store_data = allr[0] if op.startswith("buffer_") else allr[1]
        elif self.is_ds:
            allr = [_regs(x) for x in o]
            if "read" in op or "bpermute" in op or "permute" in op or "swizzle" in op or "_rtn" in op:
                self.w = allr[0]; self.r = set().union(*allr[1:]) if len(allr) > 1 else set()
            else:
                self.r = set().union(*allr)
        elif self.is_salu:
            if op.startswith(("s_cmp", "s_cbranch", "s_branch", "s_waitcnt", "s_nop", "s_barrier", "s_endpgm", "s_setprio", "s_sleep", "s_bitcmp")):
                self.r = set().union(*[_regs(x) for x in o]) if o else set()
            else:
                self.w = _regs(o[0]) if o else set()
                self.r = set().union(*[_regs(x) for x in o[1:]]) if len(o) > 1 else set()
                if "saveexec" in op: self.w.add(("s", "exec"))
        self.slots = 1
        if op == "s_nop":
            self.slots = int(o[0], 0) + 1

def _need(p, c):
    n = 0
    vw = {x for x in p.w if x[0] in "va"}
    sw = {x for x in p.w if x[0] == "s"}
    if p.is_valu:
        if c.is_mfma and vw & c.r: n = max(n, 3 if p.is_trans else 2)
        if c.is_mfma and ("s", "exec") in sw: n = max(n, 4)
        if p.is_trans and c.is_valu and not c.is_trans and vw & c.r: n = max(n, 1)
        if p.is_trans and (c.is_vmem or c.is_ds) and vw & c.r: n = max(n, 1)
        if c.is_valu and c.op.startswith("v_permlane") and vw & c.r: n = max(n, 2)
        if c.is_valu and getattr(c, "is_dpp", False) and vw & c.r: n = max(n, 2)
        if c.is_valu and getattr(c, "is_dpp", False) and ("s", "exec") in sw: n = max(n, 5)
        if c.op.startswith(("v_readlane", "v_readfirstlane")) and vw & c.r: n = max(n, 1)
        if c.op.startswith(("v_readlane", "v_readfirstlane", "v_writelane")) and ("s", "exec") in sw: n = max(n, 4)
        if c.is_vmem and sw & c.r: n = max(n, 5)
        if c.is_valu and sw & c.r:
            n = max(n, 4 if c.op.startswith(("v_readlane", "v_writelane", "v_div_fmas")) else 2)
    if p.op.startswith("v_dot"):
        if c.op == p.op:
            srcab = set().union(*[_regs(x) for x in c.ops[1:3]])
            if vw & srcab: n = max(n, 3)
        elif vw & (c.r | c.w): n = max(n, 3)
    if p.is_mfma:
        P = p.passes
        tab_ab = {2: 5, 4: 8, 8: 12, 16: 20}[P]
        tab_c = {2: 4, 4: 6, 8: 10, 16: 18}[P]
        if c.is_mfma:
            if p.w & c.srcab: n = max(n, tab_ab)
            if p.w & c.srcc and not (p.w == c.srcc and p.passes == c.passes): n = max(n, tab_c)
            if p.w & c.w and not (p.w & c.srcc): n = max(n, tab_c)
        elif c.is_valu or c.is_vmem or c.is_ds:
            if p.w & (c.r | c.w): n = max(n, tab_ab)
        if c.is_valu and p.srcc & c.w:
            n = max(n, {2: 1, 4: 3, 8: 7, 16: 15}[P])
    if p.is_salu and ("s", "m0") in p.w and c.is_vmem and getattr(c, "lds_dma", False):
        n = max(n, 1)
    if p.is_vmem and getattr(p, "store_data", None) and (p.store_data & c.w):
        n = max(n, 2 if c.is_valu else 1)
    return n

def check_hazards(text, verbose=True):
    ins = []; labels = {}
    for ln in text.split("\n"):
        t = ln.split(";")[0].strip()
        if not t or t.startswith("."):
            if t.startswith(".section") or t.startswith(".amdhsa_kernel"):
                pass
            continue
        if t.endswith(":"):
            labels[t[:-1]] = len(ins); continue
        if not re.match(r"^(v_|s_|ds_|buffer_|global_|flat_)", t):
            continue
        ins.append(Ins(t, len(ins)))
    probs = []
    W = 24
    def scan(seq):
        for i, p in enumerate(seq):
            if not (p.is_valu or p.is_mfma or p.is_salu or p.is_vmem): continue
            dist = 0
            for c in seq[i+1:i+1+W]:
                nd = _need(p, c)
                if nd > dist:
                    probs.append(f"HAZARD need {nd} have {dist}: [{p.idx}] {p.line}  ->  [{c.idx}] {c.line}")
                dist += c.slots
                if dist >= 21: break
                if c.op in ("s_endpgm", "s_branch"): break
    scan(ins)
    for i, b in enumerate(ins):
        if b.op.startswith(("s_cbranch", "s_branch")) and b.ops and b.ops[0] in labels:
            tgt = labels[b.ops[0]]
            seq = ins[max(0, i - W):i + 1]
            seq2 = seq[:-1] + [Ins("s_nop 0", b.idx)] + ins[tgt:tgt + W]
            scan(seq2)
    probs = sorted(set(probs))
    if verbose:
        for p in probs: print(p)
        print(f"hazard check: {len(ins)} instrs, {len(probs)} problems")
    return probs


class Stamps:
    def __init__(self, A, base=60, on=False):
        self.A = A; self.base = base; self.n = 0; self.on = on
    def __call__(self):
        if not self.on: return
        b = self.base + 4 * self.n
        assert b + 3 < 102
        self.A(f"s_memtime s[{b}:{b+1}]")
        self.A(f"s_memrealtime s[{b+2}:{b+3}]")
        self.n += 1
    def flush(self, srd, off, swave, vt0, vt1, st):
        if not self.on: return
        A = self.A
        A("s_waitcnt lgkmcnt(0)")
        A(f"s_lshl_b32 s{st}, s2, 4")
        A(f"s_add_u32 s{st}, s{st}, s{swave}")
        A(f"s_lshl_b32 s{st}, s{st}, 8")
        A(f"s_add_u32 s{st}, s{st}, {off}")
        A(f"v_mov_b32 v{vt0}, 0")
        for i in range(self.n):
            b = self.base + 4 * i
            A(f"v_mov_b32 v{vt1}, s{b}")
            A(f"buffer_store_dword v{vt1}, v{vt0}, {srd}, s{st} offen offset:{8*i}")
            A(f"s_nop 1")
            A(f"v_mov_b32 v{vt1}, s{b+2}")
            A(f"buffer_store_dword v{vt1}, v{vt0}, {srd}, s{st} offen offset:{8*i+4}")
            A(f"s_nop 1")
```

```python
from asmlib import *
from layout import *
import struct
def f2u(x): return struct.unpack("<I", struct.pack("<f", x))[0]

MF = "v_mfma_f32_32x32x16_bf16"
SMF = "v_smfmac_f32_32x32x32_bf16"

def kd(A, name, nvgpr, nsgpr=102, accum=None):
    accum = accum if accum is not None else ((nvgpr + 3) // 4) * 4
    A.raw(f""".p2align 6
.amdhsa_kernel {name}
  .amdhsa_next_free_vgpr {nvgpr}
  .amdhsa_next_free_sgpr {nsgpr}
  .amdhsa_accum_offset {accum}
  .amdhsa_group_segment_fixed_size 0
  .amdhsa_kernarg_size 80
  .amdhsa_user_sgpr_count 2
  .amdhsa_user_sgpr_kernarg_segment_ptr 1
  .amdhsa_system_sgpr_workgroup_id_x 1
.end_amdhsa_kernel""")

def head(A, name):
    A.raw(f".globl {name}\n.p2align 8\n.type {name},@function\n{name}:")

OFFSET = 80.0

def attn_kernel(A, name, nks=2, stamps=False, kidx=0, var=''):
    ST = Stamps(A, 60, stamps)
    NB = 64 // nks
    vK, vV, vL, vT0, vT1 = 1, 2, 3, 4, 5
    vIdx = 8
    M = 12
    C, SB = 16, 80
    NV = 148
    O, Q, KR, VR, KS = 0, 64, 80, 96, 128
    NA = 136
    sWS = 8
    sKV, sCnt, sFB, sOff, sQ, sKVbase, sHead, sWave, sO = 12, 13, 14, 15, 16, 17, 18, 19, 20
    sMask = 22
    Lend = f"{name}_end"
    head(A, name)
    A(f"""
    s_cmp_ge_u32 s2, 256
    s_cbranch_scc1 {Lend}
    """)
    ST()
    A(f"""
    s_load_dwordx2 s[4:5], s[0:1], 72
    v_lshrrev_b32 v{vT0}, 6, v0
    v_and_b32 v{vL}, 63, v0
    s_and_b32 s3, s2, 7
    v_readfirstlane_b32 s{sWave}, v{vT0}
    s_lshr_b32 s6, s2, 3
    s_and_b32 s7, s6, 3
    s_lshl_b32 s{sHead}, s3, 2
    s_add_u32 s{sHead}, s{sHead}, s7          ; head
    s_lshr_b32 s6, s6, 2
    s_and_b32 s7, s{sWave}, 1                 ; q half
    s_lshl_b32 s6, s6, 1
    s_add_u32 s6, s6, s7
    s_lshl_b32 s6, s6, 2
    s_lshl_b32 s7, s{sHead}, 16
    s_lshl_b32 s{sQ}, s6, 10
    s_add_u32 s{sQ}, s{sQ}, s7
    s_lshl_b32 s{sO}, s6, 15
    s_lshl_b32 s3, s{sHead}, 10
    s_add_u32 s{sO}, s{sO}, s3
    s_add_u32 s{sO}, s{sO}, {OF}
    s_add_u32 s21, s7, {KF}
    s_lshr_b32 s3, s{sWave}, 1
    s_mul_i32 s3, s3, {NB*1024}
    s_add_u32 s{sKVbase}, s21, s3
    v_lshlrev_b32 v{vK}, 4, v{vL}
    v_lshrrev_b32 v{vT0}, 5, v{vL}
    v_lshlrev_b32 v{vT0}, 8, v{vT0}
    v_and_b32 v{vT1}, 15, v{vL}
    v_lshl_add_u32 v{vV}, v{vT1}, 4, v{vT0}
    v_add_u32 v{vV}, {VF-KF}, v{vV}
    s_mov_b32 s{sMask}, 0x0000ffff
    s_mov_b32 s{sMask+1}, 0x0000ffff
    s_mov_b32 s{sFB}, 0
    s_mov_b32 s{sOff}, {hex(f2u(-OFFSET))}
    s_mov_b32 s{sWS+2}, {WS_USED}
    s_mov_b32 s{sWS+3}, 0x00020000
    v_mov_b32 v{vIdx}, 0xdddddddd
    s_waitcnt lgkmcnt(0)
    s_mov_b32 s{sWS}, s4
    s_mov_b32 s{sWS+1}, s5
    """)
    srd = s(sWS, 4)
    A(f"buffer_load_dwordx4 {a(KS,4)}, v{vK}, {srd}, s21 offen")
    A(f"buffer_load_dwordx4 {a(KS+4,4)}, v{vK}, {srd}, s21 offen offset:1024")
    for t in range(4):
        A(f"buffer_load_dwordx4 {a(Q+4*t,4)}, v{vK}, {srd}, s{sQ} offen offset:{t*1024}")
    A(f"v_and_b32 v{vT0}, 27, v{vL}")
    A(f"v_cmp_eq_u32 vcc, 16, v{vT0}")
    A(f"v_mov_b32 v{vT0}, 0x3f803f80")
    A(f"s_nop 0")
    A(f"v_cndmask_b32 v{vT0}, 0, v{vT0}, vcc")
    for i in range(32):
        A(f"v_accvgpr_write_b32 a{VR+i}, v{vT0}")
    def ring_load(r, immblk):
        A(f"buffer_load_dwordx4 {a(KR+4*r,4)}, v{vK}, {srd}, s{sKV} offen offset:{immblk*1024}")
        A(f"s_mov_b64 exec, {s(sMask,2)}")
        A(f"buffer_load_dwordx4 {a(VR+8*r,4)}, v{vV}, {srd}, s{sKV} offen offset:{immblk*1024}")
        A(f"buffer_load_dwordx4 {a(VR+8*r+4,4)}, v{vV}, {srd}, s{sKV} offen offset:{immblk*1024+512}")
        A(f"s_mov_b64 exec, -1")
    def ring_prologue():
        A(f"s_mov_b32 s{sKV}, s{sKVbase}")
        for r in range(3): ring_load(r, r)
        A(f"s_add_u32 s{sKV}, s{sKV}, {3*1024}")
    def zero_o():
        for t in range(4):
            for i in range(16): A(f"v_accvgpr_write_b32 a{O+16*t+i}, 0")
    ring_prologue()
    zero_o()
    A("s_waitcnt vmcnt(9)")
    ST()
    def maxtree(dst, blocks, first):
        regs = [b + i for b in blocks for i in range(16)]
        if first:
            A(f"v_max3_f32 v{dst}, v{regs[0]}, v{regs[1]}, v{regs[2]}"); regs = regs[3:]
        while len(regs) >= 2:
            A(f"v_max3_f32 v{dst}, v{dst}, v{regs[0]}, v{regs[1]}"); regs = regs[2:]
        if regs:
            A(f"v_max_f32 v{dst}, v{dst}, v{regs[0]}")
    for t in range(4):
        A(f"{MF} {v(C+16*t,16)}, {a(KS,4)}, {a(Q+4*t,4)}, 0")
        A(f"{MF} {v(SB+16*t,16)}, {a(KS+4,4)}, {a(Q+4*t,4)}, 0")
    A("s_nop 5")
    for t in range(4):
        maxtree(M + t, [C + 16 * t, SB + 16 * t], True)
    Lmain = f"{name}_main"
    A.label(Lmain)
    for t in range(4):
        A(f"v_mov_b32 v{4+t}, v{M+t}")
    A("s_nop 1")
    for t in range(4):
        A(f"v_permlane32_swap_b32 v{4+t}, v{M+t}")
    for t in range(4):
        A(f"v_max_f32 v{M+t}, v{M+t}, v{4+t}")
    for t in range(4):
        A(f"v_sub_f32 v{M+t}, s{sOff}, v{M+t}")
    for i in range(16): A(f"v_mov_b32 v{C+i}, v{M}")
    A("s_waitcnt vmcnt(6)")
    A(f"s_mov_b32 s{sCnt}, {NB//4}")
    A(f"{MF} {v(SB,16)}, {a(KR,4)}, {a(Q,4)}, {v(C,16)}")
    for t in range(1, 4):
        for i in range(16): A(f"v_mov_b32 v{C+16*t+i}, v{M+t}")
    for i in range(8): A(f"v_mov_b32 v{SB+48+8+i}, 0")
    ST()
    Lloop = f"{name}_loop"
    A.raw(".p2align 6")
    A.label(Lloop)
    for r in range(4):
        for t in range(4):
            X = SB + 16 * t
            tn = (t + 1) & 3; rn = r if t < 3 else (r + 1) & 3
            tp = (t - 1) & 3; rp = r if t > 0 else (r - 1) & 3
            E = lambda j: f"v_exp_f32 v{X+j}, v{X+j}"
            qk = f"{MF} {v(SB+16*tn,16)}, {a(KR+4*rn,4)}, {a(Q+4*tn,4)}, {v(C+16*tn,16)}"
            pvb = f"{SMF} {a(O+16*tp,16)}, {a(VR+8*rp+4,4)}, {v(SB+16*tp+8,8)}, v{vIdx}"
            pva = f"{SMF} {a(O+16*t,16)}, {a(VR+8*r,4)}, {v(X,8)}, v{vIdx}"
            if 'p' in var: pva = pvb = "s_nop 0"
            if 'q' in var: qk = "s_nop 0"
            if t == 3:
                A("s_waitcnt vmcnt(6)")
            A(qk)
            for j in range(0, 5): A(E(j))
            A(pvb)
            A(E(5))
            if t == 0:
                ring_load(rp, r)
            for j in range(6, 11): A(E(j))
            A(pva)
            for j in range(11, 16): A(E(j))
    if stamps:
        A(f"""
        s_memtime s[28:29]
        s_memrealtime s[30:31]
        s_waitcnt lgkmcnt(0)
        s_mov_b32 m0, s{sCnt}
        s_nop 1
        v_writelane_b32 v144, s28, m0
        v_writelane_b32 v145, s30, m0
        """)
    A(f"""
    s_add_u32 s{sKV}, s{sKV}, 4096
    s_sub_u32 s{sCnt}, s{sCnt}, 1
    s_cmp_lg_u32 s{sCnt}, 0
    s_cbranch_scc1 {Lloop}
    """)
    A(f"{SMF} {a(O+48,16)}, {a(VR+8*3+4,4)}, {v(SB+48+8,8)}, v{vIdx}")
    ST()
    WST = 4 * 2304
    A(f"""
    s_mul_i32 s3, s{sWave}, {WST}
    v_lshlrev_b32 v{vT0}, 4, v{vL}
    v_add_u32 v{vT0}, s3, v{vT0}
    v_lshlrev_b32 v{vT1}, 2, v{vL}
    v_add_u32 v{vT1}, s3, v{vT1}
    """)
    for t in range(4):
        if t == 3: A("s_nop 3")
        A(f"ds_write_b128 v{vT0}, {a(O+16*t,4)} offset:{t*2304}")
        A(f"ds_write_b128 v{vT0}, {a(O+16*t+4,4)} offset:{t*2304+1024}")
        A(f"ds_write_b32 v{vT1}, a{O+16*t+8} offset:{t*2304+2048}")
    TPW = 4 // nks
    A(f"""
    s_and_b32 s3, s{sWave}, 1
    s_mul_i32 s3, s3, {WST}
    s_lshr_b32 s6, s{sWave}, 1
    s_mul_i32 s7, s6, {TPW*2304}
    s_add_u32 s3, s3, s7
    v_lshlrev_b32 v{vT0}, 4, v{vL}
    v_add_u32 v{vT0}, s3, v{vT0}
    v_lshlrev_b32 v{vT1}, 2, v{vL}
    v_add_u32 v{vT1}, s3, v{vT1}
    s_mul_i32 s7, s6, {TPW*32768}
    s_add_u32 s7, s7, s{sO}
    s_waitcnt lgkmcnt(0)
    s_barrier
    """)
    R = C
    for i in range(TPW):
        for j in range(nks):
            b = R + 12 * (i * nks + j)
            off = i * 2304 + j * 2 * WST
            A(f"ds_read_b128 {v(b,4)}, v{vT0} offset:{off}")
            A(f"ds_read_b128 {v(b+4,4)}, v{vT0} offset:{off+1024}")
            A(f"ds_read_b32 v{b+8}, v{vT1} offset:{off+2048}")
    A(f"v_mov_b32 v6, 0")
    A(f"s_mov_b64 s[24:25], 0")
    A(f"s_mov_b32 s26, {hex(f2u(2.0**-110))}")
    A(f"s_mov_b32 s27, {hex(f2u(2.0**120))}")
    A("s_waitcnt lgkmcnt(0)")
    for i in range(TPW):
        b0 = R + 12 * (i * nks)
        for j in range(1, nks):
            b = R + 12 * (i * nks + j)
            for e in range(9): A(f"v_add_f32 v{b0+e}, v{b0+e}, v{b+e}")
        A(f"v_rcp_f32 v{b0+9}, v{b0+8}")
        A(f"v_cmp_nle_f32 vcc, s26, v{b0+8}")
        A(f"s_or_b64 s[24:25], s[24:25], vcc")
        A(f"v_cmp_nge_f32 vcc, s27, v{b0+8}")
        A(f"s_or_b64 s[24:25], s[24:25], vcc")
        for e in range(8): A(f"v_mul_f32 v{b0+e}, v{b0+e}, v{b0+9}")
        for e in range(8): A(f"v_fma_f32 v6, v{b0+e}, 0, v6")
        for e in range(4): A(f"v_cvt_pk_bf16_f32 v{b0+e}, v{b0+2*e}, v{b0+2*e+1}")
        A(f"buffer_store_dwordx4 {v(b0,4)}, v{vK}, {srd}, s7 offen")
        if i + 1 < TPW: A(f"s_add_u32 s7, s7, 32768")
    if stamps:
        ST()
        A("s_waitcnt vmcnt(0)")
        ST(); ST.flush(srd, STAMP + kidx * MB, sWave, 4, 5, 3)
        A(f"v_lshlrev_b32 v4, 3, v{vL}")
        A(f"s_mov_b64 exec, 0x1ff")
        A(f"buffer_store_dwordx2 v[144:145], v4, {srd}, s3 offen offset:128")
        A(f"s_mov_b64 exec, -1")
        if set(var) & set("pqex"): A("s_endpgm")
    A(f"""
    v_cmp_u_f32 vcc, v6, v6
    s_or_b64 s[24:25], s[24:25], vcc
    s_cmp_lg_u32 s{sFB}, 0
    s_cbranch_scc1 {Lend}
    s_cmp_lg_u64 s[24:25], 0
    s_cselect_b32 s3, 1, 0
    v_mov_b32 v6, s3
    s_lshl_b32 s6, s{sWave}, 2
    s_add_u32 s6, s6, {2*nks*WST}
    v_mov_b32 v7, s6
    ds_write_b32 v7, v6
    v_mov_b32 v7, {2*nks*WST}
    s_waitcnt lgkmcnt(0)
    s_barrier
    ds_read_b128 v[4:7], v7
    """)
    if nks == 4:
        A(f"v_mov_b32 v{M}, {2*nks*WST+16}\nds_read_b128 {v(M,4)}, v{M}")
    A(f"""
    s_waitcnt lgkmcnt(0)
    v_or3_b32 v4, v4, v5, v6
    v_or_b32 v4, v4, v7
    """)
    if nks == 4:
        A(f"v_or3_b32 v4, v4, v{M}, v{M+1}\nv_or3_b32 v4, v4, v{M+2}, v{M+3}")
    A(f"""
    s_nop 0
    v_readfirstlane_b32 s3, v4
    s_cmp_eq_u32 s3, 0
    s_cbranch_scc1 {Lend}
    """)
    A(f"""
    s_mov_b32 s{sFB}, 1
    s_mov_b32 s{sOff}, 0
    s_mov_b32 s{sCnt}, 64
    s_mov_b32 s{sKV}, s21
    s_waitcnt vmcnt(0)
    """)
    for t in range(4): A(f"v_mov_b32 v{M+t}, 0xff800000")
    Lfb = f"{name}_fb"
    A.label(Lfb)
    A(f"buffer_load_dwordx4 {a(KS,4)}, v{vK}, {srd}, s{sKV} offen")
    A("s_waitcnt vmcnt(0)")
    for t in range(4):
        A(f"{MF} {v(C+16*t,16)}, {a(KS,4)}, {a(Q+4*t,4)}, 0")
    A("s_nop 11")
    for t in range(4):
        maxtree(M + t, [C + 16 * t], False)
    A(f"""
    s_add_u32 s{sKV}, s{sKV}, 1024
    s_sub_u32 s{sCnt}, s{sCnt}, 1
    s_cmp_lg_u32 s{sCnt}, 0
    s_cbranch_scc1 {Lfb}
    """)
    ring_prologue()
    zero_o()
    A(f"s_branch {Lmain}")
    A.label(Lend)
    A("s_endpgm")
    return NV, NA, 2 * nks * WST + 64

if __name__ == "__main__":
    import sys
    nks = int(sys.argv[1]) if len(sys.argv) > 1 else 2
    var = sys.argv[2] if len(sys.argv) > 2 else ""
    A = Asm()
    B = Asm()
    nv, na, lds = attn_kernel(B, "attn_kernel", nks, stamps='s' in var, var=var)
    A.raw(f"; @launch kernel=attn_kernel grid=(256,1,1) block=({128*nks},1,1) lds={lds}")
    A.raw('.amdgcn_target "amdgcn-amd-amdhsa--gfx950"\n.text')
    A.lines += B.lines
    A.raw('.section .rodata,"a"')
    kd(A, "attn_kernel", nv + na, accum=nv)
    txt = A.text()
    check_hazards(txt)
    open("attn%d%s.s" % (nks, var), "w").write(txt)
```

```python
from asmlib import *
from layout import *
from attn import f2u, head, kd, MF

C1 = -2.0 * 1.4426950408889634 * 0.7978845608028654
C2 = C1 * 0.044715

def srd_from(A, sd, sp, nbytes):
    A(f"s_mov_b32 s{sd}, s{sp}\ns_mov_b32 s{sd+1}, s{sp+1}\ns_mov_b32 s{sd+2}, {nbytes}\ns_mov_b32 s{sd+3}, 0x00020000")

def k1_kernel(A, name, stamps=False, kidx=0):
    ST = Stamps(A, 64, stamps)
    PIECE = 528
    XT = 0
    QR = 67584
    LDS = QR + 3 * 24576
    sX, sWq, sWg, sWu, sWS = 8, 12, 16, 20, 24
    sWave, sRB, sCG, sMI, sNI = 28, 29, 30, 31, 32
    sQoff, sGoff, sM0q, sM0g, sNblk, sT0, sT1, sHoff = 33, 34, 35, 36, 37, 38, 39, 40
    sOne, sLo, sHi = 41, 42, 43
    sC = 44
    sBlk = 52
    vL, vT0, vT1, vT2 = 1, 2, 3, 4
    vDq0, vDq1, vDg0, vDg1 = 5, 6, 7, 8
    vTRq, vTRg = 9, 10
    vXW, vXR = 11, 12
    vS = 13
    R = 20
    T = 84
    ACC = 20
    WF = 68
    E = 92
    NV = 148
    XN = 0
    NA = 128
    Lend = f"{name}_end"
    head(A, name)
    A(f"s_cmp_ge_u32 s2, 256\ns_cbranch_scc1 {Lend}")
    ST()
    A(f"""
    s_load_dwordx4 s[4:7], s[0:1], 0
    s_load_dwordx4 s[56:59], s[0:1], 32
    s_load_dwordx2 s[60:61], s[0:1], 72
    v_lshrrev_b32 v{vT0}, 6, v0
    v_and_b32 v{vL}, 63, v0
    s_and_b32 s{sCG}, s2, 7
    v_readfirstlane_b32 s{sWave}, v{vT0}
    s_lshr_b32 s{sRB}, s2, 3
    v_lshrrev_b32 v{vT0}, 3, v{vL}
    v_and_b32 v{vT1}, 7, v{vL}                  ; 16B piece
    v_lshlrev_b32 v{vT2}, 10, v{vT0}
    v_lshl_add_u32 v{vS}, v{vT1}, 4, v{vT2}
    s_lshl_b32 s{sT0}, s{sRB}, 16
    s_lshl_b32 s{sT1}, s{sWave}, 14
    s_add_u32 s{sT0}, s{sT0}, s{sT1}
    s_add_u32 s{sT1}, s{sT0}, 8192
    s_waitcnt lgkmcnt(0)
    """)
    srd_from(A, sX, 4, S * D * 2)
    for rg in range(2):
        for cb in range(8):
            A(f"buffer_load_dwordx4 {v(R+32*rg+4*cb,4)}, v{vS}, {s(sX,4)}, s{sT0 if rg == 0 else sT1} offen offset:{cb*128}")
    srd_from(A, sWq, 6, D * 1536 * 2)
    srd_from(A, sWg, 56, D * F * 2)
    srd_from(A, sWu, 58, D * F * 2)
    srd_from(A, sWS, 60, WS_USED)
    A(f"""
    s_and_b32 s{sMI}, s{sWave}, 1
    s_lshr_b32 s{sNI}, s{sWave}, 1
    v_lshlrev_b32 v{vT2}, 1, v{vT0}
    v_and_b32 v{vT2}, 4, v{vT2}
    v_xor_b32 v{vT2}, v{vT2}, v{vT1}
    v_lshlrev_b32 v{vT2}, 4, v{vT2}
    v_mul_u32_u24 v{vDq0}, 3072, v{vT0}
    v_add_u32 v{vDq0}, v{vDq0}, v{vT2}
    v_add_u32 v{vDq1}, {8*3072-1024}, v{vDq0}
    v_mul_u32_u24 v{vDg0}, 2752, v{vT0}
    v_add_u32 v{vDg0}, v{vDg0}, v{vT2}
    v_add_u32 v{vDg1}, {8*2752-1024}, v{vDg0}
    s_mul_i32 s{sQoff}, s{sWave}, {16*3072}
    s_lshl_b32 s{sT0}, s{sCG}, 7
    s_add_u32 s{sQoff}, s{sQoff}, s{sT0}
    s_lshl_b32 s{sM0g}, s{sWave}, 11
    s_add_u32 s{sM0q}, s{sM0g}, {QR}
    s_mul_i32 s{sBlk}, s{sCG}, 3
    s_mul_i32 s{sGoff}, s{sWave}, {16*2752}
    s_lshl_b32 s{sT0}, s{sBlk}, 7
    s_add_u32 s{sGoff}, s{sGoff}, s{sT0}
    s_cmp_eq_u32 s{sCG}, 7
    s_cselect_b32 s{sNblk}, 1, 3
    """)
    def dma_q(stage):
        slot = stage % 3
        for p in range(3):
            A(f"s_add_u32 m0, s{sM0q}, {slot*24576 + p*8192}")
            A(f"s_add_u32 s{sT0}, s{sQoff}, {stage*64*3072 + p*1024}")
            A(f"buffer_load_dwordx4 v{vDq0}, {s(sWq,4)}, s{sT0} offen lds")
            A(f"buffer_load_dwordx4 v{vDq1}, {s(sWq,4)}, s{sT0} offen offset:1024 lds")
    def dma_g(stage):
        slot = stage % 4
        off = (stage % 8) * 64 * 2752 + (stage // 8) * 128
        A(f"s_add_u32 s{sT0}, s{sGoff}, {off}")
        for p, srd in enumerate((sWg, sWu)):
            A(f"s_add_u32 m0, s{sM0g}, {XT + slot*16384 + p*8192}")
            A(f"s_nop 0")
            A(f"buffer_load_dwordx4 v{vDg0}, {s(srd,4)}, s{sT0} offen lds")
            A(f"buffer_load_dwordx4 v{vDg1}, {s(srd,4)}, s{sT0} offen offset:1024 lds")
    dma_q(0); dma_q(1); dma_q(2)
    A(f"""
    v_lshrrev_b32 v{vT2}, 5, v{vL}
    v_lshlrev_b32 v{vTRg}, 10, v{vT2}           ; half*8*128
    v_bfe_u32 v{vT2}, v{vL}, 2, 2               ; r
    v_lshl_add_u32 v{vTRg}, v{vT2}, 7, v{vTRg}
    v_lshrrev_b32 v{vT2}, 1, v{vT2}
    v_xor_b32 v{vT2}, s{sNI}, v{vT2}
    v_lshl_add_u32 v{vTRg}, v{vT2}, 6, v{vTRg}
    v_bfe_u32 v{vT2}, v{vL}, 4, 1
    v_lshl_add_u32 v{vTRg}, v{vT2}, 5, v{vTRg}
    v_and_b32 v{vT2}, 3, v{vL}
    v_lshl_add_u32 v{vTRg}, v{vT2}, 3, v{vTRg}
    v_add_u32 v{vTRq}, {QR}, v{vTRg}
    s_lshr_b32 s{sT0}, s{sWave}, 1
    s_mul_i32 s{sT0}, s{sT0}, {64*PIECE}
    s_and_b32 s{sT1}, s{sWave}, 1
    s_lshl_b32 s{sT1}, s{sT1}, 8
    s_add_u32 s{sT0}, s{sT0}, s{sT1}
    v_mul_u32_u24 v{vXW}, {PIECE}, v{vT1}
    v_lshl_add_u32 v{vXW}, v{vT0}, 4, v{vXW}
    v_add_u32 v{vXW}, s{sT0}, v{vXW}
    s_mul_i32 s{sT0}, s{sMI}, {64*PIECE}
    v_lshrrev_b32 v{vT2}, 5, v{vL}
    v_mul_u32_u24 v{vXR}, {PIECE}, v{vT2}
    v_and_b32 v{vT2}, 31, v{vL}
    v_lshl_add_u32 v{vXR}, v{vT2}, 4, v{vXR}
    v_add_u32 v{vXR}, s{sT0}, v{vXR}
    s_mov_b32 s{sOne}, 0x3f803f80
    s_mov_b32 s{sLo}, 0x00003f80
    s_mov_b32 s{sHi}, 0x3f800000
    s_mov_b32 s{sC}, {hex(f2u(C1))}
    s_mov_b32 s{sC+1}, {hex(f2u(C1))}
    s_mov_b32 s{sC+2}, {hex(f2u(C2))}
    s_mov_b32 s{sC+3}, {hex(f2u(C2))}
    s_mov_b32 s{sC+4}, {hex(f2u(QSCALE))}
    s_mov_b32 s{sC+5}, {hex(f2u(QSCALE))}
    """)
    def red8(r):
        A("s_nop 1")
        A(f"v_add_f32_dpp v{r}, v{r}, v{r} quad_perm:[1,0,3,2] row_mask:0xf bank_mask:0xf")
        A("s_nop 1")
        A(f"v_add_f32_dpp v{r}, v{r}, v{r} quad_perm:[2,3,0,1] row_mask:0xf bank_mask:0xf")
        A("s_nop 1")
        A(f"v_add_f32_dpp v{r}, v{r}, v{r} row_half_mirror row_mask:0xf bank_mask:0xf")
    def rnd_bf16(dst, src):
        A(f"v_cvt_pk_bf16_f32 v{dst}, v{src}, v{src}")
        A(f"v_and_b32 v{dst}, 0xffff0000, v{dst}")
    s0, s1, s2_, s3_, mm, mb = vS + 1, vS + 2, vS + 3, vS + 4, vS + 5, vS + 6
    assert s0 % 2 == 0
    for rg in range(2):
        Rr = R + 32 * rg
        A(f"s_waitcnt vmcnt({18 + (8 if rg == 0 else 0)})")
        if rg == 0: ST()
        for i in range(32):
            acc = s0 + (i & 3)
            A(f"v_dot2_f32_bf16 v{acc}, v{Rr+i}, s{sOne}, {'0' if i < 4 else 'v%d' % acc}")
        A("s_nop 2")
        A(f"v_add_f32 v{s0}, v{s0}, v{s1}\nv_add_f32 v{s2_}, v{s2_}, v{s3_}\nv_add_f32 v{s0}, v{s0}, v{s2_}")
        red8(s0)
        A(f"v_mul_f32 v{mm}, {hex(f2u(1.0/512))}, v{s0}")
        rnd_bf16(mb, mm)
        A(f"v_sub_f32 v{mm}, v{mm}, v{mb}")
        A(f"v_xor_b32 v{mb}, 0x80000000, v{mb}")
        for i in range(32):
            A(f"v_dot2_f32_bf16 v{T+2*i}, v{Rr+i}, s{sLo}, v{mb}")
            A(f"v_dot2_f32_bf16 v{T+2*i+1}, v{Rr+i}, s{sHi}, v{mb}")
        A("s_nop 1")
        for i in range(32):
            acc = s0 + 2 * (i & 1)
            if i < 2: A(f"v_pk_mul_f32 {v(acc,2)}, {v(T+2*i,2)}, {v(T+2*i,2)}")
            else: A(f"v_pk_fma_f32 {v(acc,2)}, {v(T+2*i,2)}, {v(T+2*i,2)}, {v(acc,2)}")
        A(f"v_add_f32 v{s0}, v{s0}, v{s1}\nv_add_f32 v{s2_}, v{s2_}, v{s3_}\nv_add_f32 v{s0}, v{s0}, v{s2_}")
        red8(s0)
        A(f"v_mul_f32 v{s0}, {hex(f2u(1.0/512))}, v{s0}")
        A(f"v_fma_f32 v{s0}, -v{mm}, v{mm}, v{s0}")
        A(f"v_max_f32 v{s0}, 0, v{s0}")
        rnd_bf16(s0, s0)
        A(f"v_add_f32 v{s0}, {hex(f2u(1e-5))}, v{s0}")
        rnd_bf16(s0, s0)
        A(f"v_sqrt_f32 v{s0}, v{s0}\ns_nop 0")
        rnd_bf16(s0, s0)
        A(f"v_rcp_f32 v{s0}, v{s0}\ns_nop 0")
        A(f"v_mov_b32 v{s1}, v{s0}")
        for i in range(32):
            A(f"v_pk_mul_f32 {v(T+2*i,2)}, {v(T+2*i,2)}, {v(s0,2)}")
        for cb in range(8):
            for e in range(4):
                i = 4 * cb + e
                A(f"v_cvt_pk_bf16_f32 v{Rr+i}, v{T+2*i}, v{T+2*i+1}")
            A(f"ds_write_b128 v{vXW}, {v(Rr+4*cb,4)} offset:{XT + cb*8*PIECE + rg*128}")
    A("s_waitcnt lgkmcnt(0)\ns_barrier")
    ST()
    for ks in range(32):
        A(f"ds_read_b128 {a(XN+4*ks,4)}, v{vXR} offset:{XT + 2*ks*PIECE}")
        if ks == 14: A("s_waitcnt lgkmcnt(8)")
        if ks == 21: A("s_waitcnt lgkmcnt(8)")
        if ks == 28: A("s_waitcnt lgkmcnt(8)")
    def gemm(P, nslots, slotbytes, vTR, vTR2, base2_from, dma, pre_wait, swap_last, acc_init_zero=True):
        def reads(ks):
            stage, kk = divmod(ks, 4)
            slot = stage % nslots
            buf = WF + (ks & 1) * 12
            for p in range(P):
                off = slot * slotbytes + p * 8192 + kk * 2048
                reg = vTR
                if off + 512 >= 65536: reg, off = vTR2, off - base2_from
                A(f"ds_read_b64_tr_b16 {v(buf+4*p,2)}, v{reg} offset:{off}")
                A(f"ds_read_b64_tr_b16 {v(buf+4*p+2,2)}, v{reg} offset:{off+512}")
        def mfmas(ks):
            buf = WF + (ks & 1) * 12
            for p in range(P):
                c = "0" if ks == 0 else v(ACC+16*p, 16)
                if swap_last and p == P - 1:
                    A(f"{MF} {v(ACC+16*p,16)}, {a(XN+4*ks,4)}, {v(buf+4*p,4)}, {c}")
                else:
                    A(f"{MF} {v(ACC+16*p,16)}, {v(buf+4*p,4)}, {a(XN+4*ks,4)}, {c}")
        for ks in range(33):
            if ks < 32 and ks % 4 == 0:
                stage = ks // 4
                A(f"s_waitcnt vmcnt({pre_wait(stage)}) lgkmcnt(0)")
                A("s_barrier")
                reads(ks)
                dma(stage)
            elif ks < 32:
                A("s_waitcnt lgkmcnt(0)")
                reads(ks)
            else:
                A("s_waitcnt lgkmcnt(0)")
            if ks > 0: mfmas(ks - 1)
    A(f"v_add_u32 v{vT0}, 49152, v{vTRq}")
    issued = [("q", 0, 6), ("q", 1, 6), ("q", 2, 6)]
    def q_dma(stage):
        if stage >= 1 and stage + 2 < 8:
            dma_q(stage + 2); issued.append(("q", stage + 2, 6))
        if 5 <= stage <= 7:
            dma_g(stage - 5); issued.append(("g", stage - 5, 4))
    def q_wait(stage):
        i = [k for k, e in enumerate(issued) if e[:2] == ("q", stage)][0]
        return sum(e[2] for e in issued[i+1:])
    gemm(3, 3, 24576, vTRq, vT0, 49152, q_dma, q_wait, True)
    ST()
    A(f"""
    s_lshl_b32 s{sT0}, s{sRB}, 1
    s_add_u32 s{sT0}, s{sT0}, s{sMI}
    s_mul_i32 s{sHoff}, s{sT0}, {86*1024}
    s_lshl_b32 s{sT0}, s{sT0}, 10
    s_lshl_b32 s{sT1}, s{sCG}, 1
    s_add_u32 s{sT1}, s{sT1}, s{sNI}
    s_lshl_b32 s{sT1}, s{sT1}, 17
    s_add_u32 s{sT0}, s{sT0}, s{sT1}
    s_add_u32 s{sT1}, s{sT0}, 65536
    v_lshlrev_b32 v{E}, 4, v{vL}
    v_and_b32 v{E+1}, 0x33, v{vL}
    v_lshrrev_b32 v{E+2}, 1, v{vL}
    v_and_b32 v{E+2}, 4, v{E+2}
    v_lshlrev_b32 v{E+3}, 1, v{vL}
    v_and_b32 v{E+3}, 8, v{E+3}
    v_or3_b32 v{E+1}, v{E+1}, v{E+2}, v{E+3}
    v_lshlrev_b32 v{E+1}, 4, v{E+1}
    v_add_u32 v{E+1}, {KF}, v{E+1}
    v_bfe_u32 v{E+2}, v{vL}, 4, 1
    v_lshlrev_b32 v{E+2}, 16, v{E+2}
    v_lshrrev_b32 v{E+3}, 5, v{vL}
    v_lshl_add_u32 v{E+2}, v{E+3}, 8, v{E+2}
    v_and_b32 v{E+3}, 15, v{vL}
    v_lshl_add_u32 v{E+2}, v{E+3}, 4, v{E+2}
    v_add_u32 v{E+2}, {VF}, v{E+2}
    """)
    for i in range(8):
        A(f"v_pk_mul_f32 {v(ACC+2*i,2)}, {v(ACC+2*i,2)}, {s(sC+4,2)}")
    PK = E + 4
    for p in range(3):
        for i in range(8):
            A(f"v_cvt_pk_bf16_f32 v{PK+8*p+i}, v{ACC+16*p+2*i}, v{ACC+16*p+2*i+1}")
    ws = s(sWS, 4)
    A(f"buffer_store_dwordx4 {v(PK,4)}, v{E}, {ws}, s{sT0} offen")
    A(f"buffer_store_dwordx4 {v(PK+4,4)}, v{E}, {ws}, s{sT1} offen")
    A(f"buffer_store_dwordx4 {v(PK+8,4)}, v{E+1}, {ws}, s{sT0} offen")
    A(f"buffer_store_dwordx4 {v(PK+12,4)}, v{E+1}, {ws}, s{sT1} offen")
    A(f"buffer_store_dwordx4 {v(PK+16,4)}, v{E+2}, {ws}, s{sT0} offen")
    A(f"buffer_store_dwordx4 {v(PK+20,4)}, v{E+2}, {ws}, s{sT0} offen offset:512")
    A(f"""
    s_lshl_b32 s{sT0}, s{sBlk}, 12
    s_lshl_b32 s{sT1}, s{sNI}, 11
    s_add_u32 s{sHoff}, s{sHoff}, s{sT0}
    s_add_u32 s{sHoff}, s{sHoff}, s{sT1}
    s_add_u32 s{sHoff}, s{sHoff}, {HF}
    s_waitcnt vmcnt(0)
    """)
    ST()
    Lg = f"{name}_gu"
    A.label(Lg)
    def g_dma(stage): dma_g(stage + 3)
    def g_wait(stage): return 8
    gemm(2, 4, 16384, vTRg, vTRg, 0, g_dma, g_wait, False)
    A("s_nop 10")
    G, U = ACC, ACC + 16
    T1 = E + 4
    for i in range(8):
        A(f"v_pk_mul_f32 {v(T1+2*i,2)}, {v(G+2*i,2)}, {v(G+2*i,2)}")
    A(f"v_mov_b32 v{vT1}, s{sC}")
    A(f"v_mov_b32 v{vT1-1}, s{sC}")
    assert (vT1 - 1) % 2 == 0
    for i in range(8):
        A(f"v_pk_fma_f32 {v(T1+2*i,2)}, {v(T1+2*i,2)}, {s(sC+2,2)}, {v(vT1-1,2)}")
    for i in range(8):
        A(f"v_pk_mul_f32 {v(T1+2*i,2)}, {v(T1+2*i,2)}, {v(G+2*i,2)}")
    for i in range(16):
        A(f"v_exp_f32 v{T1+i}, v{T1+i}")
    for i in range(8):
        A(f"v_pk_mul_f32 {v(U+2*i,2)}, {v(U+2*i,2)}, {v(G+2*i,2)}")
    for i in range(8):
        A(f"v_pk_add_f32 {v(T1+2*i,2)}, {v(T1+2*i,2)}, 1.0 op_sel_hi:[1,0]")
    for i in range(16):
        A(f"v_rcp_f32 v{T1+i}, v{T1+i}")
    A("s_nop 0")
    for i in range(8):
        A(f"v_pk_mul_f32 {v(U+2*i,2)}, {v(U+2*i,2)}, {v(T1+2*i,2)}")
    for i in range(8):
        A(f"v_cvt_pk_bf16_f32 v{T1+i}, v{U+2*i}, v{U+2*i+1}")
    Lskip = f"{name}_skip"
    A(f"""
    s_lshl_b32 s{sT0}, s{sBlk}, 1
    s_add_u32 s{sT0}, s{sT0}, s{sNI}
    s_cmp_ge_u32 s{sT0}, 43
    s_cbranch_scc1 {Lskip}
    buffer_store_dwordx4 {v(T1,4)}, v{E}, {ws}, s{sHoff} offen
    buffer_store_dwordx4 {v(T1+4,4)}, v{E}, {ws}, s{sHoff} offen offset:1024
    s_waitcnt vmcnt(0)
    """)
    A.label(Lskip)
    A(f"""
    s_add_u32 s{sHoff}, s{sHoff}, 4096
    s_add_u32 s{sGoff}, s{sGoff}, 128
    s_add_u32 s{sBlk}, s{sBlk}, 1
    s_sub_u32 s{sNblk}, s{sNblk}, 1
    s_cmp_lg_u32 s{sNblk}, 0
    s_cbranch_scc1 {Lg}
    """)
    if stamps:
        ST(); ST.flush(ws, STAMP + kidx * MB, sWave, 2, 3, sT0)
    A("s_waitcnt vmcnt(0)")
    A.label(Lend)
    A("s_endpgm")
    return NV, NA, LDS

if __name__ == "__main__":
    import sys
    var = sys.argv[1] if len(sys.argv) > 1 else ""
    A = Asm(); B = Asm()
    nv, na, lds = k1_kernel(B, "k1_kernel", stamps='s' in var)
    A.raw(f"; @launch kernel=k1_kernel grid=(256,1,1) block=(256,1,1) lds={lds}")
    A.raw('.amdgcn_target "amdgcn-amd-amdhsa--gfx950"\n.text')
    A.lines += B.lines
    A.raw('.section .rodata,"a"')
    kd(A, "k1_kernel", nv + na, accum=nv)
    txt = A.text()
    check_hazards(txt)
    open("k1%s.s" % var, "w").write(txt)
```

```python
from asmlib import *
from layout import *
from attn import f2u, head, kd, MF
from k1 import srd_from

def k3_kernel(A, name, stamps=False, kidx=0):
    ST = Stamps(A, 64, stamps)
    RS = 272
    RB = 64 * RS
    LDS = 8 * RB
    NR = 8
    sX, sWo, sWd, sH, sO, sOut = 8, 12, 16, 20, 24, 28
    sWave, sRB, sCB, sT0, sT1, sM0, sWdOff, sWoOff, sHoff, sOoff = 32, 33, 34, 35, 36, 37, 38, 39, 40, 41
    vL, vT0, vT1, vT2, vD0, vD1, vTR0, vTR1, vA0, vA1h, vA1o, vXo = 1, 2, 3, 4, 5, 6, 7, 8, 9, 10, 11, 12
    XR = 16
    WF = 24
    E = 48
    NV = 128
    ACT = 0
    AD, AS = 64, 128
    NA = 192
    Lend = f"{name}_end"
    head(A, name)
    A(f"s_cmp_ge_u32 s2, 256\ns_cbranch_scc1 {Lend}")
    ST()
    A(f"""
    s_load_dwordx2 s[4:5], s[0:1], 0
    s_load_dwordx2 s[6:7], s[0:1], 16
    s_load_dwordx4 s[56:59], s[0:1], 48
    s_load_dwordx2 s[60:61], s[0:1], 72
    v_lshrrev_b32 v{vT0}, 6, v0
    v_and_b32 v{vL}, 63, v0
    s_and_b32 s{sT0}, s2, 7
    v_readfirstlane_b32 s{sWave}, v{vT0}
    s_lshl_b32 s{sT0}, s{sT0}, 2
    s_bfe_u32 s{sT1}, s2, 0x20003
    s_add_u32 s{sRB}, s{sT0}, s{sT1}
    s_lshr_b32 s{sCB}, s2, 5
    v_lshrrev_b32 v{vT0}, 3, v{vL}
    v_and_b32 v{vT1}, 7, v{vL}
    v_lshlrev_b32 v{vT2}, 1, v{vT0}
    v_and_b32 v{vT2}, 4, v{vT2}
    v_xor_b32 v{vT2}, v{vT2}, v{vT1}
    v_lshlrev_b32 v{vT2}, 4, v{vT2}
    v_lshl_add_u32 v{vD0}, v{vT0}, 10, v{vT2}
    v_add_u32 v{vD1}, {8*1024-1024}, v{vD0}
    v_lshlrev_b32 v{vA0}, 4, v{vL}
    v_add_u32 v{vA1h}, {86*1024}, v{vA0}
    v_add_u32 v{vA1o}, {32*1024}, v{vA0}
    s_lshl_b32 s{sT0}, s{sCB}, 7
    s_mul_i32 s{sWdOff}, s{sWave}, {22*16*1024}
    s_add_u32 s{sWdOff}, s{sWdOff}, s{sT0}
    s_mul_i32 s{sWoOff}, s{sWave}, {8*16*1024}
    s_add_u32 s{sWoOff}, s{sWoOff}, s{sT0}
    s_mul_i32 s{sHoff}, s{sRB}, {2*86*1024}
    s_mul_i32 s{sT1}, s{sWave}, {22*1024}
    s_add_u32 s{sHoff}, s{sHoff}, s{sT1}
    s_lshl_b32 s{sOoff}, s{sRB}, 16
    s_lshl_b32 s{sT1}, s{sWave}, 13
    s_add_u32 s{sOoff}, s{sOoff}, s{sT1}
    s_mul_i32 s{sM0}, s{sWave}, {NR*2048}
    s_waitcnt lgkmcnt(0)
    """)
    srd_from(A, sX, 4, S * D * 2)
    srd_from(A, sWo, 6, D * D * 2)
    srd_from(A, sWd, 56, F * D * 2)
    srd_from(A, sOut, 58, S * D * 2)
    A(f"""
    s_add_u32 s{sH}, s60, {HF}
    s_addc_u32 s{sH+1}, s61, 0
    s_mov_b32 s{sH+2}, {S*F*2}
    s_mov_b32 s{sH+3}, 0x00020000
    s_add_u32 s{sO}, s60, {OF}
    s_addc_u32 s{sO+1}, s61, 0
    s_mov_b32 s{sO+2}, {WS_USED-OF}
    s_mov_b32 s{sO+3}, 0x00020000
    """)
    NS = 30
    def fetch(st):
        slot = st % NR
        if st < 22: wsrd, woff, asrd, aoff, va1, j = sWd, sWdOff, sH, sHoff, vA1h, st
        else: wsrd, woff, asrd, aoff, va1, j = sWo, sWoOff, sO, sOoff, vA1o, st - 22
        A(f"s_add_u32 m0, s{sM0}, {slot*2048}")
        A(f"s_add_u32 s{sT0}, s{woff}, {j*16*1024}")
        A(f"buffer_load_dwordx4 v{vD0}, {s(wsrd,4)}, s{sT0} offen lds")
        A(f"buffer_load_dwordx4 v{vD1}, {s(wsrd,4)}, s{sT0} offen offset:1024 lds")
        A(f"s_add_u32 s{sT1}, s{aoff}, {j*1024}")
        A(f"buffer_load_dwordx4 {a(ACT+8*slot,4)}, v{vA0}, {s(asrd,4)}, s{sT1} offen")
        A(f"buffer_load_dwordx4 {a(ACT+8*slot+4,4)}, v{va1}, {s(asrd,4)}, s{sT1} offen")
    A(f"""
    v_lshrrev_b32 v{vXo}, 3, v0
    v_lshlrev_b32 v{vXo}, 10, v{vXo}
    v_lshl_add_u32 v{vXo}, v{vT1}, 4, v{vXo}
    s_lshl_b32 s42, s{sRB}, 16
    s_lshl_b32 s{sT0}, s{sCB}, 7
    s_add_u32 s42, s42, s{sT0}
    s_add_u32 s43, s42, 32768
    buffer_load_dwordx4 {v(XR,4)}, v{vXo}, {s(sX,4)}, s42 offen
    buffer_load_dwordx4 {v(XR+4,4)}, v{vXo}, {s(sX,4)}, s43 offen
    """)
    PD = NR - 1
    for st in range(PD): fetch(st)
    A(f"""
    v_lshrrev_b32 v{vT2}, 5, v{vL}
    v_lshlrev_b32 v{vTR0}, 9, v{vT2}
    v_bfe_u32 v{vT2}, v{vL}, 2, 2
    v_lshl_add_u32 v{vTR0}, v{vT2}, 7, v{vTR0}
    v_lshrrev_b32 v{vT2}, 1, v{vT2}
    v_lshl_add_u32 v{vTR0}, v{vT2}, 6, v{vTR0}
    v_bfe_u32 v{vT2}, v{vL}, 4, 1
    v_lshl_add_u32 v{vTR0}, v{vT2}, 5, v{vTR0}
    v_and_b32 v{vT2}, 3, v{vL}
    v_lshl_add_u32 v{vTR0}, v{vT2}, 3, v{vTR0}
    v_add_u32 v{vTR0}, s{sM0}, v{vTR0}
    v_xor_b32 v{vTR1}, 64, v{vTR0}
    """)
    def reads(st):
        slot = st % NR; buf = WF + (st % 2) * 8
        for ni, reg in enumerate((vTR0, vTR1)):
            A(f"ds_read_b64_tr_b16 {v(buf+4*ni,2)}, v{reg} offset:{slot*2048}")
            A(f"ds_read_b64_tr_b16 {v(buf+4*ni+2,2)}, v{reg} offset:{slot*2048+1024}")
    def mfmas(st):
        slot = st % NR; buf = WF + (st % 2) * 8
        acc = AD if st < 22 else AS
        for ni in range(2):
            for mi in range(2):
                d = a(acc + 16 * (2 * ni + mi), 16)
                c = "0" if st in (0, 22) else d
                A(f"{MF} {d}, {v(buf+4*ni,4)}, {a(ACT+8*slot+4*mi,4)}, {c}")
    issued = PD
    for st in range(NS + 1):
        if st < NS:
            A(f"s_waitcnt vmcnt({4*(issued - st - 1)}) lgkmcnt(0)")
            if st == 0: ST()
            reads(st)
        else:
            A("s_waitcnt lgkmcnt(0)")
        if st > 0: mfmas(st - 1)
        if issued < NS and (st == 0 or True):
            if issued - NR <= st - 1:
                fetch(issued); issued += 1
    ST()
    A(f"""
    s_barrier
    v_and_b32 v{vT0}, 31, v{vL}
    v_mul_u32_u24 v{vT0}, {RS}, v{vT0}
    v_lshrrev_b32 v{vT2}, 5, v{vL}
    v_lshl_add_u32 v{vT0}, v{vT2}, 4, v{vT0}
    s_mul_i32 s{sT0}, s{sWave}, {RB}
    v_add_u32 v{vT0}, s{sT0}, v{vT0}
    v_add_u32 v{vT2}, {4*RB}, v{vT0}
    """)
    for acc, reg in ((AD, vT0), (AS, vT2)):
        for ni in range(2):
            for mi in range(2):
                for q in range(4):
                    A(f"ds_write_b128 v{reg}, {a(acc+16*(2*ni+mi)+4*q,4)} offset:{mi*32*RS + ni*128 + q*32}")
            A("s_waitcnt lgkmcnt(4)")
    A(f"""
    v_lshrrev_b32 v{vT0}, 3, v0
    v_mul_u32_u24 v{vT0}, {RS}, v{vT0}
    v_lshl_add_u32 v{vT0}, v{vT1}, 5, v{vT0}
    v_add_u32 v{vT2}, {4*RB}, v{vT0}
    s_mov_b32 s44, {hex(f2u(-1.4426950408889634))}
    s_mov_b32 s45, {hex(f2u(-1.4426950408889634))}
    s_waitcnt lgkmcnt(0)
    s_barrier
    """)
    Dv, Sv, Tv = E, E + 32, E + 64
    for p in range(2):
        for base, reg in ((Dv, vT0), (Sv, vT2)):
            for w in range(4):
                off = w * RB + p * 32 * RS
                A(f"ds_read_b128 {v(base+8*w,4)}, v{reg} offset:{off}")
                A(f"ds_read_b128 {v(base+8*w+4,4)}, v{reg} offset:{off+16}")
            if base == Dv: A("s_waitcnt lgkmcnt(4)")
        A("s_waitcnt lgkmcnt(8)")
        for base in (Dv, Sv):
            if base == Sv: A("s_waitcnt lgkmcnt(0)")
            for i in range(4):
                A(f"v_pk_add_f32 {v(base+2*i,2)}, {v(base+2*i,2)}, {v(base+8+2*i,2)}")
                A(f"v_pk_add_f32 {v(base+16+2*i,2)}, {v(base+16+2*i,2)}, {v(base+24+2*i,2)}")
            for i in range(4):
                A(f"v_pk_add_f32 {v(base+2*i,2)}, {v(base+2*i,2)}, {v(base+16+2*i,2)}")
            if base == Dv:
                for i in range(4): A(f"v_pk_mul_f32 {v(Tv+2*i,2)}, {v(Dv+2*i,2)}, s[44:45]")
                for i in range(8): A(f"v_exp_f32 v{Tv+i}, v{Tv+i}")
                A("s_nop 0")
                for i in range(4): A(f"v_pk_add_f32 {v(Tv+2*i,2)}, {v(Tv+2*i,2)}, 1.0 op_sel_hi:[1,0]")
                for i in range(8): A(f"v_rcp_f32 v{Tv+i}, v{Tv+i}")
                A("s_nop 0")
                for i in range(4): A(f"v_pk_mul_f32 {v(Dv+2*i,2)}, {v(Dv+2*i,2)}, {v(Tv+2*i,2)}")
        if p == 0: A("s_waitcnt vmcnt(0)")
        for i in range(4):
            A(f"v_lshlrev_b32 v{Tv+2*i}, 16, v{XR+4*p+i}")
            A(f"v_and_b32 v{Tv+2*i+1}, 0xffff0000, v{XR+4*p+i}")
        for i in range(4):
            A(f"v_pk_fma_f32 {v(Tv+2*i,2)}, {v(Sv+2*i,2)}, {v(Dv+2*i,2)}, {v(Tv+2*i,2)}")
        for i in range(4):
            A(f"v_cvt_pk_bf16_f32 v{XR+4*p+i}, v{Tv+2*i}, v{Tv+2*i+1}")
        A(f"buffer_store_dwordx4 {v(XR+4*p,4)}, v{vXo}, {s(sOut,4)}, s{42+p} offen")
    if stamps:
        ST()
        A("s_waitcnt vmcnt(0)")
        ST(); ST.flush(s(sO,4), STAMP - OF + kidx * MB, sWave, 2, 3, sT0)
    A.label(Lend)
    A("s_endpgm")
    return NV, NA, LDS
```

```python
MB = 1 << 20
QF = 0 * MB
KF = 2 * MB
VF = 4 * MB
OF = 6 * MB
XNF = 8 * MB
HF = 10 * MB
GF = 16 * MB
FLAGS = 24 * MB
FQ = FLAGS
FH = FLAGS + 0x20000
FO = FLAGS + 0xA0000
WS_USED = 32 * MB
S = 2048; D = 512; H = 32; DH = 16; F = 1376
QSCALE = 0.25 * 1.4426950408889634
STAMP = 28 * MB
MFO = 26 * MB
```

```python
import sys
from asmlib import *
from layout import *
from attn import attn_kernel, kd
from k1 import k1_kernel
from k3 import k3_kernel
NAME = 'recurrent_scan__softmax_full_mha__glu_gated_geglu__prompt'
def build(stamps=False, only=None):
    ks = []
    B = Asm()
    specs = [("k1_kernel", lambda n, i: k1_kernel(B, n, stamps, i), 256),
             ("attn_kernel", lambda n, i: attn_kernel(B, n, 2, stamps, i), 256),
             ("k3_kernel", lambda n, i: k3_kernel(B, n, stamps, i), 256)]
    if only is not None: specs = [specs[i] for i in only]
    for i, (n, f, blk) in enumerate(specs):
        nv, na, lds = f(n, i)
        ks.append((n, nv, na, lds, blk))
    A = Asm()
    for n, nv, na, lds, blk in ks:
        A.raw(f"; @launch kernel={n} grid=(256,1,1) block=({blk},1,1) lds={lds}")
    A.raw('.amdgcn_target "amdgcn-amd-amdhsa--gfx950"\n.text')
    A.lines += B.lines
    A.raw('.section .rodata,"a"')
    for n, nv, na, lds, blk in ks:
        kd(A, n, nv + na, accum=nv)
    txt = A.text()
    check_hazards(txt)
    return txt
if __name__ == "__main__":
    open("all_s.s", "w").write(build(True))
    open("k3only_s.s", "w").write(build(True, [2]))
    open(f"../cdna_kernels/{NAME}.s", "w").write(build(False))
```

```python
import re

def v(i, n=1):
    return f"v{i}" if n == 1 else f"v[{i}:{i+n-1}]"
def a(i, n=1):
    return f"a{i}" if n == 1 else f"a[{i}:{i+n-1}]"
def s(i, n=1):
    return f"s{i}" if n == 1 else f"s[{i}:{i+n-1}]"

class Asm:
    def __init__(self):
        self.lines = []
        self._uid = 0
    def __call__(self, txt):
        for ln in txt.strip("\n").split("\n"):
            ln = ln.strip()
            if ln:
                self.lines.append("    " + ln)
    def label(self, name):
        self.lines.append(f"{name}:")
    def raw(self, txt):
        self.lines.append(txt)
    def comment(self, txt):
        self.lines.append("    ; " + txt)
    def uid(self, p="L"):
        self._uid += 1
        return f"{p}_{self._uid}"
    def text(self):
        return "\n".join(self.lines) + "\n"

_REG = re.compile(r"\b([vas])(?:(\d+)|\[(\d+):(\d+)\])")
TRANS = ("v_exp_f32", "v_log_f32", "v_rcp_f32", "v_rsq_f32", "v_sqrt_f32", "v_sin_f32", "v_cos_f32",
         "v_exp_f16", "v_rcp_f16", "v_rcp_iflag_f32")

def _regs(op):
    out = set()
    for m in _REG.finditer(op):
        k = m.group(1)
        if m.group(2) is not None:
            out.add((k, int(m.group(2))))
        else:
            for r in range(int(m.group(3)), int(m.group(4)) + 1):
                out.add((k, r))
    if re.search(r"\bvcc\b", op):
        out.add(("s", "vcc"))
    if re.search(r"\bexec\b", op):
        out.add(("s", "exec"))
    if re.search(r"\bm0\b", op):
        out.add(("s", "m0"))
    return out

def _split_ops(rest):
    ops, depth, cur = [], 0, ""
    for ch in rest:
        if ch == "[":
            depth += 1
        if ch == "]":
            depth -= 1
        if ch == "," and depth == 0:
            ops.append(cur.strip()); cur = ""
        else:
            cur += ch
    if cur.strip():
        ops.append(cur.strip())
    return ops

class Ins:
    def __init__(self, line, idx):
        self.line = line; self.idx = idx
        t = line.split(";")[0].strip()
        parts = t.split(None, 1)
        self.op = parts[0]
        rest = parts[1] if len(parts) > 1 else ""
        self.ops = _split_ops(rest)
        op = self.op
        self.is_mfma = op.startswith("v_mfma") or op.startswith("v_smfmac")
        self.is_valu = op.startswith("v_") and not self.is_mfma
        self.is_trans = any(op.startswith(x) for x in TRANS)
        self.is_vmem = op.startswith(("buffer_", "global_", "flat_"))
        self.is_ds = op.startswith("ds_")
        self.is_salu = op.startswith("s_")
        self.w = set(); self.r = set()
        o = self.ops
        self.passes = 0
        self.srcc = set(); self.srcab = set()
        if self.is_mfma:
            self.w = _regs(o[0]); self.srcab = _regs(o[1]) | _regs(o[2]); self.srcc = _regs(o[3])
            if op.startswith("v_smfmac"):
                self.srcab |= self.srcc; self.srcc = set(self.w)
            self.r = self.srcab | self.srcc
            self.passes = 8 if ("32x32x16" in op or "32x32x32" in op) else (4 if ("16x16x32" in op or "16x16x64" in op) else 16)
        elif self.is_valu:
            if op.startswith("v_cmp"):
                self.w = _regs(o[0]); self.r = set().union(*[_regs(x) for x in o[1:]])
                if op.startswith("v_cmpx"): self.w.add(("s", "exec"))
            elif op.startswith(("v_permlane16_swap", "v_permlane32_swap", "v_swap")):
                self.w = _regs(o[0]) | _regs(o[1]); self.r = set(self.w)
            elif op.startswith(("v_add_co", "v_sub_co", "v_addc_co", "v_subb_co", "v_div_scale", "v_mad_u64")):
                self.w = _regs(o[0]) | _regs(o[1]); self.r = set().union(*[_regs(x) for x in o[2:]])
            elif op == "v_nop":
                pass
            else:
                self.w = _regs(o[0]); self.r = set().union(*[_regs(x) for x in o[1:]]) if len(o) > 1 else set()
                if op.startswith(("v_fmac", "v_pk_fmac", "v_dot2c", "v_writelane")) or "dpp" in t or "row_" in t or "quad_perm" in t:
                    self.r |= self.w
                if op.startswith("v_cndmask") and len(o) == 3: self.r.add(("s", "vcc"))
            self.is_dpp = ("row_" in t) or ("quad_perm" in t) or ("wave_" in t)
        elif self.is_vmem:
            lds = bool(re.search(r"\blds\b", t)) or "_lds_" in op
            self.lds_dma = lds
            allr = [_regs(x) for x in o]
            if "load" in op and not lds:
                self.w = allr[0]; self.r = set().union(*allr[1:])
            elif "atomic" in op and "sc0" in t:
                self.w = allr[0]; self.r = set().union(*allr)
            else:
                self.r = set().union(*allr) if allr else set()
            if lds: self.r.add(("s", "m0"))
            self.store_data = set()
            if "store" in op and (op.endswith("x4") or op.endswith("x3")):
                self.store_data = allr[0] if op.startswith("buffer_") else allr[1]
        elif self.is_ds:
            allr = [_regs(x) for x in o]
            if "read" in op or "bpermute" in op or "permute" in op or "swizzle" in op or "_rtn" in op:
                self.w = allr[0]; self.r = set().union(*allr[1:]) if len(allr) > 1 else set()
            else:
                self.r = set().union(*allr)
        elif self.is_salu:
            if op.startswith(("s_cmp", "s_cbranch", "s_branch", "s_waitcnt", "s_nop", "s_barrier", "s_endpgm", "s_setprio", "s_sleep", "s_bitcmp")):
                self.r = set().union(*[_regs(x) for x in o]) if o else set()
            else:
                self.w = _regs(o[0]) if o else set()
                self.r = set().union(*[_regs(x) for x in o[1:]]) if len(o) > 1 else set()
                if "saveexec" in op: self.w.add(("s", "exec"))
        self.slots = 1
        if op == "s_nop":
            self.slots = int(o[0], 0) + 1

def _need(p, c):
    n = 0
    vw = {x for x in p.w if x[0] in "va"}
    sw = {x for x in p.w if x[0] == "s"}
    if p.is_valu:
        if c.is_mfma and vw & c.r: n = max(n, 3 if p.is_trans else 2)
        if c.is_mfma and ("s", "exec") in sw: n = max(n, 4)
        if p.is_trans and c.is_valu and not c.is_trans and vw & c.r: n = max(n, 1)
        if p.is_trans and (c.is_vmem or c.is_ds) and vw & c.r: n = max(n, 1)
        if c.is_valu and c.op.startswith("v_permlane") and vw & c.r: n = max(n, 2)
        if c.is_valu and getattr(c, "is_dpp", False) and vw & c.r: n = max(n, 2)
        if c.is_valu and getattr(c, "is_dpp", False) and ("s", "exec") in sw: n = max(n, 5)
        if c.op.startswith(("v_readlane", "v_readfirstlane")) and vw & c.r: n = max(n, 1)
        if c.op.startswith(("v_readlane", "v_readfirstlane", "v_writelane")) and ("s", "exec") in sw: n = max(n, 4)
        if c.is_vmem and sw & c.r: n = max(n, 5)
        if c.is_valu and sw & c.r:
            n = max(n, 4 if c.op.startswith(("v_readlane", "v_writelane", "v_div_fmas")) else 2)
    if p.op.startswith("v_dot"):
        if c.op == p.op:
            srcab = set().union(*[_regs(x) for x in c.ops[1:3]])
            if vw & srcab: n = max(n, 3)
        elif vw & (c.r | c.w): n = max(n, 3)
    if p.is_mfma:
        P = p.passes
        tab_ab = {2: 5, 4: 8, 8: 12, 16: 20}[P]
        tab_c = {2: 4, 4: 6, 8: 10, 16: 18}[P]
        if c.is_mfma:
            if p.w & c.srcab: n = max(n, tab_ab)
            if p.w & c.srcc and not (p.w == c.srcc and p.passes == c.passes): n = max(n, tab_c)
            if p.w & c.w and not (p.w & c.srcc): n = max(n, tab_c)
        elif c.is_valu or c.is_vmem or c.is_ds:
            if p.w & (c.r | c.w): n = max(n, tab_ab)
        if c.is_valu and p.srcc & c.w:
            n = max(n, {2: 1, 4: 3, 8: 7, 16: 15}[P])
    if p.is_salu and ("s", "m0") in p.w and c.is_vmem and getattr(c, "lds_dma", False):
        n = max(n, 1)
    if p.is_vmem and getattr(p, "store_data", None) and (p.store_data & c.w):
        n = max(n, 2 if c.is_valu else 1)
    return n

def check_hazards(text, verbose=True):
    ins = []; labels = {}
    for ln in text.split("\n"):
        t = ln.split(";")[0].strip()
        if not t or t.startswith("."):
            if t.startswith(".section") or t.startswith(".amdhsa_kernel"):
                pass
            continue
        if t.endswith(":"):
            labels[t[:-1]] = len(ins); continue
        if not re.match(r"^(v_|s_|ds_|buffer_|global_|flat_)", t):
            continue
        ins.append(Ins(t, len(ins)))
    probs = []
    W = 24
    def scan(seq):
        for i, p in enumerate(seq):
            if not (p.is_valu or p.is_mfma or p.is_salu or p.is_vmem): continue
            dist = 0
            for c in seq[i+1:i+1+W]:
                nd = _need(p, c)
                if nd > dist:
                    probs.append(f"HAZARD need {nd} have {dist}: [{p.idx}] {p.line}  ->  [{c.idx}] {c.line}")
                dist += c.slots + (1 if (c.is_trans and p.is_mfma) else 0)
                if dist >= 21: break
                if c.op in ("s_endpgm", "s_branch"): break
    scan(ins)
    for i, b in enumerate(ins):
        if b.op.startswith(("s_cbranch", "s_branch")) and b.ops and b.ops[0] in labels:
            tgt = labels[b.ops[0]]
            seq = ins[max(0, i - W):i + 1]
            seq2 = seq[:-1] + [Ins("s_nop 0", b.idx)] + ins[tgt:tgt + W]
            scan(seq2)
    probs = sorted(set(probs))
    if verbose:
        for p in probs: print(p)
        print(f"hazard check: {len(ins)} instrs, {len(probs)} problems")
    return probs


class Stamps:
    def __init__(self, A, base=60, on=False):
        self.A = A; self.base = base; self.n = 0; self.on = on; self.names = []
    def __call__(self, name=""):
        if not self.on: return
        b = self.base + 2 * self.n
        assert b + 1 < 102
        self.A(f"{'s_memtime' if getattr(self, 'cyc', False) else 's_memrealtime'} s[{b}:{b+1}]")
        self.n += 1
    def flush(self, srd, off, swave, vt0, vt1, st):
        if not self.on: return
        A = self.A
        A("s_waitcnt lgkmcnt(0)")
        A(f"s_lshl_b32 s{st}, s2, 4")
        A(f"s_add_u32 s{st}, s{st}, s{swave}")
        A(f"s_lshl_b32 s{st}, s{st}, 8")
        A(f"s_add_u32 s{st}, s{st}, {off}")
        A(f"v_mov_b32 v{vt0}, 0")
        for i in range(self.n):
            b = self.base + 2 * i
            A(f"v_mov_b32 v{vt1}, s{b}")
            A(f"buffer_store_dword v{vt1}, v{vt0}, {srd}, s{st} offen offset:{8*i+4}")
            A(f"s_nop 1")
```

```python
import sys, struct
from asmlib import *
from layout import *
NAME = 'recurrent_scan__softmax_full_mha__glu_gated_geglu__prompt'
def f2u(x): return struct.unpack("<I", struct.pack("<f", x))[0]
MF = "v_mfma_f32_32x32x16_bf16"
SMF = "v_smfmac_f32_32x32x32_bf16"
C1 = -2.0 * 1.4426950408889634 * 0.7978845608028654
C2 = C1 * 0.044715
OFFSET = 80.0
NV, NA = 144, 112

SLOT = 16384
PIECE = 528
XT = 5 * SLOT
CMB = 131072
CMBW = 2 * 2304
CNT = 149504
LDC = CNT + 1024
AFL = LDC + 1024
GO = AFL + 8 * 256
LDS = GO + 256
RS = 272; RBY = 64 * RS
assert CMB + 4 * CMBW <= CNT

class Fifo:
    def __init__(self, cap): self.q = []; self.cap = cap; self.since = 0
    def push(self, tag, n=1): self.q += [tag] * n; self.since += n
    def need(self, tag):
        idx = [i for i, t in enumerate(self.q) if t == tag]
        if not idx: return None
        return min(len(self.q) - 1 - idx[-1], self.cap)
    def waited(self, n): self.q = self.q[max(0, len(self.q) - n):] if n else []
    def clear(self): self.q = []

def build(stamps=False, opt=None):
    opt = opt or {}
    TIMEOUT = opt.get("timeout", 200000)
    NG0 = opt.get('ng0', 4)
    PF2MASK = '0xffffffff'
    A = Asm()
    K = NAME + "_kernel"
    ST = Stamps(A, 70, stamps); ST.cyc = opt.get('cyc', False)
    sX, sWq, sWgu, sWd, sWo, sWS, sOut, sDbg = 8, 12, 16, 20, 24, 28, 32, 36
    sWave, sRB, sCG, sT0, sT1, sT2, sTag, sTO = 40, 41, 42, 43, 44, 45, 46, 47
    sGW, sMI, sNI, sM0, sQoff, sGoff, sDoff, sOoffW, sNeed, sFlag, sHst, sBlk, sNb = 48, 49, 50, 51, 52, 53, 54, 55, 56, 57, 58, 59, 60
    sHfl, sC, sD0, sD1, sHld, sXo, sHb, sSt = 61, 62, 64, 65, 66, 67, 68, 69
    sKA, sCnt, sKB2, sBad = 48, 51, 49, 52
    sFB, sOff, sQ, sKVb, sHead, sO, sKb, sFo = 50, 54, 55, 56, 57, 60, 61, 62
    sMask, sQ0, sFQ, sP3, sPKV = 58, 63, 65, 66, 67
    ws = s(sWS, 4)
    vL, vT0, vT1, vT2, vHF = 1, 2, 3, 4, 5
    vDq0, vDq1, vDg0, vDg1, vDd0, vDd1 = 6, 7, 8, 9, 10, 11
    vTRn, vTRnH, vTRp0, vTRp0H, vTRp1, vTRp1H = 12, 13, 14, 15, 16, 17
    vCnt, vOne, vP, vL16, vFl, vL128 = 18, 19, 20, 21, 22, 23
    vCntR = 0
    slow = []
    vKo, vVo, vH1, vO1, vXo, vRW, vRR, vXR = 24, 25, 26, 27, 28, 29, 30, 31
    WFB = [32, 36, 112, 116, 120, 124]
    if opt.get('twice'): WFB = [32, 128, 112, 116, 120, 124]
    ACC0, ACC1, TMP, AD, XR, GR, SR = 40, 56, 72, 40, 104, 128, 112
    vmq = Fifo(63); lq = Fifo(15)
    uid = [0]
    def lab(p):
        uid[0] += 1; return f"L_{p}{uid[0]}"
    def vwait(tag):
        n = vmq.need(tag)
        if n is not None: A(f"s_waitcnt vmcnt({n})"); vmq.waited(n)
    def lwait(tag):
        n = lq.need(tag)
        if n is not None: A(f"s_waitcnt lgkmcnt({n})"); lq.waited(n)
    def lds(instr, tag):
        if len(lq.q) >= 15:
            A("s_waitcnt lgkmcnt(12)"); lq.waited(12)
        A(instr); lq.push(tag)
    def timeout_exit(lbl):
        A(f"s_sub_u32 s{sTO}, s{sTO}, 1\ns_cmp_lt_i32 s{sTO}, 0\ns_cbranch_scc1 {lbl}")
    def emask(n): return n if isinstance(n, str) else ("-1" if n == 64 else hex((1 << n) - 1))

    A.raw(f".globl {K}\n.p2align 8\n.type {K},@function\n{K}:")
    F0 = opt.get("front0"); FR = opt.get("front")
    A(f"""
    s_cmp_ge_u32 s2, 256
    s_cbranch_scc1 L_end
    s_load_dwordx4 s[4:7], s[0:1], 0
    s_load_dwordx2 s[24:25], s[0:1], 16
    s_load_dwordx4 s[16:19], s[0:1], 32
    s_load_dwordx4 s[20:23], s[0:1], 48
    s_load_dwordx4 s[36:39], s[0:1], 64
    """)
    if opt.get("cpf", 1):
        A(f"""
        s_getpc_b64 s[8:9]
        s_lshr_b32 s10, s2, 3
        s_lshl_b32 s10, s10, 7
        s_add_u32 s8, s8, s10
        s_addc_u32 s9, s9, 0
        v_lshlrev_b32 v2, 12, v0
        v_add_co_u32 v2, vcc, s8, v2
        v_mov_b32 v3, s9
        v_cmp_gt_u32 s[10:11], 12, v0
        v_addc_co_u32 v3, vcc, 0, v3, vcc
        s_and_saveexec_b64 s[12:13], s[10:11]
        s_cbranch_execz L_nocpf
        global_load_dword v143, v[2:3], off
        L_nocpf:
        s_mov_b64 exec, -1
        """)
    ST()
    A(f"""
    v_lshrrev_b32 v{vT0}, 6, v0
    v_and_b32 v{vL}, 63, v0
    s_and_b32 s{sT0}, s2, 7
    v_readfirstlane_b32 s{sWave}, v{vT0}
    s_lshr_b32 s{sT1}, s2, 3
    s_lshr_b32 s{sRB}, s{sT0}, 1
    s_lshl_b32 s{sRB}, s{sRB}, 3
    s_and_b32 s{sT2}, s{sT1}, 7
    s_add_u32 s{sRB}, s{sRB}, s{sT2}
    s_and_b32 s{sCG}, s{sT0}, 1
    s_lshl_b32 s{sCG}, s{sCG}, 2
    s_lshr_b32 s{sT2}, s{sT1}, 3
    s_add_u32 s{sCG}, s{sCG}, s{sT2}
    v_lshrrev_b32 v{vT0}, 3, v{vL}
    v_and_b32 v{vT1}, 7, v{vL}                  ; 16B piece
    v_lshlrev_b32 v{vT2}, 10, v{vT0}
    v_lshl_add_u32 v5, v{vT1}, 4, v{vT2}
    s_lshl_b32 s{sT0}, s{sRB}, 16
    s_lshl_b32 s{sT1}, s{sWave}, 13
    s_add_u32 s{sT0}, s{sT0}, s{sT1}
    s_mov_b32 s{sX+2}, {S*D*2}
    s_mov_b32 s{sX+3}, 0x00020000
    s_mov_b32 s{sWq+2}, {D*1536*2}
    s_mov_b32 s{sWq+3}, 0x00020000
    s_and_b32 s{sGW}, s{sWave}, 3
    s_and_b32 s{sMI}, s{sGW}, 1
    v_lshlrev_b32 v{vL16}, 4, v{vL}
    s_lshl_b32 s{sT1}, s{sGW}, 2
    s_add_u32 s{sT1}, s{sT1}, {CNT}
    v_add_u32 v{vCnt}, s{sT1}, v{vL16}
    v_mov_b32 v{vOne}, 1
    v_and_b32 v{vFl}, 3, v{vL}
    v_bfe_u32 v{vXo}, v0, 3, 5
    v_lshl_add_u32 v{vCntR}, v{vFl}, 2, v{vL16}
    v_add_u32 v{vCntR}, {CNT}, v{vCntR}
    s_mov_b32 s{sTO}, {TIMEOUT}
    s_waitcnt lgkmcnt(0)
    s_mov_b32 s{sX}, s4
    s_mov_b32 s{sX+1}, s5
    s_mov_b32 s{sWq}, s6
    s_mov_b32 s{sWq+1}, s7
    """)
    R = 40
    for cb in range(8):
        A(f"buffer_load_dwordx4 {v(R+4*cb,4)}, v5, {s(sX,4)}, s{sT0} offen offset:{cb*128}")
    SRDS = f"""
    s_mov_b32 s{sWS}, s38
    s_mov_b32 s{sWS+1}, s39
    s_mov_b32 s{sWS+2}, {WS_USED}
    s_mov_b32 s{sWS+3}, 0x00020000
    s_mov_b32 s{sDbg+2}, 256
    s_mov_b32 s{sDbg+3}, 0x00020000
    s_bitcmp1_b32 s{sWave}, 1
    s_cselect_b32 s{sWgu}, s18, s16
    s_cselect_b32 s{sWgu+1}, s19, s17
    s_mov_b32 s{sWgu+2}, {D*F*2}
    s_mov_b32 s{sWgu+3}, 0x00020000
    v_lshlrev_b32 v{vT2}, 1, v{vT0}
    v_and_b32 v{vT2}, 4, v{vT2}
    v_xor_b32 v{vT2}, v{vT2}, v{vT1}
    v_lshlrev_b32 v{vHF}, 4, v{vT2}
    s_lshl_b32 s{sM0}, s{sGW}, 12
    s_mul_i32 s{sBlk}, s{sCG}, 3
    s_add_u32 s{sT1}, s{sCG}, 1
    s_lshr_b32 s{sT1}, s{sT1}, 2
    s_sub_u32 s{sBlk}, s{sBlk}, s{sT1}
    """
    A(SRDS)
    A(f"s_cmp_lt_u32 s{sWave}, 4\ns_cbranch_scc1 L_pre_a")
    BASE = [0, 3, 6, 8, 11, 14, 17, 19]
    DSEQ = [BASE[j] for j in range(8) if j % 4 != 3] + [BASE[j] + 1 for j in range(8)] + [BASE[j] + 2 for j in range(8)]
    CSTART = {0: 0, 6: 1, 14: 2}
    CMASK = [0x0fff0fff, 0xffffffff, 0xffffffff]
    def dma_pieces(kind, idx, slot):
        if kind == "q":
            panel = (1, 2, 0)[idx // 4]; o = (idx % 4) * 128 * 3072 + panel * 1024
            srd, so, v0_, v1_, o2 = sWq, sQoff, vDq0, vDq1, o + 16 * 3072
        elif kind == "g":
            o = (idx % 8) * 64 * 2752 + (idx // 8) * 128
            srd, so, v0_, v1_, o2 = sWgu, sGoff, vDg0, vDg1, o + 16 * 2752
        elif kind == "d":
            o = DSEQ[2 * idx] * 64 * 1024; o2 = DSEQ[2 * idx + 1] * 64 * 1024
            srd, so, v0_, v1_ = sWd, sDoff, vDd0, vDd1
        else:
            o = idx * 32 * 1024; o2 = o + 16 * 1024
            srd, so, v0_, v1_ = sWo, sOoffW, vDd0, vDd1
        tag = ("dma", kind, idx)
        def p0():
            A(f"s_add_u32 m0, s{sM0}, {slot*SLOT}\ns_add_u32 s{sD0}, s{so}, {o}")
            A(f"buffer_load_dwordx4 v{v0_}, {s(srd,4)}, s{sD0} offen lds"); vmq.push(tag)
        def p1():
            A(f"buffer_load_dwordx4 v{v1_}, {s(srd,4)}, s{sD0} offen offset:1024 lds"); vmq.push(tag)
        def p2():
            A(f"s_add_u32 s{sD0}, s{so}, {o2 - 2048}")
            A(f"buffer_load_dwordx4 v{v0_}, {s(srd,4)}, s{sD0} offen offset:2048 lds"); vmq.push(tag)
        def p3():
            A(f"buffer_load_dwordx4 v{v1_}, {s(srd,4)}, s{sD0} offen offset:3072 lds"); vmq.push(tag)
        return [p0, p1, p2, p3]
    def dma(kind, idx, slot):
        cap = opt.get("ldcap", 40)
        for p in dma_pieces(kind, idx, slot):
            if len(vmq.q) > cap:
                A(f"s_waitcnt vmcnt({cap})"); vmq.waited(cap)
            p()
    def ddq(g): return ("q", g, g % 8) if g < 12 else ("g", g - 12, g % 8)
    GUADDR = f"""
    v_mul_u32_u24 v{vDg0}, 2752, v{vT0}
    v_add_u32 v{vDg0}, v{vDg0}, v{vHF}
    v_add_u32 v{vDg1}, {8*2752-1024}, v{vDg0}
    s_mul_i32 s{sGoff}, s{sMI}, {32*2752}
    s_lshl_b32 s{sT0}, s{sBlk}, 7
    s_add_u32 s{sGoff}, s{sGoff}, s{sT0}
    """
    A(f"""
    v_bfe_u32 v{vP}, v{vL}, 2, 2
    v_mul_u32_u24 v{vP}, 3072, v{vP}
    v_lshl_add_u32 v{vP}, v{vFl}, 7, v{vP}
    v_lshrrev_b32 v{vKo}, 4, v{vL}
    v_lshl_add_u32 v{vP}, v{vKo}, 10, v{vP}
    s_lshr_b32 s{sT1}, s2, 3
    s_mul_i32 s{sT1}, s{sT1}, {16*3072}
    s_mul_i32 s{sT0}, s{sGW}, {4*3072}
    s_add_u32 s{sT1}, s{sT1}, s{sT0}
    s_and_b32 s{sT0}, s2, 1
    s_lshl_b32 s{sT0}, s{sT0}, 9
    s_add_u32 s{sT1}, s{sT1}, s{sT0}
    s_lshr_b32 s{sNI}, s{sGW}, 1
    v_bfe_u32 v{vT2}, v{vL}, 2, 2
    v_lshlrev_b32 v{vTRp0}, 7, v{vT2}
    v_bfe_u32 v{vKo}, v{vL}, 4, 1
    v_lshl_add_u32 v{vTRp0}, v{vKo}, 5, v{vTRp0}
    v_lshl_add_u32 v{vTRp0}, v{vFl}, 3, v{vTRp0}
    v_lshrrev_b32 v{vH1}, 1, v{vT2}             ; r>>1
    v_lshrrev_b32 v{vO1}, 5, v{vL}              ; half
    v_xor_b32 v{vFl}, s{sNI}, v{vH1}
    v_lshl_add_u32 v{vTRn}, v{vFl}, 6, v{vTRp0}
    v_lshl_add_u32 v{vTRn}, v{vO1}, 10, v{vTRn}
    v_add_u32 v{vTRnH}, 65536, v{vTRn}
    v_and_b32 v{vRW}, 31, v{vL}
    v_mul_u32_u24 v{vXR}, {PIECE}, v{vO1}
    v_lshl_add_u32 v{vXR}, v{vRW}, 4, v{vXR}
    s_mul_i32 s{sT0}, s{sMI}, {64*PIECE}
    s_add_u32 s{sT0}, s{sT0}, {XT}
    v_add_u32 v{vXR}, s{sT0}, v{vXR}
    s_mov_b64 exec, {'0xffffffff' if opt.get('p1kv', 1) else '0xffff'}
    buffer_load_dword v143, v{vP}, {s(sWq,4)}, s{sT1} offen offset:1024
    s_mov_b64 exec, -1
    s_mov_b32 s3, 1
    s_setprio 1
    s_waitcnt vmcnt(1)
    s_branch L_ln
    """)
    GLATE = [x.strip() for x in (GUADDR + f"""
    s_mov_b32 s{sOut}, s22
    s_mov_b32 s{sOut+1}, s23
    s_mov_b32 s{sOut+2}, {S*D*2}
    s_mov_b32 s{sOut+3}, 0x00020000
    s_mov_b32 s{sWd+2}, {F*D*2}
    s_mov_b32 s{sWd+3}, 0x00020000
    s_mov_b32 s{sWo+2}, {D*D*2}
    s_mov_b32 s{sWo+3}, 0x00020000
    v_lshl_add_u32 v{vDd0}, v{vT0}, 10, v{vHF}
    v_add_u32 v{vDd1}, {8*1024-1024}, v{vDd0}
    s_lshl_b32 s{sT2}, s{sCG}, 7
    s_lshl_b32 s{sDoff}, s{sGW}, 14
    s_add_u32 s{sDoff}, s{sDoff}, s{sT2}
    s_lshl_b32 s{sOoffW}, s{sGW}, 17
    s_add_u32 s{sOoffW}, s{sOoffW}, s{sT2}
    s_lshl_b32 s{sXo}, s{sRB}, 16
    s_add_u32 s{sXo}, s{sXo}, s{sT2}
    s_and_b32 s{sNb}, s{sCG}, 3
    v_lshl_add_u32 v{vTRp0}, v{vH1}, 6, v{vTRp0}
    v_lshl_add_u32 v{vTRp0}, v{vO1}, 9, v{vTRp0}
    v_add_u32 v{vTRp0}, s{sM0}, v{vTRp0}
    v_xor_b32 v{vTRp1}, 64, v{vTRp0}
    v_add_u32 v{vTRp0H}, 65536, v{vTRp0}
    v_add_u32 v{vTRp1H}, 65536, v{vTRp1}
    v_lshlrev_b32 v{vL128}, 7, v{vL}
    v_lshlrev_b32 v{vVo}, 16, v{vKo}
    v_lshl_add_u32 v{vVo}, v{vO1}, 8, v{vVo}
    v_and_b32 v{vT2}, 15, v{vL}
    v_lshl_add_u32 v{vVo}, v{vT2}, 4, v{vVo}
    v_add_u32 v{vVo}, {VF}, v{vVo}
    v_mul_u32_u24 v{vRW}, {RS}, v{vRW}
    v_lshl_add_u32 v{vRW}, v{vO1}, 4, v{vRW}
    s_mul_i32 s{sT0}, s{sGW}, {RBY}
    v_add_u32 v{vRW}, s{sT0}, v{vRW}
    v_mul_u32_u24 v{vRR}, {RS}, v{vXo}
    v_lshl_add_u32 v{vRR}, v{vT1}, 5, v{vRR}
    v_lshlrev_b32 v{vXo}, 10, v{vXo}
    v_lshl_add_u32 v{vXo}, v{vT1}, 4, v{vXo}
    v_and_b32 v{vKo}, 0x33, v{vL}
    v_lshrrev_b32 v{vT2}, 1, v{vL}
    v_and_b32 v{vT2}, 4, v{vT2}
    v_lshlrev_b32 v{vO1}, 1, v{vL}
    v_and_b32 v{vO1}, 8, v{vO1}
    v_or3_b32 v{vKo}, v{vKo}, v{vT2}, v{vO1}
    v_lshlrev_b32 v{vKo}, 4, v{vKo}
    v_add_u32 v{vKo}, {KF}, v{vKo}
    v_add_u32 v{vH1}, {86*1024}, v{vL16}
    v_add_u32 v{vO1}, 32768, v{vL16}
    v_lshlrev_b32 v{vXR}, 10, v{vL}
    v_mov_b32 v{vT2}, 0
    v_mov_b32 v{vT0}, {hex(f2u(C1))}
    v_mov_b32 v{vT1}, {hex(f2u(C1))}
    s_lshl_b32 s{sT2}, s{sRB}, 1
    s_add_u32 s{sT2}, s{sT2}, s{sMI}
    s_mul_i32 s{sHst}, s{sT2}, {86*1024}
    s_lshl_b32 s{sT1}, s{sCG}, 1
    s_add_u32 s{sT1}, s{sT1}, s{sNI}
    s_lshl_b32 s{sFlag}, s{sT1}, 13
    s_lshl_b32 s{sT0}, s{sT2}, 7
    s_add_u32 s{sFlag}, s{sFlag}, s{sT0}
    s_add_u32 s{sFlag}, s{sFlag}, {FQ}
    s_lshl_b32 s{sT1}, s{sT1}, 17
    s_lshl_b32 s{sT2}, s{sT2}, 10
    s_add_u32 s{sSt}, s{sT1}, s{sT2}
    s_lshl_b32 s{sT0}, s{sBlk}, 12
    s_lshl_b32 s{sT1}, s{sNI}, 11
    s_add_u32 s{sHst}, s{sHst}, s{sT0}
    s_add_u32 s{sHst}, s{sHst}, s{sT1}
    s_add_u32 s{sHst}, s{sHst}, {HF}
    s_lshl_b32 s{sHld}, s{sRB}, 14
    s_add_u32 s{sHld}, s{sHld}, {FH}
    s_lshl_b32 s{sT0}, s{sCG}, 9
    s_lshl_b32 s{sT1}, s{sGW}, 7
    s_add_u32 s{sHfl}, s{sT0}, s{sT1}
    s_add_u32 s{sHfl}, s{sHfl}, s{sHld}
    s_mul_i32 s{sHb}, s{sRB}, {2*86*1024}
    s_lshl_b32 s{sT0}, s{sGW}, 10
    s_add_u32 s{sHb}, s{sHb}, s{sT0}
    s_add_u32 s{sHb}, s{sHb}, {HF}
    s_mov_b32 s{sC}, {hex(f2u(QSCALE))}
    s_mov_b32 s{sC+1}, {hex(f2u(QSCALE))}
    """).split("\n") if x.strip()]
    vK, vV, vIdx, vAF, vPF, vF = 10, 11, 12, 13, 14, 15
    M, C, SB = 6, 16, 80
    aOnes, aPF, aP3, aPKV, aL128, aGo = 24, 25, 26, 27, 28, 29
    O, Q, KS = 0, 64, 0
    NR = 5
    KRG = [("a", 80), ("a", 92), ("a", 104), ("a", 108), ("v", 136)]
    VRG = [("a", 84), ("a", 96), ("v", 112), ("v", 120), ("v", 128)]
    def rg(x, off=0, n=4): return (a if x[0] == "a" else v)(x[1] + off, n)
    def zero_o(n=64):
        for i in range(n): A(f"v_accvgpr_write_b32 a{O+i}, 0")
    A.label("L_pre_a")
    A(f"""
    v_mov_b32 v{vF}, 0
    ds_write_b32 v{vCnt}, v{vF}
    ds_write_b32 v{vCnt}, v{vF} offset:1024
    v_add_u32 v{vCnt}, 1024, v{vCnt}
    v_lshlrev_b32 v{aGo}, 2, v{vL}
    s_lshl_b32 s{sT0}, s{sWave}, 9
    s_add_u32 s{sT0}, s{sT0}, {AFL}
    v_add_u32 v{vAF}, s{sT0}, v{aGo}
    s_xor_b32 s{sT0}, s{sWave}, 2
    s_lshl_b32 s{sT0}, s{sT0}, 9
    s_add_u32 s{sT0}, s{sT0}, {AFL}
    v_add_u32 v{vPF}, s{sT0}, v{aGo}
    v_add_u32 v{aGo}, {GO}, v{aGo}
    ds_write_b32 v{vAF}, v{vF}
    ds_write_b32 v{vAF}, v{vF} offset:256
    ds_write_b32 v{aGo}, v{vF}
    v_mul_u32_u24 v{vDq0}, 3072, v{vT0}
    v_add_u32 v{vDq0}, v{vDq0}, v{vHF}
    v_add_u32 v{vDq1}, {8*3072-1024}, v{vDq0}
    s_mul_i32 s{sQoff}, s{sGW}, {32*3072}
    s_lshl_b32 s{sT2}, s{sCG}, 7
    s_add_u32 s{sQoff}, s{sQoff}, s{sT2}
    v_bfe_u32 v{aP3}, v{vL}, 2, 2
    v_mul_u32_u24 v{aP3}, 3072, v{aP3}
    v_lshl_add_u32 v{aP3}, v{vFl}, 7, v{aP3}
    v_bfe_u32 v{aPF}, v{vL}, 4, 1
    v_xor_b32 v{aPF}, 1, v{aPF}
    v_lshl_add_u32 v{aP3}, v{aPF}, 11, v{aP3}
    s_lshr_b32 s7, s2, 3
    s_lshl_b32 s7, s7, 2
    s_add_u32 s7, s7, s{sWave}
    s_mul_i32 s7, s7, {4*3072}
    s_and_b32 s{sT0}, s2, 1
    s_lshl_b32 s{sT0}, s{sT0}, 9
    s_add_u32 s7, s7, s{sT0}
    s_and_b32 s{sT0}, s{sCG}, 3
    s_cmp_eq_u32 s{sT0}, 3
    s_addc_u32 s{sBlk}, s{sBlk}, 0
    v_lshrrev_b32 v30, 1, v{vL}
    v_mul_u32_u24 v30, 2752, v30
    v_and_b32 v31, 1, v{vL}
    v_mul_u32_u24 v31, 124, v31
    v_add_u32 v30, v30, v31
    s_and_b32 s68, s{sRB}, 7
    s_lshl_b32 s68, s68, 1
    s_add_u32 s68, s68, s{sMI}
    s_mul_i32 s68, s68, {16*2752}
    s_lshl_b32 s{sT0}, s{sBlk}, 7
    s_add_u32 s68, s68, s{sT0}
    s_or_b32 s{sT1}, s2, s{sWave}
    s_cmp_lg_u32 s{sT1}, 0
    s_cbranch_scc1 L_pre_a2
    s_memrealtime s[4:5]
    s_waitcnt lgkmcnt(0)
    s_or_b32 s4, s4, 1
    v_mov_b32 v{vIdx}, s4
    buffer_store_dword v{vIdx}, v{vF}, {s(sDbg,4)}, 0 offen sc1
    """)
    A.label("L_pre_a2")
    if opt.get("pall"):
        A(f"""
        s_mov_b32 s{sWd+2}, {F*D*2}
        s_mov_b32 s{sWd+3}, 0x00020000
        s_mov_b32 s{sWo+2}, {D*D*2}
        s_mov_b32 s{sWo+3}, 0x00020000
        v_mul_u32_u24 v141, 2752, v{vL}
        s_and_b32 s{sT0}, s{sRB}, 7
        s_mul_i32 s{sT0}, s{sT0}, {64*2752}
        s_mul_i32 s{sT1}, s{sCG}, 384
        s_add_u32 s{sT0}, s{sT0}, s{sT1}
        s_mul_i32 s{sT1}, s{sMI}, 124
        s_add_u32 s{sT1}, s{sT0}, s{sT1}
        buffer_load_dword v143, v141, {s(sWgu,4)}, s{sT1} offen
        s_lshl_b32 s{sT1}, s{sMI}, 7
        s_add_u32 s{sT1}, s{sT0}, s{sT1}
        buffer_load_dword v143, v141, {s(sWgu,4)}, s{sT1} offen offset:252
        v_lshlrev_b32 v142, 10, v{vL}
        s_and_b32 s{sT0}, s{sRB}, 7
        s_lshl_b32 s{sT1}, s{sCG}, 7
        s_mul_i32 s{sT2}, s{sT0}, {172*1024}
        s_add_u32 s{sT2}, s{sT2}, s{sT1}
        s_lshl_b32 s4, s{sGW}, 16
        s_add_u32 s{sT2}, s{sT2}, s4
        buffer_load_dword v143, v142, {s(sWd,4)}, s{sT2} offen
        s_lshl_b32 s{sT0}, s{sT0}, 16
        s_add_u32 s{sT0}, s{sT0}, s{sT1}
        buffer_load_dword v143, v142, {s(sWo,4)}, s{sT0} offen
        s_waitcnt vmcnt(0)
        s_sleep 40
        """)
    A("s_mov_b32 s3, 0\ns_waitcnt vmcnt(0)")
    NEARLY = opt.get("nearly", 0)
    for g in range(NEARLY): dma(*ddq(g))
    vmq.clear()
    A.label("L_ln")
    ST()
    SA, TT, vXW = 104, 80, 112
    A(f"""
    s_mov_b32 s4, 0x3f803f80
    s_mov_b32 s5, 0x00003f80
    s_mov_b32 s6, 0x3f800000
    """)
    for i in range(32):
        a1 = SA + (i & 1); a2 = SA + 2 + (i & 1)
        A(f"v_dot2_f32_bf16 v{a1}, v{R+i}, s4, {'0' if i < 2 else 'v%d' % a1}")
        A(f"v_dot2_f32_bf16 v{a2}, v{R+i}, v{R+i}, {'0' if i < 2 else 'v%d' % a2}")
    m_, q_, mb_, rs_ = SA, SA + 2, SA + 4, SA + 6
    A(f"""
    s_lshr_b32 s{sT0}, s{sWave}, 2
    s_mul_i32 s{sT0}, s{sT0}, {64*PIECE}
    s_lshl_b32 s{sT1}, s{sGW}, 7
    v_add_f32 v{m_}, v{m_}, v{m_+1}
    v_add_f32 v{q_}, v{q_}, v{q_+1}
    s_add_u32 s{sT0}, s{sT0}, s{sT1}
    v_add_f32_dpp v{m_}, v{m_}, v{m_} quad_perm:[1,0,3,2] row_mask:0xf bank_mask:0xf
    v_add_f32_dpp v{q_}, v{q_}, v{q_} quad_perm:[1,0,3,2] row_mask:0xf bank_mask:0xf
    s_add_u32 s{sT0}, s{sT0}, {XT}
    v_add_f32_dpp v{m_}, v{m_}, v{m_} quad_perm:[2,3,0,1] row_mask:0xf bank_mask:0xf
    v_add_f32_dpp v{q_}, v{q_}, v{q_} quad_perm:[2,3,0,1] row_mask:0xf bank_mask:0xf
    v_mul_u32_u24 v{vXW}, {PIECE}, v{vT1}
    v_add_f32_dpp v{m_}, v{m_}, v{m_} row_half_mirror row_mask:0xf bank_mask:0xf
    v_add_f32_dpp v{q_}, v{q_}, v{q_} row_half_mirror row_mask:0xf bank_mask:0xf
    v_mul_f32 v{m_}, {hex(f2u(1.0/512))}, v{m_}
    v_mul_f32 v{q_}, {hex(f2u(1.0/512))}, v{q_}
    v_cvt_pk_bf16_f32 v{mb_}, v{m_}, v{m_}
    v_fma_f32 v{q_}, -v{m_}, v{m_}, v{q_}
    v_and_b32 v{mb_}, 0xffff0000, v{mb_}
    v_max_f32 v{q_}, 0, v{q_}
    v_xor_b32 v{mb_}, 0x80000000, v{mb_}
    v_cvt_pk_bf16_f32 v{q_}, v{q_}, v{q_}
    v_and_b32 v{q_}, 0xffff0000, v{q_}
    v_add_f32 v{q_}, {hex(f2u(1e-5))}, v{q_}
    v_cvt_pk_bf16_f32 v{q_}, v{q_}, v{q_}
    v_and_b32 v{q_}, 0xffff0000, v{q_}
    v_sqrt_f32 v{q_}, v{q_}
    v_lshl_add_u32 v{vXW}, v{vT0}, 4, v{vXW}
    v_cvt_pk_bf16_f32 v{q_}, v{q_}, v{q_}
    v_and_b32 v{q_}, 0xffff0000, v{q_}
    v_rcp_f32 v{rs_}, v{q_}
    v_rcp_f32 v{rs_+1}, v{q_}
    v_add_u32 v{vXW}, s{sT0}, v{vXW}
    """)
    for cb in range(8):
        t = TT + 8 * (cb & 1); r = R + 4 * cb
        for e in range(4):
            A(f"v_dot2_f32_bf16 v{t+2*e}, v{r+e}, s5, v{mb_}")
            A(f"v_dot2_f32_bf16 v{t+2*e+1}, v{r+e}, s6, v{mb_}")
        if cb > 0: A(f"ds_write_b128 v{vXW}, {v(R+4*(cb-1),4)} offset:{(cb-1)*8*PIECE}")
        else: A("s_nop 0")
        for e in range(4): A(f"v_pk_mul_f32 {v(t+2*e,2)}, {v(t+2*e,2)}, {v(rs_,2)}")
        for e in range(4): A(f"v_cvt_pk_bf16_f32 v{r+e}, v{t+2*e}, v{t+2*e+1}")
    A(f"ds_write_b128 v{vXW}, {v(R+28,4)} offset:{7*8*PIECE}")
    A("s_cmp_eq_u32 s3, 0\ns_cbranch_scc1 L_attn")

    def get_tag(vt, vz, lbl):
        A(f"v_mov_b32 v{vz}, 0")
        A.label(lbl)
        A(f"""
        buffer_load_dword v{vt}, v{vz}, {s(sDbg,4)}, 0 offen sc1
        s_waitcnt vmcnt(0)
        v_readfirstlane_b32 s{sTag}, v{vt}
        """)
        timeout_exit(lbl + "_x")
        A(f"s_cmp_eq_u32 s{sTag}, 0\ns_cbranch_scc1 {lbl}")
        A.label(lbl + "_x")
    def spin_flags(lbl, vf, voff, soff, nlanes, sleep=4):
        A.label(lbl)
        A(f"""
        s_mov_b64 exec, {emask(nlanes)}
        buffer_load_dword v{vf}, v{voff}, {ws}, s{soff} offen sc1
        s_waitcnt vmcnt(0)
        v_cmp_ne_u32 vcc, s{sTag}, v{vf}
        s_mov_b64 exec, -1
        s_cbranch_vccz {lbl}_x
        """)
        timeout_exit(lbl + "_x")
        A(f"s_sleep {sleep}\ns_branch {lbl}")
        A.label(lbl + "_x")
    def lds_spin(lbl, vdst, vaddr, off, cmp, sleep=0):
        A.label(lbl)
        A(f"ds_read_b32 v{vdst}, v{vaddr} offset:{off}\ns_waitcnt lgkmcnt(0)\n{cmp}\ns_cbranch_vccz {lbl}_x")
        timeout_exit(lbl + "_x")
        if sleep: A(f"s_sleep {sleep}")
        A(f"s_branch {lbl}")
        A.label(lbl + "_x")

    def xn(ks): return a(4 * ks, 4) if ks < 28 else v(96 + 4 * (ks - 28), 4)
    def xread(ks): lds(f"ds_read_b128 {xn(ks)}, v{vXR} offset:{2*ks*PIECE}", "xn")
    lowprio = [False]
    def check(fresh, off=0, need=None):
        l = lab("chk"); nd = f"s{sNeed}" if need is None else str(need)
        cmp = f"v_cmp_gt_u32 vcc, {nd}, v{vP}"
        if lowprio[0]: cmp = f"s_setprio 3\n{cmp}\ns_setprio 0"
        if fresh:
            lds(f"ds_read_b32 v{vP}, v{vCntR} offset:{off}", "poll")
        lwait("poll")
        A(f"{cmp}\ns_cbranch_vccnz {l}")
        A.label(l + "_x")
        def sp():
            A.label(l)
            A(f"ds_read_b32 v{vP}, v{vCntR} offset:{off}\ns_waitcnt lgkmcnt(0)\n{cmp}\ns_cbranch_vccz {l}_x")
            timeout_exit(l + "_x")
            if lp: A("s_sleep 1")
            A(f"s_branch {l}")
        lp = lowprio[0]
        slow.append(sp)
        if need is None: A(f"s_add_u32 s{sNeed}, s{sNeed}, 1")
    def segment(stages, hooks=None, LA=4):
        hooks = hooks or {}
        NB = len(WFB); assert NB >= LA + 1
        flat = [(si, fi, fr) for si, st in enumerate(stages) for fi, fr in enumerate(st["frags"])]
        sq = []
        for i in range(len(flat) + LA):
            if i < len(flat):
                si, fi, fr = flat[i]; st = stages[si]; nfr = len(st["frags"])
                if fi == 0:
                    assert not sq
                    if "label" in st: A.label(st["label"])
                    if opt.get("atrace"):
                        A(f"s_waitcnt lgkmcnt(0)\ns_mov_b32 s99, m0\ns_mov_b32 m0, s{sD1}\ns_add_u32 s{sD1}, s{sD1}, 1\ns_setprio 3\nv_writelane_b32 v142, s100, m0\ns_setprio {0 if lowprio[0] else 1}\ns_memrealtime s[100:101]\ns_mov_b32 m0, s99"); lq.clear()
                    if st["sync"]: check(si == 0, *st.get("chk", ()))
                    if "pre" in st: st["pre"]()
                    sq += st["pieces"]
                lo, hi, o0, o1, _ = fr
                base = st["slot"] * SLOT; reg = lo
                if base >= 65536: base -= 65536; reg = hi
                w = WFB[i % NB]
                lds(f"ds_read_b64_tr_b16 {v(w,2)}, v{reg} offset:{base+o0}", ("fr", i))
                lds(f"ds_read_b64_tr_b16 {v(w+2,2)}, v{reg} offset:{base+o1}", ("fr", i))
                if fi == st.get("waitat", st.get("pubat", 2)) and st["nxt"] is not None: vwait(st["nxt"])
                if fi == st.get("pubat", 2) and st["pub"]: lds(f"ds_add_u32 v{vCnt}, v{vOne}", "add")
                if len(sq) * 2 > (nfr - fi) or fi % 2 == 0:
                    k = -(-len(sq) // (nfr - fi))
                    for _ in range(k): sq.pop(0)()
                if fi == nfr - 2 and si + 1 < len(stages) and stages[si + 1]["sync"]:
                    lds(f"ds_read_b32 v{vP}, v{vCntR} offset:{stages[si + 1].get('chk', (0,))[0]}", "poll")
                if (si, fi) in hooks: hooks[(si, fi)]()
            j = i - LA
            if j >= 0:
                lwait(("fr", j))
                for m in flat[j][2][4]:
                    if callable(m): m()
                    else: A(m.format(w=v(WFB[j % NB], 4)))
    if F0: ST()
    A("s_waitcnt lgkmcnt(0)\ns_barrier")
    ST()
    if opt.get("atrace"): A(f"s_mov_b32 s{sD1}, 0\ns_memrealtime s[100:101]")
    for ks in range(8): xread(ks)
    def qkv_epi(p):
        acc = (ACC0, ACC1, ACC0)[p]; pk = TMP + 8 * p
        def f():
            if p == 2:
                for i in range(8): A(f"v_pk_mul_f32 {v(acc+2*i,2)}, {v(acc+2*i,2)}, {s(sC,2)}")
            for i in range(8): A(f"v_cvt_pk_bf16_f32 v{pk+i}, v{acc+2*i}, v{acc+2*i+1}")
            if p == 1:
                A(f"buffer_store_dwordx4 {v(pk,4)}, v{vVo}, {ws}, s{sSt} offen sc1")
                A(f"buffer_store_dwordx4 {v(pk+4,4)}, v{vVo}, {ws}, s{sSt} offen offset:512 sc1")
            else:
                vo = vKo if p == 0 else vL16
                A(f"s_add_u32 s{sT0}, s{sSt}, 65536")
                A(f"buffer_store_dwordx4 {v(pk,4)}, v{vo}, {ws}, s{sSt} offen sc1")
                A(f"buffer_store_dwordx4 {v(pk+4,4)}, v{vo}, {ws}, s{sT0} offen sc1")
            vmq.push("st", 2)
        return f
    stages = []
    for q in range(12):
        p, part = divmod(q, 4); acc = v((ACC0, ACC1, ACC0)[p], 16)
        frags = []
        for kk in range(8):
            ks = part * 8 + kk; c = "0" if ks == 0 else acc
            m = f"{MF} {acc}, {xn(ks)}, {{w}}, {c}" if p == 1 else f"{MF} {acc}, {{w}}, {xn(ks)}, {c}"
            frags.append((vTRn, vTRnH, kk * 2048, kk * 2048 + 512, [m]))
        stages.append(dict(slot=q % 8, frags=frags, pieces=[], nxt=None, sync=True, pub=(q >= 1), pubat=0, chk=(1024, q + 1)))
    hooks = {(0, fi): (lambda fi=fi: [xread(8 + 3 * fi + e) for e in range(3)]) for fi in range(8)}
    hooks[(5, 1)] = qkv_epi(0); hooks[(9, 1)] = qkv_epi(1)
    hooks[(5, 4)] = lambda: (A(f"buffer_load_dword v{vFl}, v{vT2}, {s(sDbg,4)}, 0 offen sc1"), vmq.push("tag"))
    per = -(-len(GLATE) // 30)
    def late():
        for _ in range(per):
            if GLATE: A(GLATE.pop(0).replace("|", "\n"))
    for q in range(1, 5):
        for fi in range(8):
            if (q, fi) not in ((1, 0), (4, 0)): hooks[(q, fi)] = late
    if stamps:
        for q in ((1, 4, 5, 6, 7, 8, 9, 10, 11) if FR else (1, 4, 8)): hooks[(q, 0)] = ST
    segment(stages, hooks)
    assert not GLATE
    vwait("tag")
    A(f"v_readfirstlane_b32 s{sTag}, v{vFl}\ns_nop 10")
    qkv_epi(2)()
    ST()
    A(f"s_cmp_lg_u32 s{sTag}, 0\ns_cbranch_scc1 L_gtag_x")
    get_tag(vFl, vT2, "L_gtag")
    A(f"""
    s_mov_b32 s{sC}, {hex(f2u(C2))}
    s_mov_b32 s{sC+1}, {hex(f2u(C2))}
    v_mov_b32 v{vFl}, s{sTag}
    s_waitcnt vmcnt(0)
    s_mov_b64 exec, 1
    buffer_store_dword v{vFl}, v{vT2}, {ws}, s{sFlag} offen sc1
    s_mov_b64 exec, -1
    """)
    ST()
    if FR: ST.flush(ws, STAMP, sWave, 2, 3, sT0); A("s_endpgm"); ST.on = False
    if opt.get("gexit"): A(f"ds_add_u32 v{vCnt}, v{vOne}\ns_waitcnt lgkmcnt(0)\ns_endpgm")
    assert NG0 == 4
    LOOK = opt.get("look", 5)
    check(True, 1024, 12 + NG0)
    lds(f"ds_add_u32 v{vCnt}, v{vOne}", "add")
    A(f"s_mov_b32 s{sNeed}, 12\ns_setprio 0")
    lowprio[0] = True
    def gslot(g): return (g + 4) % 8
    def ffn_dd(g):
        if g < 24: return ("g", g, gslot(g))
        if g < 35: return ("d", g - 24, gslot(g))
        return ("o", g - 35, gslot(g))
    A(f"s_cmp_lg_u32 s{sNb}, 3\ns_cbranch_scc1 L_ffn")
    if opt.get("pfw", 1):
        if opt.get("pfgo"): check(True, 1024, 12 + NG0 + 1)
        P = [0, 128, 384, 512, 768, 896, 256, 640, 1024, 1152, 1280, 1404][:2 * opt.get('npf', 6)]
        PCAP = opt.get("pcap", 1)
        A(f"""
        s_setprio 3
        v_mul_u32_u24 v{TMP}, 2752, v{vL}
        v_lshrrev_b32 v{TMP+1}, 2, v{vL}
        v_lshlrev_b32 v{TMP+1}, 10, v{TMP+1}
        v_and_b32 v{TMP+2}, 3, v{vL}
        v_lshl_add_u32 v{TMP+1}, v{TMP+2}, 7, v{TMP+1}
        s_setprio 0
        s_and_b32 s4, s{sRB}, 7
        s_mul_i32 s5, s4, {64*2752}
        s_lshr_b32 s6, s{sCG}, 2
        s_mul_i32 s7, s6, 1408
        s_add_u32 s5, s5, s7
        """)
        for i in range(len(P) // 2):
            lo_, hi_ = sorted(P[2*i:2*i+2])
            A(f"s_mul_i32 s{sT0}, s{sMI}, {hi_-lo_}\ns_add_u32 s{sT0}, s{sT0}, s5")
            A(f"buffer_load_dword v143, v{TMP}, {s(sWgu,4)}, s{sT0} offen offset:{lo_}\ns_waitcnt vmcnt({PCAP})")
        if opt.get('pfd', 0):
            A(f"""
        s_lshl_b32 s4, s4, 2
        s_add_u32 s4, s4, s{sGW}
        s_lshl_b32 s6, s6, 9
        s_mul_i32 s5, s4, {43*1024}
        s_add_u32 s5, s5, s6
        """)
            for i in range(3):
                A(f"s_add_u32 s{sT0}, s5, {i*16*1024}\nbuffer_load_dword v143, v{TMP+1}, {s(sWd,4)}, s{sT0} offen\ns_waitcnt vmcnt({PCAP})")
            A(f"s_lshl_b32 s5, s4, 14\ns_add_u32 s5, s5, s6\nbuffer_load_dword v143, v{TMP+1}, {s(sWo,4)}, s5 offen")
    check(True, 0, 12)
    A(f"s_setprio 3\nv_mov_b32 v{vP}, 0\ns_setprio 0")
    for g in range(8 + NG0, 8 + LOOK): dma(*ffn_dd(g))
    A("s_branch L_ffn8")
    A.label("L_ffn")
    vmq.clear(); lq.clear()
    T1, U1 = TMP, [88, 90, 92, 94, 128, 130, 132, 134]
    AD1 = [v(40, 16), v(56, 16), v(96, 16), a(96, 16)]
    def gelu1():
        G, U = ACC0, ACC1
        A("s_setprio 3\ns_nop 9")
        for i in range(8): A(f"v_pk_mul_f32 {v(T1+2*i,2)}, {v(G+2*i,2)}, {v(G+2*i,2)}")
        for i in range(8): A(f"v_pk_fma_f32 {v(T1+2*i,2)}, {v(T1+2*i,2)}, {s(sC,2)}, {v(vT0,2)}")
        for i in range(8): A(f"v_pk_mul_f32 {v(U1[i],2)}, {v(U+2*i,2)}, {v(G+2*i,2)}")
        for i in range(8): A(f"v_pk_mul_f32 {v(T1+2*i,2)}, {v(T1+2*i,2)}, {v(G+2*i,2)}")
        A("s_setprio 0")
    def gelu2_groups(b):
        L = [f"v_exp_f32 v{T1+i}, v{T1+i}" for i in range(16)]
        L += [f"v_pk_add_f32 {v(T1+2*i,2)}, {v(T1+2*i,2)}, 1.0 op_sel_hi:[1,0]" for i in range(8)]
        L += [f"v_rcp_f32 v{T1+i}, v{T1+i}" for i in range(16)]
        L += [f"v_pk_mul_f32 {v(U1[i],2)}, {v(U1[i],2)}, {v(T1+2*i,2)}" for i in range(8)]
        L += [f"v_cvt_pk_bf16_f32 v{T1+i}, v{U1[i]}, v{U1[i]+1}" for i in range(8)]
        sizes = [4, 4, 4, 4, 8, 4, 4, 4, 4, 8, 8]
        G_ = []
        for n in sizes:
            grp = L[:n]; L = L[n:]
            G_.append(lambda grp=grp: A("s_setprio 3\n" + "\n".join(grp) + "\ns_setprio 0"))
        def store():
            l = lab("hskip")
            if b == 0: A(f"s_cmp_eq_u32 s{sNb}, 3\ns_cbranch_scc1 {l}")
            if b == 2: A(f"s_add_u32 s{sT0}, s{sCG}, s{sNI}\ns_cmp_eq_u32 s{sT0}, 8\ns_cbranch_scc1 {l}")
            A(f"s_add_u32 s{sT0}, s{sHst}, {b*4096}")
            A(f"buffer_store_dwordx4 {v(T1,4)}, v{vL16}, {ws}, s{sT0} offen sc1")
            A(f"buffer_store_dwordx4 {v(T1+4,4)}, v{vL16}, {ws}, s{sT0} offen offset:1024 sc1")
            A.label(l)
            vmq.since = 0
        return G_ + [store]
    def send_flag(b):
        def f():
            n = min(vmq.since, 63)
            A(f"s_waitcnt vmcnt({n})"); vmq.waited(n)
            A(f"s_add_u32 s{sT0}, s{sHfl}, {b*4096}\ns_mov_b64 exec, 1\nbuffer_store_dword v{vFl}, v{vT2}, {ws}, s{sT0} offen sc1\ns_mov_b64 exec, -1")
        return f
    NH = 12
    def hload(t):
        b = 8 * (t % NH)
        if DSEQ[t] == 21:
            A(f"s_and_b32 s{sT2}, s{sGW}, 2\ns_lshl_b32 s{sT2}, s{sT2}, 10\ns_sub_u32 s{sT2}, s{sHb}, s{sT2}\ns_add_u32 s{sT2}, s{sT2}, {DSEQ[t]*4096}")
        else:
            A(f"s_add_u32 s{sT2}, s{sHb}, {DSEQ[t]*4096}")
        A(f"buffer_load_dwordx4 {a(b,4)}, v{vL16}, {ws}, s{sT2} offen sc1")
        A(f"buffer_load_dwordx4 {a(b+4,4)}, v{vH1}, {ws}, s{sT2} offen sc1")
        vmq.push(("h", t), 2)
    def hflag_issue(c):
        A(f"s_add_u32 s{sT2}, s{sHld}, {c*4096}\ns_mov_b64 exec, {hex(CMASK[c])}")
        A(f"buffer_load_dword v{vHF}, v{vL128}, {ws}, s{sT2} offen sc1\ns_mov_b64 exec, -1")
        vmq.push(("hf", c))
    def hflag_check(c):
        vwait(("hf", c))
        l = f"L_hf{c}"
        A(f"s_setprio 3\nv_cmp_ne_u32 vcc, s{sTag}, v{vHF}\ns_setprio 0\ns_and_b32 vcc_lo, vcc_lo, {hex(CMASK[c])}\ns_cbranch_scc1 {l}_s")
        A.label(l + "_b")
        def sp():
            A.label(l + "_s")
            A(f"s_add_u32 s{sT2}, s{sHld}, {c*4096}\ns_setprio 3")
            spin_flags(l, vHF, vL128, sT2, hex(CMASK[c]), sleep=8)
            A(f"s_setprio 0\ns_branch {l}_b")
        slow.append(sp)
    def p4(ni):
        def f():
            l = lab("p4")
            A(f"""
            s_cmp_lg_u32 s{sNI}, {ni}
            s_cbranch_scc1 {l}_x
            s_and_b32 s{sT0}, s{sRB}, 7
            s_lshl_b32 s{sT1}, s{sCG}, 7
            s_cmp_eq_u32 s{sGW}, 3
            s_cbranch_scc1 {l}_o
            s_mul_i32 s{sT0}, s{sT0}, {172*1024}
            s_add_u32 s{sT0}, s{sT0}, s{sT1}
            s_lshl_b32 s{sT1}, s{sGW}, 16
            s_add_u32 s{sT0}, s{sT0}, s{sT1}
            buffer_load_dword v143, v{vXR}, {s(sWd,4)}, s{sT0} offen
            s_branch {l}_x
            """)
            A.label(l + "_o")
            A(f"s_lshl_b32 s{sT0}, s{sT0}, 16\ns_add_u32 s{sT0}, s{sT0}, s{sT1}\nbuffer_load_dword v143, v{vXR}, {s(sWo,4)}, s{sT0} offen")
            A.label(l + "_x")
        return f
    allp = []
    for g in range(NG0, 39): allp += [(g, p) for p in dma_pieces(*ffn_dd(g))]
    T0 = opt.get("t0", 2); RATE = opt.get("rate", 6)
    sched = []
    for st in range(35):
        take = []
        if st >= T0:
            while allp and allp[0][0] <= st + LOOK and len(take) < RATE: take.append(allp.pop(0)[1])
        sched.append(take)
        if st == 7: assert allp[0][0] == 8 + LOOK and len([1 for g, _ in allp if g == 8 + LOOK]) == 4
    assert not allp
    stages = []
    post = {}
    for st in range(35):
        frags = []
        if st < 24:
            for kk in range(4):
                ks = (st % 8) * 4 + kk
                for p, acc in enumerate((ACC0, ACC1)):
                    c = "0" if ks == 0 else v(acc, 16)
                    frags.append((vTRn, vTRnH, p * 8192 + kk * 2048, p * 8192 + kk * 2048 + 512, [f"{MF} {v(acc,16)}, {{w}}, {xn(ks)}, {c}"]))
        else:
            for kk in range(2):
                t = 2 * (st - 24) + kk; b = 8 * (t % NH)
                for ni, (lo, hi) in enumerate(((vTRp0, vTRp0H), (vTRp1, vTRp1H))):
                    ms = [(lambda t=t: vwait(("h", t)))] if ni == 0 else []
                    for mi in range(2):
                        d = AD1[2 * ni + mi]; c = "0" if t == 0 else d
                        ms.append(f"{MF} {d}, {{w}}, {a(b+4*mi,4)}, {c}")
                    frags.append((lo, hi, kk * 2048, kk * 2048 + 1024, ms))
        nx = ffn_dd(st + 1)
        stages.append(dict(slot=gslot(st), frags=frags, pieces=sched[st], nxt=("dma", nx[0], nx[1]),
                           sync=(st <= 25), pub=(st <= 24), pubat=(0 if st >= 23 else opt.get("pubat", 2)),
                           waitat=(3 if st >= 24 else (6 if st == 23 else opt.get("pubat", 2)))))
    assert LOOK <= 6
    stages[T0]["pre"] = lambda: check(True, 1024, 12 + NG0 + 1)
    stages[8]["label"] = "L_ffn8"
    hooks = {}
    for b in range(3):
        st0 = 8 * (b + 1)
        stages[st0]["frags"][0][4].insert(0, gelu1)
        grp = gelu2_groups(b)
        pos = [(si, fi, k) for si in (st0, st0 + 1, st0 + 2) for fi, fr in enumerate(stages[si]["frags"]) for k, m in enumerate(fr[4]) if not callable(m)]
        if b == 2: pos = [p_ for p_ in pos for _ in range(2)]
        for (si, fi, k), g_ in reversed(list(zip(pos, grp))):
            stages[si]["frags"][fi][4].insert(k + 1, g_)
        hooks[(st0 + 3, 3) if b < 2 else (26, 1)] = send_flag(b)
    if opt.get("p4", 1): hooks[(opt.get("p4a", 10), 1)] = p4(0); hooks[(opt.get("p4b", 14), 1)] = p4(1)
    HL = opt.get("hl", 5)
    def hpos(t):
        u = t - HL
        if u >= 0: return (24 + u // 2, 2 * (u % 2) + 1)
        return (24 + (u // 2), 4 * (u % 2) + 1)
    for t in range(22):
        fs = []
        if t in CSTART: fs.append(lambda c=CSTART[t]: hflag_check(c))
        fs.append(lambda t=t: hload(t))
        if t + 2 in CSTART: fs.append(lambda c=CSTART[t + 2]: hflag_issue(c))
        old = hooks.get(hpos(t))
        if old: fs.insert(0, old)
        hooks[hpos(t)] = (lambda fs=fs: [f() for f in fs])
    p0 = hpos(0); hooks[(p0[0] - 1, 3)] = lambda: hflag_issue(0)
    if stamps:
        for st in (8, 16, 24): hooks[(st, 0)] = ST
    segment(stages, hooks)
    lowprio[0] = False
    ST()
    if opt.get("atrace"):
        A(f"s_lshl_b32 s{sT0}, s2, 4\ns_add_u32 s{sT0}, s{sT0}, s{sWave}\ns_lshl_b32 s{sT0}, s{sT0}, 8\ns_add_u32 s{sT0}, s{sT0}, {STAMP+MB}\nv_lshlrev_b32 v141, 2, v{vL}\nbuffer_store_dword v142, v141, {ws}, s{sT0} offen\ns_waitcnt vmcnt(0)")
    vwait(("dma", "o", 3))
    for i in range(8):
        slot = gslot(35 + i // 2); base = slot * SLOT
        for ni, (lo, hi) in enumerate(((vTRp0, vTRp0H), (vTRp1, vTRp1H))):
            reg, b = (lo, base) if base < 65536 else (hi, base - 65536)
            lds(f"ds_read_b64_tr_b16 {a(8*i+4*ni,2)}, v{reg} offset:{b + (i%2)*2048}", "wo")
            lds(f"ds_read_b64_tr_b16 {a(8*i+4*ni+2,2)}, v{reg} offset:{b + (i%2)*2048 + 1024}", "wo")
    lds(f"ds_add_u32 v{vCnt}, v{vOne}", "add")
    A(f"""
    s_setprio 3
    s_mov_b32 s{sC}, {hex(f2u(-1.4426950408889634))}
    s_mov_b32 s{sC+1}, {hex(f2u(-1.4426950408889634))}
    """)
    def reduce_tile(dst, src):
        check(True)
        for ni in range(2):
            for mi in range(2):
                for q in range(4):
                    k_, b_ = src[2 * ni + mi]
                    lds(f"ds_write_b128 v{vRW}, {k_(b_+4*q,4)} offset:{mi*32*RS + ni*128 + q*32}", "w")
        lds(f"ds_add_u32 v{vCnt}, v{vOne}", "add")
        check(True)
        for p in range(2):
            for w in range(4):
                off = w * RBY + p * 32 * RS; b = AD + 32 * p + 8 * w
                lds(f"ds_read_b128 {v(b,4)}, v{vRR} offset:{off}", ("r", p))
                lds(f"ds_read_b128 {v(b+4,4)}, v{vRR} offset:{off+16}", ("r", p))
        lds(f"ds_add_u32 v{vCnt}, v{vOne}", "add")
        for p in range(2):
            lwait(("r", p))
            b = AD + 32 * p
            for i in range(4):
                A(f"v_pk_add_f32 {v(b+2*i,2)}, {v(b+2*i,2)}, {v(b+8+2*i,2)}")
                A(f"v_pk_add_f32 {v(b+16+2*i,2)}, {v(b+16+2*i,2)}, {v(b+24+2*i,2)}")
            for i in range(4):
                A(f"v_pk_add_f32 {v(dst+8*p+2*i,2)}, {v(b+2*i,2)}, {v(b+16+2*i,2)}")
    reduce_tile(GR, [(v, 40), (v, 56), (v, 96), (a, 96)])
    A(f"""
    s_add_u32 s{sT2}, s{sXo}, 32768
    buffer_load_dwordx4 {v(XR,4)}, v{vXo}, {s(sX,4)}, s{sXo} offen
    buffer_load_dwordx4 {v(XR+4,4)}, v{vXo}, {s(sX,4)}, s{sT2} offen
    """)
    Tv = AD
    for i in range(8): A(f"v_pk_mul_f32 {v(Tv+2*i,2)}, {v(GR+2*i,2)}, {s(sC,2)}")
    for i in range(16): A(f"v_exp_f32 v{Tv+i}, v{Tv+i}")
    A("s_nop 0")
    for i in range(8): A(f"v_pk_add_f32 {v(Tv+2*i,2)}, {v(Tv+2*i,2)}, 1.0 op_sel_hi:[1,0]")
    for i in range(16): A(f"v_rcp_f32 v{Tv+i}, v{Tv+i}")
    A("s_nop 0")
    for i in range(8): A(f"v_pk_mul_f32 {v(GR+2*i,2)}, {v(GR+2*i,2)}, {v(Tv+2*i,2)}")
    ST()
    A(f"""
    s_lshl_b32 s{sT2}, s{sRB}, 12
    s_lshl_b32 s{sT0}, s{sGW}, 10
    s_add_u32 s{sT2}, s{sT2}, s{sT0}
    s_add_u32 s{sT2}, s{sT2}, {FO}
    s_lshl_b32 s7, s{sRB}, 16
    s_lshl_b32 s{sT0}, s{sGW}, 13
    s_add_u32 s7, s7, s{sT0}
    s_add_u32 s7, s7, {OF}
    s_add_u32 s6, s7, 4096
    s_lshl_b32 s{sT0}, s{sGW}, 9
    s_add_u32 s{sT0}, s{sT0}, {AFL+256}
    v_mov_b32 v{vP}, s{sT0}
    """)
    lds_spin("L_ow", vHF, vP, 0, f"v_cmp_eq_u32 vcc, 0, v{vHF}", sleep=4)
    spin_flags("L_of", vHF, vL128, sT2, 8, sleep=2)
    ST()
    def of(i, mi):
        k = 8 * i + 4 * mi
        return a(64 + k, 4) if k < 48 else v(112 + k - 48, 4)
    for i in range(8):
        so = 7 if i < 4 else 6
        A(f"buffer_load_dwordx4 {of(i,0)}, v{vL16}, {ws}, s{so} offen offset:{(i%4)*1024} sc1")
        A(f"buffer_load_dwordx4 {of(i,1)}, v{vO1}, {ws}, s{so} offen offset:{(i%4)*1024} sc1")
    for i in range(8):
        A(f"s_waitcnt vmcnt({14-2*i})")
        for ni in range(2):
            for mi in range(2):
                d = v(AD + 16 * (2 * ni + mi), 16); c = "0" if i == 0 else d
                A(f"{MF} {d}, {a(8*i+4*ni,4)}, {of(i,mi)}, {c}")
    A("s_nop 7")
    reduce_tile(SR, [(v, AD + 16 * i) for i in range(4)])
    A(f"s_add_u32 s{sT2}, s{sXo}, 32768")
    for p in range(2):
        for i in range(4):
            A(f"v_lshlrev_b32 v{Tv+2*i}, 16, v{XR+4*p+i}")
            A(f"v_and_b32 v{Tv+2*i+1}, 0xffff0000, v{XR+4*p+i}")
        for i in range(4):
            A(f"v_pk_fma_f32 {v(Tv+2*i,2)}, {v(SR+8*p+2*i,2)}, {v(GR+8*p+2*i,2)}, {v(Tv+2*i,2)}")
        for i in range(4):
            A(f"v_cvt_pk_bf16_f32 v{XR+4*p+i}, v{Tv+2*i}, v{Tv+2*i+1}")
        A(f"buffer_store_dwordx4 {v(XR+4*p,4)}, v{vXo}, {s(sOut,4)}, s{sXo if p == 0 else sT2} offen")
    if stamps:
        ST.on = True
        if not FR: ST(); ST.flush(ws, STAMP, sWave, 2, 3, sT0)
    A("s_endpgm")
    for f in slow: f()
    slow.clear()

    ST.n = 2 if stamps else 0
    A.label("L_attn")
    lq.clear(); vmq.clear()
    for g in range(NEARLY): vmq.push(("dma", "q", g), 4)
    def pub_ld(g):
        d = ddq(g); vwait(("dma", d[0], d[1])); lds(f"ds_add_u32 v{vCnt}, v{vOne}", "add")
    def FS():
        if FR: ST()
    def p2():
        A(f"s_mov_b64 exec, {PF2MASK}\nbuffer_load_dword v143, v30, {s(sWgu,4)}, s68 offen\ns_mov_b64 exec, -1"); vmq.push("pf")
    FS()
    NB4 = opt.get("nb4", 4)
    for g in range(NEARLY, NB4):
        dma(*ddq(g))
        if g == opt.get("p1at", 3):
            A(f"s_mov_b64 exec, {'0xffff0000' if opt.get('p1kv', 1) else '0xffffffff'}\nbuffer_load_dword v143, v{aP3}, {s(sWq,4)}, s7 offen\ns_mov_b64 exec, -1"); vmq.push("pf")
            if opt.get("p2early", 1): p2()
    pub_ld(0)
    A("s_waitcnt lgkmcnt(0)\ns_barrier"); lq.clear()
    ST()
    for g in range(1, NB4): pub_ld(g)
    for g in range(NB4, 5): dma(*ddq(g))
    FS()
    A(GUADDR)
    A(f"""
    s_and_b32 s{sT0}, s2, 7
    s_lshr_b32 s{sT1}, s2, 3
    s_and_b32 s{sT2}, s{sT1}, 3
    s_lshl_b32 s{sHead}, s{sT0}, 2
    s_add_u32 s{sHead}, s{sHead}, s{sT2}        ; head
    s_lshr_b32 s{sT1}, s{sT1}, 2
    s_lshl_b32 s{sT1}, s{sT1}, 1
    s_add_u32 s{sT1}, s{sT1}, s{sMI}
    s_lshr_b32 s4, s{sWave}, 1
    s_lshl_b32 s5, s{sHead}, 16
    s_lshl_b32 s{sQ}, s{sT1}, 12
    s_add_u32 s{sQ}, s{sQ}, s5
    s_lshl_b32 s6, s4, 11
    s_add_u32 s{sQ0}, s{sQ}, s6
    s_xor_b32 s6, s6, 2048
    s_add_u32 s{sQ}, s{sQ}, s6
    s_lshl_b32 s{sT1}, s{sT1}, 1
    s_add_u32 s{sT1}, s{sT1}, s4
    s_lshl_b32 s{sO}, s{sT1}, 16
    s_lshl_b32 s{sT0}, s{sHead}, 10
    s_add_u32 s{sO}, s{sO}, s{sT0}
    s_add_u32 s{sO}, s{sO}, {OF}
    s_lshl_b32 s{sFo}, s{sT1}, 12
    s_lshl_b32 s{sT0}, s{sHead}, 7
    s_add_u32 s{sFo}, s{sFo}, s{sT0}
    s_add_u32 s{sFo}, s{sFo}, {FO}
    s_add_u32 s{sKb}, s5, {KF}
    s_lshl_b32 s{sT0}, s4, 15
    s_add_u32 s{sKVb}, s{sKb}, s{sT0}
    v_mov_b32 v{vK}, v{vL16}
    v_lshrrev_b32 v{vV}, 5, v{vL}
    v_lshlrev_b32 v{vV}, 8, v{vV}
    v_and_b32 v{aPKV}, 15, v{vL}
    v_lshl_add_u32 v{vV}, v{aPKV}, 4, v{vV}
    v_add_u32 v{vV}, {VF-KF}, v{vV}
    s_mov_b32 s{sMask}, 0x0000ffff
    s_mov_b32 s{sMask+1}, 0x0000ffff
    s_mov_b32 s{sFB}, 1
    s_mov_b32 s{sOff}, {hex(f2u(-OFFSET))}
    v_mov_b32 v{vIdx}, 0xdddddddd
    v_and_b32 v{aOnes}, 27, v{vL}
    v_cmp_eq_u32 vcc, 16, v{aOnes}
    v_mov_b32 v{aOnes}, 0x3f803f80
    s_lshr_b32 s{sFQ}, s{sHead}, 1
    v_cndmask_b32 v{aOnes}, 0, v{aOnes}, vcc
    s_lshl_b32 s{sFQ}, s{sFQ}, 13
    s_add_u32 s{sFQ}, s{sFQ}, {FQ}
    v_lshlrev_b32 v{aL128}, 7, v{vL}
    s_lshr_b32 s{sPKV}, s2, 5
    s_lshl_b32 s{sPKV}, s{sPKV}, 2
    s_add_u32 s{sPKV}, s{sPKV}, s{sWave}
    s_lshl_b32 s{sPKV}, s{sPKV}, 11
    s_add_u32 s{sPKV}, s{sPKV}, s{sKb}          ; K/V slice
    v_lshlrev_b32 v{aPKV}, 7, v{aPKV}
    v_bfe_u32 v{aPF}, v{vL}, 4, 1
    v_lshl_add_u32 v{aPKV}, v{aPF}, 21, v{aPKV}
    """)
    assert VF - KF == 1 << 21
    for g in range(NB4, 5): pub_ld(g)
    check(True, 0, 1)
    FS()
    NPRE = 12 + NG0
    for g in range(5, NPRE):
        if g >= 9: check(True, 0, g - 7)
        if g == 12:
            pub_ld(11)
            if not opt.get("p2early", 1): p2()
        dma(*ddq(g))
        if g >= 7 and g < 16: FS()
        if g > 5 and g != 12: pub_ld(g - 1)
    pub_ld(NPRE - 1)
    for x in VRG:
        for i in range(8):
            A(f"v_accvgpr_write_b32 a{x[1]+i}, v{aOnes}" if x[0] == "a" else f"v_mov_b32 v{x[1]+i}, v{aOnes}")
    zero_o()
    if FR: ST(); ST.flush(ws, STAMP, sWave, 2, 3, sT0); A("s_endpgm"); ST.on = False; stamps = False
    if opt.get("aexit"): A("s_waitcnt lgkmcnt(0)\ns_endpgm")
    get_tag(vF, vT1, "L_atag")
    A(f"s_setprio 2\ns_cmp_lg_u32 s{sWave}, 0\ns_cbranch_scc1 L_aw")
    lds_spin("L_ag2", M, vCntR, 0, f"v_cmp_gt_u32 vcc, 12, v{M}", sleep=1)
    ST()
    spin_flags("L_qf", vF, aL128, sFQ, 64, sleep=2)
    A(f"ds_write_b32 v{aGo}, v{vOne}\ns_branch L_aw_x")
    A.label("L_aw")
    if stamps: ST.n -= 1; ST()
    lds_spin("L_ag3", M, aGo, 0, f"v_cmp_eq_u32 vcc, 0, v{M}", sleep=1)
    A.label("L_aw_x")
    ST()
    def so_imm(rel): return (sKA, (rel - 4) * 1024) if rel < 8 else (sKB2, (rel - 8) * 1024)
    KVM = opt.get("kvm", " sc1")
    def kload(r, so, imm): A(f"buffer_load_dwordx4 {rg(KRG[r])}, v{vK}, {ws}, s{so} offen offset:{imm}{KVM}")
    def vload(r, so, imm):
        A(f"s_mov_b64 exec, {s(sMask,2)}")
        A(f"buffer_load_dwordx4 {rg(VRG[r])}, v{vV}, {ws}, s{so} offen offset:{imm}{KVM}")
        A(f"buffer_load_dwordx4 {rg(VRG[r],4)}, v{vV}, {ws}, s{so} offen offset:{imm+512}{KVM}")
        A(f"s_mov_b64 exec, -1")
    E0 = 3
    def ring_prologue():
        A(f"s_add_u32 s{sKA}, s{sKVb}, {4096 - E0*1024}\ns_add_u32 s{sKB2}, s{sKVb}, {8192 - E0*1024}")
        for b in range(5):
            if b < 4: kload((E0 + b) % NR, sKVb, b * 1024); vload((E0 + b) % NR, sKVb, b * 1024)
            else: kload((E0 + b) % NR, sKA, 3072)
    A(f"buffer_load_dwordx4 {a(KS,4)}, v{vK}, {ws}, s{sKb} offen sc1")
    A(f"buffer_load_dwordx4 {a(KS+4,4)}, v{vK}, {ws}, s{sKb} offen offset:1024 sc1")
    for t in range(4):
        A(f"buffer_load_dwordx4 {a(Q+4*t,4)}, v{vK}, {ws}, s{sQ0 if t < 2 else sQ} offen offset:{(t&1)*1024} sc1")
    ring_prologue()
    A(f"ds_add_u32 v{vCnt}, v{vOne}")
    npf = 0
    if opt.get("pkv", 1):
        A(f"s_mov_b64 exec, 0xffffffff\nbuffer_load_dword v143, v{aPKV}, {ws}, s{sPKV} offen{KVM}\ns_mov_b64 exec, -1"); npf += 1
    A(f"s_waitcnt vmcnt({13+npf})")
    def maxtree(dst, blocks, first):
        regs = [b + i for b in blocks for i in range(16)]
        if first:
            A(f"v_max3_f32 v{dst}, v{regs[0]}, v{regs[1]}, v{regs[2]}"); regs = regs[3:]
        while len(regs) >= 2:
            A(f"v_max3_f32 v{dst}, v{dst}, v{regs[0]}, v{regs[1]}"); regs = regs[2:]
        if regs: A(f"v_max_f32 v{dst}, v{dst}, v{regs[0]}")
    for t in range(2): A(f"{MF} {v(SB+16*t,16)}, {a(KS+4,4)}, {a(Q+4*t,4)}, 0")
    for t in range(4): A(f"{MF} {v(C+16*t,16)}, {a(KS,4)}, {a(Q+4*t,4)}, 0")
    A("s_nop 6")
    for t in range(2): maxtree(M + t, [SB + 16 * t], True)
    for t in range(2): A(f"{MF} {v(SB+16*t,16)}, {a(KS+4,4)}, {a(Q+8+4*t,4)}, 0")
    for t in range(2): maxtree(M + t, [C + 16 * t], False)
    for t in range(2, 4): maxtree(M + t, [C + 16 * t, SB + 16 * (t - 2)], True)
    zero_o(8)
    A.label("L_amain")
    for t in range(4): A(f"v_mov_b32 v{2+t}, v{M+t}")
    A("s_nop 1")
    for t in range(4): A(f"v_permlane32_swap_b32 v{2+t}, v{M+t}")
    for t in range(4): A(f"v_max_f32 v{M+t}, v{M+t}, v{2+t}")
    for t in range(4): A(f"v_sub_f32 v{M+t}, s{sOff}, v{M+t}")
    for i in range(16): A(f"v_mov_b32 v{C+i}, v{M}")
    A("s_waitcnt vmcnt(10)")
    A(f"s_mov_b32 s{sCnt}, 7")
    A(f"{MF} {v(SB,16)}, {rg(KRG[E0])}, {a(Q,4)}, {v(C,16)}")
    for t in range(1, 4):
        for i in range(16): A(f"v_mov_b32 v{C+16*t+i}, v{M+t}")
    for i in range(8): A(f"v_mov_b32 v{SB+16+8+i}, 0")
    ST()
    if stamps: A("s_memtime s[96:97]")
    if opt.get("atrace"): A("s_mov_b32 s64, 0\ns_memrealtime s[66:67]")
    A("s_branch L_aent")
    A.raw(".p2align 6")
    A.label("L_aloop")
    for r in range(NR):
        if r == E0: A.label("L_aent")
        for t in range(4):
            X = SB + 16 * (t & 1); Y = SB + 16 * ((t + 1) & 1)
            tn = (t + 1) & 3; rn = r if t < 3 else (r + 1) % NR
            tp = (t - 1) & 3; rp = r if t > 0 else (r - 1) % NR
            E = lambda j: f"v_exp_f32 v{X+j}, v{X+j}"
            for j in range(0, 3): A(E(j))
            A(f"{SMF} {a(O+16*tp,16)}, {rg(VRG[rp],4)}, {v(Y+8,8)}, v{vIdx}")
            A(E(3))
            if t == 0: vload(rp, *so_imm(r + 4))
            if t == 3: kload(r, *so_imm(r + 5))
            for j in range(4, 7): A(E(j))
            if t == 1 and opt.get("atrace"):
                A("s_waitcnt lgkmcnt(0)\ns_mov_b32 m0, s64\ns_add_u32 s64, s64, 1\nv_writelane_b32 v140, s66, m0\ns_memrealtime s[66:67]")
            if t == 3: A("s_waitcnt vmcnt(10)")
            A(f"{MF} {v(Y,16)}, {rg(KRG[rn])}, {a(Q+4*tn,4)}, {v(C+16*tn,16)}")
            for j in range(7, 12): A(E(j))
            A(f"{SMF} {a(O+16*t,16)}, {rg(VRG[r])}, {v(X,8)}, v{vIdx}")
            if r == NR - 1 and t == 3:
                A(E(12))
                A(f"s_add_u32 s{sKA}, s{sKA}, 5120\ns_add_u32 s{sKB2}, s{sKB2}, 5120\ns_sub_u32 s{sCnt}, s{sCnt}, 1\ns_cmp_lg_u32 s{sCnt}, 0")
                for j in range(13, 16): A(E(j))
            else:
                for j in range(12, 16): A(E(j))
    A("s_cbranch_scc1 L_aloop")
    A("s_nop 1")
    A(f"{SMF} {a(O+48,16)}, {rg(VRG[NR-1],4)}, {v(SB+16+8,8)}, v{vIdx}")
    ST()
    if stamps: A("s_memtime s[98:99]")
    A(f"""
    s_mul_i32 s{sT0}, s{sWave}, {CMBW}
    s_add_u32 s{sT0}, s{sT0}, {CMB}
    v_add_u32 v2, s{sT0}, v{vK}
    v_lshl_add_u32 v3, v{vL}, 2, s{sT0}
    s_xor_b32 s{sT0}, s{sWave}, 2
    s_mul_i32 s{sT0}, s{sT0}, {CMBW}
    s_add_u32 s{sT0}, s{sT0}, {CMB}
    v_add_u32 v4, s{sT0}, v{vK}
    v_lshl_add_u32 v5, v{vL}, 2, s{sT0}
    v_mov_b32 v{vF}, s{sFB}
    """)
    for i in range(2):
        t = 2 + i
        if i == 1: A("s_nop 0")
        A(f"ds_write_b128 v2, {a(O+16*t,4)} offset:{i*2304}")
        A(f"ds_write_b128 v2, {a(O+16*t+4,4)} offset:{i*2304+1024}")
        A(f"ds_write_b32 v3, a{O+16*t+8} offset:{i*2304+2048}")
    A(f"ds_write_b32 v{vAF}, v{vF}")
    for i in range(2):
        for e in range(9): A(f"v_accvgpr_read_b32 v{C+24*i+e}, a{O+16*i+e}")
    lds_spin("L_ax", M, vPF, 0, f"v_cmp_gt_u32 vcc, s{sFB}, v{M}")
    for i in range(2):
        b = C + 24 * i + 12
        A(f"ds_read_b128 {v(b,4)}, v4 offset:{i*2304}")
        A(f"ds_read_b128 {v(b+4,4)}, v4 offset:{i*2304+1024}")
        A(f"ds_read_b32 v{b+8}, v5 offset:{i*2304+2048}")
    A(f"""
    v_mov_b32 v2, 0
    s_mov_b64 {s(sBad,2)}, 0
    s_mov_b32 s4, {hex(f2u(2.0**-110))}
    s_mov_b32 s5, {hex(f2u(2.0**120))}
    s_add_u32 s6, s{sO}, 32768
    s_waitcnt lgkmcnt(0)
    """)
    for i in range(2):
        b0 = C + 24 * i
        for e in range(9): A(f"v_add_f32 v{b0+e}, v{b0+e}, v{b0+12+e}")
        A(f"v_rcp_f32 v{b0+9}, v{b0+8}")
        A(f"v_cmp_nle_f32 vcc, s4, v{b0+8}")
        A(f"s_or_b64 {s(sBad,2)}, {s(sBad,2)}, vcc")
        A(f"v_cmp_nge_f32 vcc, s5, v{b0+8}")
        A(f"s_or_b64 {s(sBad,2)}, {s(sBad,2)}, vcc")
        for e in range(8): A(f"v_mul_f32 v{b0+e}, v{b0+e}, v{b0+9}")
        for e in range(4): A(f"v_cvt_pk_bf16_f32 v{b0+12+e}, v{b0+2*e}, v{b0+2*e+1}")
        A(f"buffer_store_dwordx4 {v(b0+12,4)}, v{vK}, {ws}, s{sO if i == 0 else 6} offen sc1")
    for i in range(2):
        for e in range(8): A(f"v_fma_f32 v2, v{C+24*i+e}, 0, v2")
    A(f"""
    v_cmp_u_f32 vcc, v2, v2
    s_or_b64 {s(sBad,2)}, {s(sBad,2)}, vcc
    s_cmp_lg_u64 {s(sBad,2)}, 0
    s_cselect_b32 s4, 2, 1
    v_mov_b32 v2, s4
    v_mov_b32 v3, s{sTag}
    v_mov_b32 v4, 0
    ds_write_b32 v{vAF}, v2 offset:256
    s_cmp_eq_u32 s{sFB}, 2
    s_cselect_b32 s5, 1, s4
    s_cmp_lg_u32 s5, 1
    s_cbranch_scc1 L_anoflag
    s_waitcnt vmcnt(0)
    s_mov_b64 exec, 1
    buffer_store_dword v3, v4, {ws}, s{sFo} offen sc1
    s_mov_b64 exec, -1
    """)
    A.label("L_anoflag")
    if stamps:
        ST(); A("s_waitcnt lgkmcnt(0)\ns_sub_u32 s98, s98, s96\ns_add_u32 s%d, s98, s%d" % (ST.base + 2 * ST.n, ST.base)); ST.n += 1
        ST.flush(ws, STAMP, sWave, 2, 3, sT0)
        if opt.get("atrace"):
            A(f"s_add_u32 s{sT0}, s{sT0}, {MB}\nv_lshlrev_b32 v2, 2, v{vL}\nbuffer_store_dword v140, v2, {ws}, s{sT0} offen")
    A(f"s_cmp_eq_u32 s{sFB}, 2\ns_cbranch_scc1 L_end")
    lds_spin("L_as", M, vPF, 256, f"v_cmp_eq_u32 vcc, 0, v{M}")
    A(f"v_readfirstlane_b32 s5, v{M}\ns_max_u32 s4, s4, s5\ns_cmp_lt_u32 s4, 2\ns_cbranch_scc1 L_end")
    A(f"s_mov_b32 s{sFB}, 2\ns_mov_b32 s{sOff}, 0\ns_mov_b32 s{sCnt}, 64\ns_mov_b32 s{sKA}, s{sKb}\ns_waitcnt vmcnt(0)")
    for t in range(4): A(f"v_mov_b32 v{M+t}, 0xff800000")
    A.label("L_afb")
    A(f"buffer_load_dwordx4 {a(KS,4)}, v{vK}, {ws}, s{sKA} offen sc1")
    A("s_waitcnt vmcnt(0)")
    for t in range(4): A(f"{MF} {v(C+16*t,16)}, {a(KS,4)}, {a(Q+4*t,4)}, 0")
    A("s_nop 11")
    for t in range(4): maxtree(M + t, [C + 16 * t], False)
    A(f"s_add_u32 s{sKA}, s{sKA}, 1024\ns_sub_u32 s{sCnt}, s{sCnt}, 1\ns_cmp_lg_u32 s{sCnt}, 0\ns_cbranch_scc1 L_afb")
    vload((E0 - 1) % NR, sKVb, 0)
    A("s_waitcnt vmcnt(0)")
    ring_prologue()
    zero_o()
    A("s_branch L_amain")
    for f in slow: f()
    A.label("L_end")
    A("s_endpgm")
    A.raw(f".fill (51200 - (. - {K})) / 4, 4, 0xbf800000")

    H_ = Asm()
    H_.raw(f"; @launch grid=(256,1,1) block=(512,1,1) lds={LDS}")
    H_.raw('.amdgcn_target "amdgcn-amd-amdhsa--gfx950"\n.text')
    H_.lines += A.lines
    H_.raw(f""".section .rodata,"a"
.p2align 6
.amdhsa_kernel {K}
  .amdhsa_next_free_vgpr {NV+NA}
  .amdhsa_next_free_sgpr 102
  .amdhsa_accum_offset {NV}
  .amdhsa_group_segment_fixed_size 0
  .amdhsa_kernarg_size 80
  .amdhsa_user_sgpr_count 2
  .amdhsa_user_sgpr_kernarg_segment_ptr 1
  .amdhsa_system_sgpr_workgroup_id_x 1
.end_amdhsa_kernel""")
    txt = H_.text()
    check_hazards(txt)
    return txt

if __name__ == "__main__":
    base = {"pfgo": 1}
    open("mega_s.s", "w").write(build(True, base))
    open("mega.s", "w").write(build(False, base))
    open("mega_tr.s", "w").write(build(True, dict(base, atrace=1)))
    open("mega_b.s", "w").write(build(True, dict(base, p1kv=0, p2early=0)))
    open("mega_c.s", "w").write(build(True, dict(base, p1kv=1, p2early=0)))
    open("mega_d.s", "w").write(build(True, dict(base, p1kv=0, p2early=1)))
```

```python
import sys, struct
from asmlib import *
from layout import *
NAME = 'recurrent_scan__softmax_full_mha__glu_gated_geglu__prompt'
def f2u(x): return struct.unpack("<I", struct.pack("<f", x))[0]
MF = "v_mfma_f32_32x32x16_bf16"
SMF = "v_smfmac_f32_32x32x32_bf16"
C1 = -2.0 * 1.4426950408889634 * 0.7978845608028654
C2 = C1 * 0.044715
OFFSET = 80.0
NV, NA = 144, 112

SLOT = 16384
PIECE = 528
XT = 5 * SLOT
CMB = 131072
CMBW = 2 * 2304
CNT = 149504
LDC = CNT + 1024
AFL = LDC + 1024
GO = AFL + 8 * 256
LDS = GO + 256
RS = 272; RBY = 64 * RS
assert CMB + 4 * CMBW <= CNT

class Fifo:
    def __init__(self, cap): self.q = []; self.cap = cap; self.since = 0
    def push(self, tag, n=1): self.q += [tag] * n; self.since += n
    def need(self, tag):
        idx = [i for i, t in enumerate(self.q) if t == tag]
        if not idx: return None
        return min(len(self.q) - 1 - idx[-1], self.cap)
    def waited(self, n): self.q = self.q[max(0, len(self.q) - n):] if n else []
    def clear(self): self.q = []

def build(stamps=False, opt=None):
    opt = opt or {}
    TIMEOUT = opt.get("timeout", 200000)
    NG0 = opt.get('ng0', 4)
    PF2MASK = '0xffffffff'
    A = Asm()
    K = NAME + "_kernel"
    ST = Stamps(A, 70, stamps); ST.cyc = opt.get('cyc', False)
    sX, sWq, sWgu, sWd, sWo, sWS, sOut, sDbg = 8, 12, 16, 20, 24, 28, 32, 36
    sWave, sRB, sCG, sT0, sT1, sT2, sTag, sTO = 40, 41, 42, 43, 44, 45, 46, 47
    sGW, sMI, sNI, sM0, sQoff, sGoff, sDoff, sOoffW, sNeed, sFlag, sHst, sBlk, sNb = 48, 49, 50, 51, 52, 53, 54, 55, 56, 57, 58, 59, 60
    sHfl, sC, sD0, sD1, sHld, sXo, sHb, sSt = 61, 62, 64, 65, 66, 67, 68, 69
    sKA, sCnt, sKB2, sBad = 48, 51, 49, 52
    sFB, sOff, sQ, sKVb, sHead, sO, sKb, sFo = 50, 54, 55, 56, 57, 60, 61, 62
    sMask, sQ0, sFQ, sP3, sPKV = 58, 63, 65, 66, 67
    ws = s(sWS, 4)
    vL, vT0, vT1, vT2, vHF = 1, 2, 3, 4, 5
    vDq0, vDq1, vDg0, vDg1, vDd0, vDd1 = 6, 7, 8, 9, 10, 11
    vTRn, vTRnH, vTRp0, vTRp0H, vTRp1, vTRp1H = 12, 13, 14, 15, 16, 17
    vCnt, vOne, vP, vL16, vFl, vL128 = 18, 19, 20, 21, 22, 23
    vCntR = 0
    slow = []
    vKo, vVo, vH1, vO1, vXo, vRW, vRR, vXR = 24, 25, 26, 27, 28, 29, 30, 31
    WFB = [32, 36, 112, 116, 120, 124]
    if opt.get('twice'): WFB = [32, 128, 112, 116, 120, 124]
    ACC0, ACC1, TMP, AD, XR, GR, SR = 40, 56, 72, 40, 104, 128, 112
    vmq = Fifo(63); lq = Fifo(15)
    uid = [0]
    def lab(p):
        uid[0] += 1; return f"L_{p}{uid[0]}"
    def vwait(tag):
        n = vmq.need(tag)
        if n is not None: A(f"s_waitcnt vmcnt({n})"); vmq.waited(n)
    def lwait(tag):
        n = lq.need(tag)
        if n is not None: A(f"s_waitcnt lgkmcnt({n})"); lq.waited(n)
    def lds(instr, tag):
        if len(lq.q) >= 15:
            A("s_waitcnt lgkmcnt(12)"); lq.waited(12)
        A(instr); lq.push(tag)
    def timeout_exit(lbl):
        A(f"s_sub_u32 s{sTO}, s{sTO}, 1\ns_cmp_lt_i32 s{sTO}, 0\ns_cbranch_scc1 {lbl}")
    def emask(n): return n if isinstance(n, str) else ("-1" if n == 64 else hex((1 << n) - 1))

    A.raw(f".globl {K}\n.p2align 8\n.type {K},@function\n{K}:")
    F0 = opt.get("front0"); FR = opt.get("front")
    A(f"""
    s_cmp_ge_u32 s2, 256
    s_cbranch_scc1 L_end
    s_load_dwordx4 s[4:7], s[0:1], 0
    s_load_dwordx2 s[24:25], s[0:1], 16
    s_load_dwordx4 s[16:19], s[0:1], 32
    s_load_dwordx4 s[20:23], s[0:1], 48
    s_load_dwordx4 s[36:39], s[0:1], 64
    """)
    if opt.get("cpf", 1):
        A(f"""
        s_getpc_b64 s[8:9]
        s_lshr_b32 s10, s2, 3
        s_lshl_b32 s10, s10, 7
        s_add_u32 s8, s8, s10
        s_addc_u32 s9, s9, 0
        v_lshlrev_b32 v2, 12, v0
        v_add_co_u32 v2, vcc, s8, v2
        v_mov_b32 v3, s9
        v_cmp_gt_u32 s[10:11], 12, v0
        v_addc_co_u32 v3, vcc, 0, v3, vcc
        s_and_saveexec_b64 s[12:13], s[10:11]
        s_cbranch_execz L_nocpf
        global_load_dword v143, v[2:3], off
        L_nocpf:
        s_mov_b64 exec, -1
        """)
    ST()
    A(f"""
    v_lshrrev_b32 v{vT0}, 6, v0
    v_and_b32 v{vL}, 63, v0
    s_and_b32 s{sT0}, s2, 7
    v_readfirstlane_b32 s{sWave}, v{vT0}
    s_lshr_b32 s{sT1}, s2, 3
    s_lshr_b32 s{sRB}, s{sT0}, 1
    s_lshl_b32 s{sRB}, s{sRB}, 3
    s_and_b32 s{sT2}, s{sT1}, 7
    s_add_u32 s{sRB}, s{sRB}, s{sT2}
    s_and_b32 s{sCG}, s{sT0}, 1
    s_lshl_b32 s{sCG}, s{sCG}, 2
    s_lshr_b32 s{sT2}, s{sT1}, 3
    s_add_u32 s{sCG}, s{sCG}, s{sT2}
    v_lshrrev_b32 v{vT0}, 3, v{vL}
    v_and_b32 v{vT1}, 7, v{vL}                  ; 16B piece
    v_lshlrev_b32 v{vT2}, 10, v{vT0}
    v_lshl_add_u32 v5, v{vT1}, 4, v{vT2}
    s_lshl_b32 s{sT0}, s{sRB}, 16
    s_lshl_b32 s{sT1}, s{sWave}, 13
    s_add_u32 s{sT0}, s{sT0}, s{sT1}
    s_mov_b32 s{sX+2}, {S*D*2}
    s_mov_b32 s{sX+3}, 0x00020000
    s_mov_b32 s{sWq+2}, {D*1536*2}
    s_mov_b32 s{sWq+3}, 0x00020000
    s_and_b32 s{sGW}, s{sWave}, 3
    s_and_b32 s{sMI}, s{sGW}, 1
    v_lshlrev_b32 v{vL16}, 4, v{vL}
    s_lshl_b32 s{sT1}, s{sGW}, 2
    s_add_u32 s{sT1}, s{sT1}, {CNT}
    v_add_u32 v{vCnt}, s{sT1}, v{vL16}
    v_mov_b32 v{vOne}, 1
    v_and_b32 v{vFl}, 3, v{vL}
    v_bfe_u32 v{vXo}, v0, 3, 5
    v_lshl_add_u32 v{vCntR}, v{vFl}, 2, v{vL16}
    v_add_u32 v{vCntR}, {CNT}, v{vCntR}
    s_mov_b32 s{sTO}, {TIMEOUT}
    s_waitcnt lgkmcnt(0)
    s_mov_b32 s{sX}, s4
    s_mov_b32 s{sX+1}, s5
    s_mov_b32 s{sWq}, s6
    s_mov_b32 s{sWq+1}, s7
    """)
    R = 40
    for cb in range(8):
        A(f"buffer_load_dwordx4 {v(R+4*cb,4)}, v5, {s(sX,4)}, s{sT0} offen offset:{cb*128}")
    SRDS = f"""
    s_mov_b32 s{sWS}, s38
    s_mov_b32 s{sWS+1}, s39
    s_mov_b32 s{sWS+2}, {WS_USED}
    s_mov_b32 s{sWS+3}, 0x00020000
    s_mov_b32 s{sDbg+2}, 256
    s_mov_b32 s{sDbg+3}, 0x00020000
    s_bitcmp1_b32 s{sWave}, 1
    s_cselect_b32 s{sWgu}, s18, s16
    s_cselect_b32 s{sWgu+1}, s19, s17
    s_mov_b32 s{sWgu+2}, {D*F*2}
    s_mov_b32 s{sWgu+3}, 0x00020000
    v_lshlrev_b32 v{vT2}, 1, v{vT0}
    v_and_b32 v{vT2}, 4, v{vT2}
    v_xor_b32 v{vT2}, v{vT2}, v{vT1}
    v_lshlrev_b32 v{vHF}, 4, v{vT2}
    s_lshl_b32 s{sM0}, s{sGW}, 12
    s_mul_i32 s{sBlk}, s{sCG}, 3
    s_add_u32 s{sT1}, s{sCG}, 1
    s_lshr_b32 s{sT1}, s{sT1}, 2
    s_sub_u32 s{sBlk}, s{sBlk}, s{sT1}
    """
    A(SRDS)
    A(f"s_cmp_lt_u32 s{sWave}, 4\ns_cbranch_scc1 L_pre_a")
    BASE = [0, 3, 6, 8, 11, 14, 17, 19]
    DSEQ = [BASE[j] for j in range(8) if j % 4 != 3] + [BASE[j] + 1 for j in range(8)] + [BASE[j] + 2 for j in range(8)]
    CSTART = {0: 0, 6: 1, 14: 2}
    CMASK = [0x0fff0fff, 0xffffffff, 0xffffffff]
    def dma_pieces(kind, idx, slot):
        if kind == "q":
            panel = (1, 2, 0)[idx // 4]; o = (idx % 4) * 128 * 3072 + panel * 1024
            srd, so, v0_, v1_, o2 = sWq, sQoff, vDq0, vDq1, o + 16 * 3072
        elif kind == "g":
            o = (idx % 8) * 64 * 2752 + (idx // 8) * 128
            srd, so, v0_, v1_, o2 = sWgu, sGoff, vDg0, vDg1, o + 16 * 2752
        elif kind == "d":
            o = DSEQ[2 * idx] * 64 * 1024; o2 = DSEQ[2 * idx + 1] * 64 * 1024
            srd, so, v0_, v1_ = sWd, sDoff, vDd0, vDd1
        else:
            o = idx * 32 * 1024; o2 = o + 16 * 1024
            srd, so, v0_, v1_ = sWo, sOoffW, vDd0, vDd1
        tag = ("dma", kind, idx)
        def p0():
            A(f"s_add_u32 m0, s{sM0}, {slot*SLOT}\ns_add_u32 s{sD0}, s{so}, {o}")
            A(f"buffer_load_dwordx4 v{v0_}, {s(srd,4)}, s{sD0} offen lds"); vmq.push(tag)
        def p1():
            A(f"buffer_load_dwordx4 v{v1_}, {s(srd,4)}, s{sD0} offen offset:1024 lds"); vmq.push(tag)
        def p2():
            A(f"s_add_u32 s{sD0}, s{so}, {o2 - 2048}")
            A(f"buffer_load_dwordx4 v{v0_}, {s(srd,4)}, s{sD0} offen offset:2048 lds"); vmq.push(tag)
        def p3():
            A(f"buffer_load_dwordx4 v{v1_}, {s(srd,4)}, s{sD0} offen offset:3072 lds"); vmq.push(tag)
        return [p0, p1, p2, p3]
    def dma(kind, idx, slot):
        cap = opt.get("ldcap", 40)
        for p in dma_pieces(kind, idx, slot):
            if len(vmq.q) > cap:
                A(f"s_waitcnt vmcnt({cap})"); vmq.waited(cap)
            p()
    def ddq(g): return ("q", g, g % 8) if g < 12 else ("g", g - 12, g % 8)
    GUADDR = f"""
    v_mul_u32_u24 v{vDg0}, 2752, v{vT0}
    v_add_u32 v{vDg0}, v{vDg0}, v{vHF}
    v_add_u32 v{vDg1}, {8*2752-1024}, v{vDg0}
    s_mul_i32 s{sGoff}, s{sMI}, {32*2752}
    s_lshl_b32 s{sT0}, s{sBlk}, 7
    s_add_u32 s{sGoff}, s{sGoff}, s{sT0}
    """
    A(f"""
    v_bfe_u32 v{vP}, v{vL}, 2, 2
    v_mul_u32_u24 v{vP}, 3072, v{vP}
    v_lshl_add_u32 v{vP}, v{vFl}, 7, v{vP}
    v_lshrrev_b32 v{vKo}, 4, v{vL}
    v_lshl_add_u32 v{vP}, v{vKo}, 10, v{vP}
    s_lshr_b32 s{sT1}, s2, 3
    s_mul_i32 s{sT1}, s{sT1}, {16*3072}
    s_mul_i32 s{sT0}, s{sGW}, {4*3072}
    s_add_u32 s{sT1}, s{sT1}, s{sT0}
    s_and_b32 s{sT0}, s2, 1
    s_lshl_b32 s{sT0}, s{sT0}, 9
    s_add_u32 s{sT1}, s{sT1}, s{sT0}
    s_lshr_b32 s{sNI}, s{sGW}, 1
    v_bfe_u32 v{vT2}, v{vL}, 2, 2
    v_lshlrev_b32 v{vTRp0}, 7, v{vT2}
    v_bfe_u32 v{vKo}, v{vL}, 4, 1
    v_lshl_add_u32 v{vTRp0}, v{vKo}, 5, v{vTRp0}
    v_lshl_add_u32 v{vTRp0}, v{vFl}, 3, v{vTRp0}
    v_lshrrev_b32 v{vH1}, 1, v{vT2}             ; r>>1
    v_lshrrev_b32 v{vO1}, 5, v{vL}              ; half
    v_xor_b32 v{vFl}, s{sNI}, v{vH1}
    v_lshl_add_u32 v{vTRn}, v{vFl}, 6, v{vTRp0}
    v_lshl_add_u32 v{vTRn}, v{vO1}, 10, v{vTRn}
    v_add_u32 v{vTRnH}, 65536, v{vTRn}
    v_and_b32 v{vRW}, 31, v{vL}
    v_mul_u32_u24 v{vXR}, {PIECE}, v{vO1}
    v_lshl_add_u32 v{vXR}, v{vRW}, 4, v{vXR}
    s_mul_i32 s{sT0}, s{sMI}, {64*PIECE}
    s_add_u32 s{sT0}, s{sT0}, {XT}
    v_add_u32 v{vXR}, s{sT0}, v{vXR}
    s_mov_b64 exec, {'0xffffffff' if opt.get('p1kv', 1) else '0xffff'}
    buffer_load_dword v143, v{vP}, {s(sWq,4)}, s{sT1} offen offset:1024
    s_mov_b64 exec, -1
    s_mov_b32 s3, 1
    s_setprio 1
    s_waitcnt vmcnt(1)
    s_branch L_ln
    """)
    GLATE = [x.strip() for x in (GUADDR + f"""
    s_mov_b32 s{sOut}, s22
    s_mov_b32 s{sOut+1}, s23
    s_mov_b32 s{sOut+2}, {S*D*2}
    s_mov_b32 s{sOut+3}, 0x00020000
    s_mov_b32 s{sWd+2}, {F*D*2}
    s_mov_b32 s{sWd+3}, 0x00020000
    s_mov_b32 s{sWo+2}, {D*D*2}
    s_mov_b32 s{sWo+3}, 0x00020000
    v_lshl_add_u32 v{vDd0}, v{vT0}, 10, v{vHF}
    v_add_u32 v{vDd1}, {8*1024-1024}, v{vDd0}
    s_lshl_b32 s{sT2}, s{sCG}, 7
    s_lshl_b32 s{sDoff}, s{sGW}, 14
    s_add_u32 s{sDoff}, s{sDoff}, s{sT2}
    s_lshl_b32 s{sOoffW}, s{sGW}, 17
    s_add_u32 s{sOoffW}, s{sOoffW}, s{sT2}
    s_lshl_b32 s{sXo}, s{sRB}, 16
    s_add_u32 s{sXo}, s{sXo}, s{sT2}
    s_and_b32 s{sNb}, s{sCG}, 3
    v_lshl_add_u32 v{vTRp0}, v{vH1}, 6, v{vTRp0}
    v_lshl_add_u32 v{vTRp0}, v{vO1}, 9, v{vTRp0}
    v_add_u32 v{vTRp0}, s{sM0}, v{vTRp0}
    v_xor_b32 v{vTRp1}, 64, v{vTRp0}
    v_add_u32 v{vTRp0H}, 65536, v{vTRp0}
    v_add_u32 v{vTRp1H}, 65536, v{vTRp1}
    v_lshlrev_b32 v{vL128}, 7, v{vL}
    v_lshlrev_b32 v{vVo}, 16, v{vKo}
    v_lshl_add_u32 v{vVo}, v{vO1}, 8, v{vVo}
    v_and_b32 v{vT2}, 15, v{vL}
    v_lshl_add_u32 v{vVo}, v{vT2}, 4, v{vVo}
    v_add_u32 v{vVo}, {VF}, v{vVo}
    v_mul_u32_u24 v{vRW}, {RS}, v{vRW}
    v_lshl_add_u32 v{vRW}, v{vO1}, 4, v{vRW}
    s_mul_i32 s{sT0}, s{sGW}, {RBY}
    v_add_u32 v{vRW}, s{sT0}, v{vRW}
    v_mul_u32_u24 v{vRR}, {RS}, v{vXo}
    v_lshl_add_u32 v{vRR}, v{vT1}, 5, v{vRR}
    v_lshlrev_b32 v{vXo}, 10, v{vXo}
    v_lshl_add_u32 v{vXo}, v{vT1}, 4, v{vXo}
    v_and_b32 v{vKo}, 0x33, v{vL}
    v_lshrrev_b32 v{vT2}, 1, v{vL}
    v_and_b32 v{vT2}, 4, v{vT2}
    v_lshlrev_b32 v{vO1}, 1, v{vL}
    v_and_b32 v{vO1}, 8, v{vO1}
    v_or3_b32 v{vKo}, v{vKo}, v{vT2}, v{vO1}
    v_lshlrev_b32 v{vKo}, 4, v{vKo}
    v_add_u32 v{vKo}, {KF}, v{vKo}
    v_add_u32 v{vH1}, {86*1024}, v{vL16}
    v_add_u32 v{vO1}, 32768, v{vL16}
    v_lshlrev_b32 v{vXR}, 10, v{vL}
    v_mov_b32 v{vT2}, 0
    v_mov_b32 v{vT0}, {hex(f2u(C1))}
    v_mov_b32 v{vT1}, {hex(f2u(C1))}
    s_lshl_b32 s{sT2}, s{sRB}, 1
    s_add_u32 s{sT2}, s{sT2}, s{sMI}
    s_mul_i32 s{sHst}, s{sT2}, {86*1024}
    s_lshl_b32 s{sT1}, s{sCG}, 1
    s_add_u32 s{sT1}, s{sT1}, s{sNI}
    s_lshl_b32 s{sFlag}, s{sT1}, 13
    s_lshl_b32 s{sT0}, s{sT2}, 7
    s_add_u32 s{sFlag}, s{sFlag}, s{sT0}
    s_add_u32 s{sFlag}, s{sFlag}, {FQ}
    s_lshl_b32 s{sT1}, s{sT1}, 17
    s_lshl_b32 s{sT2}, s{sT2}, 10
    s_add_u32 s{sSt}, s{sT1}, s{sT2}
    s_lshl_b32 s{sT0}, s{sBlk}, 12
    s_lshl_b32 s{sT1}, s{sNI}, 11
    s_add_u32 s{sHst}, s{sHst}, s{sT0}
    s_add_u32 s{sHst}, s{sHst}, s{sT1}
    s_add_u32 s{sHst}, s{sHst}, {HF}
    s_lshl_b32 s{sHld}, s{sRB}, 14
    s_add_u32 s{sHld}, s{sHld}, {FH}
    s_lshl_b32 s{sT0}, s{sCG}, 9
    s_lshl_b32 s{sT1}, s{sGW}, 7
    s_add_u32 s{sHfl}, s{sT0}, s{sT1}
    s_add_u32 s{sHfl}, s{sHfl}, s{sHld}
    s_mul_i32 s{sHb}, s{sRB}, {2*86*1024}
    s_lshl_b32 s{sT0}, s{sGW}, 10
    s_add_u32 s{sHb}, s{sHb}, s{sT0}
    s_add_u32 s{sHb}, s{sHb}, {HF}
    s_mov_b32 s{sC}, {hex(f2u(QSCALE))}
    s_mov_b32 s{sC+1}, {hex(f2u(QSCALE))}
    """).split("\n") if x.strip()]
    vK, vV, vIdx, vAF, vPF, vF = 10, 11, 12, 13, 14, 15
    M, C, SB = 6, 16, 80
    aOnes, aPF, aP3, aPKV, aL128, aGo = 24, 25, 26, 27, 28, 29
    O, Q, KS = 0, 64, 0
    NR = 5
    KRG = [("a", 80), ("a", 92), ("a", 104), ("a", 108), ("v", 136)]
    VRG = [("a", 84), ("a", 96), ("v", 112), ("v", 120), ("v", 128)]
    def rg(x, off=0, n=4): return (a if x[0] == "a" else v)(x[1] + off, n)
    def zero_o(n=64):
        for i in range(n): A(f"v_accvgpr_write_b32 a{O+i}, 0")
    A.label("L_pre_a")
    A(f"""
    v_mov_b32 v{vF}, 0
    ds_write_b32 v{vCnt}, v{vF}
    ds_write_b32 v{vCnt}, v{vF} offset:1024
    v_add_u32 v{vCnt}, 1024, v{vCnt}
    v_lshlrev_b32 v{aGo}, 2, v{vL}
    s_lshl_b32 s{sT0}, s{sWave}, 9
    s_add_u32 s{sT0}, s{sT0}, {AFL}
    v_add_u32 v{vAF}, s{sT0}, v{aGo}
    s_xor_b32 s{sT0}, s{sWave}, 2
    s_lshl_b32 s{sT0}, s{sT0}, 9
    s_add_u32 s{sT0}, s{sT0}, {AFL}
    v_add_u32 v{vPF}, s{sT0}, v{aGo}
    v_add_u32 v{aGo}, {GO}, v{aGo}
    ds_write_b32 v{vAF}, v{vF}
    ds_write_b32 v{vAF}, v{vF} offset:256
    ds_write_b32 v{aGo}, v{vF}
    v_mul_u32_u24 v{vDq0}, 3072, v{vT0}
    v_add_u32 v{vDq0}, v{vDq0}, v{vHF}
    v_add_u32 v{vDq1}, {8*3072-1024}, v{vDq0}
    s_mul_i32 s{sQoff}, s{sGW}, {32*3072}
    s_lshl_b32 s{sT2}, s{sCG}, 7
    s_add_u32 s{sQoff}, s{sQoff}, s{sT2}
    v_bfe_u32 v{aP3}, v{vL}, 2, 2
    v_mul_u32_u24 v{aP3}, 3072, v{aP3}
    v_lshl_add_u32 v{aP3}, v{vFl}, 7, v{aP3}
    v_bfe_u32 v{aPF}, v{vL}, 4, 1
    v_xor_b32 v{aPF}, 1, v{aPF}
    v_lshl_add_u32 v{aP3}, v{aPF}, 11, v{aP3}
    s_lshr_b32 s7, s2, 3
    s_lshl_b32 s7, s7, 2
    s_add_u32 s7, s7, s{sWave}
    s_mul_i32 s7, s7, {4*3072}
    s_and_b32 s{sT0}, s2, 1
    s_lshl_b32 s{sT0}, s{sT0}, 9
    s_add_u32 s7, s7, s{sT0}
    s_and_b32 s{sT0}, s{sCG}, 3
    s_cmp_eq_u32 s{sT0}, 3
    s_addc_u32 s{sBlk}, s{sBlk}, 0
    v_lshrrev_b32 v30, 1, v{vL}
    v_mul_u32_u24 v30, 2752, v30
    v_and_b32 v31, 1, v{vL}
    v_mul_u32_u24 v31, 124, v31
    v_add_u32 v30, v30, v31
    s_and_b32 s68, s{sRB}, 7
    s_lshl_b32 s68, s68, 1
    s_add_u32 s68, s68, s{sMI}
    s_mul_i32 s68, s68, {16*2752}
    s_lshl_b32 s{sT0}, s{sBlk}, 7
    s_add_u32 s68, s68, s{sT0}
    s_or_b32 s{sT1}, s2, s{sWave}
    s_cmp_lg_u32 s{sT1}, 0
    s_cbranch_scc1 L_pre_a2
    s_memrealtime s[4:5]
    s_waitcnt lgkmcnt(0)
    s_or_b32 s4, s4, 1
    v_mov_b32 v{vIdx}, s4
    buffer_store_dword v{vIdx}, v{vF}, {s(sDbg,4)}, 0 offen sc1
    """)
    A.label("L_pre_a2")
    if opt.get("pall"):
        A(f"""
        s_mov_b32 s{sWd+2}, {F*D*2}
        s_mov_b32 s{sWd+3}, 0x00020000
        s_mov_b32 s{sWo+2}, {D*D*2}
        s_mov_b32 s{sWo+3}, 0x00020000
        v_mul_u32_u24 v141, 2752, v{vL}
        s_and_b32 s{sT0}, s{sRB}, 7
        s_mul_i32 s{sT0}, s{sT0}, {64*2752}
        s_mul_i32 s{sT1}, s{sCG}, 384
        s_add_u32 s{sT0}, s{sT0}, s{sT1}
        s_mul_i32 s{sT1}, s{sMI}, 124
        s_add_u32 s{sT1}, s{sT0}, s{sT1}
        buffer_load_dword v143, v141, {s(sWgu,4)}, s{sT1} offen
        s_lshl_b32 s{sT1}, s{sMI}, 7
        s_add_u32 s{sT1}, s{sT0}, s{sT1}
        buffer_load_dword v143, v141, {s(sWgu,4)}, s{sT1} offen offset:252
        v_lshlrev_b32 v142, 10, v{vL}
        s_and_b32 s{sT0}, s{sRB}, 7
        s_lshl_b32 s{sT1}, s{sCG}, 7
        s_mul_i32 s{sT2}, s{sT0}, {172*1024}
        s_add_u32 s{sT2}, s{sT2}, s{sT1}
        s_lshl_b32 s4, s{sGW}, 16
        s_add_u32 s{sT2}, s{sT2}, s4
        buffer_load_dword v143, v142, {s(sWd,4)}, s{sT2} offen
        s_lshl_b32 s{sT0}, s{sT0}, 16
        s_add_u32 s{sT0}, s{sT0}, s{sT1}
        buffer_load_dword v143, v142, {s(sWo,4)}, s{sT0} offen
        s_waitcnt vmcnt(0)
        s_sleep 40
        """)
    A("s_mov_b32 s3, 0\ns_waitcnt vmcnt(0)")
    NEARLY = opt.get("nearly", 0)
    for g in range(NEARLY): dma(*ddq(g))
    vmq.clear()
    A.label("L_ln")
    ST()
    SA, TT, vXW = 104, 80, 112
    A(f"""
    s_mov_b32 s4, 0x3f803f80
    s_mov_b32 s5, 0x00003f80
    s_mov_b32 s6, 0x3f800000
    """)
    for i in range(32):
        a1 = SA + (i & 1); a2 = SA + 2 + (i & 1)
        A(f"v_dot2_f32_bf16 v{a1}, v{R+i}, s4, {'0' if i < 2 else 'v%d' % a1}")
        A(f"v_dot2_f32_bf16 v{a2}, v{R+i}, v{R+i}, {'0' if i < 2 else 'v%d' % a2}")
    m_, q_, mb_, rs_ = SA, SA + 2, SA + 4, SA + 6
    A(f"""
    s_lshr_b32 s{sT0}, s{sWave}, 2
    s_mul_i32 s{sT0}, s{sT0}, {64*PIECE}
    s_lshl_b32 s{sT1}, s{sGW}, 7
    v_add_f32 v{m_}, v{m_}, v{m_+1}
    v_add_f32 v{q_}, v{q_}, v{q_+1}
    s_add_u32 s{sT0}, s{sT0}, s{sT1}
    v_add_f32_dpp v{m_}, v{m_}, v{m_} quad_perm:[1,0,3,2] row_mask:0xf bank_mask:0xf
    v_add_f32_dpp v{q_}, v{q_}, v{q_} quad_perm:[1,0,3,2] row_mask:0xf bank_mask:0xf
    s_add_u32 s{sT0}, s{sT0}, {XT}
    v_add_f32_dpp v{m_}, v{m_}, v{m_} quad_perm:[2,3,0,1] row_mask:0xf bank_mask:0xf
    v_add_f32_dpp v{q_}, v{q_}, v{q_} quad_perm:[2,3,0,1] row_mask:0xf bank_mask:0xf
    v_mul_u32_u24 v{vXW}, {PIECE}, v{vT1}
    v_add_f32_dpp v{m_}, v{m_}, v{m_} row_half_mirror row_mask:0xf bank_mask:0xf
    v_add_f32_dpp v{q_}, v{q_}, v{q_} row_half_mirror row_mask:0xf bank_mask:0xf
    v_mul_f32 v{m_}, {hex(f2u(1.0/512))}, v{m_}
    v_mul_f32 v{q_}, {hex(f2u(1.0/512))}, v{q_}
    v_cvt_pk_bf16_f32 v{mb_}, v{m_}, v{m_}
    v_fma_f32 v{q_}, -v{m_}, v{m_}, v{q_}
    v_and_b32 v{mb_}, 0xffff0000, v{mb_}
    v_max_f32 v{q_}, 0, v{q_}
    v_xor_b32 v{mb_}, 0x80000000, v{mb_}
    v_cvt_pk_bf16_f32 v{q_}, v{q_}, v{q_}
    v_and_b32 v{q_}, 0xffff0000, v{q_}
    v_add_f32 v{q_}, {hex(f2u(1e-5))}, v{q_}
    v_cvt_pk_bf16_f32 v{q_}, v{q_}, v{q_}
    v_and_b32 v{q_}, 0xffff0000, v{q_}
    v_sqrt_f32 v{q_}, v{q_}
    v_lshl_add_u32 v{vXW}, v{vT0}, 4, v{vXW}
    v_cvt_pk_bf16_f32 v{q_}, v{q_}, v{q_}
    v_and_b32 v{q_}, 0xffff0000, v{q_}
    v_rcp_f32 v{rs_}, v{q_}
    v_rcp_f32 v{rs_+1}, v{q_}
    v_add_u32 v{vXW}, s{sT0}, v{vXW}
    """)
    for cb in range(8):
        t = TT + 8 * (cb & 1); r = R + 4 * cb
        for e in range(4):
            A(f"v_dot2_f32_bf16 v{t+2*e}, v{r+e}, s5, v{mb_}")
            A(f"v_dot2_f32_bf16 v{t+2*e+1}, v{r+e}, s6, v{mb_}")
        if cb > 0: A(f"ds_write_b128 v{vXW}, {v(R+4*(cb-1),4)} offset:{(cb-1)*8*PIECE}")
        else: A("s_nop 0")
        for e in range(4): A(f"v_pk_mul_f32 {v(t+2*e,2)}, {v(t+2*e,2)}, {v(rs_,2)}")
        for e in range(4): A(f"v_cvt_pk_bf16_f32 v{r+e}, v{t+2*e}, v{t+2*e+1}")
    A(f"ds_write_b128 v{vXW}, {v(R+28,4)} offset:{7*8*PIECE}")
    A("s_cmp_eq_u32 s3, 0\ns_cbranch_scc1 L_attn")

    def get_tag(vt, vz, lbl):
        A(f"v_mov_b32 v{vz}, 0")
        A.label(lbl)
        A(f"""
        buffer_load_dword v{vt}, v{vz}, {s(sDbg,4)}, 0 offen sc1
        s_waitcnt vmcnt(0)
        v_readfirstlane_b32 s{sTag}, v{vt}
        """)
        timeout_exit(lbl + "_x")
        A(f"s_cmp_eq_u32 s{sTag}, 0\ns_cbranch_scc1 {lbl}")
        A.label(lbl + "_x")
    def spin_flags(lbl, vf, voff, soff, nlanes, sleep=4):
        A.label(lbl)
        A(f"""
        s_mov_b64 exec, {emask(nlanes)}
        buffer_load_dword v{vf}, v{voff}, {ws}, s{soff} offen sc1
        s_waitcnt vmcnt(0)
        v_cmp_ne_u32 vcc, s{sTag}, v{vf}
        s_mov_b64 exec, -1
        s_cbranch_vccz {lbl}_x
        """)
        timeout_exit(lbl + "_x")
        A(f"s_sleep {sleep}\ns_branch {lbl}")
        A.label(lbl + "_x")
    def lds_spin(lbl, vdst, vaddr, off, cmp, sleep=0):
        A.label(lbl)
        A(f"ds_read_b32 v{vdst}, v{vaddr} offset:{off}\ns_waitcnt lgkmcnt(0)\n{cmp}\ns_cbranch_vccz {lbl}_x")
        timeout_exit(lbl + "_x")
        if sleep: A(f"s_sleep {sleep}")
        A(f"s_branch {lbl}")
        A.label(lbl + "_x")

    def xn(ks): return a(4 * ks, 4) if ks < 28 else v(96 + 4 * (ks - 28), 4)
    def xread(ks): lds(f"ds_read_b128 {xn(ks)}, v{vXR} offset:{2*ks*PIECE}", "xn")
    lowprio = [False]
    def check(fresh, off=0, need=None):
        l = lab("chk"); nd = f"s{sNeed}" if need is None else str(need)
        cmp = f"v_cmp_gt_u32 vcc, {nd}, v{vP}"
        if lowprio[0]: cmp = f"s_setprio 3\n{cmp}\ns_setprio 0"
        if fresh:
            lds(f"ds_read_b32 v{vP}, v{vCntR} offset:{off}", "poll")
        lwait("poll")
        A(f"{cmp}\ns_cbranch_vccnz {l}")
        A.label(l + "_x")
        def sp():
            A.label(l)
            A(f"ds_read_b32 v{vP}, v{vCntR} offset:{off}\ns_waitcnt lgkmcnt(0)\n{cmp}\ns_cbranch_vccz {l}_x")
            timeout_exit(l + "_x")
            if lp: A("s_sleep 1")
            A(f"s_branch {l}")
        lp = lowprio[0]
        slow.append(sp)
        if need is None: A(f"s_add_u32 s{sNeed}, s{sNeed}, 1")
    def segment(stages, hooks=None, LA=4):
        hooks = hooks or {}
        NB = len(WFB); assert NB >= LA + 1
        flat = [(si, fi, fr) for si, st in enumerate(stages) for fi, fr in enumerate(st["frags"])]
        sq = []
        for i in range(len(flat) + LA):
            if i < len(flat):
                si, fi, fr = flat[i]; st = stages[si]; nfr = len(st["frags"])
                if fi == 0:
                    assert not sq
                    if "label" in st: A.label(st["label"])
                    if opt.get("atrace"):
                        A(f"s_waitcnt lgkmcnt(0)\ns_mov_b32 s99, m0\ns_mov_b32 m0, s{sD1}\ns_add_u32 s{sD1}, s{sD1}, 1\ns_setprio 3\nv_writelane_b32 v142, s100, m0\ns_setprio {0 if lowprio[0] else 1}\ns_memrealtime s[100:101]\ns_mov_b32 m0, s99"); lq.clear()
                    if st["sync"]: check(si == 0, *st.get("chk", ()))
                    if "pre" in st: st["pre"]()
                    sq += st["pieces"]
                lo, hi, o0, o1, _ = fr
                base = st["slot"] * SLOT; reg = lo
                if base >= 65536: base -= 65536; reg = hi
                w = WFB[i % NB]
                lds(f"ds_read_b64_tr_b16 {v(w,2)}, v{reg} offset:{base+o0}", ("fr", i))
                lds(f"ds_read_b64_tr_b16 {v(w+2,2)}, v{reg} offset:{base+o1}", ("fr", i))
                if fi == st.get("waitat", st.get("pubat", 2)) and st["nxt"] is not None: vwait(st["nxt"])
                if fi == st.get("pubat", 2) and st["pub"]: lds(f"ds_add_u32 v{vCnt}, v{vOne}", "add")
                if len(sq) * 2 > (nfr - fi) or fi % 2 == 0:
                    k = -(-len(sq) // (nfr - fi))
                    for _ in range(k): sq.pop(0)()
                if fi == nfr - 2 and si + 1 < len(stages) and stages[si + 1]["sync"]:
                    lds(f"ds_read_b32 v{vP}, v{vCntR} offset:{stages[si + 1].get('chk', (0,))[0]}", "poll")
                if (si, fi) in hooks: hooks[(si, fi)]()
            j = i - LA
            if j >= 0:
                lwait(("fr", j))
                for m in flat[j][2][4]:
                    if callable(m): m()
                    else: A(m.format(w=v(WFB[j % NB], 4)))
    if F0: ST()
    A("s_waitcnt lgkmcnt(0)\ns_barrier")
    ST()
    if opt.get("atrace"): A(f"s_mov_b32 s{sD1}, 0\ns_memrealtime s[100:101]")
    for ks in range(8): xread(ks)
    def qkv_epi(p):
        acc = (ACC0, ACC1, ACC0)[p]; pk = TMP + 8 * p
        def f():
            if p == 2:
                for i in range(8): A(f"v_pk_mul_f32 {v(acc+2*i,2)}, {v(acc+2*i,2)}, {s(sC,2)}")
            for i in range(8): A(f"v_cvt_pk_bf16_f32 v{pk+i}, v{acc+2*i}, v{acc+2*i+1}")
            if p == 1:
                A(f"buffer_store_dwordx4 {v(pk,4)}, v{vVo}, {ws}, s{sSt} offen sc1")
                A(f"buffer_store_dwordx4 {v(pk+4,4)}, v{vVo}, {ws}, s{sSt} offen offset:512 sc1")
            else:
                vo = vKo if p == 0 else vL16
                A(f"s_add_u32 s{sT0}, s{sSt}, 65536")
                A(f"buffer_store_dwordx4 {v(pk,4)}, v{vo}, {ws}, s{sSt} offen sc1")
                A(f"buffer_store_dwordx4 {v(pk+4,4)}, v{vo}, {ws}, s{sT0} offen sc1")
            vmq.push("st", 2)
        return f
    stages = []
    for q in range(12):
        p, part = divmod(q, 4); acc = v((ACC0, ACC1, ACC0)[p], 16)
        frags = []
        for kk in range(8):
            ks = part * 8 + kk; c = "0" if ks == 0 else acc
            m = f"{MF} {acc}, {xn(ks)}, {{w}}, {c}" if p == 1 else f"{MF} {acc}, {{w}}, {xn(ks)}, {c}"
            frags.append((vTRn, vTRnH, kk * 2048, kk * 2048 + 512, [m]))
        stages.append(dict(slot=q % 8, frags=frags, pieces=[], nxt=None, sync=True, pub=(q >= 1), pubat=0, chk=(1024, q + 1)))
    hooks = {(0, fi): (lambda fi=fi: [xread(8 + 3 * fi + e) for e in range(3)]) for fi in range(8)}
    hooks[(5, 1)] = qkv_epi(0); hooks[(9, 1)] = qkv_epi(1)
    hooks[(5, 4)] = lambda: (A(f"buffer_load_dword v{vFl}, v{vT2}, {s(sDbg,4)}, 0 offen sc1"), vmq.push("tag"))
    per = -(-len(GLATE) // 30)
    def late():
        for _ in range(per):
            if GLATE: A(GLATE.pop(0).replace("|", "\n"))
    for q in range(1, 5):
        for fi in range(8):
            if (q, fi) not in ((1, 0), (4, 0)): hooks[(q, fi)] = late
    if stamps:
        for q in ((1, 4, 5, 6, 7, 8, 9, 10, 11) if FR else (1, 4, 8)): hooks[(q, 0)] = ST
    segment(stages, hooks)
    assert not GLATE
    vwait("tag")
    A(f"v_readfirstlane_b32 s{sTag}, v{vFl}\ns_nop 10")
    qkv_epi(2)()
    ST()
    A(f"s_cmp_lg_u32 s{sTag}, 0\ns_cbranch_scc1 L_gtag_x")
    get_tag(vFl, vT2, "L_gtag")
    A(f"""
    s_mov_b32 s{sC}, {hex(f2u(C2))}
    s_mov_b32 s{sC+1}, {hex(f2u(C2))}
    v_mov_b32 v{vFl}, s{sTag}
    s_waitcnt vmcnt(0)
    s_mov_b64 exec, 1
    buffer_store_dword v{vFl}, v{vT2}, {ws}, s{sFlag} offen sc1
    s_mov_b64 exec, -1
    """)
    ST()
    if FR: ST.flush(ws, STAMP, sWave, 2, 3, sT0); A("s_endpgm"); ST.on = False
    if opt.get("gexit"): A(f"ds_add_u32 v{vCnt}, v{vOne}\ns_waitcnt lgkmcnt(0)\ns_endpgm")
    assert NG0 == 4
    LOOK = opt.get("look", 5)
    check(True, 1024, 12 + NG0)
    lds(f"ds_add_u32 v{vCnt}, v{vOne}", "add")
    A(f"s_mov_b32 s{sNeed}, 12\ns_setprio 0")
    lowprio[0] = True
    def gslot(g): return (g + 4) % 8
    def ffn_dd(g):
        if g < 24: return ("g", g, gslot(g))
        if g < 35: return ("d", g - 24, gslot(g))
        return ("o", g - 35, gslot(g))
    A(f"s_cmp_lg_u32 s{sNb}, 3\ns_cbranch_scc1 L_ffn")
    if opt.get("pfw", 1):
        if opt.get("pfgo"): check(True, 1024, 12 + NG0 + 1)
        P = [0, 128, 384, 512, 768, 896, 256, 640, 1024, 1152, 1280, 1404][:2 * opt.get('npf', 6)]
        PCAP = opt.get("pcap", 1)
        A(f"""
        s_setprio 3
        v_mul_u32_u24 v{TMP}, 2752, v{vL}
        v_lshrrev_b32 v{TMP+1}, 2, v{vL}
        v_lshlrev_b32 v{TMP+1}, 10, v{TMP+1}
        v_and_b32 v{TMP+2}, 3, v{vL}
        v_lshl_add_u32 v{TMP+1}, v{TMP+2}, 7, v{TMP+1}
        s_setprio 0
        s_and_b32 s4, s{sRB}, 7
        s_mul_i32 s5, s4, {64*2752}
        s_lshr_b32 s6, s{sCG}, 2
        s_mul_i32 s7, s6, 1408
        s_add_u32 s5, s5, s7
        """)
        for i in range(len(P) // 2):
            lo_, hi_ = sorted(P[2*i:2*i+2])
            A(f"s_mul_i32 s{sT0}, s{sMI}, {hi_-lo_}\ns_add_u32 s{sT0}, s{sT0}, s5")
            A(f"buffer_load_dword v143, v{TMP}, {s(sWgu,4)}, s{sT0} offen offset:{lo_}\ns_waitcnt vmcnt({PCAP})")
        if opt.get('pfd', 0):
            A(f"""
        s_lshl_b32 s4, s4, 2
        s_add_u32 s4, s4, s{sGW}
        s_lshl_b32 s6, s6, 9
        s_mul_i32 s5, s4, {43*1024}
        s_add_u32 s5, s5, s6
        """)
            for i in range(3):
                A(f"s_add_u32 s{sT0}, s5, {i*16*1024}\nbuffer_load_dword v143, v{TMP+1}, {s(sWd,4)}, s{sT0} offen\ns_waitcnt vmcnt({PCAP})")
            A(f"s_lshl_b32 s5, s4, 14\ns_add_u32 s5, s5, s6\nbuffer_load_dword v143, v{TMP+1}, {s(sWo,4)}, s5 offen")
    check(True, 0, 12)
    A(f"s_setprio 3\nv_mov_b32 v{vP}, 0\ns_setprio 0")
    for g in range(8 + NG0, 8 + LOOK): dma(*ffn_dd(g))
    A("s_branch L_ffn8")
    A.label("L_ffn")
    vmq.clear(); lq.clear()
    T1, U1 = TMP, [88, 90, 92, 94, 128, 130, 132, 134]
    AD1 = [v(40, 16), v(56, 16), v(96, 16), a(96, 16)]
    def gelu1():
        G, U = ACC0, ACC1
        A("s_setprio 3\ns_nop 9")
        for i in range(8): A(f"v_pk_mul_f32 {v(T1+2*i,2)}, {v(G+2*i,2)}, {v(G+2*i,2)}")
        for i in range(8): A(f"v_pk_fma_f32 {v(T1+2*i,2)}, {v(T1+2*i,2)}, {s(sC,2)}, {v(vT0,2)}")
        for i in range(8): A(f"v_pk_mul_f32 {v(U1[i],2)}, {v(U+2*i,2)}, {v(G+2*i,2)}")
        for i in range(8): A(f"v_pk_mul_f32 {v(T1+2*i,2)}, {v(T1+2*i,2)}, {v(G+2*i,2)}")
        A("s_setprio 0")
    def gelu2_groups(b):
        L = [f"v_exp_f32 v{T1+i}, v{T1+i}" for i in range(16)]
        L += [f"v_pk_add_f32 {v(T1+2*i,2)}, {v(T1+2*i,2)}, 1.0 op_sel_hi:[1,0]" for i in range(8)]
        L += [f"v_rcp_f32 v{T1+i}, v{T1+i}" for i in range(16)]
        L += [f"v_pk_mul_f32 {v(U1[i],2)}, {v(U1[i],2)}, {v(T1+2*i,2)}" for i in range(8)]
        L += [f"v_cvt_pk_bf16_f32 v{T1+i}, v{U1[i]}, v{U1[i]+1}" for i in range(8)]
        sizes = [4, 4, 4, 4, 8, 4, 4, 4, 4, 8, 8]
        G_ = []
        for n in sizes:
            grp = L[:n]; L = L[n:]
            G_.append(lambda grp=grp: A("s_setprio 3\n" + "\n".join(grp) + "\ns_setprio 0"))
        def store():
            l = lab("hskip")
            if b == 0: A(f"s_cmp_eq_u32 s{sNb}, 3\ns_cbranch_scc1 {l}")
            if b == 2: A(f"s_add_u32 s{sT0}, s{sCG}, s{sNI}\ns_cmp_eq_u32 s{sT0}, 8\ns_cbranch_scc1 {l}")
            A(f"s_add_u32 s{sT0}, s{sHst}, {b*4096}")
            A(f"buffer_store_dwordx4 {v(T1,4)}, v{vL16}, {ws}, s{sT0} offen sc1")
            A(f"buffer_store_dwordx4 {v(T1+4,4)}, v{vL16}, {ws}, s{sT0} offen offset:1024 sc1")
            A.label(l)
            vmq.since = 0
        return G_ + [store]
    def send_flag(b):
        def f():
            n = min(vmq.since, 63)
            A(f"s_waitcnt vmcnt({n})"); vmq.waited(n)
            A(f"s_add_u32 s{sT0}, s{sHfl}, {b*4096}\ns_mov_b64 exec, 1\nbuffer_store_dword v{vFl}, v{vT2}, {ws}, s{sT0} offen sc1\ns_mov_b64 exec, -1")
        return f
    NH = 12
    def hload(t):
        b = 8 * (t % NH)
        if DSEQ[t] == 21:
            A(f"s_and_b32 s{sT2}, s{sGW}, 2\ns_lshl_b32 s{sT2}, s{sT2}, 10\ns_sub_u32 s{sT2}, s{sHb}, s{sT2}\ns_add_u32 s{sT2}, s{sT2}, {DSEQ[t]*4096}")
        else:
            A(f"s_add_u32 s{sT2}, s{sHb}, {DSEQ[t]*4096}")
        A(f"buffer_load_dwordx4 {a(b,4)}, v{vL16}, {ws}, s{sT2} offen sc1")
        A(f"buffer_load_dwordx4 {a(b+4,4)}, v{vH1}, {ws}, s{sT2} offen sc1")
        vmq.push(("h", t), 2)
    def hflag_issue(c):
        A(f"s_add_u32 s{sT2}, s{sHld}, {c*4096}\ns_mov_b64 exec, {hex(CMASK[c])}")
        A(f"buffer_load_dword v{vHF}, v{vL128}, {ws}, s{sT2} offen sc1\ns_mov_b64 exec, -1")
        vmq.push(("hf", c))
    def hflag_check(c):
        vwait(("hf", c))
        l = f"L_hf{c}"
        A(f"s_setprio 3\nv_cmp_ne_u32 vcc, s{sTag}, v{vHF}\ns_setprio 0\ns_and_b32 vcc_lo, vcc_lo, {hex(CMASK[c])}\ns_cbranch_scc1 {l}_s")
        A.label(l + "_b")
        def sp():
            A.label(l + "_s")
            A(f"s_add_u32 s{sT2}, s{sHld}, {c*4096}\ns_setprio 3")
            spin_flags(l, vHF, vL128, sT2, hex(CMASK[c]), sleep=8)
            A(f"s_setprio 0\ns_branch {l}_b")
        slow.append(sp)
    def p4(ni):
        def f():
            l = lab("p4")
            A(f"""
            s_cmp_lg_u32 s{sNI}, {ni}
            s_cbranch_scc1 {l}_x
            s_and_b32 s{sT0}, s{sRB}, 7
            s_lshl_b32 s{sT1}, s{sCG}, 7
            s_cmp_eq_u32 s{sGW}, 3
            s_cbranch_scc1 {l}_o
            s_mul_i32 s{sT0}, s{sT0}, {172*1024}
            s_add_u32 s{sT0}, s{sT0}, s{sT1}
            s_lshl_b32 s{sT1}, s{sGW}, 16
            s_add_u32 s{sT0}, s{sT0}, s{sT1}
            buffer_load_dword v143, v{vXR}, {s(sWd,4)}, s{sT0} offen
            s_branch {l}_x
            """)
            A.label(l + "_o")
            A(f"s_lshl_b32 s{sT0}, s{sT0}, 16\ns_add_u32 s{sT0}, s{sT0}, s{sT1}\nbuffer_load_dword v143, v{vXR}, {s(sWo,4)}, s{sT0} offen")
            A.label(l + "_x")
        return f
    allp = []
    for g in range(NG0, 39): allp += [(g, p) for p in dma_pieces(*ffn_dd(g))]
    T0 = opt.get("t0", 2); RATE = opt.get("rate", 6)
    sched = []
    for st in range(35):
        take = []
        if st >= T0:
            while allp and allp[0][0] <= st + LOOK and len(take) < RATE: take.append(allp.pop(0)[1])
        sched.append(take)
        if st == 7: assert allp[0][0] == 8 + LOOK and len([1 for g, _ in allp if g == 8 + LOOK]) == 4
    assert not allp
    stages = []
    post = {}
    for st in range(35):
        frags = []
        if st < 24:
            for kk in range(4):
                ks = (st % 8) * 4 + kk
                for p, acc in enumerate((ACC0, ACC1)):
                    c = "0" if ks == 0 else v(acc, 16)
                    frags.append((vTRn, vTRnH, p * 8192 + kk * 2048, p * 8192 + kk * 2048 + 512, [f"{MF} {v(acc,16)}, {{w}}, {xn(ks)}, {c}"]))
        else:
            for kk in range(2):
                t = 2 * (st - 24) + kk; b = 8 * (t % NH)
                for ni, (lo, hi) in enumerate(((vTRp0, vTRp0H), (vTRp1, vTRp1H))):
                    ms = [(lambda t=t: vwait(("h", t)))] if ni == 0 else []
                    for mi in range(2):
                        d = AD1[2 * ni + mi]; c = "0" if t == 0 else d
                        ms.append(f"{MF} {d}, {{w}}, {a(b+4*mi,4)}, {c}")
                    frags.append((lo, hi, kk * 2048, kk * 2048 + 1024, ms))
        nx = ffn_dd(st + 1)
        stages.append(dict(slot=gslot(st), frags=frags, pieces=sched[st], nxt=("dma", nx[0], nx[1]),
                           sync=(st <= 25), pub=(st <= 24), pubat=(0 if st >= 23 else opt.get("pubat", 2)),
                           waitat=(3 if st >= 24 else (6 if st == 23 else opt.get("pubat", 2)))))
    assert LOOK <= 6
    stages[T0]["pre"] = lambda: check(True, 1024, 12 + NG0 + 1)
    stages[8]["label"] = "L_ffn8"
    hooks = {}
    for b in range(3):
        st0 = 8 * (b + 1)
        stages[st0]["frags"][0][4].insert(0, gelu1)
        grp = gelu2_groups(b)
        pos = [(si, fi, k) for si in (st0, st0 + 1, st0 + 2) for fi, fr in enumerate(stages[si]["frags"]) for k, m in enumerate(fr[4]) if not callable(m)]
        if b == 2: pos = [p_ for p_ in pos for _ in range(2)]
        for (si, fi, k), g_ in reversed(list(zip(pos, grp))):
            stages[si]["frags"][fi][4].insert(k + 1, g_)
        hooks[(st0 + 3, 3) if b < 2 else (26, 1)] = send_flag(b)
    if opt.get("p4", 1): hooks[(opt.get("p4a", 10), 1)] = p4(0); hooks[(opt.get("p4b", 14), 1)] = p4(1)
    HL = opt.get("hl", 5)
    def hpos(t):
        u = t - HL
        if u >= 0: return (24 + u // 2, 2 * (u % 2) + 1)
        return (24 + (u // 2), 4 * (u % 2) + 1)
    for t in range(22):
        fs = []
        if t in CSTART: fs.append(lambda c=CSTART[t]: hflag_check(c))
        fs.append(lambda t=t: hload(t))
        if t + 2 in CSTART: fs.append(lambda c=CSTART[t + 2]: hflag_issue(c))
        old = hooks.get(hpos(t))
        if old: fs.insert(0, old)
        hooks[hpos(t)] = (lambda fs=fs: [f() for f in fs])
    p0 = hpos(0); hooks[(p0[0] - 1, 3)] = lambda: hflag_issue(0)
    if stamps:
        for st in (8, 16, 24): hooks[(st, 0)] = ST
    segment(stages, hooks)
    lowprio[0] = False
    ST()
    if opt.get("atrace"):
        A(f"s_lshl_b32 s{sT0}, s2, 4\ns_add_u32 s{sT0}, s{sT0}, s{sWave}\ns_lshl_b32 s{sT0}, s{sT0}, 8\ns_add_u32 s{sT0}, s{sT0}, {STAMP+MB}\nv_lshlrev_b32 v141, 2, v{vL}\nbuffer_store_dword v142, v141, {ws}, s{sT0} offen\ns_waitcnt vmcnt(0)")
    vwait(("dma", "o", 3))
    for i in range(8):
        slot = gslot(35 + i // 2); base = slot * SLOT
        for ni, (lo, hi) in enumerate(((vTRp0, vTRp0H), (vTRp1, vTRp1H))):
            reg, b = (lo, base) if base < 65536 else (hi, base - 65536)
            lds(f"ds_read_b64_tr_b16 {a(8*i+4*ni,2)}, v{reg} offset:{b + (i%2)*2048}", "wo")
            lds(f"ds_read_b64_tr_b16 {a(8*i+4*ni+2,2)}, v{reg} offset:{b + (i%2)*2048 + 1024}", "wo")
    lds(f"ds_add_u32 v{vCnt}, v{vOne}", "add")
    A(f"""
    s_setprio 3
    s_mov_b32 s{sC}, {hex(f2u(-1.4426950408889634))}
    s_mov_b32 s{sC+1}, {hex(f2u(-1.4426950408889634))}
    """)
    def reduce_tile(dst, src):
        check(True)
        for ni in range(2):
            for mi in range(2):
                for q in range(4):
                    k_, b_ = src[2 * ni + mi]
                    lds(f"ds_write_b128 v{vRW}, {k_(b_+4*q,4)} offset:{mi*32*RS + ni*128 + q*32}", "w")
        lds(f"ds_add_u32 v{vCnt}, v{vOne}", "add")
        check(True)
        for p in range(2):
            for w in range(4):
                off = w * RBY + p * 32 * RS; b = AD + 32 * p + 8 * w
                lds(f"ds_read_b128 {v(b,4)}, v{vRR} offset:{off}", ("r", p))
                lds(f"ds_read_b128 {v(b+4,4)}, v{vRR} offset:{off+16}", ("r", p))
        lds(f"ds_add_u32 v{vCnt}, v{vOne}", "add")
        for p in range(2):
            lwait(("r", p))
            b = AD + 32 * p
            for i in range(4):
                A(f"v_pk_add_f32 {v(b+2*i,2)}, {v(b+2*i,2)}, {v(b+8+2*i,2)}")
                A(f"v_pk_add_f32 {v(b+16+2*i,2)}, {v(b+16+2*i,2)}, {v(b+24+2*i,2)}")
            for i in range(4):
                A(f"v_pk_add_f32 {v(dst+8*p+2*i,2)}, {v(b+2*i,2)}, {v(b+16+2*i,2)}")
    reduce_tile(GR, [(v, 40), (v, 56), (v, 96), (a, 96)])
    A(f"""
    s_add_u32 s{sT2}, s{sXo}, 32768
    buffer_load_dwordx4 {v(XR,4)}, v{vXo}, {s(sX,4)}, s{sXo} offen
    buffer_load_dwordx4 {v(XR+4,4)}, v{vXo}, {s(sX,4)}, s{sT2} offen
    """)
    Tv = AD
    for i in range(8): A(f"v_pk_mul_f32 {v(Tv+2*i,2)}, {v(GR+2*i,2)}, {s(sC,2)}")
    for i in range(16): A(f"v_exp_f32 v{Tv+i}, v{Tv+i}")
    A("s_nop 0")
    for i in range(8): A(f"v_pk_add_f32 {v(Tv+2*i,2)}, {v(Tv+2*i,2)}, 1.0 op_sel_hi:[1,0]")
    for i in range(16): A(f"v_rcp_f32 v{Tv+i}, v{Tv+i}")
    A("s_nop 0")
    for i in range(8): A(f"v_pk_mul_f32 {v(GR+2*i,2)}, {v(GR+2*i,2)}, {v(Tv+2*i,2)}")
    ST()
    A(f"""
    s_lshl_b32 s{sT2}, s{sRB}, 12
    s_lshl_b32 s{sT0}, s{sGW}, 10
    s_add_u32 s{sT2}, s{sT2}, s{sT0}
    s_add_u32 s{sT2}, s{sT2}, {FO}
    s_lshl_b32 s7, s{sRB}, 16
    s_lshl_b32 s{sT0}, s{sGW}, 13
    s_add_u32 s7, s7, s{sT0}
    s_add_u32 s7, s7, {OF}
    s_add_u32 s6, s7, 4096
    s_lshl_b32 s{sT0}, s{sGW}, 9
    s_add_u32 s{sT0}, s{sT0}, {AFL+256}
    v_mov_b32 v{vP}, s{sT0}
    """)
    lds_spin("L_ow", vHF, vP, 0, f"v_cmp_eq_u32 vcc, 0, v{vHF}", sleep=4)
    spin_flags("L_of", vHF, vL128, sT2, 8, sleep=2)
    ST()
    def of(i, mi):
        k = 8 * i + 4 * mi
        return a(64 + k, 4) if k < 48 else v(112 + k - 48, 4)
    for i in range(8):
        so = 7 if i < 4 else 6
        A(f"buffer_load_dwordx4 {of(i,0)}, v{vL16}, {ws}, s{so} offen offset:{(i%4)*1024} sc1")
        A(f"buffer_load_dwordx4 {of(i,1)}, v{vO1}, {ws}, s{so} offen offset:{(i%4)*1024} sc1")
    for i in range(8):
        A(f"s_waitcnt vmcnt({14-2*i})")
        for ni in range(2):
            for mi in range(2):
                d = v(AD + 16 * (2 * ni + mi), 16); c = "0" if i == 0 else d
                A(f"{MF} {d}, {a(8*i+4*ni,4)}, {of(i,mi)}, {c}")
    A("s_nop 7")
    reduce_tile(SR, [(v, AD + 16 * i) for i in range(4)])
    A(f"s_add_u32 s{sT2}, s{sXo}, 32768")
    for p in range(2):
        for i in range(4):
            A(f"v_lshlrev_b32 v{Tv+2*i}, 16, v{XR+4*p+i}")
            A(f"v_and_b32 v{Tv+2*i+1}, 0xffff0000, v{XR+4*p+i}")
        for i in range(4):
            A(f"v_pk_fma_f32 {v(Tv+2*i,2)}, {v(SR+8*p+2*i,2)}, {v(GR+8*p+2*i,2)}, {v(Tv+2*i,2)}")
        for i in range(4):
            A(f"v_cvt_pk_bf16_f32 v{XR+4*p+i}, v{Tv+2*i}, v{Tv+2*i+1}")
        A(f"buffer_store_dwordx4 {v(XR+4*p,4)}, v{vXo}, {s(sOut,4)}, s{sXo if p == 0 else sT2} offen")
    if stamps:
        ST.on = True
        if not FR: ST(); ST.flush(ws, STAMP, sWave, 2, 3, sT0)
        if opt.get("dbgout"):
            A(f"s_cmp_lg_u32 s2, {opt['dbgout']-1}\ns_cbranch_scc1 L_dbx\ns_cmp_lg_u32 s{sWave}, 4\ns_cbranch_scc1 L_dbx\nv_mov_b32 v2, 0")
            for i in range(1, ST.n):
                A(f"s_sub_u32 s4, s{ST.base+2*i}, s{ST.base}\nv_mov_b32 v3, s4\nbuffer_store_dword v3, v2, {s(sDbg,4)}, 0 offen offset:{4*i}\ns_nop 1")
            A.label("L_dbx")
    A("s_endpgm")
    for f in slow: f()
    slow.clear()

    ST.n = 2 if stamps else 0
    A.label("L_attn")
    lq.clear(); vmq.clear()
    for g in range(NEARLY): vmq.push(("dma", "q", g), 4)
    def pub_ld(g):
        d = ddq(g); vwait(("dma", d[0], d[1])); lds(f"ds_add_u32 v{vCnt}, v{vOne}", "add")
    def FS():
        if FR: ST()
    def p2():
        A(f"s_mov_b64 exec, {PF2MASK}\nbuffer_load_dword v143, v30, {s(sWgu,4)}, s68 offen\ns_mov_b64 exec, -1"); vmq.push("pf")
    FS()
    NB4 = opt.get("nb4", 4)
    for g in range(NEARLY, NB4):
        dma(*ddq(g))
        if g == opt.get("p1at", 3):
            A(f"s_mov_b64 exec, {'0xffff0000' if opt.get('p1kv', 1) else '0xffffffff'}\nbuffer_load_dword v143, v{aP3}, {s(sWq,4)}, s7 offen\ns_mov_b64 exec, -1"); vmq.push("pf")
            if opt.get("p2early", 1): p2()
    pub_ld(0)
    A("s_waitcnt lgkmcnt(0)\ns_barrier"); lq.clear()
    ST()
    for g in range(1, NB4): pub_ld(g)
    for g in range(NB4, 5): dma(*ddq(g))
    FS()
    A(GUADDR)
    A(f"""
    s_and_b32 s{sT0}, s2, 7
    s_lshr_b32 s{sT1}, s2, 3
    s_and_b32 s{sT2}, s{sT1}, 3
    s_lshl_b32 s{sHead}, s{sT0}, 2
    s_add_u32 s{sHead}, s{sHead}, s{sT2}        ; head
    s_lshr_b32 s{sT1}, s{sT1}, 2
    s_lshl_b32 s{sT1}, s{sT1}, 1
    s_add_u32 s{sT1}, s{sT1}, s{sMI}
    s_lshr_b32 s4, s{sWave}, 1
    s_lshl_b32 s5, s{sHead}, 16
    s_lshl_b32 s{sQ}, s{sT1}, 12
    s_add_u32 s{sQ}, s{sQ}, s5
    s_lshl_b32 s6, s4, 11
    s_add_u32 s{sQ0}, s{sQ}, s6
    s_xor_b32 s6, s6, 2048
    s_add_u32 s{sQ}, s{sQ}, s6
    s_lshl_b32 s{sT1}, s{sT1}, 1
    s_add_u32 s{sT1}, s{sT1}, s4
    s_lshl_b32 s{sO}, s{sT1}, 16
    s_lshl_b32 s{sT0}, s{sHead}, 10
    s_add_u32 s{sO}, s{sO}, s{sT0}
    s_add_u32 s{sO}, s{sO}, {OF}
    s_lshl_b32 s{sFo}, s{sT1}, 12
    s_lshl_b32 s{sT0}, s{sHead}, 7
    s_add_u32 s{sFo}, s{sFo}, s{sT0}
    s_add_u32 s{sFo}, s{sFo}, {FO}
    s_add_u32 s{sKb}, s5, {KF}
    s_lshl_b32 s{sT0}, s4, 15
    s_add_u32 s{sKVb}, s{sKb}, s{sT0}
    v_mov_b32 v{vK}, v{vL16}
    v_lshrrev_b32 v{vV}, 5, v{vL}
    v_lshlrev_b32 v{vV}, 8, v{vV}
    v_and_b32 v{aPKV}, 15, v{vL}
    v_lshl_add_u32 v{vV}, v{aPKV}, 4, v{vV}
    v_add_u32 v{vV}, {VF-KF}, v{vV}
    s_mov_b32 s{sMask}, 0x0000ffff
    s_mov_b32 s{sMask+1}, 0x0000ffff
    s_mov_b32 s{sFB}, 1
    s_mov_b32 s{sOff}, {hex(f2u(-OFFSET))}
    v_mov_b32 v{vIdx}, 0xdddddddd
    v_and_b32 v{aOnes}, 27, v{vL}
    v_cmp_eq_u32 vcc, 16, v{aOnes}
    v_mov_b32 v{aOnes}, 0x3f803f80
    s_lshr_b32 s{sFQ}, s{sHead}, 1
    v_cndmask_b32 v{aOnes}, 0, v{aOnes}, vcc
    s_lshl_b32 s{sFQ}, s{sFQ}, 13
    s_add_u32 s{sFQ}, s{sFQ}, {FQ}
    v_lshlrev_b32 v{aL128}, 7, v{vL}
    s_lshr_b32 s{sPKV}, s2, 5
    s_lshl_b32 s{sPKV}, s{sPKV}, 2
    s_add_u32 s{sPKV}, s{sPKV}, s{sWave}
    s_lshl_b32 s{sPKV}, s{sPKV}, 11
    s_add_u32 s{sPKV}, s{sPKV}, s{sKb}          ; K/V slice
    v_lshlrev_b32 v{aPKV}, 7, v{aPKV}
    v_bfe_u32 v{aPF}, v{vL}, 4, 1
    v_lshl_add_u32 v{aPKV}, v{aPF}, 21, v{aPKV}
    """)
    assert VF - KF == 1 << 21
    for g in range(NB4, 5): pub_ld(g)
    check(True, 0, 1)
    FS()
    NPRE = 12 + NG0
    for g in range(5, NPRE):
        if g >= 9: check(True, 0, g - 7)
        if g == 12:
            pub_ld(11)
            if not opt.get("p2early", 1): p2()
        dma(*ddq(g))
        if g >= 7 and g < 16: FS()
        if g > 5 and g != 12: pub_ld(g - 1)
    pub_ld(NPRE - 1)
    for x in VRG:
        for i in range(8):
            A(f"v_accvgpr_write_b32 a{x[1]+i}, v{aOnes}" if x[0] == "a" else f"v_mov_b32 v{x[1]+i}, v{aOnes}")
    zero_o()
    if FR: ST(); ST.flush(ws, STAMP, sWave, 2, 3, sT0); A("s_endpgm"); ST.on = False; stamps = False
    if opt.get("aexit"): A("s_waitcnt lgkmcnt(0)\ns_endpgm")
    get_tag(vF, vT1, "L_atag")
    A(f"s_setprio 2\ns_cmp_lg_u32 s{sWave}, 0\ns_cbranch_scc1 L_aw")
    lds_spin("L_ag2", M, vCntR, 0, f"v_cmp_gt_u32 vcc, 12, v{M}", sleep=1)
    ST()
    spin_flags("L_qf", vF, aL128, sFQ, 64, sleep=2)
    A(f"ds_write_b32 v{aGo}, v{vOne}\ns_branch L_aw_x")
    A.label("L_aw")
    if stamps: ST.n -= 1; ST()
    lds_spin("L_ag3", M, aGo, 0, f"v_cmp_eq_u32 vcc, 0, v{M}", sleep=1)
    A.label("L_aw_x")
    ST()
    def so_imm(rel): return (sKA, (rel - 4) * 1024) if rel < 8 else (sKB2, (rel - 8) * 1024)
    KVM = opt.get("kvm", " sc1")
    def kload(r, so, imm): A(f"buffer_load_dwordx4 {rg(KRG[r])}, v{vK}, {ws}, s{so} offen offset:{imm}{KVM}")
    def vload(r, so, imm):
        A(f"s_mov_b64 exec, {s(sMask,2)}")
        A(f"buffer_load_dwordx4 {rg(VRG[r])}, v{vV}, {ws}, s{so} offen offset:{imm}{KVM}")
        A(f"buffer_load_dwordx4 {rg(VRG[r],4)}, v{vV}, {ws}, s{so} offen offset:{imm+512}{KVM}")
        A(f"s_mov_b64 exec, -1")
    E0 = 3
    def ring_prologue():
        A(f"s_add_u32 s{sKA}, s{sKVb}, {4096 - E0*1024}\ns_add_u32 s{sKB2}, s{sKVb}, {8192 - E0*1024}")
        for b in range(5):
            if b < 4: kload((E0 + b) % NR, sKVb, b * 1024); vload((E0 + b) % NR, sKVb, b * 1024)
            else: kload((E0 + b) % NR, sKA, 3072)
    A(f"buffer_load_dwordx4 {a(KS,4)}, v{vK}, {ws}, s{sKb} offen sc1")
    A(f"buffer_load_dwordx4 {a(KS+4,4)}, v{vK}, {ws}, s{sKb} offen offset:1024 sc1")
    for t in range(4):
        A(f"buffer_load_dwordx4 {a(Q+4*t,4)}, v{vK}, {ws}, s{sQ0 if t < 2 else sQ} offen offset:{(t&1)*1024} sc1")
    ring_prologue()
    A(f"ds_add_u32 v{vCnt}, v{vOne}")
    npf = 0
    if opt.get("pkv", 1):
        A(f"s_mov_b64 exec, 0xffffffff\nbuffer_load_dword v143, v{aPKV}, {ws}, s{sPKV} offen{KVM}\ns_mov_b64 exec, -1"); npf += 1
    A(f"s_waitcnt vmcnt({13+npf})")
    def maxtree(dst, blocks, first):
        regs = [b + i for b in blocks for i in range(16)]
        if first:
            A(f"v_max3_f32 v{dst}, v{regs[0]}, v{regs[1]}, v{regs[2]}"); regs = regs[3:]
        while len(regs) >= 2:
            A(f"v_max3_f32 v{dst}, v{dst}, v{regs[0]}, v{regs[1]}"); regs = regs[2:]
        if regs: A(f"v_max_f32 v{dst}, v{dst}, v{regs[0]}")
    for t in range(2): A(f"{MF} {v(SB+16*t,16)}, {a(KS+4,4)}, {a(Q+4*t,4)}, 0")
    for t in range(4): A(f"{MF} {v(C+16*t,16)}, {a(KS,4)}, {a(Q+4*t,4)}, 0")
    A("s_nop 6")
    for t in range(2): maxtree(M + t, [SB + 16 * t], True)
    for t in range(2): A(f"{MF} {v(SB+16*t,16)}, {a(KS+4,4)}, {a(Q+8+4*t,4)}, 0")
    for t in range(2): maxtree(M + t, [C + 16 * t], False)
    for t in range(2, 4): maxtree(M + t, [C + 16 * t, SB + 16 * (t - 2)], True)
    zero_o(8)
    A.label("L_amain")
    for t in range(4): A(f"v_mov_b32 v{2+t}, v{M+t}")
    A("s_nop 1")
    for t in range(4): A(f"v_permlane32_swap_b32 v{2+t}, v{M+t}")
    for t in range(4): A(f"v_max_f32 v{M+t}, v{M+t}, v{2+t}")
    for t in range(4): A(f"v_sub_f32 v{M+t}, s{sOff}, v{M+t}")
    for i in range(16): A(f"v_mov_b32 v{C+i}, v{M}")
    A("s_waitcnt vmcnt(10)")
    A(f"s_mov_b32 s{sCnt}, 7")
    A(f"{MF} {v(SB,16)}, {rg(KRG[E0])}, {a(Q,4)}, {v(C,16)}")
    for t in range(1, 4):
        for i in range(16): A(f"v_mov_b32 v{C+16*t+i}, v{M+t}")
    for i in range(8): A(f"v_mov_b32 v{SB+16+8+i}, 0")
    ST()
    if stamps: A("s_memtime s[96:97]")
    if opt.get("atrace"): A("s_mov_b32 s64, 0\ns_memrealtime s[66:67]")
    A("s_branch L_aent")
    A.raw(".p2align 6")
    A.label("L_aloop")
    for r in range(NR):
        if r == E0: A.label("L_aent")
        for t in range(4):
            X = SB + 16 * (t & 1); Y = SB + 16 * ((t + 1) & 1)
            tn = (t + 1) & 3; rn = r if t < 3 else (r + 1) % NR
            tp = (t - 1) & 3; rp = r if t > 0 else (r - 1) % NR
            E = lambda j: f"v_exp_f32 v{X+j}, v{X+j}"
            for j in range(0, 3): A(E(j))
            A(f"{SMF} {a(O+16*tp,16)}, {rg(VRG[rp],4)}, {v(Y+8,8)}, v{vIdx}")
            A(E(3))
            if t == 0: vload(rp, *so_imm(r + 4))
            if t == 3: kload(r, *so_imm(r + 5))
            for j in range(4, 7): A(E(j))
            if t == 1 and opt.get("atrace"):
                A("s_waitcnt lgkmcnt(0)\ns_mov_b32 m0, s64\ns_add_u32 s64, s64, 1\nv_writelane_b32 v140, s66, m0\ns_memrealtime s[66:67]")
            if t == 3: A("s_waitcnt vmcnt(10)")
            A(f"{MF} {v(Y,16)}, {rg(KRG[rn])}, {a(Q+4*tn,4)}, {v(C+16*tn,16)}")
            for j in range(7, 12): A(E(j))
            A(f"{SMF} {a(O+16*t,16)}, {rg(VRG[r])}, {v(X,8)}, v{vIdx}")
            if r == NR - 1 and t == 3:
                A(E(12))
                A(f"s_add_u32 s{sKA}, s{sKA}, 5120\ns_add_u32 s{sKB2}, s{sKB2}, 5120\ns_sub_u32 s{sCnt}, s{sCnt}, 1\ns_cmp_lg_u32 s{sCnt}, 0")
                for j in range(13, 16): A(E(j))
            else:
                for j in range(12, 16): A(E(j))
    A("s_cbranch_scc1 L_aloop")
    A("s_nop 1")
    A(f"{SMF} {a(O+48,16)}, {rg(VRG[NR-1],4)}, {v(SB+16+8,8)}, v{vIdx}")
    ST()
    if stamps: A("s_memtime s[98:99]")
    A(f"""
    s_mul_i32 s{sT0}, s{sWave}, {CMBW}
    s_add_u32 s{sT0}, s{sT0}, {CMB}
    v_add_u32 v2, s{sT0}, v{vK}
    v_lshl_add_u32 v3, v{vL}, 2, s{sT0}
    s_xor_b32 s{sT0}, s{sWave}, 2
    s_mul_i32 s{sT0}, s{sT0}, {CMBW}
    s_add_u32 s{sT0}, s{sT0}, {CMB}
    v_add_u32 v4, s{sT0}, v{vK}
    v_lshl_add_u32 v5, v{vL}, 2, s{sT0}
    v_mov_b32 v{vF}, s{sFB}
    """)
    for i in range(2):
        t = 2 + i
        if i == 1: A("s_nop 0")
        A(f"ds_write_b128 v2, {a(O+16*t,4)} offset:{i*2304}")
        A(f"ds_write_b128 v2, {a(O+16*t+4,4)} offset:{i*2304+1024}")
        A(f"ds_write_b32 v3, a{O+16*t+8} offset:{i*2304+2048}")
    A(f"ds_write_b32 v{vAF}, v{vF}")
    for i in range(2):
        for e in range(9): A(f"v_accvgpr_read_b32 v{C+24*i+e}, a{O+16*i+e}")
    lds_spin("L_ax", M, vPF, 0, f"v_cmp_gt_u32 vcc, s{sFB}, v{M}")
    for i in range(2):
        b = C + 24 * i + 12
        A(f"ds_read_b128 {v(b,4)}, v4 offset:{i*2304}")
        A(f"ds_read_b128 {v(b+4,4)}, v4 offset:{i*2304+1024}")
        A(f"ds_read_b32 v{b+8}, v5 offset:{i*2304+2048}")
    A(f"""
    v_mov_b32 v2, 0
    s_mov_b64 {s(sBad,2)}, 0
    s_mov_b32 s4, {hex(f2u(2.0**-110))}
    s_mov_b32 s5, {hex(f2u(2.0**120))}
    s_add_u32 s6, s{sO}, 32768
    s_waitcnt lgkmcnt(0)
    """)
    for i in range(2):
        b0 = C + 24 * i
        for e in range(9): A(f"v_add_f32 v{b0+e}, v{b0+e}, v{b0+12+e}")
        A(f"v_rcp_f32 v{b0+9}, v{b0+8}")
        A(f"v_cmp_nle_f32 vcc, s4, v{b0+8}")
        A(f"s_or_b64 {s(sBad,2)}, {s(sBad,2)}, vcc")
        A(f"v_cmp_nge_f32 vcc, s5, v{b0+8}")
        A(f"s_or_b64 {s(sBad,2)}, {s(sBad,2)}, vcc")
        for e in range(8): A(f"v_mul_f32 v{b0+e}, v{b0+e}, v{b0+9}")
        for e in range(4): A(f"v_cvt_pk_bf16_f32 v{b0+12+e}, v{b0+2*e}, v{b0+2*e+1}")
        A(f"buffer_store_dwordx4 {v(b0+12,4)}, v{vK}, {ws}, s{sO if i == 0 else 6} offen sc1")
    for i in range(2):
        for e in range(8): A(f"v_fma_f32 v2, v{C+24*i+e}, 0, v2")
    A(f"""
    v_cmp_u_f32 vcc, v2, v2
    s_or_b64 {s(sBad,2)}, {s(sBad,2)}, vcc
    s_cmp_lg_u64 {s(sBad,2)}, 0
    s_cselect_b32 s4, 2, 1
    v_mov_b32 v2, s4
    v_mov_b32 v3, s{sTag}
    v_mov_b32 v4, 0
    ds_write_b32 v{vAF}, v2 offset:256
    s_cmp_eq_u32 s{sFB}, 2
    s_cselect_b32 s5, 1, s4
    s_cmp_lg_u32 s5, 1
    s_cbranch_scc1 L_anoflag
    s_waitcnt vmcnt(0)
    s_mov_b64 exec, 1
    buffer_store_dword v3, v4, {ws}, s{sFo} offen sc1
    s_mov_b64 exec, -1
    """)
    A.label("L_anoflag")
    if stamps:
        ST(); A("s_waitcnt lgkmcnt(0)\ns_sub_u32 s98, s98, s96\ns_add_u32 s%d, s98, s%d" % (ST.base + 2 * ST.n, ST.base)); ST.n += 1
        ST.flush(ws, STAMP, sWave, 2, 3, sT0)
        if opt.get("atrace"):
            A(f"s_add_u32 s{sT0}, s{sT0}, {MB}\nv_lshlrev_b32 v2, 2, v{vL}\nbuffer_store_dword v140, v2, {ws}, s{sT0} offen")
    A(f"s_cmp_eq_u32 s{sFB}, 2\ns_cbranch_scc1 L_end")
    lds_spin("L_as", M, vPF, 256, f"v_cmp_eq_u32 vcc, 0, v{M}")
    A(f"v_readfirstlane_b32 s5, v{M}\ns_max_u32 s4, s4, s5\ns_cmp_lt_u32 s4, 2\ns_cbranch_scc1 L_end")
    A(f"s_mov_b32 s{sFB}, 2\ns_mov_b32 s{sOff}, 0\ns_mov_b32 s{sCnt}, 64\ns_mov_b32 s{sKA}, s{sKb}\ns_waitcnt vmcnt(0)")
    for t in range(4): A(f"v_mov_b32 v{M+t}, 0xff800000")
    A.label("L_afb")
    A(f"buffer_load_dwordx4 {a(KS,4)}, v{vK}, {ws}, s{sKA} offen sc1")
    A("s_waitcnt vmcnt(0)")
    for t in range(4): A(f"{MF} {v(C+16*t,16)}, {a(KS,4)}, {a(Q+4*t,4)}, 0")
    A("s_nop 11")
    for t in range(4): maxtree(M + t, [C + 16 * t], False)
    A(f"s_add_u32 s{sKA}, s{sKA}, 1024\ns_sub_u32 s{sCnt}, s{sCnt}, 1\ns_cmp_lg_u32 s{sCnt}, 0\ns_cbranch_scc1 L_afb")
    vload((E0 - 1) % NR, sKVb, 0)
    A("s_waitcnt vmcnt(0)")
    ring_prologue()
    zero_o()
    A("s_branch L_amain")
    for f in slow: f()
    A.label("L_end")
    A("s_endpgm")
    A.raw(f".fill (51200 - (. - {K})) / 4, 4, 0xbf800000")

    H_ = Asm()
    H_.raw(f"; @launch grid=(256,1,1) block=(512,1,1) lds={LDS}")
    H_.raw('.amdgcn_target "amdgcn-amd-amdhsa--gfx950"\n.text')
    H_.lines += A.lines
    H_.raw(f""".section .rodata,"a"
.p2align 6
.amdhsa_kernel {K}
  .amdhsa_next_free_vgpr {NV+NA}
  .amdhsa_next_free_sgpr 102
  .amdhsa_accum_offset {NV}
  .amdhsa_group_segment_fixed_size 0
  .amdhsa_kernarg_size 80
  .amdhsa_user_sgpr_count 2
  .amdhsa_user_sgpr_kernarg_segment_ptr 1
  .amdhsa_system_sgpr_workgroup_id_x 1
.end_amdhsa_kernel""")
    txt = H_.text()
    check_hazards(txt)
    return txt

if __name__ == "__main__":
    base = {"pfgo": 1}
    open("mega_s.s", "w").write(build(True, base))
    open("mega.s", "w").write(build(False, base))
    open("mega_tr.s", "w").write(build(True, dict(base, atrace=1)))
    open("mega_dbg.s", "w").write(build(True, dict(base, dbgout=10)))
    open("mega_b.s", "w").write(build(True, dict(base, p1kv=0, p2early=0)))
    open("mega_c.s", "w").write(build(True, dict(base, p1kv=1, p2early=0)))
    open("mega_d.s", "w").write(build(True, dict(base, p1kv=0, p2early=1)))
```

```python
import sys, struct
from asmlib import *
from layout import *
NAME = 'recurrent_scan__softmax_full_mha__glu_gated_geglu__prompt'
def f2u(x): return struct.unpack("<I", struct.pack("<f", x))[0]
MF = "v_mfma_f32_32x32x16_bf16"
SMF = "v_smfmac_f32_32x32x32_bf16"
C1 = -2.0 * 1.4426950408889634 * 0.7978845608028654
C2 = C1 * 0.044715
OFFSET = 80.0
NV, NA = 144, 112

SLOT = 16384
PIECE = 528
XT = 5 * SLOT
CMB = 131072
CMBW = 2 * 2304
CNT = 149504
LDC = CNT + 1024
AFL = LDC + 1024
GO = AFL + 8 * 256
LDS = GO + 256
RS = 272; RBY = 64 * RS
assert CMB + 4 * CMBW <= CNT

class Fifo:
    def __init__(self, cap): self.q = []; self.cap = cap; self.since = 0
    def push(self, tag, n=1): self.q += [tag] * n; self.since += n
    def need(self, tag):
        idx = [i for i, t in enumerate(self.q) if t == tag]
        if not idx: return None
        return min(len(self.q) - 1 - idx[-1], self.cap)
    def waited(self, n): self.q = self.q[max(0, len(self.q) - n):] if n else []
    def clear(self): self.q = []

def build(stamps=False, opt=None):
    opt = opt or {}
    TIMEOUT = opt.get("timeout", 200000)
    NG0 = opt.get('ng0', 4)
    PF2MASK = '0xffffffff'
    A = Asm()
    K = NAME + "_kernel"
    ST = Stamps(A, 70, stamps); ST.cyc = opt.get('cyc', False)
    sX, sWq, sWgu, sWd, sWo, sWS, sOut, sDbg = 8, 12, 16, 20, 24, 28, 32, 36
    sWave, sRB, sCG, sT0, sT1, sT2, sTag, sTO = 40, 41, 42, 43, 44, 45, 46, 47
    sGW, sMI, sNI, sM0, sQoff, sGoff, sDoff, sOoffW, sNeed, sFlag, sHst, sBlk, sNb = 48, 49, 50, 51, 52, 53, 54, 55, 56, 57, 58, 59, 60
    sHfl, sC, sD0, sD1, sHld, sXo, sHb, sSt = 61, 62, 64, 65, 66, 67, 68, 69
    sKA, sCnt, sKB2, sBad = 48, 51, 49, 52
    sFB, sOff, sQ, sKVb, sHead, sO, sKb, sFo = 50, 54, 55, 56, 57, 60, 61, 62
    sMask, sQ0, sFQ, sP3, sPKV = 58, 63, 65, 66, 67
    ws = s(sWS, 4)
    vL, vT0, vT1, vT2, vHF = 1, 2, 3, 4, 5
    vDq0, vDq1, vDg0, vDg1, vDd0, vDd1 = 6, 7, 8, 9, 10, 11
    vTRn, vTRnH, vTRp0, vTRp0H, vTRp1, vTRp1H = 12, 13, 14, 15, 16, 17
    vCnt, vOne, vP, vL16, vFl, vL128 = 18, 19, 20, 21, 22, 23
    vCntR = 0
    slow = []
    vKo, vVo, vH1, vO1, vXo, vRW, vRR, vXR = 24, 25, 26, 27, 28, 29, 30, 31
    WFB = [32, 36, 112, 116, 120, 124]
    if opt.get('twice'): WFB = [32, 128, 112, 116, 120, 124]
    ACC0, ACC1, TMP, AD, XR, GR, SR = 40, 56, 72, 40, 104, 128, 112
    vmq = Fifo(63); lq = Fifo(15)
    uid = [0]
    def lab(p):
        uid[0] += 1; return f"L_{p}{uid[0]}"
    def vwait(tag):
        n = vmq.need(tag)
        if n is not None: A(f"s_waitcnt vmcnt({n})"); vmq.waited(n)
    def lwait(tag):
        n = lq.need(tag)
        if n is not None: A(f"s_waitcnt lgkmcnt({n})"); lq.waited(n)
    def lds(instr, tag):
        if len(lq.q) >= 15:
            A("s_waitcnt lgkmcnt(12)"); lq.waited(12)
        A(instr); lq.push(tag)
    def timeout_exit(lbl):
        A(f"s_sub_u32 s{sTO}, s{sTO}, 1\ns_cmp_lt_i32 s{sTO}, 0\ns_cbranch_scc1 {lbl}")
    def emask(n): return n if isinstance(n, str) else ("-1" if n == 64 else hex((1 << n) - 1))

    A.raw(f".globl {K}\n.p2align 8\n.type {K},@function\n{K}:")
    F0 = opt.get("front0"); FR = opt.get("front")
    A(f"""
    s_cmp_ge_u32 s2, 256
    s_cbranch_scc1 L_end
    s_load_dwordx4 s[4:7], s[0:1], 0
    s_load_dwordx2 s[24:25], s[0:1], 16
    s_load_dwordx4 s[16:19], s[0:1], 32
    s_load_dwordx4 s[20:23], s[0:1], 48
    s_load_dwordx4 s[36:39], s[0:1], 64
    """)
    if opt.get("cpf", 1):
        A(f"""
        s_getpc_b64 s[8:9]
        s_lshr_b32 s10, s2, 3
        s_lshl_b32 s10, s10, 7
        s_add_u32 s8, s8, s10
        s_addc_u32 s9, s9, 0
        v_lshlrev_b32 v2, 12, v0
        v_add_co_u32 v2, vcc, s8, v2
        v_mov_b32 v3, s9
        v_cmp_gt_u32 s[10:11], 12, v0
        v_addc_co_u32 v3, vcc, 0, v3, vcc
        s_and_saveexec_b64 s[12:13], s[10:11]
        s_cbranch_execz L_nocpf
        global_load_dword v143, v[2:3], off
        L_nocpf:
        s_mov_b64 exec, -1
        """)
    ST()
    A(f"""
    v_lshrrev_b32 v{vT0}, 6, v0
    v_and_b32 v{vL}, 63, v0
    s_and_b32 s{sT0}, s2, 7
    v_readfirstlane_b32 s{sWave}, v{vT0}
    s_lshr_b32 s{sT1}, s2, 3
    s_lshr_b32 s{sRB}, s{sT0}, 1
    s_lshl_b32 s{sRB}, s{sRB}, 3
    s_and_b32 s{sT2}, s{sT1}, 7
    s_add_u32 s{sRB}, s{sRB}, s{sT2}
    s_and_b32 s{sCG}, s{sT0}, 1
    s_lshl_b32 s{sCG}, s{sCG}, 2
    s_lshr_b32 s{sT2}, s{sT1}, 3
    s_add_u32 s{sCG}, s{sCG}, s{sT2}
    v_lshrrev_b32 v{vT0}, 3, v{vL}
    v_and_b32 v{vT1}, 7, v{vL}                  ; 16B piece
    v_lshlrev_b32 v{vT2}, 10, v{vT0}
    v_lshl_add_u32 v5, v{vT1}, 4, v{vT2}
    s_lshl_b32 s{sT0}, s{sRB}, 16
    s_lshl_b32 s{sT1}, s{sWave}, 13
    s_add_u32 s{sT0}, s{sT0}, s{sT1}
    s_mov_b32 s{sX+2}, {S*D*2}
    s_mov_b32 s{sX+3}, 0x00020000
    s_mov_b32 s{sWq+2}, {D*1536*2}
    s_mov_b32 s{sWq+3}, 0x00020000
    s_and_b32 s{sGW}, s{sWave}, 3
    s_and_b32 s{sMI}, s{sGW}, 1
    v_lshlrev_b32 v{vL16}, 4, v{vL}
    s_lshl_b32 s{sT1}, s{sGW}, 2
    s_add_u32 s{sT1}, s{sT1}, {CNT}
    v_add_u32 v{vCnt}, s{sT1}, v{vL16}
    v_mov_b32 v{vOne}, 1
    v_and_b32 v{vFl}, 3, v{vL}
    v_bfe_u32 v{vXo}, v0, 3, 5
    v_lshl_add_u32 v{vCntR}, v{vFl}, 2, v{vL16}
    v_add_u32 v{vCntR}, {CNT}, v{vCntR}
    s_mov_b32 s{sTO}, {TIMEOUT}
    s_waitcnt lgkmcnt(0)
    s_mov_b32 s{sX}, s4
    s_mov_b32 s{sX+1}, s5
    s_mov_b32 s{sWq}, s6
    s_mov_b32 s{sWq+1}, s7
    """)
    R = 40
    for cb in range(8):
        A(f"buffer_load_dwordx4 {v(R+4*cb,4)}, v5, {s(sX,4)}, s{sT0} offen offset:{cb*128}")
    SRDS = f"""
    s_mov_b32 s{sWS}, s38
    s_mov_b32 s{sWS+1}, s39
    s_mov_b32 s{sWS+2}, {WS_USED}
    s_mov_b32 s{sWS+3}, 0x00020000
    s_mov_b32 s{sDbg+2}, 256
    s_mov_b32 s{sDbg+3}, 0x00020000
    s_bitcmp1_b32 s{sWave}, 1
    s_cselect_b32 s{sWgu}, s18, s16
    s_cselect_b32 s{sWgu+1}, s19, s17
    s_mov_b32 s{sWgu+2}, {D*F*2}
    s_mov_b32 s{sWgu+3}, 0x00020000
    v_lshlrev_b32 v{vT2}, 1, v{vT0}
    v_and_b32 v{vT2}, 4, v{vT2}
    v_xor_b32 v{vT2}, v{vT2}, v{vT1}
    v_lshlrev_b32 v{vHF}, 4, v{vT2}
    s_lshl_b32 s{sM0}, s{sGW}, 12
    s_mul_i32 s{sBlk}, s{sCG}, 3
    s_add_u32 s{sT1}, s{sCG}, 1
    s_lshr_b32 s{sT1}, s{sT1}, 2
    s_sub_u32 s{sBlk}, s{sBlk}, s{sT1}
    """
    A(SRDS)
    A(f"s_cmp_lt_u32 s{sWave}, 4\ns_cbranch_scc1 L_pre_a")
    BASE = [0, 3, 6, 8, 11, 14, 17, 19]
    DSEQ = [BASE[j] for j in range(8) if j % 4 != 3] + [BASE[j] + 1 for j in range(8)] + [BASE[j] + 2 for j in range(8)]
    CSTART = {0: 0, 6: 1, 14: 2}
    CMASK = [0x0fff0fff, 0xffffffff, 0xffffffff]
    def dma_pieces(kind, idx, slot):
        if kind == "q":
            panel = (1, 2, 0)[idx // 4]; o = (idx % 4) * 128 * 3072 + panel * 1024
            srd, so, v0_, v1_, o2 = sWq, sQoff, vDq0, vDq1, o + 16 * 3072
        elif kind == "g":
            o = (idx % 8) * 64 * 2752 + (idx // 8) * 128
            srd, so, v0_, v1_, o2 = sWgu, sGoff, vDg0, vDg1, o + 16 * 2752
        elif kind == "d":
            o = DSEQ[2 * idx] * 64 * 1024; o2 = DSEQ[2 * idx + 1] * 64 * 1024
            srd, so, v0_, v1_ = sWd, sDoff, vDd0, vDd1
        else:
            o = idx * 32 * 1024; o2 = o + 16 * 1024
            srd, so, v0_, v1_ = sWo, sOoffW, vDd0, vDd1
        tag = ("dma", kind, idx)
        def p0():
            A(f"s_add_u32 m0, s{sM0}, {slot*SLOT}\ns_add_u32 s{sD0}, s{so}, {o}")
            A(f"buffer_load_dwordx4 v{v0_}, {s(srd,4)}, s{sD0} offen lds"); vmq.push(tag)
        def p1():
            A(f"buffer_load_dwordx4 v{v1_}, {s(srd,4)}, s{sD0} offen offset:1024 lds"); vmq.push(tag)
        def p2():
            A(f"s_add_u32 s{sD0}, s{so}, {o2 - 2048}")
            A(f"buffer_load_dwordx4 v{v0_}, {s(srd,4)}, s{sD0} offen offset:2048 lds"); vmq.push(tag)
        def p3():
            A(f"buffer_load_dwordx4 v{v1_}, {s(srd,4)}, s{sD0} offen offset:3072 lds"); vmq.push(tag)
        return [p0, p1, p2, p3]
    def dma(kind, idx, slot):
        cap = opt.get("ldcap", 40)
        for p in dma_pieces(kind, idx, slot):
            if len(vmq.q) > cap:
                A(f"s_waitcnt vmcnt({cap})"); vmq.waited(cap)
            p()
    def ddq(g): return ("q", g, g % 8) if g < 12 else ("g", g - 12, g % 8)
    GUADDR = f"""
    v_mul_u32_u24 v{vDg0}, 2752, v{vT0}
    v_add_u32 v{vDg0}, v{vDg0}, v{vHF}
    v_add_u32 v{vDg1}, {8*2752-1024}, v{vDg0}
    s_mul_i32 s{sGoff}, s{sMI}, {32*2752}
    s_lshl_b32 s{sT0}, s{sBlk}, 7
    s_add_u32 s{sGoff}, s{sGoff}, s{sT0}
    """
    A(f"""
    v_bfe_u32 v{vP}, v{vL}, 2, 2
    v_mul_u32_u24 v{vP}, 3072, v{vP}
    v_lshl_add_u32 v{vP}, v{vFl}, 7, v{vP}
    v_lshrrev_b32 v{vKo}, 4, v{vL}
    v_lshl_add_u32 v{vP}, v{vKo}, 10, v{vP}
    s_lshr_b32 s{sT1}, s2, 3
    s_mul_i32 s{sT1}, s{sT1}, {16*3072}
    s_mul_i32 s{sT0}, s{sGW}, {4*3072}
    s_add_u32 s{sT1}, s{sT1}, s{sT0}
    s_and_b32 s{sT0}, s2, 1
    s_lshl_b32 s{sT0}, s{sT0}, 9
    s_add_u32 s{sT1}, s{sT1}, s{sT0}
    s_lshr_b32 s{sNI}, s{sGW}, 1
    v_bfe_u32 v{vT2}, v{vL}, 2, 2
    v_lshlrev_b32 v{vTRp0}, 7, v{vT2}
    v_bfe_u32 v{vKo}, v{vL}, 4, 1
    v_lshl_add_u32 v{vTRp0}, v{vKo}, 5, v{vTRp0}
    v_lshl_add_u32 v{vTRp0}, v{vFl}, 3, v{vTRp0}
    v_lshrrev_b32 v{vH1}, 1, v{vT2}             ; r>>1
    v_lshrrev_b32 v{vO1}, 5, v{vL}              ; half
    v_xor_b32 v{vFl}, s{sNI}, v{vH1}
    v_lshl_add_u32 v{vTRn}, v{vFl}, 6, v{vTRp0}
    v_lshl_add_u32 v{vTRn}, v{vO1}, 10, v{vTRn}
    v_add_u32 v{vTRnH}, 65536, v{vTRn}
    v_and_b32 v{vRW}, 31, v{vL}
    v_mul_u32_u24 v{vXR}, {PIECE}, v{vO1}
    v_lshl_add_u32 v{vXR}, v{vRW}, 4, v{vXR}
    s_mul_i32 s{sT0}, s{sMI}, {64*PIECE}
    s_add_u32 s{sT0}, s{sT0}, {XT}
    v_add_u32 v{vXR}, s{sT0}, v{vXR}
    s_mov_b64 exec, {'0xffffffff' if opt.get('p1kv', 1) else '0xffff'}
    buffer_load_dword v143, v{vP}, {s(sWq,4)}, s{sT1} offen offset:1024
    s_mov_b64 exec, -1
    s_mov_b32 s3, 1
    s_setprio 1
    s_waitcnt vmcnt(1)
    s_branch L_ln
    """)
    GLATE = [x.strip() for x in (GUADDR + f"""
    s_mov_b32 s{sOut}, s22
    s_mov_b32 s{sOut+1}, s23
    s_mov_b32 s{sOut+2}, {S*D*2}
    s_mov_b32 s{sOut+3}, 0x00020000
    s_mov_b32 s{sWd+2}, {F*D*2}
    s_mov_b32 s{sWd+3}, 0x00020000
    s_mov_b32 s{sWo+2}, {D*D*2}
    s_mov_b32 s{sWo+3}, 0x00020000
    v_lshl_add_u32 v{vDd0}, v{vT0}, 10, v{vHF}
    v_add_u32 v{vDd1}, {8*1024-1024}, v{vDd0}
    s_lshl_b32 s{sT2}, s{sCG}, 7
    s_lshl_b32 s{sDoff}, s{sGW}, 14
    s_add_u32 s{sDoff}, s{sDoff}, s{sT2}
    s_lshl_b32 s{sOoffW}, s{sGW}, 17
    s_add_u32 s{sOoffW}, s{sOoffW}, s{sT2}
    s_lshl_b32 s{sXo}, s{sRB}, 16
    s_add_u32 s{sXo}, s{sXo}, s{sT2}
    s_and_b32 s{sNb}, s{sCG}, 3
    v_lshl_add_u32 v{vTRp0}, v{vH1}, 6, v{vTRp0}
    v_lshl_add_u32 v{vTRp0}, v{vO1}, 9, v{vTRp0}
    v_add_u32 v{vTRp0}, s{sM0}, v{vTRp0}
    v_xor_b32 v{vTRp1}, 64, v{vTRp0}
    v_add_u32 v{vTRp0H}, 65536, v{vTRp0}
    v_add_u32 v{vTRp1H}, 65536, v{vTRp1}
    v_lshlrev_b32 v{vL128}, 7, v{vL}
    v_lshlrev_b32 v{vVo}, 16, v{vKo}
    v_lshl_add_u32 v{vVo}, v{vO1}, 8, v{vVo}
    v_and_b32 v{vT2}, 15, v{vL}
    v_lshl_add_u32 v{vVo}, v{vT2}, 4, v{vVo}
    v_add_u32 v{vVo}, {VF}, v{vVo}
    v_mul_u32_u24 v{vRW}, {RS}, v{vRW}
    v_lshl_add_u32 v{vRW}, v{vO1}, 4, v{vRW}
    s_mul_i32 s{sT0}, s{sGW}, {RBY}
    v_add_u32 v{vRW}, s{sT0}, v{vRW}
    v_mul_u32_u24 v{vRR}, {RS}, v{vXo}
    v_lshl_add_u32 v{vRR}, v{vT1}, 5, v{vRR}
    v_lshlrev_b32 v{vXo}, 10, v{vXo}
    v_lshl_add_u32 v{vXo}, v{vT1}, 4, v{vXo}
    v_and_b32 v{vKo}, 0x33, v{vL}
    v_lshrrev_b32 v{vT2}, 1, v{vL}
    v_and_b32 v{vT2}, 4, v{vT2}
    v_lshlrev_b32 v{vO1}, 1, v{vL}
    v_and_b32 v{vO1}, 8, v{vO1}
    v_or3_b32 v{vKo}, v{vKo}, v{vT2}, v{vO1}
    v_lshlrev_b32 v{vKo}, 4, v{vKo}
    v_add_u32 v{vKo}, {KF}, v{vKo}
    v_add_u32 v{vH1}, {86*1024}, v{vL16}
    v_add_u32 v{vO1}, 32768, v{vL16}
    v_lshlrev_b32 v{vXR}, 10, v{vL}
    v_mov_b32 v{vT2}, 0
    v_mov_b32 v{vT0}, {hex(f2u(C1))}
    v_mov_b32 v{vT1}, {hex(f2u(C1))}
    s_lshl_b32 s{sT2}, s{sRB}, 1
    s_add_u32 s{sT2}, s{sT2}, s{sMI}
    s_mul_i32 s{sHst}, s{sT2}, {86*1024}
    s_lshl_b32 s{sT1}, s{sCG}, 1
    s_add_u32 s{sT1}, s{sT1}, s{sNI}
    s_lshl_b32 s{sFlag}, s{sT1}, 13
    s_lshl_b32 s{sT0}, s{sT2}, 7
    s_add_u32 s{sFlag}, s{sFlag}, s{sT0}
    s_add_u32 s{sFlag}, s{sFlag}, {FQ}
    s_lshl_b32 s{sT1}, s{sT1}, 17
    s_lshl_b32 s{sT2}, s{sT2}, 10
    s_add_u32 s{sSt}, s{sT1}, s{sT2}
    s_lshl_b32 s{sT0}, s{sBlk}, 12
    s_lshl_b32 s{sT1}, s{sNI}, 11
    s_add_u32 s{sHst}, s{sHst}, s{sT0}
    s_add_u32 s{sHst}, s{sHst}, s{sT1}
    s_add_u32 s{sHst}, s{sHst}, {HF}
    s_lshl_b32 s{sHld}, s{sRB}, 14
    s_add_u32 s{sHld}, s{sHld}, {FH}
    s_lshl_b32 s{sT0}, s{sCG}, 9
    s_lshl_b32 s{sT1}, s{sGW}, 7
    s_add_u32 s{sHfl}, s{sT0}, s{sT1}
    s_add_u32 s{sHfl}, s{sHfl}, s{sHld}
    s_mul_i32 s{sHb}, s{sRB}, {2*86*1024}
    s_lshl_b32 s{sT0}, s{sGW}, 10
    s_add_u32 s{sHb}, s{sHb}, s{sT0}
    s_add_u32 s{sHb}, s{sHb}, {HF}
    s_mov_b32 s{sC}, {hex(f2u(QSCALE))}
    s_mov_b32 s{sC+1}, {hex(f2u(QSCALE))}
    """).split("\n") if x.strip()]
    vK, vV, vIdx, vAF, vPF, vF = 10, 11, 12, 13, 14, 15
    M, C, SB = 6, 16, 80
    aOnes, aPF, aP3, aPKV, aL128, aGo = 24, 25, 26, 27, 28, 29
    O, Q, KS = 0, 64, 0
    NR = 5
    KRG = [("a", 80), ("a", 92), ("a", 104), ("a", 108), ("v", 136)]
    VRG = [("a", 84), ("a", 96), ("v", 112), ("v", 120), ("v", 128)]
    def rg(x, off=0, n=4): return (a if x[0] == "a" else v)(x[1] + off, n)
    def zero_o(n=64):
        for i in range(n): A(f"v_accvgpr_write_b32 a{O+i}, 0")
    A.label("L_pre_a")
    if opt.get("pretouch"):
        A(f"""
        s_mov_b32 s{sOut}, s22
        s_mov_b32 s{sOut+1}, s23
        s_mov_b32 s{sOut+2}, {S*D*2}
        s_mov_b32 s{sOut+3}, 0x00020000
        s_mov_b32 s{sWd+2}, {F*D*2}
        s_mov_b32 s{sWd+3}, 0x00020000
        s_mov_b32 s{sWo+2}, {D*D*2}
        s_mov_b32 s{sWo+3}, 0x00020000
        v_lshlrev_b32 v{vF}, 21, v{vL}
        s_lshl_b32 s{sT0}, s2, 7
        s_cmp_lg_u32 s{sMI}, 0
        s_cbranch_scc1 L_pt1
        s_mov_b64 exec, 0x1fff
        buffer_load_dword v143, v{vF}, {ws}, s{sT0} offen sc1
        s_mov_b64 exec, 1
        buffer_load_dword v143, v{vF}, {s(sWgu,4)}, s{sT0} offen
        s_branch L_pt2
        L_pt1:
        s_mov_b64 exec, 1
        buffer_load_dword v143, v{vF}, {s(sOut,4)}, s{sT0} offen sc1
        buffer_load_dword v143, v{vF}, {s(sWd,4)}, s{sT0} offen
        buffer_load_dword v143, v{vF}, {s(sWo,4)}, s{sT0} offen
        L_pt2:
        s_mov_b64 exec, -1
        """)
    A(f"""
    v_mov_b32 v{vF}, 0
    ds_write_b32 v{vCnt}, v{vF}
    ds_write_b32 v{vCnt}, v{vF} offset:1024
    v_add_u32 v{vCnt}, 1024, v{vCnt}
    v_lshlrev_b32 v{aGo}, 2, v{vL}
    s_lshl_b32 s{sT0}, s{sWave}, 9
    s_add_u32 s{sT0}, s{sT0}, {AFL}
    v_add_u32 v{vAF}, s{sT0}, v{aGo}
    s_xor_b32 s{sT0}, s{sWave}, 2
    s_lshl_b32 s{sT0}, s{sT0}, 9
    s_add_u32 s{sT0}, s{sT0}, {AFL}
    v_add_u32 v{vPF}, s{sT0}, v{aGo}
    v_add_u32 v{aGo}, {GO}, v{aGo}
    ds_write_b32 v{vAF}, v{vF}
    ds_write_b32 v{vAF}, v{vF} offset:256
    ds_write_b32 v{aGo}, v{vF}
    v_mul_u32_u24 v{vDq0}, 3072, v{vT0}
    v_add_u32 v{vDq0}, v{vDq0}, v{vHF}
    v_add_u32 v{vDq1}, {8*3072-1024}, v{vDq0}
    s_mul_i32 s{sQoff}, s{sGW}, {32*3072}
    s_lshl_b32 s{sT2}, s{sCG}, 7
    s_add_u32 s{sQoff}, s{sQoff}, s{sT2}
    v_bfe_u32 v{aP3}, v{vL}, 2, 2
    v_mul_u32_u24 v{aP3}, 3072, v{aP3}
    v_lshl_add_u32 v{aP3}, v{vFl}, 7, v{aP3}
    v_bfe_u32 v{aPF}, v{vL}, 4, 1
    v_xor_b32 v{aPF}, 1, v{aPF}
    v_lshl_add_u32 v{aP3}, v{aPF}, 11, v{aP3}
    s_lshr_b32 s7, s2, 3
    s_lshl_b32 s7, s7, 2
    s_add_u32 s7, s7, s{sWave}
    s_mul_i32 s7, s7, {4*3072}
    s_and_b32 s{sT0}, s2, 1
    s_lshl_b32 s{sT0}, s{sT0}, 9
    s_add_u32 s7, s7, s{sT0}
    s_and_b32 s{sT0}, s{sCG}, 3
    s_cmp_eq_u32 s{sT0}, 3
    s_addc_u32 s{sBlk}, s{sBlk}, 0
    v_lshrrev_b32 v30, 1, v{vL}
    v_mul_u32_u24 v30, 2752, v30
    v_and_b32 v31, 1, v{vL}
    v_mul_u32_u24 v31, 124, v31
    v_add_u32 v30, v30, v31
    s_and_b32 s68, s{sRB}, 7
    s_lshl_b32 s68, s68, 1
    s_add_u32 s68, s68, s{sMI}
    s_mul_i32 s68, s68, {16*2752}
    s_lshl_b32 s{sT0}, s{sBlk}, 7
    s_add_u32 s68, s68, s{sT0}
    s_or_b32 s{sT1}, s2, s{sWave}
    s_cmp_lg_u32 s{sT1}, 0
    s_cbranch_scc1 L_pre_a2
    s_memrealtime s[4:5]
    s_waitcnt lgkmcnt(0)
    s_or_b32 s4, s4, 1
    v_mov_b32 v{vIdx}, s4
    buffer_store_dword v{vIdx}, v{vF}, {s(sDbg,4)}, 0 offen sc1
    """)
    A.label("L_pre_a2")
    if opt.get("pall"):
        A(f"""
        s_mov_b32 s{sWd+2}, {F*D*2}
        s_mov_b32 s{sWd+3}, 0x00020000
        s_mov_b32 s{sWo+2}, {D*D*2}
        s_mov_b32 s{sWo+3}, 0x00020000
        v_mul_u32_u24 v141, 2752, v{vL}
        s_and_b32 s{sT0}, s{sRB}, 7
        s_mul_i32 s{sT0}, s{sT0}, {64*2752}
        s_mul_i32 s{sT1}, s{sCG}, 384
        s_add_u32 s{sT0}, s{sT0}, s{sT1}
        s_mul_i32 s{sT1}, s{sMI}, 124
        s_add_u32 s{sT1}, s{sT0}, s{sT1}
        buffer_load_dword v143, v141, {s(sWgu,4)}, s{sT1} offen
        s_lshl_b32 s{sT1}, s{sMI}, 7
        s_add_u32 s{sT1}, s{sT0}, s{sT1}
        buffer_load_dword v143, v141, {s(sWgu,4)}, s{sT1} offen offset:252
        v_lshlrev_b32 v142, 10, v{vL}
        s_and_b32 s{sT0}, s{sRB}, 7
        s_lshl_b32 s{sT1}, s{sCG}, 7
        s_mul_i32 s{sT2}, s{sT0}, {172*1024}
        s_add_u32 s{sT2}, s{sT2}, s{sT1}
        s_lshl_b32 s4, s{sGW}, 16
        s_add_u32 s{sT2}, s{sT2}, s4
        buffer_load_dword v143, v142, {s(sWd,4)}, s{sT2} offen
        s_lshl_b32 s{sT0}, s{sT0}, 16
        s_add_u32 s{sT0}, s{sT0}, s{sT1}
        buffer_load_dword v143, v142, {s(sWo,4)}, s{sT0} offen
        s_waitcnt vmcnt(0)
        s_sleep 40
        """)
    A("s_mov_b32 s3, 0\ns_waitcnt vmcnt(%d)" % (2 if opt.get("pretouch") else 0))
    NEARLY = opt.get("nearly", 0)
    for g in range(NEARLY): dma(*ddq(g))
    vmq.clear()
    A.label("L_ln")
    ST()
    SA, TT, vXW = 104, 80, 112
    A(f"""
    s_mov_b32 s4, 0x3f803f80
    s_mov_b32 s5, 0x00003f80
    s_mov_b32 s6, 0x3f800000
    """)
    for i in range(32):
        a1 = SA + (i & 1); a2 = SA + 2 + (i & 1)
        A(f"v_dot2_f32_bf16 v{a1}, v{R+i}, s4, {'0' if i < 2 else 'v%d' % a1}")
        A(f"v_dot2_f32_bf16 v{a2}, v{R+i}, v{R+i}, {'0' if i < 2 else 'v%d' % a2}")
    m_, q_, mb_, rs_ = SA, SA + 2, SA + 4, SA + 6
    A(f"""
    s_lshr_b32 s{sT0}, s{sWave}, 2
    s_mul_i32 s{sT0}, s{sT0}, {64*PIECE}
    s_lshl_b32 s{sT1}, s{sGW}, 7
    v_add_f32 v{m_}, v{m_}, v{m_+1}
    v_add_f32 v{q_}, v{q_}, v{q_+1}
    s_add_u32 s{sT0}, s{sT0}, s{sT1}
    v_add_f32_dpp v{m_}, v{m_}, v{m_} quad_perm:[1,0,3,2] row_mask:0xf bank_mask:0xf
    v_add_f32_dpp v{q_}, v{q_}, v{q_} quad_perm:[1,0,3,2] row_mask:0xf bank_mask:0xf
    s_add_u32 s{sT0}, s{sT0}, {XT}
    v_add_f32_dpp v{m_}, v{m_}, v{m_} quad_perm:[2,3,0,1] row_mask:0xf bank_mask:0xf
    v_add_f32_dpp v{q_}, v{q_}, v{q_} quad_perm:[2,3,0,1] row_mask:0xf bank_mask:0xf
    v_mul_u32_u24 v{vXW}, {PIECE}, v{vT1}
    v_add_f32_dpp v{m_}, v{m_}, v{m_} row_half_mirror row_mask:0xf bank_mask:0xf
    v_add_f32_dpp v{q_}, v{q_}, v{q_} row_half_mirror row_mask:0xf bank_mask:0xf
    v_mul_f32 v{m_}, {hex(f2u(1.0/512))}, v{m_}
    v_mul_f32 v{q_}, {hex(f2u(1.0/512))}, v{q_}
    v_cvt_pk_bf16_f32 v{mb_}, v{m_}, v{m_}
    v_fma_f32 v{q_}, -v{m_}, v{m_}, v{q_}
    v_and_b32 v{mb_}, 0xffff0000, v{mb_}
    v_max_f32 v{q_}, 0, v{q_}
    v_xor_b32 v{mb_}, 0x80000000, v{mb_}
    v_cvt_pk_bf16_f32 v{q_}, v{q_}, v{q_}
    v_and_b32 v{q_}, 0xffff0000, v{q_}
    v_add_f32 v{q_}, {hex(f2u(1e-5))}, v{q_}
    v_cvt_pk_bf16_f32 v{q_}, v{q_}, v{q_}
    v_and_b32 v{q_}, 0xffff0000, v{q_}
    v_sqrt_f32 v{q_}, v{q_}
    v_lshl_add_u32 v{vXW}, v{vT0}, 4, v{vXW}
    v_cvt_pk_bf16_f32 v{q_}, v{q_}, v{q_}
    v_and_b32 v{q_}, 0xffff0000, v{q_}
    v_rcp_f32 v{rs_}, v{q_}
    v_rcp_f32 v{rs_+1}, v{q_}
    v_add_u32 v{vXW}, s{sT0}, v{vXW}
    """)
    for cb in range(8):
        t = TT + 8 * (cb & 1); r = R + 4 * cb
        for e in range(4):
            A(f"v_dot2_f32_bf16 v{t+2*e}, v{r+e}, s5, v{mb_}")
            A(f"v_dot2_f32_bf16 v{t+2*e+1}, v{r+e}, s6, v{mb_}")
        if cb > 0: A(f"ds_write_b128 v{vXW}, {v(R+4*(cb-1),4)} offset:{(cb-1)*8*PIECE}")
        else: A("s_nop 0")
        for e in range(4): A(f"v_pk_mul_f32 {v(t+2*e,2)}, {v(t+2*e,2)}, {v(rs_,2)}")
        for e in range(4): A(f"v_cvt_pk_bf16_f32 v{r+e}, v{t+2*e}, v{t+2*e+1}")
    A(f"ds_write_b128 v{vXW}, {v(R+28,4)} offset:{7*8*PIECE}")
    A("s_cmp_eq_u32 s3, 0\ns_cbranch_scc1 L_attn")

    def get_tag(vt, vz, lbl):
        A(f"v_mov_b32 v{vz}, 0")
        A.label(lbl)
        A(f"""
        buffer_load_dword v{vt}, v{vz}, {s(sDbg,4)}, 0 offen sc1
        s_waitcnt vmcnt(0)
        v_readfirstlane_b32 s{sTag}, v{vt}
        """)
        timeout_exit(lbl + "_x")
        A(f"s_cmp_eq_u32 s{sTag}, 0\ns_cbranch_scc1 {lbl}")
        A.label(lbl + "_x")
    def spin_flags(lbl, vf, voff, soff, nlanes, sleep=4):
        A.label(lbl)
        A(f"""
        s_mov_b64 exec, {emask(nlanes)}
        buffer_load_dword v{vf}, v{voff}, {ws}, s{soff} offen sc1
        s_waitcnt vmcnt(0)
        v_cmp_ne_u32 vcc, s{sTag}, v{vf}
        s_mov_b64 exec, -1
        s_cbranch_vccz {lbl}_x
        """)
        timeout_exit(lbl + "_x")
        A(f"s_sleep {sleep}\ns_branch {lbl}")
        A.label(lbl + "_x")
    def lds_spin(lbl, vdst, vaddr, off, cmp, sleep=0):
        A.label(lbl)
        A(f"ds_read_b32 v{vdst}, v{vaddr} offset:{off}\ns_waitcnt lgkmcnt(0)\n{cmp}\ns_cbranch_vccz {lbl}_x")
        timeout_exit(lbl + "_x")
        if sleep: A(f"s_sleep {sleep}")
        A(f"s_branch {lbl}")
        A.label(lbl + "_x")

    def xn(ks): return a(4 * ks, 4) if ks < 28 else v(96 + 4 * (ks - 28), 4)
    def xread(ks): lds(f"ds_read_b128 {xn(ks)}, v{vXR} offset:{2*ks*PIECE}", "xn")
    lowprio = [False]
    def check(fresh, off=0, need=None):
        l = lab("chk"); nd = f"s{sNeed}" if need is None else str(need)
        cmp = f"v_cmp_gt_u32 vcc, {nd}, v{vP}"
        if lowprio[0]: cmp = f"s_setprio 3\n{cmp}\ns_setprio 0"
        if fresh:
            lds(f"ds_read_b32 v{vP}, v{vCntR} offset:{off}", "poll")
        lwait("poll")
        A(f"{cmp}\ns_cbranch_vccnz {l}")
        A.label(l + "_x")
        def sp():
            A.label(l)
            A(f"ds_read_b32 v{vP}, v{vCntR} offset:{off}\ns_waitcnt lgkmcnt(0)\n{cmp}\ns_cbranch_vccz {l}_x")
            timeout_exit(l + "_x")
            if lp: A("s_sleep 1")
            A(f"s_branch {l}")
        lp = lowprio[0]
        slow.append(sp)
        if need is None: A(f"s_add_u32 s{sNeed}, s{sNeed}, 1")
    def segment(stages, hooks=None, LA=4):
        hooks = hooks or {}
        NB = len(WFB); assert NB >= LA + 1
        flat = [(si, fi, fr) for si, st in enumerate(stages) for fi, fr in enumerate(st["frags"])]
        sq = []
        for i in range(len(flat) + LA):
            if i < len(flat):
                si, fi, fr = flat[i]; st = stages[si]; nfr = len(st["frags"])
                if fi == 0:
                    assert not sq
                    if "label" in st: A.label(st["label"])
                    if opt.get("atrace"):
                        A(f"s_waitcnt lgkmcnt(0)\ns_mov_b32 s99, m0\ns_mov_b32 m0, s{sD1}\ns_add_u32 s{sD1}, s{sD1}, 1\ns_setprio 3\nv_writelane_b32 v142, s100, m0\ns_setprio {0 if lowprio[0] else 1}\ns_memrealtime s[100:101]\ns_mov_b32 m0, s99"); lq.clear()
                    if st["sync"]: check(si == 0, *st.get("chk", ()))
                    if "pre" in st: st["pre"]()
                    sq += st["pieces"]
                lo, hi, o0, o1, _ = fr
                base = st["slot"] * SLOT; reg = lo
                if base >= 65536: base -= 65536; reg = hi
                w = WFB[i % NB]
                lds(f"ds_read_b64_tr_b16 {v(w,2)}, v{reg} offset:{base+o0}", ("fr", i))
                lds(f"ds_read_b64_tr_b16 {v(w+2,2)}, v{reg} offset:{base+o1}", ("fr", i))
                if fi == st.get("waitat", st.get("pubat", 2)) and st["nxt"] is not None: vwait(st["nxt"])
                if fi == st.get("pubat", 2) and st["pub"]: lds(f"ds_add_u32 v{vCnt}, v{vOne}", "add")
                if len(sq) * 2 > (nfr - fi) or fi % 2 == 0:
                    k = -(-len(sq) // (nfr - fi))
                    for _ in range(k): sq.pop(0)()
                if fi == nfr - 2 and si + 1 < len(stages) and stages[si + 1]["sync"]:
                    lds(f"ds_read_b32 v{vP}, v{vCntR} offset:{stages[si + 1].get('chk', (0,))[0]}", "poll")
                if (si, fi) in hooks: hooks[(si, fi)]()
            j = i - LA
            if j >= 0:
                lwait(("fr", j))
                for m in flat[j][2][4]:
                    if callable(m): m()
                    else: A(m.format(w=v(WFB[j % NB], 4)))
    if F0: ST()
    A("s_waitcnt lgkmcnt(0)\ns_barrier")
    ST()
    if opt.get("atrace"): A(f"s_mov_b32 s{sD1}, 0\ns_memrealtime s[100:101]")
    for ks in range(8): xread(ks)
    def qkv_epi(p):
        acc = (ACC0, ACC1, ACC0)[p]; pk = TMP + 8 * p
        def f():
            if p == 2:
                for i in range(8): A(f"v_pk_mul_f32 {v(acc+2*i,2)}, {v(acc+2*i,2)}, {s(sC,2)}")
            for i in range(8): A(f"v_cvt_pk_bf16_f32 v{pk+i}, v{acc+2*i}, v{acc+2*i+1}")
            if p == 1:
                A(f"buffer_store_dwordx4 {v(pk,4)}, v{vVo}, {ws}, s{sSt} offen sc1")
                A(f"buffer_store_dwordx4 {v(pk+4,4)}, v{vVo}, {ws}, s{sSt} offen offset:512 sc1")
            else:
                vo = vKo if p == 0 else vL16
                A(f"s_add_u32 s{sT0}, s{sSt}, 65536")
                A(f"buffer_store_dwordx4 {v(pk,4)}, v{vo}, {ws}, s{sSt} offen sc1")
                A(f"buffer_store_dwordx4 {v(pk+4,4)}, v{vo}, {ws}, s{sT0} offen sc1")
            vmq.push("st", 2)
        return f
    stages = []
    for q in range(12):
        p, part = divmod(q, 4); acc = v((ACC0, ACC1, ACC0)[p], 16)
        frags = []
        for kk in range(8):
            ks = part * 8 + kk; c = "0" if ks == 0 else acc
            m = f"{MF} {acc}, {xn(ks)}, {{w}}, {c}" if p == 1 else f"{MF} {acc}, {{w}}, {xn(ks)}, {c}"
            frags.append((vTRn, vTRnH, kk * 2048, kk * 2048 + 512, [m]))
        stages.append(dict(slot=q % 8, frags=frags, pieces=[], nxt=None, sync=True, pub=(q >= 1), pubat=0, chk=(1024, q + 1)))
    hooks = {(0, fi): (lambda fi=fi: [xread(8 + 3 * fi + e) for e in range(3)]) for fi in range(8)}
    hooks[(5, 1)] = qkv_epi(0); hooks[(9, 1)] = qkv_epi(1)
    hooks[(5, 4)] = lambda: (A(f"buffer_load_dword v{vFl}, v{vT2}, {s(sDbg,4)}, 0 offen sc1"), vmq.push("tag"))
    per = -(-len(GLATE) // 30)
    def late():
        for _ in range(per):
            if GLATE: A(GLATE.pop(0).replace("|", "\n"))
    for q in range(1, 5):
        for fi in range(8):
            if (q, fi) not in ((1, 0), (4, 0)): hooks[(q, fi)] = late
    if stamps:
        for q in ((1, 4, 5, 6, 7, 8, 9, 10, 11) if FR else (1, 4, 8)): hooks[(q, 0)] = ST
    segment(stages, hooks)
    assert not GLATE
    vwait("tag")
    A(f"v_readfirstlane_b32 s{sTag}, v{vFl}\ns_nop 10")
    qkv_epi(2)()
    ST()
    A(f"s_cmp_lg_u32 s{sTag}, 0\ns_cbranch_scc1 L_gtag_x")
    get_tag(vFl, vT2, "L_gtag")
    A(f"""
    s_mov_b32 s{sC}, {hex(f2u(C2))}
    s_mov_b32 s{sC+1}, {hex(f2u(C2))}
    v_mov_b32 v{vFl}, s{sTag}
    s_waitcnt vmcnt(0)
    s_mov_b64 exec, 1
    buffer_store_dword v{vFl}, v{vT2}, {ws}, s{sFlag} offen sc1
    s_mov_b64 exec, -1
    """)
    ST()
    if FR: ST.flush(ws, STAMP, sWave, 2, 3, sT0); A("s_endpgm"); ST.on = False
    if opt.get("gexit"): A(f"ds_add_u32 v{vCnt}, v{vOne}\ns_waitcnt lgkmcnt(0)\ns_endpgm")
    assert NG0 == 4
    LOOK = opt.get("look", 5)
    check(True, 1024, 12 + NG0)
    lds(f"ds_add_u32 v{vCnt}, v{vOne}", "add")
    A(f"s_mov_b32 s{sNeed}, 12\ns_setprio 0")
    lowprio[0] = True
    def gslot(g): return (g + 4) % 8
    def ffn_dd(g):
        if g < 24: return ("g", g, gslot(g))
        if g < 35: return ("d", g - 24, gslot(g))
        return ("o", g - 35, gslot(g))
    A(f"s_cmp_lg_u32 s{sNb}, 3\ns_cbranch_scc1 L_ffn")
    if opt.get("pfw", 1):
        if opt.get("pfgo"): check(True, 1024, 12 + NG0 + 1)
        P = [0, 128, 384, 512, 768, 896, 256, 640, 1024, 1152, 1280, 1404][:2 * opt.get('npf', 6)]
        PCAP = opt.get("pcap", 1)
        A(f"""
        s_setprio 3
        v_mul_u32_u24 v{TMP}, 2752, v{vL}
        v_lshrrev_b32 v{TMP+1}, 2, v{vL}
        v_lshlrev_b32 v{TMP+1}, 10, v{TMP+1}
        v_and_b32 v{TMP+2}, 3, v{vL}
        v_lshl_add_u32 v{TMP+1}, v{TMP+2}, 7, v{TMP+1}
        s_setprio 0
        s_and_b32 s4, s{sRB}, 7
        s_mul_i32 s5, s4, {64*2752}
        s_lshr_b32 s6, s{sCG}, 2
        s_mul_i32 s7, s6, 1408
        s_add_u32 s5, s5, s7
        """)
        for i in range(len(P) // 2):
            lo_, hi_ = sorted(P[2*i:2*i+2])
            A(f"s_mul_i32 s{sT0}, s{sMI}, {hi_-lo_}\ns_add_u32 s{sT0}, s{sT0}, s5")
            A(f"buffer_load_dword v143, v{TMP}, {s(sWgu,4)}, s{sT0} offen offset:{lo_}\ns_waitcnt vmcnt({PCAP})")
        if opt.get('pfd', 0):
            A(f"""
        s_lshl_b32 s4, s4, 2
        s_add_u32 s4, s4, s{sGW}
        s_lshl_b32 s6, s6, 9
        s_mul_i32 s5, s4, {43*1024}
        s_add_u32 s5, s5, s6
        """)
            for i in range(3):
                A(f"s_add_u32 s{sT0}, s5, {i*16*1024}\nbuffer_load_dword v143, v{TMP+1}, {s(sWd,4)}, s{sT0} offen\ns_waitcnt vmcnt({PCAP})")
            A(f"s_lshl_b32 s5, s4, 14\ns_add_u32 s5, s5, s6\nbuffer_load_dword v143, v{TMP+1}, {s(sWo,4)}, s5 offen")
    check(True, 0, 12)
    A(f"s_setprio 3\nv_mov_b32 v{vP}, 0\ns_setprio 0")
    for g in range(8 + NG0, 8 + LOOK): dma(*ffn_dd(g))
    A("s_branch L_ffn8")
    A.label("L_ffn")
    vmq.clear(); lq.clear()
    T1, U1 = TMP, [88, 90, 92, 94, 128, 130, 132, 134]
    AD1 = [v(40, 16), v(56, 16), v(96, 16), a(96, 16)]
    def gelu1():
        G, U = ACC0, ACC1
        A("s_setprio 3\ns_nop 9")
        for i in range(8): A(f"v_pk_mul_f32 {v(T1+2*i,2)}, {v(G+2*i,2)}, {v(G+2*i,2)}")
        for i in range(8): A(f"v_pk_fma_f32 {v(T1+2*i,2)}, {v(T1+2*i,2)}, {s(sC,2)}, {v(vT0,2)}")
        for i in range(8): A(f"v_pk_mul_f32 {v(U1[i],2)}, {v(U+2*i,2)}, {v(G+2*i,2)}")
        for i in range(8): A(f"v_pk_mul_f32 {v(T1+2*i,2)}, {v(T1+2*i,2)}, {v(G+2*i,2)}")
        A("s_setprio 0")
    def gelu2_groups(b):
        L = [f"v_exp_f32 v{T1+i}, v{T1+i}" for i in range(16)]
        L += [f"v_pk_add_f32 {v(T1+2*i,2)}, {v(T1+2*i,2)}, 1.0 op_sel_hi:[1,0]" for i in range(8)]
        L += [f"v_rcp_f32 v{T1+i}, v{T1+i}" for i in range(16)]
        L += [f"v_pk_mul_f32 {v(U1[i],2)}, {v(U1[i],2)}, {v(T1+2*i,2)}" for i in range(8)]
        L += [f"v_cvt_pk_bf16_f32 v{T1+i}, v{U1[i]}, v{U1[i]+1}" for i in range(8)]
        sizes = [4, 4, 4, 4, 8, 4, 4, 4, 4, 8, 8]
        G_ = []
        for n in sizes:
            grp = L[:n]; L = L[n:]
            G_.append(lambda grp=grp: A("s_setprio 3\n" + "\n".join(grp) + "\ns_setprio 0"))
        def store():
            l = lab("hskip")
            if b == 0: A(f"s_cmp_eq_u32 s{sNb}, 3\ns_cbranch_scc1 {l}")
            if b == 2: A(f"s_add_u32 s{sT0}, s{sCG}, s{sNI}\ns_cmp_eq_u32 s{sT0}, 8\ns_cbranch_scc1 {l}")
            A(f"s_add_u32 s{sT0}, s{sHst}, {b*4096}")
            A(f"buffer_store_dwordx4 {v(T1,4)}, v{vL16}, {ws}, s{sT0} offen sc1")
            A(f"buffer_store_dwordx4 {v(T1+4,4)}, v{vL16}, {ws}, s{sT0} offen offset:1024 sc1")
            A.label(l)
            vmq.since = 0
        return G_ + [store]
    def send_flag(b):
        def f():
            n = min(vmq.since, 63)
            A(f"s_waitcnt vmcnt({n})"); vmq.waited(n)
            A(f"s_add_u32 s{sT0}, s{sHfl}, {b*4096}\ns_mov_b64 exec, 1\nbuffer_store_dword v{vFl}, v{vT2}, {ws}, s{sT0} offen sc1\ns_mov_b64 exec, -1")
        return f
    NH = 12
    def hload(t):
        b = 8 * (t % NH)
        if DSEQ[t] == 21:
            A(f"s_and_b32 s{sT2}, s{sGW}, 2\ns_lshl_b32 s{sT2}, s{sT2}, 10\ns_sub_u32 s{sT2}, s{sHb}, s{sT2}\ns_add_u32 s{sT2}, s{sT2}, {DSEQ[t]*4096}")
        else:
            A(f"s_add_u32 s{sT2}, s{sHb}, {DSEQ[t]*4096}")
        A(f"buffer_load_dwordx4 {a(b,4)}, v{vL16}, {ws}, s{sT2} offen sc1")
        A(f"buffer_load_dwordx4 {a(b+4,4)}, v{vH1}, {ws}, s{sT2} offen sc1")
        vmq.push(("h", t), 2)
    def hflag_issue(c):
        A(f"s_add_u32 s{sT2}, s{sHld}, {c*4096}\ns_mov_b64 exec, {hex(CMASK[c])}")
        A(f"buffer_load_dword v{vHF}, v{vL128}, {ws}, s{sT2} offen sc1\ns_mov_b64 exec, -1")
        vmq.push(("hf", c))
    def hflag_check(c):
        vwait(("hf", c))
        l = f"L_hf{c}"
        A(f"s_setprio 3\nv_cmp_ne_u32 vcc, s{sTag}, v{vHF}\ns_setprio 0\ns_and_b32 vcc_lo, vcc_lo, {hex(CMASK[c])}\ns_cbranch_scc1 {l}_s")
        A.label(l + "_b")
        def sp():
            A.label(l + "_s")
            A(f"s_add_u32 s{sT2}, s{sHld}, {c*4096}\ns_setprio 3")
            spin_flags(l, vHF, vL128, sT2, hex(CMASK[c]), sleep=8)
            A(f"s_setprio 0\ns_branch {l}_b")
        slow.append(sp)
    def p4(ni):
        def f():
            l = lab("p4")
            A(f"""
            s_cmp_lg_u32 s{sNI}, {ni}
            s_cbranch_scc1 {l}_x
            s_and_b32 s{sT0}, s{sRB}, 7
            s_lshl_b32 s{sT1}, s{sCG}, 7
            s_cmp_eq_u32 s{sGW}, 3
            s_cbranch_scc1 {l}_o
            s_mul_i32 s{sT0}, s{sT0}, {172*1024}
            s_add_u32 s{sT0}, s{sT0}, s{sT1}
            s_lshl_b32 s{sT1}, s{sGW}, 16
            s_add_u32 s{sT0}, s{sT0}, s{sT1}
            buffer_load_dword v143, v{vXR}, {s(sWd,4)}, s{sT0} offen
            s_branch {l}_x
            """)
            A.label(l + "_o")
            A(f"s_lshl_b32 s{sT0}, s{sT0}, 16\ns_add_u32 s{sT0}, s{sT0}, s{sT1}\nbuffer_load_dword v143, v{vXR}, {s(sWo,4)}, s{sT0} offen")
            A.label(l + "_x")
        return f
    allp = []
    for g in range(NG0, 39): allp += [(g, p) for p in dma_pieces(*ffn_dd(g))]
    T0 = opt.get("t0", 2); RATE = opt.get("rate", 6)
    sched = []
    for st in range(35):
        take = []
        if st >= T0:
            while allp and allp[0][0] <= st + LOOK and len(take) < RATE: take.append(allp.pop(0)[1])
        sched.append(take)
        if st == 7: assert allp[0][0] == 8 + LOOK and len([1 for g, _ in allp if g == 8 + LOOK]) == 4
    assert not allp
    stages = []
    post = {}
    for st in range(35):
        frags = []
        if st < 24:
            for kk in range(4):
                ks = (st % 8) * 4 + kk
                for p, acc in enumerate((ACC0, ACC1)):
                    c = "0" if ks == 0 else v(acc, 16)
                    frags.append((vTRn, vTRnH, p * 8192 + kk * 2048, p * 8192 + kk * 2048 + 512, [f"{MF} {v(acc,16)}, {{w}}, {xn(ks)}, {c}"]))
        else:
            for kk in range(2):
                t = 2 * (st - 24) + kk; b = 8 * (t % NH)
                for ni, (lo, hi) in enumerate(((vTRp0, vTRp0H), (vTRp1, vTRp1H))):
                    ms = [(lambda t=t: vwait(("h", t)))] if ni == 0 else []
                    for mi in range(2):
                        d = AD1[2 * ni + mi]; c = "0" if t == 0 else d
                        ms.append(f"{MF} {d}, {{w}}, {a(b+4*mi,4)}, {c}")
                    frags.append((lo, hi, kk * 2048, kk * 2048 + 1024, ms))
        nx = ffn_dd(st + 1)
        stages.append(dict(slot=gslot(st), frags=frags, pieces=sched[st], nxt=("dma", nx[0], nx[1]),
                           sync=(st <= 25), pub=(st <= 24), pubat=(0 if st >= 23 else opt.get("pubat", 2)),
                           waitat=(3 if st >= 24 else (6 if st == 23 else opt.get("pubat", 2)))))
    assert LOOK <= 6
    stages[T0]["pre"] = lambda: check(True, 1024, 12 + NG0 + 1)
    stages[8]["label"] = "L_ffn8"
    hooks = {}
    for b in range(3):
        st0 = 8 * (b + 1)
        stages[st0]["frags"][0][4].insert(0, gelu1)
        grp = gelu2_groups(b)
        pos = [(si, fi, k) for si in (st0, st0 + 1, st0 + 2) for fi, fr in enumerate(stages[si]["frags"]) for k, m in enumerate(fr[4]) if not callable(m)]
        if b == 2: pos = [p_ for p_ in pos for _ in range(2)]
        for (si, fi, k), g_ in reversed(list(zip(pos, grp))):
            stages[si]["frags"][fi][4].insert(k + 1, g_)
        hooks[(st0 + 3, 3) if b < 2 else (26, 1)] = send_flag(b)
    if opt.get("p4", 1): hooks[(opt.get("p4a", 10), 1)] = p4(0); hooks[(opt.get("p4b", 14), 1)] = p4(1)
    HL = opt.get("hl", 5)
    def hpos(t):
        u = t - HL
        if u >= 0: return (24 + u // 2, 2 * (u % 2) + 1)
        return (24 + (u // 2), 4 * (u % 2) + 1)
    for t in range(22):
        fs = []
        if t in CSTART: fs.append(lambda c=CSTART[t]: hflag_check(c))
        fs.append(lambda t=t: hload(t))
        if t + 2 in CSTART: fs.append(lambda c=CSTART[t + 2]: hflag_issue(c))
        old = hooks.get(hpos(t))
        if old: fs.insert(0, old)
        hooks[hpos(t)] = (lambda fs=fs: [f() for f in fs])
    p0 = hpos(0); hooks[(p0[0] - 1, 3)] = lambda: hflag_issue(0)
    if stamps:
        for st in (8, 16, 24): hooks[(st, 0)] = ST
    segment(stages, hooks)
    lowprio[0] = False
    ST()
    if opt.get("atrace"):
        A(f"s_lshl_b32 s{sT0}, s2, 4\ns_add_u32 s{sT0}, s{sT0}, s{sWave}\ns_lshl_b32 s{sT0}, s{sT0}, 8\ns_add_u32 s{sT0}, s{sT0}, {STAMP+MB}\nv_lshlrev_b32 v141, 2, v{vL}\nbuffer_store_dword v142, v141, {ws}, s{sT0} offen\ns_waitcnt vmcnt(0)")
    vwait(("dma", "o", 3))
    for i in range(8):
        slot = gslot(35 + i // 2); base = slot * SLOT
        for ni, (lo, hi) in enumerate(((vTRp0, vTRp0H), (vTRp1, vTRp1H))):
            reg, b = (lo, base) if base < 65536 else (hi, base - 65536)
            lds(f"ds_read_b64_tr_b16 {a(8*i+4*ni,2)}, v{reg} offset:{b + (i%2)*2048}", "wo")
            lds(f"ds_read_b64_tr_b16 {a(8*i+4*ni+2,2)}, v{reg} offset:{b + (i%2)*2048 + 1024}", "wo")
    lds(f"ds_add_u32 v{vCnt}, v{vOne}", "add")
    A(f"""
    s_setprio 3
    s_mov_b32 s{sC}, {hex(f2u(-1.4426950408889634))}
    s_mov_b32 s{sC+1}, {hex(f2u(-1.4426950408889634))}
    """)
    def reduce_tile(dst, src):
        check(True)
        for ni in range(2):
            for mi in range(2):
                for q in range(4):
                    k_, b_ = src[2 * ni + mi]
                    lds(f"ds_write_b128 v{vRW}, {k_(b_+4*q,4)} offset:{mi*32*RS + ni*128 + q*32}", "w")
        lds(f"ds_add_u32 v{vCnt}, v{vOne}", "add")
        check(True)
        for p in range(2):
            for w in range(4):
                off = w * RBY + p * 32 * RS; b = AD + 32 * p + 8 * w
                lds(f"ds_read_b128 {v(b,4)}, v{vRR} offset:{off}", ("r", p))
                lds(f"ds_read_b128 {v(b+4,4)}, v{vRR} offset:{off+16}", ("r", p))
        lds(f"ds_add_u32 v{vCnt}, v{vOne}", "add")
        for p in range(2):
            lwait(("r", p))
            b = AD + 32 * p
            for i in range(4):
                A(f"v_pk_add_f32 {v(b+2*i,2)}, {v(b+2*i,2)}, {v(b+8+2*i,2)}")
                A(f"v_pk_add_f32 {v(b+16+2*i,2)}, {v(b+16+2*i,2)}, {v(b+24+2*i,2)}")
            for i in range(4):
                A(f"v_pk_add_f32 {v(dst+8*p+2*i,2)}, {v(b+2*i,2)}, {v(b+16+2*i,2)}")
    reduce_tile(GR, [(v, 40), (v, 56), (v, 96), (a, 96)])
    A(f"""
    s_add_u32 s{sT2}, s{sXo}, 32768
    buffer_load_dwordx4 {v(XR,4)}, v{vXo}, {s(sX,4)}, s{sXo} offen
    buffer_load_dwordx4 {v(XR+4,4)}, v{vXo}, {s(sX,4)}, s{sT2} offen
    """)
    Tv = AD
    for i in range(8): A(f"v_pk_mul_f32 {v(Tv+2*i,2)}, {v(GR+2*i,2)}, {s(sC,2)}")
    for i in range(16): A(f"v_exp_f32 v{Tv+i}, v{Tv+i}")
    A("s_nop 0")
    for i in range(8): A(f"v_pk_add_f32 {v(Tv+2*i,2)}, {v(Tv+2*i,2)}, 1.0 op_sel_hi:[1,0]")
    for i in range(16): A(f"v_rcp_f32 v{Tv+i}, v{Tv+i}")
    A("s_nop 0")
    for i in range(8): A(f"v_pk_mul_f32 {v(GR+2*i,2)}, {v(GR+2*i,2)}, {v(Tv+2*i,2)}")
    ST()
    A(f"""
    s_lshl_b32 s{sT2}, s{sRB}, 12
    s_lshl_b32 s{sT0}, s{sGW}, 10
    s_add_u32 s{sT2}, s{sT2}, s{sT0}
    s_add_u32 s{sT2}, s{sT2}, {FO}
    s_lshl_b32 s7, s{sRB}, 16
    s_lshl_b32 s{sT0}, s{sGW}, 13
    s_add_u32 s7, s7, s{sT0}
    s_add_u32 s7, s7, {OF}
    s_add_u32 s6, s7, 4096
    s_lshl_b32 s{sT0}, s{sGW}, 9
    s_add_u32 s{sT0}, s{sT0}, {AFL+256}
    v_mov_b32 v{vP}, s{sT0}
    """)
    lds_spin("L_ow", vHF, vP, 0, f"v_cmp_eq_u32 vcc, 0, v{vHF}", sleep=4)
    spin_flags("L_of", vHF, vL128, sT2, 8, sleep=2)
    ST()
    def of(i, mi):
        k = 8 * i + 4 * mi
        return a(64 + k, 4) if k < 48 else v(112 + k - 48, 4)
    for i in range(8):
        so = 7 if i < 4 else 6
        A(f"buffer_load_dwordx4 {of(i,0)}, v{vL16}, {ws}, s{so} offen offset:{(i%4)*1024} sc1")
        A(f"buffer_load_dwordx4 {of(i,1)}, v{vO1}, {ws}, s{so} offen offset:{(i%4)*1024} sc1")
    for i in range(8):
        A(f"s_waitcnt vmcnt({14-2*i})")
        for ni in range(2):
            for mi in range(2):
                d = v(AD + 16 * (2 * ni + mi), 16); c = "0" if i == 0 else d
                A(f"{MF} {d}, {a(8*i+4*ni,4)}, {of(i,mi)}, {c}")
    A("s_nop 7")
    reduce_tile(SR, [(v, AD + 16 * i) for i in range(4)])
    A(f"s_add_u32 s{sT2}, s{sXo}, 32768")
    for p in range(2):
        for i in range(4):
            A(f"v_lshlrev_b32 v{Tv+2*i}, 16, v{XR+4*p+i}")
            A(f"v_and_b32 v{Tv+2*i+1}, 0xffff0000, v{XR+4*p+i}")
        for i in range(4):
            A(f"v_pk_fma_f32 {v(Tv+2*i,2)}, {v(SR+8*p+2*i,2)}, {v(GR+8*p+2*i,2)}, {v(Tv+2*i,2)}")
        for i in range(4):
            A(f"v_cvt_pk_bf16_f32 v{XR+4*p+i}, v{Tv+2*i}, v{Tv+2*i+1}")
        A(f"buffer_store_dwordx4 {v(XR+4*p,4)}, v{vXo}, {s(sOut,4)}, s{sXo if p == 0 else sT2} offen")
    if stamps:
        ST.on = True
        if not FR: ST(); ST.flush(ws, STAMP, sWave, 2, 3, sT0)
        if opt.get("dbgout"):
            A(f"s_cmp_lg_u32 s2, {opt['dbgout']-1}\ns_cbranch_scc1 L_dbx\ns_cmp_lg_u32 s{sWave}, 4\ns_cbranch_scc1 L_dbx\nv_mov_b32 v2, 0")
            for i in range(1, ST.n):
                A(f"s_sub_u32 s4, s{ST.base+2*i}, s{ST.base}\nv_mov_b32 v3, s4\nbuffer_store_dword v3, v2, {s(sDbg,4)}, 0 offen offset:{4*i}\ns_nop 1")
            A.label("L_dbx")
    A("s_endpgm")
    for f in slow: f()
    slow.clear()

    ST.n = 2 if stamps else 0
    A.label("L_attn")
    lq.clear(); vmq.clear()
    for g in range(NEARLY): vmq.push(("dma", "q", g), 4)
    def pub_ld(g):
        d = ddq(g); vwait(("dma", d[0], d[1])); lds(f"ds_add_u32 v{vCnt}, v{vOne}", "add")
    def FS():
        if FR: ST()
    def p2():
        A(f"s_mov_b64 exec, {PF2MASK}\nbuffer_load_dword v143, v30, {s(sWgu,4)}, s68 offen\ns_mov_b64 exec, -1"); vmq.push("pf")
    FS()
    NB4 = opt.get("nb4", 4)
    for g in range(NEARLY, NB4):
        dma(*ddq(g))
        if g == opt.get("p1at", 3):
            A(f"s_mov_b64 exec, {'0xffff0000' if opt.get('p1kv', 1) else '0xffffffff'}\nbuffer_load_dword v143, v{aP3}, {s(sWq,4)}, s7 offen\ns_mov_b64 exec, -1"); vmq.push("pf")
            if opt.get("p2early", 1): p2()
    pub_ld(0)
    A("s_waitcnt lgkmcnt(0)\ns_barrier"); lq.clear()
    ST()
    for g in range(1, NB4): pub_ld(g)
    for g in range(NB4, 5): dma(*ddq(g))
    FS()
    A(GUADDR)
    A(f"""
    s_and_b32 s{sT0}, s2, 7
    s_lshr_b32 s{sT1}, s2, 3
    s_and_b32 s{sT2}, s{sT1}, 3
    s_lshl_b32 s{sHead}, s{sT0}, 2
    s_add_u32 s{sHead}, s{sHead}, s{sT2}        ; head
    s_lshr_b32 s{sT1}, s{sT1}, 2
    s_lshl_b32 s{sT1}, s{sT1}, 1
    s_add_u32 s{sT1}, s{sT1}, s{sMI}
    s_lshr_b32 s4, s{sWave}, 1
    s_lshl_b32 s5, s{sHead}, 16
    s_lshl_b32 s{sQ}, s{sT1}, 12
    s_add_u32 s{sQ}, s{sQ}, s5
    s_lshl_b32 s6, s4, 11
    s_add_u32 s{sQ0}, s{sQ}, s6
    s_xor_b32 s6, s6, 2048
    s_add_u32 s{sQ}, s{sQ}, s6
    s_lshl_b32 s{sT1}, s{sT1}, 1
    s_add_u32 s{sT1}, s{sT1}, s4
    s_lshl_b32 s{sO}, s{sT1}, 16
    s_lshl_b32 s{sT0}, s{sHead}, 10
    s_add_u32 s{sO}, s{sO}, s{sT0}
    s_add_u32 s{sO}, s{sO}, {OF}
    s_lshl_b32 s{sFo}, s{sT1}, 12
    s_lshl_b32 s{sT0}, s{sHead}, 7
    s_add_u32 s{sFo}, s{sFo}, s{sT0}
    s_add_u32 s{sFo}, s{sFo}, {FO}
    s_add_u32 s{sKb}, s5, {KF}
    s_lshl_b32 s{sT0}, s4, 15
    s_add_u32 s{sKVb}, s{sKb}, s{sT0}
    v_mov_b32 v{vK}, v{vL16}
    v_lshrrev_b32 v{vV}, 5, v{vL}
    v_lshlrev_b32 v{vV}, 8, v{vV}
    v_and_b32 v{aPKV}, 15, v{vL}
    v_lshl_add_u32 v{vV}, v{aPKV}, 4, v{vV}
    v_add_u32 v{vV}, {VF-KF}, v{vV}
    s_mov_b32 s{sMask}, 0x0000ffff
    s_mov_b32 s{sMask+1}, 0x0000ffff
    s_mov_b32 s{sFB}, 1
    s_mov_b32 s{sOff}, {hex(f2u(-OFFSET))}
    v_mov_b32 v{vIdx}, 0xdddddddd
    v_and_b32 v{aOnes}, 27, v{vL}
    v_cmp_eq_u32 vcc, 16, v{aOnes}
    v_mov_b32 v{aOnes}, 0x3f803f80
    s_lshr_b32 s{sFQ}, s{sHead}, 1
    v_cndmask_b32 v{aOnes}, 0, v{aOnes}, vcc
    s_lshl_b32 s{sFQ}, s{sFQ}, 13
    s_add_u32 s{sFQ}, s{sFQ}, {FQ}
    v_lshlrev_b32 v{aL128}, 7, v{vL}
    s_lshr_b32 s{sPKV}, s2, 5
    s_lshl_b32 s{sPKV}, s{sPKV}, 2
    s_add_u32 s{sPKV}, s{sPKV}, s{sWave}
    s_lshl_b32 s{sPKV}, s{sPKV}, 11
    s_add_u32 s{sPKV}, s{sPKV}, s{sKb}          ; K/V slice
    v_lshlrev_b32 v{aPKV}, 7, v{aPKV}
    v_bfe_u32 v{aPF}, v{vL}, 4, 1
    v_lshl_add_u32 v{aPKV}, v{aPF}, 21, v{aPKV}
    """)
    assert VF - KF == 1 << 21
    for g in range(NB4, 5): pub_ld(g)
    check(True, 0, 1)
    FS()
    NPRE = 12 + NG0
    for g in range(5, NPRE):
        if g >= 9: check(True, 0, g - 7)
        if g == 12:
            pub_ld(11)
            if not opt.get("p2early", 1): p2()
        dma(*ddq(g))
        if g >= 7 and g < 16: FS()
        if g > 5 and g != 12: pub_ld(g - 1)
    pub_ld(NPRE - 1)
    for x in VRG:
        for i in range(8):
            A(f"v_accvgpr_write_b32 a{x[1]+i}, v{aOnes}" if x[0] == "a" else f"v_mov_b32 v{x[1]+i}, v{aOnes}")
    zero_o()
    if FR: ST(); ST.flush(ws, STAMP, sWave, 2, 3, sT0); A("s_endpgm"); ST.on = False; stamps = False
    if opt.get("aexit"): A("s_waitcnt lgkmcnt(0)\ns_endpgm")
    get_tag(vF, vT1, "L_atag")
    A(f"s_setprio 2\ns_cmp_lg_u32 s{sWave}, 0\ns_cbranch_scc1 L_aw")
    lds_spin("L_ag2", M, vCntR, 0, f"v_cmp_gt_u32 vcc, 12, v{M}", sleep=1)
    ST()
    spin_flags("L_qf", vF, aL128, sFQ, 64, sleep=2)
    A(f"ds_write_b32 v{aGo}, v{vOne}\ns_branch L_aw_x")
    A.label("L_aw")
    if stamps: ST.n -= 1; ST()
    lds_spin("L_ag3", M, aGo, 0, f"v_cmp_eq_u32 vcc, 0, v{M}", sleep=1)
    A.label("L_aw_x")
    ST()
    def so_imm(rel): return (sKA, (rel - 4) * 1024) if rel < 8 else (sKB2, (rel - 8) * 1024)
    KVM = opt.get("kvm", " sc1")
    def kload(r, so, imm): A(f"buffer_load_dwordx4 {rg(KRG[r])}, v{vK}, {ws}, s{so} offen offset:{imm}{KVM}")
    def vload(r, so, imm):
        A(f"s_mov_b64 exec, {s(sMask,2)}")
        A(f"buffer_load_dwordx4 {rg(VRG[r])}, v{vV}, {ws}, s{so} offen offset:{imm}{KVM}")
        A(f"buffer_load_dwordx4 {rg(VRG[r],4)}, v{vV}, {ws}, s{so} offen offset:{imm+512}{KVM}")
        A(f"s_mov_b64 exec, -1")
    E0 = 3
    def ring_prologue():
        A(f"s_add_u32 s{sKA}, s{sKVb}, {4096 - E0*1024}\ns_add_u32 s{sKB2}, s{sKVb}, {8192 - E0*1024}")
        for b in range(5):
            if b < 4: kload((E0 + b) % NR, sKVb, b * 1024); vload((E0 + b) % NR, sKVb, b * 1024)
            else: kload((E0 + b) % NR, sKA, 3072)
    A(f"buffer_load_dwordx4 {a(KS,4)}, v{vK}, {ws}, s{sKb} offen sc1")
    A(f"buffer_load_dwordx4 {a(KS+4,4)}, v{vK}, {ws}, s{sKb} offen offset:1024 sc1")
    for t in range(4):
        A(f"buffer_load_dwordx4 {a(Q+4*t,4)}, v{vK}, {ws}, s{sQ0 if t < 2 else sQ} offen offset:{(t&1)*1024} sc1")
    ring_prologue()
    A(f"ds_add_u32 v{vCnt}, v{vOne}")
    npf = 0
    if opt.get("pkv", 1):
        A(f"s_mov_b64 exec, 0xffffffff\nbuffer_load_dword v143, v{aPKV}, {ws}, s{sPKV} offen{KVM}\ns_mov_b64 exec, -1"); npf += 1
    A(f"s_waitcnt vmcnt({13+npf})")
    def maxtree(dst, blocks, first):
        regs = [b + i for b in blocks for i in range(16)]
        if first:
            A(f"v_max3_f32 v{dst}, v{regs[0]}, v{regs[1]}, v{regs[2]}"); regs = regs[3:]
        while len(regs) >= 2:
            A(f"v_max3_f32 v{dst}, v{dst}, v{regs[0]}, v{regs[1]}"); regs = regs[2:]
        if regs: A(f"v_max_f32 v{dst}, v{dst}, v{regs[0]}")
    for t in range(2): A(f"{MF} {v(SB+16*t,16)}, {a(KS+4,4)}, {a(Q+4*t,4)}, 0")
    for t in range(4): A(f"{MF} {v(C+16*t,16)}, {a(KS,4)}, {a(Q+4*t,4)}, 0")
    A("s_nop 6")
    for t in range(2): maxtree(M + t, [SB + 16 * t], True)
    for t in range(2): A(f"{MF} {v(SB+16*t,16)}, {a(KS+4,4)}, {a(Q+8+4*t,4)}, 0")
    for t in range(2): maxtree(M + t, [C + 16 * t], False)
    for t in range(2, 4): maxtree(M + t, [C + 16 * t, SB + 16 * (t - 2)], True)
    zero_o(8)
    A.label("L_amain")
    for t in range(4): A(f"v_mov_b32 v{2+t}, v{M+t}")
    A("s_nop 1")
    for t in range(4): A(f"v_permlane32_swap_b32 v{2+t}, v{M+t}")
    for t in range(4): A(f"v_max_f32 v{M+t}, v{M+t}, v{2+t}")
    for t in range(4): A(f"v_sub_f32 v{M+t}, s{sOff}, v{M+t}")
    for i in range(16): A(f"v_mov_b32 v{C+i}, v{M}")
    A("s_waitcnt vmcnt(10)")
    A(f"s_mov_b32 s{sCnt}, 7")
    A(f"{MF} {v(SB,16)}, {rg(KRG[E0])}, {a(Q,4)}, {v(C,16)}")
    for t in range(1, 4):
        for i in range(16): A(f"v_mov_b32 v{C+16*t+i}, v{M+t}")
    for i in range(8): A(f"v_mov_b32 v{SB+16+8+i}, 0")
    ST()
    if stamps: A("s_memtime s[96:97]")
    if opt.get("atrace"): A("s_mov_b32 s64, 0\ns_memrealtime s[66:67]")
    A("s_branch L_aent")
    A.raw(".p2align 6")
    A.label("L_aloop")
    for r in range(NR):
        if r == E0: A.label("L_aent")
        for t in range(4):
            X = SB + 16 * (t & 1); Y = SB + 16 * ((t + 1) & 1)
            tn = (t + 1) & 3; rn = r if t < 3 else (r + 1) % NR
            tp = (t - 1) & 3; rp = r if t > 0 else (r - 1) % NR
            E = lambda j: f"v_exp_f32 v{X+j}, v{X+j}"
            for j in range(0, 3): A(E(j))
            A(f"{SMF} {a(O+16*tp,16)}, {rg(VRG[rp],4)}, {v(Y+8,8)}, v{vIdx}")
            A(E(3))
            if t == 0: vload(rp, *so_imm(r + 4))
            if t == 3: kload(r, *so_imm(r + 5))
            for j in range(4, 7): A(E(j))
            if t == 1 and opt.get("atrace"):
                A("s_waitcnt lgkmcnt(0)\ns_mov_b32 m0, s64\ns_add_u32 s64, s64, 1\nv_writelane_b32 v140, s66, m0\ns_memrealtime s[66:67]")
            if t == 3: A("s_waitcnt vmcnt(10)")
            A(f"{MF} {v(Y,16)}, {rg(KRG[rn])}, {a(Q+4*tn,4)}, {v(C+16*tn,16)}")
            for j in range(7, 12): A(E(j))
            A(f"{SMF} {a(O+16*t,16)}, {rg(VRG[r])}, {v(X,8)}, v{vIdx}")
            if r == NR - 1 and t == 3:
                A(E(12))
                A(f"s_add_u32 s{sKA}, s{sKA}, 5120\ns_add_u32 s{sKB2}, s{sKB2}, 5120\ns_sub_u32 s{sCnt}, s{sCnt}, 1\ns_cmp_lg_u32 s{sCnt}, 0")
                for j in range(13, 16): A(E(j))
            else:
                for j in range(12, 16): A(E(j))
    A("s_cbranch_scc1 L_aloop")
    A("s_nop 1")
    A(f"{SMF} {a(O+48,16)}, {rg(VRG[NR-1],4)}, {v(SB+16+8,8)}, v{vIdx}")
    ST()
    if stamps: A("s_memtime s[98:99]")
    A(f"""
    s_mul_i32 s{sT0}, s{sWave}, {CMBW}
    s_add_u32 s{sT0}, s{sT0}, {CMB}
    v_add_u32 v2, s{sT0}, v{vK}
    v_lshl_add_u32 v3, v{vL}, 2, s{sT0}
    s_xor_b32 s{sT0}, s{sWave}, 2
    s_mul_i32 s{sT0}, s{sT0}, {CMBW}
    s_add_u32 s{sT0}, s{sT0}, {CMB}
    v_add_u32 v4, s{sT0}, v{vK}
    v_lshl_add_u32 v5, v{vL}, 2, s{sT0}
    v_mov_b32 v{vF}, s{sFB}
    """)
    for i in range(2):
        t = 2 + i
        if i == 1: A("s_nop 0")
        A(f"ds_write_b128 v2, {a(O+16*t,4)} offset:{i*2304}")
        A(f"ds_write_b128 v2, {a(O+16*t+4,4)} offset:{i*2304+1024}")
        A(f"ds_write_b32 v3, a{O+16*t+8} offset:{i*2304+2048}")
    A(f"ds_write_b32 v{vAF}, v{vF}")
    for i in range(2):
        for e in range(9): A(f"v_accvgpr_read_b32 v{C+24*i+e}, a{O+16*i+e}")
    lds_spin("L_ax", M, vPF, 0, f"v_cmp_gt_u32 vcc, s{sFB}, v{M}")
    for i in range(2):
        b = C + 24 * i + 12
        A(f"ds_read_b128 {v(b,4)}, v4 offset:{i*2304}")
        A(f"ds_read_b128 {v(b+4,4)}, v4 offset:{i*2304+1024}")
        A(f"ds_read_b32 v{b+8}, v5 offset:{i*2304+2048}")
    A(f"""
    v_mov_b32 v2, 0
    s_mov_b64 {s(sBad,2)}, 0
    s_mov_b32 s4, {hex(f2u(2.0**-110))}
    s_mov_b32 s5, {hex(f2u(2.0**120))}
    s_add_u32 s6, s{sO}, 32768
    s_waitcnt lgkmcnt(0)
    """)
    for i in range(2):
        b0 = C + 24 * i
        for e in range(9): A(f"v_add_f32 v{b0+e}, v{b0+e}, v{b0+12+e}")
        A(f"v_rcp_f32 v{b0+9}, v{b0+8}")
        A(f"v_cmp_nle_f32 vcc, s4, v{b0+8}")
        A(f"s_or_b64 {s(sBad,2)}, {s(sBad,2)}, vcc")
        A(f"v_cmp_nge_f32 vcc, s5, v{b0+8}")
        A(f"s_or_b64 {s(sBad,2)}, {s(sBad,2)}, vcc")
        for e in range(8): A(f"v_mul_f32 v{b0+e}, v{b0+e}, v{b0+9}")
        for e in range(4): A(f"v_cvt_pk_bf16_f32 v{b0+12+e}, v{b0+2*e}, v{b0+2*e+1}")
        A(f"buffer_store_dwordx4 {v(b0+12,4)}, v{vK}, {ws}, s{sO if i == 0 else 6} offen sc1")
    for i in range(2):
        for e in range(8): A(f"v_fma_f32 v2, v{C+24*i+e}, 0, v2")
    A(f"""
    v_cmp_u_f32 vcc, v2, v2
    s_or_b64 {s(sBad,2)}, {s(sBad,2)}, vcc
    s_cmp_lg_u64 {s(sBad,2)}, 0
    s_cselect_b32 s4, 2, 1
    v_mov_b32 v2, s4
    v_mov_b32 v3, s{sTag}
    v_mov_b32 v4, 0
    ds_write_b32 v{vAF}, v2 offset:256
    s_cmp_eq_u32 s{sFB}, 2
    s_cselect_b32 s5, 1, s4
    s_cmp_lg_u32 s5, 1
    s_cbranch_scc1 L_anoflag
    s_waitcnt vmcnt(0)
    s_mov_b64 exec, 1
    buffer_store_dword v3, v4, {ws}, s{sFo} offen sc1
    s_mov_b64 exec, -1
    """)
    A.label("L_anoflag")
    if stamps:
        ST(); A("s_waitcnt lgkmcnt(0)\ns_sub_u32 s98, s98, s96\ns_add_u32 s%d, s98, s%d" % (ST.base + 2 * ST.n, ST.base)); ST.n += 1
        ST.flush(ws, STAMP, sWave, 2, 3, sT0)
        if opt.get("atrace"):
            A(f"s_add_u32 s{sT0}, s{sT0}, {MB}\nv_lshlrev_b32 v2, 2, v{vL}\nbuffer_store_dword v140, v2, {ws}, s{sT0} offen")
    A(f"s_cmp_eq_u32 s{sFB}, 2\ns_cbranch_scc1 L_end")
    lds_spin("L_as", M, vPF, 256, f"v_cmp_eq_u32 vcc, 0, v{M}")
    A(f"v_readfirstlane_b32 s5, v{M}\ns_max_u32 s4, s4, s5\ns_cmp_lt_u32 s4, 2\ns_cbranch_scc1 L_end")
    A(f"s_mov_b32 s{sFB}, 2\ns_mov_b32 s{sOff}, 0\ns_mov_b32 s{sCnt}, 64\ns_mov_b32 s{sKA}, s{sKb}\ns_waitcnt vmcnt(0)")
    for t in range(4): A(f"v_mov_b32 v{M+t}, 0xff800000")
    A.label("L_afb")
    A(f"buffer_load_dwordx4 {a(KS,4)}, v{vK}, {ws}, s{sKA} offen sc1")
    A("s_waitcnt vmcnt(0)")
    for t in range(4): A(f"{MF} {v(C+16*t,16)}, {a(KS,4)}, {a(Q+4*t,4)}, 0")
    A("s_nop 11")
    for t in range(4): maxtree(M + t, [C + 16 * t], False)
    A(f"s_add_u32 s{sKA}, s{sKA}, 1024\ns_sub_u32 s{sCnt}, s{sCnt}, 1\ns_cmp_lg_u32 s{sCnt}, 0\ns_cbranch_scc1 L_afb")
    vload((E0 - 1) % NR, sKVb, 0)
    A("s_waitcnt vmcnt(0)")
    ring_prologue()
    zero_o()
    A("s_branch L_amain")
    for f in slow: f()
    A.label("L_end")
    A("s_endpgm")
    A.raw(f".fill (51200 - (. - {K})) / 4, 4, 0xbf800000")

    H_ = Asm()
    H_.raw(f"; @launch grid=(256,1,1) block=(512,1,1) lds={LDS}")
    H_.raw('.amdgcn_target "amdgcn-amd-amdhsa--gfx950"\n.text')
    H_.lines += A.lines
    H_.raw(f""".section .rodata,"a"
.p2align 6
.amdhsa_kernel {K}
  .amdhsa_next_free_vgpr {NV+NA}
  .amdhsa_next_free_sgpr 102
  .amdhsa_accum_offset {NV}
  .amdhsa_group_segment_fixed_size 0
  .amdhsa_kernarg_size 80
  .amdhsa_user_sgpr_count 2
  .amdhsa_user_sgpr_kernarg_segment_ptr 1
  .amdhsa_system_sgpr_workgroup_id_x 1
.end_amdhsa_kernel""")
    txt = H_.text()
    check_hazards(txt)
    return txt

if __name__ == "__main__":
    base = {"pfgo": 1}
    open("mega_s.s", "w").write(build(True, base))
    open("mega.s", "w").write(build(False, base))
    open("mega_tr.s", "w").write(build(True, dict(base, atrace=1)))
    open("mega_dbg.s", "w").write(build(True, dict(base, dbgout=10)))
    open("mega_pt.s", "w").write(build(False, dict(base, pretouch=1)))
    open("mega_nc.s", "w").write(build(False, dict(base, cpf=0)))
    open("mega_b.s", "w").write(build(True, dict(base, p1kv=0, p2early=0)))
    open("mega_c.s", "w").write(build(True, dict(base, p1kv=1, p2early=0)))
    open("mega_d.s", "w").write(build(True, dict(base, p1kv=0, p2early=1)))
```

```python
import sys, struct
from asmlib import *
from layout import *
NAME = 'recurrent_scan__softmax_full_mha__glu_gated_geglu__prompt'
def f2u(x): return struct.unpack("<I", struct.pack("<f", x))[0]
MF = "v_mfma_f32_32x32x16_bf16"
SMF = "v_smfmac_f32_32x32x32_bf16"
C1 = -2.0 * 1.4426950408889634 * 0.7978845608028654
C2 = C1 * 0.044715
OFFSET = 80.0
NV, NA = 144, 112

SLOT = 16384
PIECE = 528
XT = 5 * SLOT
CMB = 131072
CMBW = 2 * 2304
CNT = 149504
LDC = CNT + 1024
AFL = LDC + 1024
GO = AFL + 8 * 256
LDS = GO + 256
RS = 272; RBY = 64 * RS
assert CMB + 4 * CMBW <= CNT

class Fifo:
    def __init__(self, cap): self.q = []; self.cap = cap; self.since = 0
    def push(self, tag, n=1): self.q += [tag] * n; self.since += n
    def need(self, tag):
        idx = [i for i, t in enumerate(self.q) if t == tag]
        if not idx: return None
        return min(len(self.q) - 1 - idx[-1], self.cap)
    def waited(self, n): self.q = self.q[max(0, len(self.q) - n):] if n else []
    def clear(self): self.q = []

def build(stamps=False, opt=None):
    opt = opt or {}
    TIMEOUT = opt.get("timeout", 200000)
    NG0 = opt.get('ng0', 4)
    PF2MASK = '0xffffffff'
    A = Asm()
    K = NAME + "_kernel"
    ST = Stamps(A, 70, stamps); ST.cyc = opt.get('cyc', False)
    sX, sWq, sWgu, sWd, sWo, sWS, sOut, sDbg = 8, 12, 16, 20, 24, 28, 32, 36
    sWave, sRB, sCG, sT0, sT1, sT2, sTag, sTO = 40, 41, 42, 43, 44, 45, 46, 47
    sGW, sMI, sNI, sM0, sQoff, sGoff, sDoff, sOoffW, sNeed, sFlag, sHst, sBlk, sNb = 48, 49, 50, 51, 52, 53, 54, 55, 56, 57, 58, 59, 60
    sHfl, sC, sD0, sD1, sHld, sXo, sHb, sSt = 61, 62, 64, 65, 66, 67, 68, 69
    sKA, sCnt, sKB2, sBad = 48, 51, 49, 52
    sFB, sOff, sQ, sKVb, sHead, sO, sKb, sFo = 50, 54, 55, 56, 57, 60, 61, 62
    sMask, sQ0, sFQ, sP3, sPKV = 58, 63, 65, 66, 67
    ws = s(sWS, 4)
    vL, vT0, vT1, vT2, vHF = 1, 2, 3, 4, 5
    vDq0, vDq1, vDg0, vDg1, vDd0, vDd1 = 6, 7, 8, 9, 10, 11
    vTRn, vTRnH, vTRp0, vTRp0H, vTRp1, vTRp1H = 12, 13, 14, 15, 16, 17
    vCnt, vOne, vP, vL16, vFl, vL128 = 18, 19, 20, 21, 22, 23
    vCntR = 0
    slow = []
    vKo, vVo, vH1, vO1, vXo, vRW, vRR, vXR = 24, 25, 26, 27, 28, 29, 30, 31
    WFB = [32, 36, 112, 116, 120, 124]
    if opt.get('twice'): WFB = [32, 128, 112, 116, 120, 124]
    ACC0, ACC1, TMP, AD, XR, GR, SR = 40, 56, 72, 40, 104, 128, 112
    vmq = Fifo(63); lq = Fifo(15)
    uid = [0]
    def lab(p):
        uid[0] += 1; return f"L_{p}{uid[0]}"
    def vwait(tag):
        n = vmq.need(tag)
        if n is not None: A(f"s_waitcnt vmcnt({n})"); vmq.waited(n)
    def lwait(tag):
        n = lq.need(tag)
        if n is not None: A(f"s_waitcnt lgkmcnt({n})"); lq.waited(n)
    def lds(instr, tag):
        if len(lq.q) >= 15:
            A("s_waitcnt lgkmcnt(12)"); lq.waited(12)
        A(instr); lq.push(tag)
    def timeout_exit(lbl):
        A(f"s_sub_u32 s{sTO}, s{sTO}, 1\ns_cmp_lt_i32 s{sTO}, 0\ns_cbranch_scc1 {lbl}")
    def emask(n): return n if isinstance(n, str) else ("-1" if n == 64 else hex((1 << n) - 1))

    A.raw(f".globl {K}\n.p2align 8\n.type {K},@function\n{K}:")
    F0 = opt.get("front0"); FR = opt.get("front")
    A(f"""
    s_cmp_ge_u32 s2, 256
    s_cbranch_scc1 L_end
    """)
    if opt.get("scr"):
        A("s_and_b32 s4, s2, 7\ns_lshl_b32 s4, s4, 3\ns_bfe_u32 s5, s2, 0x30003\ns_and_b32 s2, s2, 0xc0\ns_or_b32 s2, s2, s4\ns_or_b32 s2, s2, s5")
    A(f"""
    s_load_dwordx4 s[4:7], s[0:1], 0
    s_load_dwordx2 s[24:25], s[0:1], 16
    s_load_dwordx4 s[16:19], s[0:1], 32
    s_load_dwordx4 s[20:23], s[0:1], 48
    s_load_dwordx4 s[36:39], s[0:1], 64
    """)
    if opt.get("cpf", 1):
        A(f"""
        s_getpc_b64 s[8:9]
        s_lshr_b32 s10, s2, 3
        s_lshl_b32 s10, s10, 7
        s_add_u32 s8, s8, s10
        s_addc_u32 s9, s9, 0
        v_lshlrev_b32 v2, 12, v0
        v_add_co_u32 v2, vcc, s8, v2
        v_mov_b32 v3, s9
        v_cmp_gt_u32 s[10:11], 12, v0
        v_addc_co_u32 v3, vcc, 0, v3, vcc
        s_and_saveexec_b64 s[12:13], s[10:11]
        s_cbranch_execz L_nocpf
        global_load_dword v143, v[2:3], off
        L_nocpf:
        s_mov_b64 exec, -1
        """)
    ST()
    A(f"""
    v_lshrrev_b32 v{vT0}, 6, v0
    v_and_b32 v{vL}, 63, v0
    s_and_b32 s{sT0}, s2, 7
    v_readfirstlane_b32 s{sWave}, v{vT0}
    s_lshr_b32 s{sT1}, s2, 3
    s_lshr_b32 s{sRB}, s{sT0}, 1
    s_lshl_b32 s{sRB}, s{sRB}, 3
    s_and_b32 s{sT2}, s{sT1}, 7
    s_add_u32 s{sRB}, s{sRB}, s{sT2}
    s_and_b32 s{sCG}, s{sT0}, 1
    s_lshl_b32 s{sCG}, s{sCG}, 2
    s_lshr_b32 s{sT2}, s{sT1}, 3
    s_add_u32 s{sCG}, s{sCG}, s{sT2}
    v_lshrrev_b32 v{vT0}, 3, v{vL}
    v_and_b32 v{vT1}, 7, v{vL}                  ; 16B piece
    v_lshlrev_b32 v{vT2}, 10, v{vT0}
    v_lshl_add_u32 v5, v{vT1}, 4, v{vT2}
    s_lshl_b32 s{sT0}, s{sRB}, 16
    s_lshl_b32 s{sT1}, s{sWave}, 13
    s_add_u32 s{sT0}, s{sT0}, s{sT1}
    s_mov_b32 s{sX+2}, {S*D*2}
    s_mov_b32 s{sX+3}, 0x00020000
    s_mov_b32 s{sWq+2}, {D*1536*2}
    s_mov_b32 s{sWq+3}, 0x00020000
    s_and_b32 s{sGW}, s{sWave}, 3
    s_and_b32 s{sMI}, s{sGW}, 1
    v_lshlrev_b32 v{vL16}, 4, v{vL}
    s_lshl_b32 s{sT1}, s{sGW}, 2
    s_add_u32 s{sT1}, s{sT1}, {CNT}
    v_add_u32 v{vCnt}, s{sT1}, v{vL16}
    v_mov_b32 v{vOne}, 1
    v_and_b32 v{vFl}, 3, v{vL}
    v_bfe_u32 v{vXo}, v0, 3, 5
    v_lshl_add_u32 v{vCntR}, v{vFl}, 2, v{vL16}
    v_add_u32 v{vCntR}, {CNT}, v{vCntR}
    s_mov_b32 s{sTO}, {TIMEOUT}
    s_waitcnt lgkmcnt(0)
    s_mov_b32 s{sX}, s4
    s_mov_b32 s{sX+1}, s5
    s_mov_b32 s{sWq}, s6
    s_mov_b32 s{sWq+1}, s7
    """)
    R = 40
    for cb in range(8):
        A(f"buffer_load_dwordx4 {v(R+4*cb,4)}, v5, {s(sX,4)}, s{sT0} offen offset:{cb*128}")
    SRDS = f"""
    s_mov_b32 s{sWS}, s38
    s_mov_b32 s{sWS+1}, s39
    s_mov_b32 s{sWS+2}, {WS_USED}
    s_mov_b32 s{sWS+3}, 0x00020000
    s_mov_b32 s{sDbg+2}, 256
    s_mov_b32 s{sDbg+3}, 0x00020000
    s_bitcmp1_b32 s{sWave}, 1
    s_cselect_b32 s{sWgu}, s18, s16
    s_cselect_b32 s{sWgu+1}, s19, s17
    s_mov_b32 s{sWgu+2}, {D*F*2}
    s_mov_b32 s{sWgu+3}, 0x00020000
    v_lshlrev_b32 v{vT2}, 1, v{vT0}
    v_and_b32 v{vT2}, 4, v{vT2}
    v_xor_b32 v{vT2}, v{vT2}, v{vT1}
    v_lshlrev_b32 v{vHF}, 4, v{vT2}
    s_lshl_b32 s{sM0}, s{sGW}, 12
    s_mul_i32 s{sBlk}, s{sCG}, 3
    s_add_u32 s{sT1}, s{sCG}, 1
    s_lshr_b32 s{sT1}, s{sT1}, 2
    s_sub_u32 s{sBlk}, s{sBlk}, s{sT1}
    """
    A(SRDS)
    A(f"s_cmp_lt_u32 s{sWave}, 4\ns_cbranch_scc1 L_pre_a")
    BASE = [0, 3, 6, 8, 11, 14, 17, 19]
    DSEQ = [BASE[j] for j in range(8) if j % 4 != 3] + [BASE[j] + 1 for j in range(8)] + [BASE[j] + 2 for j in range(8)]
    CSTART = {0: 0, 6: 1, 14: 2}
    CMASK = [0x0fff0fff, 0xffffffff, 0xffffffff]
    def dma_pieces(kind, idx, slot):
        if kind == "q":
            panel = (1, 2, 0)[idx // 4]; o = (idx % 4) * 128 * 3072 + panel * 1024
            srd, so, v0_, v1_, o2 = sWq, sQoff, vDq0, vDq1, o + 16 * 3072
        elif kind == "g":
            o = (idx % 8) * 64 * 2752 + (idx // 8) * 128
            srd, so, v0_, v1_, o2 = sWgu, sGoff, vDg0, vDg1, o + 16 * 2752
        elif kind == "d":
            o = DSEQ[2 * idx] * 64 * 1024; o2 = DSEQ[2 * idx + 1] * 64 * 1024
            srd, so, v0_, v1_ = sWd, sDoff, vDd0, vDd1
        else:
            o = idx * 32 * 1024; o2 = o + 16 * 1024
            srd, so, v0_, v1_ = sWo, sOoffW, vDd0, vDd1
        tag = ("dma", kind, idx)
        def p0():
            A(f"s_add_u32 m0, s{sM0}, {slot*SLOT}\ns_add_u32 s{sD0}, s{so}, {o}")
            A(f"buffer_load_dwordx4 v{v0_}, {s(srd,4)}, s{sD0} offen lds"); vmq.push(tag)
        def p1():
            A(f"buffer_load_dwordx4 v{v1_}, {s(srd,4)}, s{sD0} offen offset:1024 lds"); vmq.push(tag)
        def p2():
            A(f"s_add_u32 s{sD0}, s{so}, {o2 - 2048}")
            A(f"buffer_load_dwordx4 v{v0_}, {s(srd,4)}, s{sD0} offen offset:2048 lds"); vmq.push(tag)
        def p3():
            A(f"buffer_load_dwordx4 v{v1_}, {s(srd,4)}, s{sD0} offen offset:3072 lds"); vmq.push(tag)
        return [p0, p1, p2, p3]
    def dma(kind, idx, slot):
        cap = opt.get("ldcap", 40)
        for p in dma_pieces(kind, idx, slot):
            if len(vmq.q) > cap:
                A(f"s_waitcnt vmcnt({cap})"); vmq.waited(cap)
            p()
    def ddq(g): return ("q", g, g % 8) if g < 12 else ("g", g - 12, g % 8)
    GUADDR = f"""
    v_mul_u32_u24 v{vDg0}, 2752, v{vT0}
    v_add_u32 v{vDg0}, v{vDg0}, v{vHF}
    v_add_u32 v{vDg1}, {8*2752-1024}, v{vDg0}
    s_mul_i32 s{sGoff}, s{sMI}, {32*2752}
    s_lshl_b32 s{sT0}, s{sBlk}, 7
    s_add_u32 s{sGoff}, s{sGoff}, s{sT0}
    """
    A(f"""
    v_bfe_u32 v{vP}, v{vL}, 2, 2
    v_mul_u32_u24 v{vP}, 3072, v{vP}
    v_lshl_add_u32 v{vP}, v{vFl}, 7, v{vP}
    v_lshrrev_b32 v{vKo}, 4, v{vL}
    v_lshl_add_u32 v{vP}, v{vKo}, 10, v{vP}
    s_lshr_b32 s{sT1}, s2, 3
    s_mul_i32 s{sT1}, s{sT1}, {16*3072}
    s_mul_i32 s{sT0}, s{sGW}, {4*3072}
    s_add_u32 s{sT1}, s{sT1}, s{sT0}
    s_and_b32 s{sT0}, s2, 1
    s_lshl_b32 s{sT0}, s{sT0}, 9
    s_add_u32 s{sT1}, s{sT1}, s{sT0}
    s_lshr_b32 s{sNI}, s{sGW}, 1
    v_bfe_u32 v{vT2}, v{vL}, 2, 2
    v_lshlrev_b32 v{vTRp0}, 7, v{vT2}
    v_bfe_u32 v{vKo}, v{vL}, 4, 1
    v_lshl_add_u32 v{vTRp0}, v{vKo}, 5, v{vTRp0}
    v_lshl_add_u32 v{vTRp0}, v{vFl}, 3, v{vTRp0}
    v_lshrrev_b32 v{vH1}, 1, v{vT2}             ; r>>1
    v_lshrrev_b32 v{vO1}, 5, v{vL}              ; half
    v_xor_b32 v{vFl}, s{sNI}, v{vH1}
    v_lshl_add_u32 v{vTRn}, v{vFl}, 6, v{vTRp0}
    v_lshl_add_u32 v{vTRn}, v{vO1}, 10, v{vTRn}
    v_add_u32 v{vTRnH}, 65536, v{vTRn}
    v_and_b32 v{vRW}, 31, v{vL}
    v_mul_u32_u24 v{vXR}, {PIECE}, v{vO1}
    v_lshl_add_u32 v{vXR}, v{vRW}, 4, v{vXR}
    s_mul_i32 s{sT0}, s{sMI}, {64*PIECE}
    s_add_u32 s{sT0}, s{sT0}, {XT}
    v_add_u32 v{vXR}, s{sT0}, v{vXR}
    s_mov_b64 exec, {'0xffffffff' if opt.get('p1kv', 1) else '0xffff'}
    buffer_load_dword v143, v{vP}, {s(sWq,4)}, s{sT1} offen offset:1024
    s_mov_b64 exec, -1
    s_mov_b32 s3, 1
    s_setprio 1
    s_waitcnt vmcnt(1)
    s_branch L_ln
    """)
    GLATE = [x.strip() for x in (GUADDR + f"""
    s_mov_b32 s{sOut}, s22
    s_mov_b32 s{sOut+1}, s23
    s_mov_b32 s{sOut+2}, {S*D*2}
    s_mov_b32 s{sOut+3}, 0x00020000
    s_mov_b32 s{sWd+2}, {F*D*2}
    s_mov_b32 s{sWd+3}, 0x00020000
    s_mov_b32 s{sWo+2}, {D*D*2}
    s_mov_b32 s{sWo+3}, 0x00020000
    v_lshl_add_u32 v{vDd0}, v{vT0}, 10, v{vHF}
    v_add_u32 v{vDd1}, {8*1024-1024}, v{vDd0}
    s_lshl_b32 s{sT2}, s{sCG}, 7
    s_lshl_b32 s{sDoff}, s{sGW}, 14
    s_add_u32 s{sDoff}, s{sDoff}, s{sT2}
    s_lshl_b32 s{sOoffW}, s{sGW}, 17
    s_add_u32 s{sOoffW}, s{sOoffW}, s{sT2}
    s_lshl_b32 s{sXo}, s{sRB}, 16
    s_add_u32 s{sXo}, s{sXo}, s{sT2}
    s_and_b32 s{sNb}, s{sCG}, 3
    v_lshl_add_u32 v{vTRp0}, v{vH1}, 6, v{vTRp0}
    v_lshl_add_u32 v{vTRp0}, v{vO1}, 9, v{vTRp0}
    v_add_u32 v{vTRp0}, s{sM0}, v{vTRp0}
    v_xor_b32 v{vTRp1}, 64, v{vTRp0}
    v_add_u32 v{vTRp0H}, 65536, v{vTRp0}
    v_add_u32 v{vTRp1H}, 65536, v{vTRp1}
    v_lshlrev_b32 v{vL128}, 7, v{vL}
    v_lshlrev_b32 v{vVo}, 16, v{vKo}
    v_lshl_add_u32 v{vVo}, v{vO1}, 8, v{vVo}
    v_and_b32 v{vT2}, 15, v{vL}
    v_lshl_add_u32 v{vVo}, v{vT2}, 4, v{vVo}
    v_add_u32 v{vVo}, {VF}, v{vVo}
    v_mul_u32_u24 v{vRW}, {RS}, v{vRW}
    v_lshl_add_u32 v{vRW}, v{vO1}, 4, v{vRW}
    s_mul_i32 s{sT0}, s{sGW}, {RBY}
    v_add_u32 v{vRW}, s{sT0}, v{vRW}
    v_mul_u32_u24 v{vRR}, {RS}, v{vXo}
    v_lshl_add_u32 v{vRR}, v{vT1}, 5, v{vRR}
    v_lshlrev_b32 v{vXo}, 10, v{vXo}
    v_lshl_add_u32 v{vXo}, v{vT1}, 4, v{vXo}
    v_and_b32 v{vKo}, 0x33, v{vL}
    v_lshrrev_b32 v{vT2}, 1, v{vL}
    v_and_b32 v{vT2}, 4, v{vT2}
    v_lshlrev_b32 v{vO1}, 1, v{vL}
    v_and_b32 v{vO1}, 8, v{vO1}
    v_or3_b32 v{vKo}, v{vKo}, v{vT2}, v{vO1}
    v_lshlrev_b32 v{vKo}, 4, v{vKo}
    v_add_u32 v{vKo}, {KF}, v{vKo}
    v_add_u32 v{vH1}, {86*1024}, v{vL16}
    v_add_u32 v{vO1}, 32768, v{vL16}
    v_lshlrev_b32 v{vXR}, 10, v{vL}
    v_mov_b32 v{vT2}, 0
    v_mov_b32 v{vT0}, {hex(f2u(C1))}
    v_mov_b32 v{vT1}, {hex(f2u(C1))}
    s_lshl_b32 s{sT2}, s{sRB}, 1
    s_add_u32 s{sT2}, s{sT2}, s{sMI}
    s_mul_i32 s{sHst}, s{sT2}, {86*1024}
    s_lshl_b32 s{sT1}, s{sCG}, 1
    s_add_u32 s{sT1}, s{sT1}, s{sNI}
    s_lshl_b32 s{sFlag}, s{sT1}, 13
    s_lshl_b32 s{sT0}, s{sT2}, 7
    s_add_u32 s{sFlag}, s{sFlag}, s{sT0}
    s_add_u32 s{sFlag}, s{sFlag}, {FQ}
    s_lshl_b32 s{sT1}, s{sT1}, 17
    s_lshl_b32 s{sT2}, s{sT2}, 10
    s_add_u32 s{sSt}, s{sT1}, s{sT2}
    s_lshl_b32 s{sT0}, s{sBlk}, 12
    s_lshl_b32 s{sT1}, s{sNI}, 11
    s_add_u32 s{sHst}, s{sHst}, s{sT0}
    s_add_u32 s{sHst}, s{sHst}, s{sT1}
    s_add_u32 s{sHst}, s{sHst}, {HF}
    s_lshl_b32 s{sHld}, s{sRB}, 14
    s_add_u32 s{sHld}, s{sHld}, {FH}
    s_lshl_b32 s{sT0}, s{sCG}, 9
    s_lshl_b32 s{sT1}, s{sGW}, 7
    s_add_u32 s{sHfl}, s{sT0}, s{sT1}
    s_add_u32 s{sHfl}, s{sHfl}, s{sHld}
    s_mul_i32 s{sHb}, s{sRB}, {2*86*1024}
    s_lshl_b32 s{sT0}, s{sGW}, 10
    s_add_u32 s{sHb}, s{sHb}, s{sT0}
    s_add_u32 s{sHb}, s{sHb}, {HF}
    s_mov_b32 s{sC}, {hex(f2u(QSCALE))}
    s_mov_b32 s{sC+1}, {hex(f2u(QSCALE))}
    """).split("\n") if x.strip()]
    vK, vV, vIdx, vAF, vPF, vF = 10, 11, 12, 13, 14, 15
    M, C, SB = 6, 16, 80
    aOnes, aPF, aP3, aPKV, aL128, aGo = 24, 25, 26, 27, 28, 29
    O, Q, KS = 0, 64, 0
    NR = 5
    KRG = [("a", 80), ("a", 92), ("a", 104), ("a", 108), ("v", 136)]
    VRG = [("a", 84), ("a", 96), ("v", 112), ("v", 120), ("v", 128)]
    def rg(x, off=0, n=4): return (a if x[0] == "a" else v)(x[1] + off, n)
    def zero_o(n=64):
        for i in range(n): A(f"v_accvgpr_write_b32 a{O+i}, 0")
    A.label("L_pre_a")
    if opt.get("pretouch"):
        A(f"""
        s_mov_b32 s{sOut}, s22
        s_mov_b32 s{sOut+1}, s23
        s_mov_b32 s{sOut+2}, {S*D*2}
        s_mov_b32 s{sOut+3}, 0x00020000
        s_mov_b32 s{sWd+2}, {F*D*2}
        s_mov_b32 s{sWd+3}, 0x00020000
        s_mov_b32 s{sWo+2}, {D*D*2}
        s_mov_b32 s{sWo+3}, 0x00020000
        v_lshlrev_b32 v{vF}, 21, v{vL}
        s_lshl_b32 s{sT0}, s2, 7
        s_cmp_lg_u32 s{sMI}, 0
        s_cbranch_scc1 L_pt1
        s_mov_b64 exec, 0x1fff
        buffer_load_dword v143, v{vF}, {ws}, s{sT0} offen sc1
        s_mov_b64 exec, 1
        buffer_load_dword v143, v{vF}, {s(sWgu,4)}, s{sT0} offen
        s_branch L_pt2
        L_pt1:
        s_mov_b64 exec, 1
        buffer_load_dword v143, v{vF}, {s(sOut,4)}, s{sT0} offen sc1
        buffer_load_dword v143, v{vF}, {s(sWd,4)}, s{sT0} offen
        buffer_load_dword v143, v{vF}, {s(sWo,4)}, s{sT0} offen
        L_pt2:
        s_mov_b64 exec, -1
        """)
    A(f"""
    v_mov_b32 v{vF}, 0
    ds_write_b32 v{vCnt}, v{vF}
    ds_write_b32 v{vCnt}, v{vF} offset:1024
    v_add_u32 v{vCnt}, 1024, v{vCnt}
    v_lshlrev_b32 v{aGo}, 2, v{vL}
    s_lshl_b32 s{sT0}, s{sWave}, 9
    s_add_u32 s{sT0}, s{sT0}, {AFL}
    v_add_u32 v{vAF}, s{sT0}, v{aGo}
    s_xor_b32 s{sT0}, s{sWave}, 2
    s_lshl_b32 s{sT0}, s{sT0}, 9
    s_add_u32 s{sT0}, s{sT0}, {AFL}
    v_add_u32 v{vPF}, s{sT0}, v{aGo}
    v_add_u32 v{aGo}, {GO}, v{aGo}
    ds_write_b32 v{vAF}, v{vF}
    ds_write_b32 v{vAF}, v{vF} offset:256
    ds_write_b32 v{aGo}, v{vF}
    v_mul_u32_u24 v{vDq0}, 3072, v{vT0}
    v_add_u32 v{vDq0}, v{vDq0}, v{vHF}
    v_add_u32 v{vDq1}, {8*3072-1024}, v{vDq0}
    s_mul_i32 s{sQoff}, s{sGW}, {32*3072}
    s_lshl_b32 s{sT2}, s{sCG}, 7
    s_add_u32 s{sQoff}, s{sQoff}, s{sT2}
    v_bfe_u32 v{aP3}, v{vL}, 2, 2
    v_mul_u32_u24 v{aP3}, 3072, v{aP3}
    v_lshl_add_u32 v{aP3}, v{vFl}, 7, v{aP3}
    v_bfe_u32 v{aPF}, v{vL}, 4, 1
    v_xor_b32 v{aPF}, 1, v{aPF}
    v_lshl_add_u32 v{aP3}, v{aPF}, 11, v{aP3}
    s_lshr_b32 s7, s2, 3
    s_lshl_b32 s7, s7, 2
    s_add_u32 s7, s7, s{sWave}
    s_mul_i32 s7, s7, {4*3072}
    s_and_b32 s{sT0}, s2, 1
    s_lshl_b32 s{sT0}, s{sT0}, 9
    s_add_u32 s7, s7, s{sT0}
    s_and_b32 s{sT0}, s{sCG}, 3
    s_cmp_eq_u32 s{sT0}, 3
    s_addc_u32 s{sBlk}, s{sBlk}, 0
    v_lshrrev_b32 v30, 1, v{vL}
    v_mul_u32_u24 v30, 2752, v30
    v_and_b32 v31, 1, v{vL}
    v_mul_u32_u24 v31, 124, v31
    v_add_u32 v30, v30, v31
    s_and_b32 s68, s{sRB}, 7
    s_lshl_b32 s68, s68, 1
    s_add_u32 s68, s68, s{sMI}
    s_mul_i32 s68, s68, {16*2752}
    s_lshl_b32 s{sT0}, s{sBlk}, 7
    s_add_u32 s68, s68, s{sT0}
    s_or_b32 s{sT1}, s2, s{sWave}
    s_cmp_lg_u32 s{sT1}, 0
    s_cbranch_scc1 L_pre_a2
    s_memrealtime s[4:5]
    s_waitcnt lgkmcnt(0)
    s_or_b32 s4, s4, 1
    v_mov_b32 v{vIdx}, s4
    buffer_store_dword v{vIdx}, v{vF}, {s(sDbg,4)}, 0 offen sc1
    """)
    A.label("L_pre_a2")
    if opt.get("pall"):
        A(f"""
        s_mov_b32 s{sWd+2}, {F*D*2}
        s_mov_b32 s{sWd+3}, 0x00020000
        s_mov_b32 s{sWo+2}, {D*D*2}
        s_mov_b32 s{sWo+3}, 0x00020000
        v_mul_u32_u24 v141, 2752, v{vL}
        s_and_b32 s{sT0}, s{sRB}, 7
        s_mul_i32 s{sT0}, s{sT0}, {64*2752}
        s_mul_i32 s{sT1}, s{sCG}, 384
        s_add_u32 s{sT0}, s{sT0}, s{sT1}
        s_mul_i32 s{sT1}, s{sMI}, 124
        s_add_u32 s{sT1}, s{sT0}, s{sT1}
        buffer_load_dword v143, v141, {s(sWgu,4)}, s{sT1} offen
        s_lshl_b32 s{sT1}, s{sMI}, 7
        s_add_u32 s{sT1}, s{sT0}, s{sT1}
        buffer_load_dword v143, v141, {s(sWgu,4)}, s{sT1} offen offset:252
        v_lshlrev_b32 v142, 10, v{vL}
        s_and_b32 s{sT0}, s{sRB}, 7
        s_lshl_b32 s{sT1}, s{sCG}, 7
        s_mul_i32 s{sT2}, s{sT0}, {172*1024}
        s_add_u32 s{sT2}, s{sT2}, s{sT1}
        s_lshl_b32 s4, s{sGW}, 16
        s_add_u32 s{sT2}, s{sT2}, s4
        buffer_load_dword v143, v142, {s(sWd,4)}, s{sT2} offen
        s_lshl_b32 s{sT0}, s{sT0}, 16
        s_add_u32 s{sT0}, s{sT0}, s{sT1}
        buffer_load_dword v143, v142, {s(sWo,4)}, s{sT0} offen
        s_waitcnt vmcnt(0)
        s_sleep 40
        """)
    A("s_mov_b32 s3, 0\ns_waitcnt vmcnt(%d)" % (2 if opt.get("pretouch") else 0))
    NEARLY = opt.get("nearly", 0)
    for g in range(NEARLY): dma(*ddq(g))
    vmq.clear()
    A.label("L_ln")
    ST()
    SA, TT, vXW = 104, 80, 112
    A(f"""
    s_mov_b32 s4, 0x3f803f80
    s_mov_b32 s5, 0x00003f80
    s_mov_b32 s6, 0x3f800000
    """)
    for i in range(32):
        a1 = SA + (i & 1); a2 = SA + 2 + (i & 1)
        A(f"v_dot2_f32_bf16 v{a1}, v{R+i}, s4, {'0' if i < 2 else 'v%d' % a1}")
        A(f"v_dot2_f32_bf16 v{a2}, v{R+i}, v{R+i}, {'0' if i < 2 else 'v%d' % a2}")
    m_, q_, mb_, rs_ = SA, SA + 2, SA + 4, SA + 6
    A(f"""
    s_lshr_b32 s{sT0}, s{sWave}, 2
    s_mul_i32 s{sT0}, s{sT0}, {64*PIECE}
    s_lshl_b32 s{sT1}, s{sGW}, 7
    v_add_f32 v{m_}, v{m_}, v{m_+1}
    v_add_f32 v{q_}, v{q_}, v{q_+1}
    s_add_u32 s{sT0}, s{sT0}, s{sT1}
    v_add_f32_dpp v{m_}, v{m_}, v{m_} quad_perm:[1,0,3,2] row_mask:0xf bank_mask:0xf
    v_add_f32_dpp v{q_}, v{q_}, v{q_} quad_perm:[1,0,3,2] row_mask:0xf bank_mask:0xf
    s_add_u32 s{sT0}, s{sT0}, {XT}
    v_add_f32_dpp v{m_}, v{m_}, v{m_} quad_perm:[2,3,0,1] row_mask:0xf bank_mask:0xf
    v_add_f32_dpp v{q_}, v{q_}, v{q_} quad_perm:[2,3,0,1] row_mask:0xf bank_mask:0xf
    v_mul_u32_u24 v{vXW}, {PIECE}, v{vT1}
    v_add_f32_dpp v{m_}, v{m_}, v{m_} row_half_mirror row_mask:0xf bank_mask:0xf
    v_add_f32_dpp v{q_}, v{q_}, v{q_} row_half_mirror row_mask:0xf bank_mask:0xf
    v_mul_f32 v{m_}, {hex(f2u(1.0/512))}, v{m_}
    v_mul_f32 v{q_}, {hex(f2u(1.0/512))}, v{q_}
    v_cvt_pk_bf16_f32 v{mb_}, v{m_}, v{m_}
    v_fma_f32 v{q_}, -v{m_}, v{m_}, v{q_}
    v_and_b32 v{mb_}, 0xffff0000, v{mb_}
    v_max_f32 v{q_}, 0, v{q_}
    v_xor_b32 v{mb_}, 0x80000000, v{mb_}
    v_cvt_pk_bf16_f32 v{q_}, v{q_}, v{q_}
    v_and_b32 v{q_}, 0xffff0000, v{q_}
    v_add_f32 v{q_}, {hex(f2u(1e-5))}, v{q_}
    v_cvt_pk_bf16_f32 v{q_}, v{q_}, v{q_}
    v_and_b32 v{q_}, 0xffff0000, v{q_}
    v_sqrt_f32 v{q_}, v{q_}
    v_lshl_add_u32 v{vXW}, v{vT0}, 4, v{vXW}
    v_cvt_pk_bf16_f32 v{q_}, v{q_}, v{q_}
    v_and_b32 v{q_}, 0xffff0000, v{q_}
    v_rcp_f32 v{rs_}, v{q_}
    v_rcp_f32 v{rs_+1}, v{q_}
    v_add_u32 v{vXW}, s{sT0}, v{vXW}
    """)
    for cb in range(8):
        t = TT + 8 * (cb & 1); r = R + 4 * cb
        for e in range(4):
            A(f"v_dot2_f32_bf16 v{t+2*e}, v{r+e}, s5, v{mb_}")
            A(f"v_dot2_f32_bf16 v{t+2*e+1}, v{r+e}, s6, v{mb_}")
        if cb > 0: A(f"ds_write_b128 v{vXW}, {v(R+4*(cb-1),4)} offset:{(cb-1)*8*PIECE}")
        else: A("s_nop 0")
        for e in range(4): A(f"v_pk_mul_f32 {v(t+2*e,2)}, {v(t+2*e,2)}, {v(rs_,2)}")
        for e in range(4): A(f"v_cvt_pk_bf16_f32 v{r+e}, v{t+2*e}, v{t+2*e+1}")
    A(f"ds_write_b128 v{vXW}, {v(R+28,4)} offset:{7*8*PIECE}")
    A("s_cmp_eq_u32 s3, 0\ns_cbranch_scc1 L_attn")

    def get_tag(vt, vz, lbl):
        A(f"v_mov_b32 v{vz}, 0")
        A.label(lbl)
        A(f"""
        buffer_load_dword v{vt}, v{vz}, {s(sDbg,4)}, 0 offen sc1
        s_waitcnt vmcnt(0)
        v_readfirstlane_b32 s{sTag}, v{vt}
        """)
        timeout_exit(lbl + "_x")
        A(f"s_cmp_eq_u32 s{sTag}, 0\ns_cbranch_scc1 {lbl}")
        A.label(lbl + "_x")
    def spin_flags(lbl, vf, voff, soff, nlanes, sleep=4):
        A.label(lbl)
        A(f"""
        s_mov_b64 exec, {emask(nlanes)}
        buffer_load_dword v{vf}, v{voff}, {ws}, s{soff} offen sc1
        s_waitcnt vmcnt(0)
        v_cmp_ne_u32 vcc, s{sTag}, v{vf}
        s_mov_b64 exec, -1
        s_cbranch_vccz {lbl}_x
        """)
        timeout_exit(lbl + "_x")
        A(f"s_sleep {sleep}\ns_branch {lbl}")
        A.label(lbl + "_x")
    def lds_spin(lbl, vdst, vaddr, off, cmp, sleep=0):
        A.label(lbl)
        A(f"ds_read_b32 v{vdst}, v{vaddr} offset:{off}\ns_waitcnt lgkmcnt(0)\n{cmp}\ns_cbranch_vccz {lbl}_x")
        timeout_exit(lbl + "_x")
        if sleep: A(f"s_sleep {sleep}")
        A(f"s_branch {lbl}")
        A.label(lbl + "_x")

    def xn(ks): return a(4 * ks, 4) if ks < 28 else v(96 + 4 * (ks - 28), 4)
    def xread(ks): lds(f"ds_read_b128 {xn(ks)}, v{vXR} offset:{2*ks*PIECE}", "xn")
    lowprio = [False]
    def check(fresh, off=0, need=None):
        l = lab("chk"); nd = f"s{sNeed}" if need is None else str(need)
        cmp = f"v_cmp_gt_u32 vcc, {nd}, v{vP}"
        if lowprio[0]: cmp = f"s_setprio 3\n{cmp}\ns_setprio 0"
        if fresh:
            lds(f"ds_read_b32 v{vP}, v{vCntR} offset:{off}", "poll")
        lwait("poll")
        A(f"{cmp}\ns_cbranch_vccnz {l}")
        A.label(l + "_x")
        def sp():
            A.label(l)
            A(f"ds_read_b32 v{vP}, v{vCntR} offset:{off}\ns_waitcnt lgkmcnt(0)\n{cmp}\ns_cbranch_vccz {l}_x")
            timeout_exit(l + "_x")
            if lp: A("s_sleep 1")
            A(f"s_branch {l}")
        lp = lowprio[0]
        slow.append(sp)
        if need is None: A(f"s_add_u32 s{sNeed}, s{sNeed}, 1")
    def segment(stages, hooks=None, LA=4):
        hooks = hooks or {}
        NB = len(WFB); assert NB >= LA + 1
        flat = [(si, fi, fr) for si, st in enumerate(stages) for fi, fr in enumerate(st["frags"])]
        sq = []
        for i in range(len(flat) + LA):
            if i < len(flat):
                si, fi, fr = flat[i]; st = stages[si]; nfr = len(st["frags"])
                if fi == 0:
                    assert not sq
                    if "label" in st: A.label(st["label"])
                    if opt.get("atrace"):
                        A(f"s_waitcnt lgkmcnt(0)\ns_mov_b32 s99, m0\ns_mov_b32 m0, s{sD1}\ns_add_u32 s{sD1}, s{sD1}, 1\ns_setprio 3\nv_writelane_b32 v142, s100, m0\ns_setprio {0 if lowprio[0] else 1}\ns_memrealtime s[100:101]\ns_mov_b32 m0, s99"); lq.clear()
                    if st["sync"]: check(si == 0, *st.get("chk", ()))
                    if "pre" in st: st["pre"]()
                    sq += st["pieces"]
                lo, hi, o0, o1, _ = fr
                base = st["slot"] * SLOT; reg = lo
                if base >= 65536: base -= 65536; reg = hi
                w = WFB[i % NB]
                lds(f"ds_read_b64_tr_b16 {v(w,2)}, v{reg} offset:{base+o0}", ("fr", i))
                lds(f"ds_read_b64_tr_b16 {v(w+2,2)}, v{reg} offset:{base+o1}", ("fr", i))
                if fi == st.get("waitat", st.get("pubat", 2)) and st["nxt"] is not None: vwait(st["nxt"])
                if fi == st.get("pubat", 2) and st["pub"]: lds(f"ds_add_u32 v{vCnt}, v{vOne}", "add")
                if len(sq) * 2 > (nfr - fi) or fi % 2 == 0:
                    k = -(-len(sq) // (nfr - fi))
                    for _ in range(k): sq.pop(0)()
                if fi == nfr - 2 and si + 1 < len(stages) and stages[si + 1]["sync"]:
                    lds(f"ds_read_b32 v{vP}, v{vCntR} offset:{stages[si + 1].get('chk', (0,))[0]}", "poll")
                if (si, fi) in hooks: hooks[(si, fi)]()
            j = i - LA
            if j >= 0:
                lwait(("fr", j))
                for m in flat[j][2][4]:
                    if callable(m): m()
                    else: A(m.format(w=v(WFB[j % NB], 4)))
    if F0: ST()
    A("s_waitcnt lgkmcnt(0)\ns_barrier")
    ST()
    if opt.get("atrace"): A(f"s_mov_b32 s{sD1}, 0\ns_memrealtime s[100:101]")
    for ks in range(8): xread(ks)
    def qkv_epi(p):
        acc = (ACC0, ACC1, ACC0)[p]; pk = TMP + 8 * p
        def f():
            if p == 2:
                for i in range(8): A(f"v_pk_mul_f32 {v(acc+2*i,2)}, {v(acc+2*i,2)}, {s(sC,2)}")
            for i in range(8): A(f"v_cvt_pk_bf16_f32 v{pk+i}, v{acc+2*i}, v{acc+2*i+1}")
            if p == 1:
                A(f"buffer_store_dwordx4 {v(pk,4)}, v{vVo}, {ws}, s{sSt} offen sc1")
                A(f"buffer_store_dwordx4 {v(pk+4,4)}, v{vVo}, {ws}, s{sSt} offen offset:512 sc1")
            else:
                vo = vKo if p == 0 else vL16
                A(f"s_add_u32 s{sT0}, s{sSt}, 65536")
                A(f"buffer_store_dwordx4 {v(pk,4)}, v{vo}, {ws}, s{sSt} offen sc1")
                A(f"buffer_store_dwordx4 {v(pk+4,4)}, v{vo}, {ws}, s{sT0} offen sc1")
            vmq.push("st", 2)
        return f
    stages = []
    for q in range(12):
        p, part = divmod(q, 4); acc = v((ACC0, ACC1, ACC0)[p], 16)
        frags = []
        for kk in range(8):
            ks = part * 8 + kk; c = "0" if ks == 0 else acc
            m = f"{MF} {acc}, {xn(ks)}, {{w}}, {c}" if p == 1 else f"{MF} {acc}, {{w}}, {xn(ks)}, {c}"
            frags.append((vTRn, vTRnH, kk * 2048, kk * 2048 + 512, [m]))
        stages.append(dict(slot=q % 8, frags=frags, pieces=[], nxt=None, sync=True, pub=(q >= 1), pubat=0, chk=(1024, q + 1)))
    hooks = {(0, fi): (lambda fi=fi: [xread(8 + 3 * fi + e) for e in range(3)]) for fi in range(8)}
    hooks[(5, 1)] = qkv_epi(0); hooks[(9, 1)] = qkv_epi(1)
    hooks[(5, 4)] = lambda: (A(f"buffer_load_dword v{vFl}, v{vT2}, {s(sDbg,4)}, 0 offen sc1"), vmq.push("tag"))
    per = -(-len(GLATE) // 30)
    def late():
        for _ in range(per):
            if GLATE: A(GLATE.pop(0).replace("|", "\n"))
    for q in range(1, 5):
        for fi in range(8):
            if (q, fi) not in ((1, 0), (4, 0)): hooks[(q, fi)] = late
    if stamps:
        for q in ((1, 4, 5, 6, 7, 8, 9, 10, 11) if FR else (1, 4, 8)): hooks[(q, 0)] = ST
    segment(stages, hooks)
    assert not GLATE
    vwait("tag")
    A(f"v_readfirstlane_b32 s{sTag}, v{vFl}\ns_nop 10")
    qkv_epi(2)()
    ST()
    A(f"s_cmp_lg_u32 s{sTag}, 0\ns_cbranch_scc1 L_gtag_x")
    get_tag(vFl, vT2, "L_gtag")
    A(f"""
    s_mov_b32 s{sC}, {hex(f2u(C2))}
    s_mov_b32 s{sC+1}, {hex(f2u(C2))}
    v_mov_b32 v{vFl}, s{sTag}
    s_waitcnt vmcnt(0)
    s_mov_b64 exec, 1
    buffer_store_dword v{vFl}, v{vT2}, {ws}, s{sFlag} offen sc1
    s_mov_b64 exec, -1
    """)
    ST()
    if FR: ST.flush(ws, STAMP, sWave, 2, 3, sT0); A("s_endpgm"); ST.on = False
    if opt.get("gexit"): A(f"ds_add_u32 v{vCnt}, v{vOne}\ns_waitcnt lgkmcnt(0)\ns_endpgm")
    assert NG0 == 4
    LOOK = opt.get("look", 5)
    check(True, 1024, 12 + NG0)
    lds(f"ds_add_u32 v{vCnt}, v{vOne}", "add")
    A(f"s_mov_b32 s{sNeed}, 12\ns_setprio 0")
    lowprio[0] = True
    def gslot(g): return (g + 4) % 8
    def ffn_dd(g):
        if g < 24: return ("g", g, gslot(g))
        if g < 35: return ("d", g - 24, gslot(g))
        return ("o", g - 35, gslot(g))
    A(f"s_cmp_lg_u32 s{sNb}, 3\ns_cbranch_scc1 L_ffn")
    if opt.get("pfw", 1):
        if opt.get("pfgo"): check(True, 1024, 12 + NG0 + 1)
        P = [0, 128, 384, 512, 768, 896, 256, 640, 1024, 1152, 1280, 1404][:2 * opt.get('npf', 6)]
        PCAP = opt.get("pcap", 1)
        A(f"""
        s_setprio 3
        v_mul_u32_u24 v{TMP}, 2752, v{vL}
        v_lshrrev_b32 v{TMP+1}, 2, v{vL}
        v_lshlrev_b32 v{TMP+1}, 10, v{TMP+1}
        v_and_b32 v{TMP+2}, 3, v{vL}
        v_lshl_add_u32 v{TMP+1}, v{TMP+2}, 7, v{TMP+1}
        s_setprio 0
        s_and_b32 s4, s{sRB}, 7
        s_mul_i32 s5, s4, {64*2752}
        s_lshr_b32 s6, s{sCG}, 2
        s_mul_i32 s7, s6, 1408
        s_add_u32 s5, s5, s7
        """)
        for i in range(len(P) // 2):
            lo_, hi_ = sorted(P[2*i:2*i+2])
            A(f"s_mul_i32 s{sT0}, s{sMI}, {hi_-lo_}\ns_add_u32 s{sT0}, s{sT0}, s5")
            A(f"buffer_load_dword v143, v{TMP}, {s(sWgu,4)}, s{sT0} offen offset:{lo_}\ns_waitcnt vmcnt({PCAP})")
        if opt.get('pfd', 0):
            A(f"""
        s_lshl_b32 s4, s4, 2
        s_add_u32 s4, s4, s{sGW}
        s_lshl_b32 s6, s6, 9
        s_mul_i32 s5, s4, {43*1024}
        s_add_u32 s5, s5, s6
        """)
            for i in range(3):
                A(f"s_add_u32 s{sT0}, s5, {i*16*1024}\nbuffer_load_dword v143, v{TMP+1}, {s(sWd,4)}, s{sT0} offen\ns_waitcnt vmcnt({PCAP})")
            A(f"s_lshl_b32 s5, s4, 14\ns_add_u32 s5, s5, s6\nbuffer_load_dword v143, v{TMP+1}, {s(sWo,4)}, s5 offen")
    check(True, 0, 12)
    A(f"s_setprio 3\nv_mov_b32 v{vP}, 0\ns_setprio 0")
    for g in range(8 + NG0, 8 + LOOK): dma(*ffn_dd(g))
    A("s_branch L_ffn8")
    A.label("L_ffn")
    vmq.clear(); lq.clear()
    T1, U1 = TMP, [88, 90, 92, 94, 128, 130, 132, 134]
    AD1 = [v(40, 16), v(56, 16), v(96, 16), a(96, 16)]
    def gelu1():
        G, U = ACC0, ACC1
        A("s_setprio 3\ns_nop 9")
        for i in range(8): A(f"v_pk_mul_f32 {v(T1+2*i,2)}, {v(G+2*i,2)}, {v(G+2*i,2)}")
        for i in range(8): A(f"v_pk_fma_f32 {v(T1+2*i,2)}, {v(T1+2*i,2)}, {s(sC,2)}, {v(vT0,2)}")
        for i in range(8): A(f"v_pk_mul_f32 {v(U1[i],2)}, {v(U+2*i,2)}, {v(G+2*i,2)}")
        for i in range(8): A(f"v_pk_mul_f32 {v(T1+2*i,2)}, {v(T1+2*i,2)}, {v(G+2*i,2)}")
        A("s_setprio 0")
    def gelu2_groups(b):
        L = [f"v_exp_f32 v{T1+i}, v{T1+i}" for i in range(16)]
        L += [f"v_pk_add_f32 {v(T1+2*i,2)}, {v(T1+2*i,2)}, 1.0 op_sel_hi:[1,0]" for i in range(8)]
        L += [f"v_rcp_f32 v{T1+i}, v{T1+i}" for i in range(16)]
        L += [f"v_pk_mul_f32 {v(U1[i],2)}, {v(U1[i],2)}, {v(T1+2*i,2)}" for i in range(8)]
        L += [f"v_cvt_pk_bf16_f32 v{T1+i}, v{U1[i]}, v{U1[i]+1}" for i in range(8)]
        sizes = [4, 4, 4, 4, 8, 4, 4, 4, 4, 8, 8]
        G_ = []
        for n in sizes:
            grp = L[:n]; L = L[n:]
            G_.append(lambda grp=grp: A("s_setprio 3\n" + "\n".join(grp) + "\ns_setprio 0"))
        def store():
            l = lab("hskip")
            if b == 0: A(f"s_cmp_eq_u32 s{sNb}, 3\ns_cbranch_scc1 {l}")
            if b == 2: A(f"s_add_u32 s{sT0}, s{sCG}, s{sNI}\ns_cmp_eq_u32 s{sT0}, 8\ns_cbranch_scc1 {l}")
            A(f"s_add_u32 s{sT0}, s{sHst}, {b*4096}")
            A(f"buffer_store_dwordx4 {v(T1,4)}, v{vL16}, {ws}, s{sT0} offen sc1")
            A(f"buffer_store_dwordx4 {v(T1+4,4)}, v{vL16}, {ws}, s{sT0} offen offset:1024 sc1")
            A.label(l)
            vmq.since = 0
        return G_ + [store]
    def send_flag(b):
        def f():
            n = min(vmq.since, 63)
            A(f"s_waitcnt vmcnt({n})"); vmq.waited(n)
            A(f"s_add_u32 s{sT0}, s{sHfl}, {b*4096}\ns_mov_b64 exec, 1\nbuffer_store_dword v{vFl}, v{vT2}, {ws}, s{sT0} offen sc1\ns_mov_b64 exec, -1")
        return f
    NH = 12
    def hload(t):
        b = 8 * (t % NH)
        if DSEQ[t] == 21:
            A(f"s_and_b32 s{sT2}, s{sGW}, 2\ns_lshl_b32 s{sT2}, s{sT2}, 10\ns_sub_u32 s{sT2}, s{sHb}, s{sT2}\ns_add_u32 s{sT2}, s{sT2}, {DSEQ[t]*4096}")
        else:
            A(f"s_add_u32 s{sT2}, s{sHb}, {DSEQ[t]*4096}")
        A(f"buffer_load_dwordx4 {a(b,4)}, v{vL16}, {ws}, s{sT2} offen sc1")
        A(f"buffer_load_dwordx4 {a(b+4,4)}, v{vH1}, {ws}, s{sT2} offen sc1")
        vmq.push(("h", t), 2)
    def hflag_issue(c):
        A(f"s_add_u32 s{sT2}, s{sHld}, {c*4096}\ns_mov_b64 exec, {hex(CMASK[c])}")
        A(f"buffer_load_dword v{vHF}, v{vL128}, {ws}, s{sT2} offen sc1\ns_mov_b64 exec, -1")
        vmq.push(("hf", c))
    def hflag_check(c):
        vwait(("hf", c))
        l = f"L_hf{c}"
        A(f"s_setprio 3\nv_cmp_ne_u32 vcc, s{sTag}, v{vHF}\ns_setprio 0\ns_and_b32 vcc_lo, vcc_lo, {hex(CMASK[c])}\ns_cbranch_scc1 {l}_s")
        A.label(l + "_b")
        def sp():
            A.label(l + "_s")
            A(f"s_add_u32 s{sT2}, s{sHld}, {c*4096}\ns_setprio 3")
            spin_flags(l, vHF, vL128, sT2, hex(CMASK[c]), sleep=8)
            A(f"s_setprio 0\ns_branch {l}_b")
        slow.append(sp)
    def p4(ni):
        def f():
            l = lab("p4")
            A(f"""
            s_cmp_lg_u32 s{sNI}, {ni}
            s_cbranch_scc1 {l}_x
            s_and_b32 s{sT0}, s{sRB}, 7
            s_lshl_b32 s{sT1}, s{sCG}, 7
            s_cmp_eq_u32 s{sGW}, 3
            s_cbranch_scc1 {l}_o
            s_mul_i32 s{sT0}, s{sT0}, {172*1024}
            s_add_u32 s{sT0}, s{sT0}, s{sT1}
            s_lshl_b32 s{sT1}, s{sGW}, 16
            s_add_u32 s{sT0}, s{sT0}, s{sT1}
            buffer_load_dword v143, v{vXR}, {s(sWd,4)}, s{sT0} offen
            s_branch {l}_x
            """)
            A.label(l + "_o")
            A(f"s_lshl_b32 s{sT0}, s{sT0}, 16\ns_add_u32 s{sT0}, s{sT0}, s{sT1}\nbuffer_load_dword v143, v{vXR}, {s(sWo,4)}, s{sT0} offen")
            A.label(l + "_x")
        return f
    allp = []
    for g in range(NG0, 39): allp += [(g, p) for p in dma_pieces(*ffn_dd(g))]
    T0 = opt.get("t0", 2); RATE = opt.get("rate", 6)
    sched = []
    for st in range(35):
        take = []
        if st >= T0:
            while allp and allp[0][0] <= st + LOOK and len(take) < RATE: take.append(allp.pop(0)[1])
        sched.append(take)
        if st == 7: assert allp[0][0] == 8 + LOOK and len([1 for g, _ in allp if g == 8 + LOOK]) == 4
    assert not allp
    stages = []
    post = {}
    for st in range(35):
        frags = []
        if st < 24:
            for kk in range(4):
                ks = (st % 8) * 4 + kk
                for p, acc in enumerate((ACC0, ACC1)):
                    c = "0" if ks == 0 else v(acc, 16)
                    frags.append((vTRn, vTRnH, p * 8192 + kk * 2048, p * 8192 + kk * 2048 + 512, [f"{MF} {v(acc,16)}, {{w}}, {xn(ks)}, {c}"]))
        else:
            for kk in range(2):
                t = 2 * (st - 24) + kk; b = 8 * (t % NH)
                for ni, (lo, hi) in enumerate(((vTRp0, vTRp0H), (vTRp1, vTRp1H))):
                    ms = [(lambda t=t: vwait(("h", t)))] if ni == 0 else []
                    for mi in range(2):
                        d = AD1[2 * ni + mi]; c = "0" if t == 0 else d
                        ms.append(f"{MF} {d}, {{w}}, {a(b+4*mi,4)}, {c}")
                    frags.append((lo, hi, kk * 2048, kk * 2048 + 1024, ms))
        nx = ffn_dd(st + 1)
        stages.append(dict(slot=gslot(st), frags=frags, pieces=sched[st], nxt=("dma", nx[0], nx[1]),
                           sync=(st <= 25), pub=(st <= 24), pubat=(0 if st >= 23 else opt.get("pubat", 2)),
                           waitat=(3 if st >= 24 else (6 if st == 23 else opt.get("pubat", 2)))))
    assert LOOK <= 6
    stages[T0]["pre"] = lambda: check(True, 1024, 12 + NG0 + 1)
    stages[8]["label"] = "L_ffn8"
    hooks = {}
    for b in range(3):
        st0 = 8 * (b + 1)
        stages[st0]["frags"][0][4].insert(0, gelu1)
        grp = gelu2_groups(b)
        pos = [(si, fi, k) for si in (st0, st0 + 1, st0 + 2) for fi, fr in enumerate(stages[si]["frags"]) for k, m in enumerate(fr[4]) if not callable(m)]
        if b == 2: pos = [p_ for p_ in pos for _ in range(2)]
        for (si, fi, k), g_ in reversed(list(zip(pos, grp))):
            stages[si]["frags"][fi][4].insert(k + 1, g_)
        hooks[(st0 + 3, 3) if b < 2 else (26, 1)] = send_flag(b)
    if opt.get("p4", 1): hooks[(opt.get("p4a", 10), 1)] = p4(0); hooks[(opt.get("p4b", 14), 1)] = p4(1)
    HL = opt.get("hl", 5)
    def hpos(t):
        u = t - HL
        if u >= 0: return (24 + u // 2, 2 * (u % 2) + 1)
        return (24 + (u // 2), 4 * (u % 2) + 1)
    for t in range(22):
        fs = []
        if t in CSTART: fs.append(lambda c=CSTART[t]: hflag_check(c))
        fs.append(lambda t=t: hload(t))
        if t + 2 in CSTART: fs.append(lambda c=CSTART[t + 2]: hflag_issue(c))
        old = hooks.get(hpos(t))
        if old: fs.insert(0, old)
        hooks[hpos(t)] = (lambda fs=fs: [f() for f in fs])
    p0 = hpos(0); hooks[(p0[0] - 1, 3)] = lambda: hflag_issue(0)
    if stamps:
        for st in (8, 16, 24): hooks[(st, 0)] = ST
    segment(stages, hooks)
    lowprio[0] = False
    ST()
    if opt.get("atrace"):
        A(f"s_lshl_b32 s{sT0}, s2, 4\ns_add_u32 s{sT0}, s{sT0}, s{sWave}\ns_lshl_b32 s{sT0}, s{sT0}, 8\ns_add_u32 s{sT0}, s{sT0}, {STAMP+MB}\nv_lshlrev_b32 v141, 2, v{vL}\nbuffer_store_dword v142, v141, {ws}, s{sT0} offen\ns_waitcnt vmcnt(0)")
    vwait(("dma", "o", 3))
    for i in range(8):
        slot = gslot(35 + i // 2); base = slot * SLOT
        for ni, (lo, hi) in enumerate(((vTRp0, vTRp0H), (vTRp1, vTRp1H))):
            reg, b = (lo, base) if base < 65536 else (hi, base - 65536)
            lds(f"ds_read_b64_tr_b16 {a(8*i+4*ni,2)}, v{reg} offset:{b + (i%2)*2048}", "wo")
            lds(f"ds_read_b64_tr_b16 {a(8*i+4*ni+2,2)}, v{reg} offset:{b + (i%2)*2048 + 1024}", "wo")
    lds(f"ds_add_u32 v{vCnt}, v{vOne}", "add")
    A(f"""
    s_setprio 3
    s_mov_b32 s{sC}, {hex(f2u(-1.4426950408889634))}
    s_mov_b32 s{sC+1}, {hex(f2u(-1.4426950408889634))}
    """)
    def reduce_tile(dst, src):
        check(True)
        for ni in range(2):
            for mi in range(2):
                for q in range(4):
                    k_, b_ = src[2 * ni + mi]
                    lds(f"ds_write_b128 v{vRW}, {k_(b_+4*q,4)} offset:{mi*32*RS + ni*128 + q*32}", "w")
        lds(f"ds_add_u32 v{vCnt}, v{vOne}", "add")
        check(True)
        for p in range(2):
            for w in range(4):
                off = w * RBY + p * 32 * RS; b = AD + 32 * p + 8 * w
                lds(f"ds_read_b128 {v(b,4)}, v{vRR} offset:{off}", ("r", p))
                lds(f"ds_read_b128 {v(b+4,4)}, v{vRR} offset:{off+16}", ("r", p))
        lds(f"ds_add_u32 v{vCnt}, v{vOne}", "add")
        for p in range(2):
            lwait(("r", p))
            b = AD + 32 * p
            for i in range(4):
                A(f"v_pk_add_f32 {v(b+2*i,2)}, {v(b+2*i,2)}, {v(b+8+2*i,2)}")
                A(f"v_pk_add_f32 {v(b+16+2*i,2)}, {v(b+16+2*i,2)}, {v(b+24+2*i,2)}")
            for i in range(4):
                A(f"v_pk_add_f32 {v(dst+8*p+2*i,2)}, {v(b+2*i,2)}, {v(b+16+2*i,2)}")
    reduce_tile(GR, [(v, 40), (v, 56), (v, 96), (a, 96)])
    A(f"""
    s_add_u32 s{sT2}, s{sXo}, 32768
    buffer_load_dwordx4 {v(XR,4)}, v{vXo}, {s(sX,4)}, s{sXo} offen
    buffer_load_dwordx4 {v(XR+4,4)}, v{vXo}, {s(sX,4)}, s{sT2} offen
    """)
    Tv = AD
    for i in range(8): A(f"v_pk_mul_f32 {v(Tv+2*i,2)}, {v(GR+2*i,2)}, {s(sC,2)}")
    for i in range(16): A(f"v_exp_f32 v{Tv+i}, v{Tv+i}")
    A("s_nop 0")
    for i in range(8): A(f"v_pk_add_f32 {v(Tv+2*i,2)}, {v(Tv+2*i,2)}, 1.0 op_sel_hi:[1,0]")
    for i in range(16): A(f"v_rcp_f32 v{Tv+i}, v{Tv+i}")
    A("s_nop 0")
    for i in range(8): A(f"v_pk_mul_f32 {v(GR+2*i,2)}, {v(GR+2*i,2)}, {v(Tv+2*i,2)}")
    ST()
    A(f"""
    s_lshl_b32 s{sT2}, s{sRB}, 12
    s_lshl_b32 s{sT0}, s{sGW}, 10
    s_add_u32 s{sT2}, s{sT2}, s{sT0}
    s_add_u32 s{sT2}, s{sT2}, {FO}
    s_lshl_b32 s7, s{sRB}, 16
    s_lshl_b32 s{sT0}, s{sGW}, 13
    s_add_u32 s7, s7, s{sT0}
    s_add_u32 s7, s7, {OF}
    s_add_u32 s6, s7, 4096
    s_lshl_b32 s{sT0}, s{sGW}, 9
    s_add_u32 s{sT0}, s{sT0}, {AFL+256}
    v_mov_b32 v{vP}, s{sT0}
    """)
    lds_spin("L_ow", vHF, vP, 0, f"v_cmp_eq_u32 vcc, 0, v{vHF}", sleep=4)
    spin_flags("L_of", vHF, vL128, sT2, 8, sleep=2)
    ST()
    def of(i, mi):
        k = 8 * i + 4 * mi
        return a(64 + k, 4) if k < 48 else v(112 + k - 48, 4)
    for i in range(8):
        so = 7 if i < 4 else 6
        A(f"buffer_load_dwordx4 {of(i,0)}, v{vL16}, {ws}, s{so} offen offset:{(i%4)*1024} sc1")
        A(f"buffer_load_dwordx4 {of(i,1)}, v{vO1}, {ws}, s{so} offen offset:{(i%4)*1024} sc1")
    for i in range(8):
        A(f"s_waitcnt vmcnt({14-2*i})")
        for ni in range(2):
            for mi in range(2):
                d = v(AD + 16 * (2 * ni + mi), 16); c = "0" if i == 0 else d
                A(f"{MF} {d}, {a(8*i+4*ni,4)}, {of(i,mi)}, {c}")
    A("s_nop 7")
    reduce_tile(SR, [(v, AD + 16 * i) for i in range(4)])
    A(f"s_add_u32 s{sT2}, s{sXo}, 32768")
    for p in range(2):
        for i in range(4):
            A(f"v_lshlrev_b32 v{Tv+2*i}, 16, v{XR+4*p+i}")
            A(f"v_and_b32 v{Tv+2*i+1}, 0xffff0000, v{XR+4*p+i}")
        for i in range(4):
            A(f"v_pk_fma_f32 {v(Tv+2*i,2)}, {v(SR+8*p+2*i,2)}, {v(GR+8*p+2*i,2)}, {v(Tv+2*i,2)}")
        for i in range(4):
            A(f"v_cvt_pk_bf16_f32 v{XR+4*p+i}, v{Tv+2*i}, v{Tv+2*i+1}")
        A(f"buffer_store_dwordx4 {v(XR+4*p,4)}, v{vXo}, {s(sOut,4)}, s{sXo if p == 0 else sT2} offen")
    if stamps:
        ST.on = True
        if not FR: ST(); ST.flush(ws, STAMP, sWave, 2, 3, sT0)
        if opt.get("dbgout"):
            A(f"s_cmp_lg_u32 s2, {opt['dbgout']-1}\ns_cbranch_scc1 L_dbx\ns_cmp_lg_u32 s{sWave}, 4\ns_cbranch_scc1 L_dbx\nv_mov_b32 v2, 0")
            for i in range(1, ST.n):
                A(f"s_sub_u32 s4, s{ST.base+2*i}, s{ST.base}\nv_mov_b32 v3, s4\nbuffer_store_dword v3, v2, {s(sDbg,4)}, 0 offen offset:{4*i}\ns_nop 1")
            A.label("L_dbx")
    A("s_endpgm")
    for f in slow: f()
    slow.clear()

    ST.n = 2 if stamps else 0
    A.label("L_attn")
    lq.clear(); vmq.clear()
    for g in range(NEARLY): vmq.push(("dma", "q", g), 4)
    def pub_ld(g):
        d = ddq(g); vwait(("dma", d[0], d[1])); lds(f"ds_add_u32 v{vCnt}, v{vOne}", "add")
    def FS():
        if FR: ST()
    def p2():
        A(f"s_mov_b64 exec, {PF2MASK}\nbuffer_load_dword v143, v30, {s(sWgu,4)}, s68 offen\ns_mov_b64 exec, -1"); vmq.push("pf")
    FS()
    NB4 = opt.get("nb4", 4)
    for g in range(NEARLY, NB4):
        dma(*ddq(g))
        if g == opt.get("p1at", 3):
            A(f"s_mov_b64 exec, {'0xffff0000' if opt.get('p1kv', 1) else '0xffffffff'}\nbuffer_load_dword v143, v{aP3}, {s(sWq,4)}, s7 offen\ns_mov_b64 exec, -1"); vmq.push("pf")
            if opt.get("p2early", 1): p2()
    pub_ld(0)
    A("s_waitcnt lgkmcnt(0)\ns_barrier"); lq.clear()
    ST()
    for g in range(1, NB4): pub_ld(g)
    for g in range(NB4, 5): dma(*ddq(g))
    FS()
    A(GUADDR)
    A(f"""
    s_and_b32 s{sT0}, s2, 7
    s_lshr_b32 s{sT1}, s2, 3
    s_and_b32 s{sT2}, s{sT1}, 3
    s_lshl_b32 s{sHead}, s{sT0}, 2
    s_add_u32 s{sHead}, s{sHead}, s{sT2}        ; head
    s_lshr_b32 s{sT1}, s{sT1}, 2
    s_lshl_b32 s{sT1}, s{sT1}, 1
    s_add_u32 s{sT1}, s{sT1}, s{sMI}
    s_lshr_b32 s4, s{sWave}, 1
    s_lshl_b32 s5, s{sHead}, 16
    s_lshl_b32 s{sQ}, s{sT1}, 12
    s_add_u32 s{sQ}, s{sQ}, s5
    s_lshl_b32 s6, s4, 11
    s_add_u32 s{sQ0}, s{sQ}, s6
    s_xor_b32 s6, s6, 2048
    s_add_u32 s{sQ}, s{sQ}, s6
    s_lshl_b32 s{sT1}, s{sT1}, 1
    s_add_u32 s{sT1}, s{sT1}, s4
    s_lshl_b32 s{sO}, s{sT1}, 16
    s_lshl_b32 s{sT0}, s{sHead}, 10
    s_add_u32 s{sO}, s{sO}, s{sT0}
    s_add_u32 s{sO}, s{sO}, {OF}
    s_lshl_b32 s{sFo}, s{sT1}, 12
    s_lshl_b32 s{sT0}, s{sHead}, 7
    s_add_u32 s{sFo}, s{sFo}, s{sT0}
    s_add_u32 s{sFo}, s{sFo}, {FO}
    s_add_u32 s{sKb}, s5, {KF}
    s_lshl_b32 s{sT0}, s4, 15
    s_add_u32 s{sKVb}, s{sKb}, s{sT0}
    v_mov_b32 v{vK}, v{vL16}
    v_lshrrev_b32 v{vV}, 5, v{vL}
    v_lshlrev_b32 v{vV}, 8, v{vV}
    v_and_b32 v{aPKV}, 15, v{vL}
    v_lshl_add_u32 v{vV}, v{aPKV}, 4, v{vV}
    v_add_u32 v{vV}, {VF-KF}, v{vV}
    s_mov_b32 s{sMask}, 0x0000ffff
    s_mov_b32 s{sMask+1}, 0x0000ffff
    s_mov_b32 s{sFB}, 1
    s_mov_b32 s{sOff}, {hex(f2u(-OFFSET))}
    v_mov_b32 v{vIdx}, 0xdddddddd
    v_and_b32 v{aOnes}, 27, v{vL}
    v_cmp_eq_u32 vcc, 16, v{aOnes}
    v_mov_b32 v{aOnes}, 0x3f803f80
    s_lshr_b32 s{sFQ}, s{sHead}, 1
    v_cndmask_b32 v{aOnes}, 0, v{aOnes}, vcc
    s_lshl_b32 s{sFQ}, s{sFQ}, 13
    s_add_u32 s{sFQ}, s{sFQ}, {FQ}
    v_lshlrev_b32 v{aL128}, 7, v{vL}
    s_lshr_b32 s{sPKV}, s2, 5
    s_lshl_b32 s{sPKV}, s{sPKV}, 2
    s_add_u32 s{sPKV}, s{sPKV}, s{sWave}
    s_lshl_b32 s{sPKV}, s{sPKV}, 11
    s_add_u32 s{sPKV}, s{sPKV}, s{sKb}          ; K/V slice
    v_lshlrev_b32 v{aPKV}, 7, v{aPKV}
    v_bfe_u32 v{aPF}, v{vL}, 4, 1
    v_lshl_add_u32 v{aPKV}, v{aPF}, 21, v{aPKV}
    """)
    assert VF - KF == 1 << 21
    for g in range(NB4, 5): pub_ld(g)
    check(True, 0, 1)
    FS()
    NPRE = 12 + NG0
    for g in range(5, NPRE):
        if g >= 9: check(True, 0, g - 7)
        if g == 12:
            pub_ld(11)
            if not opt.get("p2early", 1): p2()
        dma(*ddq(g))
        if g >= 7 and g < 16: FS()
        if g > 5 and g != 12: pub_ld(g - 1)
    pub_ld(NPRE - 1)
    for x in VRG:
        for i in range(8):
            A(f"v_accvgpr_write_b32 a{x[1]+i}, v{aOnes}" if x[0] == "a" else f"v_mov_b32 v{x[1]+i}, v{aOnes}")
    zero_o()
    if FR: ST(); ST.flush(ws, STAMP, sWave, 2, 3, sT0); A("s_endpgm"); ST.on = False; stamps = False
    if opt.get("aexit"): A("s_waitcnt lgkmcnt(0)\ns_endpgm")
    get_tag(vF, vT1, "L_atag")
    A(f"s_setprio 2\ns_cmp_lg_u32 s{sWave}, 0\ns_cbranch_scc1 L_aw")
    lds_spin("L_ag2", M, vCntR, 0, f"v_cmp_gt_u32 vcc, 12, v{M}", sleep=1)
    ST()
    spin_flags("L_qf", vF, aL128, sFQ, 64, sleep=2)
    A(f"ds_write_b32 v{aGo}, v{vOne}\ns_branch L_aw_x")
    A.label("L_aw")
    if stamps: ST.n -= 1; ST()
    lds_spin("L_ag3", M, aGo, 0, f"v_cmp_eq_u32 vcc, 0, v{M}", sleep=1)
    A.label("L_aw_x")
    ST()
    def so_imm(rel): return (sKA, (rel - 4) * 1024) if rel < 8 else (sKB2, (rel - 8) * 1024)
    KVM = opt.get("kvm", " sc1")
    def kload(r, so, imm): A(f"buffer_load_dwordx4 {rg(KRG[r])}, v{vK}, {ws}, s{so} offen offset:{imm}{KVM}")
    def vload(r, so, imm):
        A(f"s_mov_b64 exec, {s(sMask,2)}")
        A(f"buffer_load_dwordx4 {rg(VRG[r])}, v{vV}, {ws}, s{so} offen offset:{imm}{KVM}")
        A(f"buffer_load_dwordx4 {rg(VRG[r],4)}, v{vV}, {ws}, s{so} offen offset:{imm+512}{KVM}")
        A(f"s_mov_b64 exec, -1")
    E0 = 3
    def ring_prologue():
        A(f"s_add_u32 s{sKA}, s{sKVb}, {4096 - E0*1024}\ns_add_u32 s{sKB2}, s{sKVb}, {8192 - E0*1024}")
        for b in range(5):
            if b < 4: kload((E0 + b) % NR, sKVb, b * 1024); vload((E0 + b) % NR, sKVb, b * 1024)
            else: kload((E0 + b) % NR, sKA, 3072)
    A(f"buffer_load_dwordx4 {a(KS,4)}, v{vK}, {ws}, s{sKb} offen sc1")
    A(f"buffer_load_dwordx4 {a(KS+4,4)}, v{vK}, {ws}, s{sKb} offen offset:1024 sc1")
    for t in range(4):
        A(f"buffer_load_dwordx4 {a(Q+4*t,4)}, v{vK}, {ws}, s{sQ0 if t < 2 else sQ} offen offset:{(t&1)*1024} sc1")
    ring_prologue()
    A(f"ds_add_u32 v{vCnt}, v{vOne}")
    npf = 0
    if opt.get("pkv", 1):
        A(f"s_mov_b64 exec, 0xffffffff\nbuffer_load_dword v143, v{aPKV}, {ws}, s{sPKV} offen{KVM}\ns_mov_b64 exec, -1"); npf += 1
    A(f"s_waitcnt vmcnt({13+npf})")
    def maxtree(dst, blocks, first):
        regs = [b + i for b in blocks for i in range(16)]
        if first:
            A(f"v_max3_f32 v{dst}, v{regs[0]}, v{regs[1]}, v{regs[2]}"); regs = regs[3:]
        while len(regs) >= 2:
            A(f"v_max3_f32 v{dst}, v{dst}, v{regs[0]}, v{regs[1]}"); regs = regs[2:]
        if regs: A(f"v_max_f32 v{dst}, v{dst}, v{regs[0]}")
    for t in range(2): A(f"{MF} {v(SB+16*t,16)}, {a(KS+4,4)}, {a(Q+4*t,4)}, 0")
    for t in range(4): A(f"{MF} {v(C+16*t,16)}, {a(KS,4)}, {a(Q+4*t,4)}, 0")
    A("s_nop 6")
    for t in range(2): maxtree(M + t, [SB + 16 * t], True)
    for t in range(2): A(f"{MF} {v(SB+16*t,16)}, {a(KS+4,4)}, {a(Q+8+4*t,4)}, 0")
    for t in range(2): maxtree(M + t, [C + 16 * t], False)
    for t in range(2, 4): maxtree(M + t, [C + 16 * t, SB + 16 * (t - 2)], True)
    zero_o(8)
    A.label("L_amain")
    for t in range(4): A(f"v_mov_b32 v{2+t}, v{M+t}")
    A("s_nop 1")
    for t in range(4): A(f"v_permlane32_swap_b32 v{2+t}, v{M+t}")
    for t in range(4): A(f"v_max_f32 v{M+t}, v{M+t}, v{2+t}")
    for t in range(4): A(f"v_sub_f32 v{M+t}, s{sOff}, v{M+t}")
    for i in range(16): A(f"v_mov_b32 v{C+i}, v{M}")
    A("s_waitcnt vmcnt(10)")
    A(f"s_mov_b32 s{sCnt}, 7")
    A(f"{MF} {v(SB,16)}, {rg(KRG[E0])}, {a(Q,4)}, {v(C,16)}")
    for t in range(1, 4):
        for i in range(16): A(f"v_mov_b32 v{C+16*t+i}, v{M+t}")
    for i in range(8): A(f"v_mov_b32 v{SB+16+8+i}, 0")
    ST()
    if stamps: A("s_memtime s[96:97]")
    if opt.get("atrace"): A("s_mov_b32 s64, 0\ns_memrealtime s[66:67]")
    A("s_branch L_aent")
    A.raw(".p2align 6")
    A.label("L_aloop")
    for r in range(NR):
        if r == E0: A.label("L_aent")
        for t in range(4):
            X = SB + 16 * (t & 1); Y = SB + 16 * ((t + 1) & 1)
            tn = (t + 1) & 3; rn = r if t < 3 else (r + 1) % NR
            tp = (t - 1) & 3; rp = r if t > 0 else (r - 1) % NR
            E = lambda j: f"v_exp_f32 v{X+j}, v{X+j}"
            for j in range(0, 3): A(E(j))
            A(f"{SMF} {a(O+16*tp,16)}, {rg(VRG[rp],4)}, {v(Y+8,8)}, v{vIdx}")
            A(E(3))
            if t == 0: vload(rp, *so_imm(r + 4))
            if t == 3: kload(r, *so_imm(r + 5))
            for j in range(4, 7): A(E(j))
            if t == 1 and opt.get("atrace"):
                A("s_waitcnt lgkmcnt(0)\ns_mov_b32 m0, s64\ns_add_u32 s64, s64, 1\nv_writelane_b32 v140, s66, m0\ns_memrealtime s[66:67]")
            if t == 3: A("s_waitcnt vmcnt(10)")
            A(f"{MF} {v(Y,16)}, {rg(KRG[rn])}, {a(Q+4*tn,4)}, {v(C+16*tn,16)}")
            for j in range(7, 12): A(E(j))
            A(f"{SMF} {a(O+16*t,16)}, {rg(VRG[r])}, {v(X,8)}, v{vIdx}")
            if r == NR - 1 and t == 3:
                A(E(12))
                A(f"s_add_u32 s{sKA}, s{sKA}, 5120\ns_add_u32 s{sKB2}, s{sKB2}, 5120\ns_sub_u32 s{sCnt}, s{sCnt}, 1\ns_cmp_lg_u32 s{sCnt}, 0")
                for j in range(13, 16): A(E(j))
            else:
                for j in range(12, 16): A(E(j))
    A("s_cbranch_scc1 L_aloop")
    A("s_nop 1")
    A(f"{SMF} {a(O+48,16)}, {rg(VRG[NR-1],4)}, {v(SB+16+8,8)}, v{vIdx}")
    ST()
    if stamps: A("s_memtime s[98:99]")
    A(f"""
    s_mul_i32 s{sT0}, s{sWave}, {CMBW}
    s_add_u32 s{sT0}, s{sT0}, {CMB}
    v_add_u32 v2, s{sT0}, v{vK}
    v_lshl_add_u32 v3, v{vL}, 2, s{sT0}
    s_xor_b32 s{sT0}, s{sWave}, 2
    s_mul_i32 s{sT0}, s{sT0}, {CMBW}
    s_add_u32 s{sT0}, s{sT0}, {CMB}
    v_add_u32 v4, s{sT0}, v{vK}
    v_lshl_add_u32 v5, v{vL}, 2, s{sT0}
    v_mov_b32 v{vF}, s{sFB}
    """)
    for i in range(2):
        t = 2 + i
        if i == 1: A("s_nop 0")
        A(f"ds_write_b128 v2, {a(O+16*t,4)} offset:{i*2304}")
        A(f"ds_write_b128 v2, {a(O+16*t+4,4)} offset:{i*2304+1024}")
        A(f"ds_write_b32 v3, a{O+16*t+8} offset:{i*2304+2048}")
    A(f"ds_write_b32 v{vAF}, v{vF}")
    for i in range(2):
        for e in range(9): A(f"v_accvgpr_read_b32 v{C+24*i+e}, a{O+16*i+e}")
    lds_spin("L_ax", M, vPF, 0, f"v_cmp_gt_u32 vcc, s{sFB}, v{M}")
    for i in range(2):
        b = C + 24 * i + 12
        A(f"ds_read_b128 {v(b,4)}, v4 offset:{i*2304}")
        A(f"ds_read_b128 {v(b+4,4)}, v4 offset:{i*2304+1024}")
        A(f"ds_read_b32 v{b+8}, v5 offset:{i*2304+2048}")
    A(f"""
    v_mov_b32 v2, 0
    s_mov_b64 {s(sBad,2)}, 0
    s_mov_b32 s4, {hex(f2u(2.0**-110))}
    s_mov_b32 s5, {hex(f2u(2.0**120))}
    s_add_u32 s6, s{sO}, 32768
    s_waitcnt lgkmcnt(0)
    """)
    for i in range(2):
        b0 = C + 24 * i
        for e in range(9): A(f"v_add_f32 v{b0+e}, v{b0+e}, v{b0+12+e}")
        A(f"v_rcp_f32 v{b0+9}, v{b0+8}")
        A(f"v_cmp_nle_f32 vcc, s4, v{b0+8}")
        A(f"s_or_b64 {s(sBad,2)}, {s(sBad,2)}, vcc")
        A(f"v_cmp_nge_f32 vcc, s5, v{b0+8}")
        A(f"s_or_b64 {s(sBad,2)}, {s(sBad,2)}, vcc")
        for e in range(8): A(f"v_mul_f32 v{b0+e}, v{b0+e}, v{b0+9}")
        for e in range(4): A(f"v_cvt_pk_bf16_f32 v{b0+12+e}, v{b0+2*e}, v{b0+2*e+1}")
        A(f"buffer_store_dwordx4 {v(b0+12,4)}, v{vK}, {ws}, s{sO if i == 0 else 6} offen sc1")
    for i in range(2):
        for e in range(8): A(f"v_fma_f32 v2, v{C+24*i+e}, 0, v2")
    A(f"""
    v_cmp_u_f32 vcc, v2, v2
    s_or_b64 {s(sBad,2)}, {s(sBad,2)}, vcc
    s_cmp_lg_u64 {s(sBad,2)}, 0
    s_cselect_b32 s4, 2, 1
    v_mov_b32 v2, s4
    v_mov_b32 v3, s{sTag}
    v_mov_b32 v4, 0
    ds_write_b32 v{vAF}, v2 offset:256
    s_cmp_eq_u32 s{sFB}, 2
    s_cselect_b32 s5, 1, s4
    s_cmp_lg_u32 s5, 1
    s_cbranch_scc1 L_anoflag
    s_waitcnt vmcnt(0)
    s_mov_b64 exec, 1
    buffer_store_dword v3, v4, {ws}, s{sFo} offen sc1
    s_mov_b64 exec, -1
    """)
    A.label("L_anoflag")
    if stamps:
        ST(); A("s_waitcnt lgkmcnt(0)\ns_sub_u32 s98, s98, s96\ns_add_u32 s%d, s98, s%d" % (ST.base + 2 * ST.n, ST.base)); ST.n += 1
        ST.flush(ws, STAMP, sWave, 2, 3, sT0)
        if opt.get("atrace"):
            A(f"s_add_u32 s{sT0}, s{sT0}, {MB}\nv_lshlrev_b32 v2, 2, v{vL}\nbuffer_store_dword v140, v2, {ws}, s{sT0} offen")
    A(f"s_cmp_eq_u32 s{sFB}, 2\ns_cbranch_scc1 L_end")
    lds_spin("L_as", M, vPF, 256, f"v_cmp_eq_u32 vcc, 0, v{M}")
    A(f"v_readfirstlane_b32 s5, v{M}\ns_max_u32 s4, s4, s5\ns_cmp_lt_u32 s4, 2\ns_cbranch_scc1 L_end")
    A(f"s_mov_b32 s{sFB}, 2\ns_mov_b32 s{sOff}, 0\ns_mov_b32 s{sCnt}, 64\ns_mov_b32 s{sKA}, s{sKb}\ns_waitcnt vmcnt(0)")
    for t in range(4): A(f"v_mov_b32 v{M+t}, 0xff800000")
    A.label("L_afb")
    A(f"buffer_load_dwordx4 {a(KS,4)}, v{vK}, {ws}, s{sKA} offen sc1")
    A("s_waitcnt vmcnt(0)")
    for t in range(4): A(f"{MF} {v(C+16*t,16)}, {a(KS,4)}, {a(Q+4*t,4)}, 0")
    A("s_nop 11")
    for t in range(4): maxtree(M + t, [C + 16 * t], False)
    A(f"s_add_u32 s{sKA}, s{sKA}, 1024\ns_sub_u32 s{sCnt}, s{sCnt}, 1\ns_cmp_lg_u32 s{sCnt}, 0\ns_cbranch_scc1 L_afb")
    vload((E0 - 1) % NR, sKVb, 0)
    A("s_waitcnt vmcnt(0)")
    ring_prologue()
    zero_o()
    A("s_branch L_amain")
    for f in slow: f()
    A.label("L_end")
    A("s_endpgm")
    A.raw(f".fill (51200 - (. - {K})) / 4, 4, 0xbf800000")

    H_ = Asm()
    H_.raw(f"; @launch grid=(256,1,1) block=(512,1,1) lds={LDS}")
    H_.raw('.amdgcn_target "amdgcn-amd-amdhsa--gfx950"\n.text')
    H_.lines += A.lines
    H_.raw(f""".section .rodata,"a"
.p2align 6
.amdhsa_kernel {K}
  .amdhsa_next_free_vgpr {NV+NA}
  .amdhsa_next_free_sgpr 102
  .amdhsa_accum_offset {NV}
  .amdhsa_group_segment_fixed_size 0
  .amdhsa_kernarg_size 80
  .amdhsa_user_sgpr_count 2
  .amdhsa_user_sgpr_kernarg_segment_ptr 1
  .amdhsa_system_sgpr_workgroup_id_x 1
.end_amdhsa_kernel""")
    txt = H_.text()
    check_hazards(txt)
    return txt

if __name__ == "__main__":
    base = {"pfgo": 1}
    open("mega_s.s", "w").write(build(True, base))
    open("mega.s", "w").write(build(False, base))
    open("mega_tr.s", "w").write(build(True, dict(base, atrace=1)))
    open("mega_dbg.s", "w").write(build(True, dict(base, dbgout=10)))
    open("mega_pt.s", "w").write(build(False, dict(base, pretouch=1)))
    open("mega_nc.s", "w").write(build(False, dict(base, cpf=0)))
    open("mega_b.s", "w").write(build(True, dict(base, p1kv=0, p2early=0)))
    open("mega_c.s", "w").write(build(True, dict(base, p1kv=1, p2early=0)))
    open("mega_d.s", "w").write(build(True, dict(base, p1kv=0, p2early=1)))
```

```python
import sys, json
from mega import build
base = {"pfgo": 1, "cpf": 1, "ne": 1, "t0": 3, "rate": 8, "s0": 4, "pfw": 0, "klag": 3, "p4": 0, "offset": 100, "ke": 6, "ng0": 1, "np0": 3, "qfirst": 1, "qsleep": 8, "ge": 2, "nb4": 5, "gate": 31, "gater": 16, "ni": 5, "hl": 2}
for spec in sys.argv[1:]:
    name, _, kv = spec.partition(":")
    o = dict(base)
    for item in kv.split(","):
        if item:
            k, v = item.split("="); o[k] = int(v)
    st = o.pop("stamps", 0)
    open(f"v_{name}.s", "w").write(build(bool(st), o))
```

```python
import sys, struct
from asmlib import *
from layout import *
NAME = 'recurrent_scan__softmax_full_mha__glu_gated_geglu__prompt'
def f2u(x): return struct.unpack("<I", struct.pack("<f", x))[0]
MF = "v_mfma_f32_32x32x16_bf16"
SMF = "v_smfmac_f32_32x32x32_bf16"
C1 = -2.0 * 1.4426950408889634 * 0.7978845608028654
C2 = C1 * 0.044715
OFFSET = 80.0
NV, NA = 144, 112

SLOT = 16384
RB0 = 8192
RKV = 10
PIECE = 528
XT = RB0 + 5 * SLOT
CMB = RB0 + 8 * SLOT
CMBW = 2 * 2304
CNT = CMB + 4 * CMBW
LDC = CNT + 1024
AFL = LDC + 1024
GO = AFL + 8 * 256
LDS = GO + 256
assert XT + 128 * PIECE <= CNT and LDS <= 163840 and 4 * RKV * 1024 == RB0 + 2 * SLOT

class Fifo:
    def __init__(self, cap): self.q = []; self.cap = cap; self.since = 0
    def push(self, tag, n=1): self.q += [tag] * n; self.since += n
    def need(self, tag):
        idx = [i for i, t in enumerate(self.q) if t == tag]
        if not idx: return None
        return min(len(self.q) - 1 - idx[-1], self.cap)
    def waited(self, n): self.q = self.q[max(0, len(self.q) - n):] if n else []
    def clear(self): self.q = []

def build(stamps=False, opt=None):
    opt = opt or {}
    TIMEOUT = opt.get("timeout", 200000)
    NG0 = opt.get('ng0', 4)
    PF2MASK = '0xffffffff'
    A = Asm()
    K = NAME + "_kernel"
    ST = Stamps(A, 70, stamps); ST.cyc = opt.get('cyc', False)
    sX, sWq, sWgu, sWd, sWo, sWS, sOut, sDbg = 8, 12, 16, 20, 24, 28, 32, 36
    sWave, sRB, sCG, sT0, sT1, sT2, sTag, sTO = 40, 41, 42, 43, 44, 45, 46, 47
    sGW, sMI, sNI, sM0, sQoff, sGoff, sDoff, sOoffW, sNeed, sFlag, sHst, sBlk, sNb = 48, 49, 50, 51, 52, 53, 54, 55, 56, 57, 58, 59, 60
    sHfl, sC, sD0, sD1, sHld, sXo, sHb, sSt = 61, 62, 64, 65, 66, 67, 68, 69
    sKA, sCnt, sKB2, sBad = 48, 51, 49, 52
    sFB, sOff, sQ, sKVb, sHead, sO, sKb, sFo = 50, 54, 55, 56, 57, 60, 61, 62
    sMask, sQ0, sFQ, sP3, sPKV = 58, 63, 65, 66, 67
    sKVs, sKVm = 52, 1
    ws = s(sWS, 4)
    vL, vT0, vT1, vT2, vHF = 1, 2, 3, 4, 5
    vDq0, vDq1, vDg0, vDg1, vDd0, vDd1 = 6, 7, 8, 9, 10, 11
    vTRn, vTRnH, vTRp0, vTRp0H, vTRp1, vTRp1H = 12, 13, 14, 15, 16, 17
    vCnt, vOne, vP, vL16, vFl, vL128 = 18, 19, 20, 21, 22, 23
    vH0, vO0 = 6, 7
    vCntR = 0
    slow = []
    vKo, vVo, vH1, vO1, vXo, vRW, vRR, vXR = 24, 25, 26, 27, 28, 29, 30, 31
    WFB = [32, 36, 112, 116, 120, 124]
    if opt.get('twice'): WFB = [32, 128, 112, 116, 120, 124]
    ACC0, ACC1, TMP, AD, XR, GR, SR = 40, 56, 72, 40, 104, 128, 112
    vmq = Fifo(63); lq = Fifo(15)
    uid = [0]
    lowprio = [False]
    def lab(p):
        uid[0] += 1; return f"L_{p}{uid[0]}"
    def vwait(tag):
        n = vmq.need(tag)
        if n is not None: A(f"s_waitcnt vmcnt({n})"); vmq.waited(n)
    def lwait(tag):
        n = lq.need(tag)
        if n is not None: A(f"s_waitcnt lgkmcnt({n})"); lq.waited(n)
    def lds(instr, tag):
        if len(lq.q) >= 15:
            A("s_waitcnt lgkmcnt(12)"); lq.waited(12)
        A(instr); lq.push(tag)
    def timeout_exit(lbl):
        A(f"s_sub_u32 s{sTO}, s{sTO}, 1\ns_cmp_lt_i32 s{sTO}, 0\ns_cbranch_scc1 {lbl}")
    def emask(n): return n if isinstance(n, str) else ("-1" if n == 64 else hex((1 << n) - 1))

    A.raw(f".globl {K}\n.p2align 8\n.type {K},@function\n{K}:")
    F0 = opt.get("front0"); FR = opt.get("front")
    A(f"""
    s_cmp_ge_u32 s2, 256
    s_cbranch_scc1 L_end
    """)
    if opt.get("twice"): A("v_mov_b32 v135, 0"); A.label("L_restart")
    def again():
        if opt.get("twice"):
            l = lab("tw")
            A(f"s_waitcnt vmcnt(0) lgkmcnt(0)\ns_barrier\ns_setprio 0\nv_readfirstlane_b32 s4, v135\ns_cmp_lg_u32 s4, 0\ns_cbranch_scc1 {l}\nv_mov_b32 v135, 1\ns_lshl_b32 s4, s40, 6\nv_add_u32 v0, s4, v1\ns_sleep 40\ns_branch L_restart")
            A.label(l)
    if opt.get("scr"):
        A("s_and_b32 s4, s2, 7\ns_lshl_b32 s4, s4, 3\ns_bfe_u32 s5, s2, 0x30003\ns_and_b32 s2, s2, 0xc0\ns_or_b32 s2, s2, s4\ns_or_b32 s2, s2, s5")
    A(f"""
    s_load_dwordx4 s[4:7], s[0:1], 0
    s_load_dwordx2 s[24:25], s[0:1], 16
    s_load_dwordx4 s[16:19], s[0:1], 32
    s_load_dwordx4 s[20:23], s[0:1], 48
    s_load_dwordx4 s[36:39], s[0:1], 64
    """)
    if opt.get("cpf", 1):
        A(f"""
        s_getpc_b64 s[8:9]
        s_lshr_b32 s10, s2, 3
        s_lshl_b32 s10, s10, 7
        s_add_u32 s8, s8, s10
        s_addc_u32 s9, s9, 0
        v_lshlrev_b32 v2, 12, v0
        v_add_co_u32 v2, vcc, s8, v2
        v_mov_b32 v3, s9
        v_cmp_gt_u32 s[10:11], 12, v0
        v_addc_co_u32 v3, vcc, 0, v3, vcc
        s_and_saveexec_b64 s[12:13], s[10:11]
        s_cbranch_execz L_nocpf
        global_load_dword v143, v[2:3], off
        L_nocpf:
        s_mov_b64 exec, -1
        """)
    ST()
    A(f"""
    v_lshrrev_b32 v{vT0}, 6, v0
    v_and_b32 v{vL}, 63, v0
    s_and_b32 s{sT0}, s2, 7
    v_readfirstlane_b32 s{sWave}, v{vT0}
    s_lshr_b32 s{sT1}, s2, 3
    s_lshr_b32 s{sRB}, s{sT0}, 1
    s_lshl_b32 s{sRB}, s{sRB}, 3
    s_and_b32 s{sT2}, s{sT1}, 7
    s_add_u32 s{sRB}, s{sRB}, s{sT2}
    s_and_b32 s{sCG}, s{sT0}, 1
    s_lshl_b32 s{sCG}, s{sCG}, 2
    s_lshr_b32 s{sT2}, s{sT1}, 3
    s_add_u32 s{sCG}, s{sCG}, s{sT2}
    v_lshrrev_b32 v{vT0}, 3, v{vL}
    v_and_b32 v{vT1}, 7, v{vL}                  ; 16B piece
    v_lshlrev_b32 v{vT2}, 10, v{vT0}
    v_lshl_add_u32 v5, v{vT1}, 4, v{vT2}
    s_lshl_b32 s{sT0}, s{sRB}, 16
    s_lshl_b32 s{sT1}, s{sWave}, 13
    s_add_u32 s{sT0}, s{sT0}, s{sT1}
    s_mov_b32 s{sX+2}, {S*D*2}
    s_mov_b32 s{sX+3}, 0x00020000
    s_mov_b32 s{sWq+2}, {D*1536*2}
    s_mov_b32 s{sWq+3}, 0x00020000
    s_and_b32 s{sGW}, s{sWave}, 3
    s_and_b32 s{sMI}, s{sGW}, 1
    v_lshlrev_b32 v{vL16}, 4, v{vL}
    s_lshl_b32 s{sT1}, s{sGW}, 2
    s_add_u32 s{sT1}, s{sT1}, {CNT}
    v_lshlrev_b32 v{vCnt}, 2, v{vL}
    v_add_u32 v{vCnt}, {CNT+256}, v{vCnt}
    v_writelane_b32 v{vCnt}, s{sT1}, 0
    v_mov_b32 v{vOne}, 1
    v_and_b32 v{vFl}, 3, v{vL}
    v_lshlrev_b32 v{vCntR}, 2, v{vFl}
    v_add_u32 v{vCntR}, {CNT}, v{vCntR}
    s_mov_b32 s{sTO}, {TIMEOUT}
    s_waitcnt lgkmcnt(0)
    s_mov_b32 s{sX}, s4
    s_mov_b32 s{sX+1}, s5
    s_mov_b32 s{sWq}, s6
    s_mov_b32 s{sWq+1}, s7
    """)
    R = 40
    for cb in range(8):
        A(f"buffer_load_dwordx4 {v(R+4*cb,4)}, v5, {s(sX,4)}, s{sT0} offen offset:{cb*128}")
    SRDS = f"""
    s_mov_b32 s{sWS}, s38
    s_mov_b32 s{sWS+1}, s39
    s_mov_b32 s{sWS+2}, {WS_USED}
    s_mov_b32 s{sWS+3}, 0x00020000
    s_mov_b32 s{sDbg+2}, 256
    s_mov_b32 s{sDbg+3}, 0x00020000
    s_bitcmp1_b32 s{sWave}, 1
    s_cselect_b32 s{sWgu}, s18, s16
    s_cselect_b32 s{sWgu+1}, s19, s17
    s_mov_b32 s{sWgu+2}, {D*F*2}
    s_mov_b32 s{sWgu+3}, 0x00020000
    v_lshlrev_b32 v{vT2}, 1, v{vT0}
    v_and_b32 v{vT2}, 4, v{vT2}
    v_xor_b32 v{vT2}, v{vT2}, v{vT1}
    v_lshlrev_b32 v{vHF}, 4, v{vT2}
    s_lshl_b32 s{sM0}, s{sGW}, 12
    s_add_u32 s{sM0}, s{sM0}, {RB0}
    s_mul_i32 s{sBlk}, s{sCG}, 3
    s_add_u32 s{sT1}, s{sCG}, 1
    s_lshr_b32 s{sT1}, s{sT1}, 2
    s_sub_u32 s{sBlk}, s{sBlk}, s{sT1}
    """
    A(SRDS)
    A(f"s_cmp_lt_u32 s{sWave}, 4\ns_cbranch_scc1 L_pre_a")
    BASE = [0, 3, 6, 8, 11, 14, 17, 19]
    DSEQ = [BASE[j] for j in range(8) if j % 4 != 3] + [BASE[j] + 1 for j in range(8)] + [BASE[j] + 2 for j in range(8)]
    CSTART = {0: 0, 6: 1, 14: 2}
    CMASK = [0x0fff0fff, 0xffffffff, 0xffffffff]
    def dma_pieces(kind, idx, slot):
        if kind == "q":
            panel = (1, 2, 0)[idx // 4]; o = (idx % 4) * 128 * 3072 + panel * 1024
            srd, so, v0_, v1_, o2 = sWq, sQoff, vDq0, vDq1, o + 16 * 3072
        elif kind == "g":
            o = (idx % 8) * 64 * 2752 + (idx // 8) * 128
            srd, so, v0_, v1_, o2 = sWgu, sGoff, vDg0, vDg1, o + 16 * 2752
        elif kind == "d":
            o = DSEQ[2 * idx] * 64 * 1024; o2 = DSEQ[2 * idx + 1] * 64 * 1024
            srd, so, v0_, v1_ = sWd, sDoff, vDd0, vDd1
        else:
            o = idx * 32 * 1024; o2 = o + 16 * 1024
            srd, so, v0_, v1_ = sWo, sOoffW, vDd0, vDd1
        tag = ("dma", kind, idx)
        def p0():
            A(f"s_add_u32 m0, s{sM0}, {slot*SLOT}\ns_add_u32 s{sD0}, s{so}, {o}")
            A(f"buffer_load_dwordx4 v{v0_}, {s(srd,4)}, s{sD0} offen lds"); vmq.push(tag)
        def p1():
            if lowprio[0]: A(f"s_add_u32 m0, s{sM0}, {slot*SLOT}\ns_nop 0")
            A(f"buffer_load_dwordx4 v{v1_}, {s(srd,4)}, s{sD0} offen offset:1024 lds"); vmq.push(tag)
        def p2():
            if lowprio[0]: A(f"s_add_u32 m0, s{sM0}, {slot*SLOT}")
            A(f"s_add_u32 s{sD0}, s{so}, {o2 - 2048}")
            A(f"buffer_load_dwordx4 v{v0_}, {s(srd,4)}, s{sD0} offen offset:2048 lds"); vmq.push(tag)
        def p3():
            if lowprio[0]: A(f"s_add_u32 m0, s{sM0}, {slot*SLOT}\ns_nop 0")
            A(f"buffer_load_dwordx4 v{v1_}, {s(srd,4)}, s{sD0} offen offset:3072 lds"); vmq.push(tag)
        if opt.get("xnodma") and not (kind == "q" and idx < 5): return []
        if opt.get("xhalfdma") and not (kind == "q" and idx < 5): return [p0, p1]
        return [p0, p1, p2, p3]
    def dma(kind, idx, slot):
        cap = opt.get("ldcap", 40)
        for p in dma_pieces(kind, idx, slot):
            if len(vmq.q) > cap:
                A(f"s_waitcnt vmcnt({cap})"); vmq.waited(cap)
            p()
    def ddq(g): return ("q", g, g % 8) if g < 12 else ("g", g - 12, g % 8)
    GUADDR = f"""
    v_mul_u32_u24 v{vDg0}, 2752, v{vT0}
    v_add_u32 v{vDg0}, v{vDg0}, v{vHF}
    v_add_u32 v{vDg1}, {8*2752-1024}, v{vDg0}
    s_mul_i32 s{sGoff}, s{sMI}, {32*2752}
    s_lshl_b32 s{sT0}, s{sBlk}, 7
    s_add_u32 s{sGoff}, s{sGoff}, s{sT0}
    """
    A(f"""
    v_bfe_u32 v{vP}, v{vL}, 2, 2
    v_mul_u32_u24 v{vP}, 3072, v{vP}
    v_lshl_add_u32 v{vP}, v{vFl}, 7, v{vP}
    v_lshrrev_b32 v{vKo}, 4, v{vL}
    v_lshl_add_u32 v{vP}, v{vKo}, 10, v{vP}
    s_lshr_b32 s{sT1}, s2, 3
    s_mul_i32 s{sT1}, s{sT1}, {16*3072}
    s_mul_i32 s{sT0}, s{sGW}, {4*3072}
    s_add_u32 s{sT1}, s{sT1}, s{sT0}
    s_and_b32 s{sT0}, s2, 1
    s_lshl_b32 s{sT0}, s{sT0}, 9
    s_add_u32 s{sT1}, s{sT1}, s{sT0}
    s_lshr_b32 s{sNI}, s{sGW}, 1
    v_bfe_u32 v{vT2}, v{vL}, 2, 2
    v_lshlrev_b32 v{vTRp0}, 7, v{vT2}
    v_bfe_u32 v{vKo}, v{vL}, 4, 1
    v_lshl_add_u32 v{vTRp0}, v{vKo}, 5, v{vTRp0}
    v_lshl_add_u32 v{vTRp0}, v{vFl}, 3, v{vTRp0}
    v_lshrrev_b32 v{vH1}, 1, v{vT2}             ; r>>1
    v_lshrrev_b32 v{vO1}, 5, v{vL}              ; half
    v_xor_b32 v{vFl}, s{sNI}, v{vH1}
    v_lshl_add_u32 v{vTRn}, v{vFl}, 6, v{vTRp0}
    v_lshl_add_u32 v{vTRn}, v{vO1}, 10, v{vTRn}
    v_add_u32 v{vTRn}, {RB0}, v{vTRn}
    v_add_u32 v{vTRnH}, 65536, v{vTRn}
    v_and_b32 v{vRW}, 31, v{vL}
    v_mul_u32_u24 v{vXR}, {PIECE}, v{vO1}
    v_lshl_add_u32 v{vXR}, v{vRW}, 4, v{vXR}
    s_mul_i32 s{sT0}, s{sMI}, {64*PIECE}
    s_add_u32 s{sT0}, s{sT0}, {XT}
    v_add_u32 v{vXR}, s{sT0}, v{vXR}
    s_mov_b64 exec, {'0xffffffff' if opt.get('p1kv', 1) else '0xffff'}
    buffer_load_dword v143, v{vP}, {s(sWq,4)}, s{sT1} offen offset:1024
    s_mov_b64 exec, -1
    s_mov_b32 s3, 1
    s_setprio 1
    s_waitcnt vmcnt(1)
    s_branch L_ln
    """)
    GLATE = [x.strip() for x in (GUADDR + f"""
    s_mov_b32 s{sOut}, s22
    s_mov_b32 s{sOut+1}, s23
    s_mov_b32 s{sOut+2}, {S*D*2}
    s_mov_b32 s{sOut+3}, 0x00020000
    s_mov_b32 s{sWd+2}, {F*D*2}
    s_mov_b32 s{sWd+3}, 0x00020000
    s_mov_b32 s{sWo+2}, {D*D*2}
    s_mov_b32 s{sWo+3}, 0x00020000
    v_lshl_add_u32 v{vDd0}, v{vT0}, 10, v{vHF}
    v_add_u32 v{vDd1}, {8*1024-1024}, v{vDd0}
    s_lshl_b32 s{sT2}, s{sCG}, 7
    s_lshl_b32 s{sDoff}, s{sGW}, 14
    s_add_u32 s{sDoff}, s{sDoff}, s{sT2}
    s_lshl_b32 s{sOoffW}, s{sGW}, 17
    s_add_u32 s{sOoffW}, s{sOoffW}, s{sT2}
    s_lshl_b32 s{sXo}, s{sRB}, 16
    s_add_u32 s{sXo}, s{sXo}, s{sT2}
    s_and_b32 s{sNb}, s{sCG}, 3
    v_lshl_add_u32 v{vTRp0}, v{vH1}, 6, v{vTRp0}
    v_lshl_add_u32 v{vTRp0}, v{vO1}, 9, v{vTRp0}
    v_add_u32 v{vTRp0}, s{sM0}, v{vTRp0}
    s_lshl_b32 s{sT0}, s{sNI}, 6
    v_xor_b32 v{vTRp0}, s{sT0}, v{vTRp0}
    v_xor_b32 v{vTRp1}, 64, v{vTRp0}
    v_add_u32 v{vTRp0H}, 65536, v{vTRp0}
    v_add_u32 v{vTRp1H}, 65536, v{vTRp1}
    v_lshlrev_b32 v{vL128}, 7, v{vL}
    v_lshlrev_b32 v{vVo}, 16, v{vKo}
    v_lshl_add_u32 v{vVo}, v{vO1}, 8, v{vVo}
    v_and_b32 v{vT2}, 15, v{vL}
    v_lshl_add_u32 v{vVo}, v{vT2}, 4, v{vVo}
    v_add_u32 v{vVo}, {VF}, v{vVo}
    v_lshlrev_b32 v{vXo}, 10, v{vRW}
    v_lshl_add_u32 v{vXo}, v{vO1}, 3, v{vXo}
    v_lshl_add_u32 v{vRR}, v{vO1}, 3, v{vXo}
    s_lshl_b32 s{sT0}, s{sGW}, 12
    v_add_u32 v{vRW}, s{sT0}, v{vL16}
    s_and_b32 s{sKVs}, s2, 7
    s_lshl_b32 s{sKVs}, s{sKVs}, 2
    s_bfe_u32 s{sT0}, s2, 0x20003
    s_add_u32 s{sKVs}, s{sKVs}, s{sT0}
    s_lshl_b32 s{sKVs}, s{sKVs}, 16
    s_lshl_b32 s{sT0}, s{sNI}, 15
    s_add_u32 s{sKVs}, s{sKVs}, s{sT0}
    s_lshl_b32 s{sT0}, s{sMI}, 21
    s_add_u32 s{sKVs}, s{sKVs}, s{sT0}
    s_add_u32 s{sKVs}, s{sKVs}, {KF}
    s_mul_i32 s{sKVm}, s{sGW}, {RKV*1024}
    s_lshl_b32 s{sT0}, s{sMI}, 15
    s_add_u32 s{sXo}, s{sXo}, s{sT0}
    s_lshl_b32 s{sT0}, s{sNI}, 6
    s_add_u32 s{sXo}, s{sXo}, s{sT0}
    v_and_b32 v{vKo}, 0x33, v{vL}
    v_lshrrev_b32 v{vT2}, 1, v{vL}
    v_and_b32 v{vT2}, 4, v{vT2}
    v_lshlrev_b32 v{vO1}, 1, v{vL}
    v_and_b32 v{vO1}, 8, v{vO1}
    v_or3_b32 v{vKo}, v{vKo}, v{vT2}, v{vO1}
    v_lshlrev_b32 v{vKo}, 4, v{vKo}
    v_add_u32 v{vKo}, {KF}, v{vKo}
    s_mul_i32 s{sT0}, s{sMI}, {86*1024}
    v_add_u32 v{vH0}, s{sT0}, v{vL16}
    s_sub_u32 s{sT0}, {86*1024}, s{sT0}
    v_add_u32 v{vH1}, s{sT0}, v{vL16}
    s_lshl_b32 s{sT0}, s{sMI}, 15
    v_add_u32 v{vO0}, s{sT0}, v{vL16}
    v_xor_b32 v{vO1}, 32768, v{vO0}
    v_lshlrev_b32 v{vXR}, 10, v{vL}
    v_mov_b32 v{vT2}, 0
    v_mov_b32 v{vT0}, {hex(f2u(C1))}
    v_mov_b32 v{vT1}, {hex(f2u(C1))}
    s_lshl_b32 s{sT2}, s{sRB}, 1
    s_add_u32 s{sT2}, s{sT2}, s{sMI}
    s_mul_i32 s{sHst}, s{sT2}, {86*1024}
    s_lshl_b32 s{sT1}, s{sCG}, 1
    s_add_u32 s{sT1}, s{sT1}, s{sNI}
    s_lshl_b32 s{sFlag}, s{sT1}, 13
    s_lshl_b32 s{sT0}, s{sT2}, 7
    s_add_u32 s{sFlag}, s{sFlag}, s{sT0}
    s_add_u32 s{sFlag}, s{sFlag}, {FQ}
    s_lshl_b32 s{sT1}, s{sT1}, 17
    s_lshl_b32 s{sT2}, s{sT2}, 10
    s_add_u32 s{sSt}, s{sT1}, s{sT2}
    s_lshl_b32 s{sT0}, s{sBlk}, 12
    s_lshl_b32 s{sT1}, s{sNI}, 11
    s_add_u32 s{sHst}, s{sHst}, s{sT0}
    s_add_u32 s{sHst}, s{sHst}, s{sT1}
    s_add_u32 s{sHst}, s{sHst}, {HF}
    s_lshl_b32 s{sHld}, s{sRB}, 14
    s_add_u32 s{sHld}, s{sHld}, {FH}
    s_lshl_b32 s{sT0}, s{sCG}, 9
    s_lshl_b32 s{sT1}, s{sGW}, 7
    s_add_u32 s{sHfl}, s{sT0}, s{sT1}
    s_add_u32 s{sHfl}, s{sHfl}, s{sHld}
    s_mul_i32 s{sHb}, s{sRB}, {2*86*1024}
    s_lshl_b32 s{sT0}, s{sGW}, 10
    s_add_u32 s{sHb}, s{sHb}, s{sT0}
    s_add_u32 s{sHb}, s{sHb}, {HF}
    s_mov_b32 s{sC}, {hex(f2u(QSCALE))}
    s_mov_b32 s{sC+1}, {hex(f2u(QSCALE))}
    """).split("\n") if x.strip()]
    vK, vV, vIdx, vAF, vPF, vF = 10, 11, 12, 13, 14, 15
    M, C, SB = 6, 16, 80
    aOnes, aPF, aP3, aPKV, aL128, aGo = 24, 25, 26, 27, 28, 29
    O, Q, KS = 0, 64, 104
    KRG = [("a", 80), ("a", 92)]
    VRG = [("a", 84), ("a", 96)]
    def rg(x, off=0, n=4): return (a if x[0] == "a" else v)(x[1] + off, n)
    def zero_o(n=64):
        for i in range(n): A(f"v_accvgpr_write_b32 a{O+i}, 0")
    A.label("L_pre_a")
    if opt.get("pretouch"):
        A(f"""
        s_mov_b32 s{sOut}, s22
        s_mov_b32 s{sOut+1}, s23
        s_mov_b32 s{sOut+2}, {S*D*2}
        s_mov_b32 s{sOut+3}, 0x00020000
        s_mov_b32 s{sWd+2}, {F*D*2}
        s_mov_b32 s{sWd+3}, 0x00020000
        s_mov_b32 s{sWo+2}, {D*D*2}
        s_mov_b32 s{sWo+3}, 0x00020000
        v_lshlrev_b32 v{vF}, 21, v{vL}
        s_lshl_b32 s{sT0}, s2, 7
        s_cmp_lg_u32 s{sMI}, 0
        s_cbranch_scc1 L_pt1
        s_mov_b64 exec, 0x1fff
        buffer_load_dword v143, v{vF}, {ws}, s{sT0} offen sc1
        s_mov_b64 exec, 1
        buffer_load_dword v143, v{vF}, {s(sWgu,4)}, s{sT0} offen
        s_branch L_pt2
        L_pt1:
        s_mov_b64 exec, 1
        buffer_load_dword v143, v{vF}, {s(sOut,4)}, s{sT0} offen sc1
        buffer_load_dword v143, v{vF}, {s(sWd,4)}, s{sT0} offen
        buffer_load_dword v143, v{vF}, {s(sWo,4)}, s{sT0} offen
        L_pt2:
        s_mov_b64 exec, -1
        """)
    A(f"""
    v_mov_b32 v{vF}, 0
    ds_write_b32 v{vCnt}, v{vF}
    ds_write_b32 v{vCnt}, v{vF} offset:512
    ds_write_b32 v{vCnt}, v{vF} offset:1024
    v_add_u32 v{vCnt}, 1024, v{vCnt}
    v_lshlrev_b32 v{aGo}, 2, v{vL}
    s_lshl_b32 s{sT0}, s{sWave}, 9
    s_add_u32 s{sT0}, s{sT0}, {AFL}
    v_add_u32 v{vAF}, s{sT0}, v{aGo}
    s_xor_b32 s{sT0}, s{sWave}, 2
    s_lshl_b32 s{sT0}, s{sT0}, 9
    s_add_u32 s{sT0}, s{sT0}, {AFL}
    v_add_u32 v{vPF}, s{sT0}, v{aGo}
    v_add_u32 v{aGo}, {GO}, v{aGo}
    ds_write_b32 v{vAF}, v{vF}
    ds_write_b32 v{vAF}, v{vF} offset:256
    ds_write_b32 v{aGo}, v{vF}
    v_mul_u32_u24 v{vDq0}, 3072, v{vT0}
    v_add_u32 v{vDq0}, v{vDq0}, v{vHF}
    v_add_u32 v{vDq1}, {8*3072-1024}, v{vDq0}
    s_mul_i32 s{sQoff}, s{sGW}, {32*3072}
    s_lshl_b32 s{sT2}, s{sCG}, 7
    s_add_u32 s{sQoff}, s{sQoff}, s{sT2}
    v_bfe_u32 v{aP3}, v{vL}, 2, 2
    v_mul_u32_u24 v{aP3}, 3072, v{aP3}
    v_lshl_add_u32 v{aP3}, v{vFl}, 7, v{aP3}
    v_bfe_u32 v{aPF}, v{vL}, 4, 1
    v_xor_b32 v{aPF}, 1, v{aPF}
    v_lshl_add_u32 v{aP3}, v{aPF}, 11, v{aP3}
    s_lshr_b32 s7, s2, 3
    s_lshl_b32 s7, s7, 2
    s_add_u32 s7, s7, s{sWave}
    s_mul_i32 s7, s7, {4*3072}
    s_and_b32 s{sT0}, s2, 1
    s_lshl_b32 s{sT0}, s{sT0}, 9
    s_add_u32 s7, s7, s{sT0}
    s_and_b32 s{sT0}, s{sCG}, 3
    s_cmp_eq_u32 s{sT0}, 3
    s_addc_u32 s{sBlk}, s{sBlk}, 0
    v_lshrrev_b32 v30, 1, v{vL}
    v_mul_u32_u24 v30, 2752, v30
    v_and_b32 v31, 1, v{vL}
    v_mul_u32_u24 v31, 124, v31
    v_add_u32 v30, v30, v31
    s_and_b32 s68, s{sRB}, 7
    s_lshl_b32 s68, s68, 1
    s_add_u32 s68, s68, s{sMI}
    s_mul_i32 s68, s68, {16*2752}
    s_lshl_b32 s{sT0}, s{sBlk}, 7
    s_add_u32 s68, s68, s{sT0}
    s_or_b32 s{sT1}, s2, s{sWave}
    s_cmp_lg_u32 s{sT1}, 0
    s_cbranch_scc1 L_pre_a2
    s_memrealtime s[4:5]
    s_waitcnt lgkmcnt(0)
    s_or_b32 s4, s4, 1
    v_mov_b32 v{vIdx}, s4
    buffer_store_dword v{vIdx}, v{vF}, {s(sDbg,4)}, 0 offen sc1
    """)
    A.label("L_pre_a2")
    if opt.get("pall"):
        A(f"""
        s_mov_b32 s{sWd+2}, {F*D*2}
        s_mov_b32 s{sWd+3}, 0x00020000
        s_mov_b32 s{sWo+2}, {D*D*2}
        s_mov_b32 s{sWo+3}, 0x00020000
        v_mul_u32_u24 v141, 2752, v{vL}
        s_and_b32 s{sT0}, s{sRB}, 7
        s_mul_i32 s{sT0}, s{sT0}, {64*2752}
        s_mul_i32 s{sT1}, s{sCG}, 384
        s_add_u32 s{sT0}, s{sT0}, s{sT1}
        s_mul_i32 s{sT1}, s{sMI}, 124
        s_add_u32 s{sT1}, s{sT0}, s{sT1}
        buffer_load_dword v143, v141, {s(sWgu,4)}, s{sT1} offen
        s_lshl_b32 s{sT1}, s{sMI}, 7
        s_add_u32 s{sT1}, s{sT0}, s{sT1}
        buffer_load_dword v143, v141, {s(sWgu,4)}, s{sT1} offen offset:252
        v_lshlrev_b32 v142, 10, v{vL}
        s_and_b32 s{sT0}, s{sRB}, 7
        s_lshl_b32 s{sT1}, s{sCG}, 7
        s_mul_i32 s{sT2}, s{sT0}, {172*1024}
        s_add_u32 s{sT2}, s{sT2}, s{sT1}
        s_lshl_b32 s4, s{sGW}, 16
        s_add_u32 s{sT2}, s{sT2}, s4
        buffer_load_dword v143, v142, {s(sWd,4)}, s{sT2} offen
        s_lshl_b32 s{sT0}, s{sT0}, 16
        s_add_u32 s{sT0}, s{sT0}, s{sT1}
        buffer_load_dword v143, v142, {s(sWo,4)}, s{sT0} offen
        s_waitcnt vmcnt(0)
        s_sleep 40
        """)
    A("s_mov_b32 s3, 0\ns_waitcnt vmcnt(%d)" % (2 if opt.get("pretouch") else 0))
    NEARLY = opt.get("nearly", 2)
    for g in range(NEARLY): dma(*ddq(g))
    if NEARLY > opt.get("p1at", 3):
        A(f"s_mov_b64 exec, {'0xffff0000' if opt.get('p1kv', 1) else '0xffffffff'}\nbuffer_load_dword v143, v{aP3}, {s(sWq,4)}, s7 offen")
        if opt.get("p2early", 1): A(f"s_mov_b64 exec, {PF2MASK}\nbuffer_load_dword v143, v30, {s(sWgu,4)}, s68 offen")
        A("s_mov_b64 exec, -1")
    vmq.clear()
    A.label("L_ln")
    ST()
    SA, TT, vXW = 104, 80, 112
    A(f"""
    s_mov_b32 s4, 0x3f803f80
    s_mov_b32 s5, 0x00003f80
    s_mov_b32 s6, 0x3f800000
    """)
    for i in range(32):
        a1 = SA + (i & 1); a2 = SA + 2 + (i & 1)
        A(f"v_dot2_f32_bf16 v{a1}, v{R+i}, s4, {'0' if i < 2 else 'v%d' % a1}")
        A(f"v_dot2_f32_bf16 v{a2}, v{R+i}, v{R+i}, {'0' if i < 2 else 'v%d' % a2}")
    m_, q_, mb_, rs_ = SA, SA + 2, SA + 4, SA + 6
    A(f"""
    s_lshr_b32 s{sT0}, s{sWave}, 2
    s_mul_i32 s{sT0}, s{sT0}, {64*PIECE}
    s_lshl_b32 s{sT1}, s{sGW}, 7
    v_add_f32 v{m_}, v{m_}, v{m_+1}
    v_add_f32 v{q_}, v{q_}, v{q_+1}
    s_add_u32 s{sT0}, s{sT0}, s{sT1}
    v_add_f32_dpp v{m_}, v{m_}, v{m_} quad_perm:[1,0,3,2] row_mask:0xf bank_mask:0xf
    v_add_f32_dpp v{q_}, v{q_}, v{q_} quad_perm:[1,0,3,2] row_mask:0xf bank_mask:0xf
    s_add_u32 s{sT0}, s{sT0}, {XT}
    v_add_f32_dpp v{m_}, v{m_}, v{m_} quad_perm:[2,3,0,1] row_mask:0xf bank_mask:0xf
    v_add_f32_dpp v{q_}, v{q_}, v{q_} quad_perm:[2,3,0,1] row_mask:0xf bank_mask:0xf
    v_mul_u32_u24 v{vXW}, {PIECE}, v{vT1}
    v_add_f32_dpp v{m_}, v{m_}, v{m_} row_half_mirror row_mask:0xf bank_mask:0xf
    v_add_f32_dpp v{q_}, v{q_}, v{q_} row_half_mirror row_mask:0xf bank_mask:0xf
    v_mul_f32 v{m_}, {hex(f2u(1.0/512))}, v{m_}
    v_mul_f32 v{q_}, {hex(f2u(1.0/512))}, v{q_}
    v_cvt_pk_bf16_f32 v{mb_}, v{m_}, v{m_}
    v_fma_f32 v{q_}, -v{m_}, v{m_}, v{q_}
    v_and_b32 v{mb_}, 0xffff0000, v{mb_}
    v_max_f32 v{q_}, 0, v{q_}
    v_xor_b32 v{mb_}, 0x80000000, v{mb_}
    v_cvt_pk_bf16_f32 v{q_}, v{q_}, v{q_}
    v_and_b32 v{q_}, 0xffff0000, v{q_}
    v_add_f32 v{q_}, {hex(f2u(1e-5))}, v{q_}
    v_cvt_pk_bf16_f32 v{q_}, v{q_}, v{q_}
    v_and_b32 v{q_}, 0xffff0000, v{q_}
    v_sqrt_f32 v{q_}, v{q_}
    v_lshl_add_u32 v{vXW}, v{vT0}, 4, v{vXW}
    v_cvt_pk_bf16_f32 v{q_}, v{q_}, v{q_}
    v_and_b32 v{q_}, 0xffff0000, v{q_}
    v_rcp_f32 v{rs_}, v{q_}
    v_rcp_f32 v{rs_+1}, v{q_}
    v_add_u32 v{vXW}, s{sT0}, v{vXW}
    """)
    for cb in range(8):
        t = TT + 8 * (cb & 1); r = R + 4 * cb
        for e in range(4):
            A(f"v_dot2_f32_bf16 v{t+2*e}, v{r+e}, s5, v{mb_}")
            A(f"v_dot2_f32_bf16 v{t+2*e+1}, v{r+e}, s6, v{mb_}")
        if cb > 0: A(f"ds_write_b128 v{vXW}, {v(R+4*(cb-1),4)} offset:{(cb-1)*8*PIECE}")
        else: A("s_nop 0")
        for e in range(4): A(f"v_pk_mul_f32 {v(t+2*e,2)}, {v(t+2*e,2)}, {v(rs_,2)}")
        for e in range(4): A(f"v_cvt_pk_bf16_f32 v{r+e}, v{t+2*e}, v{t+2*e+1}")
    A(f"ds_write_b128 v{vXW}, {v(R+28,4)} offset:{7*8*PIECE}")
    A("s_cmp_eq_u32 s3, 0\ns_cbranch_scc1 L_attn")

    def get_tag(vt, vz, lbl):
        A(f"v_mov_b32 v{vz}, 0")
        A.label(lbl)
        A(f"""
        buffer_load_dword v{vt}, v{vz}, {s(sDbg,4)}, 0 offen sc1
        s_waitcnt vmcnt(0)
        v_readfirstlane_b32 s{sTag}, v{vt}
        """)
        timeout_exit(lbl + "_x")
        A(f"s_cmp_eq_u32 s{sTag}, 0\ns_cbranch_scc1 {lbl}")
        A.label(lbl + "_x")
    def spin_flags(lbl, vf, voff, soff, nlanes, sleep=4):
        A.label(lbl)
        A(f"""
        s_mov_b64 exec, {emask(nlanes)}
        buffer_load_dword v{vf}, v{voff}, {ws}, s{soff} offen sc1
        s_waitcnt vmcnt(0)
        v_cmp_ne_u32 vcc, s{sTag}, v{vf}
        s_mov_b64 exec, -1
        s_cbranch_vccz {lbl}_x
        """)
        timeout_exit(lbl + "_x")
        A(f"s_sleep {sleep}\ns_branch {lbl}")
        A.label(lbl + "_x")
    def lds_spin(lbl, vdst, vaddr, off, cmp, sleep=0):
        A.label(lbl)
        A(f"ds_read_b32 v{vdst}, v{vaddr} offset:{off}\ns_waitcnt lgkmcnt(0)\n{cmp}\ns_cbranch_vccz {lbl}_x")
        timeout_exit(lbl + "_x")
        if sleep: A(f"s_sleep {sleep}")
        A(f"s_branch {lbl}")
        A.label(lbl + "_x")

    def xn(ks): return a(4 * ks, 4) if ks < 28 else v(96 + 4 * (ks - 28), 4)
    def xread(ks): lds(f"ds_read_b128 {xn(ks)}, v{vXR} offset:{2*ks*PIECE}", "xn")
    def check(fresh, off=0, need=None, sleep=1, reg=None, tag="poll"):
        l = lab("chk"); nd = f"s{sNeed}" if need is None else str(need)
        vP = reg if reg is not None else 20
        cmp = f"v_cmp_gt_u32 vcc, {nd}, v{vP}"
        if lowprio[0]: cmp = f"s_setprio 3\n{cmp}\ns_setprio 0"
        if fresh:
            lds(f"ds_read_b32 v{vP}, v{vCntR} offset:{off}", tag)
        lwait(tag)
        A(f"{cmp}\ns_cbranch_vccnz {l}")
        A.label(l + "_x")
        def sp():
            A.label(l)
            A(f"ds_read_b32 v{vP}, v{vCntR} offset:{off}\ns_waitcnt lgkmcnt(0)\n{cmp}\ns_cbranch_vccz {l}_x")
            timeout_exit(l + "_x")
            if lp or sleep > 1: A(f"s_sleep {sleep}")
            A(f"s_branch {l}")
        lp = lowprio[0]
        slow.append(sp)
        if need is None: A(f"s_add_u32 s{sNeed}, s{sNeed}, 1")
    def segment(stages, hooks=None, LA=opt.get('la', 5)):
        hooks = hooks or {}
        NB = len(WFB); assert NB >= LA + 1
        flat = [(si, fi, fr) for si, st in enumerate(stages) for fi, fr in enumerate(st["frags"])]
        sq = []
        for i in range(len(flat) + LA):
            if i < len(flat):
                si, fi, fr = flat[i]; st = stages[si]; nfr = len(st["frags"])
                if fi == 0:
                    assert not sq
                    if "label" in st: A.label(st["label"])
                    if opt.get("atrace"):
                        A(f"s_waitcnt lgkmcnt(0)\ns_mov_b32 s99, m0\ns_mov_b32 m0, s{sD1}\ns_add_u32 s{sD1}, s{sD1}, 1\ns_setprio 3\nv_writelane_b32 v142, s100, m0\ns_setprio {0 if lowprio[0] else 1}\ns_memrealtime s[100:101]\ns_mov_b32 m0, s99"); lq.clear()
                    if st["sync"]: check(si == 0, *st.get("chk", ()))
                    if "pre" in st: st["pre"]()
                    sq += st["pieces"]
                lo, hi, o0, o1, _ = fr
                base = st["slot"] * SLOT; reg = lo
                if base >= 65536: base -= 65536; reg = hi
                w = WFB[i % NB]
                lds(f"ds_read_b64_tr_b16 {v(w,2)}, v{reg} offset:{base+o0}", ("fr", i))
                lds(f"ds_read_b64_tr_b16 {v(w+2,2)}, v{reg} offset:{base+o1}", ("fr", i))
                if fi == st.get("waitat", st.get("pubat", 2)) and st["nxt"] is not None: vwait(st["nxt"])
                if fi == st.get("pubat", 2) and st["pub"]: lds(f"ds_add_u32 v{vCnt}, v{vOne}", "add")
                if len(sq) * 2 > (nfr - fi) or fi % 2 == 0:
                    k = -(-len(sq) // (nfr - fi))
                    for _ in range(k): sq.pop(0)()
                if fi == nfr - 2 and si + 1 < len(stages) and stages[si + 1]["sync"]:
                    lds(f"ds_read_b32 v{vP}, v{vCntR} offset:{stages[si + 1].get('chk', (0,))[0]}", "poll")
                if (si, fi) in hooks: hooks[(si, fi)]()
            j = i - LA
            if j >= 0:
                if opt.get("pairw", 1) and j % 2 == 0 and lq.need(("fr", j + 1)) is not None and len(flat[j][2][4]) == 1: lwait(("fr", j + 1))
                lwait(("fr", j))
                for m in flat[j][2][4]:
                    if callable(m): m()
                    elif opt.get("xnogm") and lowprio[0]: A("s_nop 7")
                    else: A(m.format(w=v(WFB[j % NB], 4)))
    if F0: ST()
    A("s_waitcnt lgkmcnt(0)\ns_barrier")
    ST()
    if opt.get("atrace"): A(f"s_mov_b32 s{sD1}, 0\ns_memrealtime s[100:101]")
    for ks in range(8): xread(ks)
    def qkv_epi(p):
        acc = (ACC0, ACC1, ACC0)[p]; pk = TMP + 8 * p
        def f():
            if p == 2:
                for i in range(8): A(f"v_pk_mul_f32 {v(acc+2*i,2)}, {v(acc+2*i,2)}, {s(sC,2)}")
            for i in range(8): A(f"v_cvt_pk_bf16_f32 v{pk+i}, v{acc+2*i}, v{acc+2*i+1}")
            if p == 1:
                A(f"buffer_store_dwordx4 {v(pk,4)}, v{vVo}, {ws}, s{sSt} offen sc1")
                A(f"buffer_store_dwordx4 {v(pk+4,4)}, v{vVo}, {ws}, s{sSt} offen offset:512 sc1")
            else:
                vo = vKo if p == 0 else vL16
                A(f"s_add_u32 s{sT0}, s{sSt}, 65536")
                A(f"buffer_store_dwordx4 {v(pk,4)}, v{vo}, {ws}, s{sSt} offen sc1")
                A(f"buffer_store_dwordx4 {v(pk+4,4)}, v{vo}, {ws}, s{sT0} offen sc1")
            vmq.push("st", 2)
        return f
    stages = []
    for q in range(12):
        p, part = divmod(q, 4); acc = v((ACC0, ACC1, ACC0)[p], 16)
        frags = []
        for kk in range(8):
            ks = part * 8 + kk; c = "0" if ks == 0 else acc
            m = f"{MF} {acc}, {xn(ks)}, {{w}}, {c}" if p == 1 else f"{MF} {acc}, {{w}}, {xn(ks)}, {c}"
            frags.append((vTRn, vTRnH, kk * 2048, kk * 2048 + 512, [m]))
        stages.append(dict(slot=q % 8, frags=frags, pieces=[], nxt=None, sync=True, pub=(q >= 1), pubat=0, chk=(1024, q + 1)))
    hooks = {(0, fi): (lambda fi=fi: [xread(8 + 3 * fi + e) for e in range(3)]) for fi in range(8)}
    def epi_items(p):
        acc = (ACC0, ACC1)[p]; pk = TMP + 8 * p
        L = [f"v_cvt_pk_bf16_f32 v{pk+i}, v{acc+2*i}, v{acc+2*i+1}" for i in range(8)]
        if p == 1:
            L += [f"buffer_store_dwordx4 {v(pk,4)}, v{vVo}, {ws}, s{sSt} offen sc1", f"buffer_store_dwordx4 {v(pk+4,4)}, v{vVo}, {ws}, s{sSt} offen offset:512 sc1"]
        else:
            L += [f"buffer_store_dwordx4 {v(pk,4)}, v{vKo}, {ws}, s{sSt} offen sc1", f"buffer_store_dwordx4 {v(pk+4,4)}, v{vKo}, {ws}, s{sD1} offen sc1",
                  f"buffer_load_dword v{vFl}, v{vT2}, {s(sDbg,4)}, 0 offen sc1"]
        return L
    GLATE.append(f"s_add_u32 s{sD1}, s{sSt}, 65536")
    n1 = len(GLATE)
    slots1 = [(q, fi) for q in range(1, 7) for fi in range(8) if (q, fi) not in ((1, 0), (4, 0), (5, 0), (6, 0))]
    plan = {}
    for k, it in enumerate(GLATE): plan.setdefault(slots1[k * len(slots1) // n1], []).append(it)
    for p, q0 in ((0, 7), (1, 9)):
        sl = [(q, fi) for q in (q0, q0 + 1) for fi in range(1, 8)][(0 if p == 0 else 2):]
        its = epi_items(p)
        sl = [x_ for x_ in sl for _ in range(2)] if p == 0 else sl
        for k, it in enumerate(its): plan.setdefault(sl[k], []).append(it)
    if opt.get("xnofill"):
        for x in GLATE:
            if "v31," not in x: A(x.replace("|", "\n"))
        plan = {k_: [i_ for i_ in its if i_ not in GLATE] for k_, its in plan.items()}
    for k_, its in plan.items():
        hooks[k_] = (lambda its=its: [A(x.replace("|", "\n")) for x in its])
    GLATE = []
    if stamps:
        for q in ((1, 4, 5, 6, 7, 8, 9, 10, 11) if FR else (1, 4, 8)): hooks[(q, 0)] = ST
    segment(stages, hooks)
    assert not GLATE
    A(f"s_waitcnt vmcnt(2)\nv_readfirstlane_b32 s{sTag}, v{vFl}\ns_nop 9")
    qkv_epi(2)()
    ST()
    A(f"s_cmp_lg_u32 s{sTag}, 0\ns_cbranch_scc1 L_gtag_x")
    get_tag(vFl, vT2, "L_gtag")
    A(f"""
    s_mov_b32 s{sC}, {hex(f2u(C2))}
    s_mov_b32 s{sC+1}, {hex(f2u(C2))}
    v_mov_b32 v{vFl}, s{sTag}
    s_waitcnt vmcnt(0)
    s_mov_b64 exec, 1
    buffer_store_dword v{vFl}, v{vT2}, {ws}, s{sFlag} offen sc1
    s_mov_b64 exec, -1
    """)
    ST()
    if FR: again(); ST.flush(ws, STAMP, sWave, 2, 3, sT0); A("s_endpgm"); ST.on = False
    if opt.get("gexit"): A(f"ds_add_u32 v{vCnt}, v{vOne}\ns_waitcnt lgkmcnt(0)\ns_endpgm")
    LOOK = opt.get("look", 4)
    check(True, 1024, 12 + NG0)
    lds(f"ds_add_u32 v{vCnt}, v{vOne}", "add")
    A(f"s_mov_b32 s{sNeed}, 12\ns_setprio 0")
    lowprio[0] = True
    def gslot(g): return 2 + (g + 2) % 6
    def ffn_dd(g):
        if g < 24: return ("g", g, gslot(g))
        if g < 35: return ("d", g - 24, gslot(g))
        return ("o", g - 35, gslot(g))
    E0 = 8
    vP2 = vVo
    G2 = opt.get("g2", 1)
    def kneed(k):
        if not G2: return k + 8
        step = k - RKV
        return 18 if step == 0 else 19 + step // 2
    def kv_poll(): lds(f"ds_read_b32 v{vP2}, v{vCntR} offset:1024", "poll2")
    def kv_issue(k, fresh=False):
        check(fresh, 1024, kneed(k), sleep=opt.get('ksleep', 4), reg=vP2, tag="poll2")
        A(f"s_add_u32 m0, s{sKVm}, {((k + E0) % RKV) * 1024}\ns_add_u32 s{sT0}, s{sKVs}, {k*1024}")
        A(f"buffer_load_dwordx4 v{vL16}, {ws}, s{sT0} offen sc1 lds"); vmq.push(("kv", k))
    def kv_pub(k):
        vwait(("kv", k))
        for _ in range((3 if G2 else 2) if k == 31 else 1): lds(f"ds_add_u32 v{vCnt}, v{vOne} offset:512", "add")
    S0 = opt.get("s0", 4); KLAG = opt.get("klag", 2)
    A(f"s_cmp_lg_u32 s{sNb}, 3\ns_cbranch_scc1 L_ffn")
    check(True, 1024, 12 + NG0 + 1)
    vmq.clear()
    kvs = [RKV + st - S0 for st in range(S0, 8)]; npub = max(0, 8 - KLAG - S0); done = []
    def light_kv():
        nonlocal npub
        if done and npub: kv_pub(done.pop(0)); npub -= 1
        if kvs: k = kvs.pop(0); kv_issue(k, True); done.append(k)
    if opt.get("pfw", 1):
        P = [0, 128, 384, 512, 768, 896, 256, 640, 1024, 1152, 1280, 1404][:2 * opt.get('npf', 6)]
        PCAP = opt.get("pcap", 1)
        A(f"""
        s_setprio 3
        v_mul_u32_u24 v{TMP}, 2752, v{vL}
        s_setprio 0
        s_and_b32 s4, s{sRB}, 7
        s_mul_i32 s5, s4, {64*2752}
        s_lshr_b32 s6, s{sCG}, 2
        s_mul_i32 s7, s6, 1408
        s_add_u32 s5, s5, s7
        """)
        for i in range(len(P) // 2):
            lo_, hi_ = sorted(P[2*i:2*i+2])
            A(f"s_mul_i32 s{sT0}, s{sMI}, {hi_-lo_}\ns_add_u32 s{sT0}, s{sT0}, s5")
            A(f"buffer_load_dword v143, v{TMP}, {s(sWgu,4)}, s{sT0} offen offset:{lo_}\ns_waitcnt vmcnt({PCAP})")
            vmq.push("pf"); vmq.waited(PCAP)
            if i >= 2: light_kv()
    for g in range(8, 8 + LOOK): dma(*ffn_dd(g))
    while kvs or (done and npub): light_kv()
    A("s_waitcnt vmcnt(0)")
    lds(f"ds_add_u32 v{vCnt}, v{vOne}", "add")
    A(f"s_add_u32 s{sNeed}, s{sNeed}, 1\ns_setprio 3\nv_mov_b32 v{vP}, 0\nv_mov_b32 v{vP2}, 0\ns_setprio 0")
    A("s_branch L_ffn8")
    A.label("L_ffn")
    vmq.clear(); lq.clear()
    T1, U1 = TMP, [88, 90, 92, 94, 128, 130, 132, 134]
    AD1 = [v(40, 16), v(56, 16), v(96, 16), a(96, 16)]
    def gelu1():
        G, U = ACC0, ACC1
        A("s_setprio 3\ns_nop 9")
        for i in range(8): A(f"v_pk_mul_f32 {v(T1+2*i,2)}, {v(G+2*i,2)}, {v(G+2*i,2)}")
        for i in range(8): A(f"v_pk_fma_f32 {v(T1+2*i,2)}, {v(T1+2*i,2)}, {s(sC,2)}, {v(vT0,2)}")
        for i in range(8): A(f"v_pk_mul_f32 {v(U1[i],2)}, {v(U+2*i,2)}, {v(G+2*i,2)}")
        for i in range(8): A(f"v_pk_mul_f32 {v(T1+2*i,2)}, {v(T1+2*i,2)}, {v(G+2*i,2)}")
        A("s_setprio 0")
    def gelu2_groups(b):
        L = [f"v_exp_f32 v{T1+i}, v{T1+i}" for i in range(16)]
        L += [f"v_pk_add_f32 {v(T1+2*i,2)}, {v(T1+2*i,2)}, 1.0 op_sel_hi:[1,0]" for i in range(8)]
        L += [f"v_rcp_f32 v{T1+i}, v{T1+i}" for i in range(16)]
        L += [f"v_pk_mul_f32 {v(U1[i],2)}, {v(U1[i],2)}, {v(T1+2*i,2)}" for i in range(8)]
        L += [f"v_cvt_pk_bf16_f32 v{T1+i}, v{U1[i]}, v{U1[i]+1}" for i in range(8)]
        sizes = [4, 4, 4, 4, 8, 4, 4, 4, 4, 8, 8]
        G_ = []
        for n in sizes:
            grp = L[:n]; L = L[n:]
            G_.append(lambda grp=grp: A("s_setprio 3\n" + "\n".join(grp) + "\ns_setprio 0"))
        def store():
            l = lab("hskip")
            if b == 0: A(f"s_cmp_eq_u32 s{sNb}, 3\ns_cbranch_scc1 {l}")
            if b == 2: A(f"s_add_u32 s{sT0}, s{sCG}, s{sNI}\ns_cmp_eq_u32 s{sT0}, 8\ns_cbranch_scc1 {l}")
            A(f"s_add_u32 s{sT0}, s{sHst}, {b*4096}")
            A(f"buffer_store_dwordx4 {v(T1,4)}, v{vL16}, {ws}, s{sT0} offen sc1")
            A(f"buffer_store_dwordx4 {v(T1+4,4)}, v{vL16}, {ws}, s{sT0} offen offset:1024 sc1")
            A.label(l)
            vmq.since = 0
        return G_ + [store]
    def send_flag(b):
        def f():
            n = min(vmq.since, 63)
            A(f"s_waitcnt vmcnt({n})"); vmq.waited(n)
            A(f"s_add_u32 s{sT0}, s{sHfl}, {b*4096}\ns_mov_b64 exec, 1\nbuffer_store_dword v{vFl}, v{vT2}, {ws}, s{sT0} offen sc1\ns_mov_b64 exec, -1")
        return f
    NH = 12
    def hload(t):
        b = 8 * (t % NH)
        if DSEQ[t] == 21:
            A(f"s_and_b32 s{sT2}, s{sGW}, 2\ns_lshl_b32 s{sT2}, s{sT2}, 10\ns_sub_u32 s{sT2}, s{sHb}, s{sT2}\ns_add_u32 s{sT2}, s{sT2}, {DSEQ[t]*4096}")
        else:
            A(f"s_add_u32 s{sT2}, s{sHb}, {DSEQ[t]*4096}")
        A(f"buffer_load_dwordx4 {a(b,4)}, v{vH0}, {ws}, s{sT2} offen sc1")
        A(f"buffer_load_dwordx4 {a(b+4,4)}, v{vH1}, {ws}, s{sT2} offen sc1")
        vmq.push(("h", t), 2)
    def hflag_issue(c):
        A(f"s_add_u32 s{sT2}, s{sHld}, {c*4096}\ns_mov_b64 exec, {hex(CMASK[c])}")
        A(f"buffer_load_dword v{vHF}, v{vL128}, {ws}, s{sT2} offen sc1\ns_mov_b64 exec, -1")
        vmq.push(("hf", c))
    def hflag_check(c):
        vwait(("hf", c))
        l = f"L_hf{c}"
        A(f"s_setprio 3\nv_cmp_ne_u32 vcc, s{sTag}, v{vHF}\ns_setprio 0\ns_and_b32 vcc_lo, vcc_lo, {hex(CMASK[c])}\ns_cbranch_scc1 {l}_s")
        A.label(l + "_b")
        def sp():
            A.label(l + "_s")
            A(f"s_add_u32 s{sT2}, s{sHld}, {c*4096}\ns_setprio 3")
            spin_flags(l, vHF, vL128, sT2, hex(CMASK[c]), sleep=8)
            A(f"s_setprio 0\ns_branch {l}_b")
        slow.append(sp)
    def p4(ni):
        def f():
            l = lab("p4")
            A(f"""
            s_cmp_lg_u32 s{sNI}, {ni}
            s_cbranch_scc1 {l}_x
            s_and_b32 s{sT0}, s{sRB}, 7
            s_lshl_b32 s{sT1}, s{sCG}, 7
            s_cmp_eq_u32 s{sGW}, 3
            s_cbranch_scc1 {l}_o
            s_mul_i32 s{sT0}, s{sT0}, {172*1024}
            s_add_u32 s{sT0}, s{sT0}, s{sT1}
            s_lshl_b32 s{sT1}, s{sGW}, 16
            s_add_u32 s{sT0}, s{sT0}, s{sT1}
            buffer_load_dword v143, v{vXR}, {s(sWd,4)}, s{sT0} offen
            s_branch {l}_x
            """)
            A.label(l + "_o")
            A(f"s_lshl_b32 s{sT0}, s{sT0}, 16\ns_add_u32 s{sT0}, s{sT0}, s{sT1}\nbuffer_load_dword v143, v{vXR}, {s(sWo,4)}, s{sT0} offen")
            A.label(l + "_x")
        return f
    allp = []
    for g in range(NG0, 39): allp += [(g, p) for p in dma_pieces(*ffn_dd(g))]
    T0 = opt.get("t0", 2 if NG0 >= 4 else NG0 - 1); RATE = opt.get("rate", 6)
    prep_ = []
    while allp[0][0] <= T0 + 1: prep_.append(allp.pop(0)[1])
    sched = []
    for st in range(35):
        take = []
        if st >= T0:
            while allp and allp[0][0] <= st + LOOK and len(take) < RATE: take.append(allp.pop(0)[1])
        sched.append(take)
        if st == 7 and not FR: assert allp[0][0] == 8 + LOOK and len([1 for g, _ in allp if g == 8 + LOOK]) == 4
    assert not allp
    stages = []
    post = {}
    for st in range(35):
        frags = []
        if st < 24:
            for kk in range(4):
                ks = (st % 8) * 4 + kk
                for p, acc in enumerate((ACC0, ACC1)):
                    c = "0" if ks == 0 else v(acc, 16)
                    frags.append((vTRn, vTRnH, p * 8192 + kk * 2048, p * 8192 + kk * 2048 + 512, [f"{MF} {v(acc,16)}, {{w}}, {xn(ks)}, {c}"]))
        else:
            for kk in range(2):
                t = 2 * (st - 24) + kk; b = 8 * (t % NH)
                for ni, (lo, hi) in enumerate(((vTRp0, vTRp0H), (vTRp1, vTRp1H))):
                    ms = [(lambda t=t: vwait(("h", t)))] if ni == 0 else []
                    for mi in range(2):
                        d = AD1[2 * ni + mi]; c = "0" if t == 0 else d
                        ms.append(f"{MF} {d}, {{w}}, {a(b+4*mi,4)}, {c}")
                    frags.append((lo, hi, kk * 2048, kk * 2048 + 1024, ms))
        nx = ffn_dd(st + 1)
        stages.append(dict(slot=gslot(st), frags=frags, pieces=sched[st], nxt=("dma", nx[0], nx[1]),
                           sync=(st <= 25), pub=(st <= 24), pubat=(0 if st >= 23 else opt.get("pubat", 2)),
                           waitat=(3 if st >= 24 else (6 if st == 23 else opt.get("pubat", 2)))))
    assert LOOK <= 4
    stages[T0]["pre"] = lambda: (check(True, 1024, 12 + NG0 + 1) if opt.get("thr", 1) else None, [p_() for p_ in prep_])
    stages[8]["label"] = "L_ffn8"
    GATE = opt.get("gate", 31); GR_ = opt.get("gater", 17 if G2 else 33)
    if GATE:
        def gate():
            A("s_waitcnt lgkmcnt(0)"); lq.clear()
            for st_ in range(GATE, GATE + 2):
                if st_ < 35:
                    for p_ in stages[st_]["pieces"]: p_()
                    stages[st_]["pieces"] = []
            for k_ in sorted(k for k in hooks if k[0] in (GATE, GATE + 1)):
                hooks.pop(k_)()
            check(True, 1024, 12 + NG0 + 1 + GR_, sleep=4)
        stages[GATE]["pre"] = gate
    hooks = {}
    for b in range(3):
        st0 = 8 * (b + 1)
        stages[st0]["frags"][0][4].insert(0, gelu1)
        grp = gelu2_groups(b)
        pos = [(si, fi, k) for si in (st0, st0 + 1, st0 + 2) for fi, fr in enumerate(stages[si]["frags"]) for k, m in enumerate(fr[4]) if not callable(m)]
        if b == 2: pos = [p_ for p_ in pos for _ in range(2)]
        for (si, fi, k), g_ in reversed(list(zip(pos, grp))):
            stages[si]["frags"][fi][4].insert(k + 1, g_)
        hooks[(st0 + 3, 3) if b < 2 else (26, 1)] = send_flag(b)
    def addhook(pos, f):
        old = hooks.get(pos)
        hooks[pos] = (lambda: (old(), f())) if old else f
    for k in range(RKV, 32):
        st = S0 + k - RKV
        nf = len(stages[st]["frags"]); nfp = len(stages[st - 1]["frags"])
        addhook((st - 1, nfp - 1), kv_poll)
        addhook((st, nf // 2), lambda k=k: kv_issue(k))
        addhook((st + KLAG, 0), lambda k=k: kv_pub(k))
    if opt.get("p4", 1): hooks[(opt.get("p4a", 10), 1)] = p4(0); hooks[(opt.get("p4b", 14), 1)] = p4(1)
    HL = opt.get("hl", 5)
    def hpos(t):
        u = t - HL
        if u >= 0: return (24 + u // 2, 2 * (u % 2) + 1)
        return (24 + (u // 2), 4 * (u % 2) + 1)
    for t in range(22):
        fs = []
        if t in CSTART: fs.append(lambda c=CSTART[t]: hflag_check(c))
        fs.append(lambda t=t: hload(t))
        if t + 2 in CSTART: fs.append(lambda c=CSTART[t + 2]: hflag_issue(c))
        old = hooks.get(hpos(t))
        if old: fs.insert(0, old)
        hooks[hpos(t)] = (lambda fs=fs: [f() for f in fs])
    p0 = hpos(0); addhook((p0[0] - 1, 3), lambda: hflag_issue(0))
    XRAW = 136
    def xload():
        for q in range(4):
            A(f"buffer_load_dwordx2 {v(XRAW+2*q,2)}, v{vXo}, {s(sX,4)}, s{sXo} offen offset:{16*q}"); vmq.push("xr")
    addhook((28, 0), xload)
    if stamps:
        for st in (8, 16, 24): addhook((st, 0), ST)
    segment(stages, hooks)
    lowprio[0] = False
    ST()
    if opt.get("atrace"):
        A(f"s_lshl_b32 s{sT0}, s2, 4\ns_add_u32 s{sT0}, s{sT0}, s{sWave}\ns_lshl_b32 s{sT0}, s{sT0}, 8\ns_add_u32 s{sT0}, s{sT0}, {STAMP+MB}\nv_lshlrev_b32 v141, 2, v{vL}\nbuffer_store_dword v142, v141, {ws}, s{sT0} offen\ns_waitcnt vmcnt(0)")
    XF = [104, 106, 108, 110, 32, 34, 36, 38].copy()
    vwait(("dma", "o", 3))
    for i in range(8):
        slot = gslot(35 + i // 2); base = slot * SLOT
        for ni, (lo, hi) in enumerate(((vTRp0, vTRp0H), (vTRp1, vTRp1H))):
            reg, b = (lo, base) if base < 65536 else (hi, base - 65536)
            lds(f"ds_read_b64_tr_b16 {a(8*i+4*ni,2)}, v{reg} offset:{b + (i%2)*2048}", "wo")
            lds(f"ds_read_b64_tr_b16 {a(8*i+4*ni+2,2)}, v{reg} offset:{b + (i%2)*2048 + 1024}", "wo")
    vR = [None, vKo, vVo, vXR]
    sDone, sNew, sPend = 4, 5, sD0
    POLL = f"s_mov_b64 exec, 0xff\nbuffer_load_dword v{vHF}, v{vL128}, {ws}, s{sT2} offen sc1\ns_mov_b64 exec, -1"
    A(f"""
    s_setprio {opt.get("tprio", 3)}
    s_lshl_b32 s{sT2}, s{sRB}, 12
    s_lshl_b32 s{sT0}, s{sGW}, 10
    s_add_u32 s{sT2}, s{sT2}, s{sT0}
    s_add_u32 s{sT2}, s{sT2}, {FO}
    {POLL}
    s_lshl_b32 s7, s{sRB}, 16
    s_lshl_b32 s{sT0}, s{sGW}, 13
    s_add_u32 s7, s7, s{sT0}
    s_add_u32 s7, s7, {OF}
    s_add_u32 s6, s7, 4096
    s_mov_b32 s{sDone}, 0
    s_mov_b32 s{sC}, {hex(f2u(-1.4426950408889634))}
    s_mov_b32 s{sC+1}, {hex(f2u(-1.4426950408889634))}
    v_xor_b32 v{vR[1]}, 4096, v{vRW}
    v_xor_b32 v{vR[2]}, 8192, v{vRW}
    v_xor_b32 v{vR[3]}, 12288, v{vRW}
    """)
    for r_ in [vRW] + vR[1:]: A(f"v_add_u32 v{r_}, {RB0 + 2*SLOT}, v{r_}")
    def of(i, mi):
        k = 8 * i + 4 * mi
        return a(64 + k, 4) if k < 48 else v(112 + k - 48, 4)
    def o_round(u):
        A(f"""
        s_waitcnt vmcnt(0)
        v_cmp_eq_u32 vcc, s{sTag}, v{vHF}
        s_sub_u32 s{sTO}, s{sTO}, 1
        s_cmp_lt_i32 s{sTO}, 0
        s_cselect_b32 s{sNew}, 0xff, vcc_lo
        s_and_b32 s{sNew}, s{sNew}, 0xff
        s_andn2_b32 s{sNew}, s{sNew}, s{sDone}
        s_or_b32 s{sDone}, s{sDone}, s{sNew}
        s_cmp_eq_u32 s{sDone}, 0xff
        s_cbranch_scc1 L_onp{u}
        {POLL}
        """)
        A.label(f"L_onp{u}")
        for i in range(8):
            so = 7 if i < 4 else 6
            A(f"s_bitcmp1_b32 s{sNew}, {i}\ns_cbranch_scc0 L_ol{u}_{i}")
            A(f"buffer_load_dwordx4 {of(i,0)}, v{vO0}, {ws}, s{so} offen offset:{(i%4)*1024} sc1")
            A(f"buffer_load_dwordx4 {of(i,1)}, v{vO1}, {ws}, s{so} offen offset:{(i%4)*1024} sc1")
            A.label(f"L_ol{u}_{i}")
    def reduce_tile(dst, src, mid=None):
        for lt in range(1, 4):
            k_, b_ = src[lt]
            for q in range(4):
                lds(f"ds_write_b128 v{vRW}, {k_(b_+4*q,4)} offset:{(lt-1)*SLOT + q*1024}", "w")
        lds(f"ds_add_u32 v{vCnt}, v{vOne}", "add")
        check(True)
        for lt in range(1, 4):
            for q in range(4):
                lds(f"ds_read_b128 {v(40+16*lt+4*q,4)}, v{vR[lt]} offset:{(lt-1)*SLOT + q*1024}", ("r", lt))
        if mid: mid()
        lwait(("r", 1))
        for i in range(8): A(f"v_pk_add_f32 {v(40+2*i,2)}, {v(40+2*i,2)}, {v(56+2*i,2)}")
        lwait(("r", 3))
        for i in range(8): A(f"v_pk_add_f32 {v(72+2*i,2)}, {v(72+2*i,2)}, {v(88+2*i,2)}")
        for i in range(8): A(f"v_pk_add_f32 {v(dst+2*i,2)}, {v(40+2*i,2)}, {v(72+2*i,2)}")
    def mid0():
        o_round("a")
        A(f"s_mov_b32 s{sPend}, s{sNew}")
        for i in range(8):
            A(f"v_lshlrev_b32 v{XF[i]}, 16, v{XRAW+i}")
            A(f"v_and_b32 v{XF[i]+1}, 0xffff0000, v{XRAW+i}")
    reduce_tile(GR, [(v, 40), (v, 56), (v, 96), (a, 96)], mid0)
    Tv = 40
    for i in range(8): A(f"v_pk_mul_f32 {v(Tv+2*i,2)}, {v(GR+2*i,2)}, {s(sC,2)}")
    for i in range(16): A(f"v_exp_f32 v{Tv+i}, v{Tv+i}")
    for r_ in [vRW] + vR[1:]: A(f"v_add_u32 v{r_}, {3*SLOT}, v{r_}")
    for i in range(8): A(f"v_pk_add_f32 {v(Tv+2*i,2)}, {v(Tv+2*i,2)}, 1.0 op_sel_hi:[1,0]")
    for i in range(16): A(f"v_rcp_f32 v{Tv+i}, v{Tv+i}")
    for i in range(8, 32): A(f"v_pk_mov_b32 {v(40+2*i,2)}, 0, 0")
    for i in range(8): A(f"v_pk_mul_f32 {v(GR+2*i,2)}, {v(GR+2*i,2)}, {v(Tv+2*i,2)}")
    for i in range(8): A(f"v_pk_mov_b32 {v(40+2*i,2)}, 0, 0")
    ST()
    A.label("L_of")
    o_round("b")
    for i in range(8):
        A(f"s_bitcmp1_b32 s{sPend}, {i}\ns_cbranch_scc0 L_om{i}")
        for ni in range(2):
            for mi in range(2):
                d = v(AD + 16 * (2 * ni + mi), 16)
                A(f"{MF} {d}, {a(8*i+4*ni,4)}, {of(i,mi)}, {d}")
        A.label(f"L_om{i}")
    A(f"""
    s_mov_b32 s{sPend}, s{sNew}
    s_xor_b32 s{sT0}, s{sDone}, 0xff
    s_or_b32 s{sT0}, s{sT0}, s{sPend}
    s_cbranch_scc1 L_of
    """)
    ST()
    A("s_nop 8")
    reduce_tile(40, [(v, AD + 16 * i) for i in range(4)])
    for i in range(8): A(f"v_pk_fma_f32 {v(40+2*i,2)}, {v(40+2*i,2)}, {v(GR+2*i,2)}, {v(XF[i],2)}")
    for i in range(8): A(f"v_cvt_pk_bf16_f32 v{56+i}, v{40+2*i}, v{41+2*i}")
    A("s_nop 1")
    for h in range(2):
        A(f"v_permlane32_swap_b32 v{56+4*h}, v{58+4*h}\nv_permlane32_swap_b32 v{57+4*h}, v{59+4*h}")
    for h in range(2):
        A(f"buffer_store_dwordx4 {v(56+4*h,4)}, v{vRR}, {s(sOut,4)}, s{sXo} offen offset:{32*h}")
    if stamps:
        ST.on = True
        if not FR: ST(); ST.flush(ws, STAMP, sWave, 2, 3, sT0)
        if opt.get("dbgout"):
            A(f"s_cmp_lg_u32 s2, {opt['dbgout']-1}\ns_cbranch_scc1 L_dbx\ns_cmp_lg_u32 s{sWave}, 4\ns_cbranch_scc1 L_dbx\nv_mov_b32 v2, 0")
            for i in range(1, ST.n):
                A(f"s_sub_u32 s4, s{ST.base+2*i}, s{ST.base}\nv_mov_b32 v3, s4\nbuffer_store_dword v3, v2, {s(sDbg,4)}, 0 offen offset:{4*i}\ns_nop 1")
            A.label("L_dbx")
    A("s_endpgm")
    for f in slow: f()
    slow.clear()

    ST.n = 2 if stamps else 0
    A.label("L_attn")
    lq.clear(); vmq.clear()
    for g in range(NEARLY): vmq.push(("dma", "q", g), 4)
    def pub_ld(g):
        d = ddq(g); vwait(("dma", d[0], d[1])); lds(f"ds_add_u32 v{vCnt}, v{vOne}", "add")
    def FS():
        if FR: ST()
    def p2():
        A(f"s_mov_b64 exec, {PF2MASK}\nbuffer_load_dword v143, v30, {s(sWgu,4)}, s68 offen\ns_mov_b64 exec, -1"); vmq.push("pf")
    FS()
    NB4 = max(opt.get("nb4", 4), NEARLY)
    for g in range(NEARLY, NB4):
        dma(*ddq(g))
        if g == opt.get("p1at", 3):
            A(f"s_mov_b64 exec, {'0xffff0000' if opt.get('p1kv', 1) else '0xffffffff'}\nbuffer_load_dword v143, v{aP3}, {s(sWq,4)}, s7 offen\ns_mov_b64 exec, -1"); vmq.push("pf")
            if opt.get("p2early", 1): p2()
    pub_ld(0)
    A("s_waitcnt lgkmcnt(0)\ns_barrier"); lq.clear()
    ST()
    for g in range(1, NB4): pub_ld(g)
    for g in range(NB4, 5): dma(*ddq(g))
    FS()
    A(GUADDR)
    A(f"""
    s_and_b32 s{sT0}, s2, 7
    s_lshr_b32 s{sT1}, s2, 3
    s_and_b32 s{sT2}, s{sT1}, 3
    s_lshl_b32 s{sHead}, s{sT0}, 2
    s_add_u32 s{sHead}, s{sHead}, s{sT2}        ; head
    s_lshr_b32 s{sT1}, s{sT1}, 2
    s_lshl_b32 s{sT1}, s{sT1}, 1
    s_add_u32 s{sT1}, s{sT1}, s{sMI}
    s_lshr_b32 s4, s{sWave}, 1
    s_lshl_b32 s5, s{sHead}, 16
    s_lshl_b32 s{sQ}, s{sT1}, 12
    s_add_u32 s{sQ}, s{sQ}, s5
    s_lshl_b32 s6, s4, 11
    s_add_u32 s{sQ0}, s{sQ}, s6
    s_xor_b32 s6, s6, 2048
    s_add_u32 s{sQ}, s{sQ}, s6
    s_lshl_b32 s{sT1}, s{sT1}, 1
    s_add_u32 s{sT1}, s{sT1}, s4
    s_lshl_b32 s{sO}, s{sT1}, 16
    s_lshl_b32 s{sT0}, s{sHead}, 10
    s_add_u32 s{sO}, s{sO}, s{sT0}
    s_add_u32 s{sO}, s{sO}, {OF}
    s_lshl_b32 s{sFo}, s{sT1}, 12
    s_lshl_b32 s{sT0}, s{sHead}, 7
    s_add_u32 s{sFo}, s{sFo}, s{sT0}
    s_add_u32 s{sFo}, s{sFo}, {FO}
    s_add_u32 s{sKb}, s5, {KF}
    s_lshl_b32 s{sT0}, s4, 15
    s_add_u32 s{sKVb}, s{sKb}, s{sT0}
    v_mov_b32 v{vK}, v{vL16}
    v_lshrrev_b32 v{vV}, 5, v{vL}
    v_lshlrev_b32 v{vV}, 8, v{vV}
    v_and_b32 v{aPKV}, 15, v{vL}
    v_lshl_add_u32 v{vV}, v{aPKV}, 4, v{vV}
    v_add_u32 v{vV}, {VF-KF}, v{vV}
    s_mov_b32 s{sMask}, 0x0000ffff
    s_mov_b32 s{sMask+1}, 0x0000ffff
    s_mov_b32 s{sFB}, 1
    s_mov_b32 s{sOff}, {hex(f2u(-OFFSET))}
    v_mov_b32 v{vIdx}, 0xdddddddd
    v_and_b32 v{aOnes}, 27, v{vL}
    v_cmp_eq_u32 vcc, 16, v{aOnes}
    v_mov_b32 v{aOnes}, 0x3f803f80
    s_lshr_b32 s{sFQ}, s{sHead}, 1
    v_cndmask_b32 v{aOnes}, 0, v{aOnes}, vcc
    s_lshl_b32 s{sFQ}, s{sFQ}, 13
    s_add_u32 s{sFQ}, s{sFQ}, {FQ}
    v_lshlrev_b32 v{aL128}, 7, v{vL}
    s_lshr_b32 s{sPKV}, s2, 5
    s_lshl_b32 s{sPKV}, s{sPKV}, 2
    s_add_u32 s{sPKV}, s{sPKV}, s{sWave}
    s_lshl_b32 s{sPKV}, s{sPKV}, 11
    s_add_u32 s{sPKV}, s{sPKV}, s{sKb}          ; K/V slice
    v_lshlrev_b32 v{aPKV}, 7, v{aPKV}
    v_bfe_u32 v{aPF}, v{vL}, 4, 1
    v_lshl_add_u32 v{aPKV}, v{aPF}, 21, v{aPKV}
    """)
    assert VF - KF == 1 << 21
    for g in range(NB4, 5): pub_ld(g)
    check(True, 0, 1, sleep=opt.get("asleep", 2))
    FS()
    NPRE = 12 + NG0
    for g in range(5, NPRE):
        if g >= 9: check(True, 0, g - 7, sleep=opt.get('asleep', 2))
        if g == 12:
            pub_ld(11)
            if not opt.get("p2early", 1): p2()
        dma(*ddq(g))
        if g >= 7 and g < 16: FS()
        if 8 <= g <= 11:
            inits = [f"v_accvgpr_write_b32 a{x[1]+i}, v{aOnes}" if x[0] == "a" else f"v_mov_b32 v{x[1]+i}, v{aOnes}" for x in VRG for i in range(8)]
            inits += [f"v_accvgpr_write_b32 a{O+i}, 0" for i in range(64)]
            for x in inits[(g - 8) * 20:(g - 7) * 20]: A(x)
        if g == 11:
            A(f"v_mov_b32 v{vT1}, 0\nbuffer_load_dword v{vF}, v{vT1}, {s(sDbg,4)}, 0 offen sc1"); vmq.push("tag")
        if g > 5 and g != 12: pub_ld(g - 1)
    pub_ld(NPRE - 1)
    if FR: ST(); again(); ST.flush(ws, STAMP, sWave, 2, 3, sT0); A("s_endpgm"); ST.on = False; stamps = False
    if opt.get("aexit"): A("s_waitcnt lgkmcnt(0)\ns_endpgm")
    A(f"s_waitcnt vmcnt(0)\nv_readfirstlane_b32 s{sTag}, v{vF}\ns_cmp_lg_u32 s{sTag}, 0\ns_cbranch_scc1 L_atag_x")
    get_tag(vF, vT1, "L_atag")
    A(f"s_setprio 2\ns_cmp_lg_u32 s{sWave}, 0\ns_cbranch_scc1 L_aw")
    lds_spin("L_ag2", M, vCntR, 0, f"v_cmp_gt_u32 vcc, 12, v{M}", sleep=2)
    ST()
    spin_flags("L_qf", vF, aL128, sFQ, 64, sleep=2)
    A(f"ds_write_b32 v{aGo}, v{vOne}\ns_branch L_aw_x")
    A.label("L_aw")
    if stamps: ST.n -= 1; ST()
    lds_spin("L_ag3", M, aGo, 0, f"v_cmp_eq_u32 vcc, 0, v{M}", sleep=1)
    A.label("L_aw_x")
    ST()
    assert NG0 == 4
    sKN = sKB2
    vOwn, vOneA, vKl, vVl, vPl = 2, 3, 4, 5, 6
    A(f"buffer_load_dwordx4 {a(KS,4)}, v{vK}, {ws}, s{sKb} offen sc1")
    A(f"buffer_load_dwordx4 {a(KS+4,4)}, v{vK}, {ws}, s{sKb} offen offset:1024 sc1")
    for t in range(4):
        A(f"buffer_load_dwordx4 {a(Q+4*t,4)}, v{vK}, {ws}, s{sQ0 if t < 2 else sQ} offen offset:{(t&1)*1024} sc1")
    A(f"s_and_b32 s4, s{sWave}, 1\ns_lshl_b32 s4, s4, 21\ns_add_u32 s4, s4, s{sKVb}\ns_mul_i32 s5, s{sWave}, {RKV*1024}")
    for k0, n in ((0, 2), (2, 4), (6, 4)):
        A(f"s_add_u32 m0, s5, {((k0 + E0) % RKV) * 1024}\ns_add_u32 s6, s4, {k0*1024}")
        for i in range(n): A(f"buffer_load_dwordx4 v{vK}, {ws}, s6 offen offset:{i*1024} sc1 lds")
    A(f"ds_add_u32 v{vCnt}, v{vOne}")
    A(f"""
    v_subrev_u32 v{vOwn}, 1024, v{vCnt}
    v_mov_b32 v{vOneA}, 1
    s_lshr_b32 s4, s{sWave}, 1
    s_mul_i32 s4, s4, {2*RKV*1024}
    v_add_u32 v{vKl}, s4, v{vK}
    s_sub_u32 s4, s4, {VF-KF-RKV*1024}
    v_add_u32 v{vVl}, s4, v{vV}
    v_mov_b32 v{vF}, 2
    s_waitcnt vmcnt({RKV})
    """)
    def maxtree(dst, blocks, first):
        regs = [b + i for b in blocks for i in range(16)]
        if first:
            A(f"v_max3_f32 v{dst}, v{regs[0]}, v{regs[1]}, v{regs[2]}"); regs = regs[3:]
        while len(regs) >= 2:
            A(f"v_max3_f32 v{dst}, v{dst}, v{regs[0]}, v{regs[1]}"); regs = regs[2:]
        if regs: A(f"v_max_f32 v{dst}, v{dst}, v{regs[0]}")
    def build_c():
        T_ = SB
        for t in range(4): A(f"v_mov_b32 v{T_+t}, v{M+t}")
        A("s_nop 1")
        for t in range(4): A(f"v_permlane32_swap_b32 v{T_+t}, v{M+t}")
        for t in range(4): A(f"v_max_f32 v{M+t}, v{M+t}, v{T_+t}")
        for t in range(4): A(f"v_sub_f32 v{M+t}, s{sOff}, v{M+t}")
    def fill_c(t):
        for i in range(8): A(f"v_pk_mov_b32 {v(C+16*t+2*i,2)}, {v(M+(t&~1),2)}, {v(M+(t&~1),2)} op_sel:[{t&1},{t&1}]")
    for t in range(4):
        A(f"{MF} {v(C+16*t,16)}, {a(KS,4)}, {a(Q+4*t,4)}, 0")
        A(f"{MF} {v(SB+16*t,16)}, {a(KS+4,4)}, {a(Q+4*t,4)}, 0")
    A("s_nop 5")
    for t in range(2): maxtree(M + t, [C + 16 * t, SB + 16 * t], True)
    A(f"s_waitcnt vmcnt({RKV-2})\nds_add_u32 v{vOwn}, v{vF} offset:512")
    for t in range(2, 4): maxtree(M + t, [C + 16 * t, SB + 16 * t], True)
    def kvread(slot, pos, add=True):
        A(f"ds_read_b128 {rg(KRG[slot])}, v{vKl} offset:{pos*1024}")
        A(f"s_mov_b64 exec, {s(sMask,2)}")
        A(f"ds_read_b128 {rg(VRG[slot])}, v{vVl} offset:{pos*1024}")
        A(f"ds_read_b128 {rg(VRG[slot],4)}, v{vVl} offset:{pos*1024+512}")
        A(f"s_mov_b64 exec, -1")
        if add: A(f"ds_add_u32 v{vOwn}, v{vOneA} offset:1024")
    lds_spin("L_akv", vF, vCntR, 512, f"v_cmp_gt_u32 vcc, 2, v{vF}")
    kvread(E0 & 1, E0)
    build_c()
    for t in range(4): fill_c(t)
    for i in range(4): A(f"v_pk_mov_b32 {v(SB+48+8+2*i,2)}, 0, 0")
    A(f"v_mov_b32 v{vPl}, 2\nv_mov_b32 v{vF}, {RKV-2}\ns_mov_b32 s{sCnt}, 4\ns_mov_b32 s{sKN}, {3 if G2 else 2}\ns_waitcnt vmcnt(0) lgkmcnt(0)\nds_add_u32 v{vOwn}, v{vF} offset:512")
    A(f"{MF} {v(SB,16)}, {rg(KRG[E0 & 1])}, {a(Q,4)}, {v(C,16)}")
    ST()
    if stamps: A("s_memtime s[96:97]")
    A("s_nop 9\ns_branch L_aent")
    A.raw(".p2align 6")
    A.label("L_aloop")
    for r in range(RKV):
        if r == E0: A.label("L_aent")
        sl = r & 1
        for t in range(4):
            X = SB + 16 * t
            tn = (t + 1) & 3; sn = sl if t < 3 else sl ^ 1
            tp = (t - 1) & 3; sp_ = sl if t > 0 else sl ^ 1
            E = lambda j: f"v_exp_f32 v{X+j}, v{X+j}"
            if t == 3: A("s_waitcnt lgkmcnt(0)")
            A(f"{MF} {v(SB+16*tn,16)}, {rg(KRG[sn])}, {a(Q+4*tn,4)}, {v(C+16*tn,16)}")
            for j in range(0, 5): A(E(j))
            A(f"{SMF} {a(O+16*tp,16)}, {rg(VRG[sp_],4)}, {v(SB+16*tp+8,8)}, v{vIdx}")
            A(E(5))
            if t == 0 and G2 and r % 2 == 1:
                kvread(sl ^ 1, (r + 1) % RKV, add=False)
            elif t == 0:
                l = lab("akc")
                A(f"v_cmp_gt_u32 vcc, s{sKN}, v{vPl}\ns_cbranch_vccnz {l}")
                A.label(l + "_x")
                def sp(l=l):
                    A.label(l)
                    A(f"ds_read_b32 v{vPl}, v{vCntR} offset:512\ns_waitcnt lgkmcnt(0)\nv_cmp_gt_u32 vcc, s{sKN}, v{vPl}\ns_cbranch_vccz {l}_x")
                    timeout_exit(l + "_x")
                    A(f"s_sleep 1\ns_branch {l}")
                slow.append(sp)
                kvread(sl ^ 1, (r + 1) % RKV)
            if t == 2 and (not G2 or r % 2 == 1):
                A(f"ds_read_b32 v{vPl}, v{vCntR} offset:512\ns_add_u32 s{sKN}, s{sKN}, {2 if G2 else 1}")
            for j in range(6, 11): A(E(j))
            A(f"{SMF} {a(O+16*t,16)}, {rg(VRG[sl])}, {v(X,8)}, v{vIdx}")
            if r == RKV - 1 and t == 3:
                A(E(11))
                A(f"s_sub_u32 s{sCnt}, s{sCnt}, 1\ns_cmp_lg_u32 s{sCnt}, 0")
                for j in range(12, 16): A(E(j))
            else:
                for j in range(11, 16): A(E(j))
    A("s_cbranch_scc1 L_aloop")
    A("s_nop 1")
    A(f"{SMF} {a(O+48,16)}, {rg(VRG[1],4)}, {v(SB+48+8,8)}, v{vIdx}")
    A.label("L_afin")
    ST()
    if stamps: A("s_memtime s[98:99]")
    A(f"""
    s_mul_i32 s{sT0}, s{sWave}, {CMBW}
    s_add_u32 s{sT0}, s{sT0}, {CMB}
    v_add_u32 v2, s{sT0}, v{vK}
    v_lshl_add_u32 v3, v{vL}, 2, s{sT0}
    s_xor_b32 s{sT0}, s{sWave}, 2
    s_mul_i32 s{sT0}, s{sT0}, {CMBW}
    s_add_u32 s{sT0}, s{sT0}, {CMB}
    v_add_u32 v4, s{sT0}, v{vK}
    v_lshl_add_u32 v5, v{vL}, 2, s{sT0}
    v_mov_b32 v{vF}, s{sFB}
    """)
    for i in range(2):
        t = 2 + i
        if i == 1: A("s_nop 0")
        A(f"ds_write_b128 v2, {a(O+16*t,4)} offset:{i*2304}")
        A(f"ds_write_b128 v2, {a(O+16*t+4,4)} offset:{i*2304+1024}")
        A(f"ds_write_b32 v3, a{O+16*t+8} offset:{i*2304+2048}")
    A(f"ds_write_b32 v{vAF}, v{vF}")
    for i in range(2):
        for e in range(9): A(f"v_accvgpr_read_b32 v{C+24*i+e}, a{O+16*i+e}")
    lds_spin("L_ax", M, vPF, 0, f"v_cmp_gt_u32 vcc, s{sFB}, v{M}")
    for i in range(2):
        b = C + 24 * i + 12
        A(f"ds_read_b128 {v(b,4)}, v4 offset:{i*2304}")
        A(f"ds_read_b128 {v(b+4,4)}, v4 offset:{i*2304+1024}")
        A(f"ds_read_b32 v{b+8}, v5 offset:{i*2304+2048}")
    A(f"""
    v_mov_b32 v2, 0
    s_mov_b64 {s(sBad,2)}, 0
    s_mov_b32 s4, {hex(f2u(2.0**-110))}
    s_mov_b32 s5, {hex(f2u(2.0**120))}
    s_add_u32 s6, s{sO}, 32768
    s_waitcnt lgkmcnt(0)
    """)
    for i in range(2):
        b0 = C + 24 * i
        for e in range(9): A(f"v_add_f32 v{b0+e}, v{b0+e}, v{b0+12+e}")
        A(f"v_rcp_f32 v{b0+9}, v{b0+8}")
        A(f"v_cmp_nle_f32 vcc, s4, v{b0+8}")
        A(f"s_or_b64 {s(sBad,2)}, {s(sBad,2)}, vcc")
        A(f"v_cmp_nge_f32 vcc, s5, v{b0+8}")
        A(f"s_or_b64 {s(sBad,2)}, {s(sBad,2)}, vcc")
        for e in range(8): A(f"v_mul_f32 v{b0+e}, v{b0+e}, v{b0+9}")
        for e in range(4): A(f"v_cvt_pk_bf16_f32 v{b0+12+e}, v{b0+2*e}, v{b0+2*e+1}")
        A(f"buffer_store_dwordx4 {v(b0+12,4)}, v{vK}, {ws}, s{sO if i == 0 else 6} offen sc1")
    for i in range(2):
        for e in range(8): A(f"v_fma_f32 v2, v{C+24*i+e}, 0, v2")
    A(f"""
    v_cmp_u_f32 vcc, v2, v2
    s_or_b64 {s(sBad,2)}, {s(sBad,2)}, vcc
    s_cmp_lg_u64 {s(sBad,2)}, 0
    s_cselect_b32 s4, 2, 1
    v_mov_b32 v2, s4
    v_mov_b32 v3, s{sTag}
    v_mov_b32 v4, 0
    ds_write_b32 v{vAF}, v2 offset:256
    s_cmp_eq_u32 s{sFB}, 2
    s_cselect_b32 s5, 1, s4
    s_cmp_lg_u32 s5, 1
    s_cbranch_scc1 L_anoflag
    s_waitcnt vmcnt(0)
    s_mov_b64 exec, 1
    buffer_store_dword v3, v4, {ws}, s{sFo} offen sc1
    s_mov_b64 exec, -1
    """)
    A.label("L_anoflag")
    if stamps:
        ST(); A("s_waitcnt lgkmcnt(0)\ns_sub_u32 s98, s98, s96\ns_add_u32 s%d, s98, s%d" % (ST.base + 2 * ST.n, ST.base)); ST.n += 1
        ST.flush(ws, STAMP, sWave, 2, 3, sT0)
        if opt.get("atrace"):
            A(f"s_add_u32 s{sT0}, s{sT0}, {MB}\nv_lshlrev_b32 v2, 2, v{vL}\nbuffer_store_dword v140, v2, {ws}, s{sT0} offen")
    A(f"s_cmp_eq_u32 s{sFB}, 2\ns_cbranch_scc1 L_end")
    lds_spin("L_as", M, vPF, 256, f"v_cmp_eq_u32 vcc, 0, v{M}")
    A(f"v_readfirstlane_b32 s5, v{M}\ns_max_u32 s4, s4, s5\ns_cmp_lt_u32 s4, 2\ns_cbranch_scc1 L_end")
    A(f"s_mov_b32 s{sFB}, 2\ns_mov_b32 s{sOff}, 0\ns_mov_b32 s{sCnt}, 64\ns_mov_b32 s{sKA}, s{sKb}\ns_waitcnt vmcnt(0)")
    for t in range(4): A(f"v_mov_b32 v{M+t}, 0xff800000")
    A.label("L_afb")
    A(f"buffer_load_dwordx4 {a(KS,4)}, v{vK}, {ws}, s{sKA} offen sc1")
    A("s_waitcnt vmcnt(0)")
    for t in range(4): A(f"{MF} {v(C+16*t,16)}, {a(KS,4)}, {a(Q+4*t,4)}, 0")
    A("s_nop 11")
    for t in range(4): maxtree(M + t, [C + 16 * t], False)
    A(f"s_add_u32 s{sKA}, s{sKA}, 1024\ns_sub_u32 s{sCnt}, s{sCnt}, 1\ns_cmp_lg_u32 s{sCnt}, 0\ns_cbranch_scc1 L_afb")
    build_c()
    for t in range(4): fill_c(t)
    zero_o()
    A(f"s_mov_b32 s{sCnt}, 32\ns_mov_b32 s{sKA}, s{sKVb}")
    A.label("L_afb2")
    A(f"""
    buffer_load_dwordx4 {rg(KRG[0])}, v{vK}, {ws}, s{sKA} offen sc1
    s_mov_b64 exec, {s(sMask,2)}
    buffer_load_dwordx4 {rg(VRG[0])}, v{vV}, {ws}, s{sKA} offen sc1
    buffer_load_dwordx4 {rg(VRG[0],4)}, v{vV}, {ws}, s{sKA} offen offset:512 sc1
    s_mov_b64 exec, -1
    s_waitcnt vmcnt(0)
    """)
    for t in range(4): A(f"{MF} {v(SB+16*t,16)}, {rg(KRG[0])}, {a(Q+4*t,4)}, {v(C+16*t,16)}")
    A("s_nop 8")
    for j in range(64): A(f"v_exp_f32 v{SB+j}, v{SB+j}")
    A("s_nop 2")
    for t in range(4):
        A(f"{SMF} {a(O+16*t,16)}, {rg(VRG[0])}, {v(SB+16*t,8)}, v{vIdx}")
        A(f"{SMF} {a(O+16*t,16)}, {rg(VRG[0],4)}, {v(SB+16*t+8,8)}, v{vIdx}")
    A(f"s_add_u32 s{sKA}, s{sKA}, 1024\ns_sub_u32 s{sCnt}, s{sCnt}, 1\ns_cmp_lg_u32 s{sCnt}, 0\ns_cbranch_scc1 L_afb2")
    A("s_nop 15\ns_branch L_afin")
    for f in slow: f()
    A.label("L_end")
    A("s_endpgm")
    A.raw(f".fill (51200 - (. - {K})) / 4, 4, 0xbf800000")

    H_ = Asm()
    H_.raw(f"; @launch grid=(256,1,1) block=(512,1,1) lds={LDS}")
    H_.raw('.amdgcn_target "amdgcn-amd-amdhsa--gfx950"\n.text')
    H_.lines += A.lines
    H_.raw(f""".section .rodata,"a"
.p2align 6
.amdhsa_kernel {K}
  .amdhsa_next_free_vgpr {NV+NA}
  .amdhsa_next_free_sgpr 102
  .amdhsa_accum_offset {NV}
  .amdhsa_group_segment_fixed_size 0
  .amdhsa_kernarg_size 80
  .amdhsa_user_sgpr_count 2
  .amdhsa_user_sgpr_kernarg_segment_ptr 1
  .amdhsa_system_sgpr_workgroup_id_x 1
.end_amdhsa_kernel""")
    txt = H_.text()
    check_hazards(txt)
    return txt

if __name__ == "__main__":
    base = {"pfgo": 1}
    open("mega_s.s", "w").write(build(True, base))
    open("mega.s", "w").write(build(False, base))
    open("mega_tr.s", "w").write(build(True, dict(base, atrace=1)))
    open("mega_dbg.s", "w").write(build(True, dict(base, dbgout=10)))
    open("mega_pt.s", "w").write(build(False, dict(base, pretouch=1)))
    open("mega_nc.s", "w").write(build(False, dict(base, cpf=0)))
    open("mega_b.s", "w").write(build(True, dict(base, p1kv=0, p2early=0)))
    open("mega_c.s", "w").write(build(True, dict(base, p1kv=1, p2early=0)))
    open("mega_d.s", "w").write(build(True, dict(base, p1kv=0, p2early=1)))
```

```python
import re

def v(i, n=1):
    return f"v{i}" if n == 1 else f"v[{i}:{i+n-1}]"
def a(i, n=1):
    return f"a{i}" if n == 1 else f"a[{i}:{i+n-1}]"
def s(i, n=1):
    return f"s{i}" if n == 1 else f"s[{i}:{i+n-1}]"

class Asm:
    def __init__(self):
        self.lines = []
        self._uid = 0
    def __call__(self, txt):
        for ln in txt.strip("\n").split("\n"):
            ln = ln.strip()
            if ln:
                self.lines.append("    " + ln)
    def label(self, name):
        self.lines.append(f"{name}:")
    def raw(self, txt):
        self.lines.append(txt)
    def comment(self, txt):
        self.lines.append("    ; " + txt)
    def warm_begin(self):
        self._wb = len(self.lines)
    def warm_end(self, name, nxt, every):
        body = self.lines[self._wb:]; out = []; k = 0; acc = every
        def size(t):
            op = t.split()[0]
            if op.startswith(("buffer_", "global_", "ds_", "v_mfma", "v_smfmac", "v_pk_", "v_dot2_", "v_accvgpr", "v_cvt_pk", "v_max3", "v_fma", "v_lshl_add", "v_or3", "v_bfe", "v_writelane", "v_mul_lo", "s_mem", "s_load")): return 8
            if re.search(r"0x[0-9a-f]{3,}|\b\d{3,}\b", t.split(None, 1)[1] if " " in t else "") and not op.startswith(("s_waitcnt", "s_cbranch", "s_branch")): return 8
            if op.startswith("v_cmp") and not t.split()[1].startswith("vcc"): return 8
            return 4
        for ln in body:
            t = ln.split(";")[0].strip()
            isins = bool(re.match(r"^(v_|s_|ds_|buffer_|global_)", t)) and not t.endswith(":")
            if isins and acc >= every:
                out.append(f"{name}_{k}:" if k else f"{name}:")
                out.append(f"    s_cbranch_execz {name}_{k+1}"); k += 1; acc = 4
            out.append(ln)
            if isins: acc += size(t)
        txt = "\n".join(out).replace(f"s_cbranch_execz {name}_{k}", f"s_cbranch_execz {nxt}") if k < 10 else None
        for i in range(len(out) - 1, -1, -1):
            if out[i].strip() == f"s_cbranch_execz {name}_{k}":
                out[i] = f"    s_cbranch_execz {nxt}"; break
        self.lines[self._wb:] = out
    def uid(self, p="L"):
        self._uid += 1
        return f"{p}_{self._uid}"
    def text(self):
        return "\n".join(self.lines) + "\n"

_REG = re.compile(r"\b([vas])(?:(\d+)|\[(\d+):(\d+)\])")
TRANS = ("v_exp_f32", "v_log_f32", "v_rcp_f32", "v_rsq_f32", "v_sqrt_f32", "v_sin_f32", "v_cos_f32",
         "v_exp_f16", "v_rcp_f16", "v_rcp_iflag_f32")

def _regs(op):
    out = set()
    for m in _REG.finditer(op):
        k = m.group(1)
        if m.group(2) is not None:
            out.add((k, int(m.group(2))))
        else:
            for r in range(int(m.group(3)), int(m.group(4)) + 1):
                out.add((k, r))
    if re.search(r"\bvcc\b", op):
        out.add(("s", "vcc"))
    if re.search(r"\bexec\b", op):
        out.add(("s", "exec"))
    if re.search(r"\bm0\b", op):
        out.add(("s", "m0"))
    return out

def _split_ops(rest):
    ops, depth, cur = [], 0, ""
    for ch in rest:
        if ch == "[":
            depth += 1
        if ch == "]":
            depth -= 1
        if ch == "," and depth == 0:
            ops.append(cur.strip()); cur = ""
        else:
            cur += ch
    if cur.strip():
        ops.append(cur.strip())
    return ops

class Ins:
    def __init__(self, line, idx):
        self.line = line; self.idx = idx
        t = line.split(";")[0].strip()
        parts = t.split(None, 1)
        self.op = parts[0]
        rest = parts[1] if len(parts) > 1 else ""
        self.ops = _split_ops(rest)
        op = self.op
        self.is_mfma = op.startswith("v_mfma") or op.startswith("v_smfmac")
        self.is_valu = op.startswith("v_") and not self.is_mfma
        self.is_trans = any(op.startswith(x) for x in TRANS)
        self.is_vmem = op.startswith(("buffer_", "global_", "flat_"))
        self.is_ds = op.startswith("ds_")
        self.is_salu = op.startswith("s_")
        self.w = set(); self.r = set()
        o = self.ops
        self.passes = 0
        self.srcc = set(); self.srcab = set()
        if self.is_mfma:
            self.w = _regs(o[0]); self.srcab = _regs(o[1]) | _regs(o[2]); self.srcc = _regs(o[3])
            if op.startswith("v_smfmac"):
                self.srcab |= self.srcc; self.srcc = set(self.w)
            self.r = self.srcab | self.srcc
            self.passes = 8 if ("32x32x16" in op or "32x32x32" in op) else (4 if ("16x16x32" in op or "16x16x64" in op) else 16)
        elif self.is_valu:
            if op.startswith("v_cmp"):
                self.w = _regs(o[0]); self.r = set().union(*[_regs(x) for x in o[1:]])
                if op.startswith("v_cmpx"): self.w.add(("s", "exec"))
            elif op.startswith(("v_permlane16_swap", "v_permlane32_swap", "v_swap")):
                self.w = _regs(o[0]) | _regs(o[1]); self.r = set(self.w)
            elif op.startswith(("v_add_co", "v_sub_co", "v_addc_co", "v_subb_co", "v_div_scale", "v_mad_u64")):
                self.w = _regs(o[0]) | _regs(o[1]); self.r = set().union(*[_regs(x) for x in o[2:]])
            elif op == "v_nop":
                pass
            else:
                self.w = _regs(o[0]); self.r = set().union(*[_regs(x) for x in o[1:]]) if len(o) > 1 else set()
                if op.startswith(("v_fmac", "v_pk_fmac", "v_dot2c", "v_writelane")) or "dpp" in t or "row_" in t or "quad_perm" in t:
                    self.r |= self.w
                if op.startswith("v_cndmask") and len(o) == 3: self.r.add(("s", "vcc"))
            self.is_dpp = ("row_" in t) or ("quad_perm" in t) or ("wave_" in t)
        elif self.is_vmem:
            lds = bool(re.search(r"\blds\b", t)) or "_lds_" in op
            self.lds_dma = lds
            allr = [_regs(x) for x in o]
            if "load" in op and not lds:
                self.w = allr[0]; self.r = set().union(*allr[1:])
            elif "atomic" in op and "sc0" in t:
                self.w = allr[0]; self.r = set().union(*allr)
            else:
                self.r = set().union(*allr) if allr else set()
            if lds: self.r.add(("s", "m0"))
            self.store_data = set()
            if "store" in op and (op.endswith("x4") or op.endswith("x3")):
                self.store_data = allr[0] if op.startswith("buffer_") else allr[1]
        elif self.is_ds:
            allr = [_regs(x) for x in o]
            if "read" in op or "bpermute" in op or "permute" in op or "swizzle" in op or "_rtn" in op:
                self.w = allr[0]; self.r = set().union(*allr[1:]) if len(allr) > 1 else set()
            else:
                self.r = set().union(*allr)
        elif self.is_salu:
            if op.startswith(("s_cmp", "s_cbranch", "s_branch", "s_waitcnt", "s_nop", "s_barrier", "s_endpgm", "s_setprio", "s_sleep", "s_bitcmp")):
                self.r = set().union(*[_regs(x) for x in o]) if o else set()
            else:
                self.w = _regs(o[0]) if o else set()
                self.r = set().union(*[_regs(x) for x in o[1:]]) if len(o) > 1 else set()
                if "saveexec" in op: self.w.add(("s", "exec"))
        self.slots = 1
        if op == "s_nop":
            self.slots = int(o[0], 0) + 1

def _need(p, c):
    n = 0
    vw = {x for x in p.w if x[0] in "va"}
    sw = {x for x in p.w if x[0] == "s"}
    if p.is_valu:
        if c.is_mfma and vw & c.r: n = max(n, 3 if p.is_trans else 2)
        if c.is_mfma and ("s", "exec") in sw: n = max(n, 4)
        if p.is_trans and c.is_valu and not c.is_trans and vw & c.r: n = max(n, 1)
        if p.is_trans and (c.is_vmem or c.is_ds) and vw & c.r: n = max(n, 1)
        if c.is_valu and c.op.startswith("v_permlane") and vw & c.r: n = max(n, 2)
        if c.is_valu and getattr(c, "is_dpp", False) and vw & c.r: n = max(n, 2)
        if c.is_valu and getattr(c, "is_dpp", False) and ("s", "exec") in sw: n = max(n, 5)
        if c.op.startswith(("v_readlane", "v_readfirstlane")) and vw & c.r: n = max(n, 1)
        if c.op.startswith(("v_readlane", "v_readfirstlane", "v_writelane")) and ("s", "exec") in sw: n = max(n, 4)
        if c.is_vmem and sw & c.r: n = max(n, 5)
        if c.is_valu and sw & c.r:
            n = max(n, 4 if c.op.startswith(("v_readlane", "v_writelane", "v_div_fmas")) else 2)
    if p.op.startswith("v_dot"):
        if c.op == p.op:
            srcab = set().union(*[_regs(x) for x in c.ops[1:3]])
            if vw & srcab: n = max(n, 3)
        elif vw & (c.r | c.w): n = max(n, 3)
    if p.is_mfma:
        P = p.passes
        tab_ab = {2: 5, 4: 8, 8: 12, 16: 20}[P]
        tab_c = {2: 4, 4: 6, 8: 10, 16: 18}[P]
        if c.is_mfma:
            if p.w & c.srcab: n = max(n, tab_ab)
            if p.w & c.srcc and not (p.w == c.srcc and p.passes == c.passes): n = max(n, tab_c)
            if p.w & c.w and not (p.w & c.srcc): n = max(n, tab_c)
        elif c.is_valu or c.is_vmem or c.is_ds:
            if p.w & (c.r | c.w): n = max(n, tab_ab)
        if c.is_valu and p.srcc & c.w:
            n = max(n, {2: 1, 4: 3, 8: 7, 16: 15}[P])
    if p.is_salu and ("s", "m0") in p.w and c.is_vmem and getattr(c, "lds_dma", False):
        n = max(n, 1)
    if p.is_vmem and getattr(p, "store_data", None) and (p.store_data & c.w):
        n = max(n, 2 if c.is_valu else 1)
    return n

def check_hazards(text, verbose=True):
    ins = []; labels = {}
    for ln in text.split("\n"):
        t = ln.split(";")[0].strip()
        if not t or t.startswith("."):
            if t.startswith(".section") or t.startswith(".amdhsa_kernel"):
                pass
            continue
        if t.endswith(":"):
            labels[t[:-1]] = len(ins); continue
        if not re.match(r"^(v_|s_|ds_|buffer_|global_|flat_)", t):
            continue
        ins.append(Ins(t, len(ins)))
    probs = []
    W = 24
    def scan(seq):
        for i, p in enumerate(seq):
            if not (p.is_valu or p.is_mfma or p.is_salu or p.is_vmem): continue
            dist = 0
            for c in seq[i+1:i+1+W]:
                nd = _need(p, c)
                if nd > dist:
                    probs.append(f"HAZARD need {nd} have {dist}: [{p.idx}] {p.line}  ->  [{c.idx}] {c.line}")
                dist += c.slots
                if dist >= 21: break
                if c.op in ("s_endpgm", "s_branch"): break
    scan(ins)
    for i, b in enumerate(ins):
        if b.op.startswith(("s_cbranch", "s_branch")) and b.ops and b.ops[0] in labels:
            tgt = labels[b.ops[0]]
            seq = ins[max(0, i - W):i + 1]
            seq2 = seq[:-1] + [Ins("s_nop 0", b.idx)] + ins[tgt:tgt + W]
            scan(seq2)
    probs = sorted(set(probs))
    if verbose:
        for p in probs: print(p)
        print(f"hazard check: {len(ins)} instrs, {len(probs)} problems")
    return probs


class Stamps:
    def __init__(self, A, base=60, on=False):
        self.A = A; self.base = base; self.n = 0; self.on = on; self.names = []
    def __call__(self, name=""):
        if not self.on: return
        b = self.base + 2 * self.n
        assert b + 1 < 102
        self.A(f"{'s_memtime' if getattr(self, 'cyc', False) else 's_memrealtime'} s[{b}:{b+1}]")
        self.n += 1
    def flush(self, srd, off, swave, vt0, vt1, st):
        if not self.on: return
        A = self.A
        A("s_waitcnt lgkmcnt(0)")
        A(f"s_lshl_b32 s{st}, s2, 4")
        A(f"s_add_u32 s{st}, s{st}, s{swave}")
        A(f"s_lshl_b32 s{st}, s{st}, 8")
        A(f"s_add_u32 s{st}, s{st}, {off}")
        A(f"v_mov_b32 v{vt0}, 0")
        for i in range(self.n):
            b = self.base + 2 * i
            A(f"v_mov_b32 v{vt1}, s{b}")
            A(f"buffer_store_dword v{vt1}, v{vt0}, {srd}, s{st} offen offset:{8*i+4}")
            A(f"s_nop 1")
```

```python
import sys, struct
from asmlib import *
from layout import *
NAME = 'recurrent_scan__softmax_full_mha__glu_gated_geglu__prompt'
def f2u(x): return struct.unpack("<I", struct.pack("<f", x))[0]
MF = "v_mfma_f32_32x32x16_bf16"
SMF = "v_smfmac_f32_32x32x32_bf16"
C1 = -2.0 * 1.4426950408889634 * 0.7978845608028654
C2 = C1 * 0.044715
OFFSET = 80.0
NV, NA = 144, 112

SLOT = 16384
RB0 = 8192
RKV = 10
PIECE = 528
XT = RB0 + 5 * SLOT
CMB = RB0 + 8 * SLOT
CMBW = 2 * 2304
CNT = CMB + 4 * CMBW
LDC = CNT + 1024
AFL = LDC + 1024
GO = AFL + 8 * 256
LDS = GO + 256
assert XT + 128 * PIECE <= CNT and LDS <= 163840 and 4 * RKV * 1024 == RB0 + 2 * SLOT

class Fifo:
    def __init__(self, cap): self.q = []; self.cap = cap; self.since = 0
    def push(self, tag, n=1): self.q += [tag] * n; self.since += n
    def need(self, tag):
        idx = [i for i, t in enumerate(self.q) if t == tag]
        if not idx: return None
        return min(len(self.q) - 1 - idx[-1], self.cap)
    def waited(self, n): self.q = self.q[max(0, len(self.q) - n):] if n else []
    def clear(self): self.q = []

def build(stamps=False, opt=None):
    opt = opt or {}
    TIMEOUT = opt.get("timeout", 200000)
    NG0 = opt.get('ng0', 4)
    PF2MASK = '0xffffffff'
    A = Asm()
    K = NAME + "_kernel"
    ST = Stamps(A, 70, stamps); ST.cyc = opt.get('cyc', False)
    sX, sWq, sWgu, sWd, sWo, sWS, sOut, sDbg = 8, 12, 16, 20, 24, 28, 32, 36
    sWave, sRB, sCG, sT0, sT1, sT2, sTag, sTO = 40, 41, 42, 43, 44, 45, 46, 47
    sGW, sMI, sNI, sM0, sQoff, sGoff, sDoff, sOoffW, sNeed, sFlag, sHst, sBlk, sNb = 48, 49, 50, 51, 52, 53, 54, 55, 56, 57, 58, 59, 60
    sHfl, sC, sD0, sD1, sHld, sXo, sHb, sSt = 61, 62, 64, 65, 66, 67, 68, 69
    sKA, sCnt, sKB2, sBad = 48, 51, 49, 52
    sFB, sOff, sQ, sKVb, sHead, sO, sKb, sFo = 50, 54, 55, 56, 57, 60, 61, 62
    sMask, sQ0, sFQ, sP3, sPKV = 58, 63, 65, 66, 67
    sKVs, sKVm = 52, 1
    ws = s(sWS, 4)
    vL, vT0, vT1, vT2, vHF = 1, 2, 3, 4, 5
    vDq0, vDq1, vDg0, vDg1, vDd0, vDd1 = 6, 7, 8, 9, 10, 11
    vTRn, vTRnH, vTRp0, vTRp0H, vTRp1, vTRp1H = 12, 13, 14, 15, 16, 17
    vCnt, vOne, vP, vL16, vFl, vL128 = 18, 19, 20, 21, 22, 23
    vH0, vO0 = 6, 7
    vCntR = 0
    slow = []
    vKo, vVo, vH1, vO1, vXo, vRW, vRR, vXR = 24, 25, 26, 27, 28, 29, 30, 31
    WFB = [32, 36, 112, 116, 120, 124]
    if opt.get('twice'): WFB = [32, 128, 112, 116, 120, 124]
    ACC0, ACC1, TMP, AD, XR, GR, SR = 40, 56, 72, 40, 104, 128, 112
    vmq = Fifo(63); lq = Fifo(15)
    uid = [0]
    lowprio = [False]
    def lab(p):
        uid[0] += 1; return f"L_{p}{uid[0]}"
    def vwait(tag):
        n = vmq.need(tag)
        if n is not None: A(f"s_waitcnt vmcnt({n})"); vmq.waited(n)
    def lwait(tag):
        n = lq.need(tag)
        if n is not None: A(f"s_waitcnt lgkmcnt({n})"); lq.waited(n)
    def lds(instr, tag):
        if len(lq.q) >= 15:
            A("s_waitcnt lgkmcnt(12)"); lq.waited(12)
        A(instr); lq.push(tag)
    def timeout_exit(lbl):
        A(f"s_sub_u32 s{sTO}, s{sTO}, 1\ns_cmp_lt_i32 s{sTO}, 0\ns_cbranch_scc1 {lbl}")
    def emask(n): return n if isinstance(n, str) else ("-1" if n == 64 else hex((1 << n) - 1))

    A.raw(f".globl {K}\n.p2align 8\n.type {K},@function\n{K}:")
    F0 = opt.get("front0"); FR = opt.get("front")
    A(f"""
    s_cmp_ge_u32 s2, 256
    s_cbranch_scc1 L_end
    """)
    if opt.get("twice"): A("v_mov_b32 v135, 0"); A.label("L_restart")
    def again():
        if opt.get("twice"):
            l = lab("tw")
            A(f"s_waitcnt vmcnt(0) lgkmcnt(0)\ns_barrier\ns_setprio 0\nv_readfirstlane_b32 s4, v135\ns_cmp_lg_u32 s4, 0\ns_cbranch_scc1 {l}\nv_mov_b32 v135, 1\ns_lshl_b32 s4, s40, 6\nv_add_u32 v0, s4, v1\ns_sleep 40\ns_branch L_restart")
            A.label(l)
    if opt.get("scr"):
        A("s_and_b32 s4, s2, 7\ns_lshl_b32 s4, s4, 3\ns_bfe_u32 s5, s2, 0x30003\ns_and_b32 s2, s2, 0xc0\ns_or_b32 s2, s2, s4\ns_or_b32 s2, s2, s5")
    A(f"""
    s_load_dwordx4 s[4:7], s[0:1], 0
    s_load_dwordx2 s[24:25], s[0:1], 16
    s_load_dwordx4 s[16:19], s[0:1], 32
    s_load_dwordx4 s[20:23], s[0:1], 48
    s_load_dwordx4 s[36:39], s[0:1], 64
    """)
    if opt.get("cpf", 1):
        A(f"""
        s_getpc_b64 s[8:9]
        s_lshr_b32 s10, s2, 3
        s_lshl_b32 s10, s10, 7
        s_add_u32 s8, s8, s10
        s_addc_u32 s9, s9, 0
        v_lshlrev_b32 v2, 12, v0
        v_add_co_u32 v2, vcc, s8, v2
        v_mov_b32 v3, s9
        v_cmp_gt_u32 s[10:11], 12, v0
        v_addc_co_u32 v3, vcc, 0, v3, vcc
        s_and_saveexec_b64 s[12:13], s[10:11]
        s_cbranch_execz L_nocpf
        global_load_dword v143, v[2:3], off
        L_nocpf:
        s_mov_b64 exec, -1
        """)
    ST()
    A(f"""
    v_lshrrev_b32 v{vT0}, 6, v0
    v_and_b32 v{vL}, 63, v0
    s_and_b32 s{sT0}, s2, 7
    v_readfirstlane_b32 s{sWave}, v{vT0}
    s_lshr_b32 s{sT1}, s2, 3
    s_lshr_b32 s{sRB}, s{sT0}, 1
    s_lshl_b32 s{sRB}, s{sRB}, 3
    s_and_b32 s{sT2}, s{sT1}, 7
    s_add_u32 s{sRB}, s{sRB}, s{sT2}
    s_and_b32 s{sCG}, s{sT0}, 1
    s_lshl_b32 s{sCG}, s{sCG}, 2
    s_lshr_b32 s{sT2}, s{sT1}, 3
    s_add_u32 s{sCG}, s{sCG}, s{sT2}
    v_lshrrev_b32 v{vT0}, 3, v{vL}
    v_and_b32 v{vT1}, 7, v{vL}                  ; 16B piece
    v_lshlrev_b32 v{vT2}, 10, v{vT0}
    v_lshl_add_u32 v5, v{vT1}, 4, v{vT2}
    s_lshl_b32 s{sT0}, s{sRB}, 16
    s_lshl_b32 s{sT1}, s{sWave}, 13
    s_add_u32 s{sT0}, s{sT0}, s{sT1}
    s_mov_b32 s{sX+2}, {S*D*2}
    s_mov_b32 s{sX+3}, 0x00020000
    s_mov_b32 s{sWq+2}, {D*1536*2}
    s_mov_b32 s{sWq+3}, 0x00020000
    s_and_b32 s{sGW}, s{sWave}, 3
    s_and_b32 s{sMI}, s{sGW}, 1
    v_lshlrev_b32 v{vL16}, 4, v{vL}
    s_lshl_b32 s{sT1}, s{sGW}, 2
    s_add_u32 s{sT1}, s{sT1}, {CNT}
    v_lshlrev_b32 v{vCnt}, 2, v{vL}
    v_add_u32 v{vCnt}, {CNT+256}, v{vCnt}
    v_writelane_b32 v{vCnt}, s{sT1}, 0
    v_mov_b32 v{vOne}, 1
    v_and_b32 v{vFl}, 3, v{vL}
    v_lshlrev_b32 v{vCntR}, 2, v{vFl}
    v_add_u32 v{vCntR}, {CNT}, v{vCntR}
    s_mov_b32 s{sTO}, {TIMEOUT}
    s_waitcnt lgkmcnt(0)
    s_mov_b32 s{sX}, s4
    s_mov_b32 s{sX+1}, s5
    s_mov_b32 s{sWq}, s6
    s_mov_b32 s{sWq+1}, s7
    """)
    R = 40
    for cb in range(8):
        A(f"buffer_load_dwordx4 {v(R+4*cb,4)}, v5, {s(sX,4)}, s{sT0} offen offset:{cb*128}")
    SRDS = f"""
    s_mov_b32 s{sWS}, s38
    s_mov_b32 s{sWS+1}, s39
    s_mov_b32 s{sWS+2}, {WS_USED}
    s_mov_b32 s{sWS+3}, 0x00020000
    s_mov_b32 s{sDbg+2}, 256
    s_mov_b32 s{sDbg+3}, 0x00020000
    s_bitcmp1_b32 s{sWave}, 1
    s_cselect_b32 s{sWgu}, s18, s16
    s_cselect_b32 s{sWgu+1}, s19, s17
    s_mov_b32 s{sWgu+2}, {D*F*2}
    s_mov_b32 s{sWgu+3}, 0x00020000
    v_lshlrev_b32 v{vT2}, 1, v{vT0}
    v_and_b32 v{vT2}, 4, v{vT2}
    v_xor_b32 v{vT2}, v{vT2}, v{vT1}
    v_lshlrev_b32 v{vHF}, 4, v{vT2}
    s_lshl_b32 s{sM0}, s{sGW}, 12
    s_add_u32 s{sM0}, s{sM0}, {RB0}
    s_mul_i32 s{sBlk}, s{sCG}, 3
    s_add_u32 s{sT1}, s{sCG}, 1
    s_lshr_b32 s{sT1}, s{sT1}, 2
    s_sub_u32 s{sBlk}, s{sBlk}, s{sT1}
    """
    A(SRDS)
    A(f"s_cmp_lt_u32 s{sWave}, 4\ns_cbranch_scc1 L_pre_a")
    BASE = [0, 3, 6, 8, 11, 14, 17, 19]
    DSEQ = [BASE[j] for j in range(8) if j % 4 != 3] + [BASE[j] + 1 for j in range(8)] + [BASE[j] + 2 for j in range(8)]
    CSTART = {0: 0, 6: 1, 14: 2}
    CMASK = [0x0fff0fff, 0xffffffff, 0xffffffff]
    def dma_pieces(kind, idx, slot):
        if kind == "q":
            panel = (1, 2, 0)[idx // 4]; o = (idx % 4) * 128 * 3072 + panel * 1024
            srd, so, v0_, v1_, o2 = sWq, sQoff, vDq0, vDq1, o + 16 * 3072
        elif kind == "g":
            o = (idx % 8) * 64 * 2752 + (idx // 8) * 128
            srd, so, v0_, v1_, o2 = sWgu, sGoff, vDg0, vDg1, o + 16 * 2752
        elif kind == "d":
            o = DSEQ[2 * idx] * 64 * 1024; o2 = DSEQ[2 * idx + 1] * 64 * 1024
            srd, so, v0_, v1_ = sWd, sDoff, vDd0, vDd1
        else:
            o = idx * 32 * 1024; o2 = o + 16 * 1024
            srd, so, v0_, v1_ = sWo, sOoffW, vDd0, vDd1
        tag = ("dma", kind, idx)
        def p0():
            A(f"s_add_u32 m0, s{sM0}, {slot*SLOT}\ns_add_u32 s{sD0}, s{so}, {o}")
            A(f"buffer_load_dwordx4 v{v0_}, {s(srd,4)}, s{sD0} offen lds"); vmq.push(tag)
        def p1():
            if lowprio[0]: A(f"s_add_u32 m0, s{sM0}, {slot*SLOT}\ns_nop 0")
            A(f"buffer_load_dwordx4 v{v1_}, {s(srd,4)}, s{sD0} offen offset:1024 lds"); vmq.push(tag)
        def p2():
            if lowprio[0]: A(f"s_add_u32 m0, s{sM0}, {slot*SLOT}")
            A(f"s_add_u32 s{sD0}, s{so}, {o2 - 2048}")
            A(f"buffer_load_dwordx4 v{v0_}, {s(srd,4)}, s{sD0} offen offset:2048 lds"); vmq.push(tag)
        def p3():
            if lowprio[0]: A(f"s_add_u32 m0, s{sM0}, {slot*SLOT}\ns_nop 0")
            A(f"buffer_load_dwordx4 v{v1_}, {s(srd,4)}, s{sD0} offen offset:3072 lds"); vmq.push(tag)
        if opt.get("xnodma") and not (kind == "q" and idx < 5): return []
        if opt.get("xhalfdma") and not (kind == "q" and idx < 5): return [p0, p1]
        return [p0, p1, p2, p3]
    def dma(kind, idx, slot):
        cap = opt.get("ldcap", 40)
        for p in dma_pieces(kind, idx, slot):
            if len(vmq.q) > cap:
                A(f"s_waitcnt vmcnt({cap})"); vmq.waited(cap)
            p()
    def ddq(g): return ("q", g, g % 8) if g < 12 else ("g", g - 12, g % 8)
    GUADDR = f"""
    v_mul_u32_u24 v{vDg0}, 2752, v{vT0}
    v_add_u32 v{vDg0}, v{vDg0}, v{vHF}
    v_add_u32 v{vDg1}, {8*2752-1024}, v{vDg0}
    s_mul_i32 s{sGoff}, s{sMI}, {32*2752}
    s_lshl_b32 s{sT0}, s{sBlk}, 7
    s_add_u32 s{sGoff}, s{sGoff}, s{sT0}
    """
    A(f"""
    v_bfe_u32 v{vP}, v{vL}, 2, 2
    v_mul_u32_u24 v{vP}, 3072, v{vP}
    v_lshl_add_u32 v{vP}, v{vFl}, 7, v{vP}
    v_lshrrev_b32 v{vKo}, 4, v{vL}
    v_lshl_add_u32 v{vP}, v{vKo}, 10, v{vP}
    s_lshr_b32 s{sT1}, s2, 3
    s_mul_i32 s{sT1}, s{sT1}, {16*3072}
    s_mul_i32 s{sT0}, s{sGW}, {4*3072}
    s_add_u32 s{sT1}, s{sT1}, s{sT0}
    s_and_b32 s{sT0}, s2, 1
    s_lshl_b32 s{sT0}, s{sT0}, 9
    s_add_u32 s{sT1}, s{sT1}, s{sT0}
    s_lshr_b32 s{sNI}, s{sGW}, 1
    v_bfe_u32 v{vT2}, v{vL}, 2, 2
    v_lshlrev_b32 v{vTRp0}, 7, v{vT2}
    v_bfe_u32 v{vKo}, v{vL}, 4, 1
    v_lshl_add_u32 v{vTRp0}, v{vKo}, 5, v{vTRp0}
    v_lshl_add_u32 v{vTRp0}, v{vFl}, 3, v{vTRp0}
    v_lshrrev_b32 v{vH1}, 1, v{vT2}             ; r>>1
    v_lshrrev_b32 v{vO1}, 5, v{vL}              ; half
    v_xor_b32 v{vFl}, s{sNI}, v{vH1}
    v_lshl_add_u32 v{vTRn}, v{vFl}, 6, v{vTRp0}
    v_lshl_add_u32 v{vTRn}, v{vO1}, 10, v{vTRn}
    v_add_u32 v{vTRn}, {RB0}, v{vTRn}
    v_add_u32 v{vTRnH}, 65536, v{vTRn}
    v_and_b32 v{vRW}, 31, v{vL}
    v_mul_u32_u24 v{vXR}, {PIECE}, v{vO1}
    v_lshl_add_u32 v{vXR}, v{vRW}, 4, v{vXR}
    s_mul_i32 s{sT0}, s{sMI}, {64*PIECE}
    s_add_u32 s{sT0}, s{sT0}, {XT}
    v_add_u32 v{vXR}, s{sT0}, v{vXR}
    s_mov_b64 exec, {'0xffffffff' if opt.get('p1kv', 1) else '0xffff'}
    buffer_load_dword v143, v{vP}, {s(sWq,4)}, s{sT1} offen offset:1024
    s_mov_b64 exec, -1
    s_mov_b32 s3, 1
    s_setprio 1
    s_waitcnt vmcnt(1)
    s_branch L_ln
    """)
    GLATE = [x.strip() for x in (GUADDR + f"""
    s_mov_b32 s{sOut}, s22
    s_mov_b32 s{sOut+1}, s23
    s_mov_b32 s{sOut+2}, {S*D*2}
    s_mov_b32 s{sOut+3}, 0x00020000
    s_mov_b32 s{sWd+2}, {F*D*2}
    s_mov_b32 s{sWd+3}, 0x00020000
    s_mov_b32 s{sWo+2}, {D*D*2}
    s_mov_b32 s{sWo+3}, 0x00020000
    v_lshl_add_u32 v{vDd0}, v{vT0}, 10, v{vHF}
    v_add_u32 v{vDd1}, {8*1024-1024}, v{vDd0}
    s_lshl_b32 s{sT2}, s{sCG}, 7
    s_lshl_b32 s{sDoff}, s{sGW}, 14
    s_add_u32 s{sDoff}, s{sDoff}, s{sT2}
    s_lshl_b32 s{sOoffW}, s{sGW}, 17
    s_add_u32 s{sOoffW}, s{sOoffW}, s{sT2}
    s_lshl_b32 s{sXo}, s{sRB}, 16
    s_add_u32 s{sXo}, s{sXo}, s{sT2}
    s_and_b32 s{sNb}, s{sCG}, 3
    v_lshl_add_u32 v{vTRp0}, v{vH1}, 6, v{vTRp0}
    v_lshl_add_u32 v{vTRp0}, v{vO1}, 9, v{vTRp0}
    v_add_u32 v{vTRp0}, s{sM0}, v{vTRp0}
    s_lshl_b32 s{sT0}, s{sNI}, 6
    v_xor_b32 v{vTRp0}, s{sT0}, v{vTRp0}
    v_xor_b32 v{vTRp1}, 64, v{vTRp0}
    v_add_u32 v{vTRp0H}, 65536, v{vTRp0}
    v_add_u32 v{vTRp1H}, 65536, v{vTRp1}
    v_lshlrev_b32 v{vL128}, 7, v{vL}
    v_lshlrev_b32 v{vVo}, 16, v{vKo}
    v_lshl_add_u32 v{vVo}, v{vO1}, 8, v{vVo}
    v_and_b32 v{vT2}, 15, v{vL}
    v_lshl_add_u32 v{vVo}, v{vT2}, 4, v{vVo}
    v_add_u32 v{vVo}, {VF}, v{vVo}
    v_lshlrev_b32 v{vXo}, 10, v{vRW}
    v_lshl_add_u32 v{vXo}, v{vO1}, 3, v{vXo}
    v_lshl_add_u32 v{vRR}, v{vO1}, 3, v{vXo}
    s_lshl_b32 s{sT0}, s{sGW}, 12
    v_add_u32 v{vRW}, s{sT0}, v{vL16}
    s_and_b32 s{sKVs}, s2, 7
    s_lshl_b32 s{sKVs}, s{sKVs}, 2
    s_bfe_u32 s{sT0}, s2, 0x20003
    s_add_u32 s{sKVs}, s{sKVs}, s{sT0}
    s_lshl_b32 s{sKVs}, s{sKVs}, 16
    s_lshl_b32 s{sT0}, s{sNI}, 15
    s_add_u32 s{sKVs}, s{sKVs}, s{sT0}
    s_lshl_b32 s{sT0}, s{sMI}, 21
    s_add_u32 s{sKVs}, s{sKVs}, s{sT0}
    s_add_u32 s{sKVs}, s{sKVs}, {KF}
    s_mul_i32 s{sKVm}, s{sGW}, {RKV*1024}
    s_lshl_b32 s{sT0}, s{sMI}, 15
    s_add_u32 s{sXo}, s{sXo}, s{sT0}
    s_lshl_b32 s{sT0}, s{sNI}, 6
    s_add_u32 s{sXo}, s{sXo}, s{sT0}
    v_and_b32 v{vKo}, 0x33, v{vL}
    v_lshrrev_b32 v{vT2}, 1, v{vL}
    v_and_b32 v{vT2}, 4, v{vT2}
    v_lshlrev_b32 v{vO1}, 1, v{vL}
    v_and_b32 v{vO1}, 8, v{vO1}
    v_or3_b32 v{vKo}, v{vKo}, v{vT2}, v{vO1}
    v_lshlrev_b32 v{vKo}, 4, v{vKo}
    v_add_u32 v{vKo}, {KF}, v{vKo}
    s_mul_i32 s{sT0}, s{sMI}, {86*1024}
    v_add_u32 v{vH0}, s{sT0}, v{vL16}
    s_sub_u32 s{sT0}, {86*1024}, s{sT0}
    v_add_u32 v{vH1}, s{sT0}, v{vL16}
    s_lshl_b32 s{sT0}, s{sMI}, 15
    v_add_u32 v{vO0}, s{sT0}, v{vL16}
    v_xor_b32 v{vO1}, 32768, v{vO0}
    v_lshlrev_b32 v{vXR}, 10, v{vL}
    v_mov_b32 v{vT2}, 0
    v_mov_b32 v{vT0}, {hex(f2u(C1))}
    v_mov_b32 v{vT1}, {hex(f2u(C1))}
    s_lshl_b32 s{sT2}, s{sRB}, 1
    s_add_u32 s{sT2}, s{sT2}, s{sMI}
    s_mul_i32 s{sHst}, s{sT2}, {86*1024}
    s_lshl_b32 s{sT1}, s{sCG}, 1
    s_add_u32 s{sT1}, s{sT1}, s{sNI}
    s_lshl_b32 s{sFlag}, s{sT1}, 13
    s_lshl_b32 s{sT0}, s{sT2}, 7
    s_add_u32 s{sFlag}, s{sFlag}, s{sT0}
    s_add_u32 s{sFlag}, s{sFlag}, {FQ}
    s_lshl_b32 s{sT1}, s{sT1}, 17
    s_lshl_b32 s{sT2}, s{sT2}, 10
    s_add_u32 s{sSt}, s{sT1}, s{sT2}
    s_lshl_b32 s{sT0}, s{sBlk}, 12
    s_lshl_b32 s{sT1}, s{sNI}, 11
    s_add_u32 s{sHst}, s{sHst}, s{sT0}
    s_add_u32 s{sHst}, s{sHst}, s{sT1}
    s_add_u32 s{sHst}, s{sHst}, {HF}
    s_lshl_b32 s{sHld}, s{sRB}, 14
    s_add_u32 s{sHld}, s{sHld}, {FH}
    s_lshl_b32 s{sT0}, s{sCG}, 9
    s_lshl_b32 s{sT1}, s{sGW}, 7
    s_add_u32 s{sHfl}, s{sT0}, s{sT1}
    s_add_u32 s{sHfl}, s{sHfl}, s{sHld}
    s_mul_i32 s{sHb}, s{sRB}, {2*86*1024}
    s_lshl_b32 s{sT0}, s{sGW}, 10
    s_add_u32 s{sHb}, s{sHb}, s{sT0}
    s_add_u32 s{sHb}, s{sHb}, {HF}
    s_mov_b32 s{sC}, {hex(f2u(QSCALE))}
    s_mov_b32 s{sC+1}, {hex(f2u(QSCALE))}
    """).split("\n") if x.strip()]
    vK, vV, vIdx, vAF, vPF, vF = 10, 11, 12, 13, 14, 15
    M, C, SB = 6, 16, 80
    aOnes, aPF, aP3, aPKV, aL128, aGo = 24, 25, 26, 27, 28, 29
    O, Q, KS = 0, 64, 104
    KRG = [("a", 80), ("a", 92)]
    VRG = [("a", 84), ("a", 96)]
    def rg(x, off=0, n=4): return (a if x[0] == "a" else v)(x[1] + off, n)
    def zero_o(n=64):
        for i in range(n): A(f"v_accvgpr_write_b32 a{O+i}, 0")
    A.label("L_pre_a")
    if opt.get("pretouch"):
        A(f"""
        s_mov_b32 s{sOut}, s22
        s_mov_b32 s{sOut+1}, s23
        s_mov_b32 s{sOut+2}, {S*D*2}
        s_mov_b32 s{sOut+3}, 0x00020000
        s_mov_b32 s{sWd+2}, {F*D*2}
        s_mov_b32 s{sWd+3}, 0x00020000
        s_mov_b32 s{sWo+2}, {D*D*2}
        s_mov_b32 s{sWo+3}, 0x00020000
        v_lshlrev_b32 v{vF}, 21, v{vL}
        s_lshl_b32 s{sT0}, s2, 7
        s_cmp_lg_u32 s{sMI}, 0
        s_cbranch_scc1 L_pt1
        s_mov_b64 exec, 0x1fff
        buffer_load_dword v143, v{vF}, {ws}, s{sT0} offen sc1
        s_mov_b64 exec, 1
        buffer_load_dword v143, v{vF}, {s(sWgu,4)}, s{sT0} offen
        s_branch L_pt2
        L_pt1:
        s_mov_b64 exec, 1
        buffer_load_dword v143, v{vF}, {s(sOut,4)}, s{sT0} offen sc1
        buffer_load_dword v143, v{vF}, {s(sWd,4)}, s{sT0} offen
        buffer_load_dword v143, v{vF}, {s(sWo,4)}, s{sT0} offen
        L_pt2:
        s_mov_b64 exec, -1
        """)
    A(f"""
    v_mov_b32 v{vF}, 0
    ds_write_b32 v{vCnt}, v{vF}
    ds_write_b32 v{vCnt}, v{vF} offset:512
    ds_write_b32 v{vCnt}, v{vF} offset:1024
    v_add_u32 v{vCnt}, 1024, v{vCnt}
    v_lshlrev_b32 v{aGo}, 2, v{vL}
    s_lshl_b32 s{sT0}, s{sWave}, 9
    s_add_u32 s{sT0}, s{sT0}, {AFL}
    v_add_u32 v{vAF}, s{sT0}, v{aGo}
    s_xor_b32 s{sT0}, s{sWave}, 2
    s_lshl_b32 s{sT0}, s{sT0}, 9
    s_add_u32 s{sT0}, s{sT0}, {AFL}
    v_add_u32 v{vPF}, s{sT0}, v{aGo}
    v_add_u32 v{aGo}, {GO}, v{aGo}
    ds_write_b32 v{vAF}, v{vF}
    ds_write_b32 v{vAF}, v{vF} offset:256
    ds_write_b32 v{aGo}, v{vF}
    v_mul_u32_u24 v{vDq0}, 3072, v{vT0}
    v_add_u32 v{vDq0}, v{vDq0}, v{vHF}
    v_add_u32 v{vDq1}, {8*3072-1024}, v{vDq0}
    s_mul_i32 s{sQoff}, s{sGW}, {32*3072}
    s_lshl_b32 s{sT2}, s{sCG}, 7
    s_add_u32 s{sQoff}, s{sQoff}, s{sT2}
    v_bfe_u32 v{aP3}, v{vL}, 2, 2
    v_mul_u32_u24 v{aP3}, 3072, v{aP3}
    v_lshl_add_u32 v{aP3}, v{vFl}, 7, v{aP3}
    v_bfe_u32 v{aPF}, v{vL}, 4, 1
    v_xor_b32 v{aPF}, 1, v{aPF}
    v_lshl_add_u32 v{aP3}, v{aPF}, 11, v{aP3}
    s_lshr_b32 s7, s2, 3
    s_lshl_b32 s7, s7, 2
    s_add_u32 s7, s7, s{sWave}
    s_mul_i32 s7, s7, {4*3072}
    s_and_b32 s{sT0}, s2, 1
    s_lshl_b32 s{sT0}, s{sT0}, 9
    s_add_u32 s7, s7, s{sT0}
    s_and_b32 s{sT0}, s{sCG}, 3
    s_cmp_eq_u32 s{sT0}, 3
    s_addc_u32 s{sBlk}, s{sBlk}, 0
    v_lshrrev_b32 v30, 1, v{vL}
    v_mul_u32_u24 v30, 2752, v30
    v_and_b32 v31, 1, v{vL}
    v_mul_u32_u24 v31, 124, v31
    v_add_u32 v30, v30, v31
    s_and_b32 s68, s{sRB}, 7
    s_lshl_b32 s68, s68, 1
    s_add_u32 s68, s68, s{sMI}
    s_mul_i32 s68, s68, {16*2752}
    s_lshl_b32 s{sT0}, s{sBlk}, 7
    s_add_u32 s68, s68, s{sT0}
    s_or_b32 s{sT1}, s2, s{sWave}
    s_cmp_lg_u32 s{sT1}, 0
    s_cbranch_scc1 L_pre_a2
    s_memrealtime s[4:5]
    s_waitcnt lgkmcnt(0)
    s_or_b32 s4, s4, 1
    v_mov_b32 v{vIdx}, s4
    buffer_store_dword v{vIdx}, v{vF}, {s(sDbg,4)}, 0 offen sc1
    """)
    A.label("L_pre_a2")
    if opt.get("pall"):
        A(f"""
        s_mov_b32 s{sWd+2}, {F*D*2}
        s_mov_b32 s{sWd+3}, 0x00020000
        s_mov_b32 s{sWo+2}, {D*D*2}
        s_mov_b32 s{sWo+3}, 0x00020000
        v_mul_u32_u24 v141, 2752, v{vL}
        s_and_b32 s{sT0}, s{sRB}, 7
        s_mul_i32 s{sT0}, s{sT0}, {64*2752}
        s_mul_i32 s{sT1}, s{sCG}, 384
        s_add_u32 s{sT0}, s{sT0}, s{sT1}
        s_mul_i32 s{sT1}, s{sMI}, 124
        s_add_u32 s{sT1}, s{sT0}, s{sT1}
        buffer_load_dword v143, v141, {s(sWgu,4)}, s{sT1} offen
        s_lshl_b32 s{sT1}, s{sMI}, 7
        s_add_u32 s{sT1}, s{sT0}, s{sT1}
        buffer_load_dword v143, v141, {s(sWgu,4)}, s{sT1} offen offset:252
        v_lshlrev_b32 v142, 10, v{vL}
        s_and_b32 s{sT0}, s{sRB}, 7
        s_lshl_b32 s{sT1}, s{sCG}, 7
        s_mul_i32 s{sT2}, s{sT0}, {172*1024}
        s_add_u32 s{sT2}, s{sT2}, s{sT1}
        s_lshl_b32 s4, s{sGW}, 16
        s_add_u32 s{sT2}, s{sT2}, s4
        buffer_load_dword v143, v142, {s(sWd,4)}, s{sT2} offen
        s_lshl_b32 s{sT0}, s{sT0}, 16
        s_add_u32 s{sT0}, s{sT0}, s{sT1}
        buffer_load_dword v143, v142, {s(sWo,4)}, s{sT0} offen
        s_waitcnt vmcnt(0)
        s_sleep 40
        """)
    A("s_mov_b32 s3, 0\ns_waitcnt vmcnt(%d)" % (2 if opt.get("pretouch") else 0))
    NEARLY = opt.get("nearly", 2)
    for g in range(NEARLY): dma(*ddq(g))
    if NEARLY > opt.get("p1at", 3):
        A(f"s_mov_b64 exec, {'0xffff0000' if opt.get('p1kv', 1) else '0xffffffff'}\nbuffer_load_dword v143, v{aP3}, {s(sWq,4)}, s7 offen")
        if opt.get("p2early", 1): A(f"s_mov_b64 exec, {PF2MASK}\nbuffer_load_dword v143, v30, {s(sWgu,4)}, s68 offen")
        A("s_mov_b64 exec, -1")
    vmq.clear()
    A.label("L_ln")
    ST()
    SA, TT, vXW = 104, 80, 112
    A(f"""
    s_mov_b32 s4, 0x3f803f80
    s_mov_b32 s5, 0x00003f80
    s_mov_b32 s6, 0x3f800000
    """)
    for i in range(32):
        a1 = SA + (i & 1); a2 = SA + 2 + (i & 1)
        A(f"v_dot2_f32_bf16 v{a1}, v{R+i}, s4, {'0' if i < 2 else 'v%d' % a1}")
        A(f"v_dot2_f32_bf16 v{a2}, v{R+i}, v{R+i}, {'0' if i < 2 else 'v%d' % a2}")
    m_, q_, mb_, rs_ = SA, SA + 2, SA + 4, SA + 6
    A(f"""
    s_lshr_b32 s{sT0}, s{sWave}, 2
    s_mul_i32 s{sT0}, s{sT0}, {64*PIECE}
    s_lshl_b32 s{sT1}, s{sGW}, 7
    v_add_f32 v{m_}, v{m_}, v{m_+1}
    v_add_f32 v{q_}, v{q_}, v{q_+1}
    s_add_u32 s{sT0}, s{sT0}, s{sT1}
    v_add_f32_dpp v{m_}, v{m_}, v{m_} quad_perm:[1,0,3,2] row_mask:0xf bank_mask:0xf
    v_add_f32_dpp v{q_}, v{q_}, v{q_} quad_perm:[1,0,3,2] row_mask:0xf bank_mask:0xf
    s_add_u32 s{sT0}, s{sT0}, {XT}
    v_add_f32_dpp v{m_}, v{m_}, v{m_} quad_perm:[2,3,0,1] row_mask:0xf bank_mask:0xf
    v_add_f32_dpp v{q_}, v{q_}, v{q_} quad_perm:[2,3,0,1] row_mask:0xf bank_mask:0xf
    v_mul_u32_u24 v{vXW}, {PIECE}, v{vT1}
    v_add_f32_dpp v{m_}, v{m_}, v{m_} row_half_mirror row_mask:0xf bank_mask:0xf
    v_add_f32_dpp v{q_}, v{q_}, v{q_} row_half_mirror row_mask:0xf bank_mask:0xf
    v_mul_f32 v{m_}, {hex(f2u(1.0/512))}, v{m_}
    v_mul_f32 v{q_}, {hex(f2u(1.0/512))}, v{q_}
    v_cvt_pk_bf16_f32 v{mb_}, v{m_}, v{m_}
    v_fma_f32 v{q_}, -v{m_}, v{m_}, v{q_}
    v_and_b32 v{mb_}, 0xffff0000, v{mb_}
    v_max_f32 v{q_}, 0, v{q_}
    v_xor_b32 v{mb_}, 0x80000000, v{mb_}
    v_cvt_pk_bf16_f32 v{q_}, v{q_}, v{q_}
    v_and_b32 v{q_}, 0xffff0000, v{q_}
    v_add_f32 v{q_}, {hex(f2u(1e-5))}, v{q_}
    v_cvt_pk_bf16_f32 v{q_}, v{q_}, v{q_}
    v_and_b32 v{q_}, 0xffff0000, v{q_}
    v_sqrt_f32 v{q_}, v{q_}
    v_lshl_add_u32 v{vXW}, v{vT0}, 4, v{vXW}
    v_cvt_pk_bf16_f32 v{q_}, v{q_}, v{q_}
    v_and_b32 v{q_}, 0xffff0000, v{q_}
    v_rcp_f32 v{rs_}, v{q_}
    v_rcp_f32 v{rs_+1}, v{q_}
    v_add_u32 v{vXW}, s{sT0}, v{vXW}
    """)
    for cb in range(8):
        t = TT + 8 * (cb & 1); r = R + 4 * cb
        for e in range(4):
            A(f"v_dot2_f32_bf16 v{t+2*e}, v{r+e}, s5, v{mb_}")
            A(f"v_dot2_f32_bf16 v{t+2*e+1}, v{r+e}, s6, v{mb_}")
        if cb > 0: A(f"ds_write_b128 v{vXW}, {v(R+4*(cb-1),4)} offset:{(cb-1)*8*PIECE}")
        else: A("s_nop 0")
        for e in range(4): A(f"v_pk_mul_f32 {v(t+2*e,2)}, {v(t+2*e,2)}, {v(rs_,2)}")
        for e in range(4): A(f"v_cvt_pk_bf16_f32 v{r+e}, v{t+2*e}, v{t+2*e+1}")
    A(f"ds_write_b128 v{vXW}, {v(R+28,4)} offset:{7*8*PIECE}")
    A("s_cmp_eq_u32 s3, 0\ns_cbranch_scc1 L_attn")

    def get_tag(vt, vz, lbl):
        A(f"v_mov_b32 v{vz}, 0")
        A.label(lbl)
        A(f"""
        buffer_load_dword v{vt}, v{vz}, {s(sDbg,4)}, 0 offen sc1
        s_waitcnt vmcnt(0)
        v_readfirstlane_b32 s{sTag}, v{vt}
        """)
        timeout_exit(lbl + "_x")
        A(f"s_cmp_eq_u32 s{sTag}, 0\ns_cbranch_scc1 {lbl}")
        A.label(lbl + "_x")
    def spin_flags(lbl, vf, voff, soff, nlanes, sleep=4):
        A.label(lbl)
        A(f"""
        s_mov_b64 exec, {emask(nlanes)}
        buffer_load_dword v{vf}, v{voff}, {ws}, s{soff} offen sc1
        s_waitcnt vmcnt(0)
        v_cmp_ne_u32 vcc, s{sTag}, v{vf}
        s_mov_b64 exec, -1
        s_cbranch_vccz {lbl}_x
        """)
        timeout_exit(lbl + "_x")
        A(f"s_sleep {sleep}\ns_branch {lbl}")
        A.label(lbl + "_x")
    def lds_spin(lbl, vdst, vaddr, off, cmp, sleep=0):
        A.label(lbl)
        A(f"ds_read_b32 v{vdst}, v{vaddr} offset:{off}\ns_waitcnt lgkmcnt(0)\n{cmp}\ns_cbranch_vccz {lbl}_x")
        timeout_exit(lbl + "_x")
        if sleep: A(f"s_sleep {sleep}")
        A(f"s_branch {lbl}")
        A.label(lbl + "_x")

    def xn(ks): return a(4 * ks, 4) if ks < 28 else v(96 + 4 * (ks - 28), 4)
    def xread(ks): lds(f"ds_read_b128 {xn(ks)}, v{vXR} offset:{2*ks*PIECE}", "xn")
    def check(fresh, off=0, need=None, sleep=1, reg=None, tag="poll"):
        l = lab("chk"); nd = f"s{sNeed}" if need is None else str(need)
        vP = reg if reg is not None else 20
        cmp = f"v_cmp_gt_u32 vcc, {nd}, v{vP}"
        if lowprio[0]: cmp = f"s_setprio 3\n{cmp}\ns_setprio 0"
        if fresh:
            lds(f"ds_read_b32 v{vP}, v{vCntR} offset:{off}", tag)
        lwait(tag)
        A(f"{cmp}\ns_cbranch_vccnz {l}")
        A.label(l + "_x")
        def sp():
            A.label(l)
            A(f"ds_read_b32 v{vP}, v{vCntR} offset:{off}\ns_waitcnt lgkmcnt(0)\n{cmp}\ns_cbranch_vccz {l}_x")
            timeout_exit(l + "_x")
            if lp or sleep > 1: A(f"s_sleep {sleep}")
            A(f"s_branch {l}")
        lp = lowprio[0]
        slow.append(sp)
        if need is None: A(f"s_add_u32 s{sNeed}, s{sNeed}, 1")
    def segment(stages, hooks=None, LA=opt.get('la', 5)):
        hooks = hooks or {}
        NB = len(WFB); assert NB >= LA + 1
        flat = [(si, fi, fr) for si, st in enumerate(stages) for fi, fr in enumerate(st["frags"])]
        sq = []
        for i in range(len(flat) + LA):
            if i < len(flat):
                si, fi, fr = flat[i]; st = stages[si]; nfr = len(st["frags"])
                if fi == 0:
                    assert not sq
                    if "label" in st: A.label(st["label"])
                    if opt.get("atrace") and lowprio[0]:
                        A(f"s_waitcnt lgkmcnt(0)\ns_mov_b32 s99, m0\ns_mov_b32 m0, s0\ns_add_u32 s0, s0, 1\ns_setprio 3\nv_writelane_b32 v31, s100, m0\ns_setprio {0 if lowprio[0] else 1}\ns_memrealtime s[100:101]\ns_mov_b32 m0, s99"); lq.clear()
                    if st["sync"]: check(si == 0, *st.get("chk", ()))
                    if "pre" in st: st["pre"]()
                    sq += st["pieces"]
                lo, hi, o0, o1, _ = fr
                base = st["slot"] * SLOT; reg = lo
                if base >= 65536: base -= 65536; reg = hi
                w = WFB[i % NB]
                lds(f"ds_read_b64_tr_b16 {v(w,2)}, v{reg} offset:{base+o0}", ("fr", i))
                lds(f"ds_read_b64_tr_b16 {v(w+2,2)}, v{reg} offset:{base+o1}", ("fr", i))
                if fi == st.get("waitat", st.get("pubat", 2)) and st["nxt"] is not None: vwait(st["nxt"])
                if fi == st.get("pubat", 2) and st["pub"]: lds(f"ds_add_u32 v{vCnt}, v{vOne}", "add")
                if len(sq) * 2 > (nfr - fi) or fi % 2 == 0:
                    k = -(-len(sq) // (nfr - fi))
                    for _ in range(k): sq.pop(0)()
                if fi == nfr - 2 and si + 1 < len(stages) and stages[si + 1]["sync"]:
                    lds(f"ds_read_b32 v{vP}, v{vCntR} offset:{stages[si + 1].get('chk', (0,))[0]}", "poll")
                if (si, fi) in hooks: hooks[(si, fi)]()
            j = i - LA
            if j >= 0:
                if opt.get("pairw", 1) and j % 2 == 0 and lq.need(("fr", j + 1)) is not None and len(flat[j][2][4]) == 1: lwait(("fr", j + 1))
                lwait(("fr", j))
                for m in flat[j][2][4]:
                    if callable(m): m()
                    elif opt.get("xnogm") and lowprio[0]: A("s_nop 7")
                    else: A(m.format(w=v(WFB[j % NB], 4)))
    if F0: ST()
    A("s_waitcnt lgkmcnt(0)\ns_barrier")
    ST()
    if opt.get("atrace"): A(f"s_mov_b32 s0, 0\ns_memrealtime s[100:101]")
    for ks in range(8): xread(ks)
    def qkv_epi(p):
        acc = (ACC0, ACC1, ACC0)[p]; pk = TMP + 8 * p
        def f():
            if p == 2:
                for i in range(8): A(f"v_pk_mul_f32 {v(acc+2*i,2)}, {v(acc+2*i,2)}, {s(sC,2)}")
            for i in range(8): A(f"v_cvt_pk_bf16_f32 v{pk+i}, v{acc+2*i}, v{acc+2*i+1}")
            if p == 1:
                A(f"buffer_store_dwordx4 {v(pk,4)}, v{vVo}, {ws}, s{sSt} offen sc1")
                A(f"buffer_store_dwordx4 {v(pk+4,4)}, v{vVo}, {ws}, s{sSt} offen offset:512 sc1")
            else:
                vo = vKo if p == 0 else vL16
                A(f"s_add_u32 s{sT0}, s{sSt}, 65536")
                A(f"buffer_store_dwordx4 {v(pk,4)}, v{vo}, {ws}, s{sSt} offen sc1")
                A(f"buffer_store_dwordx4 {v(pk+4,4)}, v{vo}, {ws}, s{sT0} offen sc1")
            vmq.push("st", 2)
        return f
    stages = []
    for q in range(12):
        p, part = divmod(q, 4); acc = v((ACC0, ACC1, ACC0)[p], 16)
        frags = []
        for kk in range(8):
            ks = part * 8 + kk; c = "0" if ks == 0 else acc
            m = f"{MF} {acc}, {xn(ks)}, {{w}}, {c}" if p == 1 else f"{MF} {acc}, {{w}}, {xn(ks)}, {c}"
            frags.append((vTRn, vTRnH, kk * 2048, kk * 2048 + 512, [m]))
        stages.append(dict(slot=q % 8, frags=frags, pieces=[], nxt=None, sync=True, pub=(q >= 1), pubat=0, chk=(1024, q + 1)))
    hooks = {(0, fi): (lambda fi=fi: [xread(8 + 3 * fi + e) for e in range(3)]) for fi in range(8)}
    def epi_items(p):
        acc = (ACC0, ACC1)[p]; pk = TMP + 8 * p
        L = [f"v_cvt_pk_bf16_f32 v{pk+i}, v{acc+2*i}, v{acc+2*i+1}" for i in range(8)]
        if p == 1:
            L += [f"buffer_store_dwordx4 {v(pk,4)}, v{vVo}, {ws}, s{sSt} offen sc1", f"buffer_store_dwordx4 {v(pk+4,4)}, v{vVo}, {ws}, s{sSt} offen offset:512 sc1"]
        else:
            L += [f"buffer_store_dwordx4 {v(pk,4)}, v{vKo}, {ws}, s{sSt} offen sc1", f"buffer_store_dwordx4 {v(pk+4,4)}, v{vKo}, {ws}, s{sD1} offen sc1",
                  f"buffer_load_dword v{vFl}, v{vT2}, {s(sDbg,4)}, 0 offen sc1"]
        return L
    GLATE.append(f"s_add_u32 s{sD1}, s{sSt}, 65536")
    n1 = len(GLATE)
    slots1 = [(q, fi) for q in range(1, 7) for fi in range(8) if (q, fi) not in ((1, 0), (4, 0), (5, 0), (6, 0))]
    plan = {}
    for k, it in enumerate(GLATE): plan.setdefault(slots1[k * len(slots1) // n1], []).append(it)
    for p, q0 in ((0, 7), (1, 9)):
        sl = [(q, fi) for q in (q0, q0 + 1) for fi in range(1, 8)][(0 if p == 0 else 2):]
        its = epi_items(p)
        sl = [x_ for x_ in sl for _ in range(2)] if p == 0 else sl
        for k, it in enumerate(its): plan.setdefault(sl[k], []).append(it)
    if opt.get("xnofill"):
        for x in GLATE:
            if "v31," not in x: A(x.replace("|", "\n"))
        plan = {k_: [i_ for i_ in its if i_ not in GLATE] for k_, its in plan.items()}
    for k_, its in plan.items():
        hooks[k_] = (lambda its=its: [A(x.replace("|", "\n")) for x in its])
    GLATE = []
    if stamps:
        for q in ((1, 4, 5, 6, 7, 8, 9, 10, 11) if FR else (1, 4, 8)): hooks[(q, 0)] = ST
    segment(stages, hooks)
    assert not GLATE
    A(f"s_waitcnt vmcnt(2)\nv_readfirstlane_b32 s{sTag}, v{vFl}\ns_nop 9")
    qkv_epi(2)()
    ST()
    A(f"s_cmp_lg_u32 s{sTag}, 0\ns_cbranch_scc1 L_gtag_x")
    get_tag(vFl, vT2, "L_gtag")
    A(f"""
    s_mov_b32 s{sC}, {hex(f2u(C2))}
    s_mov_b32 s{sC+1}, {hex(f2u(C2))}
    v_mov_b32 v{vFl}, s{sTag}
    s_waitcnt vmcnt(0)
    s_mov_b64 exec, 1
    buffer_store_dword v{vFl}, v{vT2}, {ws}, s{sFlag} offen sc1
    s_mov_b64 exec, -1
    """)
    ST()
    if FR: again(); ST.flush(ws, STAMP, sWave, 2, 3, sT0); A("s_endpgm"); ST.on = False
    if opt.get("gexit"): A(f"ds_add_u32 v{vCnt}, v{vOne}\ns_waitcnt lgkmcnt(0)\ns_endpgm")
    LOOK = opt.get("look", 4)
    check(True, 1024, 12 + NG0)
    lds(f"ds_add_u32 v{vCnt}, v{vOne}", "add")
    A(f"s_mov_b32 s{sNeed}, 12\ns_setprio 0")
    lowprio[0] = True
    def gslot(g): return 2 + (g + 2) % 6
    def ffn_dd(g):
        if g < 24: return ("g", g, gslot(g))
        if g < 35: return ("d", g - 24, gslot(g))
        return ("o", g - 35, gslot(g))
    E0 = 8
    vP2 = vVo
    G2 = opt.get("g2", 1)
    def kneed(k):
        if not G2: return k + 8
        step = k - RKV
        return 18 if step == 0 else 19 + step // 2
    def kv_poll(): lds(f"ds_read_b32 v{vP2}, v{vCntR} offset:1024", "poll2")
    def kv_issue(k, fresh=False):
        check(fresh, 1024, kneed(k), sleep=opt.get('ksleep', 4), reg=vP2, tag="poll2")
        A(f"s_add_u32 m0, s{sKVm}, {((k + E0) % RKV) * 1024}\ns_add_u32 s{sT0}, s{sKVs}, {k*1024}")
        A(f"buffer_load_dwordx4 v{vL16}, {ws}, s{sT0} offen sc1 lds"); vmq.push(("kv", k))
    def kv_pub(k):
        vwait(("kv", k))
        for _ in range((3 if G2 else 2) if k == 31 else 1): lds(f"ds_add_u32 v{vCnt}, v{vOne} offset:512", "add")
    S0 = opt.get("s0", 4); KLAG = opt.get("klag", 2)
    A(f"s_cmp_lg_u32 s{sNb}, 3\ns_cbranch_scc1 L_ffn")
    check(True, 1024, 12 + NG0 + 1)
    vmq.clear()
    kvs = [RKV + st - S0 for st in range(S0, 8)]; npub = max(0, 8 - KLAG - S0); done = []
    def light_kv():
        nonlocal npub
        if done and npub: kv_pub(done.pop(0)); npub -= 1
        if kvs: k = kvs.pop(0); kv_issue(k, True); done.append(k)
    if opt.get("pfw", 1):
        P = [0, 128, 384, 512, 768, 896, 256, 640, 1024, 1152, 1280, 1404][:2 * opt.get('npf', 6)]
        PCAP = opt.get("pcap", 1)
        A(f"""
        s_setprio 3
        v_mul_u32_u24 v{TMP}, 2752, v{vL}
        s_setprio 0
        s_and_b32 s4, s{sRB}, 7
        s_mul_i32 s5, s4, {64*2752}
        s_lshr_b32 s6, s{sCG}, 2
        s_mul_i32 s7, s6, 1408
        s_add_u32 s5, s5, s7
        """)
        for i in range(len(P) // 2):
            lo_, hi_ = sorted(P[2*i:2*i+2])
            A(f"s_mul_i32 s{sT0}, s{sMI}, {hi_-lo_}\ns_add_u32 s{sT0}, s{sT0}, s5")
            A(f"buffer_load_dword v143, v{TMP}, {s(sWgu,4)}, s{sT0} offen offset:{lo_}\ns_waitcnt vmcnt({PCAP})")
            vmq.push("pf"); vmq.waited(PCAP)
            if i >= 2: light_kv()
    for g in range(8, 8 + LOOK): dma(*ffn_dd(g))
    while kvs or (done and npub): light_kv()
    A("s_waitcnt vmcnt(0)")
    lds(f"ds_add_u32 v{vCnt}, v{vOne}", "add")
    A(f"s_add_u32 s{sNeed}, s{sNeed}, 1\ns_setprio 3\nv_mov_b32 v{vP}, 0\nv_mov_b32 v{vP2}, 0\ns_setprio 0")
    A("s_branch L_ffn8")
    A.label("L_ffn")
    vmq.clear(); lq.clear()
    T1, U1 = TMP, [88, 90, 92, 94, 128, 130, 132, 134]
    AD1 = [v(40, 16), v(56, 16), v(96, 16), a(96, 16)]
    def gelu1():
        G, U = ACC0, ACC1
        A("s_setprio 3\ns_nop 9")
        for i in range(8): A(f"v_pk_mul_f32 {v(T1+2*i,2)}, {v(G+2*i,2)}, {v(G+2*i,2)}")
        for i in range(8): A(f"v_pk_fma_f32 {v(T1+2*i,2)}, {v(T1+2*i,2)}, {s(sC,2)}, {v(vT0,2)}")
        for i in range(8): A(f"v_pk_mul_f32 {v(U1[i],2)}, {v(U+2*i,2)}, {v(G+2*i,2)}")
        for i in range(8): A(f"v_pk_mul_f32 {v(T1+2*i,2)}, {v(T1+2*i,2)}, {v(G+2*i,2)}")
        A("s_setprio 0")
    def gelu2_groups(b):
        L = [f"v_exp_f32 v{T1+i}, v{T1+i}" for i in range(16)]
        L += [f"v_pk_add_f32 {v(T1+2*i,2)}, {v(T1+2*i,2)}, 1.0 op_sel_hi:[1,0]" for i in range(8)]
        L += [f"v_rcp_f32 v{T1+i}, v{T1+i}" for i in range(16)]
        L += [f"v_pk_mul_f32 {v(U1[i],2)}, {v(U1[i],2)}, {v(T1+2*i,2)}" for i in range(8)]
        L += [f"v_cvt_pk_bf16_f32 v{T1+i}, v{U1[i]}, v{U1[i]+1}" for i in range(8)]
        sizes = [4, 4, 4, 4, 8, 4, 4, 4, 4, 8, 8]
        G_ = []
        for n in sizes:
            grp = L[:n]; L = L[n:]
            G_.append(lambda grp=grp: A("s_setprio 3\n" + "\n".join(grp) + "\ns_setprio 0"))
        def store():
            l = lab("hskip")
            if b == 0: A(f"s_cmp_eq_u32 s{sNb}, 3\ns_cbranch_scc1 {l}")
            if b == 2: A(f"s_add_u32 s{sT0}, s{sCG}, s{sNI}\ns_cmp_eq_u32 s{sT0}, 8\ns_cbranch_scc1 {l}")
            A(f"s_add_u32 s{sT0}, s{sHst}, {b*4096}")
            A(f"buffer_store_dwordx4 {v(T1,4)}, v{vL16}, {ws}, s{sT0} offen sc1")
            A(f"buffer_store_dwordx4 {v(T1+4,4)}, v{vL16}, {ws}, s{sT0} offen offset:1024 sc1")
            A.label(l)
            vmq.since = 0
        return G_ + [store]
    def send_flag(b):
        def f():
            n = min(vmq.since, 63)
            A(f"s_waitcnt vmcnt({n})"); vmq.waited(n)
            A(f"s_add_u32 s{sT0}, s{sHfl}, {b*4096}\ns_mov_b64 exec, 1\nbuffer_store_dword v{vFl}, v{vT2}, {ws}, s{sT0} offen sc1\ns_mov_b64 exec, -1")
        return f
    NH = 12
    def hload(t):
        b = 8 * (t % NH)
        if DSEQ[t] == 21:
            A(f"s_and_b32 s{sT2}, s{sGW}, 2\ns_lshl_b32 s{sT2}, s{sT2}, 10\ns_sub_u32 s{sT2}, s{sHb}, s{sT2}\ns_add_u32 s{sT2}, s{sT2}, {DSEQ[t]*4096}")
        else:
            A(f"s_add_u32 s{sT2}, s{sHb}, {DSEQ[t]*4096}")
        A(f"buffer_load_dwordx4 {a(b,4)}, v{vH0}, {ws}, s{sT2} offen sc1")
        A(f"buffer_load_dwordx4 {a(b+4,4)}, v{vH1}, {ws}, s{sT2} offen sc1")
        vmq.push(("h", t), 2)
    def hflag_issue(c):
        A(f"s_add_u32 s{sT2}, s{sHld}, {c*4096}\ns_mov_b64 exec, {hex(CMASK[c])}")
        A(f"buffer_load_dword v{vHF}, v{vL128}, {ws}, s{sT2} offen sc1\ns_mov_b64 exec, -1")
        vmq.push(("hf", c))
    def hflag_check(c):
        vwait(("hf", c))
        l = f"L_hf{c}"
        A(f"s_setprio 3\nv_cmp_ne_u32 vcc, s{sTag}, v{vHF}\ns_setprio 0\ns_and_b32 vcc_lo, vcc_lo, {hex(CMASK[c])}\ns_cbranch_scc1 {l}_s")
        A.label(l + "_b")
        def sp():
            A.label(l + "_s")
            A(f"s_add_u32 s{sT2}, s{sHld}, {c*4096}\ns_setprio 3")
            spin_flags(l, vHF, vL128, sT2, hex(CMASK[c]), sleep=8)
            A(f"s_setprio 0\ns_branch {l}_b")
        slow.append(sp)
    def p4(ni):
        def f():
            l = lab("p4")
            A(f"""
            s_cmp_lg_u32 s{sNI}, {ni}
            s_cbranch_scc1 {l}_x
            s_and_b32 s{sT0}, s{sRB}, 7
            s_lshl_b32 s{sT1}, s{sCG}, 7
            s_cmp_eq_u32 s{sGW}, 3
            s_cbranch_scc1 {l}_o
            s_mul_i32 s{sT0}, s{sT0}, {172*1024}
            s_add_u32 s{sT0}, s{sT0}, s{sT1}
            s_lshl_b32 s{sT1}, s{sGW}, 16
            s_add_u32 s{sT0}, s{sT0}, s{sT1}
            buffer_load_dword v143, v{vXR}, {s(sWd,4)}, s{sT0} offen
            s_branch {l}_x
            """)
            A.label(l + "_o")
            A(f"s_lshl_b32 s{sT0}, s{sT0}, 16\ns_add_u32 s{sT0}, s{sT0}, s{sT1}\nbuffer_load_dword v143, v{vXR}, {s(sWo,4)}, s{sT0} offen")
            A.label(l + "_x")
        return f
    allp = []
    for g in range(NG0, 39): allp += [(g, p) for p in dma_pieces(*ffn_dd(g))]
    T0 = opt.get("t0", 2 if NG0 >= 4 else NG0 - 1); RATE = opt.get("rate", 6)
    NE = opt.get("ne", 0)
    early = [[allp.pop(0)[1] for _ in range(4)] for _ in range(NE)]
    prep_ = []
    while allp[0][0] <= T0 + 1: prep_.append(allp.pop(0)[1])
    sched = []
    for st in range(35):
        take = []
        if st < NE: take = early[st]; assert st < T0
        if st >= T0:
            while allp and allp[0][0] <= st + LOOK and len(take) < RATE: take.append(allp.pop(0)[1])
        sched.append(take)
        if st == 7 and not FR: assert allp[0][0] == 8 + LOOK and len([1 for g, _ in allp if g == 8 + LOOK]) == 4
    assert not allp
    stages = []
    post = {}
    for st in range(35):
        frags = []
        if st < 24:
            for kk in range(4):
                ks = (st % 8) * 4 + kk
                for p, acc in enumerate((ACC0, ACC1)):
                    c = "0" if ks == 0 else v(acc, 16)
                    frags.append((vTRn, vTRnH, p * 8192 + kk * 2048, p * 8192 + kk * 2048 + 512, [f"{MF} {v(acc,16)}, {{w}}, {xn(ks)}, {c}"]))
        else:
            for kk in range(2):
                t = 2 * (st - 24) + kk; b = 8 * (t % NH)
                for ni, (lo, hi) in enumerate(((vTRp0, vTRp0H), (vTRp1, vTRp1H))):
                    ms = [(lambda t=t: vwait(("h", t)))] if ni == 0 else []
                    for mi in range(2):
                        d = AD1[2 * ni + mi]; c = "0" if t == 0 else d
                        ms.append(f"{MF} {d}, {{w}}, {a(b+4*mi,4)}, {c}")
                    frags.append((lo, hi, kk * 2048, kk * 2048 + 1024, ms))
        nx = ffn_dd(st + 1)
        stages.append(dict(slot=gslot(st), frags=frags, pieces=sched[st], nxt=("dma", nx[0], nx[1]),
                           sync=(st <= 25), pub=(st <= 24), pubat=(0 if st >= 23 else opt.get("pubat", 2)),
                           waitat=(3 if st >= 24 else (6 if st == 23 else opt.get("pubat", 2)))))
    assert LOOK <= 4
    stages[T0]["pre"] = lambda: (check(True, 1024, 12 + NG0 + 1) if opt.get("thr", 1) else None, [p_() for p_ in prep_])
    stages[8]["label"] = "L_ffn8"
    GATE = opt.get("gate", 31); GR_ = opt.get("gater", 17 if G2 else 33)
    if GATE:
        def gate():
            A("s_waitcnt lgkmcnt(0)"); lq.clear()
            for st_ in range(GATE, GATE + 2):
                if st_ < 35:
                    for p_ in stages[st_]["pieces"]: p_()
                    stages[st_]["pieces"] = []
            for k_ in sorted(k for k in hooks if k[0] in (GATE, GATE + 1)):
                hooks.pop(k_)()
            if opt.get("warm", 0):
                A("s_mov_b64 exec, 0\ns_branch L_wg"); A.label("L_wg_ret"); A("s_mov_b64 exec, -1")
            check(True, 1024, 12 + NG0 + 1 + GR_, sleep=4)
        stages[GATE]["pre"] = gate
    hooks = {}
    for b in range(3):
        st0 = 8 * (b + 1)
        stages[st0]["frags"][0][4].insert(0, gelu1)
        grp = gelu2_groups(b)
        pos = [(si, fi, k) for si in (st0, st0 + 1, st0 + 2) for fi, fr in enumerate(stages[si]["frags"]) for k, m in enumerate(fr[4]) if not callable(m)]
        if b == 2: pos = [p_ for p_ in pos for _ in range(2)]
        for (si, fi, k), g_ in reversed(list(zip(pos, grp))):
            stages[si]["frags"][fi][4].insert(k + 1, g_)
        hooks[(st0 + 3, 3) if b < 2 else (26, 1)] = send_flag(b)
    def addhook(pos, f):
        old = hooks.get(pos)
        hooks[pos] = (lambda: (old(), f())) if old else f
    for k in range(RKV, 32):
        st = S0 + k - RKV
        nf = len(stages[st]["frags"]); nfp = len(stages[st - 1]["frags"])
        addhook((st - 1, nfp - 1), kv_poll)
        addhook((st, nf // 2), lambda k=k: kv_issue(k))
        addhook((st + KLAG, 0), lambda k=k: kv_pub(k))
    if opt.get("p4", 1): hooks[(opt.get("p4a", 10), 1)] = p4(0); hooks[(opt.get("p4b", 14), 1)] = p4(1)
    HL = opt.get("hl", 5)
    def hpos(t):
        u = t - HL
        if u >= 0: return (24 + u // 2, 2 * (u % 2) + 1)
        return (24 + (u // 2), 4 * (u % 2) + 1)
    for t in range(22):
        fs = []
        if t in CSTART: fs.append(lambda c=CSTART[t]: hflag_check(c))
        fs.append(lambda t=t: hload(t))
        if t + 2 in CSTART: fs.append(lambda c=CSTART[t + 2]: hflag_issue(c))
        old = hooks.get(hpos(t))
        if old: fs.insert(0, old)
        hooks[hpos(t)] = (lambda fs=fs: [f() for f in fs])
    p0 = hpos(0); addhook((p0[0] - 1, 3), lambda: hflag_issue(0))
    XRAW = 136
    def xload():
        for q in range(4):
            A(f"buffer_load_dwordx2 {v(XRAW+2*q,2)}, v{vXo}, {s(sX,4)}, s{sXo} offen offset:{16*q}"); vmq.push("xr")
    addhook((28, 0), xload)
    def fo_addr(): A(f"s_lshl_b32 s{sT2}, s{sRB}, 12\ns_lshl_b32 s{sT0}, s{sGW}, 10\ns_add_u32 s{sT2}, s{sT2}, s{sT0}\ns_add_u32 s{sT2}, s{sT2}, {FO}")
    def fo_issue():
        fo_addr()
        A(f"s_mov_b64 exec, 0xff\nbuffer_load_dword v{vHF}, v{vL128}, {ws}, s{sT2} offen sc1\ns_mov_b64 exec, -1"); vmq.push("fo")
    def fo_check():
        vwait("fo")
        A(f"s_setprio 3\nv_cmp_ne_u32 vcc, s{sTag}, v{vHF}\ns_setprio 0\ns_and_b32 vcc_lo, vcc_lo, 0xff\ns_cbranch_scc1 L_fo_s")
        A.label("L_fo_b")
        def sp():
            A.label("L_fo_s")
            fo_addr(); A("s_setprio 3")
            spin_flags("L_fo", vHF, vL128, sT2, 8, sleep=8)
            A("s_setprio 0\ns_branch L_fo_b")
        slow.append(sp)
    addhook((13, 5), fo_issue); addhook((16, 5), fo_check)
    if stamps:
        for st in (8, 16, 24): addhook((st, 0), ST)
    segment(stages, hooks)
    lowprio[0] = False
    ST()
    if opt.get("atrace"):
        A(f"s_lshl_b32 s{sT0}, s2, 4\ns_add_u32 s{sT0}, s{sT0}, s{sWave}\ns_lshl_b32 s{sT0}, s{sT0}, 8\ns_add_u32 s{sT0}, s{sT0}, {STAMP+MB}\nv_lshlrev_b32 v135, 2, v{vL}\nbuffer_store_dword v31, v135, {ws}, s{sT0} offen\ns_waitcnt vmcnt(0)")
    XF = [120, 122, 124, 126, 32, 34, 36, 38]
    WARM = opt.get("warm", 0)
    if WARM: A.warm_begin()
    vwait(("dma", "o", 3))
    for i in range(8):
        slot = gslot(35 + i // 2); base = slot * SLOT
        for ni, (lo, hi) in enumerate(((vTRp0, vTRp0H), (vTRp1, vTRp1H))):
            reg, b = (lo, base) if base < 65536 else (hi, base - 65536)
            lds(f"ds_read_b64_tr_b16 {a(8*i+4*ni,2)}, v{reg} offset:{b + (i%2)*2048}", "wo")
            lds(f"ds_read_b64_tr_b16 {a(8*i+4*ni+2,2)}, v{reg} offset:{b + (i%2)*2048 + 1024}", "wo")
    vR = [None, vKo, vVo, vXR]
    sHave, sNext = 4, 5
    A(f"""
    s_setprio {opt.get("tprio", 3)}
    s_lshl_b32 s7, s{sRB}, 16
    s_lshl_b32 s{sT0}, s{sGW}, 13
    s_add_u32 s7, s7, s{sT0}
    s_add_u32 s7, s7, {OF}
    s_add_u32 s6, s7, 4096
    s_mov_b32 s{sHave}, 0
    s_mov_b32 s{sNext}, 0
    s_mov_b32 s{sC}, {hex(f2u(-1.4426950408889634))}
    s_mov_b32 s{sC+1}, {hex(f2u(-1.4426950408889634))}
    v_xor_b32 v{vR[1]}, 4096, v{vRW}
    v_xor_b32 v{vR[2]}, 8192, v{vRW}
    v_xor_b32 v{vR[3]}, 12288, v{vRW}
    v_and_b32 v{vL128}, 7, v{vL}
    v_lshlrev_b32 v{vL128}, 10, v{vL128}
    v_bfe_u32 v{vFl}, v{vL}, 3, 1
    v_lshl_add_u32 v{vL128}, v{vFl}, 15, v{vL128}
    """)
    for r_ in [vRW] + vR[1:]: A(f"v_add_u32 v{r_}, {RB0 + 2*SLOT}, v{r_}")
    OFR = 56
    AS = [(v, 40), (a, 64), (a, 80), (a, 96)]
    def o_loads(u):
        for i in range(8):
            so = 7 if i < 4 else 6
            if u: A(f"s_bitcmp1_b32 s{sD0}, {i}\ns_cbranch_scc0 L_ol{u}_{i}")
            A(f"buffer_load_dwordx4 {v(OFR+8*i,4)}, v{vO0}, {ws}, s{so} offen offset:{(i%4)*1024} sc1")
            A(f"buffer_load_dwordx4 {v(OFR+8*i+4,4)}, v{vO1}, {ws}, s{so} offen offset:{(i%4)*1024} sc1")
            if u: A.label(f"L_ol{u}_{i}")
    def reduce_tile(dst, src, mid=None):
        for lt in range(1, 4):
            k_, b_ = src[lt]
            for q in range(4):
                lds(f"ds_write_b128 v{vRW}, {k_(b_+4*q,4)} offset:{(lt-1)*SLOT + q*1024}", "w")
        lds(f"ds_add_u32 v{vCnt}, v{vOne}", "add")
        check(True)
        for lt in range(1, 4):
            for q in range(4):
                lds(f"ds_read_b128 {v(40+16*lt+4*q,4)}, v{vR[lt]} offset:{(lt-1)*SLOT + q*1024}", ("r", lt))
        if mid: mid()
        lwait(("r", 1))
        for i in range(8): A(f"v_pk_add_f32 {v(40+2*i,2)}, {v(40+2*i,2)}, {v(56+2*i,2)}")
        lwait(("r", 3))
        for i in range(8): A(f"v_pk_add_f32 {v(72+2*i,2)}, {v(72+2*i,2)}, {v(88+2*i,2)}")
        for i in range(8): A(f"v_pk_add_f32 {v(dst+2*i,2)}, {v(40+2*i,2)}, {v(72+2*i,2)}")
    def mid0():
        vwait("xr")
        for i in range(8):
            A(f"v_lshlrev_b32 v{XF[i]}, 16, v{XRAW+i}")
            A(f"v_and_b32 v{XF[i]+1}, 0xffff0000, v{XRAW+i}")
    reduce_tile(GR, [(v, 40), (v, 56), (v, 96), (a, 96)], mid0)
    OG = opt.get("ogate", 0)
    if not OG: o_loads("")
    Tv = 40
    for i in range(8): A(f"v_pk_mul_f32 {v(Tv+2*i,2)}, {v(GR+2*i,2)}, {s(sC,2)}")
    for i in range(16): A(f"v_exp_f32 v{Tv+i}, v{Tv+i}")
    for r_ in [vRW] + vR[1:]: A(f"v_add_u32 v{r_}, {3*SLOT}, v{r_}")
    for i in range(8): A(f"v_pk_add_f32 {v(Tv+2*i,2)}, {v(Tv+2*i,2)}, 1.0 op_sel_hi:[1,0]")
    for i in range(16): A(f"v_rcp_f32 v{Tv+i}, v{Tv+i}")
    A("s_nop 0")
    for i in range(8): A(f"v_pk_mul_f32 {v(GR+2*i,2)}, {v(GR+2*i,2)}, {v(Tv+2*i,2)}")
    ST()
    if OG == 1:
        check(True, 1024, 12 + NG0 + 1 + 17, sleep=4); o_loads("")
    if OG == 2:
        A(f"s_lshl_b32 s{sT0}, s{sGW}, 9\ns_add_u32 s{sT0}, s{sT0}, {AFL+256}\nv_mov_b32 v{vP}, s{sT0}")
        lds_spin("L_ow", vHF, vP, 0, f"v_cmp_eq_u32 vcc, 0, v{vHF}", sleep=2); o_loads("")
    sLd = sD0
    vPr, vPa = vFl, vL128
    PROBE = f"s_mov_b64 exec, 0xffff\nbuffer_load_dword v{vPr}, v{vPa}, {ws}, s7 offen offset:1020 sc1\ns_mov_b64 exec, -1"
    if OG == 3:
        A(f"s_mov_b32 s{sLd}, 0")
    else:
        A(f"s_mov_b32 s{sLd}, 0xff")
    A.label("L_of")
    A("s_waitcnt vmcnt(0)")
    for i in range(8):
        o_ = OFR + 8 * i
        A(f"""
        s_bitcmp1_b32 s{sLd}, {i}
        s_cbranch_scc0 L_ov{i}
        v_max3_u32 v{vHF}, v{o_}, v{o_+1}, v{o_+2}
        v_max3_u32 v{vP}, v{o_+3}, v{o_+4}, v{o_+5}
        v_max3_u32 v{vHF}, v{vHF}, v{o_+6}, v{o_+7}
        v_max_u32 v{vHF}, v{vHF}, v{vP}
        v_cmp_eq_u32 vcc, -1, v{vHF}
        s_cbranch_vccnz L_ov{i}
        s_bitset1_b32 s{sHave}, {i}
        """)
        A.label(f"L_ov{i}")
    A(f"s_cmp_lt_i32 s{sTO}, 0\ns_cselect_b32 s{sHave}, 0xff, s{sHave}\ns_cmp_eq_u32 s{sHave}, 0xff\ns_cbranch_scc1 L_onp")
    A(PROBE)
    A.label("L_onp")
    for i in range(8):
        A(f"s_cmp_lg_u32 s{sNext}, {i}\ns_cbranch_scc1 L_om{i}\ns_bitcmp1_b32 s{sHave}, {i}\ns_cbranch_scc0 L_opr")
        for ni in range(2):
            for mi in range(2):
                k_, b_ = AS[2 * ni + mi]; d = k_(b_, 16)
                A(f"{MF} {d}, {a(8*i+4*ni,4)}, {v(OFR+8*i+4*mi,4)}, {d if i else 0}")
        A(f"s_mov_b32 s{sNext}, {i+1}")
        A.label(f"L_om{i}")
    def sp():
        A.label("L_opr")
        A(f"""
        s_waitcnt vmcnt(0)
        v_cmp_ne_u32 vcc, -1, v{vPr}
        s_sub_u32 s{sTO}, s{sTO}, 1
        s_lshr_b32 s{sLd}, vcc_lo, 8
        s_and_b32 s{sLd}, s{sLd}, vcc_lo
        s_cmp_lt_i32 s{sTO}, 0
        s_cselect_b32 s{sLd}, 0xff, s{sLd}
        s_and_b32 s{sLd}, s{sLd}, 0xff
        s_andn2_b32 s{sLd}, s{sLd}, s{sHave}
        s_cbranch_scc1 L_opg
        s_sleep {opt.get("osleep", 2)}
        {PROBE}
        s_branch L_opr
        """)
        A.label("L_opg")
        o_loads("b")
        A("s_branch L_of")
    slow.append(sp)
    ST()
    A("s_nop 10")
    reduce_tile(40, AS)
    for i in range(8): A(f"v_pk_fma_f32 {v(40+2*i,2)}, {v(40+2*i,2)}, {v(GR+2*i,2)}, {v(XF[i],2)}")
    for i in range(8): A(f"v_cvt_pk_bf16_f32 v{56+i}, v{40+2*i}, v{41+2*i}")
    A("s_nop 1")
    for h in range(2):
        A(f"v_permlane32_swap_b32 v{56+4*h}, v{58+4*h}\nv_permlane32_swap_b32 v{57+4*h}, v{59+4*h}")
    for h in range(2):
        A(f"buffer_store_dwordx4 {v(56+4*h,4)}, v{vRR}, {s(sOut,4)}, s{sXo} offen offset:{32*h}")
    if WARM: A.warm_end("L_wg", "L_wa2", WARM)
    if stamps:
        ST.on = True
        if not FR: ST(); ST.flush(ws, STAMP, sWave, 2, 3, sT0)
        if opt.get("dbgout"):
            A(f"s_cmp_lg_u32 s2, {opt['dbgout']-1}\ns_cbranch_scc1 L_dbx\ns_cmp_lg_u32 s{sWave}, 4\ns_cbranch_scc1 L_dbx\nv_mov_b32 v2, 0")
            for i in range(1, ST.n):
                A(f"s_sub_u32 s4, s{ST.base+2*i}, s{ST.base}\nv_mov_b32 v3, s4\nbuffer_store_dword v3, v2, {s(sDbg,4)}, 0 offen offset:{4*i}\ns_nop 1")
            A.label("L_dbx")
    A("s_endpgm")
    for f in slow: f()
    slow.clear()

    ST.n = 2 if stamps else 0
    A.label("L_attn")
    lq.clear(); vmq.clear()
    for g in range(NEARLY): vmq.push(("dma", "q", g), 4)
    def pub_ld(g):
        d = ddq(g); vwait(("dma", d[0], d[1])); lds(f"ds_add_u32 v{vCnt}, v{vOne}", "add")
    def FS():
        if FR: ST()
    def p2():
        A(f"s_mov_b64 exec, {PF2MASK}\nbuffer_load_dword v143, v30, {s(sWgu,4)}, s68 offen\ns_mov_b64 exec, -1"); vmq.push("pf")
    FS()
    NB4 = max(opt.get("nb4", 4), NEARLY)
    for g in range(NEARLY, NB4):
        dma(*ddq(g))
        if g == opt.get("p1at", 3):
            A(f"s_mov_b64 exec, {'0xffff0000' if opt.get('p1kv', 1) else '0xffffffff'}\nbuffer_load_dword v143, v{aP3}, {s(sWq,4)}, s7 offen\ns_mov_b64 exec, -1"); vmq.push("pf")
            if opt.get("p2early", 1): p2()
    pub_ld(0)
    A("s_waitcnt lgkmcnt(0)\ns_barrier"); lq.clear()
    ST()
    for g in range(1, NB4): pub_ld(g)
    for g in range(NB4, 5): dma(*ddq(g))
    FS()
    A(GUADDR)
    A(f"""
    s_and_b32 s{sT0}, s2, 7
    s_lshr_b32 s{sT1}, s2, 3
    s_and_b32 s{sT2}, s{sT1}, 3
    s_lshl_b32 s{sHead}, s{sT0}, 2
    s_add_u32 s{sHead}, s{sHead}, s{sT2}        ; head
    s_lshr_b32 s{sT1}, s{sT1}, 2
    s_lshl_b32 s{sT1}, s{sT1}, 1
    s_add_u32 s{sT1}, s{sT1}, s{sMI}
    s_lshr_b32 s4, s{sWave}, 1
    s_lshl_b32 s5, s{sHead}, 16
    s_lshl_b32 s{sQ}, s{sT1}, 12
    s_add_u32 s{sQ}, s{sQ}, s5
    s_lshl_b32 s6, s4, 11
    s_add_u32 s{sQ0}, s{sQ}, s6
    s_xor_b32 s6, s6, 2048
    s_add_u32 s{sQ}, s{sQ}, s6
    s_lshl_b32 s{sT1}, s{sT1}, 1
    s_add_u32 s{sT1}, s{sT1}, s4
    s_lshl_b32 s{sO}, s{sT1}, 16
    s_lshl_b32 s{sT0}, s{sHead}, 10
    s_add_u32 s{sO}, s{sO}, s{sT0}
    s_add_u32 s{sO}, s{sO}, {OF}
    s_lshl_b32 s{sFo}, s{sT1}, 12
    s_lshl_b32 s{sT0}, s{sHead}, 7
    s_add_u32 s{sFo}, s{sFo}, s{sT0}
    s_add_u32 s{sFo}, s{sFo}, {FO}
    s_add_u32 s{sKb}, s5, {KF}
    s_lshl_b32 s{sT0}, s4, 15
    s_add_u32 s{sKVb}, s{sKb}, s{sT0}
    v_mov_b32 v{vK}, v{vL16}
    v_lshrrev_b32 v{vV}, 5, v{vL}
    v_lshlrev_b32 v{vV}, 8, v{vV}
    v_and_b32 v{aPKV}, 15, v{vL}
    v_lshl_add_u32 v{vV}, v{aPKV}, 4, v{vV}
    v_add_u32 v{vV}, {VF-KF}, v{vV}
    s_mov_b32 s{sMask}, 0x0000ffff
    s_mov_b32 s{sMask+1}, 0x0000ffff
    s_mov_b32 s{sFB}, 1
    s_mov_b32 s{sOff}, {hex(f2u(-OFFSET))}
    v_mov_b32 v{vIdx}, 0xdddddddd
    v_and_b32 v{aOnes}, 27, v{vL}
    v_cmp_eq_u32 vcc, 16, v{aOnes}
    v_mov_b32 v{aOnes}, 0x3f803f80
    s_lshr_b32 s{sFQ}, s{sHead}, 1
    v_cndmask_b32 v{aOnes}, 0, v{aOnes}, vcc
    s_lshl_b32 s{sFQ}, s{sFQ}, 13
    s_add_u32 s{sFQ}, s{sFQ}, {FQ}
    v_lshlrev_b32 v{aL128}, 7, v{vL}
    s_lshr_b32 s{sPKV}, s2, 5
    s_lshl_b32 s{sPKV}, s{sPKV}, 2
    s_add_u32 s{sPKV}, s{sPKV}, s{sWave}
    s_lshl_b32 s{sPKV}, s{sPKV}, 11
    s_add_u32 s{sPKV}, s{sPKV}, s{sKb}          ; K/V slice
    v_lshlrev_b32 v{aPKV}, 7, v{aPKV}
    v_bfe_u32 v{aPF}, v{vL}, 4, 1
    v_lshl_add_u32 v{aPKV}, v{aPF}, 21, v{aPKV}
    """)
    assert VF - KF == 1 << 21
    for g in range(NB4, 5): pub_ld(g)
    check(True, 0, 1, sleep=opt.get("asleep", 2))
    FS()
    NPRE = 12 + NG0
    for g in range(5, NPRE):
        if g >= 9: check(True, 0, g - 7, sleep=opt.get('asleep', 2))
        if g == 12:
            pub_ld(11)
            if not opt.get("p2early", 1): p2()
        dma(*ddq(g))
        if g >= 7 and g < 16: FS()
        if 8 <= g <= 11:
            inits = [f"v_accvgpr_write_b32 a{x[1]+i}, v{aOnes}" if x[0] == "a" else f"v_mov_b32 v{x[1]+i}, v{aOnes}" for x in VRG for i in range(8)]
            inits += [f"v_accvgpr_write_b32 a{O+i}, 0" for i in range(64)]
            for x in inits[(g - 8) * 20:(g - 7) * 20]: A(x)
        if g == 9:
            A(f"v_mov_b32 v32, -1\nv_mov_b32 v33, -1\nv_mov_b32 v34, -1\nv_mov_b32 v35, -1\ns_add_u32 s6, s{sO}, 32768")
            A(f"buffer_store_dwordx4 v[32:35], v{vK}, {ws}, s{sO} offen sc1\nbuffer_store_dwordx4 v[32:35], v{vK}, {ws}, s6 offen sc1"); vmq.push("clr", 2)
        if g == 11:
            A(f"v_mov_b32 v{vT1}, 0\nbuffer_load_dword v{vF}, v{vT1}, {s(sDbg,4)}, 0 offen sc1"); vmq.push("tag")
        if g > 5 and g != 12: pub_ld(g - 1)
    pub_ld(NPRE - 1)
    if FR: ST(); again(); ST.flush(ws, STAMP, sWave, 2, 3, sT0); A("s_endpgm"); ST.on = False; stamps = False
    if opt.get("aexit"): A("s_waitcnt lgkmcnt(0)\ns_endpgm")
    A(f"s_waitcnt vmcnt(0)\nv_readfirstlane_b32 s{sTag}, v{vF}\ns_cmp_lg_u32 s{sTag}, 0\ns_cbranch_scc1 L_atag_x")
    get_tag(vF, vT1, "L_atag")
    A(f"v_mov_b32 v32, s{sTag}\ns_mov_b64 exec, 1\nbuffer_store_dword v32, v{vT1}, {ws}, s{sFo} offen sc1\ns_mov_b64 exec, -1\ns_mov_b32 s{sFo}, 0")
    A(f"s_setprio 2\ns_cmp_lg_u32 s{sWave}, 0\ns_cbranch_scc1 L_aw")
    lds_spin("L_ag2", M, vCntR, 0, f"v_cmp_gt_u32 vcc, 12, v{M}", sleep=2)
    ST()
    spin_flags("L_qf", vF, aL128, sFQ, 64, sleep=2)
    A(f"ds_write_b32 v{aGo}, v{vOne}\ns_branch L_aw_x")
    A.label("L_aw")
    if WARM:
        A("s_mov_b64 exec, 0\ns_branch L_wa1"); A.label("L_wa1_ret"); A("s_mov_b64 exec, -1")
    if stamps: ST.n -= 1; ST()
    lds_spin("L_ag3", M, aGo, 0, f"v_cmp_eq_u32 vcc, 0, v{M}", sleep=1)
    A.label("L_aw_x")
    ST()
    assert NG0 == 4
    if WARM: A.warm_begin()
    sKN = sKB2
    vOwn, vOneA, vKl, vVl, vPl = 2, 3, 4, 5, 6
    A(f"buffer_load_dwordx4 {a(KS,4)}, v{vK}, {ws}, s{sKb} offen sc1")
    A(f"buffer_load_dwordx4 {a(KS+4,4)}, v{vK}, {ws}, s{sKb} offen offset:1024 sc1")
    for t in range(4):
        A(f"buffer_load_dwordx4 {a(Q+4*t,4)}, v{vK}, {ws}, s{sQ0 if t < 2 else sQ} offen offset:{(t&1)*1024} sc1")
    A(f"s_and_b32 s4, s{sWave}, 1\ns_lshl_b32 s4, s4, 21\ns_add_u32 s4, s4, s{sKVb}\ns_mul_i32 s5, s{sWave}, {RKV*1024}")
    for k0, n in ((0, 2), (2, 4), (6, 4)):
        A(f"s_add_u32 m0, s5, {((k0 + E0) % RKV) * 1024}\ns_add_u32 s6, s4, {k0*1024}")
        for i in range(n): A(f"buffer_load_dwordx4 v{vK}, {ws}, s6 offen offset:{i*1024} sc1 lds")
    A(f"ds_add_u32 v{vCnt}, v{vOne}")
    A(f"""
    v_subrev_u32 v{vOwn}, 1024, v{vCnt}
    v_mov_b32 v{vOneA}, 1
    s_lshr_b32 s4, s{sWave}, 1
    s_mul_i32 s4, s4, {2*RKV*1024}
    v_add_u32 v{vKl}, s4, v{vK}
    s_sub_u32 s4, s4, {VF-KF-RKV*1024}
    v_add_u32 v{vVl}, s4, v{vV}
    v_mov_b32 v{vF}, 2
    s_waitcnt vmcnt({RKV})
    """)
    def maxtree(dst, blocks, first):
        regs = [b + i for b in blocks for i in range(16)]
        if first:
            A(f"v_max3_f32 v{dst}, v{regs[0]}, v{regs[1]}, v{regs[2]}"); regs = regs[3:]
        while len(regs) >= 2:
            A(f"v_max3_f32 v{dst}, v{dst}, v{regs[0]}, v{regs[1]}"); regs = regs[2:]
        if regs: A(f"v_max_f32 v{dst}, v{dst}, v{regs[0]}")
    def build_c():
        T_ = SB
        for t in range(4): A(f"v_mov_b32 v{T_+t}, v{M+t}")
        A("s_nop 1")
        for t in range(4): A(f"v_permlane32_swap_b32 v{T_+t}, v{M+t}")
        for t in range(4): A(f"v_max_f32 v{M+t}, v{M+t}, v{T_+t}")
        for t in range(4): A(f"v_sub_f32 v{M+t}, s{sOff}, v{M+t}")
    def fill_c(t):
        for i in range(8): A(f"v_pk_mov_b32 {v(C+16*t+2*i,2)}, {v(M+(t&~1),2)}, {v(M+(t&~1),2)} op_sel:[{t&1},{t&1}]")
    for t in range(4):
        A(f"{MF} {v(C+16*t,16)}, {a(KS,4)}, {a(Q+4*t,4)}, 0")
        A(f"{MF} {v(SB+16*t,16)}, {a(KS+4,4)}, {a(Q+4*t,4)}, 0")
    A("s_nop 5")
    for t in range(2): maxtree(M + t, [C + 16 * t, SB + 16 * t], True)
    A(f"s_waitcnt vmcnt({RKV-2})\nds_add_u32 v{vOwn}, v{vF} offset:512")
    for t in range(2, 4): maxtree(M + t, [C + 16 * t, SB + 16 * t], True)
    def kvread(slot, pos, add=True):
        A(f"ds_read_b128 {rg(KRG[slot])}, v{vKl} offset:{pos*1024}")
        A(f"s_mov_b64 exec, {s(sMask,2)}")
        A(f"ds_read_b128 {rg(VRG[slot])}, v{vVl} offset:{pos*1024}")
        A(f"ds_read_b128 {rg(VRG[slot],4)}, v{vVl} offset:{pos*1024+512}")
        A(f"s_mov_b64 exec, -1")
        if add: A(f"ds_add_u32 v{vOwn}, v{vOneA} offset:1024")
    lds_spin("L_akv", vF, vCntR, 512, f"v_cmp_gt_u32 vcc, 2, v{vF}")
    kvread(E0 & 1, E0)
    build_c()
    for t in range(4): fill_c(t)
    for i in range(4): A(f"v_pk_mov_b32 {v(SB+48+8+2*i,2)}, 0, 0")
    A(f"v_mov_b32 v{vPl}, 2\nv_mov_b32 v{vF}, {RKV-2}\ns_mov_b32 s{sCnt}, 4\ns_mov_b32 s{sKN}, {3 if G2 else 2}\ns_waitcnt vmcnt(0) lgkmcnt(0)\nds_add_u32 v{vOwn}, v{vF} offset:512")
    A(f"{MF} {v(SB,16)}, {rg(KRG[E0 & 1])}, {a(Q,4)}, {v(C,16)}")
    ST()
    if stamps: A("s_memtime s[96:97]")
    if WARM: A.warm_end("L_wa1", "L_wa1_ret", WARM)
    A("s_nop 9\ns_branch L_aent")
    A.raw(".p2align 6")
    A.label("L_aloop")
    for r in range(RKV):
        if r == E0: A.label("L_aent")
        sl = r & 1
        for t in range(4):
            X = SB + 16 * t
            tn = (t + 1) & 3; sn = sl if t < 3 else sl ^ 1
            tp = (t - 1) & 3; sp_ = sl if t > 0 else sl ^ 1
            E = lambda j: f"v_exp_f32 v{X+j}, v{X+j}"
            if t == 3: A("s_waitcnt lgkmcnt(0)")
            A(f"{MF} {v(SB+16*tn,16)}, {rg(KRG[sn])}, {a(Q+4*tn,4)}, {v(C+16*tn,16)}")
            for j in range(0, 5): A(E(j))
            A(f"{SMF} {a(O+16*tp,16)}, {rg(VRG[sp_],4)}, {v(SB+16*tp+8,8)}, v{vIdx}")
            A(E(5))
            if t == 0 and G2 and r % 2 == 1:
                kvread(sl ^ 1, (r + 1) % RKV, add=False)
            elif t == 0:
                l = lab("akc")
                A(f"v_cmp_gt_u32 vcc, s{sKN}, v{vPl}\ns_cbranch_vccnz {l}")
                A.label(l + "_x")
                def sp(l=l):
                    A.label(l)
                    A(f"ds_read_b32 v{vPl}, v{vCntR} offset:512\ns_waitcnt lgkmcnt(0)\nv_cmp_gt_u32 vcc, s{sKN}, v{vPl}\ns_cbranch_vccz {l}_x")
                    timeout_exit(l + "_x")
                    A(f"s_sleep 1\ns_branch {l}")
                slow.append(sp)
                kvread(sl ^ 1, (r + 1) % RKV)
            if t == 2 and (not G2 or r % 2 == 1):
                A(f"ds_read_b32 v{vPl}, v{vCntR} offset:512\ns_add_u32 s{sKN}, s{sKN}, {2 if G2 else 1}")
            for j in range(6, 11): A(E(j))
            A(f"{SMF} {a(O+16*t,16)}, {rg(VRG[sl])}, {v(X,8)}, v{vIdx}")
            if r == RKV - 1 and t == 3:
                A(E(11))
                A(f"s_sub_u32 s{sCnt}, s{sCnt}, 1\ns_cmp_lg_u32 s{sCnt}, 0")
                for j in range(12, 16): A(E(j))
            else:
                for j in range(11, 16): A(E(j))
    A("s_cbranch_scc1 L_aloop")
    A("s_nop 1")
    A(f"{SMF} {a(O+48,16)}, {rg(VRG[1],4)}, {v(SB+48+8,8)}, v{vIdx}")
    A.label("L_afin")
    if WARM: A.warm_begin()
    ST()
    if stamps: A("s_memtime s[98:99]")
    A(f"""
    s_mul_i32 s{sT0}, s{sWave}, {CMBW}
    s_add_u32 s{sT0}, s{sT0}, {CMB}
    v_add_u32 v2, s{sT0}, v{vK}
    v_lshl_add_u32 v3, v{vL}, 2, s{sT0}
    s_xor_b32 s{sT0}, s{sWave}, 2
    s_mul_i32 s{sT0}, s{sT0}, {CMBW}
    s_add_u32 s{sT0}, s{sT0}, {CMB}
    v_add_u32 v4, s{sT0}, v{vK}
    v_lshl_add_u32 v5, v{vL}, 2, s{sT0}
    v_mov_b32 v{vF}, s{sFB}
    """)
    for i in range(2):
        t = 2 + i
        if i == 1: A("s_nop 0")
        A(f"ds_write_b128 v2, {a(O+16*t,4)} offset:{i*2304}")
        A(f"ds_write_b128 v2, {a(O+16*t+4,4)} offset:{i*2304+1024}")
        A(f"ds_write_b32 v3, a{O+16*t+8} offset:{i*2304+2048}")
    A(f"ds_write_b32 v{vAF}, v{vF}")
    for i in range(2):
        for e in range(9): A(f"v_accvgpr_read_b32 v{C+24*i+e}, a{O+16*i+e}")
    lds_spin("L_ax", M, vPF, 0, f"v_cmp_gt_u32 vcc, s{sFB}, v{M}")
    for i in range(2):
        b = C + 24 * i + 12
        A(f"ds_read_b128 {v(b,4)}, v4 offset:{i*2304}")
        A(f"ds_read_b128 {v(b+4,4)}, v4 offset:{i*2304+1024}")
        A(f"ds_read_b32 v{b+8}, v5 offset:{i*2304+2048}")
    A(f"""
    v_mov_b32 v2, 0
    v_mov_b32 v3, 0
    s_mov_b32 s4, {hex(f2u(2.0**-110))}
    s_mov_b32 s5, {hex(f2u(2.0**120))}
    s_add_u32 s6, s{sO}, 32768
    s_waitcnt lgkmcnt(0)
    """)
    B_ = [C, C + 24]
    for b0 in B_: A(f"v_add_f32 v{b0+8}, v{b0+8}, v{b0+20}")
    for b0 in B_: A(f"v_rcp_f32 v{b0+10}, v{b0+8}")
    for b0 in B_:
        for e in range(4): A(f"v_pk_add_f32 {v(b0+2*e,2)}, {v(b0+2*e,2)}, {v(b0+12+2*e,2)}")
    A(f"""
    v_min_f32 v4, v{B_[0]+8}, v{B_[1]+8}
    v_max_f32 v5, v{B_[0]+8}, v{B_[1]+8}
    v_cmp_nle_f32 {s(sBad,2)}, s4, v4
    v_cmp_nge_f32 vcc, s5, v5
    """)
    for b0 in B_:
        for e in range(4): A(f"v_pk_mul_f32 {v(b0+2*e,2)}, {v(b0+2*e,2)}, {v(b0+10,2)} op_sel_hi:[1,0]")
    A(f"s_or_b64 {s(sBad,2)}, {s(sBad,2)}, vcc")
    for b0 in B_:
        for e in range(4): A(f"v_pk_fma_f32 v[2:3], {v(b0+2*e,2)}, 0, v[2:3] op_sel_hi:[1,0,1]")
    for b0 in B_:
        for e in range(4): A(f"v_cvt_pk_bf16_f32 v{b0+12+e}, v{b0+2*e}, v{b0+2*e+1}")
    A("v_cmp_u_f32 vcc, v2, v3")
    for b0 in B_:
        for e in range(4): A(f"v_min_u32 v{b0+12+e}, -2, v{b0+12+e}")
    A(f"""
    s_or_b64 {s(sBad,2)}, {s(sBad,2)}, vcc
    s_cselect_b32 s4, 2, 1
    s_cmp_eq_u32 s{sFB}, 2
    s_cselect_b32 s5, 1, s4
    s_or_b32 s5, s5, s{sFo}
    s_cmp_lg_u32 s5, 1
    s_cbranch_scc1 L_anost
    buffer_store_dwordx4 {v(B_[0]+12,4)}, v{vK}, {ws}, s{sO} offen sc1
    buffer_store_dwordx4 {v(B_[1]+12,4)}, v{vK}, {ws}, s6 offen sc1
    s_mov_b32 s{sFo}, 2
    """)
    A.label("L_anost")
    A(f"v_mov_b32 v2, s4\nds_write_b32 v{vAF}, v2 offset:256")
    if WARM: A.warm_end("L_wa2", "L_wg_ret", WARM)
    A.label("L_anoflag")
    if stamps:
        ST(); A("s_waitcnt lgkmcnt(0)\ns_sub_u32 s98, s98, s96\ns_add_u32 s%d, s98, s%d" % (ST.base + 2 * ST.n, ST.base)); ST.n += 1
        ST.flush(ws, STAMP, sWave, 2, 3, sT0)
    A(f"s_cmp_eq_u32 s{sFB}, 2\ns_cbranch_scc1 L_end")
    lds_spin("L_as", M, vPF, 256, f"v_cmp_eq_u32 vcc, 0, v{M}")
    A(f"v_readfirstlane_b32 s5, v{M}\ns_max_u32 s4, s4, s5\ns_cmp_lt_u32 s4, 2\ns_cbranch_scc1 L_end")
    A(f"s_mov_b32 s{sFB}, 2\ns_mov_b32 s{sOff}, 0\ns_mov_b32 s{sCnt}, 64\ns_mov_b32 s{sKA}, s{sKb}\ns_waitcnt vmcnt(0)")
    for t in range(4): A(f"v_mov_b32 v{M+t}, 0xff800000")
    A.label("L_afb")
    A(f"buffer_load_dwordx4 {a(KS,4)}, v{vK}, {ws}, s{sKA} offen sc1")
    A("s_waitcnt vmcnt(0)")
    for t in range(4): A(f"{MF} {v(C+16*t,16)}, {a(KS,4)}, {a(Q+4*t,4)}, 0")
    A("s_nop 11")
    for t in range(4): maxtree(M + t, [C + 16 * t], False)
    A(f"s_add_u32 s{sKA}, s{sKA}, 1024\ns_sub_u32 s{sCnt}, s{sCnt}, 1\ns_cmp_lg_u32 s{sCnt}, 0\ns_cbranch_scc1 L_afb")
    build_c()
    for t in range(4): fill_c(t)
    zero_o()
    A(f"s_mov_b32 s{sCnt}, 32\ns_mov_b32 s{sKA}, s{sKVb}")
    A.label("L_afb2")
    A(f"""
    buffer_load_dwordx4 {rg(KRG[0])}, v{vK}, {ws}, s{sKA} offen sc1
    s_mov_b64 exec, {s(sMask,2)}
    buffer_load_dwordx4 {rg(VRG[0])}, v{vV}, {ws}, s{sKA} offen sc1
    buffer_load_dwordx4 {rg(VRG[0],4)}, v{vV}, {ws}, s{sKA} offen offset:512 sc1
    s_mov_b64 exec, -1
    s_waitcnt vmcnt(0)
    """)
    for t in range(4): A(f"{MF} {v(SB+16*t,16)}, {rg(KRG[0])}, {a(Q+4*t,4)}, {v(C+16*t,16)}")
    A("s_nop 8")
    for j in range(64): A(f"v_exp_f32 v{SB+j}, v{SB+j}")
    A("s_nop 2")
    for t in range(4):
        A(f"{SMF} {a(O+16*t,16)}, {rg(VRG[0])}, {v(SB+16*t,8)}, v{vIdx}")
        A(f"{SMF} {a(O+16*t,16)}, {rg(VRG[0],4)}, {v(SB+16*t+8,8)}, v{vIdx}")
    A(f"s_add_u32 s{sKA}, s{sKA}, 1024\ns_sub_u32 s{sCnt}, s{sCnt}, 1\ns_cmp_lg_u32 s{sCnt}, 0\ns_cbranch_scc1 L_afb2")
    A("s_nop 15\ns_branch L_afin")
    for f in slow: f()
    A.label("L_end")
    A("s_endpgm")
    A.raw(f".fill (51200 - (. - {K})) / 4, 4, 0xbf800000")

    H_ = Asm()
    H_.raw(f"; @launch grid=(256,1,1) block=(512,1,1) lds={LDS}")
    H_.raw('.amdgcn_target "amdgcn-amd-amdhsa--gfx950"\n.text')
    H_.lines += A.lines
    H_.raw(f""".section .rodata,"a"
.p2align 6
.amdhsa_kernel {K}
  .amdhsa_next_free_vgpr {NV+NA}
  .amdhsa_next_free_sgpr 102
  .amdhsa_accum_offset {NV}
  .amdhsa_group_segment_fixed_size 0
  .amdhsa_kernarg_size 80
  .amdhsa_user_sgpr_count 2
  .amdhsa_user_sgpr_kernarg_segment_ptr 1
  .amdhsa_system_sgpr_workgroup_id_x 1
.end_amdhsa_kernel""")
    txt = H_.text()
    check_hazards(txt)
    return txt

if __name__ == "__main__":
    base = {"pfgo": 1}
    open("mega_s.s", "w").write(build(True, base))
    open("mega.s", "w").write(build(False, base))
    open("mega_tr.s", "w").write(build(True, dict(base, atrace=1)))
    open("mega_dbg.s", "w").write(build(True, dict(base, dbgout=10)))
    open("mega_pt.s", "w").write(build(False, dict(base, pretouch=1)))
    open("mega_nc.s", "w").write(build(False, dict(base, cpf=0)))
    open("mega_b.s", "w").write(build(True, dict(base, p1kv=0, p2early=0)))
    open("mega_c.s", "w").write(build(True, dict(base, p1kv=1, p2early=0)))
    open("mega_d.s", "w").write(build(True, dict(base, p1kv=0, p2early=1)))
```

```python
import sys, struct
from asmlib import *
from layout import *
NAME = 'recurrent_scan__softmax_full_mha__glu_gated_geglu__prompt'
def f2u(x): return struct.unpack("<I", struct.pack("<f", x))[0]
MF = "v_mfma_f32_32x32x16_bf16"
SMF = "v_smfmac_f32_32x32x32_bf16"
C1 = -2.0 * 1.4426950408889634 * 0.7978845608028654
C2 = C1 * 0.044715
OFFSET = 80.0
NV, NA = 144, 112

SLOT = 16384
RB0 = 8192
RKV = 10
PIECE = 528
XT = RB0 + 5 * SLOT
CMB = RB0 + 8 * SLOT
CMBW = 2 * 2304
CNT = CMB + 4 * CMBW
LDC = CNT + 1024
AFL = LDC + 1024
GO = AFL + 8 * 256
LDS = GO + 256
assert XT + 128 * PIECE <= CNT and LDS <= 163840 and 4 * RKV * 1024 == RB0 + 2 * SLOT

class Fifo:
    def __init__(self, cap): self.q = []; self.cap = cap; self.since = 0
    def push(self, tag, n=1): self.q += [tag] * n; self.since += n
    def need(self, tag):
        idx = [i for i, t in enumerate(self.q) if t == tag]
        if not idx: return None
        return min(len(self.q) - 1 - idx[-1], self.cap)
    def waited(self, n): self.q = self.q[max(0, len(self.q) - n):] if n else []
    def clear(self): self.q = []

def build(stamps=False, opt=None):
    opt = opt or {}
    TIMEOUT = opt.get("timeout", 200000)
    NG0 = opt.get('ng0', 4)
    PF2MASK = '0xffffffff'
    A = Asm()
    K = NAME + "_kernel"
    ST = Stamps(A, 70, stamps); ST.cyc = opt.get('cyc', False)
    sX, sWq, sWgu, sWd, sWo, sWS, sOut, sDbg = 8, 12, 16, 20, 24, 28, 32, 36
    sWave, sRB, sCG, sT0, sT1, sT2, sTag, sTO = 40, 41, 42, 43, 44, 45, 46, 47
    sGW, sMI, sNI, sM0, sQoff, sGoff, sDoff, sOoffW, sNeed, sFlag, sHst, sBlk, sNb = 48, 49, 50, 51, 52, 53, 54, 55, 56, 57, 58, 59, 60
    sHfl, sC, sD0, sD1, sHld, sXo, sHb, sSt = 61, 62, 64, 65, 66, 67, 68, 69
    sKA, sCnt, sKB2, sBad = 48, 51, 49, 52
    sFB, sOff, sQ, sKVb, sHead, sO, sKb, sFo = 50, 54, 55, 56, 57, 60, 61, 62
    sMask, sQ0, sFQ, sP3, sPKV = 58, 63, 65, 66, 67
    sKVs, sKVm = 52, 1
    ws = s(sWS, 4)
    vL, vT0, vT1, vT2, vHF = 1, 2, 3, 4, 5
    vDq0, vDq1, vDg0, vDg1, vDd0, vDd1 = 6, 7, 8, 9, 10, 11
    vTRn, vTRnH, vTRp0, vTRp0H, vTRp1, vTRp1H = 12, 13, 14, 15, 16, 17
    vCnt, vOne, vP, vL16, vFl, vL128 = 18, 19, 20, 21, 22, 23
    vH0, vO0 = 6, 7
    vCntR = 0
    slow = []
    vKo, vVo, vH1, vO1, vXo, vRW, vRR, vXR = 24, 25, 26, 27, 28, 29, 30, 31
    WFB = [32, 36, 112, 116, 120, 124]
    if opt.get('twice'): WFB = [32, 128, 112, 116, 120, 124]
    ACC0, ACC1, TMP, AD, XR, GR, SR = 40, 56, 72, 40, 104, 128, 112
    vmq = Fifo(63); lq = Fifo(15)
    uid = [0]
    lowprio = [False]
    def lab(p):
        uid[0] += 1; return f"L_{p}{uid[0]}"
    def vwait(tag):
        n = vmq.need(tag)
        if n is not None: A(f"s_waitcnt vmcnt({n})"); vmq.waited(n)
    def lwait(tag):
        n = lq.need(tag)
        if n is not None: A(f"s_waitcnt lgkmcnt({n})"); lq.waited(n)
    def lds(instr, tag):
        if len(lq.q) >= 15:
            A("s_waitcnt lgkmcnt(12)"); lq.waited(12)
        A(instr); lq.push(tag)
    def timeout_exit(lbl):
        A(f"s_sub_u32 s{sTO}, s{sTO}, 1\ns_cmp_lt_i32 s{sTO}, 0\ns_cbranch_scc1 {lbl}")
    def emask(n): return n if isinstance(n, str) else ("-1" if n == 64 else hex((1 << n) - 1))

    A.raw(f".globl {K}\n.p2align 8\n.type {K},@function\n{K}:")
    F0 = opt.get("front0"); FR = opt.get("front")
    A(f"""
    s_cmp_ge_u32 s2, 256
    s_cbranch_scc1 L_end
    """)
    if opt.get("twice"): A("v_mov_b32 v135, 0"); A.label("L_restart")
    def again():
        if opt.get("twice"):
            l = lab("tw")
            A(f"s_waitcnt vmcnt(0) lgkmcnt(0)\ns_barrier\ns_setprio 0\nv_readfirstlane_b32 s4, v135\ns_cmp_lg_u32 s4, 0\ns_cbranch_scc1 {l}\nv_mov_b32 v135, 1\ns_lshl_b32 s4, s40, 6\nv_add_u32 v0, s4, v1\ns_sleep 40\ns_branch L_restart")
            A.label(l)
    if opt.get("xhold"): A("s_memrealtime s[100:101]")
    if opt.get("scr"):
        A("s_and_b32 s4, s2, 7\ns_lshl_b32 s4, s4, 3\ns_bfe_u32 s5, s2, 0x30003\ns_and_b32 s2, s2, 0xc0\ns_or_b32 s2, s2, s4\ns_or_b32 s2, s2, s5")
    A(f"""
    s_load_dwordx4 s[4:7], s[0:1], 0
    s_load_dwordx2 s[24:25], s[0:1], 16
    s_load_dwordx4 s[16:19], s[0:1], 32
    s_load_dwordx4 s[20:23], s[0:1], 48
    s_load_dwordx4 s[36:39], s[0:1], 64
    """)
    if opt.get("cpf", 1):
        A(f"""
        s_getpc_b64 s[8:9]
        s_lshr_b32 s10, s2, 3
        s_lshl_b32 s10, s10, 7
        s_add_u32 s8, s8, s10
        s_addc_u32 s9, s9, 0
        v_lshlrev_b32 v2, 12, v0
        v_add_co_u32 v2, vcc, s8, v2
        v_mov_b32 v3, s9
        v_cmp_gt_u32 s[10:11], 12, v0
        v_addc_co_u32 v3, vcc, 0, v3, vcc
        s_and_saveexec_b64 s[12:13], s[10:11]
        s_cbranch_execz L_nocpf
        global_load_dword v143, v[2:3], off
        L_nocpf:
        s_mov_b64 exec, -1
        """)
    ST()
    A(f"""
    v_lshrrev_b32 v{vT0}, 6, v0
    v_and_b32 v{vL}, 63, v0
    s_and_b32 s{sT0}, s2, 7
    v_readfirstlane_b32 s{sWave}, v{vT0}
    s_lshr_b32 s{sT1}, s2, 3
    s_lshr_b32 s{sRB}, s{sT0}, 1
    s_lshl_b32 s{sRB}, s{sRB}, 3
    s_and_b32 s{sT2}, s{sT1}, 7
    s_add_u32 s{sRB}, s{sRB}, s{sT2}
    s_and_b32 s{sCG}, s{sT0}, 1
    s_lshl_b32 s{sCG}, s{sCG}, 2
    s_lshr_b32 s{sT2}, s{sT1}, 3
    s_add_u32 s{sCG}, s{sCG}, s{sT2}
    v_lshrrev_b32 v{vT0}, 3, v{vL}
    v_and_b32 v{vT1}, 7, v{vL}                  ; 16B piece
    v_lshlrev_b32 v{vT2}, 10, v{vT0}
    v_lshl_add_u32 v5, v{vT1}, 4, v{vT2}
    s_lshl_b32 s{sT0}, s{sRB}, 16
    s_lshl_b32 s{sT1}, s{sWave}, 13
    s_add_u32 s{sT0}, s{sT0}, s{sT1}
    s_mov_b32 s{sX+2}, {S*D*2}
    s_mov_b32 s{sX+3}, 0x00020000
    s_mov_b32 s{sWq+2}, {D*1536*2}
    s_mov_b32 s{sWq+3}, 0x00020000
    s_and_b32 s{sGW}, s{sWave}, 3
    s_and_b32 s{sMI}, s{sGW}, 1
    v_lshlrev_b32 v{vL16}, 4, v{vL}
    s_lshl_b32 s{sT1}, s{sGW}, 2
    s_add_u32 s{sT1}, s{sT1}, {CNT}
    v_lshlrev_b32 v{vCnt}, 2, v{vL}
    v_add_u32 v{vCnt}, {CNT+256}, v{vCnt}
    v_writelane_b32 v{vCnt}, s{sT1}, 0
    v_mov_b32 v{vOne}, 1
    v_and_b32 v{vFl}, 3, v{vL}
    v_lshlrev_b32 v{vCntR}, 2, v{vFl}
    v_add_u32 v{vCntR}, {CNT}, v{vCntR}
    s_mov_b32 s{sTO}, {TIMEOUT}
    s_waitcnt lgkmcnt(0)
    s_mov_b32 s{sX}, s4
    s_mov_b32 s{sX+1}, s5
    s_mov_b32 s{sWq}, s6
    s_mov_b32 s{sWq+1}, s7
    """)
    R = 40
    for cb in range(8):
        A(f"buffer_load_dwordx4 {v(R+4*cb,4)}, v5, {s(sX,4)}, s{sT0} offen offset:{cb*128}")
    SRDS = f"""
    s_mov_b32 s{sWS}, s38
    s_mov_b32 s{sWS+1}, s39
    s_mov_b32 s{sWS+2}, {WS_USED}
    s_mov_b32 s{sWS+3}, 0x00020000
    s_mov_b32 s{sDbg+2}, 256
    s_mov_b32 s{sDbg+3}, 0x00020000
    s_bitcmp1_b32 s{sWave}, 1
    s_cselect_b32 s{sWgu}, s18, s16
    s_cselect_b32 s{sWgu+1}, s19, s17
    s_mov_b32 s{sWgu+2}, {D*F*2}
    s_mov_b32 s{sWgu+3}, 0x00020000
    v_lshlrev_b32 v{vT2}, 1, v{vT0}
    v_and_b32 v{vT2}, 4, v{vT2}
    v_xor_b32 v{vT2}, v{vT2}, v{vT1}
    v_lshlrev_b32 v{vHF}, 4, v{vT2}
    s_lshl_b32 s{sM0}, s{sGW}, 12
    s_add_u32 s{sM0}, s{sM0}, {RB0}
    s_mul_i32 s{sBlk}, s{sCG}, 3
    s_add_u32 s{sT1}, s{sCG}, 1
    s_lshr_b32 s{sT1}, s{sT1}, 2
    s_sub_u32 s{sBlk}, s{sBlk}, s{sT1}
    """
    A(SRDS)
    A(f"s_cmp_lt_u32 s{sWave}, 4\ns_cbranch_scc1 L_pre_a")
    BASE = [0, 3, 6, 8, 11, 14, 17, 19]
    DSEQ = [BASE[j] for j in range(8) if j % 4 != 3] + [BASE[j] + 1 for j in range(8)] + [BASE[j] + 2 for j in range(8)]
    CSTART = {0: 0, 6: 1, 14: 2}
    CMASK = [0x0fff0fff, 0xffffffff, 0xffffffff]
    def dma_pieces(kind, idx, slot):
        if kind == "q":
            panel = (1, 2, 0)[idx // 4]; o = (idx % 4) * 128 * 3072 + panel * 1024
            srd, so, v0_, v1_, o2 = sWq, sQoff, vDq0, vDq1, o + 16 * 3072
        elif kind == "g":
            o = (idx % 8) * 64 * 2752 + (idx // 8) * 128
            srd, so, v0_, v1_, o2 = sWgu, sGoff, vDg0, vDg1, o + 16 * 2752
        elif kind == "d":
            o = DSEQ[2 * idx] * 64 * 1024; o2 = DSEQ[2 * idx + 1] * 64 * 1024
            srd, so, v0_, v1_ = sWd, sDoff, vDd0, vDd1
        else:
            o = idx * 32 * 1024; o2 = o + 16 * 1024
            srd, so, v0_, v1_ = sWo, sOoffW, vDd0, vDd1
        tag = ("dma", kind, idx)
        def p0():
            A(f"s_add_u32 m0, s{sM0}, {slot*SLOT}\ns_add_u32 s{sD0}, s{so}, {o}")
            A(f"buffer_load_dwordx4 v{v0_}, {s(srd,4)}, s{sD0} offen lds"); vmq.push(tag)
        def p1():
            if lowprio[0]: A(f"s_add_u32 m0, s{sM0}, {slot*SLOT}\ns_nop 0")
            A(f"buffer_load_dwordx4 v{v1_}, {s(srd,4)}, s{sD0} offen offset:1024 lds"); vmq.push(tag)
        def p2():
            if lowprio[0]: A(f"s_add_u32 m0, s{sM0}, {slot*SLOT}")
            A(f"s_add_u32 s{sD0}, s{so}, {o2 - 2048}")
            A(f"buffer_load_dwordx4 v{v0_}, {s(srd,4)}, s{sD0} offen offset:2048 lds"); vmq.push(tag)
        def p3():
            if lowprio[0]: A(f"s_add_u32 m0, s{sM0}, {slot*SLOT}\ns_nop 0")
            A(f"buffer_load_dwordx4 v{v1_}, {s(srd,4)}, s{sD0} offen offset:3072 lds"); vmq.push(tag)
        if opt.get("xnodma") and not (kind == "q" and idx < 5): return []
        if opt.get("xhalfdma") and not (kind == "q" and idx < 5): return [p0, p1]
        return [p0, p1, p2, p3]
    def dma(kind, idx, slot):
        cap = opt.get("ldcap", 40)
        for p in dma_pieces(kind, idx, slot):
            if len(vmq.q) > cap:
                A(f"s_waitcnt vmcnt({cap})"); vmq.waited(cap)
            p()
    def ddq(g): return ("q", g, g % 8) if g < 12 else ("g", g - 12, g % 8)
    GUADDR = f"""
    v_mul_u32_u24 v{vDg0}, 2752, v{vT0}
    v_add_u32 v{vDg0}, v{vDg0}, v{vHF}
    v_add_u32 v{vDg1}, {8*2752-1024}, v{vDg0}
    s_mul_i32 s{sGoff}, s{sMI}, {32*2752}
    s_lshl_b32 s{sT0}, s{sBlk}, 7
    s_add_u32 s{sGoff}, s{sGoff}, s{sT0}
    """
    A(f"""
    v_bfe_u32 v{vP}, v{vL}, 2, 2
    v_mul_u32_u24 v{vP}, 3072, v{vP}
    v_lshl_add_u32 v{vP}, v{vFl}, 7, v{vP}
    v_lshrrev_b32 v{vKo}, 4, v{vL}
    v_lshl_add_u32 v{vP}, v{vKo}, 10, v{vP}
    s_lshr_b32 s{sT1}, s2, 3
    s_mul_i32 s{sT1}, s{sT1}, {16*3072}
    s_mul_i32 s{sT0}, s{sGW}, {4*3072}
    s_add_u32 s{sT1}, s{sT1}, s{sT0}
    s_and_b32 s{sT0}, s2, 1
    s_lshl_b32 s{sT0}, s{sT0}, 9
    s_add_u32 s{sT1}, s{sT1}, s{sT0}
    s_lshr_b32 s{sNI}, s{sGW}, 1
    v_bfe_u32 v{vT2}, v{vL}, 2, 2
    v_lshlrev_b32 v{vTRp0}, 7, v{vT2}
    v_bfe_u32 v{vKo}, v{vL}, 4, 1
    v_lshl_add_u32 v{vTRp0}, v{vKo}, 5, v{vTRp0}
    v_lshl_add_u32 v{vTRp0}, v{vFl}, 3, v{vTRp0}
    v_lshrrev_b32 v{vH1}, 1, v{vT2}             ; r>>1
    v_lshrrev_b32 v{vO1}, 5, v{vL}              ; half
    v_xor_b32 v{vFl}, s{sNI}, v{vH1}
    v_lshl_add_u32 v{vTRn}, v{vFl}, 6, v{vTRp0}
    v_lshl_add_u32 v{vTRn}, v{vO1}, 10, v{vTRn}
    v_add_u32 v{vTRn}, {RB0}, v{vTRn}
    v_add_u32 v{vTRnH}, 65536, v{vTRn}
    v_and_b32 v{vRW}, 31, v{vL}
    v_mul_u32_u24 v{vXR}, {PIECE}, v{vO1}
    v_lshl_add_u32 v{vXR}, v{vRW}, 4, v{vXR}
    s_mul_i32 s{sT0}, s{sMI}, {64*PIECE}
    s_add_u32 s{sT0}, s{sT0}, {XT}
    v_add_u32 v{vXR}, s{sT0}, v{vXR}
    s_mov_b64 exec, {'0xffffffff' if opt.get('p1kv', 1) else '0xffff'}
    buffer_load_dword v143, v{vP}, {s(sWq,4)}, s{sT1} offen offset:1024
    s_mov_b64 exec, -1
    s_mov_b32 s3, 1
    s_setprio 1
    s_waitcnt vmcnt(1)
    s_branch L_ln
    """)
    GLATE = [x.strip() for x in (GUADDR + f"""
    s_mov_b32 s{sOut}, s22
    s_mov_b32 s{sOut+1}, s23
    s_mov_b32 s{sOut+2}, {S*D*2}
    s_mov_b32 s{sOut+3}, 0x00020000
    s_mov_b32 s{sWd+2}, {F*D*2}
    s_mov_b32 s{sWd+3}, 0x00020000
    s_mov_b32 s{sWo+2}, {D*D*2}
    s_mov_b32 s{sWo+3}, 0x00020000
    v_lshl_add_u32 v{vDd0}, v{vT0}, 10, v{vHF}
    v_add_u32 v{vDd1}, {8*1024-1024}, v{vDd0}
    s_lshl_b32 s{sT2}, s{sCG}, 7
    s_lshl_b32 s{sDoff}, s{sGW}, 14
    s_add_u32 s{sDoff}, s{sDoff}, s{sT2}
    s_lshl_b32 s{sOoffW}, s{sGW}, 17
    s_add_u32 s{sOoffW}, s{sOoffW}, s{sT2}
    s_lshl_b32 s{sXo}, s{sRB}, 16
    s_add_u32 s{sXo}, s{sXo}, s{sT2}
    s_and_b32 s{sNb}, s{sCG}, 3
    v_lshl_add_u32 v{vTRp0}, v{vH1}, 6, v{vTRp0}
    v_lshl_add_u32 v{vTRp0}, v{vO1}, 9, v{vTRp0}
    v_add_u32 v{vTRp0}, s{sM0}, v{vTRp0}
    s_lshl_b32 s{sT0}, s{sNI}, 6
    v_xor_b32 v{vTRp0}, s{sT0}, v{vTRp0}
    v_xor_b32 v{vTRp1}, 64, v{vTRp0}
    v_add_u32 v{vTRp0H}, 65536, v{vTRp0}
    v_add_u32 v{vTRp1H}, 65536, v{vTRp1}
    v_lshlrev_b32 v{vL128}, 7, v{vL}
    v_lshlrev_b32 v{vVo}, 16, v{vKo}
    v_lshl_add_u32 v{vVo}, v{vO1}, 8, v{vVo}
    v_and_b32 v{vT2}, 15, v{vL}
    v_lshl_add_u32 v{vVo}, v{vT2}, 4, v{vVo}
    v_add_u32 v{vVo}, {VF}, v{vVo}
    v_lshlrev_b32 v{vXo}, 10, v{vRW}
    v_lshl_add_u32 v{vXo}, v{vO1}, 3, v{vXo}
    v_lshl_add_u32 v{vRR}, v{vO1}, 3, v{vXo}
    s_lshl_b32 s{sT0}, s{sGW}, 12
    v_add_u32 v{vRW}, s{sT0}, v{vL16}
    s_and_b32 s{sKVs}, s2, 7
    s_lshl_b32 s{sKVs}, s{sKVs}, 2
    s_bfe_u32 s{sT0}, s2, 0x20003
    s_add_u32 s{sKVs}, s{sKVs}, s{sT0}
    s_lshl_b32 s{sKVs}, s{sKVs}, 16
    s_lshl_b32 s{sT0}, s{sNI}, 15
    s_add_u32 s{sKVs}, s{sKVs}, s{sT0}
    s_lshl_b32 s{sT0}, s{sMI}, 21
    s_add_u32 s{sKVs}, s{sKVs}, s{sT0}
    s_add_u32 s{sKVs}, s{sKVs}, {KF}
    s_mul_i32 s{sKVm}, s{sGW}, {RKV*1024}
    s_lshl_b32 s{sT0}, s{sMI}, 15
    s_add_u32 s{sXo}, s{sXo}, s{sT0}
    s_lshl_b32 s{sT0}, s{sNI}, 6
    s_add_u32 s{sXo}, s{sXo}, s{sT0}
    v_and_b32 v{vKo}, 0x33, v{vL}
    v_lshrrev_b32 v{vT2}, 1, v{vL}
    v_and_b32 v{vT2}, 4, v{vT2}
    v_lshlrev_b32 v{vO1}, 1, v{vL}
    v_and_b32 v{vO1}, 8, v{vO1}
    v_or3_b32 v{vKo}, v{vKo}, v{vT2}, v{vO1}
    v_lshlrev_b32 v{vKo}, 4, v{vKo}
    v_add_u32 v{vKo}, {KF}, v{vKo}
    s_mul_i32 s{sT0}, s{sMI}, {86*1024}
    v_add_u32 v{vH0}, s{sT0}, v{vL16}
    s_sub_u32 s{sT0}, {86*1024}, s{sT0}
    v_add_u32 v{vH1}, s{sT0}, v{vL16}
    s_lshl_b32 s{sT0}, s{sMI}, 15
    v_add_u32 v{vO0}, s{sT0}, v{vL16}
    v_xor_b32 v{vO1}, 32768, v{vO0}
    v_lshlrev_b32 v{vXR}, 10, v{vL}
    v_mov_b32 v{vT2}, 0
    v_mov_b32 v{vT0}, {hex(f2u(C1))}
    v_mov_b32 v{vT1}, {hex(f2u(C1))}
    s_lshl_b32 s{sT2}, s{sRB}, 1
    s_add_u32 s{sT2}, s{sT2}, s{sMI}
    s_mul_i32 s{sHst}, s{sT2}, {86*1024}
    s_lshl_b32 s{sT1}, s{sCG}, 1
    s_add_u32 s{sT1}, s{sT1}, s{sNI}
    s_lshl_b32 s{sFlag}, s{sT1}, 13
    s_lshl_b32 s{sT0}, s{sT2}, 7
    s_add_u32 s{sFlag}, s{sFlag}, s{sT0}
    s_add_u32 s{sFlag}, s{sFlag}, {FQ}
    s_lshl_b32 s{sT1}, s{sT1}, 17
    s_lshl_b32 s{sT2}, s{sT2}, 10
    s_add_u32 s{sSt}, s{sT1}, s{sT2}
    s_lshl_b32 s{sT0}, s{sBlk}, 12
    s_lshl_b32 s{sT1}, s{sNI}, 11
    s_add_u32 s{sHst}, s{sHst}, s{sT0}
    s_add_u32 s{sHst}, s{sHst}, s{sT1}
    s_add_u32 s{sHst}, s{sHst}, {HF}
    s_lshl_b32 s{sHld}, s{sRB}, 14
    s_add_u32 s{sHld}, s{sHld}, {FH}
    s_lshl_b32 s{sT0}, s{sCG}, 9
    s_lshl_b32 s{sT1}, s{sGW}, 7
    s_add_u32 s{sHfl}, s{sT0}, s{sT1}
    s_add_u32 s{sHfl}, s{sHfl}, s{sHld}
    s_mul_i32 s{sHb}, s{sRB}, {2*86*1024}
    s_lshl_b32 s{sT0}, s{sGW}, 10
    s_add_u32 s{sHb}, s{sHb}, s{sT0}
    s_add_u32 s{sHb}, s{sHb}, {HF}
    s_mov_b32 s{sC}, {hex(f2u(QSCALE))}
    s_mov_b32 s{sC+1}, {hex(f2u(QSCALE))}
    """).split("\n") if x.strip()]
    vK, vV, vIdx, vAF, vPF, vF = 10, 11, 12, 13, 14, 15
    M, C, SB = 6, 16, 80
    aOnes, aPF, aP3, aPKV, aL128, aGo = 24, 25, 26, 27, 28, 29
    O, Q, KS = 0, 64, 104
    KRG = [("a", 80), ("a", 92)]
    VRG = [("a", 84), ("a", 96)]
    def rg(x, off=0, n=4): return (a if x[0] == "a" else v)(x[1] + off, n)
    def zero_o(n=64):
        for i in range(n): A(f"v_accvgpr_write_b32 a{O+i}, 0")
    A.label("L_pre_a")
    if opt.get("pretouch"):
        A(f"""
        s_mov_b32 s{sOut}, s22
        s_mov_b32 s{sOut+1}, s23
        s_mov_b32 s{sOut+2}, {S*D*2}
        s_mov_b32 s{sOut+3}, 0x00020000
        s_mov_b32 s{sWd+2}, {F*D*2}
        s_mov_b32 s{sWd+3}, 0x00020000
        s_mov_b32 s{sWo+2}, {D*D*2}
        s_mov_b32 s{sWo+3}, 0x00020000
        v_lshlrev_b32 v{vF}, 21, v{vL}
        s_lshl_b32 s{sT0}, s2, 7
        s_cmp_lg_u32 s{sMI}, 0
        s_cbranch_scc1 L_pt1
        s_mov_b64 exec, 0x1fff
        buffer_load_dword v143, v{vF}, {ws}, s{sT0} offen sc1
        s_mov_b64 exec, 1
        buffer_load_dword v143, v{vF}, {s(sWgu,4)}, s{sT0} offen
        s_branch L_pt2
        L_pt1:
        s_mov_b64 exec, 1
        buffer_load_dword v143, v{vF}, {s(sOut,4)}, s{sT0} offen sc1
        buffer_load_dword v143, v{vF}, {s(sWd,4)}, s{sT0} offen
        buffer_load_dword v143, v{vF}, {s(sWo,4)}, s{sT0} offen
        L_pt2:
        s_mov_b64 exec, -1
        """)
    A(f"""
    v_mov_b32 v{vF}, 0
    ds_write_b32 v{vCnt}, v{vF}
    ds_write_b32 v{vCnt}, v{vF} offset:512
    ds_write_b32 v{vCnt}, v{vF} offset:1024
    v_add_u32 v{vCnt}, 1024, v{vCnt}
    v_lshlrev_b32 v{aGo}, 2, v{vL}
    s_lshl_b32 s{sT0}, s{sWave}, 9
    s_add_u32 s{sT0}, s{sT0}, {AFL}
    v_add_u32 v{vAF}, s{sT0}, v{aGo}
    s_xor_b32 s{sT0}, s{sWave}, 2
    s_lshl_b32 s{sT0}, s{sT0}, 9
    s_add_u32 s{sT0}, s{sT0}, {AFL}
    v_add_u32 v{vPF}, s{sT0}, v{aGo}
    v_add_u32 v{aGo}, {GO}, v{aGo}
    ds_write_b32 v{vAF}, v{vF}
    ds_write_b32 v{vAF}, v{vF} offset:256
    ds_write_b32 v{aGo}, v{vF}
    v_mul_u32_u24 v{vDq0}, 3072, v{vT0}
    v_add_u32 v{vDq0}, v{vDq0}, v{vHF}
    v_add_u32 v{vDq1}, {8*3072-1024}, v{vDq0}
    s_mul_i32 s{sQoff}, s{sGW}, {32*3072}
    s_lshl_b32 s{sT2}, s{sCG}, 7
    s_add_u32 s{sQoff}, s{sQoff}, s{sT2}
    v_bfe_u32 v{aP3}, v{vL}, 2, 2
    v_mul_u32_u24 v{aP3}, 3072, v{aP3}
    v_lshl_add_u32 v{aP3}, v{vFl}, 7, v{aP3}
    v_bfe_u32 v{aPF}, v{vL}, 4, 1
    v_xor_b32 v{aPF}, 1, v{aPF}
    v_lshl_add_u32 v{aP3}, v{aPF}, 11, v{aP3}
    s_lshr_b32 s7, s2, 3
    s_lshl_b32 s7, s7, 2
    s_add_u32 s7, s7, s{sWave}
    s_mul_i32 s7, s7, {4*3072}
    s_and_b32 s{sT0}, s2, 1
    s_lshl_b32 s{sT0}, s{sT0}, 9
    s_add_u32 s7, s7, s{sT0}
    s_and_b32 s{sT0}, s{sCG}, 3
    s_cmp_eq_u32 s{sT0}, 3
    s_addc_u32 s{sBlk}, s{sBlk}, 0
    v_lshrrev_b32 v30, 1, v{vL}
    v_mul_u32_u24 v30, 2752, v30
    v_and_b32 v31, 1, v{vL}
    v_mul_u32_u24 v31, 124, v31
    v_add_u32 v30, v30, v31
    s_and_b32 s68, s{sRB}, 7
    s_lshl_b32 s68, s68, 1
    s_add_u32 s68, s68, s{sMI}
    s_mul_i32 s68, s68, {16*2752}
    s_lshl_b32 s{sT0}, s{sBlk}, 7
    s_add_u32 s68, s68, s{sT0}
    s_or_b32 s{sT1}, s2, s{sWave}
    s_cmp_lg_u32 s{sT1}, 0
    s_cbranch_scc1 L_pre_a2
    s_memrealtime s[4:5]
    s_waitcnt lgkmcnt(0)
    s_or_b32 s4, s4, 1
    v_mov_b32 v{vIdx}, s4
    buffer_store_dword v{vIdx}, v{vF}, {s(sDbg,4)}, 0 offen sc1
    """)
    A.label("L_pre_a2")
    if opt.get("pall"):
        A(f"""
        s_mov_b32 s{sWd+2}, {F*D*2}
        s_mov_b32 s{sWd+3}, 0x00020000
        s_mov_b32 s{sWo+2}, {D*D*2}
        s_mov_b32 s{sWo+3}, 0x00020000
        v_mul_u32_u24 v141, 2752, v{vL}
        s_and_b32 s{sT0}, s{sRB}, 7
        s_mul_i32 s{sT0}, s{sT0}, {64*2752}
        s_mul_i32 s{sT1}, s{sCG}, 384
        s_add_u32 s{sT0}, s{sT0}, s{sT1}
        s_mul_i32 s{sT1}, s{sMI}, 124
        s_add_u32 s{sT1}, s{sT0}, s{sT1}
        buffer_load_dword v143, v141, {s(sWgu,4)}, s{sT1} offen
        s_lshl_b32 s{sT1}, s{sMI}, 7
        s_add_u32 s{sT1}, s{sT0}, s{sT1}
        buffer_load_dword v143, v141, {s(sWgu,4)}, s{sT1} offen offset:252
        v_lshlrev_b32 v142, 10, v{vL}
        s_and_b32 s{sT0}, s{sRB}, 7
        s_lshl_b32 s{sT1}, s{sCG}, 7
        s_mul_i32 s{sT2}, s{sT0}, {172*1024}
        s_add_u32 s{sT2}, s{sT2}, s{sT1}
        s_lshl_b32 s4, s{sGW}, 16
        s_add_u32 s{sT2}, s{sT2}, s4
        buffer_load_dword v143, v142, {s(sWd,4)}, s{sT2} offen
        s_lshl_b32 s{sT0}, s{sT0}, 16
        s_add_u32 s{sT0}, s{sT0}, s{sT1}
        buffer_load_dword v143, v142, {s(sWo,4)}, s{sT0} offen
        s_waitcnt vmcnt(0)
        s_sleep 40
        """)
    A("s_mov_b32 s3, 0\ns_waitcnt vmcnt(%d)" % (2 if opt.get("pretouch") else 0))
    NEARLY = opt.get("nearly", 2)
    for g in range(NEARLY): dma(*ddq(g))
    if NEARLY > opt.get("p1at", 3):
        A(f"s_mov_b64 exec, {'0xffff0000' if opt.get('p1kv', 1) else '0xffffffff'}\nbuffer_load_dword v143, v{aP3}, {s(sWq,4)}, s7 offen")
        if opt.get("p2early", 1): A(f"s_mov_b64 exec, {PF2MASK}\nbuffer_load_dword v143, v30, {s(sWgu,4)}, s68 offen")
        A("s_mov_b64 exec, -1")
    vmq.clear()
    A.label("L_ln")
    ST()
    SA, TT, vXW = 104, 80, 112
    A(f"""
    s_mov_b32 s4, 0x3f803f80
    s_mov_b32 s5, 0x00003f80
    s_mov_b32 s6, 0x3f800000
    """)
    for i in range(32):
        a1 = SA + (i & 1); a2 = SA + 2 + (i & 1)
        A(f"v_dot2_f32_bf16 v{a1}, v{R+i}, s4, {'0' if i < 2 else 'v%d' % a1}")
        A(f"v_dot2_f32_bf16 v{a2}, v{R+i}, v{R+i}, {'0' if i < 2 else 'v%d' % a2}")
    m_, q_, mb_, rs_ = SA, SA + 2, SA + 4, SA + 6
    A(f"""
    s_lshr_b32 s{sT0}, s{sWave}, 2
    s_mul_i32 s{sT0}, s{sT0}, {64*PIECE}
    s_lshl_b32 s{sT1}, s{sGW}, 7
    v_add_f32 v{m_}, v{m_}, v{m_+1}
    v_add_f32 v{q_}, v{q_}, v{q_+1}
    s_add_u32 s{sT0}, s{sT0}, s{sT1}
    v_add_f32_dpp v{m_}, v{m_}, v{m_} quad_perm:[1,0,3,2] row_mask:0xf bank_mask:0xf
    v_add_f32_dpp v{q_}, v{q_}, v{q_} quad_perm:[1,0,3,2] row_mask:0xf bank_mask:0xf
    s_add_u32 s{sT0}, s{sT0}, {XT}
    v_add_f32_dpp v{m_}, v{m_}, v{m_} quad_perm:[2,3,0,1] row_mask:0xf bank_mask:0xf
    v_add_f32_dpp v{q_}, v{q_}, v{q_} quad_perm:[2,3,0,1] row_mask:0xf bank_mask:0xf
    v_mul_u32_u24 v{vXW}, {PIECE}, v{vT1}
    v_add_f32_dpp v{m_}, v{m_}, v{m_} row_half_mirror row_mask:0xf bank_mask:0xf
    v_add_f32_dpp v{q_}, v{q_}, v{q_} row_half_mirror row_mask:0xf bank_mask:0xf
    v_mul_f32 v{m_}, {hex(f2u(1.0/512))}, v{m_}
    v_mul_f32 v{q_}, {hex(f2u(1.0/512))}, v{q_}
    v_cvt_pk_bf16_f32 v{mb_}, v{m_}, v{m_}
    v_fma_f32 v{q_}, -v{m_}, v{m_}, v{q_}
    v_and_b32 v{mb_}, 0xffff0000, v{mb_}
    v_max_f32 v{q_}, 0, v{q_}
    v_xor_b32 v{mb_}, 0x80000000, v{mb_}
    v_cvt_pk_bf16_f32 v{q_}, v{q_}, v{q_}
    v_and_b32 v{q_}, 0xffff0000, v{q_}
    v_add_f32 v{q_}, {hex(f2u(1e-5))}, v{q_}
    v_cvt_pk_bf16_f32 v{q_}, v{q_}, v{q_}
    v_and_b32 v{q_}, 0xffff0000, v{q_}
    v_sqrt_f32 v{q_}, v{q_}
    v_lshl_add_u32 v{vXW}, v{vT0}, 4, v{vXW}
    v_cvt_pk_bf16_f32 v{q_}, v{q_}, v{q_}
    v_and_b32 v{q_}, 0xffff0000, v{q_}
    v_rcp_f32 v{rs_}, v{q_}
    v_rcp_f32 v{rs_+1}, v{q_}
    v_add_u32 v{vXW}, s{sT0}, v{vXW}
    """)
    for cb in range(8):
        t = TT + 8 * (cb & 1); r = R + 4 * cb
        for e in range(4):
            A(f"v_dot2_f32_bf16 v{t+2*e}, v{r+e}, s5, v{mb_}")
            A(f"v_dot2_f32_bf16 v{t+2*e+1}, v{r+e}, s6, v{mb_}")
        if cb > 0: A(f"ds_write_b128 v{vXW}, {v(R+4*(cb-1),4)} offset:{(cb-1)*8*PIECE}")
        else: A("s_nop 0")
        for e in range(4): A(f"v_pk_mul_f32 {v(t+2*e,2)}, {v(t+2*e,2)}, {v(rs_,2)}")
        for e in range(4): A(f"v_cvt_pk_bf16_f32 v{r+e}, v{t+2*e}, v{t+2*e+1}")
    A(f"ds_write_b128 v{vXW}, {v(R+28,4)} offset:{7*8*PIECE}")
    A("s_cmp_eq_u32 s3, 0\ns_cbranch_scc1 L_attn")

    def get_tag(vt, vz, lbl):
        A(f"v_mov_b32 v{vz}, 0")
        A.label(lbl)
        A(f"""
        buffer_load_dword v{vt}, v{vz}, {s(sDbg,4)}, 0 offen sc1
        s_waitcnt vmcnt(0)
        v_readfirstlane_b32 s{sTag}, v{vt}
        """)
        timeout_exit(lbl + "_x")
        A(f"s_cmp_eq_u32 s{sTag}, 0\ns_cbranch_scc1 {lbl}")
        A.label(lbl + "_x")
    def spin_flags(lbl, vf, voff, soff, nlanes, sleep=4):
        A.label(lbl)
        A(f"""
        s_mov_b64 exec, {emask(nlanes)}
        buffer_load_dword v{vf}, v{voff}, {ws}, s{soff} offen sc1
        s_waitcnt vmcnt(0)
        v_cmp_ne_u32 vcc, s{sTag}, v{vf}
        s_mov_b64 exec, -1
        s_cbranch_vccz {lbl}_x
        """)
        timeout_exit(lbl + "_x")
        A(f"s_sleep {sleep}\ns_branch {lbl}")
        A.label(lbl + "_x")
    def lds_spin(lbl, vdst, vaddr, off, cmp, sleep=0):
        A.label(lbl)
        A(f"ds_read_b32 v{vdst}, v{vaddr} offset:{off}\ns_waitcnt lgkmcnt(0)\n{cmp}\ns_cbranch_vccz {lbl}_x")
        timeout_exit(lbl + "_x")
        if sleep: A(f"s_sleep {sleep}")
        A(f"s_branch {lbl}")
        A.label(lbl + "_x")

    def xn(ks): return a(4 * ks, 4) if ks < 28 else v(96 + 4 * (ks - 28), 4)
    def xread(ks): lds(f"ds_read_b128 {xn(ks)}, v{vXR} offset:{2*ks*PIECE}", "xn")
    def check(fresh, off=0, need=None, sleep=1, reg=None, tag="poll"):
        l = lab("chk"); nd = f"s{sNeed}" if need is None else str(need)
        vP = reg if reg is not None else 20
        cmp = f"v_cmp_gt_u32 vcc, {nd}, v{vP}"
        if lowprio[0]: cmp = f"s_setprio 3\n{cmp}\ns_setprio 0"
        if fresh:
            lds(f"ds_read_b32 v{vP}, v{vCntR} offset:{off}", tag)
        lwait(tag)
        A(f"{cmp}\ns_cbranch_vccnz {l}")
        A.label(l + "_x")
        def sp():
            A.label(l)
            A(f"ds_read_b32 v{vP}, v{vCntR} offset:{off}\ns_waitcnt lgkmcnt(0)\n{cmp}\ns_cbranch_vccz {l}_x")
            timeout_exit(l + "_x")
            if lp or sleep > 1: A(f"s_sleep {sleep}")
            A(f"s_branch {l}")
        lp = lowprio[0]
        slow.append(sp)
        if need is None: A(f"s_add_u32 s{sNeed}, s{sNeed}, 1")
    def segment(stages, hooks=None, LA=opt.get('la', 5)):
        hooks = hooks or {}
        NB = len(WFB); assert NB >= LA + 1
        flat = [(si, fi, fr) for si, st in enumerate(stages) for fi, fr in enumerate(st["frags"])]
        sq = []
        for i in range(len(flat) + LA):
            if i < len(flat):
                si, fi, fr = flat[i]; st = stages[si]; nfr = len(st["frags"])
                if fi == 0:
                    assert not sq
                    if "label" in st: A.label(st["label"])
                    if opt.get("atrace") and lowprio[0]:
                        A(f"s_waitcnt lgkmcnt(0)\ns_mov_b32 s99, m0\ns_mov_b32 m0, s0\ns_add_u32 s0, s0, 1\ns_setprio 3\nv_writelane_b32 v31, s100, m0\ns_setprio {0 if lowprio[0] else 1}\ns_memrealtime s[100:101]\ns_mov_b32 m0, s99"); lq.clear()
                    if st["sync"]: check(si == 0, *st.get("chk", ()))
                    if "pre" in st: st["pre"]()
                    sq += st["pieces"]
                lo, hi, o0, o1, _ = fr
                base = st["slot"] * SLOT; reg = lo
                if base >= 65536: base -= 65536; reg = hi
                w = WFB[i % NB]
                lds(f"ds_read_b64_tr_b16 {v(w,2)}, v{reg} offset:{base+o0}", ("fr", i))
                lds(f"ds_read_b64_tr_b16 {v(w+2,2)}, v{reg} offset:{base+o1}", ("fr", i))
                if fi == st.get("waitat", st.get("pubat", 2)) and st["nxt"] is not None: vwait(st["nxt"])
                if fi == st.get("pubat", 2) and st["pub"]: lds(f"ds_add_u32 v{vCnt}, v{vOne}", "add")
                if len(sq) * 2 > (nfr - fi) or fi % 2 == 0:
                    k = -(-len(sq) // (nfr - fi))
                    for _ in range(k): sq.pop(0)()
                if fi == nfr - 2 and si + 1 < len(stages) and stages[si + 1]["sync"]:
                    lds(f"ds_read_b32 v{vP}, v{vCntR} offset:{stages[si + 1].get('chk', (0,))[0]}", "poll")
                if (si, fi) in hooks: hooks[(si, fi)]()
            j = i - LA
            if j >= 0:
                if opt.get("pairw", 1) and j % 2 == 0 and lq.need(("fr", j + 1)) is not None and len(flat[j][2][4]) == 1: lwait(("fr", j + 1))
                lwait(("fr", j))
                for m in flat[j][2][4]:
                    if callable(m): m()
                    elif opt.get("xnogm") and lowprio[0]: A("s_nop 7")
                    else: A(m.format(w=v(WFB[j % NB], 4)))
    if F0: ST()
    A("s_waitcnt lgkmcnt(0)\ns_barrier")
    ST()
    if opt.get("atrace"): A(f"s_mov_b32 s0, 0\ns_memrealtime s[100:101]")
    for ks in range(8): xread(ks)
    def qkv_epi(p):
        acc = (ACC0, ACC1, ACC0)[p]; pk = TMP + 8 * p
        def f():
            if p == 2:
                for i in range(8): A(f"v_pk_mul_f32 {v(acc+2*i,2)}, {v(acc+2*i,2)}, {s(sC,2)}")
            for i in range(8): A(f"v_cvt_pk_bf16_f32 v{pk+i}, v{acc+2*i}, v{acc+2*i+1}")
            if p == 1:
                A(f"buffer_store_dwordx4 {v(pk,4)}, v{vVo}, {ws}, s{sSt} offen sc1")
                A(f"buffer_store_dwordx4 {v(pk+4,4)}, v{vVo}, {ws}, s{sSt} offen offset:512 sc1")
            else:
                vo = vKo if p == 0 else vL16
                A(f"s_add_u32 s{sT0}, s{sSt}, 65536")
                A(f"buffer_store_dwordx4 {v(pk,4)}, v{vo}, {ws}, s{sSt} offen sc1")
                A(f"buffer_store_dwordx4 {v(pk+4,4)}, v{vo}, {ws}, s{sT0} offen sc1")
            vmq.push("st", 2)
        return f
    stages = []
    for q in range(12):
        p, part = divmod(q, 4); acc = v((ACC0, ACC1, ACC0)[p], 16)
        frags = []
        for kk in range(8):
            ks = part * 8 + kk; c = "0" if ks == 0 else acc
            m = f"{MF} {acc}, {xn(ks)}, {{w}}, {c}" if p == 1 else f"{MF} {acc}, {{w}}, {xn(ks)}, {c}"
            frags.append((vTRn, vTRnH, kk * 2048, kk * 2048 + 512, [m]))
        stages.append(dict(slot=q % 8, frags=frags, pieces=[], nxt=None, sync=True, pub=(q >= 1), pubat=0, chk=(1024, q + 1)))
    hooks = {(0, fi): (lambda fi=fi: [xread(8 + 3 * fi + e) for e in range(3)]) for fi in range(8)}
    def epi_items(p):
        acc = (ACC0, ACC1)[p]; pk = TMP + 8 * p
        L = [f"v_cvt_pk_bf16_f32 v{pk+i}, v{acc+2*i}, v{acc+2*i+1}" for i in range(8)]
        if p == 1:
            L += [f"buffer_store_dwordx4 {v(pk,4)}, v{vVo}, {ws}, s{sSt} offen sc1", f"buffer_store_dwordx4 {v(pk+4,4)}, v{vVo}, {ws}, s{sSt} offen offset:512 sc1"]
        else:
            L += [f"buffer_store_dwordx4 {v(pk,4)}, v{vKo}, {ws}, s{sSt} offen sc1", f"buffer_store_dwordx4 {v(pk+4,4)}, v{vKo}, {ws}, s{sD1} offen sc1",
                  f"buffer_load_dword v{vFl}, v{vT2}, {s(sDbg,4)}, 0 offen sc1"]
        return L
    GLATE.append(f"s_add_u32 s{sD1}, s{sSt}, 65536")
    n1 = len(GLATE)
    slots1 = [(q, fi) for q in range(1, 7) for fi in range(8) if (q, fi) not in ((1, 0), (4, 0), (5, 0), (6, 0))]
    plan = {}
    for k, it in enumerate(GLATE): plan.setdefault(slots1[k * len(slots1) // n1], []).append(it)
    for p, q0 in ((0, 7), (1, 9)):
        sl = [(q, fi) for q in (q0, q0 + 1) for fi in range(1, 8)][(0 if p == 0 else 2):]
        its = epi_items(p)
        sl = [x_ for x_ in sl for _ in range(2)] if p == 0 else sl
        for k, it in enumerate(its): plan.setdefault(sl[k], []).append(it)
    if opt.get("xnofill"):
        for x in GLATE:
            if "v31," not in x: A(x.replace("|", "\n"))
        plan = {k_: [i_ for i_ in its if i_ not in GLATE] for k_, its in plan.items()}
    for k_, its in plan.items():
        hooks[k_] = (lambda its=its: [A(x.replace("|", "\n")) for x in its])
    GLATE = []
    if stamps:
        for q in ((1, 4, 5, 6, 7, 8, 9, 10, 11) if FR else (1, 4, 8)): hooks[(q, 0)] = ST
    segment(stages, hooks)
    assert not GLATE
    A(f"s_waitcnt vmcnt(2)\nv_readfirstlane_b32 s{sTag}, v{vFl}\ns_nop 9")
    qkv_epi(2)()
    ST()
    A(f"s_cmp_lg_u32 s{sTag}, 0\ns_cbranch_scc1 L_gtag_x")
    get_tag(vFl, vT2, "L_gtag")
    A(f"""
    s_mov_b32 s{sC}, {hex(f2u(C2))}
    s_mov_b32 s{sC+1}, {hex(f2u(C2))}
    v_mov_b32 v{vFl}, s{sTag}
    s_waitcnt vmcnt(0)
    s_mov_b64 exec, 1
    buffer_store_dword v{vFl}, v{vT2}, {ws}, s{sFlag} offen sc1
    s_mov_b64 exec, -1
    """)
    ST()
    if FR: again(); ST.flush(ws, STAMP, sWave, 2, 3, sT0); A("s_endpgm"); ST.on = False
    if opt.get("gexit"): A(f"ds_add_u32 v{vCnt}, v{vOne}\ns_waitcnt lgkmcnt(0)\ns_endpgm")
    LOOK = opt.get("look", 4)
    check(True, 1024, 12 + NG0)
    lds(f"ds_add_u32 v{vCnt}, v{vOne}", "add")
    A(f"s_mov_b32 s{sNeed}, 12\ns_setprio 0")
    lowprio[0] = True
    def gslot(g): return 2 + (g + 2) % 6
    def ffn_dd(g):
        if g < 24: return ("g", g, gslot(g))
        if g < 35: return ("d", g - 24, gslot(g))
        return ("o", g - 35, gslot(g))
    E0 = 8
    vP2 = vVo
    G2 = opt.get("g2", 1)
    def kneed(k):
        if not G2: return k + 8
        step = k - RKV
        return 18 if step == 0 else 19 + step // 2
    def kv_poll(): lds(f"ds_read_b32 v{vP2}, v{vCntR} offset:1024", "poll2")
    def kv_issue(k, fresh=False):
        check(fresh, 1024, kneed(k), sleep=opt.get('ksleep', 4), reg=vP2, tag="poll2")
        A(f"s_add_u32 m0, s{sKVm}, {((k + E0) % RKV) * 1024}\ns_add_u32 s{sT0}, s{sKVs}, {k*1024}")
        A(f"buffer_load_dwordx4 v{vL16}, {ws}, s{sT0} offen sc1 lds"); vmq.push(("kv", k))
    def kv_pub(k):
        vwait(("kv", k))
        for _ in range((3 if G2 else 2) if k == 31 else 1): lds(f"ds_add_u32 v{vCnt}, v{vOne} offset:512", "add")
    S0 = opt.get("s0", 4); KLAG = opt.get("klag", 2)
    A(f"s_cmp_lg_u32 s{sNb}, 3\ns_cbranch_scc1 L_ffn")
    check(True, 1024, 12 + NG0 + 1)
    vmq.clear()
    kvs = [RKV + st - S0 for st in range(S0, 8)]; npub = max(0, 8 - KLAG - S0); done = []
    def light_kv():
        nonlocal npub
        if done and npub: kv_pub(done.pop(0)); npub -= 1
        if kvs: k = kvs.pop(0); kv_issue(k, True); done.append(k)
    if opt.get("pfw", 1):
        P = [0, 128, 384, 512, 768, 896, 256, 640, 1024, 1152, 1280, 1404][:2 * opt.get('npf', 6)]
        PCAP = opt.get("pcap", 1)
        A(f"""
        s_setprio 3
        v_mul_u32_u24 v{TMP}, 2752, v{vL}
        s_setprio 0
        s_and_b32 s4, s{sRB}, 7
        s_mul_i32 s5, s4, {64*2752}
        s_lshr_b32 s6, s{sCG}, 2
        s_mul_i32 s7, s6, 1408
        s_add_u32 s5, s5, s7
        """)
        for i in range(len(P) // 2):
            lo_, hi_ = sorted(P[2*i:2*i+2])
            A(f"s_mul_i32 s{sT0}, s{sMI}, {hi_-lo_}\ns_add_u32 s{sT0}, s{sT0}, s5")
            A(f"buffer_load_dword v143, v{TMP}, {s(sWgu,4)}, s{sT0} offen offset:{lo_}\ns_waitcnt vmcnt({PCAP})")
            vmq.push("pf"); vmq.waited(PCAP)
            if i >= 2: light_kv()
    for g in range(8, 8 + LOOK): dma(*ffn_dd(g))
    while kvs or (done and npub): light_kv()
    A("s_waitcnt vmcnt(0)")
    lds(f"ds_add_u32 v{vCnt}, v{vOne}", "add")
    A(f"s_add_u32 s{sNeed}, s{sNeed}, 1\ns_setprio 3\nv_mov_b32 v{vP}, 0\nv_mov_b32 v{vP2}, 0\ns_setprio 0")
    A("s_branch L_ffn8")
    A.label("L_ffn")
    vmq.clear(); lq.clear()
    T1, U1 = TMP, [88, 90, 92, 94, 128, 130, 132, 134]
    AD1 = [v(40, 16), v(56, 16), v(96, 16), a(96, 16)]
    def gelu1():
        G, U = ACC0, ACC1
        A("s_setprio 3\ns_nop 9")
        for i in range(8): A(f"v_pk_mul_f32 {v(T1+2*i,2)}, {v(G+2*i,2)}, {v(G+2*i,2)}")
        for i in range(8): A(f"v_pk_fma_f32 {v(T1+2*i,2)}, {v(T1+2*i,2)}, {s(sC,2)}, {v(vT0,2)}")
        for i in range(8): A(f"v_pk_mul_f32 {v(U1[i],2)}, {v(U+2*i,2)}, {v(G+2*i,2)}")
        for i in range(8): A(f"v_pk_mul_f32 {v(T1+2*i,2)}, {v(T1+2*i,2)}, {v(G+2*i,2)}")
        A("s_setprio 0")
    def gelu2_groups(b):
        L = [f"v_exp_f32 v{T1+i}, v{T1+i}" for i in range(16)]
        L += [f"v_pk_add_f32 {v(T1+2*i,2)}, {v(T1+2*i,2)}, 1.0 op_sel_hi:[1,0]" for i in range(8)]
        L += [f"v_rcp_f32 v{T1+i}, v{T1+i}" for i in range(16)]
        L += [f"v_pk_mul_f32 {v(U1[i],2)}, {v(U1[i],2)}, {v(T1+2*i,2)}" for i in range(8)]
        L += [f"v_cvt_pk_bf16_f32 v{T1+i}, v{U1[i]}, v{U1[i]+1}" for i in range(8)]
        sizes = [4, 4, 4, 4, 8, 4, 4, 4, 4, 8, 8]
        G_ = []
        for n in sizes:
            grp = L[:n]; L = L[n:]
            G_.append(lambda grp=grp: A("s_setprio 3\n" + "\n".join(grp) + "\ns_setprio 0"))
        def store():
            l = lab("hskip")
            if b == 0: A(f"s_cmp_eq_u32 s{sNb}, 3\ns_cbranch_scc1 {l}")
            if b == 2: A(f"s_add_u32 s{sT0}, s{sCG}, s{sNI}\ns_cmp_eq_u32 s{sT0}, 8\ns_cbranch_scc1 {l}")
            A(f"s_add_u32 s{sT0}, s{sHst}, {b*4096}")
            A(f"buffer_store_dwordx4 {v(T1,4)}, v{vL16}, {ws}, s{sT0} offen sc1")
            A(f"buffer_store_dwordx4 {v(T1+4,4)}, v{vL16}, {ws}, s{sT0} offen offset:1024 sc1")
            A.label(l)
            vmq.since = 0
        return G_ + [store]
    def send_flag(b):
        def f():
            n = min(vmq.since, 63)
            A(f"s_waitcnt vmcnt({n})"); vmq.waited(n)
            A(f"s_add_u32 s{sT0}, s{sHfl}, {b*4096}\ns_mov_b64 exec, 1\nbuffer_store_dword v{vFl}, v{vT2}, {ws}, s{sT0} offen sc1\ns_mov_b64 exec, -1")
        return f
    NH = 12
    def hload(t):
        b = 8 * (t % NH)
        if DSEQ[t] == 21:
            A(f"s_and_b32 s{sT2}, s{sGW}, 2\ns_lshl_b32 s{sT2}, s{sT2}, 10\ns_sub_u32 s{sT2}, s{sHb}, s{sT2}\ns_add_u32 s{sT2}, s{sT2}, {DSEQ[t]*4096}")
        else:
            A(f"s_add_u32 s{sT2}, s{sHb}, {DSEQ[t]*4096}")
        A(f"buffer_load_dwordx4 {a(b,4)}, v{vH0}, {ws}, s{sT2} offen sc1")
        A(f"buffer_load_dwordx4 {a(b+4,4)}, v{vH1}, {ws}, s{sT2} offen sc1")
        vmq.push(("h", t), 2)
    def hflag_issue(c):
        A(f"s_add_u32 s{sT2}, s{sHld}, {c*4096}\ns_mov_b64 exec, {hex(CMASK[c])}")
        A(f"buffer_load_dword v{vHF}, v{vL128}, {ws}, s{sT2} offen sc1\ns_mov_b64 exec, -1")
        vmq.push(("hf", c))
    def hflag_check(c):
        vwait(("hf", c))
        l = f"L_hf{c}"
        A(f"s_setprio 3\nv_cmp_ne_u32 vcc, s{sTag}, v{vHF}\ns_setprio 0\ns_and_b32 vcc_lo, vcc_lo, {hex(CMASK[c])}\ns_cbranch_scc1 {l}_s")
        A.label(l + "_b")
        def sp():
            A.label(l + "_s")
            A(f"s_add_u32 s{sT2}, s{sHld}, {c*4096}\ns_setprio 3")
            spin_flags(l, vHF, vL128, sT2, hex(CMASK[c]), sleep=8)
            A(f"s_setprio 0\ns_branch {l}_b")
        slow.append(sp)
    def p4(ni):
        def f():
            l = lab("p4")
            A(f"""
            s_cmp_lg_u32 s{sNI}, {ni}
            s_cbranch_scc1 {l}_x
            s_and_b32 s{sT0}, s{sRB}, 7
            s_lshl_b32 s{sT1}, s{sCG}, 7
            s_cmp_eq_u32 s{sGW}, 3
            s_cbranch_scc1 {l}_o
            s_mul_i32 s{sT0}, s{sT0}, {172*1024}
            s_add_u32 s{sT0}, s{sT0}, s{sT1}
            s_lshl_b32 s{sT1}, s{sGW}, 16
            s_add_u32 s{sT0}, s{sT0}, s{sT1}
            buffer_load_dword v143, v{vXR}, {s(sWd,4)}, s{sT0} offen
            s_branch {l}_x
            """)
            A.label(l + "_o")
            A(f"s_lshl_b32 s{sT0}, s{sT0}, 16\ns_add_u32 s{sT0}, s{sT0}, s{sT1}\nbuffer_load_dword v143, v{vXR}, {s(sWo,4)}, s{sT0} offen")
            A.label(l + "_x")
        return f
    allp = []
    for g in range(NG0, 39): allp += [(g, p) for p in dma_pieces(*ffn_dd(g))]
    T0 = opt.get("t0", 2 if NG0 >= 4 else NG0 - 1); RATE = opt.get("rate", 6)
    NE = opt.get("ne", 0)
    early = [[allp.pop(0)[1] for _ in range(4)] for _ in range(NE)]
    prep_ = []
    while allp[0][0] <= T0 + 1: prep_.append(allp.pop(0)[1])
    sched = []
    for st in range(35):
        take = []
        if st < NE: take = early[st]; assert st < T0
        if st >= T0:
            while allp and allp[0][0] <= st + LOOK and len(take) < RATE: take.append(allp.pop(0)[1])
        sched.append(take)
        if st == 7 and not FR: assert allp[0][0] == 8 + LOOK and len([1 for g, _ in allp if g == 8 + LOOK]) == 4
    assert not allp
    stages = []
    post = {}
    for st in range(35):
        frags = []
        if st < 24:
            for kk in range(4):
                ks = (st % 8) * 4 + kk
                for p, acc in enumerate((ACC0, ACC1)):
                    c = "0" if ks == 0 else v(acc, 16)
                    frags.append((vTRn, vTRnH, p * 8192 + kk * 2048, p * 8192 + kk * 2048 + 512, [f"{MF} {v(acc,16)}, {{w}}, {xn(ks)}, {c}"]))
        else:
            for kk in range(2):
                t = 2 * (st - 24) + kk; b = 8 * (t % NH)
                for ni, (lo, hi) in enumerate(((vTRp0, vTRp0H), (vTRp1, vTRp1H))):
                    ms = [(lambda t=t: vwait(("h", t)))] if ni == 0 else []
                    for mi in range(2):
                        d = AD1[2 * ni + mi]; c = "0" if t == 0 else d
                        ms.append(f"{MF} {d}, {{w}}, {a(b+4*mi,4)}, {c}")
                    frags.append((lo, hi, kk * 2048, kk * 2048 + 1024, ms))
        nx = ffn_dd(st + 1)
        stages.append(dict(slot=gslot(st), frags=frags, pieces=sched[st], nxt=("dma", nx[0], nx[1]),
                           sync=(st <= 25), pub=(st <= 24), pubat=(0 if st >= 23 else opt.get("pubat", 2)),
                           waitat=(3 if st >= 24 else (6 if st == 23 else opt.get("pubat", 2)))))
    assert LOOK <= 4
    stages[T0]["pre"] = lambda: (check(True, 1024, 12 + NG0 + 1) if opt.get("thr", 1) else None, [p_() for p_ in prep_])
    stages[8]["label"] = "L_ffn8"
    GATE = opt.get("gate", 31); GR_ = opt.get("gater", 17 if G2 else 33)
    if GATE:
        def gate():
            A("s_waitcnt lgkmcnt(0)"); lq.clear()
            for st_ in range(GATE, GATE + 2):
                if st_ < 35:
                    for p_ in stages[st_]["pieces"]: p_()
                    stages[st_]["pieces"] = []
            for k_ in sorted(k for k in hooks if k[0] in (GATE, GATE + 1)):
                hooks.pop(k_)()
            if opt.get("warm", 0):
                A("s_mov_b64 exec, 0\ns_branch L_wg"); A.label("L_wg_ret"); A("s_mov_b64 exec, -1")
            check(True, 1024, 12 + NG0 + 1 + GR_, sleep=4)
        stages[GATE]["pre"] = gate
    hooks = {}
    for b in range(3):
        st0 = 8 * (b + 1)
        stages[st0]["frags"][0][4].insert(0, gelu1)
        grp = gelu2_groups(b)
        pos = [(si, fi, k) for si in (st0, st0 + 1, st0 + 2) for fi, fr in enumerate(stages[si]["frags"]) for k, m in enumerate(fr[4]) if not callable(m)]
        if b == 2: pos = [p_ for p_ in pos for _ in range(2)]
        for (si, fi, k), g_ in reversed(list(zip(pos, grp))):
            stages[si]["frags"][fi][4].insert(k + 1, g_)
        hooks[(st0 + 3, 3) if b < 2 else (26, 1)] = send_flag(b)
    def addhook(pos, f):
        old = hooks.get(pos)
        hooks[pos] = (lambda: (old(), f())) if old else f
    for k in range(RKV, 32):
        st = S0 + k - RKV
        nf = len(stages[st]["frags"]); nfp = len(stages[st - 1]["frags"])
        addhook((st - 1, nfp - 1), kv_poll)
        addhook((st, nf // 2), lambda k=k: kv_issue(k))
        addhook((st + KLAG, 0), lambda k=k: kv_pub(k))
    if opt.get("p4", 1): hooks[(opt.get("p4a", 10), 1)] = p4(0); hooks[(opt.get("p4b", 14), 1)] = p4(1)
    HL = opt.get("hl", 5)
    def hpos(t):
        u = t - HL
        if u >= 0: return (24 + u // 2, 2 * (u % 2) + 1)
        return (24 + (u // 2), 4 * (u % 2) + 1)
    for t in range(22):
        fs = []
        if t in CSTART: fs.append(lambda c=CSTART[t]: hflag_check(c))
        fs.append(lambda t=t: hload(t))
        if t + 2 in CSTART: fs.append(lambda c=CSTART[t + 2]: hflag_issue(c))
        old = hooks.get(hpos(t))
        if old: fs.insert(0, old)
        hooks[hpos(t)] = (lambda fs=fs: [f() for f in fs])
    p0 = hpos(0); addhook((p0[0] - 1, 3), lambda: hflag_issue(0))
    XRAW = 136
    def xload():
        for q in range(4):
            A(f"buffer_load_dwordx2 {v(XRAW+2*q,2)}, v{vXo}, {s(sX,4)}, s{sXo} offen offset:{16*q}"); vmq.push("xr")
    addhook((28, 0), xload)
    def fo_addr(): A(f"s_lshl_b32 s{sT2}, s{sRB}, 12\ns_lshl_b32 s{sT0}, s{sGW}, 10\ns_add_u32 s{sT2}, s{sT2}, s{sT0}\ns_add_u32 s{sT2}, s{sT2}, {FO}")
    def fo_issue():
        fo_addr()
        A(f"s_mov_b64 exec, 0xff\nbuffer_load_dword v{vHF}, v{vL128}, {ws}, s{sT2} offen sc1\ns_mov_b64 exec, -1"); vmq.push("fo")
    def fo_check():
        vwait("fo")
        A(f"s_setprio 3\nv_cmp_ne_u32 vcc, s{sTag}, v{vHF}\ns_setprio 0\ns_and_b32 vcc_lo, vcc_lo, 0xff\ns_cbranch_scc1 L_fo_s")
        A.label("L_fo_b")
        def sp():
            A.label("L_fo_s")
            fo_addr(); A("s_setprio 3")
            spin_flags("L_fo", vHF, vL128, sT2, 8, sleep=8)
            A("s_setprio 0\ns_branch L_fo_b")
        slow.append(sp)
    addhook((13, 5), fo_issue); addhook((16, 5), fo_check)
    if stamps:
        for st in (8, 16, 24): addhook((st, 0), ST)
    segment(stages, hooks)
    lowprio[0] = False
    ST()
    if opt.get("atrace"):
        A(f"s_lshl_b32 s{sT0}, s2, 4\ns_add_u32 s{sT0}, s{sT0}, s{sWave}\ns_lshl_b32 s{sT0}, s{sT0}, 8\ns_add_u32 s{sT0}, s{sT0}, {STAMP+MB}\nv_lshlrev_b32 v135, 2, v{vL}\nbuffer_store_dword v31, v135, {ws}, s{sT0} offen\ns_waitcnt vmcnt(0)")
    XF = [120, 122, 124, 126, 32, 34, 36, 38]
    WARM = opt.get("warm", 0)
    if WARM: A.warm_begin()
    vwait(("dma", "o", 3))
    for i in range(8):
        slot = gslot(35 + i // 2); base = slot * SLOT
        for ni, (lo, hi) in enumerate(((vTRp0, vTRp0H), (vTRp1, vTRp1H))):
            reg, b = (lo, base) if base < 65536 else (hi, base - 65536)
            lds(f"ds_read_b64_tr_b16 {a(8*i+4*ni,2)}, v{reg} offset:{b + (i%2)*2048}", "wo")
            lds(f"ds_read_b64_tr_b16 {a(8*i+4*ni+2,2)}, v{reg} offset:{b + (i%2)*2048 + 1024}", "wo")
    vR = [None, vKo, vVo, vXR]
    sHave, sNext = 4, 5
    A(f"""
    s_setprio {opt.get("tprio", 3)}
    s_lshl_b32 s7, s{sRB}, 16
    s_lshl_b32 s{sT0}, s{sGW}, 13
    s_add_u32 s7, s7, s{sT0}
    s_add_u32 s7, s7, {OF}
    s_add_u32 s6, s7, 4096
    s_mov_b32 s{sHave}, 0
    s_mov_b32 s{sNext}, 0
    s_mov_b32 s{sC}, {hex(f2u(-1.4426950408889634))}
    s_mov_b32 s{sC+1}, {hex(f2u(-1.4426950408889634))}
    v_xor_b32 v{vR[1]}, 4096, v{vRW}
    v_xor_b32 v{vR[2]}, 8192, v{vRW}
    v_xor_b32 v{vR[3]}, 12288, v{vRW}
    v_and_b32 v{vL128}, 7, v{vL}
    v_lshlrev_b32 v{vL128}, 10, v{vL128}
    v_bfe_u32 v{vFl}, v{vL}, 3, 1
    v_lshl_add_u32 v{vL128}, v{vFl}, 15, v{vL128}
    """)
    for r_ in [vRW] + vR[1:]: A(f"v_add_u32 v{r_}, {RB0 + 2*SLOT}, v{r_}")
    OFR = 56
    AS = [(v, 40), (a, 64), (a, 80), (a, 96)]
    def o_loads(u):
        for i in range(8):
            so = 7 if i < 4 else 6
            if u: A(f"s_bitcmp1_b32 s{sD0}, {i}\ns_cbranch_scc0 L_ol{u}_{i}")
            A(f"buffer_load_dwordx4 {v(OFR+8*i,4)}, v{vO0}, {ws}, s{so} offen offset:{(i%4)*1024} sc1")
            A(f"buffer_load_dwordx4 {v(OFR+8*i+4,4)}, v{vO1}, {ws}, s{so} offen offset:{(i%4)*1024} sc1")
            if u: A.label(f"L_ol{u}_{i}")
    def reduce_tile(dst, src, mid=None):
        for lt in range(1, 4):
            k_, b_ = src[lt]
            for q in range(4):
                lds(f"ds_write_b128 v{vRW}, {k_(b_+4*q,4)} offset:{(lt-1)*SLOT + q*1024}", "w")
        lds(f"ds_add_u32 v{vCnt}, v{vOne}", "add")
        check(True)
        for lt in range(1, 4):
            for q in range(4):
                lds(f"ds_read_b128 {v(40+16*lt+4*q,4)}, v{vR[lt]} offset:{(lt-1)*SLOT + q*1024}", ("r", lt))
        if mid: mid()
        lwait(("r", 1))
        for i in range(8): A(f"v_pk_add_f32 {v(40+2*i,2)}, {v(40+2*i,2)}, {v(56+2*i,2)}")
        lwait(("r", 3))
        for i in range(8): A(f"v_pk_add_f32 {v(72+2*i,2)}, {v(72+2*i,2)}, {v(88+2*i,2)}")
        for i in range(8): A(f"v_pk_add_f32 {v(dst+2*i,2)}, {v(40+2*i,2)}, {v(72+2*i,2)}")
    def mid0():
        vwait("xr")
        for i in range(8):
            A(f"v_lshlrev_b32 v{XF[i]}, 16, v{XRAW+i}")
            A(f"v_and_b32 v{XF[i]+1}, 0xffff0000, v{XRAW+i}")
    reduce_tile(GR, [(v, 40), (v, 56), (v, 96), (a, 96)], mid0)
    OG = opt.get("ogate", 0)
    if not OG: o_loads("")
    Tv = 40
    for i in range(8): A(f"v_pk_mul_f32 {v(Tv+2*i,2)}, {v(GR+2*i,2)}, {s(sC,2)}")
    for i in range(16): A(f"v_exp_f32 v{Tv+i}, v{Tv+i}")
    for r_ in [vRW] + vR[1:]: A(f"v_add_u32 v{r_}, {3*SLOT}, v{r_}")
    for i in range(8): A(f"v_pk_add_f32 {v(Tv+2*i,2)}, {v(Tv+2*i,2)}, 1.0 op_sel_hi:[1,0]")
    for i in range(16): A(f"v_rcp_f32 v{Tv+i}, v{Tv+i}")
    A("s_nop 0")
    for i in range(8): A(f"v_pk_mul_f32 {v(GR+2*i,2)}, {v(GR+2*i,2)}, {v(Tv+2*i,2)}")
    ST()
    if OG == 1:
        check(True, 1024, 12 + NG0 + 1 + 17, sleep=4); o_loads("")
    if OG == 2:
        A(f"s_lshl_b32 s{sT0}, s{sGW}, 9\ns_add_u32 s{sT0}, s{sT0}, {AFL+256}\nv_mov_b32 v{vP}, s{sT0}")
        lds_spin("L_ow", vHF, vP, 0, f"v_cmp_eq_u32 vcc, 0, v{vHF}", sleep=2); o_loads("")
    sLd = sD0
    vPr, vPa = vFl, vL128
    PROBE = f"s_mov_b64 exec, 0xffff\nbuffer_load_dword v{vPr}, v{vPa}, {ws}, s7 offen offset:1020 sc1\ns_mov_b64 exec, -1"
    if OG == 3:
        A(f"s_mov_b32 s{sLd}, 0")
    else:
        A(f"s_mov_b32 s{sLd}, 0xff")
    A.label("L_of")
    A("s_waitcnt vmcnt(0)")
    for i in range(8):
        o_ = OFR + 8 * i
        A(f"""
        s_bitcmp1_b32 s{sLd}, {i}
        s_cbranch_scc0 L_ov{i}
        v_max3_u32 v{vHF}, v{o_}, v{o_+1}, v{o_+2}
        v_max3_u32 v{vP}, v{o_+3}, v{o_+4}, v{o_+5}
        v_max3_u32 v{vHF}, v{vHF}, v{o_+6}, v{o_+7}
        v_max_u32 v{vHF}, v{vHF}, v{vP}
        v_cmp_eq_u32 vcc, -1, v{vHF}
        s_cbranch_vccnz L_ov{i}
        s_bitset1_b32 s{sHave}, {i}
        """)
        A.label(f"L_ov{i}")
    A(f"s_cmp_lt_i32 s{sTO}, 0\ns_cselect_b32 s{sHave}, 0xff, s{sHave}\ns_cmp_eq_u32 s{sHave}, 0xff\ns_cbranch_scc1 L_onp")
    A(PROBE)
    A.label("L_onp")
    for i in range(8):
        A(f"s_cmp_lg_u32 s{sNext}, {i}\ns_cbranch_scc1 L_om{i}\ns_bitcmp1_b32 s{sHave}, {i}\ns_cbranch_scc0 L_opr")
        for ni in range(2):
            for mi in range(2):
                k_, b_ = AS[2 * ni + mi]; d = k_(b_, 16)
                A(f"{MF} {d}, {a(8*i+4*ni,4)}, {v(OFR+8*i+4*mi,4)}, {d if i else 0}")
        A(f"s_mov_b32 s{sNext}, {i+1}")
        A.label(f"L_om{i}")
    def sp():
        A.label("L_opr")
        A(f"""
        s_waitcnt vmcnt(0)
        v_cmp_ne_u32 vcc, -1, v{vPr}
        s_sub_u32 s{sTO}, s{sTO}, 1
        s_lshr_b32 s{sLd}, vcc_lo, 8
        s_and_b32 s{sLd}, s{sLd}, vcc_lo
        s_cmp_lt_i32 s{sTO}, 0
        s_cselect_b32 s{sLd}, 0xff, s{sLd}
        s_and_b32 s{sLd}, s{sLd}, 0xff
        s_andn2_b32 s{sLd}, s{sLd}, s{sHave}
        s_cbranch_scc1 L_opg
        s_sleep {opt.get("osleep", 2)}
        {PROBE}
        s_branch L_opr
        """)
        A.label("L_opg")
        o_loads("b")
        A("s_branch L_of")
    slow.append(sp)
    ST()
    A("s_nop 10")
    reduce_tile(40, AS)
    for i in range(8): A(f"v_pk_fma_f32 {v(40+2*i,2)}, {v(40+2*i,2)}, {v(GR+2*i,2)}, {v(XF[i],2)}")
    for i in range(8): A(f"v_cvt_pk_bf16_f32 v{56+i}, v{40+2*i}, v{41+2*i}")
    A("s_nop 1")
    for h in range(2):
        A(f"v_permlane32_swap_b32 v{56+4*h}, v{58+4*h}\nv_permlane32_swap_b32 v{57+4*h}, v{59+4*h}")
    for h in range(2):
        A(f"buffer_store_dwordx4 {v(56+4*h,4)}, v{vRR}, {s(sOut,4)}, s{sXo} offen offset:{32*h}{['', ' sc1', ' nt', ' sc0 sc1'][opt.get('om', 0)]}")
    if WARM: A.warm_end("L_wg", "L_wa2", WARM)
    if opt.get("xhold"):
        A.label("L_hold")
        A(f"s_memrealtime s[98:99]\ns_waitcnt lgkmcnt(0)\ns_sub_u32 s98, s98, s100\ns_cmp_lt_u32 s98, {opt['xhold']}\ns_cbranch_scc1 L_hold")
    if stamps:
        ST.on = True
        if not FR: ST(); ST.flush(ws, STAMP, sWave, 2, 3, sT0)
        if opt.get("dbgout"):
            A(f"s_cmp_lg_u32 s2, {opt['dbgout']-1}\ns_cbranch_scc1 L_dbx\ns_cmp_lg_u32 s{sWave}, 4\ns_cbranch_scc1 L_dbx\nv_mov_b32 v2, 0")
            for i in range(1, ST.n):
                A(f"s_sub_u32 s4, s{ST.base+2*i}, s{ST.base}\nv_mov_b32 v3, s4\nbuffer_store_dword v3, v2, {s(sDbg,4)}, 0 offen offset:{4*i}\ns_nop 1")
            A.label("L_dbx")
    A("s_endpgm")
    for f in slow: f()
    slow.clear()

    ST.n = 2 if stamps else 0
    A.label("L_attn")
    lq.clear(); vmq.clear()
    for g in range(NEARLY): vmq.push(("dma", "q", g), 4)
    def pub_ld(g):
        d = ddq(g); vwait(("dma", d[0], d[1])); lds(f"ds_add_u32 v{vCnt}, v{vOne}", "add")
    def FS():
        if FR: ST()
    def p2():
        A(f"s_mov_b64 exec, {PF2MASK}\nbuffer_load_dword v143, v30, {s(sWgu,4)}, s68 offen\ns_mov_b64 exec, -1"); vmq.push("pf")
    FS()
    NB4 = max(opt.get("nb4", 4), NEARLY)
    for g in range(NEARLY, NB4):
        dma(*ddq(g))
        if g == opt.get("p1at", 3):
            A(f"s_mov_b64 exec, {'0xffff0000' if opt.get('p1kv', 1) else '0xffffffff'}\nbuffer_load_dword v143, v{aP3}, {s(sWq,4)}, s7 offen\ns_mov_b64 exec, -1"); vmq.push("pf")
            if opt.get("p2early", 1): p2()
    pub_ld(0)
    A("s_waitcnt lgkmcnt(0)\ns_barrier"); lq.clear()
    ST()
    for g in range(1, NB4): pub_ld(g)
    for g in range(NB4, 5): dma(*ddq(g))
    FS()
    A(GUADDR)
    A(f"""
    s_and_b32 s{sT0}, s2, 7
    s_lshr_b32 s{sT1}, s2, 3
    s_and_b32 s{sT2}, s{sT1}, 3
    s_lshl_b32 s{sHead}, s{sT0}, 2
    s_add_u32 s{sHead}, s{sHead}, s{sT2}        ; head
    s_lshr_b32 s{sT1}, s{sT1}, 2
    s_lshl_b32 s{sT1}, s{sT1}, 1
    s_add_u32 s{sT1}, s{sT1}, s{sMI}
    s_lshr_b32 s4, s{sWave}, 1
    s_lshl_b32 s5, s{sHead}, 16
    s_lshl_b32 s{sQ}, s{sT1}, 12
    s_add_u32 s{sQ}, s{sQ}, s5
    s_lshl_b32 s6, s4, 11
    s_add_u32 s{sQ0}, s{sQ}, s6
    s_xor_b32 s6, s6, 2048
    s_add_u32 s{sQ}, s{sQ}, s6
    s_lshl_b32 s{sT1}, s{sT1}, 1
    s_add_u32 s{sT1}, s{sT1}, s4
    s_lshl_b32 s{sO}, s{sT1}, 16
    s_lshl_b32 s{sT0}, s{sHead}, 10
    s_add_u32 s{sO}, s{sO}, s{sT0}
    s_add_u32 s{sO}, s{sO}, {OF}
    s_lshl_b32 s{sFo}, s{sT1}, 12
    s_lshl_b32 s{sT0}, s{sHead}, 7
    s_add_u32 s{sFo}, s{sFo}, s{sT0}
    s_add_u32 s{sFo}, s{sFo}, {FO}
    s_add_u32 s{sKb}, s5, {KF}
    s_lshl_b32 s{sT0}, s4, 15
    s_add_u32 s{sKVb}, s{sKb}, s{sT0}
    v_mov_b32 v{vK}, v{vL16}
    v_lshrrev_b32 v{vV}, 5, v{vL}
    v_lshlrev_b32 v{vV}, 8, v{vV}
    v_and_b32 v{aPKV}, 15, v{vL}
    v_lshl_add_u32 v{vV}, v{aPKV}, 4, v{vV}
    v_add_u32 v{vV}, {VF-KF}, v{vV}
    s_mov_b32 s{sMask}, 0x0000ffff
    s_mov_b32 s{sMask+1}, 0x0000ffff
    s_mov_b32 s{sFB}, 1
    s_mov_b32 s{sOff}, {hex(f2u(-OFFSET))}
    v_mov_b32 v{vIdx}, 0xdddddddd
    v_and_b32 v{aOnes}, 27, v{vL}
    v_cmp_eq_u32 vcc, 16, v{aOnes}
    v_mov_b32 v{aOnes}, 0x3f803f80
    s_lshr_b32 s{sFQ}, s{sHead}, 1
    v_cndmask_b32 v{aOnes}, 0, v{aOnes}, vcc
    s_lshl_b32 s{sFQ}, s{sFQ}, 13
    s_add_u32 s{sFQ}, s{sFQ}, {FQ}
    v_lshlrev_b32 v{aL128}, 7, v{vL}
    s_lshr_b32 s{sPKV}, s2, 5
    s_lshl_b32 s{sPKV}, s{sPKV}, 2
    s_add_u32 s{sPKV}, s{sPKV}, s{sWave}
    s_lshl_b32 s{sPKV}, s{sPKV}, 11
    s_add_u32 s{sPKV}, s{sPKV}, s{sKb}          ; K/V slice
    v_lshlrev_b32 v{aPKV}, 7, v{aPKV}
    v_bfe_u32 v{aPF}, v{vL}, 4, 1
    v_lshl_add_u32 v{aPKV}, v{aPF}, 21, v{aPKV}
    """)
    assert VF - KF == 1 << 21
    for g in range(NB4, 5): pub_ld(g)
    check(True, 0, 1, sleep=opt.get("asleep", 2))
    FS()
    NPRE = 12 + NG0
    for g in range(5, NPRE):
        if g >= 9: check(True, 0, g - 7, sleep=opt.get('asleep', 2))
        if g == 12:
            pub_ld(11)
            if not opt.get("p2early", 1): p2()
        dma(*ddq(g))
        if g >= 7 and g < 16: FS()
        if 8 <= g <= 11:
            inits = [f"v_accvgpr_write_b32 a{x[1]+i}, v{aOnes}" if x[0] == "a" else f"v_mov_b32 v{x[1]+i}, v{aOnes}" for x in VRG for i in range(8)]
            inits += [f"v_accvgpr_write_b32 a{O+i}, 0" for i in range(64)]
            for x in inits[(g - 8) * 20:(g - 7) * 20]: A(x)
        if g == 9:
            A(f"v_mov_b32 v32, -1\nv_mov_b32 v33, -1\nv_mov_b32 v34, -1\nv_mov_b32 v35, -1\ns_add_u32 s6, s{sO}, 32768")
            A(f"buffer_store_dwordx4 v[32:35], v{vK}, {ws}, s{sO} offen sc1\nbuffer_store_dwordx4 v[32:35], v{vK}, {ws}, s6 offen sc1"); vmq.push("clr", 2)
        if g == 11:
            A(f"v_mov_b32 v{vT1}, 0\nbuffer_load_dword v{vF}, v{vT1}, {s(sDbg,4)}, 0 offen sc1"); vmq.push("tag")
        if g > 5 and g != 12: pub_ld(g - 1)
    pub_ld(NPRE - 1)
    if FR: ST(); again(); ST.flush(ws, STAMP, sWave, 2, 3, sT0); A("s_endpgm"); ST.on = False; stamps = False
    if opt.get("aexit"): A("s_waitcnt lgkmcnt(0)\ns_endpgm")
    A(f"s_waitcnt vmcnt(0)\nv_readfirstlane_b32 s{sTag}, v{vF}\ns_cmp_lg_u32 s{sTag}, 0\ns_cbranch_scc1 L_atag_x")
    get_tag(vF, vT1, "L_atag")
    A(f"v_mov_b32 v32, s{sTag}\ns_mov_b64 exec, 1\nbuffer_store_dword v32, v{vT1}, {ws}, s{sFo} offen sc1\ns_mov_b64 exec, -1\ns_mov_b32 s{sFo}, 0")
    A(f"s_setprio 2\ns_cmp_lg_u32 s{sWave}, 0\ns_cbranch_scc1 L_aw")
    lds_spin("L_ag2", M, vCntR, 0, f"v_cmp_gt_u32 vcc, 12, v{M}", sleep=2)
    ST()
    spin_flags("L_qf", vF, aL128, sFQ, 64, sleep=2)
    A(f"ds_write_b32 v{aGo}, v{vOne}\ns_branch L_aw_x")
    A.label("L_aw")
    if WARM:
        A("s_mov_b64 exec, 0\ns_branch L_wa1"); A.label("L_wa1_ret"); A("s_mov_b64 exec, -1")
    if stamps: ST.n -= 1; ST()
    lds_spin("L_ag3", M, aGo, 0, f"v_cmp_eq_u32 vcc, 0, v{M}", sleep=1)
    A.label("L_aw_x")
    ST()
    assert NG0 == 4
    if WARM: A.warm_begin()
    sKN = sKB2
    vOwn, vOneA, vKl, vVl, vPl = 2, 3, 4, 5, 6
    A(f"buffer_load_dwordx4 {a(KS,4)}, v{vK}, {ws}, s{sKb} offen sc1")
    A(f"buffer_load_dwordx4 {a(KS+4,4)}, v{vK}, {ws}, s{sKb} offen offset:1024 sc1")
    for t in range(4):
        A(f"buffer_load_dwordx4 {a(Q+4*t,4)}, v{vK}, {ws}, s{sQ0 if t < 2 else sQ} offen offset:{(t&1)*1024} sc1")
    A(f"s_and_b32 s4, s{sWave}, 1\ns_lshl_b32 s4, s4, 21\ns_add_u32 s4, s4, s{sKVb}\ns_mul_i32 s5, s{sWave}, {RKV*1024}")
    for k0, n in ((0, 2), (2, 4), (6, 4)):
        A(f"s_add_u32 m0, s5, {((k0 + E0) % RKV) * 1024}\ns_add_u32 s6, s4, {k0*1024}")
        for i in range(n): A(f"buffer_load_dwordx4 v{vK}, {ws}, s6 offen offset:{i*1024} sc1 lds")
    A(f"ds_add_u32 v{vCnt}, v{vOne}")
    A(f"""
    v_subrev_u32 v{vOwn}, 1024, v{vCnt}
    v_mov_b32 v{vOneA}, 1
    s_lshr_b32 s4, s{sWave}, 1
    s_mul_i32 s4, s4, {2*RKV*1024}
    v_add_u32 v{vKl}, s4, v{vK}
    s_sub_u32 s4, s4, {VF-KF-RKV*1024}
    v_add_u32 v{vVl}, s4, v{vV}
    v_mov_b32 v{vF}, 2
    s_waitcnt vmcnt({RKV})
    """)
    def maxtree(dst, blocks, first):
        regs = [b + i for b in blocks for i in range(16)]
        if first:
            A(f"v_max3_f32 v{dst}, v{regs[0]}, v{regs[1]}, v{regs[2]}"); regs = regs[3:]
        while len(regs) >= 2:
            A(f"v_max3_f32 v{dst}, v{dst}, v{regs[0]}, v{regs[1]}"); regs = regs[2:]
        if regs: A(f"v_max_f32 v{dst}, v{dst}, v{regs[0]}")
    def build_c():
        T_ = SB
        for t in range(4): A(f"v_mov_b32 v{T_+t}, v{M+t}")
        A("s_nop 1")
        for t in range(4): A(f"v_permlane32_swap_b32 v{T_+t}, v{M+t}")
        for t in range(4): A(f"v_max_f32 v{M+t}, v{M+t}, v{T_+t}")
        for t in range(4): A(f"v_sub_f32 v{M+t}, s{sOff}, v{M+t}")
    def fill_c(t):
        for i in range(8): A(f"v_pk_mov_b32 {v(C+16*t+2*i,2)}, {v(M+(t&~1),2)}, {v(M+(t&~1),2)} op_sel:[{t&1},{t&1}]")
    for t in range(4):
        A(f"{MF} {v(C+16*t,16)}, {a(KS,4)}, {a(Q+4*t,4)}, 0")
        A(f"{MF} {v(SB+16*t,16)}, {a(KS+4,4)}, {a(Q+4*t,4)}, 0")
    A("s_nop 5")
    for t in range(2): maxtree(M + t, [C + 16 * t, SB + 16 * t], True)
    A(f"s_waitcnt vmcnt({RKV-2})\nds_add_u32 v{vOwn}, v{vF} offset:512")
    for t in range(2, 4): maxtree(M + t, [C + 16 * t, SB + 16 * t], True)
    def kvread(slot, pos, add=True):
        A(f"ds_read_b128 {rg(KRG[slot])}, v{vKl} offset:{pos*1024}")
        A(f"s_mov_b64 exec, {s(sMask,2)}")
        A(f"ds_read_b128 {rg(VRG[slot])}, v{vVl} offset:{pos*1024}")
        A(f"ds_read_b128 {rg(VRG[slot],4)}, v{vVl} offset:{pos*1024+512}")
        A(f"s_mov_b64 exec, -1")
        if add: A(f"ds_add_u32 v{vOwn}, v{vOneA} offset:1024")
    lds_spin("L_akv", vF, vCntR, 512, f"v_cmp_gt_u32 vcc, 2, v{vF}")
    kvread(E0 & 1, E0)
    build_c()
    for t in range(4): fill_c(t)
    for i in range(4): A(f"v_pk_mov_b32 {v(SB+48+8+2*i,2)}, 0, 0")
    A(f"v_mov_b32 v{vPl}, 2\nv_mov_b32 v{vF}, {RKV-2}\ns_mov_b32 s{sCnt}, 4\ns_mov_b32 s{sKN}, {3 if G2 else 2}\ns_waitcnt vmcnt(0) lgkmcnt(0)\nds_add_u32 v{vOwn}, v{vF} offset:512")
    A(f"{MF} {v(SB,16)}, {rg(KRG[E0 & 1])}, {a(Q,4)}, {v(C,16)}")
    ST()
    if stamps: A("s_memtime s[96:97]")
    if WARM: A.warm_end("L_wa1", "L_wa1_ret", WARM)
    A("s_nop 9\ns_branch L_aent")
    A.raw(".p2align 6")
    A.label("L_aloop")
    for r in range(RKV):
        if r == E0: A.label("L_aent")
        sl = r & 1
        for t in range(4):
            X = SB + 16 * t
            tn = (t + 1) & 3; sn = sl if t < 3 else sl ^ 1
            tp = (t - 1) & 3; sp_ = sl if t > 0 else sl ^ 1
            E = lambda j: f"v_exp_f32 v{X+j}, v{X+j}"
            if t == 3: A("s_waitcnt lgkmcnt(0)")
            A(f"{MF} {v(SB+16*tn,16)}, {rg(KRG[sn])}, {a(Q+4*tn,4)}, {v(C+16*tn,16)}")
            for j in range(0, 5): A(E(j))
            A(f"{SMF} {a(O+16*tp,16)}, {rg(VRG[sp_],4)}, {v(SB+16*tp+8,8)}, v{vIdx}")
            A(E(5))
            if t == 0 and G2 and r % 2 == 1:
                kvread(sl ^ 1, (r + 1) % RKV, add=False)
            elif t == 0:
                l = lab("akc")
                A(f"v_cmp_gt_u32 vcc, s{sKN}, v{vPl}\ns_cbranch_vccnz {l}")
                A.label(l + "_x")
                def sp(l=l):
                    A.label(l)
                    A(f"ds_read_b32 v{vPl}, v{vCntR} offset:512\ns_waitcnt lgkmcnt(0)\nv_cmp_gt_u32 vcc, s{sKN}, v{vPl}\ns_cbranch_vccz {l}_x")
                    timeout_exit(l + "_x")
                    A(f"s_sleep 1\ns_branch {l}")
                slow.append(sp)
                kvread(sl ^ 1, (r + 1) % RKV)
            if t == 2 and (not G2 or r % 2 == 1):
                A(f"ds_read_b32 v{vPl}, v{vCntR} offset:512\ns_add_u32 s{sKN}, s{sKN}, {2 if G2 else 1}")
            for j in range(6, 11): A(E(j))
            A(f"{SMF} {a(O+16*t,16)}, {rg(VRG[sl])}, {v(X,8)}, v{vIdx}")
            if r == RKV - 1 and t == 3:
                A(E(11))
                A(f"s_sub_u32 s{sCnt}, s{sCnt}, 1\ns_cmp_lg_u32 s{sCnt}, 0")
                for j in range(12, 16): A(E(j))
            else:
                for j in range(11, 16): A(E(j))
    A("s_cbranch_scc1 L_aloop")
    A("s_nop 1")
    A(f"{SMF} {a(O+48,16)}, {rg(VRG[1],4)}, {v(SB+48+8,8)}, v{vIdx}")
    A.label("L_afin")
    if WARM: A.warm_begin()
    ST()
    if stamps: A("s_memtime s[98:99]")
    A(f"""
    s_mul_i32 s{sT0}, s{sWave}, {CMBW}
    s_add_u32 s{sT0}, s{sT0}, {CMB}
    v_add_u32 v2, s{sT0}, v{vK}
    v_lshl_add_u32 v3, v{vL}, 2, s{sT0}
    s_xor_b32 s{sT0}, s{sWave}, 2
    s_mul_i32 s{sT0}, s{sT0}, {CMBW}
    s_add_u32 s{sT0}, s{sT0}, {CMB}
    v_add_u32 v4, s{sT0}, v{vK}
    v_lshl_add_u32 v5, v{vL}, 2, s{sT0}
    v_mov_b32 v{vF}, s{sFB}
    """)
    for i in range(2):
        t = 2 + i
        if i == 1: A("s_nop 0")
        A(f"ds_write_b128 v2, {a(O+16*t,4)} offset:{i*2304}")
        A(f"ds_write_b128 v2, {a(O+16*t+4,4)} offset:{i*2304+1024}")
        A(f"ds_write_b32 v3, a{O+16*t+8} offset:{i*2304+2048}")
    A(f"ds_write_b32 v{vAF}, v{vF}")
    for i in range(2):
        for e in range(9): A(f"v_accvgpr_read_b32 v{C+24*i+e}, a{O+16*i+e}")
    lds_spin("L_ax", M, vPF, 0, f"v_cmp_gt_u32 vcc, s{sFB}, v{M}")
    for i in range(2):
        b = C + 24 * i + 12
        A(f"ds_read_b128 {v(b,4)}, v4 offset:{i*2304}")
        A(f"ds_read_b128 {v(b+4,4)}, v4 offset:{i*2304+1024}")
        A(f"ds_read_b32 v{b+8}, v5 offset:{i*2304+2048}")
    A(f"""
    v_mov_b32 v2, 0
    v_mov_b32 v3, 0
    s_mov_b32 s4, {hex(f2u(2.0**-110))}
    s_mov_b32 s5, {hex(f2u(2.0**120))}
    s_add_u32 s6, s{sO}, 32768
    s_waitcnt lgkmcnt(0)
    """)
    B_ = [C, C + 24]
    for b0 in B_: A(f"v_add_f32 v{b0+8}, v{b0+8}, v{b0+20}")
    for b0 in B_: A(f"v_rcp_f32 v{b0+10}, v{b0+8}")
    for b0 in B_:
        for e in range(4): A(f"v_pk_add_f32 {v(b0+2*e,2)}, {v(b0+2*e,2)}, {v(b0+12+2*e,2)}")
    A(f"""
    v_min_f32 v4, v{B_[0]+8}, v{B_[1]+8}
    v_max_f32 v5, v{B_[0]+8}, v{B_[1]+8}
    v_cmp_nle_f32 {s(sBad,2)}, s4, v4
    v_cmp_nge_f32 vcc, s5, v5
    """)
    for b0 in B_:
        for e in range(4): A(f"v_pk_mul_f32 {v(b0+2*e,2)}, {v(b0+2*e,2)}, {v(b0+10,2)} op_sel_hi:[1,0]")
    A(f"s_or_b64 {s(sBad,2)}, {s(sBad,2)}, vcc")
    for b0 in B_:
        for e in range(4): A(f"v_pk_fma_f32 v[2:3], {v(b0+2*e,2)}, 0, v[2:3] op_sel_hi:[1,0,1]")
    for b0 in B_:
        for e in range(4): A(f"v_cvt_pk_bf16_f32 v{b0+12+e}, v{b0+2*e}, v{b0+2*e+1}")
    A("v_cmp_u_f32 vcc, v2, v3")
    for b0 in B_:
        for e in range(4): A(f"v_min_u32 v{b0+12+e}, -2, v{b0+12+e}")
    A(f"""
    s_or_b64 {s(sBad,2)}, {s(sBad,2)}, vcc
    s_cselect_b32 s4, 2, 1
    s_cmp_eq_u32 s{sFB}, 2
    s_cselect_b32 s5, 1, s4
    s_or_b32 s5, s5, s{sFo}
    s_cmp_lg_u32 s5, 1
    s_cbranch_scc1 L_anost
    buffer_store_dwordx4 {v(B_[0]+12,4)}, v{vK}, {ws}, s{sO} offen sc1
    buffer_store_dwordx4 {v(B_[1]+12,4)}, v{vK}, {ws}, s6 offen sc1
    s_mov_b32 s{sFo}, 2
    """)
    A.label("L_anost")
    A(f"v_mov_b32 v2, s4\nds_write_b32 v{vAF}, v2 offset:256")
    if WARM: A.warm_end("L_wa2", "L_wg_ret", WARM)
    A.label("L_anoflag")
    if stamps:
        ST(); A("s_waitcnt lgkmcnt(0)\ns_sub_u32 s98, s98, s96\ns_add_u32 s%d, s98, s%d" % (ST.base + 2 * ST.n, ST.base)); ST.n += 1
        ST.flush(ws, STAMP, sWave, 2, 3, sT0)
    A(f"s_cmp_eq_u32 s{sFB}, 2\ns_cbranch_scc1 L_end")
    lds_spin("L_as", M, vPF, 256, f"v_cmp_eq_u32 vcc, 0, v{M}")
    A(f"v_readfirstlane_b32 s5, v{M}\ns_max_u32 s4, s4, s5\ns_cmp_lt_u32 s4, 2\ns_cbranch_scc1 L_end")
    A(f"s_mov_b32 s{sFB}, 2\ns_mov_b32 s{sOff}, 0\ns_mov_b32 s{sCnt}, 64\ns_mov_b32 s{sKA}, s{sKb}\ns_waitcnt vmcnt(0)")
    for t in range(4): A(f"v_mov_b32 v{M+t}, 0xff800000")
    A.label("L_afb")
    A(f"buffer_load_dwordx4 {a(KS,4)}, v{vK}, {ws}, s{sKA} offen sc1")
    A("s_waitcnt vmcnt(0)")
    for t in range(4): A(f"{MF} {v(C+16*t,16)}, {a(KS,4)}, {a(Q+4*t,4)}, 0")
    A("s_nop 11")
    for t in range(4): maxtree(M + t, [C + 16 * t], False)
    A(f"s_add_u32 s{sKA}, s{sKA}, 1024\ns_sub_u32 s{sCnt}, s{sCnt}, 1\ns_cmp_lg_u32 s{sCnt}, 0\ns_cbranch_scc1 L_afb")
    build_c()
    for t in range(4): fill_c(t)
    zero_o()
    A(f"s_mov_b32 s{sCnt}, 32\ns_mov_b32 s{sKA}, s{sKVb}")
    A.label("L_afb2")
    A(f"""
    buffer_load_dwordx4 {rg(KRG[0])}, v{vK}, {ws}, s{sKA} offen sc1
    s_mov_b64 exec, {s(sMask,2)}
    buffer_load_dwordx4 {rg(VRG[0])}, v{vV}, {ws}, s{sKA} offen sc1
    buffer_load_dwordx4 {rg(VRG[0],4)}, v{vV}, {ws}, s{sKA} offen offset:512 sc1
    s_mov_b64 exec, -1
    s_waitcnt vmcnt(0)
    """)
    for t in range(4): A(f"{MF} {v(SB+16*t,16)}, {rg(KRG[0])}, {a(Q+4*t,4)}, {v(C+16*t,16)}")
    A("s_nop 8")
    for j in range(64): A(f"v_exp_f32 v{SB+j}, v{SB+j}")
    A("s_nop 2")
    for t in range(4):
        A(f"{SMF} {a(O+16*t,16)}, {rg(VRG[0])}, {v(SB+16*t,8)}, v{vIdx}")
        A(f"{SMF} {a(O+16*t,16)}, {rg(VRG[0],4)}, {v(SB+16*t+8,8)}, v{vIdx}")
    A(f"s_add_u32 s{sKA}, s{sKA}, 1024\ns_sub_u32 s{sCnt}, s{sCnt}, 1\ns_cmp_lg_u32 s{sCnt}, 0\ns_cbranch_scc1 L_afb2")
    A("s_nop 15\ns_branch L_afin")
    for f in slow: f()
    A.label("L_end")
    A("s_endpgm")
    if opt.get("cpf", 1): A.raw(f".fill (51200 - (. - {K})) / 4, 4, 0xbf800000")

    H_ = Asm()
    H_.raw(f"; @launch grid=(256,1,1) block=(512,1,1) lds={LDS}")
    H_.raw('.amdgcn_target "amdgcn-amd-amdhsa--gfx950"\n.text')
    H_.lines += A.lines
    H_.raw(f""".section .rodata,"a"
.p2align 6
.amdhsa_kernel {K}
  .amdhsa_next_free_vgpr {NV+NA}
  .amdhsa_next_free_sgpr 102
  .amdhsa_accum_offset {NV}
  .amdhsa_group_segment_fixed_size 0
  .amdhsa_kernarg_size 80
  .amdhsa_user_sgpr_count 2
  .amdhsa_user_sgpr_kernarg_segment_ptr 1
  .amdhsa_system_sgpr_workgroup_id_x 1
.end_amdhsa_kernel""")
    txt = H_.text()
    check_hazards(txt)
    return txt

if __name__ == "__main__":
    base = {"pfgo": 1}
    open("mega_s.s", "w").write(build(True, base))
    open("mega.s", "w").write(build(False, base))
    open("mega_tr.s", "w").write(build(True, dict(base, atrace=1)))
    open("mega_dbg.s", "w").write(build(True, dict(base, dbgout=10)))
    open("mega_pt.s", "w").write(build(False, dict(base, pretouch=1)))
    open("mega_nc.s", "w").write(build(False, dict(base, cpf=0)))
    open("mega_b.s", "w").write(build(True, dict(base, p1kv=0, p2early=0)))
    open("mega_c.s", "w").write(build(True, dict(base, p1kv=1, p2early=0)))
    open("mega_d.s", "w").write(build(True, dict(base, p1kv=0, p2early=1)))
```

```python
import sys, struct
from asmlib import *
from layout import *
NAME = 'recurrent_scan__softmax_full_mha__glu_gated_geglu__prompt'
def f2u(x): return struct.unpack("<I", struct.pack("<f", x))[0]
MF = "v_mfma_f32_32x32x16_bf16"
SMF = "v_smfmac_f32_32x32x32_bf16"
C1 = -2.0 * 1.4426950408889634 * 0.7978845608028654
C2 = C1 * 0.044715
NV, NA = 144, 112

SLOT = 16384
RB0 = 8192
RKV = 10
PIECE = 528
XT = RB0 + 5 * SLOT
CMB = RB0 + 8 * SLOT
CMBW = 2 * 2304
CNT = CMB + 4 * CMBW
LDC = CNT + 1024
AFL = LDC + 1024
GO = AFL + 8 * 256
LDS = GO + 256
assert XT + 128 * PIECE <= CNT and LDS <= 163840 and 4 * RKV * 1024 == RB0 + 2 * SLOT

class Fifo:
    def __init__(self, cap): self.q = []; self.cap = cap; self.since = 0
    def push(self, tag, n=1): self.q += [tag] * n; self.since += n
    def need(self, tag):
        idx = [i for i, t in enumerate(self.q) if t == tag]
        if not idx: return None
        return min(len(self.q) - 1 - idx[-1], self.cap)
    def waited(self, n): self.q = self.q[max(0, len(self.q) - n):] if n else []
    def clear(self): self.q = []

def build(stamps=False, opt=None):
    opt = opt or {}
    TIMEOUT = opt.get("timeout", 200000)
    NG0 = opt.get('ng0', 4)
    PF2MASK = '0xffffffff'
    A = Asm()
    K = NAME + "_kernel"
    ST = Stamps(A, 70, stamps); ST.cyc = opt.get('cyc', False)
    sX, sWq, sWgu, sWd, sWo, sWS, sOut, sDbg = 8, 12, 16, 20, 24, 28, 32, 36
    sWave, sRB, sCG, sT0, sT1, sT2, sTag, sTO = 40, 41, 42, 43, 44, 45, 46, 47
    sGW, sMI, sNI, sM0, sQoff, sGoff, sDoff, sOoffW, sNeed, sFlag, sHst, sBlk, sNb = 48, 49, 50, 51, 52, 53, 54, 55, 56, 57, 58, 59, 60
    sHfl, sC, sD0, sD1, sHld, sXo, sHb, sSt = 61, 62, 64, 65, 66, 67, 68, 69
    sKA, sCnt, sKB2, sBad = 48, 51, 49, 52
    sFB, sOff, sQ, sKVb, sHead, sO, sKb, sFo = 50, 54, 55, 56, 57, 60, 61, 62
    sMask, sQ0, sFQ, sP3, sPKV = 58, 63, 65, 66, 67
    sKVs, sKVm = 52, 1
    ws = s(sWS, 4)
    vL, vT0, vT1, vT2, vHF = 1, 2, 3, 4, 5
    vDq0, vDq1, vDg0, vDg1, vDd0, vDd1 = 6, 7, 8, 9, 10, 11
    vTRn, vTRnH, vTRp0, vTRp0H, vTRp1, vTRp1H = 12, 13, 14, 15, 16, 17
    vCnt, vOne, vP, vL16, vFl, vL128 = 18, 19, 20, 21, 22, 23
    vH0, vO0 = 6, 7
    vCntR = 0
    slow = []
    vKo, vVo, vH1, vO1, vXo, vRW, vRR, vXR = 24, 25, 26, 27, 28, 29, 30, 31
    WFB = [32, 36, 112, 116, 120, 124]
    if opt.get('twice'): WFB = [32, 128, 112, 116, 120, 124]
    ACC0, ACC1, TMP, AD, XR, GR, SR = 40, 56, 72, 40, 104, 128, 112
    vmq = Fifo(63); lq = Fifo(15)
    uid = [0]
    lowprio = [False]
    def lab(p):
        uid[0] += 1; return f"L_{p}{uid[0]}"
    def vwait(tag):
        n = vmq.need(tag)
        if n is not None: A(f"s_waitcnt vmcnt({n})"); vmq.waited(n)
    def lwait(tag):
        n = lq.need(tag)
        if n is not None: A(f"s_waitcnt lgkmcnt({n})"); lq.waited(n)
    def lds(instr, tag):
        if len(lq.q) >= 15:
            A("s_waitcnt lgkmcnt(12)"); lq.waited(12)
        A(instr); lq.push(tag)
    def timeout_exit(lbl):
        A(f"s_sub_u32 s{sTO}, s{sTO}, 1\ns_cmp_lt_i32 s{sTO}, 0\ns_cbranch_scc1 {lbl}")
    def emask(n): return n if isinstance(n, str) else ("-1" if n == 64 else hex((1 << n) - 1))

    A.raw(f".globl {K}\n.p2align 8\n.type {K},@function\n{K}:")
    F0 = opt.get("front0"); FR = opt.get("front")
    A(f"""
    s_cmp_ge_u32 s2, 256
    s_cbranch_scc1 L_end
    """)
    if opt.get("twice"): A("v_mov_b32 v135, 0"); A.label("L_restart")
    def again():
        if opt.get("twice"):
            l = lab("tw")
            A(f"s_waitcnt vmcnt(0) lgkmcnt(0)\ns_barrier\ns_setprio 0\nv_readfirstlane_b32 s4, v135\ns_cmp_lg_u32 s4, 0\ns_cbranch_scc1 {l}\nv_mov_b32 v135, 1\ns_lshl_b32 s4, s40, 6\nv_add_u32 v0, s4, v1\ns_sleep 40\ns_branch L_restart")
            A.label(l)
    if opt.get("xhold") or opt.get("xgo") or opt.get("xln"): A("s_memrealtime s[100:101]")
    def hold(lbl, t):
        A.label(lbl)
        A(f"s_memrealtime s[98:99]\ns_waitcnt lgkmcnt(0)\ns_sub_u32 s98, s98, s100\ns_cmp_lt_u32 s98, {t}\ns_cbranch_scc1 {lbl}")
    if opt.get("scr"):
        A("s_and_b32 s4, s2, 7\ns_lshl_b32 s4, s4, 3\ns_bfe_u32 s5, s2, 0x30003\ns_and_b32 s2, s2, 0xc0\ns_or_b32 s2, s2, s4\ns_or_b32 s2, s2, s5")
    A(f"""
    s_load_dwordx4 s[4:7], s[0:1], 0
    s_load_dwordx2 s[24:25], s[0:1], 16
    s_load_dwordx4 s[16:19], s[0:1], 32
    s_load_dwordx4 s[20:23], s[0:1], 48
    s_load_dwordx4 s[36:39], s[0:1], 64
    """)
    if opt.get("cpf", 1):
        A(f"""
        s_getpc_b64 s[8:9]
        s_lshr_b32 s10, s2, 3
        s_lshl_b32 s10, s10, 7
        s_add_u32 s8, s8, s10
        s_addc_u32 s9, s9, 0
        v_lshlrev_b32 v2, 12, v0
        v_add_co_u32 v2, vcc, s8, v2
        v_mov_b32 v3, s9
        v_cmp_gt_u32 s[10:11], 12, v0
        v_addc_co_u32 v3, vcc, 0, v3, vcc
        s_and_saveexec_b64 s[12:13], s[10:11]
        s_cbranch_execz L_nocpf
        global_load_dword v143, v[2:3], off
        L_nocpf:
        s_mov_b64 exec, -1
        """)
    ST()
    A(f"""
    v_lshrrev_b32 v{vT0}, 6, v0
    v_and_b32 v{vL}, 63, v0
    s_and_b32 s{sT0}, s2, 7
    v_readfirstlane_b32 s{sWave}, v{vT0}
    s_lshr_b32 s{sT1}, s2, 3
    s_lshr_b32 s{sRB}, s{sT0}, 1
    s_lshl_b32 s{sRB}, s{sRB}, 3
    s_and_b32 s{sT2}, s{sT1}, 7
    s_add_u32 s{sRB}, s{sRB}, s{sT2}
    s_and_b32 s{sCG}, s{sT0}, 1
    s_lshl_b32 s{sCG}, s{sCG}, 2
    s_lshr_b32 s{sT2}, s{sT1}, 3
    s_add_u32 s{sCG}, s{sCG}, s{sT2}
    v_lshrrev_b32 v{vT0}, 3, v{vL}
    v_and_b32 v{vT1}, 7, v{vL}                  ; 16B piece
    v_lshlrev_b32 v{vT2}, 10, v{vT0}
    v_lshl_add_u32 v5, v{vT1}, 4, v{vT2}
    s_lshl_b32 s{sT0}, s{sRB}, 16
    s_lshl_b32 s{sT1}, s{sWave}, 13
    s_add_u32 s{sT0}, s{sT0}, s{sT1}
    s_mov_b32 s{sX+2}, {S*D*2}
    s_mov_b32 s{sX+3}, 0x00020000
    s_mov_b32 s{sWq+2}, {D*1536*2}
    s_mov_b32 s{sWq+3}, 0x00020000
    s_and_b32 s{sGW}, s{sWave}, 3
    s_and_b32 s{sMI}, s{sGW}, 1
    v_lshlrev_b32 v{vL16}, 4, v{vL}
    s_lshl_b32 s{sT1}, s{sGW}, 2
    s_add_u32 s{sT1}, s{sT1}, {CNT}
    v_lshlrev_b32 v{vCnt}, 2, v{vL}
    v_add_u32 v{vCnt}, {CNT+256}, v{vCnt}
    v_writelane_b32 v{vCnt}, s{sT1}, 0
    v_mov_b32 v{vOne}, 1
    v_and_b32 v{vFl}, 3, v{vL}
    v_lshlrev_b32 v{vCntR}, 2, v{vFl}
    v_add_u32 v{vCntR}, {CNT}, v{vCntR}
    s_mov_b32 s{sTO}, {TIMEOUT}
    s_waitcnt lgkmcnt(0)
    s_mov_b32 s{sX}, s4
    s_mov_b32 s{sX+1}, s5
    s_mov_b32 s{sWq}, s6
    s_mov_b32 s{sWq+1}, s7
    """)
    R = 40
    for cb in range(8):
        A(f"buffer_load_dwordx4 {v(R+4*cb,4)}, v5, {s(sX,4)}, s{sT0} offen offset:{cb*128}")
    SRDS = f"""
    s_mov_b32 s{sWS}, s38
    s_mov_b32 s{sWS+1}, s39
    s_mov_b32 s{sWS+2}, {WS_USED}
    s_mov_b32 s{sWS+3}, 0x00020000
    s_mov_b32 s{sDbg+2}, 256
    s_mov_b32 s{sDbg+3}, 0x00020000
    s_bitcmp1_b32 s{sWave}, 1
    s_cselect_b32 s{sWgu}, s18, s16
    s_cselect_b32 s{sWgu+1}, s19, s17
    s_mov_b32 s{sWgu+2}, {D*F*2}
    s_mov_b32 s{sWgu+3}, 0x00020000
    v_lshlrev_b32 v{vT2}, 1, v{vT0}
    v_and_b32 v{vT2}, 4, v{vT2}
    v_xor_b32 v{vT2}, v{vT2}, v{vT1}
    v_lshlrev_b32 v{vHF}, 4, v{vT2}
    s_lshl_b32 s{sM0}, s{sGW}, 12
    s_add_u32 s{sM0}, s{sM0}, {RB0}
    s_mul_i32 s{sBlk}, s{sCG}, 3
    s_add_u32 s{sT1}, s{sCG}, 1
    s_lshr_b32 s{sT1}, s{sT1}, 2
    s_sub_u32 s{sBlk}, s{sBlk}, s{sT1}
    """
    A(SRDS)
    A(f"s_cmp_lt_u32 s{sWave}, 4\ns_cbranch_scc1 L_pre_a")
    BASE = [0, 3, 6, 8, 11, 14, 17, 19]
    DSEQ = [BASE[j] for j in range(8) if j % 4 != 3] + [BASE[j] + 1 for j in range(8)] + [BASE[j] + 2 for j in range(8)]
    CSTART = {0: 0, 6: 1, 14: 2}
    CMASK = [0x0fff0fff, 0xffffffff, 0xffffffff]
    def dma_pieces(kind, idx, slot):
        if kind == "q":
            panel = (1, 2, 0)[idx // 4]; o = (idx % 4) * 128 * 3072 + panel * 1024
            srd, so, v0_, v1_, o2 = sWq, sQoff, vDq0, vDq1, o + 16 * 3072
        elif kind == "g":
            o = (idx % 8) * 64 * 2752 + (idx // 8) * 128
            srd, so, v0_, v1_, o2 = sWgu, sGoff, vDg0, vDg1, o + 16 * 2752
        elif kind == "d":
            o = DSEQ[2 * idx] * 64 * 1024; o2 = DSEQ[2 * idx + 1] * 64 * 1024
            srd, so, v0_, v1_ = sWd, sDoff, vDd0, vDd1
        else:
            o = idx * 32 * 1024; o2 = o + 16 * 1024
            srd, so, v0_, v1_ = sWo, sOoffW, vDd0, vDd1
        tag = ("dma", kind, idx)
        def p0():
            A(f"s_add_u32 m0, s{sM0}, {slot*SLOT}\ns_add_u32 s{sD0}, s{so}, {o}")
            A(f"buffer_load_dwordx4 v{v0_}, {s(srd,4)}, s{sD0} offen lds"); vmq.push(tag)
        def p1():
            if lowprio[0]: A(f"s_add_u32 m0, s{sM0}, {slot*SLOT}\ns_nop 0")
            A(f"buffer_load_dwordx4 v{v1_}, {s(srd,4)}, s{sD0} offen offset:1024 lds"); vmq.push(tag)
        def p2():
            if lowprio[0]: A(f"s_add_u32 m0, s{sM0}, {slot*SLOT}")
            A(f"s_add_u32 s{sD0}, s{so}, {o2 - 2048}")
            A(f"buffer_load_dwordx4 v{v0_}, {s(srd,4)}, s{sD0} offen offset:2048 lds"); vmq.push(tag)
        def p3():
            if lowprio[0]: A(f"s_add_u32 m0, s{sM0}, {slot*SLOT}\ns_nop 0")
            A(f"buffer_load_dwordx4 v{v1_}, {s(srd,4)}, s{sD0} offen offset:3072 lds"); vmq.push(tag)
        if opt.get("xnodma") and not (kind == "q" and idx < 5): return []
        if opt.get("xhalfdma") and not (kind == "q" and idx < 5): return [p0, p1]
        return [p0, p1, p2, p3]
    def dma(kind, idx, slot):
        cap = opt.get("ldcap", 40)
        for p in dma_pieces(kind, idx, slot):
            if len(vmq.q) > cap:
                A(f"s_waitcnt vmcnt({cap})"); vmq.waited(cap)
            p()
    def ddq(g): return ("q", g, g % 8) if g < 12 else ("g", g - 12, g % 8)
    GUADDR = f"""
    v_mul_u32_u24 v{vDg0}, 2752, v{vT0}
    v_add_u32 v{vDg0}, v{vDg0}, v{vHF}
    v_add_u32 v{vDg1}, {8*2752-1024}, v{vDg0}
    s_mul_i32 s{sGoff}, s{sMI}, {32*2752}
    s_lshl_b32 s{sT0}, s{sBlk}, 7
    s_add_u32 s{sGoff}, s{sGoff}, s{sT0}
    """
    A(f"""
    v_bfe_u32 v{vP}, v{vL}, 2, 2
    v_mul_u32_u24 v{vP}, 3072, v{vP}
    v_lshl_add_u32 v{vP}, v{vFl}, 7, v{vP}
    v_lshrrev_b32 v{vKo}, 4, v{vL}
    v_lshl_add_u32 v{vP}, v{vKo}, 10, v{vP}
    s_lshr_b32 s{sT1}, s2, 3
    s_mul_i32 s{sT1}, s{sT1}, {16*3072}
    s_mul_i32 s{sT0}, s{sGW}, {4*3072}
    s_add_u32 s{sT1}, s{sT1}, s{sT0}
    s_and_b32 s{sT0}, s2, 1
    s_lshl_b32 s{sT0}, s{sT0}, 9
    s_add_u32 s{sT1}, s{sT1}, s{sT0}
    s_lshr_b32 s{sNI}, s{sGW}, 1
    v_bfe_u32 v{vT2}, v{vL}, 2, 2
    v_lshlrev_b32 v{vTRp0}, 7, v{vT2}
    v_bfe_u32 v{vKo}, v{vL}, 4, 1
    v_lshl_add_u32 v{vTRp0}, v{vKo}, 5, v{vTRp0}
    v_lshl_add_u32 v{vTRp0}, v{vFl}, 3, v{vTRp0}
    v_lshrrev_b32 v{vH1}, 1, v{vT2}             ; r>>1
    v_lshrrev_b32 v{vO1}, 5, v{vL}              ; half
    v_xor_b32 v{vFl}, s{sNI}, v{vH1}
    v_lshl_add_u32 v{vTRn}, v{vFl}, 6, v{vTRp0}
    v_lshl_add_u32 v{vTRn}, v{vO1}, 10, v{vTRn}
    v_add_u32 v{vTRn}, {RB0}, v{vTRn}
    v_add_u32 v{vTRnH}, 65536, v{vTRn}
    v_and_b32 v{vRW}, 31, v{vL}
    v_mul_u32_u24 v{vXR}, {PIECE}, v{vO1}
    v_lshl_add_u32 v{vXR}, v{vRW}, 4, v{vXR}
    s_mul_i32 s{sT0}, s{sMI}, {64*PIECE}
    s_add_u32 s{sT0}, s{sT0}, {XT}
    v_add_u32 v{vXR}, s{sT0}, v{vXR}
    s_mov_b64 exec, {'0xffffffff' if opt.get('p1kv', 1) else '0xffff'}
    buffer_load_dword v143, v{vP}, {s(sWq,4)}, s{sT1} offen offset:1024
    s_mov_b64 exec, -1
    s_lshl_b32 s{sSt}, s{sRB}, 11
    s_lshl_b32 s{sT0}, s{sMI}, 10
    s_add_u32 s{sSt}, s{sSt}, s{sT0}
    s_lshl_b32 s{sT0}, s{sCG}, 18
    s_add_u32 s{sSt}, s{sSt}, s{sT0}
    s_lshl_b32 s{sT0}, s{sNI}, 17
    s_add_u32 s{sSt}, s{sSt}, s{sT0}
    s_add_u32 s{sD1}, s{sSt}, 65536
    v_mov_b32 v136, -1
    v_mov_b32 v137, -1
    v_mov_b32 v138, -1
    v_mov_b32 v139, -1
    s_mov_b32 s3, 1
    s_setprio 1
    s_waitcnt vmcnt(1)
    s_branch L_ln
    """)
    GLATE = [x.strip() for x in (GUADDR + f"""
    s_mov_b32 s{sOut}, s22
    s_mov_b32 s{sOut+1}, s23
    s_mov_b32 s{sOut+2}, {S*D*2}
    s_mov_b32 s{sOut+3}, 0x00020000
    s_mov_b32 s{sWd+2}, {F*D*2}
    s_mov_b32 s{sWd+3}, 0x00020000
    s_mov_b32 s{sWo+2}, {D*D*2}
    s_mov_b32 s{sWo+3}, 0x00020000
    v_lshl_add_u32 v{vDd0}, v{vT0}, 10, v{vHF}
    v_add_u32 v{vDd1}, {8*1024-1024}, v{vDd0}
    s_lshl_b32 s{sT2}, s{sCG}, 7
    s_lshl_b32 s{sDoff}, s{sGW}, 14
    s_add_u32 s{sDoff}, s{sDoff}, s{sT2}
    s_lshl_b32 s{sOoffW}, s{sGW}, 17
    s_add_u32 s{sOoffW}, s{sOoffW}, s{sT2}
    s_lshl_b32 s{sXo}, s{sRB}, 16
    s_add_u32 s{sXo}, s{sXo}, s{sT2}
    s_and_b32 s{sNb}, s{sCG}, 3
    v_lshl_add_u32 v{vTRp0}, v{vH1}, 6, v{vTRp0}
    v_lshl_add_u32 v{vTRp0}, v{vO1}, 9, v{vTRp0}
    v_add_u32 v{vTRp0}, s{sM0}, v{vTRp0}
    s_lshl_b32 s{sT0}, s{sNI}, 6
    v_xor_b32 v{vTRp0}, s{sT0}, v{vTRp0}
    v_xor_b32 v{vTRp1}, 64, v{vTRp0}
    v_add_u32 v{vTRp0H}, 65536, v{vTRp0}
    v_add_u32 v{vTRp1H}, 65536, v{vTRp1}
    v_lshlrev_b32 v{vL128}, 7, v{vL}
    v_lshlrev_b32 v{vVo}, 16, v{vKo}
    v_lshl_add_u32 v{vVo}, v{vO1}, 8, v{vVo}
    v_and_b32 v{vT2}, 15, v{vL}
    v_lshl_add_u32 v{vVo}, v{vT2}, 4, v{vVo}
    v_add_u32 v{vVo}, {VF}, v{vVo}
    v_lshlrev_b32 v{vXo}, 10, v{vRW}
    v_lshl_add_u32 v{vXo}, v{vO1}, 3, v{vXo}
    v_lshl_add_u32 v{vRR}, v{vO1}, 3, v{vXo}
    s_lshl_b32 s{sT0}, s{sGW}, 12
    v_add_u32 v{vRW}, s{sT0}, v{vL16}
    s_and_b32 s{sKVs}, s2, 7
    s_lshl_b32 s{sKVs}, s{sKVs}, 2
    s_bfe_u32 s{sT0}, s2, 0x20003
    s_add_u32 s{sKVs}, s{sKVs}, s{sT0}
    s_lshl_b32 s{sKVs}, s{sKVs}, 16
    s_lshl_b32 s{sT0}, s{sNI}, 15
    s_add_u32 s{sKVs}, s{sKVs}, s{sT0}
    s_lshl_b32 s{sT0}, s{sMI}, 21
    s_add_u32 s{sKVs}, s{sKVs}, s{sT0}
    s_add_u32 s{sKVs}, s{sKVs}, {KF}
    s_mul_i32 s{sKVm}, s{sGW}, {RKV*1024}
    s_lshl_b32 s{sT0}, s{sMI}, 15
    s_add_u32 s{sXo}, s{sXo}, s{sT0}
    s_lshl_b32 s{sT0}, s{sNI}, 6
    s_add_u32 s{sXo}, s{sXo}, s{sT0}
    v_and_b32 v{vKo}, 0x33, v{vL}
    v_lshrrev_b32 v{vT2}, 1, v{vL}
    v_and_b32 v{vT2}, 4, v{vT2}
    v_lshlrev_b32 v{vO1}, 1, v{vL}
    v_and_b32 v{vO1}, 8, v{vO1}
    v_or3_b32 v{vKo}, v{vKo}, v{vT2}, v{vO1}
    v_lshlrev_b32 v{vKo}, 4, v{vKo}
    v_add_u32 v{vKo}, {KF}, v{vKo}
    s_mul_i32 s{sT0}, s{sMI}, {86*1024}
    v_add_u32 v{vH0}, s{sT0}, v{vL16}
    s_sub_u32 s{sT0}, {86*1024}, s{sT0}
    v_add_u32 v{vH1}, s{sT0}, v{vL16}
    s_lshl_b32 s{sT0}, s{sMI}, 15
    v_add_u32 v{vO0}, s{sT0}, v{vL16}
    v_xor_b32 v{vO1}, 32768, v{vO0}
    v_lshlrev_b32 v{vXR}, 10, v{vL}
    v_mov_b32 v{vT2}, 0
    v_mov_b32 v{vT0}, {hex(f2u(C1))}
    v_mov_b32 v{vT1}, {hex(f2u(C1))}
    s_lshl_b32 s{sT2}, s{sRB}, 1
    s_add_u32 s{sT2}, s{sT2}, s{sMI}
    s_mul_i32 s{sHst}, s{sT2}, {86*1024}
    s_lshl_b32 s{sT1}, s{sCG}, 1
    s_add_u32 s{sT1}, s{sT1}, s{sNI}
    s_lshl_b32 s{sFlag}, s{sT1}, 13
    s_lshl_b32 s{sT0}, s{sT2}, 7
    s_add_u32 s{sFlag}, s{sFlag}, s{sT0}
    s_add_u32 s{sFlag}, s{sFlag}, {FQ}
    s_lshl_b32 s{sT0}, s{sBlk}, 12
    s_lshl_b32 s{sT1}, s{sNI}, 11
    s_add_u32 s{sHst}, s{sHst}, s{sT0}
    s_add_u32 s{sHst}, s{sHst}, s{sT1}
    s_add_u32 s{sHst}, s{sHst}, {HF}
    s_lshl_b32 s{sHld}, s{sRB}, 14
    s_add_u32 s{sHld}, s{sHld}, {FH}
    s_lshl_b32 s{sT0}, s{sCG}, 9
    s_lshl_b32 s{sT1}, s{sGW}, 7
    s_add_u32 s{sHfl}, s{sT0}, s{sT1}
    s_add_u32 s{sHfl}, s{sHfl}, s{sHld}
    s_mul_i32 s{sHb}, s{sRB}, {2*86*1024}
    s_lshl_b32 s{sT0}, s{sGW}, 10
    s_add_u32 s{sHb}, s{sHb}, s{sT0}
    s_add_u32 s{sHb}, s{sHb}, {HF}
    s_mov_b32 s{sC}, {hex(f2u(QSCALE))}
    s_mov_b32 s{sC+1}, {hex(f2u(QSCALE))}
    """).split("\n") if x.strip()]
    vK, vV, vIdx, vAF, vPF, vF = 10, 11, 12, 13, 14, 15
    M, C, SB = 6, 16, 80
    aOnes, aPF, aP3, aPKV, aL128, aGo = 24, 25, 26, 27, 28, 29
    O, Q, KS = 0, 64, 104
    KRG = [("a", 80), ("a", 92)]
    VRG = [("a", 84), ("a", 96)]
    def rg(x, off=0, n=4): return (a if x[0] == "a" else v)(x[1] + off, n)
    def zero_o(n=64):
        for i in range(n): A(f"v_accvgpr_write_b32 a{O+i}, 0")
    A.label("L_pre_a")
    if opt.get("pretouch"):
        A(f"""
        s_mov_b32 s{sOut}, s22
        s_mov_b32 s{sOut+1}, s23
        s_mov_b32 s{sOut+2}, {S*D*2}
        s_mov_b32 s{sOut+3}, 0x00020000
        s_mov_b32 s{sWd+2}, {F*D*2}
        s_mov_b32 s{sWd+3}, 0x00020000
        s_mov_b32 s{sWo+2}, {D*D*2}
        s_mov_b32 s{sWo+3}, 0x00020000
        v_lshlrev_b32 v{vF}, 21, v{vL}
        s_lshl_b32 s{sT0}, s2, 7
        s_cmp_lg_u32 s{sMI}, 0
        s_cbranch_scc1 L_pt1
        s_mov_b64 exec, 0x1fff
        buffer_load_dword v143, v{vF}, {ws}, s{sT0} offen sc1
        s_mov_b64 exec, 1
        buffer_load_dword v143, v{vF}, {s(sWgu,4)}, s{sT0} offen
        s_branch L_pt2
        L_pt1:
        s_mov_b64 exec, 1
        buffer_load_dword v143, v{vF}, {s(sOut,4)}, s{sT0} offen sc1
        buffer_load_dword v143, v{vF}, {s(sWd,4)}, s{sT0} offen
        buffer_load_dword v143, v{vF}, {s(sWo,4)}, s{sT0} offen
        L_pt2:
        s_mov_b64 exec, -1
        """)
    A(f"""
    v_mov_b32 v{vF}, 0
    ds_write_b32 v{vCnt}, v{vF}
    ds_write_b32 v{vCnt}, v{vF} offset:512
    ds_write_b32 v{vCnt}, v{vF} offset:1024
    v_add_u32 v{vCnt}, 1024, v{vCnt}
    v_lshlrev_b32 v{aGo}, 2, v{vL}
    s_lshl_b32 s{sT0}, s{sWave}, 9
    s_add_u32 s{sT0}, s{sT0}, {AFL}
    v_add_u32 v{vAF}, s{sT0}, v{aGo}
    s_xor_b32 s{sT0}, s{sWave}, 2
    s_lshl_b32 s{sT0}, s{sT0}, 9
    s_add_u32 s{sT0}, s{sT0}, {AFL}
    v_add_u32 v{vPF}, s{sT0}, v{aGo}
    v_add_u32 v{aGo}, {GO}, v{aGo}
    ds_write_b32 v{vAF}, v{vF}
    ds_write_b32 v{vAF}, v{vF} offset:256
    ds_write_b32 v{aGo}, v{vF}
    v_mul_u32_u24 v{vDq0}, 3072, v{vT0}
    v_add_u32 v{vDq0}, v{vDq0}, v{vHF}
    v_add_u32 v{vDq1}, {8*3072-1024}, v{vDq0}
    s_mul_i32 s{sQoff}, s{sGW}, {32*3072}
    s_lshl_b32 s{sT2}, s{sCG}, 7
    s_add_u32 s{sQoff}, s{sQoff}, s{sT2}
    v_bfe_u32 v{aP3}, v{vL}, 2, 2
    v_mul_u32_u24 v{aP3}, 3072, v{aP3}
    v_lshl_add_u32 v{aP3}, v{vFl}, 7, v{aP3}
    v_bfe_u32 v{aPF}, v{vL}, 4, 1
    v_xor_b32 v{aPF}, 1, v{aPF}
    v_lshl_add_u32 v{aP3}, v{aPF}, 11, v{aP3}
    s_lshr_b32 s7, s2, 3
    s_lshl_b32 s7, s7, 2
    s_add_u32 s7, s7, s{sWave}
    s_mul_i32 s7, s7, {4*3072}
    s_and_b32 s{sT0}, s2, 1
    s_lshl_b32 s{sT0}, s{sT0}, 9
    s_add_u32 s7, s7, s{sT0}
    s_and_b32 s{sT0}, s{sCG}, 3
    s_cmp_eq_u32 s{sT0}, 3
    s_addc_u32 s{sBlk}, s{sBlk}, 0
    v_lshrrev_b32 v30, 1, v{vL}
    v_mul_u32_u24 v30, 2752, v30
    v_and_b32 v31, 1, v{vL}
    v_mul_u32_u24 v31, 124, v31
    v_add_u32 v30, v30, v31
    s_and_b32 s68, s{sRB}, 7
    s_lshl_b32 s68, s68, 1
    s_add_u32 s68, s68, s{sMI}
    s_mul_i32 s68, s68, {16*2752}
    s_lshl_b32 s{sT0}, s{sBlk}, 7
    s_add_u32 s68, s68, s{sT0}
    s_lshr_b32 s{sO}, s2, 5
    s_lshl_b32 s{sO}, s{sO}, 1
    s_add_u32 s{sO}, s{sO}, s{sMI}
    s_lshl_b32 s{sO}, s{sO}, 1
    s_lshr_b32 s{sT0}, s{sWave}, 1
    s_add_u32 s{sO}, s{sO}, s{sT0}
    s_lshl_b32 s{sO}, s{sO}, 16
    s_and_b32 s{sT0}, s2, 7
    s_lshl_b32 s{sT0}, s{sT0}, 12
    s_add_u32 s{sO}, s{sO}, s{sT0}
    s_bfe_u32 s{sT0}, s2, 0x20003
    s_lshl_b32 s{sT0}, s{sT0}, 10
    s_add_u32 s{sO}, s{sO}, s{sT0}
    s_add_u32 s{sO}, s{sO}, {OF}
    s_or_b32 s{sT1}, s2, s{sWave}
    s_cmp_lg_u32 s{sT1}, 0
    s_cbranch_scc1 L_pre_a2
    s_memrealtime s[4:5]
    s_waitcnt lgkmcnt(0)
    s_or_b32 s4, s4, 1
    v_mov_b32 v{vIdx}, s4
    buffer_store_dword v{vIdx}, v{vF}, {s(sDbg,4)}, 0 offen sc1
    """)
    A.label("L_pre_a2")
    if opt.get("pall"):
        A(f"""
        s_mov_b32 s{sWd+2}, {F*D*2}
        s_mov_b32 s{sWd+3}, 0x00020000
        s_mov_b32 s{sWo+2}, {D*D*2}
        s_mov_b32 s{sWo+3}, 0x00020000
        v_mul_u32_u24 v141, 2752, v{vL}
        s_and_b32 s{sT0}, s{sRB}, 7
        s_mul_i32 s{sT0}, s{sT0}, {64*2752}
        s_mul_i32 s{sT1}, s{sCG}, 384
        s_add_u32 s{sT0}, s{sT0}, s{sT1}
        s_mul_i32 s{sT1}, s{sMI}, 124
        s_add_u32 s{sT1}, s{sT0}, s{sT1}
        buffer_load_dword v143, v141, {s(sWgu,4)}, s{sT1} offen
        s_lshl_b32 s{sT1}, s{sMI}, 7
        s_add_u32 s{sT1}, s{sT0}, s{sT1}
        buffer_load_dword v143, v141, {s(sWgu,4)}, s{sT1} offen offset:252
        v_lshlrev_b32 v142, 10, v{vL}
        s_and_b32 s{sT0}, s{sRB}, 7
        s_lshl_b32 s{sT1}, s{sCG}, 7
        s_mul_i32 s{sT2}, s{sT0}, {172*1024}
        s_add_u32 s{sT2}, s{sT2}, s{sT1}
        s_lshl_b32 s4, s{sGW}, 16
        s_add_u32 s{sT2}, s{sT2}, s4
        buffer_load_dword v143, v142, {s(sWd,4)}, s{sT2} offen
        s_lshl_b32 s{sT0}, s{sT0}, 16
        s_add_u32 s{sT0}, s{sT0}, s{sT1}
        buffer_load_dword v143, v142, {s(sWo,4)}, s{sT0} offen
        s_waitcnt vmcnt(0)
        s_sleep 40
        """)
    A("s_mov_b32 s3, 0\ns_waitcnt vmcnt(0)")
    NEARLY = opt.get("nearly", 2)
    for g in range(NEARLY): dma(*ddq(g))
    if NEARLY > opt.get("p1at", 3):
        A(f"s_mov_b64 exec, {'0xffff0000' if opt.get('p1kv', 1) else '0xffffffff'}\nbuffer_load_dword v143, v{aP3}, {s(sWq,4)}, s7 offen")
        if opt.get("p2early", 1): A(f"s_mov_b64 exec, {PF2MASK}\nbuffer_load_dword v143, v30, {s(sWgu,4)}, s68 offen")
        A("s_mov_b64 exec, -1")
    vmq.clear()
    A.label("L_ln")
    ST()
    SA, TT, vXW = 104, 80, 112
    A(f"""
    s_mov_b32 s4, 0x3f803f80
    s_mov_b32 s5, 0x00003f80
    s_mov_b32 s6, 0x3f800000
    """)
    for i in range(32):
        a1 = SA + (i & 1); a2 = SA + 2 + (i & 1)
        A(f"v_dot2_f32_bf16 v{a1}, v{R+i}, s4, {'0' if i < 2 else 'v%d' % a1}")
        A(f"v_dot2_f32_bf16 v{a2}, v{R+i}, v{R+i}, {'0' if i < 2 else 'v%d' % a2}")
    m_, q_, mb_, rs_ = SA, SA + 2, SA + 4, SA + 6
    A(f"""
    s_lshr_b32 s{sT0}, s{sWave}, 2
    s_mul_i32 s{sT0}, s{sT0}, {64*PIECE}
    s_lshl_b32 s{sT1}, s{sGW}, 7
    v_add_f32 v{m_}, v{m_}, v{m_+1}
    v_add_f32 v{q_}, v{q_}, v{q_+1}
    s_add_u32 s{sT0}, s{sT0}, s{sT1}
    v_add_f32_dpp v{m_}, v{m_}, v{m_} quad_perm:[1,0,3,2] row_mask:0xf bank_mask:0xf
    v_add_f32_dpp v{q_}, v{q_}, v{q_} quad_perm:[1,0,3,2] row_mask:0xf bank_mask:0xf
    s_add_u32 s{sT0}, s{sT0}, {XT}
    v_add_f32_dpp v{m_}, v{m_}, v{m_} quad_perm:[2,3,0,1] row_mask:0xf bank_mask:0xf
    v_add_f32_dpp v{q_}, v{q_}, v{q_} quad_perm:[2,3,0,1] row_mask:0xf bank_mask:0xf
    v_mul_u32_u24 v{vXW}, {PIECE}, v{vT1}
    v_add_f32_dpp v{m_}, v{m_}, v{m_} row_half_mirror row_mask:0xf bank_mask:0xf
    v_add_f32_dpp v{q_}, v{q_}, v{q_} row_half_mirror row_mask:0xf bank_mask:0xf
    v_mul_f32 v{m_}, {hex(f2u(1.0/512))}, v{m_}
    v_mul_f32 v{q_}, {hex(f2u(1.0/512))}, v{q_}
    v_cvt_pk_bf16_f32 v{mb_}, v{m_}, v{m_}
    v_fma_f32 v{q_}, -v{m_}, v{m_}, v{q_}
    v_and_b32 v{mb_}, 0xffff0000, v{mb_}
    v_max_f32 v{q_}, 0, v{q_}
    v_xor_b32 v{mb_}, 0x80000000, v{mb_}
    v_cvt_pk_bf16_f32 v{q_}, v{q_}, v{q_}
    v_and_b32 v{q_}, 0xffff0000, v{q_}
    v_add_f32 v{q_}, {hex(f2u(1e-5))}, v{q_}
    v_cvt_pk_bf16_f32 v{q_}, v{q_}, v{q_}
    v_and_b32 v{q_}, 0xffff0000, v{q_}
    v_sqrt_f32 v{q_}, v{q_}
    v_lshl_add_u32 v{vXW}, v{vT0}, 4, v{vXW}
    v_cvt_pk_bf16_f32 v{q_}, v{q_}, v{q_}
    v_and_b32 v{q_}, 0xffff0000, v{q_}
    v_rcp_f32 v{rs_}, v{q_}
    v_rcp_f32 v{rs_+1}, v{q_}
    v_add_u32 v{vXW}, s{sT0}, v{vXW}
    """)
    for cb in range(8):
        t = TT + 8 * (cb & 1); r = R + 4 * cb
        for e in range(4):
            A(f"v_dot2_f32_bf16 v{t+2*e}, v{r+e}, s5, v{mb_}")
            A(f"v_dot2_f32_bf16 v{t+2*e+1}, v{r+e}, s6, v{mb_}")
        if cb > 0: A(f"ds_write_b128 v{vXW}, {v(R+4*(cb-1),4)} offset:{(cb-1)*8*PIECE}")
        else: A("s_nop 0")
        for e in range(4): A(f"v_pk_mul_f32 {v(t+2*e,2)}, {v(t+2*e,2)}, {v(rs_,2)}")
        for e in range(4): A(f"v_cvt_pk_bf16_f32 v{r+e}, v{t+2*e}, v{t+2*e+1}")
    A(f"ds_write_b128 v{vXW}, {v(R+28,4)} offset:{7*8*PIECE}")
    A("s_cmp_eq_u32 s3, 0\ns_cbranch_scc1 L_attn")

    def get_tag(vt, vz, lbl):
        A(f"v_mov_b32 v{vz}, 0")
        A.label(lbl)
        A(f"""
        buffer_load_dword v{vt}, v{vz}, {s(sDbg,4)}, 0 offen sc1
        s_waitcnt vmcnt(0)
        v_readfirstlane_b32 s{sTag}, v{vt}
        """)
        timeout_exit(lbl + "_x")
        A(f"s_cmp_eq_u32 s{sTag}, 0\ns_cbranch_scc1 {lbl}")
        A.label(lbl + "_x")
    def spin_flags(lbl, vf, voff, soff, nlanes, sleep=4):
        A.label(lbl)
        A(f"""
        s_mov_b64 exec, {emask(nlanes)}
        buffer_load_dword v{vf}, v{voff}, {ws}, s{soff} offen sc1
        s_waitcnt vmcnt(0)
        v_cmp_ne_u32 vcc, s{sTag}, v{vf}
        s_mov_b64 exec, -1
        s_cbranch_vccz {lbl}_x
        """)
        timeout_exit(lbl + "_x")
        A(f"s_sleep {sleep}\ns_branch {lbl}")
        A.label(lbl + "_x")
    def lds_spin(lbl, vdst, vaddr, off, cmp, sleep=0):
        A.label(lbl)
        A(f"ds_read_b32 v{vdst}, v{vaddr} offset:{off}\ns_waitcnt lgkmcnt(0)\n{cmp}\ns_cbranch_vccz {lbl}_x")
        timeout_exit(lbl + "_x")
        if sleep: A(f"s_sleep {sleep}")
        A(f"s_branch {lbl}")
        A.label(lbl + "_x")

    def xn(ks): return a(4 * ks, 4) if ks < 28 else v(96 + 4 * (ks - 28), 4)
    def xread(ks): lds(f"ds_read_b128 {xn(ks)}, v{vXR} offset:{2*ks*PIECE}", "xn")
    def check(fresh, off=0, need=None, sleep=1, reg=None, tag="poll"):
        l = lab("chk"); nd = f"s{sNeed}" if need is None else str(need)
        vP = reg if reg is not None else 20
        cmp = f"v_cmp_gt_u32 vcc, {nd}, v{vP}"
        if lowprio[0]: cmp = f"s_setprio 3\n{cmp}\ns_setprio 0"
        if fresh:
            lds(f"ds_read_b32 v{vP}, v{vCntR} offset:{off}", tag)
        lwait(tag)
        A(f"{cmp}\ns_cbranch_vccnz {l}")
        A.label(l + "_x")
        def sp():
            A.label(l)
            A(f"ds_read_b32 v{vP}, v{vCntR} offset:{off}\ns_waitcnt lgkmcnt(0)\n{cmp}\ns_cbranch_vccz {l}_x")
            timeout_exit(l + "_x")
            if lp or sleep > 1: A(f"s_sleep {sleep}")
            A(f"s_branch {l}")
        lp = lowprio[0]
        slow.append(sp)
        if need is None: A(f"s_add_u32 s{sNeed}, s{sNeed}, 1")
    def segment(stages, hooks=None, LA=opt.get('la', 5)):
        hooks = hooks or {}
        NB = len(WFB); assert NB >= LA + 1
        flat = [(si, fi, fr) for si, st in enumerate(stages) for fi, fr in enumerate(st["frags"])]
        sq = []
        for i in range(len(flat) + LA):
            if i < len(flat):
                si, fi, fr = flat[i]; st = stages[si]; nfr = len(st["frags"])
                if fi == 0:
                    assert not sq
                    if "label" in st: A.label(st["label"])
                    if opt.get("atrace") and lowprio[0]:
                        A(f"s_waitcnt lgkmcnt(0)\ns_mov_b32 s99, m0\ns_mov_b32 m0, s0\ns_add_u32 s0, s0, 1\ns_setprio 3\nv_writelane_b32 v31, s100, m0\ns_setprio {0 if lowprio[0] else 1}\ns_memrealtime s[100:101]\ns_mov_b32 m0, s99"); lq.clear()
                    if st["sync"]: check(si == 0, *st.get("chk", ()))
                    if "pre" in st: st["pre"]()
                    sq += st["pieces"]
                lo, hi, o0, o1, _ = fr
                base = st["slot"] * SLOT; reg = lo
                if base >= 65536: base -= 65536; reg = hi
                w = WFB[i % NB]
                lds(f"ds_read_b64_tr_b16 {v(w,2)}, v{reg} offset:{base+o0}", ("fr", i))
                lds(f"ds_read_b64_tr_b16 {v(w+2,2)}, v{reg} offset:{base+o1}", ("fr", i))
                if fi == st.get("waitat", st.get("pubat", 2)) and st["nxt"] is not None: vwait(st["nxt"])
                if fi == st.get("pubat", 2) and st["pub"]: lds(f"ds_add_u32 v{vCnt}, v{vOne}", "add")
                if len(sq) * 2 > (nfr - fi) or fi % 2 == 0:
                    k = -(-len(sq) // (nfr - fi))
                    for _ in range(k): sq.pop(0)()
                if fi == nfr - 2 and si + 1 < len(stages) and stages[si + 1]["sync"]:
                    lds(f"ds_read_b32 v{vP}, v{vCntR} offset:{stages[si + 1].get('chk', (0,))[0]}", "poll")
                if (si, fi) in hooks: hooks[(si, fi)]()
            j = i - LA
            if j >= 0:
                if opt.get("pairw", 1) and j % 2 == 0 and lq.need(("fr", j + 1)) is not None and len(flat[j][2][4]) == 1: lwait(("fr", j + 1))
                lwait(("fr", j))
                for m in flat[j][2][4]:
                    if callable(m): m()
                    elif opt.get("xnogm") and lowprio[0]: A("s_nop 7")
                    else: A(m.format(w=v(WFB[j % NB], 4)))
    if F0: ST()
    if opt.get("xln"): hold("L_hln", opt["xln"])
    A("s_waitcnt lgkmcnt(0)\ns_barrier")
    ST()
    if opt.get("atrace"): A(f"s_mov_b32 s0, 0\ns_memrealtime s[100:101]")
    for ks in range(8): xread(ks)
    def qkv_epi(p):
        acc = (ACC0, ACC1, ACC0)[p]; pk = TMP + 8 * p
        def f():
            if p == 2:
                for i in range(8): A(f"v_pk_mul_f32 {v(acc+2*i,2)}, {v(acc+2*i,2)}, {s(sC,2)}")
            for i in range(8): A(f"v_cvt_pk_bf16_f32 v{pk+i}, v{acc+2*i}, v{acc+2*i+1}")
            for i in range(8): A(f"v_min_u32 v{pk+i}, -2, v{pk+i}")
            if p == 1:
                A(f"buffer_store_dwordx4 {v(pk,4)}, v{vVo}, {ws}, s{sSt} offen sc1")
                A(f"buffer_store_dwordx4 {v(pk+4,4)}, v{vVo}, {ws}, s{sSt} offen offset:512 sc1")
            else:
                vo = vKo if p == 0 else vL16
                A(f"s_add_u32 s{sT0}, s{sSt}, 65536")
                A(f"buffer_store_dwordx4 {v(pk,4)}, v{vo}, {ws}, s{sSt} offen sc1")
                A(f"buffer_store_dwordx4 {v(pk+4,4)}, v{vo}, {ws}, s{sT0} offen sc1")
            vmq.push("st", 2)
        return f
    stages = []
    for q in range(12):
        p, part = divmod(q, 4); acc = v((ACC0, ACC1, ACC0)[p], 16)
        frags = []
        for kk in range(8):
            ks = part * 8 + kk; c = "0" if ks == 0 else acc
            m = f"{MF} {acc}, {xn(ks)}, {{w}}, {c}" if p == 1 else f"{MF} {acc}, {{w}}, {xn(ks)}, {c}"
            frags.append((vTRn, vTRnH, kk * 2048, kk * 2048 + 512, [m]))
        stages.append(dict(slot=q % 8, frags=frags, pieces=[], nxt=None, sync=True, pub=(q >= 1), pubat=0, chk=(1024, q + 1)))
    hooks = {(0, fi): (lambda fi=fi: [xread(8 + 3 * fi + e) for e in range(3)]) for fi in range(8)}
    def epi_items(p):
        acc = (ACC0, ACC1)[p]; pk = TMP + 8 * p
        L = [f"v_cvt_pk_bf16_f32 v{pk+i}, v{acc+2*i}, v{acc+2*i+1}" for i in range(8)]
        if p == 1:
            L += [f"buffer_store_dwordx4 {v(pk,4)}, v{vVo}, {ws}, s{sSt} offen sc1", f"buffer_store_dwordx4 {v(pk+4,4)}, v{vVo}, {ws}, s{sSt} offen offset:512 sc1"]
        else:
            L += [f"buffer_store_dwordx4 {v(pk,4)}, v{vKo}, {ws}, s{sSt} offen sc1", f"buffer_store_dwordx4 {v(pk+4,4)}, v{vKo}, {ws}, s{sD1} offen sc1",
                  f"buffer_load_dword v{vFl}, v{vT2}, {s(sDbg,4)}, 0 offen sc1"]
        return L
    qc = opt.get("qc", 0)
    GLATE[qc:qc] = [f"buffer_store_dwordx4 v[136:139], v{vL16}, {ws}, s{sSt} offen sc1", f"buffer_store_dwordx4 v[136:139], v{vL16}, {ws}, s{sD1} offen sc1"]
    n1 = len(GLATE)
    KE = opt.get("ke", 7)
    slots1 = [(q, fi) for q in range(1, KE) for fi in range(8) if (q, fi) not in ((1, 0), (4, 0), (5, 0), (6, 0))]
    plan = {}
    for k, it in enumerate(GLATE): plan.setdefault(slots1[k * len(slots1) // n1], []).append(it)
    for p, q0 in ((0, KE), (1, 9)):
        sl = [(q, fi) for q in (q0, q0 + 1) for fi in range(1, 8)]
        its = epi_items(p)
        sl = [x_ for x_ in sl for _ in range(2)]
        for k, it in enumerate(its): plan.setdefault(sl[k], []).append(it)
    if opt.get("xnofill"):
        for x in GLATE:
            if "v31," not in x: A(x.replace("|", "\n"))
        plan = {k_: [i_ for i_ in its if i_ not in GLATE] for k_, its in plan.items()}
    for k_, its in plan.items():
        hooks[k_] = (lambda its=its: [A(x.replace("|", "\n")) for x in its])
    GLATE = []
    if stamps:
        for q in ((1, 4, 5, 6, 7, 8, 9, 10, 11) if FR else (1, 4, 8)): hooks[(q, 0)] = ST
    segment(stages, hooks)
    assert not GLATE
    FF = opt.get("ff", 1)
    def kvflag(n):
        A(f"s_cmp_lg_u32 s{sTag}, 0\ns_cbranch_scc1 L_gtag_x")
        get_tag(vFl, vT2, "L_gtag")
        A(f"v_mov_b32 v{vFl}, s{sTag}\ns_waitcnt vmcnt({n})\ns_mov_b64 exec, 1\nbuffer_store_dword v{vFl}, v{vT2}, {ws}, s{sFlag} offen sc1\ns_mov_b64 exec, -1")
    A(f"s_waitcnt vmcnt(2)\nv_readfirstlane_b32 s{sTag}, v{vFl}")
    if FF: kvflag(0); A("s_nop 3")
    else: A("s_nop 9")
    qkv_epi(2)()
    ST()
    if not FF: kvflag(2)
    A(f"s_mov_b32 s{sC}, {hex(f2u(C2))}\ns_mov_b32 s{sC+1}, {hex(f2u(C2))}")
    lds(f"ds_add_u32 v{vCnt}, v{vOne}", "add")
    ST()
    if FR: again(); ST.flush(ws, STAMP, sWave, 2, 3, sT0); A("s_endpgm"); ST.on = False
    if opt.get("gexit"): A(f"ds_add_u32 v{vCnt}, v{vOne}\ns_waitcnt lgkmcnt(0)\ns_endpgm")
    LOOK = opt.get("look", 4)
    check(True, 1024, 12 + NG0)
    A(f"s_mov_b32 s{sNeed}, 12\ns_setprio 0")
    lowprio[0] = True
    def gslot(g): return 2 + (g + 2) % 6
    def ffn_dd(g):
        if g < 24: return ("g", g, gslot(g))
        if g < 35: return ("d", g - 24, gslot(g))
        return ("o", g - 35, gslot(g))
    E0 = 8
    vP2 = vVo
    G2 = opt.get("g2", 1)
    def kneed(k):
        b0 = 12 + NG0 + 1
        step = k - RKV
        if not G2: return b0 + step + 1
        return b0 + 1 if step == 0 else b0 + 2 + step // 2
    def kv_poll(): lds(f"ds_read_b32 v{vP2}, v{vCntR} offset:1024", "poll2")
    def kv_issue(k, fresh=False):
        check(fresh, 1024, kneed(k), sleep=opt.get('ksleep', 4), reg=vP2, tag="poll2")
        A(f"s_add_u32 m0, s{sKVm}, {((k + E0) % RKV) * 1024}\ns_add_u32 s{sT0}, s{sKVs}, {k*1024}")
        A(f"buffer_load_dwordx4 v{vL16}, {ws}, s{sT0} offen sc1 lds"); vmq.push(("kv", k))
    def kv_pub(k):
        vwait(("kv", k))
        for _ in range((3 if G2 else 2) if k == 31 else 1): lds(f"ds_add_u32 v{vCnt}, v{vOne} offset:512", "add")
    S0 = opt.get("s0", 4); KLAG = opt.get("klag", 2)
    A(f"s_cmp_lg_u32 s{sNb}, 3\ns_cbranch_scc1 L_ffn")
    check(True, 1024, 12 + NG0 + 1)
    vmq.clear()
    kvs = [RKV + st - S0 for st in range(S0, 8)]; npub = max(0, 8 - KLAG - S0); done = []
    def light_kv():
        nonlocal npub
        if done and npub: kv_pub(done.pop(0)); npub -= 1
        if kvs: k = kvs.pop(0); kv_issue(k, True); done.append(k)
    if opt.get("pfw", 1):
        P = [0, 128, 384, 512, 768, 896, 256, 640, 1024, 1152, 1280, 1404][:2 * opt.get('npf', 6)]
        PCAP = opt.get("pcap", 1)
        A(f"""
        s_setprio 3
        v_mul_u32_u24 v{TMP}, 2752, v{vL}
        s_setprio 0
        s_and_b32 s4, s{sRB}, 7
        s_mul_i32 s5, s4, {64*2752}
        s_lshr_b32 s6, s{sCG}, 2
        s_mul_i32 s7, s6, 1408
        s_add_u32 s5, s5, s7
        """)
        for i in range(len(P) // 2):
            lo_, hi_ = sorted(P[2*i:2*i+2])
            A(f"s_mul_i32 s{sT0}, s{sMI}, {hi_-lo_}\ns_add_u32 s{sT0}, s{sT0}, s5")
            A(f"buffer_load_dword v143, v{TMP}, {s(sWgu,4)}, s{sT0} offen offset:{lo_}\ns_waitcnt vmcnt({PCAP})")
            vmq.push("pf"); vmq.waited(PCAP)
            if i >= 2: light_kv()
    for g in range(8, 8 + LOOK): dma(*ffn_dd(g))
    while kvs or (done and npub): light_kv()
    A("s_waitcnt vmcnt(0)")
    lds(f"ds_add_u32 v{vCnt}, v{vOne}", "add")
    A(f"s_add_u32 s{sNeed}, s{sNeed}, 1\ns_setprio 3\nv_mov_b32 v{vP}, 0\nv_mov_b32 v{vP2}, 0\ns_setprio 0")
    A("s_branch L_ffn8")
    A.label("L_ffn")
    vmq.clear(); lq.clear()
    T1, U1 = TMP, [88, 90, 92, 94, 128, 130, 132, 134]
    AD1 = [v(40, 16), v(56, 16), v(96, 16), a(96, 16)]
    def gelu1():
        G, U = ACC0, ACC1
        A("s_setprio 3\ns_nop 9")
        for i in range(8): A(f"v_pk_mul_f32 {v(T1+2*i,2)}, {v(G+2*i,2)}, {v(G+2*i,2)}")
        for i in range(8): A(f"v_pk_fma_f32 {v(T1+2*i,2)}, {v(T1+2*i,2)}, {s(sC,2)}, {v(vT0,2)}")
        for i in range(8): A(f"v_pk_mul_f32 {v(U1[i],2)}, {v(U+2*i,2)}, {v(G+2*i,2)}")
        for i in range(8): A(f"v_pk_mul_f32 {v(T1+2*i,2)}, {v(T1+2*i,2)}, {v(G+2*i,2)}")
        A("s_setprio 0")
    def gelu2_groups(b):
        L = [f"v_exp_f32 v{T1+i}, v{T1+i}" for i in range(16)]
        L += [f"v_pk_add_f32 {v(T1+2*i,2)}, {v(T1+2*i,2)}, 1.0 op_sel_hi:[1,0]" for i in range(8)]
        L += [f"v_rcp_f32 v{T1+i}, v{T1+i}" for i in range(16)]
        L += [f"v_pk_mul_f32 {v(U1[i],2)}, {v(U1[i],2)}, {v(T1+2*i,2)}" for i in range(8)]
        L += [f"v_cvt_pk_bf16_f32 v{T1+i}, v{U1[i]}, v{U1[i]+1}" for i in range(8)]
        sizes = [4, 4, 4, 4, 8, 4, 4, 4, 4, 8, 8]
        G_ = []
        for n in sizes:
            grp = L[:n]; L = L[n:]
            G_.append(lambda grp=grp: A("s_setprio 3\n" + "\n".join(grp) + "\ns_setprio 0"))
        def store():
            l = lab("hskip")
            if b == 0: A(f"s_cmp_eq_u32 s{sNb}, 3\ns_cbranch_scc1 {l}")
            if b == 2: A(f"s_add_u32 s{sT0}, s{sCG}, s{sNI}\ns_cmp_eq_u32 s{sT0}, 8\ns_cbranch_scc1 {l}")
            A(f"s_add_u32 s{sT0}, s{sHst}, {b*4096}")
            A(f"buffer_store_dwordx4 {v(T1,4)}, v{vL16}, {ws}, s{sT0} offen sc1")
            A(f"buffer_store_dwordx4 {v(T1+4,4)}, v{vL16}, {ws}, s{sT0} offen offset:1024 sc1")
            A.label(l)
            vmq.since = 0
        return G_ + [store]
    def send_flag(b):
        def f():
            n = min(vmq.since, 63)
            A(f"s_waitcnt vmcnt({n})"); vmq.waited(n)
            A(f"s_add_u32 s{sT0}, s{sHfl}, {b*4096}\ns_mov_b64 exec, 1\nbuffer_store_dword v{vFl}, v{vT2}, {ws}, s{sT0} offen sc1\ns_mov_b64 exec, -1")
        return f
    NH = 12
    def hload(t):
        b = 8 * (t % NH)
        if DSEQ[t] == 21:
            A(f"s_and_b32 s{sT2}, s{sGW}, 2\ns_lshl_b32 s{sT2}, s{sT2}, 10\ns_sub_u32 s{sT2}, s{sHb}, s{sT2}\ns_add_u32 s{sT2}, s{sT2}, {DSEQ[t]*4096}")
        else:
            A(f"s_add_u32 s{sT2}, s{sHb}, {DSEQ[t]*4096}")
        A(f"buffer_load_dwordx4 {a(b,4)}, v{vH0}, {ws}, s{sT2} offen sc1")
        A(f"buffer_load_dwordx4 {a(b+4,4)}, v{vH1}, {ws}, s{sT2} offen sc1")
        vmq.push(("h", t), 2)
    def hflag_issue(c):
        A(f"s_add_u32 s{sT2}, s{sHld}, {c*4096}\ns_mov_b64 exec, {hex(CMASK[c])}")
        A(f"buffer_load_dword v{vHF}, v{vL128}, {ws}, s{sT2} offen sc1\ns_mov_b64 exec, -1")
        vmq.push(("hf", c))
    def hflag_check(c):
        vwait(("hf", c))
        l = f"L_hf{c}"
        A(f"s_setprio 3\nv_cmp_ne_u32 vcc, s{sTag}, v{vHF}\ns_setprio 0\ns_and_b32 vcc_lo, vcc_lo, {hex(CMASK[c])}\ns_cbranch_scc1 {l}_s")
        A.label(l + "_b")
        def sp():
            A.label(l + "_s")
            A(f"s_add_u32 s{sT2}, s{sHld}, {c*4096}\ns_setprio 3")
            spin_flags(l, vHF, vL128, sT2, hex(CMASK[c]), sleep=8)
            A(f"s_setprio 0\ns_branch {l}_b")
        slow.append(sp)
    def p4(ni):
        def f():
            l = lab("p4")
            A(f"""
            s_cmp_lg_u32 s{sNI}, {ni}
            s_cbranch_scc1 {l}_x
            s_and_b32 s{sT0}, s{sRB}, 7
            s_lshl_b32 s{sT1}, s{sCG}, 7
            s_cmp_eq_u32 s{sGW}, 3
            s_cbranch_scc1 {l}_o
            s_mul_i32 s{sT0}, s{sT0}, {172*1024}
            s_add_u32 s{sT0}, s{sT0}, s{sT1}
            s_lshl_b32 s{sT1}, s{sGW}, 16
            s_add_u32 s{sT0}, s{sT0}, s{sT1}
            buffer_load_dword v143, v{vXR}, {s(sWd,4)}, s{sT0} offen
            s_branch {l}_x
            """)
            A.label(l + "_o")
            A(f"s_lshl_b32 s{sT0}, s{sT0}, 16\ns_add_u32 s{sT0}, s{sT0}, s{sT1}\nbuffer_load_dword v143, v{vXR}, {s(sWo,4)}, s{sT0} offen")
            A.label(l + "_x")
        return f
    allp = []
    for g in range(NG0, 39): allp += [(g, p) for p in dma_pieces(*ffn_dd(g))]
    T0 = opt.get("t0", 2 if NG0 >= 4 else NG0 - 1); RATE = opt.get("rate", 6)
    NE = opt.get("ne", 0)
    pre0 = []
    while allp[0][0] < opt.get("np0", 0): pre0.append(allp.pop(0)[1])
    early = [[allp.pop(0)[1] for _ in range(4)] for _ in range(NE)]
    prep_ = []
    while allp[0][0] <= T0 + 1: prep_.append(allp.pop(0)[1])
    sched = []
    for st in range(35):
        take = []
        if st < NE: take = early[st]; assert st < T0
        if st >= T0:
            while allp and allp[0][0] <= st + LOOK and len(take) < RATE: take.append(allp.pop(0)[1])
        sched.append(take)
        if st == 7 and not FR: assert allp[0][0] == 8 + LOOK and len([1 for g, _ in allp if g == 8 + LOOK]) == 4
    assert not allp
    stages = []
    post = {}
    for st in range(35):
        frags = []
        if st < 24:
            for kk in range(4):
                ks = (st % 8) * 4 + kk
                for p, acc in enumerate((ACC0, ACC1)):
                    c = "0" if ks == 0 else v(acc, 16)
                    frags.append((vTRn, vTRnH, p * 8192 + kk * 2048, p * 8192 + kk * 2048 + 512, [f"{MF} {v(acc,16)}, {{w}}, {xn(ks)}, {c}"]))
        else:
            for kk in range(2):
                t = 2 * (st - 24) + kk; b = 8 * (t % NH)
                for ni, (lo, hi) in enumerate(((vTRp0, vTRp0H), (vTRp1, vTRp1H))):
                    ms = [(lambda t=t: vwait(("h", t)))] if ni == 0 else []
                    for mi in range(2):
                        d = AD1[2 * ni + mi]; c = "0" if t == 0 else d
                        ms.append(f"{MF} {d}, {{w}}, {a(b+4*mi,4)}, {c}")
                    frags.append((lo, hi, kk * 2048, kk * 2048 + 1024, ms))
        nx = ffn_dd(st + 1)
        stages.append(dict(slot=gslot(st), frags=frags, pieces=sched[st], nxt=("dma", nx[0], nx[1]),
                           sync=(st <= 25), pub=(st <= 24), pubat=(0 if st >= 23 else opt.get("pubat", 2)),
                           waitat=(3 if st >= 24 else (6 if st == 23 else opt.get("pubat", 2)))))
    assert LOOK <= 4
    stages[T0]["pre"] = lambda: (check(True, 1024, 12 + NG0 + 1) if opt.get("thr", 1) else None, [p_() for p_ in prep_])
    stages[8]["label"] = "L_ffn8"
    if pre0: assert T0 > 0; stages[0]["pre"] = lambda: [p_() for p_ in pre0]
    GATE = opt.get("gate", 31); GR_ = opt.get("gater", 17 if G2 else 33)
    if GATE:
        def gate():
            A("s_waitcnt lgkmcnt(0)"); lq.clear()
            for st_ in range(GATE, GATE + 2):
                if st_ < 35:
                    for p_ in stages[st_]["pieces"]: p_()
                    stages[st_]["pieces"] = []
            for k_ in sorted(k for k in hooks if k[0] in (GATE, GATE + 1)):
                hooks.pop(k_)()
            if opt.get("warm", 0):
                A("s_mov_b64 exec, 0\ns_branch L_wg"); A.label("L_wg_ret"); A("s_mov_b64 exec, -1")
            check(True, 1024, 12 + NG0 + 1 + GR_, sleep=4)
        stages[GATE]["pre"] = gate
    hooks = {}
    for b in range(3):
        st0 = 8 * (b + 1)
        stages[st0]["frags"][0][4].insert(0, gelu1)
        grp = gelu2_groups(b)
        pos = [(si, fi, k) for si in (st0, st0 + 1, st0 + 2) for fi, fr in enumerate(stages[si]["frags"]) for k, m in enumerate(fr[4]) if not callable(m)]
        if b == 2: pos = [p_ for p_ in pos for _ in range(2)]
        for (si, fi, k), g_ in reversed(list(zip(pos, grp))):
            stages[si]["frags"][fi][4].insert(k + 1, g_)
        hooks[(st0 + 3, 3) if b < 2 else (26, 1)] = send_flag(b)
    def addhook(pos, f):
        old = hooks.get(pos)
        hooks[pos] = (lambda: (old(), f())) if old else f
    for k in range(RKV, 32):
        st = S0 + k - RKV
        nf = len(stages[st]["frags"]); nfp = len(stages[st - 1]["frags"])
        addhook((st - 1, nfp - 1), kv_poll)
        addhook((st, nf // 2), lambda k=k: kv_issue(k))
        addhook((st + KLAG, 0), lambda k=k: kv_pub(k))
    if opt.get("p4", 1): hooks[(opt.get("p4a", 10), 1)] = p4(0); hooks[(opt.get("p4b", 14), 1)] = p4(1)
    HL = opt.get("hl", 5)
    def hpos(t):
        u = t - HL
        if u >= 0: return (24 + u // 2, 2 * (u % 2) + 1)
        return (24 + (u // 2), 4 * (u % 2) + 1)
    for t in range(22):
        fs = []
        if t in CSTART: fs.append(lambda c=CSTART[t]: hflag_check(c))
        fs.append(lambda t=t: hload(t))
        if t + 2 in CSTART: fs.append(lambda c=CSTART[t + 2]: hflag_issue(c))
        old = hooks.get(hpos(t))
        if old: fs.insert(0, old)
        hooks[hpos(t)] = (lambda fs=fs: [f() for f in fs])
    p0 = hpos(0); addhook((p0[0] - 1, 3), lambda: hflag_issue(0))
    XRAW = 136
    def xload():
        for q in range(4):
            A(f"buffer_load_dwordx2 {v(XRAW+2*q,2)}, v{vXo}, {s(sX,4)}, s{sXo} offen offset:{16*q}"); vmq.push("xr")
    addhook((28, 0), xload)
    def fo_addr(): A(f"s_lshl_b32 s{sT2}, s{sRB}, 12\ns_lshl_b32 s{sT0}, s{sGW}, 10\ns_add_u32 s{sT2}, s{sT2}, s{sT0}\ns_add_u32 s{sT2}, s{sT2}, {FO}")
    def fo_issue():
        fo_addr()
        A(f"s_mov_b64 exec, 0xff\nbuffer_load_dword v{vHF}, v{vL128}, {ws}, s{sT2} offen sc1\ns_mov_b64 exec, -1"); vmq.push("fo")
    def fo_check():
        vwait("fo")
        A(f"s_setprio 3\nv_cmp_ne_u32 vcc, s{sTag}, v{vHF}\ns_setprio 0\ns_and_b32 vcc_lo, vcc_lo, 0xff\ns_cbranch_scc1 L_fo_s")
        A.label("L_fo_b")
        def sp():
            A.label("L_fo_s")
            fo_addr(); A("s_setprio 3")
            spin_flags("L_fo", vHF, vL128, sT2, 8, sleep=8)
            A("s_setprio 0\ns_branch L_fo_b")
        slow.append(sp)
    def o_tile():
        A(f"s_lshr_b32 s4, s2, 5\ns_lshl_b32 s4, s4, 1\ns_add_u32 s4, s4, s{sMI}\ns_lshl_b32 s4, s4, 1\ns_add_u32 s4, s4, s{sNI}")
        A(f"s_and_b32 s5, s2, 7\ns_lshl_b32 s5, s5, 2\ns_bfe_u32 s6, s2, 0x20003\ns_add_u32 s5, s5, s6")
    def o_clear():
        o_tile()
        A(f"s_lshl_b32 s6, s4, 16\ns_lshl_b32 s7, s5, 10\ns_add_u32 s6, s6, s7\ns_add_u32 s6, s6, {OF}\ns_add_u32 s7, s6, 32768")
        A(f"buffer_store_dwordx4 v[136:139], v{vL16}, {ws}, s6 offen sc1\nbuffer_store_dwordx4 v[136:139], v{vL16}, {ws}, s7 offen sc1"); vmq.push("oc", 2)
    def o_flag():
        vwait("oc")
        A(f"s_lshl_b32 s6, s4, 12\ns_lshl_b32 s7, s5, 7\ns_add_u32 s6, s6, s7\ns_add_u32 s6, s6, {FO}")
        A(f"s_mov_b64 exec, 1\nbuffer_store_dword v{vFl}, v{vT2}, {ws}, s6 offen sc1\ns_mov_b64 exec, -1"); vmq.push("of")
    addhook((8, 5), o_clear); addhook((12, 5), o_flag)
    addhook((17, 5), fo_issue); addhook((19, 5), fo_check)
    if stamps:
        for st in (8, 16, 24): addhook((st, 0), ST)
    segment(stages, hooks)
    lowprio[0] = False
    ST()
    if opt.get("atrace"):
        A(f"s_lshl_b32 s{sT0}, s2, 4\ns_add_u32 s{sT0}, s{sT0}, s{sWave}\ns_lshl_b32 s{sT0}, s{sT0}, 8\ns_add_u32 s{sT0}, s{sT0}, {STAMP+MB}\nv_lshlrev_b32 v135, 2, v{vL}\nbuffer_store_dword v31, v135, {ws}, s{sT0} offen\ns_waitcnt vmcnt(0)")
    XF = [120, 122, 124, 126, 32, 34, 36, 38]
    WARM = opt.get("warm", 0)
    if WARM: A.warm_begin()
    vwait(("dma", "o", 3))
    for i in range(8):
        slot = gslot(35 + i // 2); base = slot * SLOT
        for ni, (lo, hi) in enumerate(((vTRp0, vTRp0H), (vTRp1, vTRp1H))):
            reg, b = (lo, base) if base < 65536 else (hi, base - 65536)
            lds(f"ds_read_b64_tr_b16 {a(8*i+4*ni,2)}, v{reg} offset:{b + (i%2)*2048}", "wo")
            lds(f"ds_read_b64_tr_b16 {a(8*i+4*ni+2,2)}, v{reg} offset:{b + (i%2)*2048 + 1024}", "wo")
    vR = [None, vKo, vVo, vXR]
    sHave, sNext = 4, 5
    A(f"""
    s_setprio {opt.get("tprio", 3)}
    s_lshl_b32 s7, s{sRB}, 16
    s_lshl_b32 s{sT0}, s{sGW}, 13
    s_add_u32 s7, s7, s{sT0}
    s_add_u32 s7, s7, {OF}
    s_add_u32 s6, s7, 4096
    s_mov_b32 s{sHave}, 0
    s_mov_b32 s{sNext}, 0
    s_mov_b32 s{sC}, {hex(f2u(-1.4426950408889634))}
    s_mov_b32 s{sC+1}, {hex(f2u(-1.4426950408889634))}
    v_xor_b32 v{vR[1]}, 4096, v{vRW}
    v_xor_b32 v{vR[2]}, 8192, v{vRW}
    v_xor_b32 v{vR[3]}, 12288, v{vRW}
    v_and_b32 v{vL128}, 7, v{vL}
    v_lshlrev_b32 v{vL128}, 10, v{vL128}
    v_bfe_u32 v{vFl}, v{vL}, 3, 1
    v_lshl_add_u32 v{vL128}, v{vFl}, 15, v{vL128}
    """)
    for r_ in [vRW] + vR[1:]: A(f"v_add_u32 v{r_}, {RB0 + 2*SLOT}, v{r_}")
    OFR = 56
    AS = [(v, 40), (a, 64), (a, 80), (a, 96)]
    def o_loads(u):
        for i in range(8):
            so = 7 if i < 4 else 6
            if u: A(f"s_bitcmp1_b32 s{sD0}, {i}\ns_cbranch_scc0 L_ol{u}_{i}")
            A(f"buffer_load_dwordx4 {v(OFR+8*i,4)}, v{vO0}, {ws}, s{so} offen offset:{(i%4)*1024} sc1")
            A(f"buffer_load_dwordx4 {v(OFR+8*i+4,4)}, v{vO1}, {ws}, s{so} offen offset:{(i%4)*1024} sc1")
            if u: A.label(f"L_ol{u}_{i}")
    def reduce_tile(dst, src, mid=None):
        for lt in range(1, 4):
            k_, b_ = src[lt]
            for q in range(4):
                lds(f"ds_write_b128 v{vRW}, {k_(b_+4*q,4)} offset:{(lt-1)*SLOT + q*1024}", "w")
        lds(f"ds_add_u32 v{vCnt}, v{vOne}", "add")
        check(True)
        for lt in range(1, 4):
            for q in range(4):
                lds(f"ds_read_b128 {v(40+16*lt+4*q,4)}, v{vR[lt]} offset:{(lt-1)*SLOT + q*1024}", ("r", lt))
        if mid: mid()
        lwait(("r", 1))
        for i in range(8): A(f"v_pk_add_f32 {v(40+2*i,2)}, {v(40+2*i,2)}, {v(56+2*i,2)}")
        lwait(("r", 3))
        for i in range(8): A(f"v_pk_add_f32 {v(72+2*i,2)}, {v(72+2*i,2)}, {v(88+2*i,2)}")
        for i in range(8): A(f"v_pk_add_f32 {v(dst+2*i,2)}, {v(40+2*i,2)}, {v(72+2*i,2)}")
    def mid0():
        vwait("xr")
        for i in range(8):
            A(f"v_lshlrev_b32 v{XF[i]}, 16, v{XRAW+i}")
            A(f"v_and_b32 v{XF[i]+1}, 0xffff0000, v{XRAW+i}")
    reduce_tile(GR, [(v, 40), (v, 56), (v, 96), (a, 96)], mid0)
    OG = opt.get("ogate", 0)
    if not OG: o_loads("")
    Tv = 40
    for i in range(8): A(f"v_pk_mul_f32 {v(Tv+2*i,2)}, {v(GR+2*i,2)}, {s(sC,2)}")
    for i in range(16): A(f"v_exp_f32 v{Tv+i}, v{Tv+i}")
    for r_ in [vRW] + vR[1:]: A(f"v_add_u32 v{r_}, {3*SLOT}, v{r_}")
    for i in range(8): A(f"v_pk_add_f32 {v(Tv+2*i,2)}, {v(Tv+2*i,2)}, 1.0 op_sel_hi:[1,0]")
    for i in range(16): A(f"v_rcp_f32 v{Tv+i}, v{Tv+i}")
    A("s_nop 0")
    for i in range(8): A(f"v_pk_mul_f32 {v(GR+2*i,2)}, {v(GR+2*i,2)}, {v(Tv+2*i,2)}")
    ST()
    if OG == 1:
        check(True, 1024, 12 + NG0 + 1 + 17, sleep=4); o_loads("")
    if OG == 2:
        A(f"s_lshl_b32 s{sT0}, s{sGW}, 9\ns_add_u32 s{sT0}, s{sT0}, {AFL+256}\nv_mov_b32 v{vP}, s{sT0}")
        lds_spin("L_ow", vHF, vP, 0, f"v_cmp_eq_u32 vcc, 0, v{vHF}", sleep=2); o_loads("")
    sLd = sD0
    vPr, vPa = vFl, vL128
    PROBE = f"s_mov_b64 exec, 0xffff\nbuffer_load_dword v{vPr}, v{vPa}, {ws}, s7 offen offset:1020 sc1\ns_mov_b64 exec, -1"
    if OG == 3:
        A(f"s_mov_b32 s{sLd}, 0")
    else:
        A(f"s_mov_b32 s{sLd}, 0xff")
    A.label("L_of")
    A("s_waitcnt vmcnt(0)")
    for i in range(8):
        o_ = OFR + 8 * i
        A(f"""
        s_bitcmp1_b32 s{sLd}, {i}
        s_cbranch_scc0 L_ov{i}
        v_max3_u32 v{vHF}, v{o_}, v{o_+1}, v{o_+2}
        v_max3_u32 v{vP}, v{o_+3}, v{o_+4}, v{o_+5}
        v_max3_u32 v{vHF}, v{vHF}, v{o_+6}, v{o_+7}
        v_max_u32 v{vHF}, v{vHF}, v{vP}
        v_cmp_eq_u32 vcc, -1, v{vHF}
        s_cbranch_vccnz L_ov{i}
        s_bitset1_b32 s{sHave}, {i}
        """)
        A.label(f"L_ov{i}")
    A(f"s_cmp_lt_i32 s{sTO}, 0\ns_cselect_b32 s{sHave}, 0xff, s{sHave}\ns_cmp_eq_u32 s{sHave}, 0xff\ns_cbranch_scc1 L_onp")
    A(PROBE)
    A.label("L_onp")
    for i in range(8):
        A(f"s_cmp_lg_u32 s{sNext}, {i}\ns_cbranch_scc1 L_om{i}\ns_bitcmp1_b32 s{sHave}, {i}\ns_cbranch_scc0 L_opr")
        for ni in range(2):
            for mi in range(2):
                k_, b_ = AS[2 * ni + mi]; d = k_(b_, 16)
                A(f"{MF} {d}, {a(8*i+4*ni,4)}, {v(OFR+8*i+4*mi,4)}, {d if i else 0}")
        A(f"s_mov_b32 s{sNext}, {i+1}")
        A.label(f"L_om{i}")
    def sp():
        A.label("L_opr")
        A(f"""
        s_waitcnt vmcnt(0)
        v_cmp_ne_u32 vcc, -1, v{vPr}
        s_sub_u32 s{sTO}, s{sTO}, 1
        s_lshr_b32 s{sLd}, vcc_lo, 8
        s_and_b32 s{sLd}, s{sLd}, vcc_lo
        s_cmp_lt_i32 s{sTO}, 0
        s_cselect_b32 s{sLd}, 0xff, s{sLd}
        s_and_b32 s{sLd}, s{sLd}, 0xff
        s_andn2_b32 s{sLd}, s{sLd}, s{sHave}
        s_cbranch_scc1 L_opg
        s_sleep {opt.get("osleep", 2)}
        {PROBE}
        s_branch L_opr
        """)
        A.label("L_opg")
        o_loads("b")
        A("s_branch L_of")
    slow.append(sp)
    ST()
    A("s_nop 10")
    reduce_tile(40, AS)
    for i in range(8): A(f"v_pk_fma_f32 {v(40+2*i,2)}, {v(40+2*i,2)}, {v(GR+2*i,2)}, {v(XF[i],2)}")
    for i in range(8): A(f"v_cvt_pk_bf16_f32 v{56+i}, v{40+2*i}, v{41+2*i}")
    A("s_nop 1")
    for h in range(2):
        A(f"v_permlane32_swap_b32 v{56+4*h}, v{58+4*h}\nv_permlane32_swap_b32 v{57+4*h}, v{59+4*h}")
    for h in range(2):
        A(f"buffer_store_dwordx4 {v(56+4*h,4)}, v{vRR}, {s(sOut,4)}, s{sXo} offen offset:{32*h}{['', ' sc1', ' nt', ' sc0 sc1'][opt.get('om', 0)]}")
    if WARM: A.warm_end("L_wg", "L_wa2", WARM)
    if opt.get("xhold"):
        A.label("L_hold")
        A(f"s_memrealtime s[98:99]\ns_waitcnt lgkmcnt(0)\ns_sub_u32 s98, s98, s{sTag if opt.get('xtag') else 100}\ns_cmp_lt_u32 s98, {opt['xhold']}\ns_cbranch_scc1 L_hold")
    if stamps:
        ST.on = True
        if not FR: ST(); ST.flush(ws, STAMP, sWave, 2, 3, sT0)
        if opt.get("dbgout"):
            A(f"s_cmp_lg_u32 s2, {opt['dbgout']-1}\ns_cbranch_scc1 L_dbx\ns_cmp_lg_u32 s{sWave}, 4\ns_cbranch_scc1 L_dbx\nv_mov_b32 v2, 0")
            for i in range(1, ST.n):
                A(f"s_sub_u32 s4, s{ST.base+2*i}, s{ST.base}\nv_mov_b32 v3, s4\nbuffer_store_dword v3, v2, {s(sDbg,4)}, 0 offen offset:{4*i}\ns_nop 1")
            A.label("L_dbx")
    A("s_endpgm")
    for f in slow: f()
    slow.clear()

    ST.n = 2 if stamps else 0
    A.label("L_attn")
    lq.clear(); vmq.clear()
    for g in range(NEARLY): vmq.push(("dma", "q", g), 4)
    def pub_ld(g):
        d = ddq(g); vwait(("dma", d[0], d[1])); lds(f"ds_add_u32 v{vCnt}, v{vOne}", "add")
    def FS():
        if FR: ST()
    def p2():
        A(f"s_mov_b64 exec, {PF2MASK}\nbuffer_load_dword v143, v30, {s(sWgu,4)}, s68 offen\ns_mov_b64 exec, -1"); vmq.push("pf")
    FS()
    NB4 = max(opt.get("nb4", 4), NEARLY)
    for g in range(NEARLY, NB4):
        dma(*ddq(g))
        if g == opt.get("p1at", 3):
            A(f"s_mov_b64 exec, {'0xffff0000' if opt.get('p1kv', 1) else '0xffffffff'}\nbuffer_load_dword v143, v{aP3}, {s(sWq,4)}, s7 offen\ns_mov_b64 exec, -1"); vmq.push("pf")
            if opt.get("p2early", 1): p2()
    pub_ld(0)
    A("s_waitcnt lgkmcnt(0)\ns_barrier"); lq.clear()
    ST()
    for g in range(1, NB4): pub_ld(g)
    for g in range(NB4, 5): dma(*ddq(g))
    FS()
    A(GUADDR)
    A(f"""
    s_and_b32 s{sT0}, s2, 7
    s_lshr_b32 s{sT1}, s2, 3
    s_and_b32 s{sT2}, s{sT1}, 3
    s_lshl_b32 s{sHead}, s{sT0}, 2
    s_add_u32 s{sHead}, s{sHead}, s{sT2}        ; head
    s_lshr_b32 s{sT1}, s{sT1}, 2
    s_lshl_b32 s{sT1}, s{sT1}, 1
    s_add_u32 s{sT1}, s{sT1}, s{sMI}
    s_lshr_b32 s4, s{sWave}, 1
    s_lshl_b32 s5, s{sHead}, 16
    s_lshl_b32 s{sQ}, s{sT1}, 12
    s_add_u32 s{sQ}, s{sQ}, s5
    s_lshl_b32 s6, s4, 11
    s_add_u32 s{sQ0}, s{sQ}, s6
    s_xor_b32 s6, s6, 2048
    s_add_u32 s{sQ}, s{sQ}, s6
    s_lshl_b32 s{sT1}, s{sT1}, 1
    s_add_u32 s{sT1}, s{sT1}, s4
    s_lshl_b32 s{sFo}, s{sT1}, 12
    s_lshl_b32 s{sT0}, s{sHead}, 7
    s_add_u32 s{sFo}, s{sFo}, s{sT0}
    s_add_u32 s{sFo}, s{sFo}, {FO}
    s_add_u32 s{sKb}, s5, {KF}
    s_lshl_b32 s{sT0}, s4, 15
    s_add_u32 s{sKVb}, s{sKb}, s{sT0}
    v_mov_b32 v{vK}, v{vL16}
    v_lshrrev_b32 v{vV}, 5, v{vL}
    v_lshlrev_b32 v{vV}, 8, v{vV}
    v_and_b32 v{aPKV}, 15, v{vL}
    v_lshl_add_u32 v{vV}, v{aPKV}, 4, v{vV}
    v_add_u32 v{vV}, {VF-KF}, v{vV}
    s_mov_b32 s{sMask}, 0x0000ffff
    s_mov_b32 s{sMask+1}, 0x0000ffff
    s_mov_b32 s{sFB}, 1
    s_mov_b32 s{sOff}, {hex(f2u(-float(opt.get('offset', 80))))}
    v_mov_b32 v{vIdx}, 0xdddddddd
    v_and_b32 v{aOnes}, 27, v{vL}
    v_cmp_eq_u32 vcc, 16, v{aOnes}
    v_mov_b32 v{aOnes}, 0x3f803f80
    s_lshr_b32 s{sFQ}, s{sHead}, 1
    v_cndmask_b32 v{aOnes}, 0, v{aOnes}, vcc
    s_lshl_b32 s{sFQ}, s{sFQ}, 13
    s_add_u32 s{sFQ}, s{sFQ}, {FQ}
    v_lshlrev_b32 v{aL128}, 7, v{vL}
    s_lshr_b32 s{sPKV}, s2, 5
    s_lshl_b32 s{sPKV}, s{sPKV}, 2
    s_add_u32 s{sPKV}, s{sPKV}, s{sWave}
    s_lshl_b32 s{sPKV}, s{sPKV}, 11
    s_add_u32 s{sPKV}, s{sPKV}, s{sKb}          ; K/V slice
    v_lshlrev_b32 v{aPKV}, 7, v{aPKV}
    v_bfe_u32 v{aPF}, v{vL}, 4, 1
    v_lshl_add_u32 v{aPKV}, v{aPF}, 21, v{aPKV}
    """)
    assert VF - KF == 1 << 21
    for g in range(NB4, 5): pub_ld(g)
    check(True, 0, 1, sleep=opt.get("asleep", 2))
    FS()
    NPRE = 12 + NG0
    for g in range(5, NPRE):
        if g >= 9: check(True, 0, g - 7, sleep=opt.get('asleep', 2))
        if g == 12:
            pub_ld(11)
            if not opt.get("p2early", 1): p2()
        dma(*ddq(g))
        if g >= 7 and g < 16: FS()
        if 8 <= g <= 11:
            inits = [f"v_accvgpr_write_b32 a{x[1]+i}, v{aOnes}" if x[0] == "a" else f"v_mov_b32 v{x[1]+i}, v{aOnes}" for x in VRG for i in range(8)]
            inits += [f"v_accvgpr_write_b32 a{O+i}, 0" for i in range(64)]
            for x in inits[(g - 8) * 20:(g - 7) * 20]: A(x)
        if g == 11:
            A(f"v_mov_b32 v{vT1}, 0\nbuffer_load_dword v{vF}, v{vT1}, {s(sDbg,4)}, 0 offen sc1"); vmq.push("tag")
        if g > 5 and g != 12: pub_ld(g - 1)
    pub_ld(NPRE - 1)
    if FR: ST(); again(); ST.flush(ws, STAMP, sWave, 2, 3, sT0); A("s_endpgm"); ST.on = False; stamps = False
    if opt.get("aexit"): A("s_waitcnt lgkmcnt(0)\ns_endpgm")
    A(f"s_waitcnt vmcnt(0)\nv_readfirstlane_b32 s{sTag}, v{vF}\ns_cmp_lg_u32 s{sTag}, 0\ns_cbranch_scc1 L_atag_x")
    get_tag(vF, vT1, "L_atag")
    A(f"s_mov_b32 s{sFo}, 0")
    A(f"s_setprio 2\ns_cmp_lg_u32 s{sWave}, 0\ns_cbranch_scc1 L_aw")
    lds_spin("L_ag2", M, vCntR, 0, f"v_cmp_gt_u32 vcc, {opt.get('ag', 12)}, v{M}", sleep=2)
    ST()
    spin_flags("L_qf", vF, aL128, sFQ, 64, sleep=opt.get("qsleep", 2))
    if opt.get('ag', 12) < 12: lds_spin("L_ag4", M, vCntR, 0, f"v_cmp_gt_u32 vcc, 12, v{M}", sleep=1)
    A(f"ds_write_b32 v{aGo}, v{vOne}\ns_branch L_aw_x")
    A.label("L_aw")
    if WARM:
        A("s_mov_b64 exec, 0\ns_branch L_wa1"); A.label("L_wa1_ret"); A("s_mov_b64 exec, -1")
    if stamps: ST.n -= 1; ST()
    lds_spin("L_ag3", M, aGo, 0, f"v_cmp_eq_u32 vcc, 0, v{M}", sleep=1)
    A.label("L_aw_x")
    if opt.get("xgo"): hold("L_hgo", opt["xgo"])
    ST()
    if WARM: A.warm_begin()
    sKN = sKB2
    vOwn, vOneA, vKl, vVl, vPl = 2, 3, 4, 5, 6
    A(f"buffer_load_dwordx4 {a(KS,4)}, v{vK}, {ws}, s{sKb} offen sc1")
    NS = opt.get("ns", 2)
    if NS == 2: A(f"buffer_load_dwordx4 {a(KS+4,4)}, v{vK}, {ws}, s{sKb} offen offset:1024 sc1")
    def qloads():
        for t in range(4):
            A(f"buffer_load_dwordx4 {v(SB+4*t,4)}, v{vK}, {ws}, s{sQ0 if t < 2 else sQ} offen offset:{(t&1)*1024} sc1")
    def qverify():
        for k in range(0, 15, 2):
            A(f"v_max3_u32 v{M}, v{SB+k}, v{SB+k+1}, v{M if k else SB+15}")
        A(f"v_cmp_eq_u32 vcc, -1, v{M}")
    qloads()
    A(f"s_and_b32 s4, s{sWave}, 1\ns_lshl_b32 s4, s4, 21\ns_add_u32 s4, s4, s{sKVb}\ns_mul_i32 s5, s{sWave}, {RKV*1024}")
    for k0, n in ((0, 2), (2, 4), (6, 4)):
        A(f"s_add_u32 m0, s5, {((k0 + E0) % RKV) * 1024}\ns_add_u32 s6, s4, {k0*1024}")
        for i in range(n): A(f"buffer_load_dwordx4 v{vK}, {ws}, s6 offen offset:{i*1024} sc1 lds")
    A(f"""
    v_subrev_u32 v{vOwn}, 1024, v{vCnt}
    v_mov_b32 v{vOneA}, 1
    s_lshr_b32 s4, s{sWave}, 1
    s_mul_i32 s4, s4, {2*RKV*1024}
    v_add_u32 v{vKl}, s4, v{vK}
    s_sub_u32 s4, s4, {VF-KF-RKV*1024}
    v_add_u32 v{vVl}, s4, v{vV}
    v_mov_b32 v{vF}, 2
    s_waitcnt vmcnt({RKV})
    """)
    qverify()
    A("s_cbranch_vccnz L_qre")
    A.label("L_qre_x")
    def sp():
        A.label("L_qre")
        qloads()
        A("s_waitcnt vmcnt(0)")
        qverify()
        A("s_cbranch_vccz L_qre_x")
        timeout_exit("L_qre_x")
        A("s_sleep 1\ns_branch L_qre")
    slow.append(sp)
    A(f"ds_add_u32 v{vOwn}, v{vOneA} offset:1024")
    for i in range(16): A(f"v_accvgpr_write_b32 a{Q+i}, v{SB+i}")
    A("s_nop 1")
    def maxtree(dst, blocks, first):
        regs = [b + i for b in blocks for i in range(16)]
        if first:
            A(f"v_max3_f32 v{dst}, v{regs[0]}, v{regs[1]}, v{regs[2]}"); regs = regs[3:]
        while len(regs) >= 2:
            A(f"v_max3_f32 v{dst}, v{dst}, v{regs[0]}, v{regs[1]}"); regs = regs[2:]
        if regs: A(f"v_max_f32 v{dst}, v{dst}, v{regs[0]}")
    def build_c():
        T_ = SB
        for t in range(4): A(f"v_mov_b32 v{T_+t}, v{M+t}")
        A("s_nop 1")
        for t in range(4): A(f"v_permlane32_swap_b32 v{T_+t}, v{M+t}")
        for t in range(4): A(f"v_max_f32 v{M+t}, v{M+t}, v{T_+t}")
        for t in range(4): A(f"v_sub_f32 v{M+t}, s{sOff}, v{M+t}")
    def fill_c(t):
        for i in range(8): A(f"v_pk_mov_b32 {v(C+16*t+2*i,2)}, {v(M+(t&~1),2)}, {v(M+(t&~1),2)} op_sel:[{t&1},{t&1}]")
    for t in range(4):
        A(f"{MF} {v(C+16*t,16)}, {a(KS,4)}, {a(Q+4*t,4)}, 0")
        if NS == 2: A(f"{MF} {v(SB+16*t,16)}, {a(KS+4,4)}, {a(Q+4*t,4)}, 0")
    A(f"s_waitcnt vmcnt({RKV-2})\nds_add_u32 v{vOwn}, v{vF} offset:512\ns_nop {3 if NS == 2 else 6}")
    for t in range(4): maxtree(M + t, [C + 16 * t, SB + 16 * t][:NS], True)
    def kvread(slot, pos, add=True):
        A(f"ds_read_b128 {rg(KRG[slot])}, v{vKl} offset:{pos*1024}")
        A(f"s_mov_b64 exec, {s(sMask,2)}")
        A(f"ds_read_b128 {rg(VRG[slot])}, v{vVl} offset:{pos*1024}")
        A(f"ds_read_b128 {rg(VRG[slot],4)}, v{vVl} offset:{pos*1024+512}")
        A(f"s_mov_b64 exec, -1")
        if add: A(f"ds_add_u32 v{vOwn}, v{vOneA} offset:1024")
    lds_spin("L_akv", vF, vCntR, 512, f"v_cmp_gt_u32 vcc, 2, v{vF}")
    kvread(E0 & 1, E0)
    build_c()
    fill_c(0)
    A(f"v_mov_b32 v{vF}, {RKV-2}\ns_waitcnt lgkmcnt(0)")
    A(f"{MF} {v(SB,16)}, {rg(KRG[E0 & 1])}, {a(Q,4)}, {v(C,16)}")
    A(f"s_waitcnt vmcnt(0)\nds_add_u32 v{vOwn}, v{vF} offset:512")
    for t in range(1, 4): fill_c(t)
    for i in range(4): A(f"v_pk_mov_b32 {v(SB+48+8+2*i,2)}, 0, 0")
    A(f"v_mov_b32 v{vPl}, 2\ns_mov_b32 s{sCnt}, 4\ns_mov_b32 s{sKN}, {3 if G2 else 2}")
    ST()
    if stamps: A("s_memtime s[96:97]")
    if WARM: A.warm_end("L_wa1", "L_wa1_ret", WARM)
    A("s_branch L_aent")
    A.raw(".p2align 6")
    A.label("L_aloop")
    for r in range(RKV):
        if r == E0: A.label("L_aent")
        sl = r & 1
        for t in range(4):
            X = SB + 16 * t
            tn = (t + 1) & 3; sn = sl if t < 3 else sl ^ 1
            tp = (t - 1) & 3; sp_ = sl if t > 0 else sl ^ 1
            E = lambda j: f"v_exp_f32 v{X+j}, v{X+j}"
            if t == 3: A("s_waitcnt lgkmcnt(0)")
            A(f"{MF} {v(SB+16*tn,16)}, {rg(KRG[sn])}, {a(Q+4*tn,4)}, {v(C+16*tn,16)}")
            for j in range(0, 5): A(E(j))
            A(f"{SMF} {a(O+16*tp,16)}, {rg(VRG[sp_],4)}, {v(SB+16*tp+8,8)}, v{vIdx}")
            A(E(5))
            if t == 0 and G2 and r % 2 == 1:
                kvread(sl ^ 1, (r + 1) % RKV, add=False)
            elif t == 0:
                l = lab("akc")
                A(f"v_cmp_gt_u32 vcc, s{sKN}, v{vPl}\ns_cbranch_vccnz {l}")
                A.label(l + "_x")
                def sp(l=l):
                    A.label(l)
                    A(f"ds_read_b32 v{vPl}, v{vCntR} offset:512\ns_waitcnt lgkmcnt(0)\nv_cmp_gt_u32 vcc, s{sKN}, v{vPl}\ns_cbranch_vccz {l}_x")
                    timeout_exit(l + "_x")
                    A(f"s_sleep 1\ns_branch {l}")
                slow.append(sp)
                kvread(sl ^ 1, (r + 1) % RKV)
            if t == 2 and (not G2 or r % 2 == 1):
                A(f"ds_read_b32 v{vPl}, v{vCntR} offset:512\ns_add_u32 s{sKN}, s{sKN}, {2 if G2 else 1}")
            for j in range(6, 11): A(E(j))
            A(f"{SMF} {a(O+16*t,16)}, {rg(VRG[sl])}, {v(X,8)}, v{vIdx}")
            if r == RKV - 1 and t == 3:
                A(E(11))
                A(f"s_sub_u32 s{sCnt}, s{sCnt}, 1\ns_cmp_lg_u32 s{sCnt}, 0")
                for j in range(12, 16): A(E(j))
            else:
                for j in range(11, 16): A(E(j))
    A("s_cbranch_scc1 L_aloop")
    A("s_nop 1")
    A(f"{SMF} {a(O+48,16)}, {rg(VRG[1],4)}, {v(SB+48+8,8)}, v{vIdx}")
    A.label("L_afin")
    if WARM: A.warm_begin()
    ST()
    if stamps: A("s_memtime s[98:99]")
    A(f"""
    s_mul_i32 s{sT0}, s{sWave}, {CMBW}
    s_add_u32 s{sT0}, s{sT0}, {CMB}
    v_add_u32 v2, s{sT0}, v{vK}
    v_lshl_add_u32 v3, v{vL}, 2, s{sT0}
    s_xor_b32 s{sT0}, s{sWave}, 2
    s_mul_i32 s{sT0}, s{sT0}, {CMBW}
    s_add_u32 s{sT0}, s{sT0}, {CMB}
    v_add_u32 v4, s{sT0}, v{vK}
    v_lshl_add_u32 v5, v{vL}, 2, s{sT0}
    v_mov_b32 v{vF}, s{sFB}
    """)
    for i in range(2):
        t = 2 + i
        if i == 1: A("s_nop 0")
        A(f"ds_write_b128 v2, {a(O+16*t,4)} offset:{i*2304}")
        A(f"ds_write_b128 v2, {a(O+16*t+4,4)} offset:{i*2304+1024}")
        A(f"ds_write_b32 v3, a{O+16*t+8} offset:{i*2304+2048}")
    A(f"ds_write_b32 v{vAF}, v{vF}")
    for i in range(2):
        for e in range(9): A(f"v_accvgpr_read_b32 v{C+24*i+e}, a{O+16*i+e}")
    lds_spin("L_ax", M, vPF, 0, f"v_cmp_gt_u32 vcc, s{sFB}, v{M}")
    for i in range(2):
        b = C + 24 * i + 12
        A(f"ds_read_b128 {v(b,4)}, v4 offset:{i*2304}")
        A(f"ds_read_b128 {v(b+4,4)}, v4 offset:{i*2304+1024}")
        A(f"ds_read_b32 v{b+8}, v5 offset:{i*2304+2048}")
    A(f"""
    v_mov_b32 v2, 0
    v_mov_b32 v3, 0
    s_mov_b32 s4, {hex(f2u(2.0**-110))}
    s_mov_b32 s5, {hex(f2u(2.0**120))}
    s_add_u32 s6, s{sO}, 32768
    s_waitcnt lgkmcnt(0)
    """)
    B_ = [C, C + 24]
    for b0 in B_: A(f"v_add_f32 v{b0+8}, v{b0+8}, v{b0+20}")
    for b0 in B_: A(f"v_rcp_f32 v{b0+10}, v{b0+8}")
    for b0 in B_:
        for e in range(4): A(f"v_pk_add_f32 {v(b0+2*e,2)}, {v(b0+2*e,2)}, {v(b0+12+2*e,2)}")
    A(f"""
    v_min_f32 v4, v{B_[0]+8}, v{B_[1]+8}
    v_max_f32 v5, v{B_[0]+8}, v{B_[1]+8}
    v_cmp_nle_f32 {s(sBad,2)}, s4, v4
    v_cmp_nge_f32 vcc, s5, v5
    """)
    for b0 in B_:
        for e in range(4): A(f"v_pk_mul_f32 {v(b0+2*e,2)}, {v(b0+2*e,2)}, {v(b0+10,2)} op_sel_hi:[1,0]")
    A(f"s_or_b64 {s(sBad,2)}, {s(sBad,2)}, vcc")
    for b0 in B_:
        for e in range(4): A(f"v_pk_fma_f32 v[2:3], {v(b0+2*e,2)}, 0, v[2:3] op_sel_hi:[1,0,1]")
    for b0 in B_:
        for e in range(4): A(f"v_cvt_pk_bf16_f32 v{b0+12+e}, v{b0+2*e}, v{b0+2*e+1}")
    A("v_cmp_u_f32 vcc, v2, v3")
    for b0 in B_:
        for e in range(4): A(f"v_min_u32 v{b0+12+e}, -2, v{b0+12+e}")
    A(f"""
    s_or_b64 {s(sBad,2)}, {s(sBad,2)}, vcc
    s_cselect_b32 s4, 2, 1
    s_cmp_eq_u32 s{sFB}, 2
    s_cselect_b32 s5, 1, s4
    s_or_b32 s5, s5, s{sFo}
    s_cmp_lg_u32 s5, 1
    s_cbranch_scc1 L_anost
    buffer_store_dwordx4 {v(B_[0]+12,4)}, v{vK}, {ws}, s{sO} offen sc1
    buffer_store_dwordx4 {v(B_[1]+12,4)}, v{vK}, {ws}, s6 offen sc1
    s_mov_b32 s{sFo}, 2
    """)
    A.label("L_anost")
    A(f"v_mov_b32 v2, s4\nds_write_b32 v{vAF}, v2 offset:256")
    if WARM: A.warm_end("L_wa2", "L_wg_ret", WARM)
    A.label("L_anoflag")
    if stamps:
        ST(); A("s_waitcnt lgkmcnt(0)\ns_sub_u32 s98, s98, s96\ns_add_u32 s%d, s98, s%d" % (ST.base + 2 * ST.n, ST.base)); ST.n += 1
        ST.flush(ws, STAMP, sWave, 2, 3, sT0)
    A(f"s_cmp_eq_u32 s{sFB}, 2\ns_cbranch_scc1 L_end")
    lds_spin("L_as", M, vPF, 256, f"v_cmp_eq_u32 vcc, 0, v{M}")
    A(f"v_readfirstlane_b32 s5, v{M}\ns_max_u32 s4, s4, s5\ns_cmp_lt_u32 s4, 2\ns_cbranch_scc1 L_end")
    A(f"s_mov_b32 s{sFB}, 2\ns_mov_b32 s{sOff}, 0\ns_mov_b32 s{sCnt}, 64\ns_mov_b32 s{sKA}, s{sKb}\ns_waitcnt vmcnt(0)")
    for t in range(4): A(f"v_mov_b32 v{M+t}, 0xff800000")
    A.label("L_afb")
    A(f"buffer_load_dwordx4 {a(KS,4)}, v{vK}, {ws}, s{sKA} offen sc1")
    A("s_waitcnt vmcnt(0)")
    for t in range(4): A(f"{MF} {v(C+16*t,16)}, {a(KS,4)}, {a(Q+4*t,4)}, 0")
    A("s_nop 11")
    for t in range(4): maxtree(M + t, [C + 16 * t], False)
    A(f"s_add_u32 s{sKA}, s{sKA}, 1024\ns_sub_u32 s{sCnt}, s{sCnt}, 1\ns_cmp_lg_u32 s{sCnt}, 0\ns_cbranch_scc1 L_afb")
    build_c()
    for t in range(4): fill_c(t)
    zero_o()
    A(f"s_mov_b32 s{sCnt}, 32\ns_mov_b32 s{sKA}, s{sKVb}")
    A.label("L_afb2")
    A(f"""
    buffer_load_dwordx4 {rg(KRG[0])}, v{vK}, {ws}, s{sKA} offen sc1
    s_mov_b64 exec, {s(sMask,2)}
    buffer_load_dwordx4 {rg(VRG[0])}, v{vV}, {ws}, s{sKA} offen sc1
    buffer_load_dwordx4 {rg(VRG[0],4)}, v{vV}, {ws}, s{sKA} offen offset:512 sc1
    s_mov_b64 exec, -1
    s_waitcnt vmcnt(0)
    """)
    for t in range(4): A(f"{MF} {v(SB+16*t,16)}, {rg(KRG[0])}, {a(Q+4*t,4)}, {v(C+16*t,16)}")
    A("s_nop 8")
    for j in range(64): A(f"v_exp_f32 v{SB+j}, v{SB+j}")
    A("s_nop 2")
    for t in range(4):
        A(f"{SMF} {a(O+16*t,16)}, {rg(VRG[0])}, {v(SB+16*t,8)}, v{vIdx}")
        A(f"{SMF} {a(O+16*t,16)}, {rg(VRG[0],4)}, {v(SB+16*t+8,8)}, v{vIdx}")
    A(f"s_add_u32 s{sKA}, s{sKA}, 1024\ns_sub_u32 s{sCnt}, s{sCnt}, 1\ns_cmp_lg_u32 s{sCnt}, 0\ns_cbranch_scc1 L_afb2")
    A("s_nop 15\ns_branch L_afin")
    for f in slow: f()
    A.label("L_end")
    A("s_endpgm")
    if opt.get("cpf", 1): A.raw(f".fill (51200 - (. - {K})) / 4, 4, 0xbf800000")

    H_ = Asm()
    H_.raw(f"; @launch grid=(256,1,1) block=(512,1,1) lds={LDS}")
    H_.raw('.amdgcn_target "amdgcn-amd-amdhsa--gfx950"\n.text')
    H_.lines += A.lines
    H_.raw(f""".section .rodata,"a"
.p2align 6
.amdhsa_kernel {K}
  .amdhsa_next_free_vgpr {NV+NA}
  .amdhsa_next_free_sgpr 102
  .amdhsa_accum_offset {NV}
  .amdhsa_group_segment_fixed_size 0
  .amdhsa_kernarg_size 80
  .amdhsa_user_sgpr_count 2
  .amdhsa_user_sgpr_kernarg_segment_ptr 1
  .amdhsa_system_sgpr_workgroup_id_x 1
.end_amdhsa_kernel""")
    txt = H_.text()
    check_hazards(txt)
    return txt

if __name__ == "__main__":
    base = {"pfgo": 1}
    open("mega_s.s", "w").write(build(True, base))
    open("mega.s", "w").write(build(False, base))
    open("mega_tr.s", "w").write(build(True, dict(base, atrace=1)))
    open("mega_dbg.s", "w").write(build(True, dict(base, dbgout=10)))
    open("mega_pt.s", "w").write(build(False, dict(base, pretouch=1)))
    open("mega_nc.s", "w").write(build(False, dict(base, cpf=0)))
    open("mega_b.s", "w").write(build(True, dict(base, p1kv=0, p2early=0)))
    open("mega_c.s", "w").write(build(True, dict(base, p1kv=1, p2early=0)))
    open("mega_d.s", "w").write(build(True, dict(base, p1kv=0, p2early=1)))
```

```python
import sys, struct
from asmlib import *
from layout import *
NAME = 'recurrent_scan__softmax_full_mha__glu_gated_geglu__prompt'
def f2u(x): return struct.unpack("<I", struct.pack("<f", x))[0]
MF = "v_mfma_f32_32x32x16_bf16"
SMF = "v_smfmac_f32_32x32x32_bf16"
C1 = -2.0 * 1.4426950408889634 * 0.7978845608028654
C2 = C1 * 0.044715
NV, NA = 144, 112

SLOT = 16384
RB0 = 9472
KST = 1056
RKV = 10
PIECE = 528
XT = RB0 + 5 * SLOT
CMB = RB0 + 8 * SLOT
CMBW = 2 * 2304
CNT = CMB + 4 * CMBW
LDC = CNT + 1024
AFL = LDC + 1024
GO = AFL + 8 * 256
LDS = GO + 256
assert XT + 128 * PIECE <= CNT and LDS <= 163840 and 4 * RKV * KST == RB0 + 2 * SLOT

class Fifo:
    def __init__(self, cap): self.q = []; self.cap = cap; self.since = 0
    def push(self, tag, n=1): self.q += [tag] * n; self.since += n
    def need(self, tag):
        idx = [i for i, t in enumerate(self.q) if t == tag]
        if not idx: return None
        return min(len(self.q) - 1 - idx[-1], self.cap)
    def waited(self, n): self.q = self.q[max(0, len(self.q) - n):] if n else []
    def clear(self): self.q = []

def build(stamps=False, opt=None):
    opt = opt or {}
    TIMEOUT = opt.get("timeout", 200000)
    NG0 = opt.get('ng0', 4)
    PF2MASK = '0xffffffff'
    A = Asm()
    K = NAME + "_kernel"
    ST = Stamps(A, 70, stamps); ST.cyc = opt.get('cyc', False)
    sX, sWq, sWgu, sWd, sWo, sWS, sOut, sDbg = 8, 12, 16, 20, 24, 28, 32, 36
    sWave, sRB, sCG, sT0, sT1, sT2, sTag, sTO = 40, 41, 42, 43, 44, 45, 46, 47
    sGW, sMI, sNI, sM0, sQoff, sGoff, sDoff, sOoffW, sNeed, sFlag, sHst, sBlk, sNb = 48, 49, 50, 51, 52, 53, 54, 55, 56, 57, 58, 59, 60
    sHfl, sC, sD0, sD1, sHld, sXo, sHb, sSt = 61, 62, 64, 65, 66, 67, 68, 69
    sKA, sCnt, sKB2, sBad = 48, 51, 49, 52
    sFB, sOff, sQ, sKVb, sHead, sO, sKb, sFo = 50, 54, 55, 56, 57, 60, 61, 62
    sMask, sQ0, sFQ, sP3, sPKV = 58, 63, 65, 66, 67
    sKVs, sKVm = 52, 1
    ws = s(sWS, 4)
    vL, vT0, vT1, vT2, vHF = 1, 2, 3, 4, 5
    vDq0, vDq1, vDg0, vDg1, vDd0, vDd1 = 6, 7, 8, 9, 10, 11
    vTRn, vTRnH, vTRp0, vTRp0H, vTRp1, vTRp1H = 12, 13, 14, 15, 16, 17
    vCnt, vOne, vP, vL16, vFl, vL128 = 18, 19, 20, 21, 22, 23
    vH0, vO0 = 6, 7
    vCntR = 0
    slow = []
    vKo, vVo, vH1, vO1, vXo, vRW, vRR, vXR = 24, 25, 26, 27, 28, 29, 30, 31
    WFB = [32, 36, 112, 116, 120, 124]
    if opt.get('twice'): WFB = [32, 128, 112, 116, 120, 124]
    ACC0, ACC1, TMP, AD, XR, GR, SR = 40, 56, 72, 40, 104, 128, 112
    vmq = Fifo(63); lq = Fifo(15)
    uid = [0]
    lowprio = [False]
    def lab(p):
        uid[0] += 1; return f"L_{p}{uid[0]}"
    def vwait(tag):
        n = vmq.need(tag)
        if n is not None: A(f"s_waitcnt vmcnt({n})"); vmq.waited(n)
    def lwait(tag):
        n = lq.need(tag)
        if n is not None: A(f"s_waitcnt lgkmcnt({n})"); lq.waited(n)
    def lds(instr, tag):
        if len(lq.q) >= 15:
            A("s_waitcnt lgkmcnt(12)"); lq.waited(12)
        A(instr); lq.push(tag)
    def timeout_exit(lbl):
        A(f"s_sub_u32 s{sTO}, s{sTO}, 1\ns_cmp_lt_i32 s{sTO}, 0\ns_cbranch_scc1 {lbl}")
    def emask(n): return n if isinstance(n, str) else ("-1" if n == 64 else hex((1 << n) - 1))

    A.raw(f".globl {K}\n.p2align 8\n.type {K},@function\n{K}:")
    F0 = opt.get("front0"); FR = opt.get("front")
    A(f"""
    s_cmp_ge_u32 s2, 256
    s_cbranch_scc1 L_end
    """)
    if opt.get("twice"): A("v_mov_b32 v135, 0"); A.label("L_restart")
    def again():
        if opt.get("twice"):
            l = lab("tw")
            A(f"s_waitcnt vmcnt(0) lgkmcnt(0)\ns_barrier\ns_setprio 0\nv_readfirstlane_b32 s4, v135\ns_cmp_lg_u32 s4, 0\ns_cbranch_scc1 {l}\nv_mov_b32 v135, 1\ns_lshl_b32 s4, s40, 6\nv_add_u32 v0, s4, v1\ns_sleep 40\ns_branch L_restart")
            A.label(l)
    if opt.get("xhold") or opt.get("xgo") or opt.get("xln"): A("s_memrealtime s[100:101]")
    def hold(lbl, t):
        A.label(lbl)
        A(f"s_memrealtime s[98:99]\ns_waitcnt lgkmcnt(0)\ns_sub_u32 s98, s98, s100\ns_cmp_lt_u32 s98, {t}\ns_cbranch_scc1 {lbl}")
    if opt.get("scr"):
        A("s_and_b32 s4, s2, 7\ns_lshl_b32 s4, s4, 3\ns_bfe_u32 s5, s2, 0x30003\ns_and_b32 s2, s2, 0xc0\ns_or_b32 s2, s2, s4\ns_or_b32 s2, s2, s5")
    A(f"""
    s_load_dwordx4 s[4:7], s[0:1], 0
    s_load_dwordx2 s[24:25], s[0:1], 16
    s_load_dwordx4 s[16:19], s[0:1], 32
    s_load_dwordx4 s[20:23], s[0:1], 48
    s_load_dwordx4 s[36:39], s[0:1], 64
    """)
    if opt.get("cpf", 1):
        A(f"""
        s_getpc_b64 s[8:9]
        s_lshr_b32 s10, s2, 3
        s_lshl_b32 s10, s10, 7
        s_add_u32 s8, s8, s10
        s_addc_u32 s9, s9, 0
        v_lshlrev_b32 v2, 12, v0
        v_add_co_u32 v2, vcc, s8, v2
        v_mov_b32 v3, s9
        v_cmp_gt_u32 s[10:11], 12, v0
        v_addc_co_u32 v3, vcc, 0, v3, vcc
        s_and_saveexec_b64 s[12:13], s[10:11]
        s_cbranch_execz L_nocpf
        global_load_dword v143, v[2:3], off
        L_nocpf:
        s_mov_b64 exec, -1
        """)
    ST()
    A(f"""
    v_lshrrev_b32 v{vT0}, 6, v0
    v_and_b32 v{vL}, 63, v0
    s_and_b32 s{sT0}, s2, 7
    v_readfirstlane_b32 s{sWave}, v{vT0}
    s_lshr_b32 s{sT1}, s2, 3
    s_lshr_b32 s{sRB}, s{sT0}, 1
    s_lshl_b32 s{sRB}, s{sRB}, 3
    s_and_b32 s{sT2}, s{sT1}, 7
    s_add_u32 s{sRB}, s{sRB}, s{sT2}
    s_and_b32 s{sCG}, s{sT0}, 1
    s_lshl_b32 s{sCG}, s{sCG}, 2
    s_lshr_b32 s{sT2}, s{sT1}, 3
    s_add_u32 s{sCG}, s{sCG}, s{sT2}
    v_lshrrev_b32 v{vT0}, 3, v{vL}
    v_and_b32 v{vT1}, 7, v{vL}                  ; 16B piece
    v_lshlrev_b32 v{vT2}, 10, v{vT0}
    v_lshl_add_u32 v5, v{vT1}, 4, v{vT2}
    s_lshl_b32 s{sT0}, s{sRB}, 16
    s_lshl_b32 s{sT1}, s{sWave}, 13
    s_add_u32 s{sT0}, s{sT0}, s{sT1}
    s_mov_b32 s{sX+2}, {S*D*2}
    s_mov_b32 s{sX+3}, 0x00020000
    s_mov_b32 s{sWq+2}, {D*1536*2}
    s_mov_b32 s{sWq+3}, 0x00020000
    s_and_b32 s{sGW}, s{sWave}, 3
    s_and_b32 s{sMI}, s{sGW}, 1
    v_lshlrev_b32 v{vL16}, 4, v{vL}
    s_lshl_b32 s{sT1}, s{sGW}, 2
    s_add_u32 s{sT1}, s{sT1}, {CNT}
    v_lshlrev_b32 v{vCnt}, 2, v{vL}
    v_add_u32 v{vCnt}, {CNT+256}, v{vCnt}
    v_writelane_b32 v{vCnt}, s{sT1}, 0
    v_mov_b32 v{vOne}, 1
    v_and_b32 v{vFl}, 3, v{vL}
    v_lshlrev_b32 v{vCntR}, 2, v{vFl}
    v_add_u32 v{vCntR}, {CNT}, v{vCntR}
    s_mov_b32 s{sTO}, {TIMEOUT}
    s_waitcnt lgkmcnt(0)
    s_mov_b32 s{sX}, s4
    s_mov_b32 s{sX+1}, s5
    s_mov_b32 s{sWq}, s6
    s_mov_b32 s{sWq+1}, s7
    """)
    R = 40
    for cb in range(8):
        A(f"buffer_load_dwordx4 {v(R+4*cb,4)}, v5, {s(sX,4)}, s{sT0} offen offset:{cb*128}")
    SRDS = f"""
    s_mov_b32 s{sWS}, s38
    s_mov_b32 s{sWS+1}, s39
    s_mov_b32 s{sWS+2}, {WS_USED}
    s_mov_b32 s{sWS+3}, 0x00020000
    s_mov_b32 s{sDbg+2}, 256
    s_mov_b32 s{sDbg+3}, 0x00020000
    s_bitcmp1_b32 s{sWave}, 1
    s_cselect_b32 s{sWgu}, s18, s16
    s_cselect_b32 s{sWgu+1}, s19, s17
    s_mov_b32 s{sWgu+2}, {D*F*2}
    s_mov_b32 s{sWgu+3}, 0x00020000
    v_lshlrev_b32 v{vT2}, 1, v{vT0}
    v_and_b32 v{vT2}, 4, v{vT2}
    v_xor_b32 v{vT2}, v{vT2}, v{vT1}
    v_lshlrev_b32 v{vHF}, 4, v{vT2}
    s_lshl_b32 s{sM0}, s{sGW}, 12
    s_add_u32 s{sM0}, s{sM0}, {RB0}
    s_mul_i32 s{sBlk}, s{sCG}, 3
    s_add_u32 s{sT1}, s{sCG}, 1
    s_lshr_b32 s{sT1}, s{sT1}, 2
    s_sub_u32 s{sBlk}, s{sBlk}, s{sT1}
    v_mul_u32_u24 v{vDq0}, 3072, v{vT0}
    v_add_u32 v{vDq0}, v{vDq0}, v{vHF}
    v_add_u32 v{vDq1}, {8*3072-1024}, v{vDq0}
    s_mul_i32 s{sQoff}, s{sGW}, {32*3072}
    s_lshl_b32 s{sT2}, s{sCG}, 7
    s_add_u32 s{sQoff}, s{sQoff}, s{sT2}
    """
    A(SRDS)
    A(f"s_cmp_lt_u32 s{sWave}, 4\ns_cbranch_scc1 L_pre_a")
    BASE = [0, 3, 6, 8, 11, 14, 17, 19]
    DSEQ = [BASE[j] for j in range(8) if j % 4 != 3] + [BASE[j] + 1 for j in range(8)] + [BASE[j] + 2 for j in range(8)]
    CSTART = {0: 0, 6: 1, 14: 2}
    CMASK = [0x0fff0fff, 0xffffffff, 0xffffffff]
    def dma_pieces(kind, idx, slot):
        if kind == "q":
            panel = (1, 2, 0)[idx // 4]; o = (idx % 4) * 128 * 3072 + panel * 1024
            srd, so, v0_, v1_, o2 = sWq, sQoff, vDq0, vDq1, o + 16 * 3072
        elif kind == "g":
            o = (idx % 8) * 64 * 2752 + (idx // 8) * 128
            srd, so, v0_, v1_, o2 = sWgu, sGoff, vDg0, vDg1, o + 16 * 2752
        elif kind == "d":
            o = DSEQ[2 * idx] * 64 * 1024; o2 = DSEQ[2 * idx + 1] * 64 * 1024
            srd, so, v0_, v1_ = sWd, sDoff, vDd0, vDd1
        else:
            o = idx * 32 * 1024; o2 = o + 16 * 1024
            srd, so, v0_, v1_ = sWo, sOoffW, vDd0, vDd1
        tag = ("dma", kind, idx)
        def p0():
            A(f"s_add_u32 m0, s{sM0}, {slot*SLOT}\ns_add_u32 s{sD0}, s{so}, {o}")
            A(f"buffer_load_dwordx4 v{v0_}, {s(srd,4)}, s{sD0} offen lds"); vmq.push(tag)
        def p1():
            if lowprio[0]: A(f"s_add_u32 m0, s{sM0}, {slot*SLOT}\ns_nop 0")
            A(f"buffer_load_dwordx4 v{v1_}, {s(srd,4)}, s{sD0} offen offset:1024 lds"); vmq.push(tag)
        def p2():
            if lowprio[0]: A(f"s_add_u32 m0, s{sM0}, {slot*SLOT}")
            A(f"s_add_u32 s{sD0}, s{so}, {o2 - 2048}")
            A(f"buffer_load_dwordx4 v{v0_}, {s(srd,4)}, s{sD0} offen offset:2048 lds"); vmq.push(tag)
        def p3():
            if lowprio[0]: A(f"s_add_u32 m0, s{sM0}, {slot*SLOT}\ns_nop 0")
            A(f"buffer_load_dwordx4 v{v1_}, {s(srd,4)}, s{sD0} offen offset:3072 lds"); vmq.push(tag)
        if opt.get("xnodma") and not (kind == "q" and idx < 5): return []
        if opt.get("xhalfdma") and not (kind == "q" and idx < 5): return [p0, p1]
        return [p0, p1, p2, p3]
    def dma(kind, idx, slot):
        cap = opt.get("ldcap", 40)
        for p in dma_pieces(kind, idx, slot):
            if len(vmq.q) > cap:
                A(f"s_waitcnt vmcnt({cap})"); vmq.waited(cap)
            p()
    def ddq(g): return ("q", g, g % 8) if g < 12 else ("g", g - 12, g % 8)
    GUADDR = f"""
    v_mul_u32_u24 v{vDg0}, 2752, v{vT0}
    v_add_u32 v{vDg0}, v{vDg0}, v{vHF}
    v_add_u32 v{vDg1}, {8*2752-1024}, v{vDg0}
    s_mul_i32 s{sGoff}, s{sMI}, {32*2752}
    s_lshl_b32 s{sT0}, s{sBlk}, 7
    s_add_u32 s{sGoff}, s{sGoff}, s{sT0}
    """
    A(f"""
    v_bfe_u32 v{vP}, v{vL}, 2, 2
    v_mul_u32_u24 v{vP}, 3072, v{vP}
    v_lshl_add_u32 v{vP}, v{vFl}, 7, v{vP}
    v_lshrrev_b32 v{vKo}, 4, v{vL}
    v_lshl_add_u32 v{vP}, v{vKo}, 10, v{vP}
    s_lshr_b32 s{sT1}, s2, 3
    s_mul_i32 s{sT1}, s{sT1}, {16*3072}
    s_mul_i32 s{sT0}, s{sGW}, {4*3072}
    s_add_u32 s{sT1}, s{sT1}, s{sT0}
    s_and_b32 s{sT0}, s2, 1
    s_lshl_b32 s{sT0}, s{sT0}, 9
    s_add_u32 s{sT1}, s{sT1}, s{sT0}
    s_lshr_b32 s{sNI}, s{sGW}, 1
    v_bfe_u32 v{vT2}, v{vL}, 2, 2
    v_lshlrev_b32 v{vTRp0}, 7, v{vT2}
    v_bfe_u32 v{vKo}, v{vL}, 4, 1
    v_lshl_add_u32 v{vTRp0}, v{vKo}, 5, v{vTRp0}
    v_lshl_add_u32 v{vTRp0}, v{vFl}, 3, v{vTRp0}
    v_lshrrev_b32 v{vH1}, 1, v{vT2}             ; r>>1
    v_lshrrev_b32 v{vO1}, 5, v{vL}              ; half
    v_xor_b32 v{vFl}, s{sNI}, v{vH1}
    v_lshl_add_u32 v{vTRn}, v{vFl}, 6, v{vTRp0}
    v_lshl_add_u32 v{vTRn}, v{vO1}, 10, v{vTRn}
    v_add_u32 v{vTRn}, {RB0}, v{vTRn}
    v_add_u32 v{vTRnH}, 65536, v{vTRn}
    v_and_b32 v{vRW}, 31, v{vL}
    v_mul_u32_u24 v{vXR}, {PIECE}, v{vO1}
    v_lshl_add_u32 v{vXR}, v{vRW}, 4, v{vXR}
    s_mul_i32 s{sT0}, s{sMI}, {64*PIECE}
    s_add_u32 s{sT0}, s{sT0}, {XT}
    v_add_u32 v{vXR}, s{sT0}, v{vXR}
    s_mov_b64 exec, {'0xffffffff' if opt.get('p1kv', 1) else '0xffff'}
    buffer_load_dword v143, v{vP}, {s(sWq,4)}, s{sT1} offen offset:1024
    s_mov_b64 exec, -1
    s_lshl_b32 s{sSt}, s{sRB}, 11
    s_lshl_b32 s{sT0}, s{sMI}, 10
    s_add_u32 s{sSt}, s{sSt}, s{sT0}
    s_lshl_b32 s{sT0}, s{sCG}, 18
    s_add_u32 s{sSt}, s{sSt}, s{sT0}
    s_lshl_b32 s{sT0}, s{sNI}, 17
    s_add_u32 s{sSt}, s{sSt}, s{sT0}
    s_add_u32 s{sD1}, s{sSt}, 65536
    v_mov_b32 v136, -1
    v_mov_b32 v137, -1
    v_mov_b32 v138, -1
    v_mov_b32 v139, -1
    s_mov_b32 s3, 1
    s_setprio {opt.get("glnprio", 1)}
    """)
    GE = opt.get("ge", 0)
    for g in range(GE): dma(*ddq(g))
    vmq.clear()
    A(f"s_waitcnt vmcnt({1 + 4 * GE})\ns_branch L_ln")
    GLATE = [x.strip() for x in (GUADDR + f"""
    s_mov_b32 s{sOut}, s22
    s_mov_b32 s{sOut+1}, s23
    s_mov_b32 s{sOut+2}, {S*D*2}
    s_mov_b32 s{sOut+3}, 0x00020000
    s_mov_b32 s{sWd+2}, {F*D*2}
    s_mov_b32 s{sWd+3}, 0x00020000
    s_mov_b32 s{sWo+2}, {D*D*2}
    s_mov_b32 s{sWo+3}, 0x00020000
    v_lshl_add_u32 v{vDd0}, v{vT0}, 10, v{vHF}
    v_add_u32 v{vDd1}, {8*1024-1024}, v{vDd0}
    s_lshl_b32 s{sT2}, s{sCG}, 7
    s_lshl_b32 s{sDoff}, s{sGW}, 14
    s_add_u32 s{sDoff}, s{sDoff}, s{sT2}
    s_lshl_b32 s{sOoffW}, s{sGW}, 17
    s_add_u32 s{sOoffW}, s{sOoffW}, s{sT2}
    s_lshl_b32 s{sXo}, s{sRB}, 16
    s_add_u32 s{sXo}, s{sXo}, s{sT2}
    s_and_b32 s{sNb}, s{sCG}, 3
    v_lshl_add_u32 v{vTRp0}, v{vH1}, 6, v{vTRp0}
    v_lshl_add_u32 v{vTRp0}, v{vO1}, 9, v{vTRp0}
    v_add_u32 v{vTRp0}, s{sM0}, v{vTRp0}
    s_lshl_b32 s{sT0}, s{sNI}, 6
    v_xor_b32 v{vTRp0}, s{sT0}, v{vTRp0}
    v_xor_b32 v{vTRp1}, 64, v{vTRp0}
    v_add_u32 v{vTRp0H}, 65536, v{vTRp0}
    v_add_u32 v{vTRp1H}, 65536, v{vTRp1}
    v_lshlrev_b32 v{vL128}, 7, v{vL}
    v_lshlrev_b32 v{vVo}, 16, v{vKo}
    v_lshl_add_u32 v{vVo}, v{vO1}, 8, v{vVo}
    v_and_b32 v{vT2}, 15, v{vL}
    v_lshl_add_u32 v{vVo}, v{vT2}, 4, v{vVo}
    v_add_u32 v{vVo}, {VF}, v{vVo}
    v_lshlrev_b32 v{vXo}, 10, v{vRW}
    v_lshl_add_u32 v{vXo}, v{vO1}, 3, v{vXo}
    v_lshl_add_u32 v{vRR}, v{vO1}, 3, v{vXo}
    s_lshl_b32 s{sT0}, s{sGW}, 12
    v_add_u32 v{vRW}, s{sT0}, v{vL16}
    s_and_b32 s{sKVs}, s2, 7
    s_lshl_b32 s{sKVs}, s{sKVs}, 2
    s_bfe_u32 s{sT0}, s2, 0x20003
    s_add_u32 s{sKVs}, s{sKVs}, s{sT0}
    s_lshl_b32 s{sKVs}, s{sKVs}, 16
    s_lshl_b32 s{sT0}, s{sNI}, 15
    s_add_u32 s{sKVs}, s{sKVs}, s{sT0}
    s_lshl_b32 s{sT0}, s{sMI}, 21
    s_add_u32 s{sKVs}, s{sKVs}, s{sT0}
    s_add_u32 s{sKVs}, s{sKVs}, {KF}
    s_mul_i32 s{sKVm}, s{sGW}, {RKV*KST}
    s_lshl_b32 s{sT0}, s{sMI}, 15
    s_add_u32 s{sXo}, s{sXo}, s{sT0}
    s_lshl_b32 s{sT0}, s{sNI}, 6
    s_add_u32 s{sXo}, s{sXo}, s{sT0}
    v_and_b32 v{vKo}, 0x33, v{vL}
    v_lshrrev_b32 v{vT2}, 1, v{vL}
    v_and_b32 v{vT2}, 4, v{vT2}
    v_lshlrev_b32 v{vO1}, 1, v{vL}
    v_and_b32 v{vO1}, 8, v{vO1}
    v_or3_b32 v{vKo}, v{vKo}, v{vT2}, v{vO1}
    v_lshlrev_b32 v{vKo}, 4, v{vKo}
    v_add_u32 v{vKo}, {KF}, v{vKo}
    s_mul_i32 s{sT0}, s{sMI}, {86*1024}
    v_add_u32 v{vH0}, s{sT0}, v{vL16}
    s_sub_u32 s{sT0}, {86*1024}, s{sT0}
    v_add_u32 v{vH1}, s{sT0}, v{vL16}
    s_lshl_b32 s{sT0}, s{sMI}, 15
    v_add_u32 v{vO0}, s{sT0}, v{vL16}
    v_xor_b32 v{vO1}, 32768, v{vO0}
    v_lshlrev_b32 v{vXR}, 10, v{vL}
    v_mov_b32 v{vT2}, 0
    v_mov_b32 v{vT0}, {hex(f2u(C1))}
    v_mov_b32 v{vT1}, {hex(f2u(C1))}
    s_lshl_b32 s{sT2}, s{sRB}, 1
    s_add_u32 s{sT2}, s{sT2}, s{sMI}
    s_mul_i32 s{sHst}, s{sT2}, {86*1024}
    s_lshl_b32 s{sT1}, s{sCG}, 1
    s_add_u32 s{sT1}, s{sT1}, s{sNI}
    s_lshl_b32 s{sFlag}, s{sT1}, 13
    s_lshl_b32 s{sT0}, s{sT2}, 7
    s_add_u32 s{sFlag}, s{sFlag}, s{sT0}
    s_add_u32 s{sFlag}, s{sFlag}, {FQ}
    s_lshl_b32 s{sT0}, s{sBlk}, 12
    s_lshl_b32 s{sT1}, s{sNI}, 11
    s_add_u32 s{sHst}, s{sHst}, s{sT0}
    s_add_u32 s{sHst}, s{sHst}, s{sT1}
    s_add_u32 s{sHst}, s{sHst}, {HF}
    s_lshl_b32 s{sHld}, s{sRB}, 14
    s_add_u32 s{sHld}, s{sHld}, {FH}
    s_lshl_b32 s{sT0}, s{sCG}, 9
    s_lshl_b32 s{sT1}, s{sGW}, 7
    s_add_u32 s{sHfl}, s{sT0}, s{sT1}
    s_add_u32 s{sHfl}, s{sHfl}, s{sHld}
    s_mul_i32 s{sHb}, s{sRB}, {2*86*1024}
    s_lshl_b32 s{sT0}, s{sGW}, 10
    s_add_u32 s{sHb}, s{sHb}, s{sT0}
    s_add_u32 s{sHb}, s{sHb}, {HF}
    s_mov_b32 s{sC}, {hex(f2u(QSCALE))}
    s_mov_b32 s{sC+1}, {hex(f2u(QSCALE))}
    """).split("\n") if x.strip()]
    vK, vV, vIdx, vAF, vPF, vF = 10, 11, 12, 13, 14, 15
    M, C, SB = 6, 16, 80
    aOnes, aPF, aP3, aPKV, aL128, aGo = 24, 25, 26, 27, 28, 29
    O, Q, KS = 0, 64, 104
    KRG = [("a", 80), ("a", 92)]
    VRG = [("a", 84), ("a", 96)]
    def rg(x, off=0, n=4): return (a if x[0] == "a" else v)(x[1] + off, n)
    def zero_o(n=64):
        for i in range(n): A(f"v_accvgpr_write_b32 a{O+i}, 0")
    A.label("L_pre_a")
    if opt.get("pretouch"):
        A(f"""
        s_mov_b32 s{sOut}, s22
        s_mov_b32 s{sOut+1}, s23
        s_mov_b32 s{sOut+2}, {S*D*2}
        s_mov_b32 s{sOut+3}, 0x00020000
        s_mov_b32 s{sWd+2}, {F*D*2}
        s_mov_b32 s{sWd+3}, 0x00020000
        s_mov_b32 s{sWo+2}, {D*D*2}
        s_mov_b32 s{sWo+3}, 0x00020000
        v_lshlrev_b32 v{vF}, 21, v{vL}
        s_lshl_b32 s{sT0}, s2, 7
        s_cmp_lg_u32 s{sMI}, 0
        s_cbranch_scc1 L_pt1
        s_mov_b64 exec, 0x1fff
        buffer_load_dword v143, v{vF}, {ws}, s{sT0} offen sc1
        s_mov_b64 exec, 1
        buffer_load_dword v143, v{vF}, {s(sWgu,4)}, s{sT0} offen
        s_branch L_pt2
        L_pt1:
        s_mov_b64 exec, 1
        buffer_load_dword v143, v{vF}, {s(sOut,4)}, s{sT0} offen sc1
        buffer_load_dword v143, v{vF}, {s(sWd,4)}, s{sT0} offen
        buffer_load_dword v143, v{vF}, {s(sWo,4)}, s{sT0} offen
        L_pt2:
        s_mov_b64 exec, -1
        """)
    A(f"""
    v_mov_b32 v{vF}, 0
    ds_write_b32 v{vCnt}, v{vF}
    ds_write_b32 v{vCnt}, v{vF} offset:512
    ds_write_b32 v{vCnt}, v{vF} offset:1024
    v_add_u32 v{vCnt}, 1024, v{vCnt}
    v_lshlrev_b32 v{aGo}, 2, v{vL}
    s_lshl_b32 s{sT0}, s{sWave}, 9
    s_add_u32 s{sT0}, s{sT0}, {AFL}
    v_add_u32 v{vAF}, s{sT0}, v{aGo}
    s_xor_b32 s{sT0}, s{sWave}, 2
    s_lshl_b32 s{sT0}, s{sT0}, 9
    s_add_u32 s{sT0}, s{sT0}, {AFL}
    v_add_u32 v{vPF}, s{sT0}, v{aGo}
    v_add_u32 v{aGo}, {GO}, v{aGo}
    ds_write_b32 v{vAF}, v{vF}
    ds_write_b32 v{vAF}, v{vF} offset:256
    ds_write_b32 v{aGo}, v{vF}
    v_bfe_u32 v{aP3}, v{vL}, 2, 2
    v_mul_u32_u24 v{aP3}, 3072, v{aP3}
    v_lshl_add_u32 v{aP3}, v{vFl}, 7, v{aP3}
    v_bfe_u32 v{aPF}, v{vL}, 4, 1
    v_xor_b32 v{aPF}, 1, v{aPF}
    v_lshl_add_u32 v{aP3}, v{aPF}, 11, v{aP3}
    s_lshr_b32 s7, s2, 3
    s_lshl_b32 s7, s7, 2
    s_add_u32 s7, s7, s{sWave}
    s_mul_i32 s7, s7, {4*3072}
    s_and_b32 s{sT0}, s2, 1
    s_lshl_b32 s{sT0}, s{sT0}, 9
    s_add_u32 s7, s7, s{sT0}
    s_and_b32 s{sT0}, s{sCG}, 3
    s_cmp_eq_u32 s{sT0}, 3
    s_addc_u32 s{sBlk}, s{sBlk}, 0
    v_lshrrev_b32 v30, 1, v{vL}
    v_mul_u32_u24 v30, 2752, v30
    v_and_b32 v31, 1, v{vL}
    v_mul_u32_u24 v31, 124, v31
    v_add_u32 v30, v30, v31
    s_and_b32 s68, s{sRB}, 7
    s_lshl_b32 s68, s68, 1
    s_add_u32 s68, s68, s{sMI}
    s_mul_i32 s68, s68, {16*2752}
    s_lshl_b32 s{sT0}, s{sBlk}, 7
    s_add_u32 s68, s68, s{sT0}
    s_lshr_b32 s{sO}, s2, 5
    s_lshl_b32 s{sO}, s{sO}, 1
    s_add_u32 s{sO}, s{sO}, s{sMI}
    s_lshl_b32 s{sO}, s{sO}, 1
    s_lshr_b32 s{sT0}, s{sWave}, 1
    s_add_u32 s{sO}, s{sO}, s{sT0}
    s_lshl_b32 s{sO}, s{sO}, 16
    s_and_b32 s{sT0}, s2, 7
    s_lshl_b32 s{sT0}, s{sT0}, 12
    s_add_u32 s{sO}, s{sO}, s{sT0}
    s_bfe_u32 s{sT0}, s2, 0x20003
    s_lshl_b32 s{sT0}, s{sT0}, 10
    s_add_u32 s{sO}, s{sO}, s{sT0}
    s_add_u32 s{sO}, s{sO}, {OF}
    s_or_b32 s{sT1}, s2, s{sWave}
    s_cmp_lg_u32 s{sT1}, 0
    s_cbranch_scc1 L_pre_a2
    s_memrealtime s[4:5]
    s_waitcnt lgkmcnt(0)
    s_or_b32 s4, s4, 1
    v_mov_b32 v{vIdx}, s4
    buffer_store_dword v{vIdx}, v{vF}, {s(sDbg,4)}, 0 offen sc1
    """)
    A.label("L_pre_a2")
    if opt.get("pall"):
        A(f"""
        s_mov_b32 s{sWd+2}, {F*D*2}
        s_mov_b32 s{sWd+3}, 0x00020000
        s_mov_b32 s{sWo+2}, {D*D*2}
        s_mov_b32 s{sWo+3}, 0x00020000
        v_mul_u32_u24 v141, 2752, v{vL}
        s_and_b32 s{sT0}, s{sRB}, 7
        s_mul_i32 s{sT0}, s{sT0}, {64*2752}
        s_mul_i32 s{sT1}, s{sCG}, 384
        s_add_u32 s{sT0}, s{sT0}, s{sT1}
        s_mul_i32 s{sT1}, s{sMI}, 124
        s_add_u32 s{sT1}, s{sT0}, s{sT1}
        buffer_load_dword v143, v141, {s(sWgu,4)}, s{sT1} offen
        s_lshl_b32 s{sT1}, s{sMI}, 7
        s_add_u32 s{sT1}, s{sT0}, s{sT1}
        buffer_load_dword v143, v141, {s(sWgu,4)}, s{sT1} offen offset:252
        v_lshlrev_b32 v142, 10, v{vL}
        s_and_b32 s{sT0}, s{sRB}, 7
        s_lshl_b32 s{sT1}, s{sCG}, 7
        s_mul_i32 s{sT2}, s{sT0}, {172*1024}
        s_add_u32 s{sT2}, s{sT2}, s{sT1}
        s_lshl_b32 s4, s{sGW}, 16
        s_add_u32 s{sT2}, s{sT2}, s4
        buffer_load_dword v143, v142, {s(sWd,4)}, s{sT2} offen
        s_lshl_b32 s{sT0}, s{sT0}, 16
        s_add_u32 s{sT0}, s{sT0}, s{sT1}
        buffer_load_dword v143, v142, {s(sWo,4)}, s{sT0} offen
        s_waitcnt vmcnt(0)
        s_sleep 40
        """)
    A("s_mov_b32 s3, 0\ns_waitcnt vmcnt(0)")
    NEARLY = opt.get("nearly", 2)
    if GE: NEARLY = 0
    for g in range(NEARLY): dma(*ddq(g))
    if NEARLY > opt.get("p1at", 3):
        A(f"s_mov_b64 exec, {'0xffff0000' if opt.get('p1kv', 1) else '0xffffffff'}\nbuffer_load_dword v143, v{aP3}, {s(sWq,4)}, s7 offen")
        if opt.get("p2early", 1): A(f"s_mov_b64 exec, {PF2MASK}\nbuffer_load_dword v143, v30, {s(sWgu,4)}, s68 offen")
        A("s_mov_b64 exec, -1")
    vmq.clear()
    A.label("L_ln")
    ST()
    SA, TT, vXW = 104, 80, 112
    A(f"""
    s_mov_b32 s4, 0x3f803f80
    s_mov_b32 s5, 0x00003f80
    s_mov_b32 s6, 0x3f800000
    """)
    for i in range(32):
        a1 = SA + (i & 1); a2 = SA + 2 + (i & 1)
        A(f"v_dot2_f32_bf16 v{a1}, v{R+i}, s4, {'0' if i < 2 else 'v%d' % a1}")
        A(f"v_dot2_f32_bf16 v{a2}, v{R+i}, v{R+i}, {'0' if i < 2 else 'v%d' % a2}")
    m_, q_, mb_, rs_ = SA, SA + 2, SA + 4, SA + 6
    A(f"""
    s_lshr_b32 s{sT0}, s{sWave}, 2
    s_mul_i32 s{sT0}, s{sT0}, {64*PIECE}
    s_lshl_b32 s{sT1}, s{sGW}, 7
    v_add_f32 v{m_}, v{m_}, v{m_+1}
    v_add_f32 v{q_}, v{q_}, v{q_+1}
    s_add_u32 s{sT0}, s{sT0}, s{sT1}
    v_add_f32_dpp v{m_}, v{m_}, v{m_} quad_perm:[1,0,3,2] row_mask:0xf bank_mask:0xf
    v_add_f32_dpp v{q_}, v{q_}, v{q_} quad_perm:[1,0,3,2] row_mask:0xf bank_mask:0xf
    s_add_u32 s{sT0}, s{sT0}, {XT}
    v_add_f32_dpp v{m_}, v{m_}, v{m_} quad_perm:[2,3,0,1] row_mask:0xf bank_mask:0xf
    v_add_f32_dpp v{q_}, v{q_}, v{q_} quad_perm:[2,3,0,1] row_mask:0xf bank_mask:0xf
    v_mul_u32_u24 v{vXW}, {PIECE}, v{vT1}
    v_add_f32_dpp v{m_}, v{m_}, v{m_} row_half_mirror row_mask:0xf bank_mask:0xf
    v_add_f32_dpp v{q_}, v{q_}, v{q_} row_half_mirror row_mask:0xf bank_mask:0xf
    v_mul_f32 v{m_}, {hex(f2u(1.0/512))}, v{m_}
    v_mul_f32 v{q_}, {hex(f2u(1.0/512))}, v{q_}
    v_cvt_pk_bf16_f32 v{mb_}, v{m_}, v{m_}
    v_fma_f32 v{q_}, -v{m_}, v{m_}, v{q_}
    v_and_b32 v{mb_}, 0xffff0000, v{mb_}
    v_max_f32 v{q_}, 0, v{q_}
    v_xor_b32 v{mb_}, 0x80000000, v{mb_}
    v_cvt_pk_bf16_f32 v{q_}, v{q_}, v{q_}
    v_and_b32 v{q_}, 0xffff0000, v{q_}
    v_add_f32 v{q_}, {hex(f2u(1e-5))}, v{q_}
    v_cvt_pk_bf16_f32 v{q_}, v{q_}, v{q_}
    v_and_b32 v{q_}, 0xffff0000, v{q_}
    v_sqrt_f32 v{q_}, v{q_}
    v_lshl_add_u32 v{vXW}, v{vT0}, 4, v{vXW}
    v_cvt_pk_bf16_f32 v{q_}, v{q_}, v{q_}
    v_and_b32 v{q_}, 0xffff0000, v{q_}
    v_rcp_f32 v{rs_}, v{q_}
    v_rcp_f32 v{rs_+1}, v{q_}
    v_add_u32 v{vXW}, s{sT0}, v{vXW}
    """)
    for cb in range(8):
        t = TT + 8 * (cb & 1); r = R + 4 * cb
        for e in range(4):
            A(f"v_dot2_f32_bf16 v{t+2*e}, v{r+e}, s5, v{mb_}")
            A(f"v_dot2_f32_bf16 v{t+2*e+1}, v{r+e}, s6, v{mb_}")
        if cb > 0: A(f"ds_write_b128 v{vXW}, {v(R+4*(cb-1),4)} offset:{(cb-1)*8*PIECE}")
        else: A("s_nop 0")
        for e in range(4): A(f"v_pk_mul_f32 {v(t+2*e,2)}, {v(t+2*e,2)}, {v(rs_,2)}")
        for e in range(4): A(f"v_cvt_pk_bf16_f32 v{r+e}, v{t+2*e}, v{t+2*e+1}")
    A(f"ds_write_b128 v{vXW}, {v(R+28,4)} offset:{7*8*PIECE}")
    A("s_cmp_eq_u32 s3, 0\ns_cbranch_scc1 L_attn")

    def get_tag(vt, vz, lbl):
        A(f"v_mov_b32 v{vz}, 0")
        A.label(lbl)
        A(f"""
        buffer_load_dword v{vt}, v{vz}, {s(sDbg,4)}, 0 offen sc1
        s_waitcnt vmcnt(0)
        v_readfirstlane_b32 s{sTag}, v{vt}
        """)
        timeout_exit(lbl + "_x")
        A(f"s_cmp_eq_u32 s{sTag}, 0\ns_cbranch_scc1 {lbl}")
        A.label(lbl + "_x")
    def spin_flags(lbl, vf, voff, soff, nlanes, sleep=4, first=False):
        A.label(lbl)
        if first: A(f"s_sleep {sleep}")
        A(f"""
        s_mov_b64 exec, {emask(nlanes)}
        buffer_load_dword v{vf}, v{voff}, {ws}, s{soff} offen sc1
        s_waitcnt vmcnt(0)
        v_cmp_ne_u32 vcc, s{sTag}, v{vf}
        s_mov_b64 exec, -1
        s_cbranch_vccz {lbl}_x
        """)
        timeout_exit(lbl + "_x")
        if not first: A(f"s_sleep {sleep}")
        A(f"s_branch {lbl}")
        A.label(lbl + "_x")
    def lds_spin(lbl, vdst, vaddr, off, cmp, sleep=0):
        A.label(lbl)
        A(f"ds_read_b32 v{vdst}, v{vaddr} offset:{off}\ns_waitcnt lgkmcnt(0)\n{cmp}\ns_cbranch_vccz {lbl}_x")
        timeout_exit(lbl + "_x")
        if sleep: A(f"s_sleep {sleep}")
        A(f"s_branch {lbl}")
        A.label(lbl + "_x")

    def xn(ks): return a(4 * ks, 4) if ks < 28 else v(96 + 4 * (ks - 28), 4)
    def xread(ks): lds(f"ds_read_b128 {xn(ks)}, v{vXR} offset:{2*ks*PIECE}", "xn")
    def check(fresh, off=0, need=None, sleep=1, reg=None, tag="poll"):
        l = lab("chk"); nd = f"s{sNeed}" if need is None else str(need)
        vP = reg if reg is not None else 20
        cmp = f"v_cmp_gt_u32 vcc, {nd}, v{vP}"
        if lowprio[0]: cmp = f"s_setprio 3\n{cmp}\ns_setprio 0"
        if fresh:
            lds(f"ds_read_b32 v{vP}, v{vCntR} offset:{off}", tag)
        lwait(tag)
        A(f"{cmp}\ns_cbranch_vccnz {l}")
        A.label(l + "_x")
        def sp():
            A.label(l)
            A(f"ds_read_b32 v{vP}, v{vCntR} offset:{off}\ns_waitcnt lgkmcnt(0)\n{cmp}\ns_cbranch_vccz {l}_x")
            timeout_exit(l + "_x")
            if lp or sleep > 1: A(f"s_sleep {sleep}")
            A(f"s_branch {l}")
        lp = lowprio[0]
        slow.append(sp)
        if need is None: A(f"s_add_u32 s{sNeed}, s{sNeed}, 1")
    def segment(stages, hooks=None, LA=opt.get('la', 5)):
        hooks = hooks or {}
        NB = len(WFB); assert NB >= LA + 1
        flat = [(si, fi, fr) for si, st in enumerate(stages) for fi, fr in enumerate(st["frags"])]
        sq = []
        for i in range(len(flat) + LA):
            if i < len(flat):
                si, fi, fr = flat[i]; st = stages[si]; nfr = len(st["frags"])
                if fi == 0:
                    assert not sq
                    if "label" in st: A.label(st["label"])
                    if opt.get("atrace") and lowprio[0]:
                        A(f"s_waitcnt lgkmcnt(0)\ns_mov_b32 s99, m0\ns_mov_b32 m0, s0\ns_add_u32 s0, s0, 1\ns_setprio 3\nv_writelane_b32 v31, s100, m0\ns_setprio {0 if lowprio[0] else 1}\ns_memrealtime s[100:101]\ns_mov_b32 m0, s99"); lq.clear()
                    if st["sync"]: check(si == 0, *st.get("chk", ()))
                    if "pre" in st: st["pre"]()
                    sq += st["pieces"]
                lo, hi, o0, o1, _ = fr
                base = st["slot"] * SLOT; reg = lo
                if base >= 65536: base -= 65536; reg = hi
                w = WFB[i % NB]
                lds(f"ds_read_b64_tr_b16 {v(w,2)}, v{reg} offset:{base+o0}", ("fr", i))
                lds(f"ds_read_b64_tr_b16 {v(w+2,2)}, v{reg} offset:{base+o1}", ("fr", i))
                if fi == st.get("waitat", st.get("pubat", 2)) and st["nxt"] is not None: vwait(st["nxt"])
                if fi == st.get("pubat", 2) and st["pub"]: lds(f"ds_add_u32 v{vCnt}, v{vOne}", "add")
                if len(sq) * 2 > (nfr - fi) or fi % 2 == 0:
                    k = -(-len(sq) // (nfr - fi))
                    for _ in range(k): sq.pop(0)()
                if fi == nfr - 2 and si + 1 < len(stages) and stages[si + 1]["sync"]:
                    lds(f"ds_read_b32 v{vP}, v{vCntR} offset:{stages[si + 1].get('chk', (0,))[0]}", "poll")
                if (si, fi) in hooks: hooks[(si, fi)]()
            j = i - LA
            if j >= 0:
                if opt.get("pairw", 1) and j % 2 == 0 and lq.need(("fr", j + 1)) is not None and len(flat[j][2][4]) == 1: lwait(("fr", j + 1))
                lwait(("fr", j))
                for m in flat[j][2][4]:
                    if callable(m): m()
                    elif opt.get("xnogm") and lowprio[0]: A("s_nop 7")
                    else: A(m.format(w=v(WFB[j % NB], 4)))
    if F0: ST()
    if opt.get("xln"): hold("L_hln", opt["xln"])
    A("s_setprio 1\ns_waitcnt vmcnt(0) lgkmcnt(0)\ns_barrier" if GE else "s_setprio 1\ns_waitcnt lgkmcnt(0)\ns_barrier")
    ST()
    if opt.get("atrace"): A(f"s_mov_b32 s0, 0\ns_memrealtime s[100:101]")
    for ks in range(8): xread(ks)
    def qkv_epi(p):
        acc = (ACC0, ACC1, ACC0)[p]; pk = TMP + 8 * p
        def f():
            if p == 2:
                for i in range(8): A(f"v_pk_mul_f32 {v(acc+2*i,2)}, {v(acc+2*i,2)}, {s(sC,2)}")
            for i in range(8): A(f"v_cvt_pk_bf16_f32 v{pk+i}, v{acc+2*i}, v{acc+2*i+1}")
            for i in range(8): A(f"v_min_u32 v{pk+i}, -2, v{pk+i}")
            if p == 1:
                A(f"buffer_store_dwordx4 {v(pk,4)}, v{vVo}, {ws}, s{sSt} offen sc1")
                A(f"buffer_store_dwordx4 {v(pk+4,4)}, v{vVo}, {ws}, s{sSt} offen offset:512 sc1")
            else:
                vo = vKo if p == 0 else vL16
                A(f"s_add_u32 s{sT0}, s{sSt}, 65536")
                A(f"buffer_store_dwordx4 {v(pk,4)}, v{vo}, {ws}, s{sSt} offen sc1")
                A(f"buffer_store_dwordx4 {v(pk+4,4)}, v{vo}, {ws}, s{sT0} offen sc1")
            vmq.push("st", 2)
        return f
    stages = []
    for q in range(12):
        p, part = divmod(q, 4); acc = v((ACC0, ACC1, ACC0)[p], 16)
        frags = []
        for kk in range(8):
            ks = part * 8 + kk; c = "0" if ks == 0 else acc
            m = f"{MF} {acc}, {xn(ks)}, {{w}}, {c}" if p == 1 else f"{MF} {acc}, {{w}}, {xn(ks)}, {c}"
            frags.append((vTRn, vTRnH, kk * 2048, kk * 2048 + 512, [m]))
        stages.append(dict(slot=q % 8, frags=frags, pieces=[], nxt=None, sync=(q >= GE), pub=(q >= 1), pubat=0, chk=(1024, q + 1)))
    hooks = {(0, fi): (lambda fi=fi: [xread(8 + 3 * fi + e) for e in range(3)]) for fi in range(8)}
    def epi_items(p):
        acc = (ACC0, ACC1)[p]; pk = TMP + 8 * p
        L = [f"v_cvt_pk_bf16_f32 v{pk+i}, v{acc+2*i}, v{acc+2*i+1}" for i in range(8)]
        if p == 1:
            L += [f"buffer_store_dwordx4 {v(pk,4)}, v{vVo}, {ws}, s{sSt} offen sc1", f"buffer_store_dwordx4 {v(pk+4,4)}, v{vVo}, {ws}, s{sSt} offen offset:512 sc1"]
        else:
            L += [f"buffer_store_dwordx4 {v(pk,4)}, v{vKo}, {ws}, s{sSt} offen sc1", f"buffer_store_dwordx4 {v(pk+4,4)}, v{vKo}, {ws}, s{sD1} offen sc1",
                  f"buffer_load_dword v{vFl}, v{vT2}, {s(sDbg,4)}, 0 offen sc1"]
        return L
    qc = opt.get("qc", 0)
    GLATE[qc:qc] = [f"buffer_store_dwordx4 v[136:139], v{vL16}, {ws}, s{sSt} offen sc1", f"buffer_store_dwordx4 v[136:139], v{vL16}, {ws}, s{sD1} offen sc1"]
    n1 = len(GLATE)
    KE = opt.get("ke", 7)
    slots1 = [(q, fi) for q in range(1, KE) for fi in range(8) if (q, fi) not in ((1, 0), (4, 0), (5, 0), (6, 0))]
    plan = {}
    for k, it in enumerate(GLATE): plan.setdefault(slots1[k * len(slots1) // n1], []).append(it)
    for p, q0 in ((0, KE), (1, 9)):
        sl = [(q, fi) for q in (q0, q0 + 1) for fi in range(1, 8)]
        its = epi_items(p)
        sl = [x_ for x_ in sl for _ in range(2 if p == 0 else opt.get("vd", 2))]
        for k, it in enumerate(its): plan.setdefault(sl[k], []).append(it)
    if opt.get("xnofill"):
        for x in GLATE:
            if "v31," not in x: A(x.replace("|", "\n"))
        plan = {k_: [i_ for i_ in its if i_ not in GLATE] for k_, its in plan.items()}
    for k_, its in plan.items():
        hooks[k_] = (lambda its=its: [A(x.replace("|", "\n")) for x in its])
    FF = opt.get("ff", 1)
    def kvflag(n):
        A(f"s_cmp_lg_u32 s{sTag}, 0\ns_cbranch_scc1 L_gtag_x")
        get_tag(vFl, vT2, "L_gtag")
        A(f"v_mov_b32 v{vFl}, s{sTag}\ns_waitcnt vmcnt({n})\ns_mov_b64 exec, 1\nbuffer_store_dword v{vFl}, v{vT2}, {ws}, s{sFlag} offen sc1\ns_mov_b64 exec, -1")
    FP = opt.get("fp", 0)
    if FP:
        hooks[(FP // 8, FP % 8)] = lambda: (A(f"s_waitcnt vmcnt(0)\nv_readfirstlane_b32 s{sTag}, v{vFl}"), kvflag(0))
    GLATE = []
    if stamps:
        for q in ((1, 4, 5, 6, 7, 8, 9, 10, 11) if FR else (1, 4, 8)): hooks[(q, 0)] = ST
    segment(stages, hooks)
    assert not GLATE
    if FP: A("s_nop 11")
    else:
        A(f"s_waitcnt vmcnt(2)\nv_readfirstlane_b32 s{sTag}, v{vFl}")
        if FF: kvflag(0); A("s_nop 3")
        else: A("s_nop 9")
    qkv_epi(2)()
    ST()
    if not FF and not FP: kvflag(2)
    A(f"s_mov_b32 s{sC}, {hex(f2u(C2))}\ns_mov_b32 s{sC+1}, {hex(f2u(C2))}")
    lds(f"ds_add_u32 v{vCnt}, v{vOne}", "add")
    ST()
    if FR: again(); ST.flush(ws, STAMP, sWave, 2, 3, sT0); A("s_endpgm"); ST.on = False
    if opt.get("gexit"): A(f"ds_add_u32 v{vCnt}, v{vOne}\ns_waitcnt lgkmcnt(0)\ns_endpgm")
    LOOK = opt.get("look", 4)
    check(True, 1024, 12 + NG0)
    A(f"s_mov_b32 s{sNeed}, 12\ns_setprio 0")
    lowprio[0] = True
    def gslot(g): return 2 + (g + 2) % 6
    def ffn_dd(g):
        if g < 24: return ("g", g, gslot(g))
        if g < 35: return ("d", g - 24, gslot(g))
        return ("o", g - 35, gslot(g))
    E0 = 0
    vP2 = vVo
    G2 = opt.get("g2", 1)
    def kneed(k):
        b0 = 12 + NG0 + 1
        step = k - RKV
        if not G2: return b0 + step + 1
        return b0 + 1 if step == 0 else b0 + 2 + step // 2
    def kv_poll(): lds(f"ds_read_b32 v{vP2}, v{vCntR} offset:1024", "poll2")
    def kv_issue(k, fresh=False):
        check(fresh, 1024, kneed(k), sleep=opt.get('ksleep', 4), reg=vP2, tag="poll2")
        A(f"s_add_u32 m0, s{sKVm}, {((k + E0) % RKV) * KST}\ns_add_u32 s{sT0}, s{sKVs}, {k*1024}")
        A(f"buffer_load_dwordx4 v{vL16}, {ws}, s{sT0} offen sc1 lds"); vmq.push(("kv", k))
    def kv_pub(k):
        vwait(("kv", k))
        for _ in range(1): lds(f"ds_add_u32 v{vCnt}, v{vOne} offset:512", "add")
    S0 = opt.get("s0", 4); KLAG = opt.get("klag", 2)
    A(f"s_cmp_lg_u32 s{sNb}, 3\ns_cbranch_scc1 L_ffn")
    check(True, 1024, 12 + NG0 + 1)
    check(True, 0, 12)
    vmq.clear()
    kvs = [RKV + st - S0 for st in range(S0, 8)]; npub = max(0, 8 - KLAG - S0); done = []
    def light_kv():
        nonlocal npub
        if done and npub: kv_pub(done.pop(0)); npub -= 1
        if kvs: k = kvs.pop(0); kv_issue(k, True); done.append(k)
    if opt.get("pfw", 1):
        P = [0, 128, 384, 512, 768, 896, 256, 640, 1024, 1152, 1280, 1404][:2 * opt.get('npf', 6)]
        PCAP = opt.get("pcap", 1)
        A(f"""
        s_setprio 3
        v_mul_u32_u24 v{TMP}, 2752, v{vL}
        s_setprio 0
        s_and_b32 s4, s{sRB}, 7
        s_mul_i32 s5, s4, {64*2752}
        s_lshr_b32 s6, s{sCG}, 2
        s_mul_i32 s7, s6, 1408
        s_add_u32 s5, s5, s7
        """)
        for i in range(len(P) // 2):
            lo_, hi_ = sorted(P[2*i:2*i+2])
            A(f"s_mul_i32 s{sT0}, s{sMI}, {hi_-lo_}\ns_add_u32 s{sT0}, s{sT0}, s5")
            A(f"buffer_load_dword v143, v{TMP}, {s(sWgu,4)}, s{sT0} offen offset:{lo_}\ns_waitcnt vmcnt({PCAP})")
            vmq.push("pf"); vmq.waited(PCAP)
            if i >= 2: light_kv()
    for g in range(8, 8 + LOOK): dma(*ffn_dd(g))
    while kvs or (done and npub): light_kv()
    A("s_waitcnt vmcnt(0)")
    lds(f"ds_add_u32 v{vCnt}, v{vOne}", "add")
    A(f"s_add_u32 s{sNeed}, s{sNeed}, 1\ns_setprio 3\nv_mov_b32 v{vP}, 0\nv_mov_b32 v{vP2}, 0\ns_setprio 0")
    A("s_branch L_ffn8")
    A.label("L_ffn")
    vmq.clear(); lq.clear()
    T1, U1 = TMP, [88, 90, 92, 94, 128, 130, 132, 134]
    AD1 = [v(40, 16), v(56, 16), v(96, 16), a(96, 16)]
    def gelu1():
        G, U = ACC0, ACC1
        A("s_setprio 3\ns_nop 9")
        for i in range(8): A(f"v_pk_mul_f32 {v(T1+2*i,2)}, {v(G+2*i,2)}, {v(G+2*i,2)}")
        for i in range(8): A(f"v_pk_fma_f32 {v(T1+2*i,2)}, {v(T1+2*i,2)}, {s(sC,2)}, {v(vT0,2)}")
        for i in range(8): A(f"v_pk_mul_f32 {v(U1[i],2)}, {v(U+2*i,2)}, {v(G+2*i,2)}")
        for i in range(8): A(f"v_pk_mul_f32 {v(T1+2*i,2)}, {v(T1+2*i,2)}, {v(G+2*i,2)}")
        A("s_setprio 0")
    def gelu2_groups(b):
        L = [f"v_exp_f32 v{T1+i}, v{T1+i}" for i in range(16)]
        L += [f"v_pk_add_f32 {v(T1+2*i,2)}, {v(T1+2*i,2)}, 1.0 op_sel_hi:[1,0]" for i in range(8)]
        L += [f"v_rcp_f32 v{T1+i}, v{T1+i}" for i in range(16)]
        L += [f"v_pk_mul_f32 {v(U1[i],2)}, {v(U1[i],2)}, {v(T1+2*i,2)}" for i in range(8)]
        L += [f"v_cvt_pk_bf16_f32 v{T1+i}, v{U1[i]}, v{U1[i]+1}" for i in range(8)]
        sizes = [4, 4, 4, 4, 8, 4, 4, 4, 4, 8, 8]
        G_ = []
        for n in sizes:
            grp = L[:n]; L = L[n:]
            G_.append(lambda grp=grp: A("s_setprio 3\n" + "\n".join(grp) + "\ns_setprio 0"))
        def store():
            l = lab("hskip")
            if b == 0: A(f"s_cmp_eq_u32 s{sNb}, 3\ns_cbranch_scc1 {l}")
            if b == 2: A(f"s_add_u32 s{sT0}, s{sCG}, s{sNI}\ns_cmp_eq_u32 s{sT0}, 8\ns_cbranch_scc1 {l}")
            A(f"s_add_u32 s{sT0}, s{sHst}, {b*4096}")
            A(f"buffer_store_dwordx4 {v(T1,4)}, v{vL16}, {ws}, s{sT0} offen sc1")
            A(f"buffer_store_dwordx4 {v(T1+4,4)}, v{vL16}, {ws}, s{sT0} offen offset:1024 sc1")
            A.label(l)
            vmq.since = 0
        return G_ + [store]
    def send_flag(b):
        def f():
            n = min(vmq.since, 63)
            A(f"s_waitcnt vmcnt({n})"); vmq.waited(n)
            A(f"s_add_u32 s{sT0}, s{sHfl}, {b*4096}\ns_mov_b64 exec, 1\nbuffer_store_dword v{vFl}, v{vT2}, {ws}, s{sT0} offen sc1\ns_mov_b64 exec, -1")
        return f
    NH = 12
    def hload(t):
        b = 8 * (t % NH)
        if DSEQ[t] == 21:
            A(f"s_and_b32 s{sT2}, s{sGW}, 2\ns_lshl_b32 s{sT2}, s{sT2}, 10\ns_sub_u32 s{sT2}, s{sHb}, s{sT2}\ns_add_u32 s{sT2}, s{sT2}, {DSEQ[t]*4096}")
        else:
            A(f"s_add_u32 s{sT2}, s{sHb}, {DSEQ[t]*4096}")
        A(f"buffer_load_dwordx4 {a(b,4)}, v{vH0}, {ws}, s{sT2} offen sc1")
        A(f"buffer_load_dwordx4 {a(b+4,4)}, v{vH1}, {ws}, s{sT2} offen sc1")
        vmq.push(("h", t), 2)
    def hflag_issue(c):
        A(f"s_add_u32 s{sT2}, s{sHld}, {c*4096}\ns_mov_b64 exec, {hex(CMASK[c])}")
        A(f"buffer_load_dword v{vHF}, v{vL128}, {ws}, s{sT2} offen sc1\ns_mov_b64 exec, -1")
        vmq.push(("hf", c))
    def hflag_check(c):
        vwait(("hf", c))
        l = f"L_hf{c}"
        A(f"s_setprio 3\nv_cmp_ne_u32 vcc, s{sTag}, v{vHF}\ns_setprio 0\ns_and_b32 vcc_lo, vcc_lo, {hex(CMASK[c])}\ns_cbranch_scc1 {l}_s")
        A.label(l + "_b")
        def sp():
            A.label(l + "_s")
            A(f"s_add_u32 s{sT2}, s{sHld}, {c*4096}\ns_setprio 3")
            spin_flags(l, vHF, vL128, sT2, hex(CMASK[c]), sleep=8)
            A(f"s_setprio 0\ns_branch {l}_b")
        slow.append(sp)
    def p4(ni):
        def f():
            l = lab("p4")
            A(f"""
            s_cmp_lg_u32 s{sNI}, {ni}
            s_cbranch_scc1 {l}_x
            s_and_b32 s{sT0}, s{sRB}, 7
            s_lshl_b32 s{sT1}, s{sCG}, 7
            s_cmp_eq_u32 s{sGW}, 3
            s_cbranch_scc1 {l}_o
            s_mul_i32 s{sT0}, s{sT0}, {172*1024}
            s_add_u32 s{sT0}, s{sT0}, s{sT1}
            s_lshl_b32 s{sT1}, s{sGW}, 16
            s_add_u32 s{sT0}, s{sT0}, s{sT1}
            buffer_load_dword v143, v{vXR}, {s(sWd,4)}, s{sT0} offen
            s_branch {l}_x
            """)
            A.label(l + "_o")
            A(f"s_lshl_b32 s{sT0}, s{sT0}, 16\ns_add_u32 s{sT0}, s{sT0}, s{sT1}\nbuffer_load_dword v143, v{vXR}, {s(sWo,4)}, s{sT0} offen")
            A.label(l + "_x")
        return f
    allp = []
    for g in range(NG0, 39): allp += [(g, p) for p in dma_pieces(*ffn_dd(g))]
    T0 = opt.get("t0", 2 if NG0 >= 4 else NG0 - 1); RATE = opt.get("rate", 6)
    NE = opt.get("ne", 0)
    pre0 = []
    while allp[0][0] < opt.get("np0", 0): pre0.append(allp.pop(0)[1])
    early = [[allp.pop(0)[1] for _ in range(4)] for _ in range(NE)]
    prep_ = []
    while allp[0][0] <= T0 + 1: prep_.append(allp.pop(0)[1])
    sched = []
    for st in range(35):
        take = []
        if st < NE: take = early[st]; assert st < T0
        if st >= T0:
            while allp and allp[0][0] <= st + LOOK and len(take) < RATE: take.append(allp.pop(0)[1])
        sched.append(take)
        if st == 7 and not FR: assert allp[0][0] == 8 + LOOK and len([1 for g, _ in allp if g == 8 + LOOK]) == 4
    assert not allp
    stages = []
    post = {}
    for st in range(35):
        frags = []
        if st < 24:
            for kk in range(4):
                ks = (st % 8) * 4 + kk
                for p, acc in enumerate((ACC0, ACC1)):
                    c = "0" if ks == 0 else v(acc, 16)
                    frags.append((vTRn, vTRnH, p * 8192 + kk * 2048, p * 8192 + kk * 2048 + 512, [f"{MF} {v(acc,16)}, {{w}}, {xn(ks)}, {c}"]))
        else:
            for kk in range(2):
                t = 2 * (st - 24) + kk; b = 8 * (t % NH)
                for ni, (lo, hi) in enumerate(((vTRp0, vTRp0H), (vTRp1, vTRp1H))):
                    ms = [(lambda t=t: vwait(("h", t)))] if ni == 0 else []
                    for mi in range(2):
                        d = AD1[2 * ni + mi]; c = "0" if t == 0 else d
                        ms.append(f"{MF} {d}, {{w}}, {a(b+4*mi,4)}, {c}")
                    frags.append((lo, hi, kk * 2048, kk * 2048 + 1024, ms))
        nx = ffn_dd(st + 1)
        stages.append(dict(slot=gslot(st), frags=frags, pieces=sched[st], nxt=("dma", nx[0], nx[1]),
                           sync=(st <= 25), pub=(st <= 24), pubat=(0 if st >= 23 else opt.get("pubat", 2)),
                           waitat=(3 if st >= 24 else (6 if st == 23 else opt.get("pubat", 2)))))
    assert LOOK <= 4
    stages[T0]["pre"] = lambda: (check(True, 1024, 12 + NG0 + 1) if opt.get("thr", 1) else None, [p_() for p_ in prep_])
    stages[8]["label"] = "L_ffn8"
    if pre0: assert T0 > 0; stages[0]["pre"] = lambda: [p_() for p_ in pre0]
    GATE = opt.get("gate", 31); GR_ = opt.get("gater", 17 if G2 else 33)
    if GATE:
        def gate():
            A("s_waitcnt lgkmcnt(0)"); lq.clear()
            for st_ in range(GATE, GATE + 2):
                if st_ < 35:
                    for p_ in stages[st_]["pieces"]: p_()
                    stages[st_]["pieces"] = []
            for k_ in sorted(k for k in hooks if k[0] in (GATE, GATE + 1)):
                hooks.pop(k_)()
            if opt.get("warm", 0):
                A("s_mov_b64 exec, 0\ns_branch L_wg"); A.label("L_wg_ret"); A("s_mov_b64 exec, -1")
            check(True, 1024, 12 + NG0 + 1 + GR_, sleep=4)
        stages[GATE]["pre"] = gate
    hooks = {}
    for b in range(3):
        st0 = 8 * (b + 1)
        stages[st0]["frags"][0][4].insert(0, gelu1)
        grp = gelu2_groups(b)
        pos = [(si, fi, k) for si in (st0, st0 + 1, st0 + 2) for fi, fr in enumerate(stages[si]["frags"]) for k, m in enumerate(fr[4]) if not callable(m)]
        if b == 2: pos = [p_ for p_ in pos for _ in range(2)]
        for (si, fi, k), g_ in reversed(list(zip(pos, grp))):
            stages[si]["frags"][fi][4].insert(k + 1, g_)
        hooks[(st0 + 3, 3) if b < 2 else (26, 1)] = send_flag(b)
    def addhook(pos, f):
        old = hooks.get(pos)
        hooks[pos] = (lambda: (old(), f())) if old else f
    for k in range(RKV, 32):
        st = S0 + k - RKV
        nf = len(stages[st]["frags"]); nfp = len(stages[st - 1]["frags"])
        addhook((st - 1, nfp - 1), kv_poll)
        addhook((st, nf // 2), lambda k=k: kv_issue(k))
        addhook((st + KLAG, 0), lambda k=k: kv_pub(k))
    if opt.get("p4", 1): hooks[(opt.get("p4a", 10), 1)] = p4(0); hooks[(opt.get("p4b", 14), 1)] = p4(1)
    HL = opt.get("hl", 5)
    def hpos(t):
        u = t - HL
        if u >= 0: return (24 + u // 2, 2 * (u % 2) + 1)
        return (24 + (u // 2), 4 * (u % 2) + 1)
    for t in range(22):
        fs = []
        if t in CSTART: fs.append(lambda c=CSTART[t]: hflag_check(c))
        fs.append(lambda t=t: hload(t))
        if t + 2 in CSTART: fs.append(lambda c=CSTART[t + 2]: hflag_issue(c))
        old = hooks.get(hpos(t))
        if old: fs.insert(0, old)
        hooks[hpos(t)] = (lambda fs=fs: [f() for f in fs])
    p0 = hpos(0); addhook((p0[0] - 1, 3), lambda: hflag_issue(0))
    XRAW = 136
    def xload():
        for q in range(4):
            A(f"buffer_load_dwordx2 {v(XRAW+2*q,2)}, v{vXo}, {s(sX,4)}, s{sXo} offen offset:{16*q}"); vmq.push("xr")
    addhook((28, 0), xload)
    def fo_addr(): A(f"s_lshl_b32 s{sT2}, s{sRB}, 12\ns_lshl_b32 s{sT0}, s{sGW}, 10\ns_add_u32 s{sT2}, s{sT2}, s{sT0}\ns_add_u32 s{sT2}, s{sT2}, {FO}")
    def fo_issue():
        fo_addr()
        A(f"s_mov_b64 exec, 0xff\nbuffer_load_dword v{vHF}, v{vL128}, {ws}, s{sT2} offen sc1\ns_mov_b64 exec, -1"); vmq.push("fo")
    def fo_check():
        vwait("fo")
        A(f"s_setprio 3\nv_cmp_ne_u32 vcc, s{sTag}, v{vHF}\ns_setprio 0\ns_and_b32 vcc_lo, vcc_lo, 0xff\ns_cbranch_scc1 L_fo_s")
        A.label("L_fo_b")
        def sp():
            A.label("L_fo_s")
            fo_addr(); A("s_setprio 3")
            spin_flags("L_fo", vHF, vL128, sT2, 8, sleep=8)
            A("s_setprio 0\ns_branch L_fo_b")
        slow.append(sp)
    def o_tile():
        A(f"s_lshr_b32 s4, s2, 5\ns_lshl_b32 s4, s4, 1\ns_add_u32 s4, s4, s{sMI}\ns_lshl_b32 s4, s4, 1\ns_add_u32 s4, s4, s{sNI}")
        A(f"s_and_b32 s5, s2, 7\ns_lshl_b32 s5, s5, 2\ns_bfe_u32 s6, s2, 0x20003\ns_add_u32 s5, s5, s6")
    def o_clear():
        o_tile()
        A(f"s_lshl_b32 s6, s4, 16\ns_lshl_b32 s7, s5, 10\ns_add_u32 s6, s6, s7\ns_add_u32 s6, s6, {OF}\ns_add_u32 s7, s6, 32768")
        A(f"buffer_store_dwordx4 v[136:139], v{vL16}, {ws}, s6 offen sc1\nbuffer_store_dwordx4 v[136:139], v{vL16}, {ws}, s7 offen sc1"); vmq.push("oc", 2)
    def o_flag():
        vwait("oc")
        A(f"s_lshl_b32 s6, s4, 12\ns_lshl_b32 s7, s5, 7\ns_add_u32 s6, s6, s7\ns_add_u32 s6, s6, {FO}")
        A(f"s_mov_b64 exec, 1\nbuffer_store_dword v{vFl}, v{vT2}, {ws}, s6 offen sc1\ns_mov_b64 exec, -1"); vmq.push("of")
    addhook((8, 5), o_clear); addhook((12, 5), o_flag)
    addhook((17, 5), fo_issue); addhook((19, 5), fo_check)
    if stamps:
        for st in (8, 16, 24): addhook((st, 0), ST)
    segment(stages, hooks)
    lowprio[0] = False
    ST()
    if opt.get("atrace"):
        A(f"s_lshl_b32 s{sT0}, s2, 4\ns_add_u32 s{sT0}, s{sT0}, s{sWave}\ns_lshl_b32 s{sT0}, s{sT0}, 8\ns_add_u32 s{sT0}, s{sT0}, {STAMP+MB}\nv_lshlrev_b32 v135, 2, v{vL}\nbuffer_store_dword v31, v135, {ws}, s{sT0} offen\ns_waitcnt vmcnt(0)")
    XF = [120, 122, 124, 126, 32, 34, 36, 38]
    WARM = opt.get("warm", 0)
    if WARM: A.warm_begin()
    vwait(("dma", "o", 3))
    for i in range(8):
        slot = gslot(35 + i // 2); base = slot * SLOT
        for ni, (lo, hi) in enumerate(((vTRp0, vTRp0H), (vTRp1, vTRp1H))):
            reg, b = (lo, base) if base < 65536 else (hi, base - 65536)
            lds(f"ds_read_b64_tr_b16 {a(8*i+4*ni,2)}, v{reg} offset:{b + (i%2)*2048}", "wo")
            lds(f"ds_read_b64_tr_b16 {a(8*i+4*ni+2,2)}, v{reg} offset:{b + (i%2)*2048 + 1024}", "wo")
    vR = [None, vKo, vVo, vXR]
    sHave, sNext = 4, 5
    A(f"""
    s_setprio {opt.get("tprio", 3)}
    s_lshl_b32 s7, s{sRB}, 16
    s_lshl_b32 s{sT0}, s{sGW}, 13
    s_add_u32 s7, s7, s{sT0}
    s_add_u32 s7, s7, {OF}
    s_add_u32 s6, s7, 4096
    s_mov_b32 s{sHave}, 0
    s_mov_b32 s{sNext}, 0
    s_mov_b32 s{sC}, {hex(f2u(-1.4426950408889634))}
    s_mov_b32 s{sC+1}, {hex(f2u(-1.4426950408889634))}
    v_xor_b32 v{vR[1]}, 4096, v{vRW}
    v_xor_b32 v{vR[2]}, 8192, v{vRW}
    v_xor_b32 v{vR[3]}, 12288, v{vRW}
    v_and_b32 v{vL128}, 7, v{vL}
    v_lshlrev_b32 v{vL128}, 10, v{vL128}
    v_bfe_u32 v{vFl}, v{vL}, 3, 1
    v_lshl_add_u32 v{vL128}, v{vFl}, 15, v{vL128}
    """)
    for r_ in [vRW] + vR[1:]: A(f"v_add_u32 v{r_}, {RB0 + 2*SLOT}, v{r_}")
    OFR = 56
    AS = [(v, 40), (a, 64), (a, 80), (a, 96)]
    def o_loads(u):
        for i in range(8):
            so = 7 if i < 4 else 6
            if u: A(f"s_bitcmp1_b32 s{sD0}, {i}\ns_cbranch_scc0 L_ol{u}_{i}")
            A(f"buffer_load_dwordx4 {v(OFR+8*i,4)}, v{vO0}, {ws}, s{so} offen offset:{(i%4)*1024} sc1")
            A(f"buffer_load_dwordx4 {v(OFR+8*i+4,4)}, v{vO1}, {ws}, s{so} offen offset:{(i%4)*1024} sc1")
            if u: A.label(f"L_ol{u}_{i}")
    def reduce_tile(dst, src, mid=None):
        for lt in range(1, 4):
            k_, b_ = src[lt]
            for q in range(4):
                lds(f"ds_write_b128 v{vRW}, {k_(b_+4*q,4)} offset:{(lt-1)*SLOT + q*1024}", "w")
        lds(f"ds_add_u32 v{vCnt}, v{vOne}", "add")
        check(True)
        for lt in range(1, 4):
            for q in range(4):
                lds(f"ds_read_b128 {v(40+16*lt+4*q,4)}, v{vR[lt]} offset:{(lt-1)*SLOT + q*1024}", ("r", lt))
        if mid: mid()
        lwait(("r", 1))
        for i in range(8): A(f"v_pk_add_f32 {v(40+2*i,2)}, {v(40+2*i,2)}, {v(56+2*i,2)}")
        lwait(("r", 3))
        for i in range(8): A(f"v_pk_add_f32 {v(72+2*i,2)}, {v(72+2*i,2)}, {v(88+2*i,2)}")
        for i in range(8): A(f"v_pk_add_f32 {v(dst+2*i,2)}, {v(40+2*i,2)}, {v(72+2*i,2)}")
    def mid0():
        vwait("xr")
        for i in range(8):
            A(f"v_lshlrev_b32 v{XF[i]}, 16, v{XRAW+i}")
            A(f"v_and_b32 v{XF[i]+1}, 0xffff0000, v{XRAW+i}")
    reduce_tile(GR, [(v, 40), (v, 56), (v, 96), (a, 96)], mid0)
    OG = 0
    Tv = 40
    silu = [f"v_pk_mul_f32 {v(Tv+2*i,2)}, {v(GR+2*i,2)}, {s(sC,2)}" for i in range(8)]
    silu += [f"v_exp_f32 v{Tv+i}, v{Tv+i}" for i in range(16)]
    silu += [f"v_add_u32 v{r_}, {3*SLOT}, v{r_}" for r_ in [vRW] + vR[1:]]
    silu += [f"v_pk_add_f32 {v(Tv+2*i,2)}, {v(Tv+2*i,2)}, 1.0 op_sel_hi:[1,0]" for i in range(8)]
    silu += [f"v_rcp_f32 v{Tv+i}, v{Tv+i}" for i in range(16)]
    silu += ["s_nop 0"] + [f"v_pk_mul_f32 {v(GR+2*i,2)}, {v(GR+2*i,2)}, {v(Tv+2*i,2)}" for i in range(8)]
    if opt.get("ogate"):
        while silu: A(silu.pop(0))
        A(f"v_and_b32 v{vP}, 3, v{vL}\nv_lshlrev_b32 v{vP}, 9, v{vP}\nv_add_u32 v{vP}, {AFL+256}, v{vP}")
        lds_spin("L_ow", vHF, vP, 0, f"v_cmp_eq_u32 vcc, 0, v{vHF}", sleep=opt["ogate"])
    for i in range(8):
        so = 7 if i < 4 else 6
        for mi, vo in enumerate((vO0, vO1)):
            A(f"buffer_load_dwordx4 {v(OFR+8*i+4*mi,4)}, v{vo}, {ws}, s{so} offen offset:{(i%4)*1024} sc1")
            for _ in range(4):
                if silu: A(silu.pop(0))
    assert not silu
    ST()
    def overify(i):
        o_ = OFR + 8 * i
        A(f"""
        v_max3_u32 v{vHF}, v{o_}, v{o_+1}, v{o_+2}
        v_max3_u32 v{vP}, v{o_+3}, v{o_+4}, v{o_+5}
        v_max3_u32 v{vHF}, v{vHF}, v{o_+6}, v{o_+7}
        v_max_u32 v{vHF}, v{vHF}, v{vP}
        v_cmp_eq_u32 vcc, -1, v{vHF}
        """)
    def omfma(i):
        for ni in range(2):
            for mi in range(2):
                k_, b_ = AS[2 * ni + mi]; d = k_(b_, 16)
                A(f"{MF} {d}, {a(8*i+4*ni,4)}, {v(OFR+8*i+4*mi,4)}, {d if i else 0}")
    for i in range(8):
        A(f"s_waitcnt vmcnt({14-2*i})")
        overify(i)
        A(f"s_cbranch_vccnz L_ofx")
        omfma(i)
        A(f"s_bitset1_b32 s{sHave}, {i}\ns_mov_b32 s{sNext}, {i+1}")
    A.label("L_odone")
    gen = Asm(); gen_lines_at = len(A.lines)
    sLd = sD0
    vPr, vPa = vFl, vL128
    PROBE = f"s_mov_b64 exec, 0xffff\nbuffer_load_dword v{vPr}, v{vPa}, {ws}, s7 offen offset:1020 sc1\ns_mov_b64 exec, -1"
    A.label("L_ofx")
    A(f"s_andn2_b32 s{sLd}, 0xff, s{sHave}")
    A.label("L_of")
    A("s_waitcnt vmcnt(0)")
    for i in range(8):
        o_ = OFR + 8 * i
        A(f"""
        s_bitcmp1_b32 s{sLd}, {i}
        s_cbranch_scc0 L_ov{i}
        v_max3_u32 v{vHF}, v{o_}, v{o_+1}, v{o_+2}
        v_max3_u32 v{vP}, v{o_+3}, v{o_+4}, v{o_+5}
        v_max3_u32 v{vHF}, v{vHF}, v{o_+6}, v{o_+7}
        v_max_u32 v{vHF}, v{vHF}, v{vP}
        v_cmp_eq_u32 vcc, -1, v{vHF}
        s_cbranch_vccnz L_ov{i}
        s_bitset1_b32 s{sHave}, {i}
        """)
        A.label(f"L_ov{i}")
    A(f"s_cmp_lt_i32 s{sTO}, 0\ns_cselect_b32 s{sHave}, 0xff, s{sHave}\ns_cmp_eq_u32 s{sHave}, 0xff\ns_cbranch_scc1 L_onp")
    DT = opt.get("dt", 4)
    sDir = sD1
    A(f"s_bcnt1_i32_b32 s{sDir}, s{sHave}\ns_cmp_ge_u32 s{sDir}, {8-DT}\ns_cbranch_scc1 L_odir")
    A(PROBE)
    A("s_branch L_onp")
    A.label("L_odir")
    A(f"s_andn2_b32 s{sLd}, 0xff, s{sHave}\ns_sub_u32 s{sTO}, s{sTO}, 1")
    o_loads("c")
    A.label("L_onp")
    for i in range(8):
        A(f"s_cmp_lg_u32 s{sNext}, {i}\ns_cbranch_scc1 L_om{i}\ns_bitcmp1_b32 s{sHave}, {i}\ns_cbranch_scc0 L_opr0")
        for ni in range(2):
            for mi in range(2):
                k_, b_ = AS[2 * ni + mi]; d = k_(b_, 16)
                A(f"{MF} {d}, {a(8*i+4*ni,4)}, {v(OFR+8*i+4*mi,4)}, {d if i else 0}")
        A(f"s_mov_b32 s{sNext}, {i+1}")
        A.label(f"L_om{i}")
    A("s_branch L_odone")
    moved = A.lines[gen_lines_at:]; del A.lines[gen_lines_at:]
    slow.append(lambda: A.lines.extend(moved))
    def sp():
        A.label("L_opr0")
        A(f"s_cmp_ge_u32 s{sDir}, {8-DT}\ns_cbranch_scc1 L_of")
        A.label("L_opr")
        A(f"""
        s_waitcnt vmcnt(0)
        v_cmp_ne_u32 vcc, -1, v{vPr}
        s_sub_u32 s{sTO}, s{sTO}, 1
        s_lshr_b32 s{sLd}, vcc_lo, 8
        s_and_b32 s{sLd}, s{sLd}, vcc_lo
        s_cmp_lt_i32 s{sTO}, 0
        s_cselect_b32 s{sLd}, 0xff, s{sLd}
        s_and_b32 s{sLd}, s{sLd}, 0xff
        s_andn2_b32 s{sLd}, s{sLd}, s{sHave}
        s_cbranch_scc1 L_opg
        s_sleep {opt.get("osleep", 2)}
        {PROBE}
        s_branch L_opr
        """)
        A.label("L_opg")
        o_loads("b")
        A("s_branch L_of")
    slow.append(sp)
    ST()
    A("s_nop 10")
    reduce_tile(40, AS)
    for i in range(8): A(f"v_pk_fma_f32 {v(40+2*i,2)}, {v(40+2*i,2)}, {v(GR+2*i,2)}, {v(XF[i],2)}")
    for i in range(8): A(f"v_cvt_pk_bf16_f32 v{56+i}, v{40+2*i}, v{41+2*i}")
    A("s_nop 1")
    for h in range(2):
        A(f"v_permlane32_swap_b32 v{56+4*h}, v{58+4*h}\nv_permlane32_swap_b32 v{57+4*h}, v{59+4*h}")
    for h in range(2):
        A(f"buffer_store_dwordx4 {v(56+4*h,4)}, v{vRR}, {s(sOut,4)}, s{sXo} offen offset:{32*h}{['', ' sc1', ' nt', ' sc0 sc1'][opt.get('om', 0)]}")
    if WARM: A.warm_end("L_wg", "L_wa2", WARM)
    if opt.get("xhold"):
        A.label("L_hold")
        A(f"s_memrealtime s[98:99]\ns_waitcnt lgkmcnt(0)\ns_sub_u32 s98, s98, s{sTag if opt.get('xtag') else 100}\ns_cmp_lt_u32 s98, {opt['xhold']}\ns_cbranch_scc1 L_hold")
    if stamps:
        ST.on = True
        if not FR: ST(); ST.flush(ws, STAMP, sWave, 2, 3, sT0)
        if opt.get("dbgout"):
            A(f"s_cmp_lg_u32 s2, {opt['dbgout']-1}\ns_cbranch_scc1 L_dbx\ns_cmp_lg_u32 s{sWave}, 4\ns_cbranch_scc1 L_dbx\nv_mov_b32 v2, 0")
            for i in range(1, ST.n):
                A(f"s_sub_u32 s4, s{ST.base+2*i}, s{ST.base}\nv_mov_b32 v3, s4\nbuffer_store_dword v3, v2, {s(sDbg,4)}, 0 offen offset:{4*i}\ns_nop 1")
            A.label("L_dbx")
    A("s_endpgm")
    for f in slow: f()
    slow.clear()

    ST.n = 2 if stamps else 0
    A.label("L_attn")
    lq.clear(); vmq.clear()
    for g in range(NEARLY): vmq.push(("dma", "q", g), 4)
    def pub_ld(g):
        d = ddq(g); vwait(("dma", d[0], d[1])); lds(f"ds_add_u32 v{vCnt}, v{vOne}", "add")
    def FS():
        if FR: ST()
    def p2():
        A(f"s_mov_b64 exec, {PF2MASK}\nbuffer_load_dword v143, v30, {s(sWgu,4)}, s68 offen\ns_mov_b64 exec, -1"); vmq.push("pf")
    FS()
    NB4 = max(opt.get("nb4", 4), NEARLY)
    for g in range(max(NEARLY, GE), NB4):
        dma(*ddq(g))
        if g == opt.get("p1at", 3):
            A(f"s_mov_b64 exec, {'0xffff0000' if opt.get('p1kv', 1) else '0xffffffff'}\nbuffer_load_dword v143, v{aP3}, {s(sWq,4)}, s7 offen\ns_mov_b64 exec, -1"); vmq.push("pf")
            if opt.get("p2early", 1): p2()
    pub_ld(0)
    A("s_waitcnt lgkmcnt(0)\ns_barrier"); lq.clear()
    ST()
    for g in range(1, NB4): pub_ld(g)
    for g in range(NB4, 5): dma(*ddq(g))
    FS()
    A(GUADDR)
    A(f"""
    s_and_b32 s{sT0}, s2, 7
    s_lshr_b32 s{sT1}, s2, 3
    s_and_b32 s{sT2}, s{sT1}, 3
    s_lshl_b32 s{sHead}, s{sT0}, 2
    s_add_u32 s{sHead}, s{sHead}, s{sT2}        ; head
    s_lshr_b32 s{sT1}, s{sT1}, 2
    s_lshl_b32 s{sT1}, s{sT1}, 1
    s_add_u32 s{sT1}, s{sT1}, s{sMI}
    s_lshr_b32 s4, s{sWave}, 1
    s_lshl_b32 s5, s{sHead}, 16
    s_lshl_b32 s{sQ}, s{sT1}, 12
    s_add_u32 s{sQ}, s{sQ}, s5
    s_lshl_b32 s6, s4, 11
    s_add_u32 s{sQ0}, s{sQ}, s6
    s_xor_b32 s6, s6, 2048
    s_add_u32 s{sQ}, s{sQ}, s6
    s_lshl_b32 s{sT1}, s{sT1}, 1
    s_add_u32 s{sT1}, s{sT1}, s4
    s_lshl_b32 s{sFo}, s{sT1}, 12
    s_lshl_b32 s{sT0}, s{sHead}, 7
    s_add_u32 s{sFo}, s{sFo}, s{sT0}
    s_add_u32 s{sFo}, s{sFo}, {FO}
    s_add_u32 s{sKb}, s5, {KF}
    s_lshl_b32 s{sT0}, s4, 15
    s_add_u32 s{sKVb}, s{sKb}, s{sT0}
    v_mov_b32 v{vK}, v{vL16}
    v_lshrrev_b32 v{vV}, 5, v{vL}
    v_lshlrev_b32 v{vV}, 8, v{vV}
    v_and_b32 v{aPKV}, 15, v{vL}
    v_lshl_add_u32 v{vV}, v{aPKV}, 4, v{vV}
    v_add_u32 v{vV}, {VF-KF}, v{vV}
    s_mov_b32 s{sMask}, 0x0000ffff
    s_mov_b32 s{sMask+1}, 0x0000ffff
    s_mov_b32 s{sFB}, 1
    s_mov_b32 s{sOff}, {hex(f2u(-float(opt.get('offset', 80))))}
    v_mov_b32 v{vIdx}, 0xdddddddd
    v_and_b32 v{aOnes}, 27, v{vL}
    v_cmp_eq_u32 vcc, 16, v{aOnes}
    v_mov_b32 v{aOnes}, 0x3f803f80
    s_lshr_b32 s{sFQ}, s{sHead}, 1
    v_cndmask_b32 v{aOnes}, 0, v{aOnes}, vcc
    s_lshl_b32 s{sFQ}, s{sFQ}, 13
    s_add_u32 s{sFQ}, s{sFQ}, {FQ}
    v_lshlrev_b32 v{aL128}, 7, v{vL}
    s_lshr_b32 s{sPKV}, s2, 5
    s_lshl_b32 s{sPKV}, s{sPKV}, 2
    s_add_u32 s{sPKV}, s{sPKV}, s{sWave}
    s_lshl_b32 s{sPKV}, s{sPKV}, 11
    s_add_u32 s{sPKV}, s{sPKV}, s{sKb}          ; K/V slice
    v_lshlrev_b32 v{aPKV}, 7, v{aPKV}
    v_bfe_u32 v{aPF}, v{vL}, 4, 1
    v_lshl_add_u32 v{aPKV}, v{aPF}, 21, v{aPKV}
    """)
    assert VF - KF == 1 << 21
    for g in range(NB4, 5): pub_ld(g)
    check(True, 0, 1, sleep=opt.get("asleep", 2))
    FS()
    NPRE = 12 + NG0
    for g in range(5, NPRE):
        if g >= 9: check(True, 0, g - 7, sleep=opt.get('asleep', 2))
        if g == 12:
            pub_ld(11)
            if not opt.get("p2early", 1): p2()
        dma(*ddq(g))
        if g >= 7 and g < 16: FS()
        if 8 <= g <= 11:
            inits = [f"v_accvgpr_write_b32 a{x[1]+i}, v{aOnes}" if x[0] == "a" else f"v_mov_b32 v{x[1]+i}, v{aOnes}" for x in VRG for i in range(8)]
            inits += [f"v_accvgpr_write_b32 a{O+i}, 0" for i in range(64)]
            for x in inits[(g - 8) * 20:(g - 7) * 20]: A(x)
        if g == 11:
            A(f"v_mov_b32 v{vT1}, 0\nbuffer_load_dword v{vF}, v{vT1}, {s(sDbg,4)}, 0 offen sc1"); vmq.push("tag")
        if g > 5 and g != 12: pub_ld(g - 1)
    pub_ld(NPRE - 1)
    if FR: ST(); again(); ST.flush(ws, STAMP, sWave, 2, 3, sT0); A("s_endpgm"); ST.on = False; stamps = False
    if opt.get("aexit"): A("s_waitcnt lgkmcnt(0)\ns_endpgm")
    A(f"s_waitcnt vmcnt(0)\nv_readfirstlane_b32 s{sTag}, v{vF}\ns_cmp_lg_u32 s{sTag}, 0\ns_cbranch_scc1 L_atag_x")
    get_tag(vF, vT1, "L_atag")
    A(f"s_mov_b32 s{sFo}, 0")
    A(f"s_setprio 2\ns_cmp_lg_u32 s{sWave}, 0\ns_cbranch_scc1 L_aw")
    lds_spin("L_ag2", M, vCntR, 0, f"v_cmp_gt_u32 vcc, {opt.get('ag', 12)}, v{M}", sleep=2)
    ST()
    if opt.get("adelay"): A(f"s_sleep {opt['adelay']}")
    spin_flags("L_qf", vF, aL128, sFQ, 64, sleep=opt.get("qsleep", 2), first=bool(opt.get("qfirst", 0)))
    assert opt.get('ag', 12) >= 10
    A(f"ds_write_b32 v{aGo}, v{vOne}\ns_branch L_aw_x")
    A.label("L_aw")
    if WARM:
        A("s_mov_b64 exec, 0\ns_branch L_wa1"); A.label("L_wa1_ret"); A("s_mov_b64 exec, -1")
    if stamps: ST.n -= 1; ST()
    lds_spin("L_ag3", M, aGo, 0, f"v_cmp_eq_u32 vcc, 0, v{M}", sleep=1)
    A.label("L_aw_x")
    if opt.get("xgo"): hold("L_hgo", opt["xgo"])
    ST()
    if WARM: A.warm_begin()
    sKN = sKB2
    vOwn, vOneA, vKl, vVl, vPl = 2, 3, 4, 5, 6
    A(f"buffer_load_dwordx4 {a(KS,4)}, v{vK}, {ws}, s{sKb} offen sc1")
    NS = opt.get("ns", 2)
    if NS == 2: A(f"buffer_load_dwordx4 {a(KS+4,4)}, v{vK}, {ws}, s{sKb} offen offset:1024 sc1")
    def qloads():
        for t in range(4):
            A(f"buffer_load_dwordx4 {v(SB+4*t,4)}, v{vK}, {ws}, s{sQ0 if t < 2 else sQ} offen offset:{(t&1)*1024} sc1")
    def qverify():
        for k in range(0, 15, 2):
            A(f"v_max3_u32 v{M}, v{SB+k}, v{SB+k+1}, v{M if k else SB+15}")
        A(f"v_cmp_eq_u32 vcc, -1, v{M}")
    qloads()
    A(f"s_and_b32 s4, s{sWave}, 1\ns_lshl_b32 s4, s4, 21\ns_add_u32 s4, s4, s{sKVb}\ns_mul_i32 s5, s{sWave}, {RKV*KST}")
    for k0, n in ((0, 2), (2, 4), (6, 4)):
        A(f"s_add_u32 s6, s4, {k0*1024}")
        for i in range(n):
            A(f"s_add_u32 m0, s5, {((k0 + i + E0) % RKV) * KST - i * 1024}\ns_nop 0")
            A(f"buffer_load_dwordx4 v{vK}, {ws}, s6 offen offset:{i*1024} sc1 lds")
    vVl1 = vF
    A(f"""
    v_subrev_u32 v{vOwn}, 1024, v{vCnt}
    v_mov_b32 v{vOneA}, 1
    v_lshrrev_b32 v32, 1, v{vL}
    v_mul_u32_u24 v32, {KST}, v32
    v_and_b32 v33, 1, v{vL}
    v_lshl_add_u32 v32, v33, 4, v32
    v_add_u32 v32, s5, v32
    v_cmp_eq_u32 vcc, 0, v33
    v_mov_b32 v36, 0x3f803f80
    s_lshr_b32 s4, s{sWave}, 1
    v_cndmask_b32 v36, 0, v36, vcc
    s_mul_i32 s4, s4, {2*RKV*KST}
    v_mov_b32 v37, v36
    v_mov_b32 v38, v36
    v_mov_b32 v39, v36
    s_mov_b64 exec, {hex((1 << (2*RKV)) - 1)}
    ds_write_b128 v32, v[36:39] offset:1024
    s_mov_b64 exec, -1
    v_add_u32 v{vKl}, s4, v{vK}
    s_sub_u32 s6, s4, {VF-KF-RKV*KST}
    v_add_u32 v{vVl}, s6, v{vV}
    v_add_u32 v{vVl1}, 512, v{vVl}
    s_add_u32 s4, s4, {RKV*KST+1024}
    v_cmp_eq_u32 vcc, 0, v{aOnes}
    v_mov_b32 v32, s4
    v_add_u32 v33, 16, v32
    v_cndmask_b32 v32, v32, v33, vcc
    v_cndmask_b32 v{vVl}, v32, v{vVl}, {s(sMask,2)}
    v_cndmask_b32 v{vVl1}, v32, v{vVl1}, {s(sMask,2)}
    s_waitcnt vmcnt({RKV})
    """)
    qverify()
    A("s_cbranch_vccnz L_qre")
    A.label("L_qre_x")
    def sp():
        A.label("L_qre")
        qloads()
        A("s_waitcnt vmcnt(0)")
        qverify()
        A("s_cbranch_vccz L_qre_x")
        timeout_exit("L_qre_x")
        A("s_sleep 1\ns_branch L_qre")
    slow.append(sp)
    A(f"ds_add_u32 v{vOwn}, v{vOneA} offset:1024")
    for i in range(16): A(f"v_accvgpr_write_b32 a{Q+i}, v{SB+i}")
    A("s_nop 1")
    def maxtree(dst, blocks, first):
        regs = [b + i for b in blocks for i in range(16)]
        if first:
            A(f"v_max3_f32 v{dst}, v{regs[0]}, v{regs[1]}, v{regs[2]}"); regs = regs[3:]
        while len(regs) >= 2:
            A(f"v_max3_f32 v{dst}, v{dst}, v{regs[0]}, v{regs[1]}"); regs = regs[2:]
        if regs: A(f"v_max_f32 v{dst}, v{dst}, v{regs[0]}")
    def build_c():
        T_ = SB
        for t in range(4): A(f"v_mov_b32 v{T_+t}, v{M+t}")
        A("s_nop 1")
        for t in range(4): A(f"v_permlane32_swap_b32 v{T_+t}, v{M+t}")
        for t in range(4): A(f"v_max_f32 v{M+t}, v{M+t}, v{T_+t}")
        for t in range(4): A(f"v_sub_f32 v{M+t}, s{sOff}, v{M+t}")
    def fill_c(t):
        for i in range(8): A(f"v_pk_mov_b32 {v(C+16*t+2*i,2)}, {v(M+(t&~1),2)}, {v(M+(t&~1),2)} op_sel:[{t&1},{t&1}]")
    for t in range(4):
        A(f"{MF} {v(C+16*t,16)}, {a(KS,4)}, {a(Q+4*t,4)}, 0")
        if NS == 2: A(f"{MF} {v(SB+16*t,16)}, {a(KS+4,4)}, {a(Q+4*t,4)}, 0")
    A(f"s_waitcnt vmcnt({RKV-2})\nds_add_u32 v{vOwn}, v{vOneA} offset:512\nds_add_u32 v{vOwn}, v{vOneA} offset:512\ns_nop {2 if NS == 2 else 5}")
    for t in range(4): maxtree(M + t, [C + 16 * t, SB + 16 * t][:NS], True)
    def kvitems(slot, pos, add=True):
        L = [f"ds_read_b128 {rg(KRG[slot])}, v{vKl} offset:{pos*KST}", f"ds_read_b128 {rg(VRG[slot])}, v{vVl} offset:{pos*KST}",
             f"ds_read_b128 {rg(VRG[slot],4)}, v{vVl1} offset:{pos*KST}"]
        if add: L.append(f"ds_add_u32 v{vOwn}, v{vOneA} offset:1024")
        return L
    lds_spin("L_akv", SB + 8, vCntR, 512, f"v_cmp_gt_u32 vcc, 2, v{SB+8}")
    for x in kvitems(E0 & 1, E0): A(x)
    build_c()
    fill_c(0)
    A(f"v_mov_b32 v{SB+32}, {RKV-2}\ns_waitcnt lgkmcnt(0)")
    A(f"{MF} {v(SB,16)}, {rg(KRG[E0 & 1])}, {a(Q,4)}, {v(C,16)}")
    A(f"s_waitcnt vmcnt(0)\nds_add_u32 v{vOwn}, v{SB+32} offset:512")
    for t in range(1, 4): fill_c(t)
    for i in range(4): A(f"v_pk_mov_b32 {v(SB+48+8+2*i,2)}, 0, 0")
    A(f"v_mov_b32 v{vPl}, 2\ns_mov_b32 s{sCnt}, 3\ns_mov_b32 s{sKN}, {3 if G2 else 2}")
    ST()
    if stamps: A("s_memtime s[96:97]")
    if WARM: A.warm_end("L_wa1", "L_wa1_ret", WARM)
    A(f"s_lshr_b32 s4, s{sWave}, 1\ns_mul_i32 s4, s4, {-4*RKV*KST}\ns_add_u32 s4, s4, {2*RKV*KST}")
    for d_, s_ in ((7, vKl), (8, vVl), (9, vVl1)): A(f"v_add_u32 v{d_}, s4, v{s_}")
    A.raw(".p2align 6")
    A.label("L_aloop")
    for r in range(RKV):
        sl = r & 1
        chk = not (G2 and r % 2 == 1)
        side = []
        if chk:
            l = lab("akc")
            side.append(f"v_cmp_gt_u32 vcc, s{sKN}, v{vPl}\ns_cbranch_vccnz {l}\n{l}_x:")
            def sp(l=l):
                A.label(l)
                A(f"ds_read_b32 v{vPl}, v{vCntR} offset:512\ns_waitcnt lgkmcnt(0)\nv_cmp_gt_u32 vcc, s{sKN}, v{vPl}\ns_cbranch_vccz {l}_x")
                timeout_exit(l + "_x")
                A(f"s_sleep 1\ns_branch {l}")
            slow.append(sp)
        side += kvitems(sl ^ 1, (r + 1) % RKV, add=chk)
        if not G2 or r % 2 == 1:
            side += [f"ds_read_b32 v{vPl}, v{vCntR} offset:512", f"s_add_u32 s{sKN}, s{sKN}, {2 if G2 else 1}"]
        SPR = opt.get("spr", 1)
        PAT = {0: "QeeeeeBeseeeeeAeeeee", 1: "QeeeseeBeeeseeeAeeesee", 2: "QeeeeseBeeeeseeAeeeese", 3: "QeeseeeBeeseeeeAeeseee"}[SPR]
        for t in range(4):
            X = SB + 16 * t
            tn = (t + 1) & 3; sn = sl if t < 3 else sl ^ 1
            tp = (t - 1) & 3; sp_ = sl if t > 0 else sl ^ 1
            if t == 3:
                assert not side
                if r == RKV - 1: side = [f"s_sub_u32 s{sCnt}, s{sCnt}, 1", f"s_cmp_lg_u32 s{sCnt}, 0"]
                if SPR == 0: A("s_waitcnt lgkmcnt(0)")
            e = 0; seenB = False
            for k, ch in enumerate(PAT):
                if ch == "Q": A(f"{MF} {v(SB+16*tn,16)}, {rg(KRG[sn])}, {a(Q+4*tn,4)}, {v(C+16*tn,16)}")
                elif ch == "B": A(f"{SMF} {a(O+16*tp,16)}, {rg(VRG[sp_],4)}, {v(SB+16*tp+8,8)}, v{vIdx}"); seenB = True
                elif ch == "A": A(f"{SMF} {a(O+16*t,16)}, {rg(VRG[sl])}, {v(X,8)}, v{vIdx}")
                elif ch == "e": A(f"v_exp_f32 v{X+e}, v{X+e}"); e += 1
                else:
                    last = "s" not in PAT[k + 1:]
                    if SPR == 0:
                        while side: A(side.pop(0))
                    elif t == 2 and last:
                        assert not side; A("s_waitcnt lgkmcnt(0)")
                    elif side and not (t == 0 and not seenB and "ds_read_b128" in side[0] and f"v{vKl} " not in side[0]):
                        A(side.pop(0))
            assert e == 16
    A("s_cbranch_scc1 L_aloop")
    assert G2
    PB = C + 32
    def send_items():
        L = [f"s_mul_i32 s{sT0}, s{sWave}, {CMBW}\ns_add_u32 s{sT0}, s{sT0}, {CMB}\nv_add_u32 v{PB+24}, s{sT0}, v{vK}\nv_lshl_add_u32 v{PB+25}, v{vL}, 2, s{sT0}\nv_mov_b32 v{PB+26}, s{sFB}"]
        for i in range(2):
            t = 2 + i
            L += [f"ds_write_b128 v{PB+24}, {a(O+16*t,4)} offset:{i*2304}", f"ds_write_b128 v{PB+24}, {a(O+16*t+4,4)} offset:{i*2304+1024}",
                  f"ds_write_b32 v{PB+25}, a{O+16*t+8} offset:{i*2304+2048}"]
        L += [f"ds_write_b32 v{vAF}, v{PB+26}",
              f"s_xor_b32 s{sT0}, s{sWave}, 2\ns_mul_i32 s{sT0}, s{sT0}, {CMBW}\ns_add_u32 s{sT0}, s{sT0}, {CMB}\nv_add_u32 v{PB+27}, s{sT0}, v{vK}\nv_lshl_add_u32 v{PB+28}, v{vL}, 2, s{sT0}"]
        return L
    def recv():
        lds_spin(lab("ax"), M, vPF, 0, f"v_cmp_gt_u32 vcc, s{sFB}, v{M}")
        for i in range(2):
            b = PB + 12 * i
            A(f"ds_read_b128 {v(b,4)}, v{PB+27} offset:{i*2304}")
            A(f"ds_read_b128 {v(b+4,4)}, v{PB+27} offset:{i*2304+1024}")
            A(f"ds_read_b32 v{b+8}, v{PB+28} offset:{i*2304+2048}")
    HB = [(vKl, vVl, vVl1, 0), (vKl, vVl, vVl1, 1), (7, 8, 9, 0), (7, 8, 9, 1)]
    snd = send_items()
    for u in range(8):
        hb, t = divmod(u, 2); sl = hb & 1
        X = SB + 16 * (u & 3); Xp = SB + 16 * ((u - 1) & 3); Xn = SB + 16 * ((u + 1) & 3)
        tp = 3 if u == 0 else (u - 1) & 1; sp_ = sl if t == 1 else sl ^ 1
        sn = sl if t == 0 else sl ^ 1
        if t == 1 and u < 7: A("s_waitcnt lgkmcnt(0)")
        if u < 7: A(f"{MF} {v(Xn,16)}, {rg(KRG[sn])}, {a(Q+4*(t^1),4)}, {v(C+16*(t^1),16)}")
        for j in range(5): A(f"v_exp_f32 v{X+j}, v{X+j}")
        A(f"{SMF} {a(O+16*tp,16)}, {rg(VRG[sp_],4)}, {v(Xp+8,8)}, v{vIdx}")
        A(f"v_exp_f32 v{X+5}, v{X+5}")
        if u == 0:
            l = lab("akc")
            A(f"v_cmp_gt_u32 vcc, 32, v{vPl}\ns_cbranch_vccnz {l}")
            A.label(l + "_x")
            def sp(l=l):
                A.label(l)
                A(f"ds_read_b32 v{vPl}, v{vCntR} offset:512\ns_waitcnt lgkmcnt(0)\nv_cmp_gt_u32 vcc, 32, v{vPl}\ns_cbranch_vccz {l}_x")
                timeout_exit(l + "_x")
                A(f"s_sleep 1\ns_branch {l}")
            slow.append(sp)
            A(f"ds_add_u32 v{vOwn}, v{vOneA} offset:1024")
        if t == 0 and hb < 3:
            k_, v0_, v1_, pos = HB[hb + 1]
            A(f"ds_read_b128 {rg(KRG[sl^1])}, v{k_} offset:{pos*KST}")
            A(f"ds_read_b128 {rg(VRG[sl^1])}, v{v0_} offset:{pos*KST}")
            A(f"ds_read_b128 {rg(VRG[sl^1],4)}, v{v1_} offset:{pos*KST}")
        if u == 6: recv()
        for j in range(6, 11):
            A(f"v_exp_f32 v{X+j}, v{X+j}")
            if u in (1, 3) and snd and (u == 3 or len(snd) > 4): A(snd.pop(0))
        A(f"{SMF} {a(O+16*t,16)}, {rg(VRG[sl])}, {v(X,8)}, v{vIdx}")
        for j in range(11, 16): A(f"v_exp_f32 v{X+j}, v{X+j}")
    assert not snd
    A("s_nop 2")
    A(f"{SMF} {a(O+16,16)}, {rg(VRG[1],4)}, {v(SB+48+8,8)}, v{vIdx}")
    ST()
    if stamps: A("s_memtime s[98:99]")
    A.label("L_afin")
    if WARM: A.warm_begin()
    for e in range(9): A(f"v_accvgpr_read_b32 v{C+e}, a{O+e}")
    A("s_nop 2")
    for e in range(9): A(f"v_accvgpr_read_b32 v{C+12+e}, a{O+16+e}")
    A(f"""
    v_mov_b32 v2, 0
    v_mov_b32 v3, 0
    s_mov_b32 s4, {hex(f2u(2.0**-110))}
    s_mov_b32 s5, {hex(f2u(2.0**120))}
    s_add_u32 s6, s{sO}, 32768
    s_waitcnt lgkmcnt(0)
    """)
    B_ = [C, C + 12]
    for b0 in B_: A(f"v_add_f32 v{b0+8}, v{b0+8}, v{b0+32+8}")
    for b0 in B_: A(f"v_rcp_f32 v{b0+10}, v{b0+8}")
    for b0 in B_:
        for e in range(4): A(f"v_pk_add_f32 {v(b0+2*e,2)}, {v(b0+2*e,2)}, {v(b0+32+2*e,2)}")
    A(f"""
    v_min_f32 v4, v{B_[0]+8}, v{B_[1]+8}
    v_max_f32 v5, v{B_[0]+8}, v{B_[1]+8}
    v_cmp_nle_f32 {s(sBad,2)}, s4, v4
    v_cmp_nge_f32 vcc, s5, v5
    """)
    for b0 in B_:
        for e in range(4): A(f"v_pk_mul_f32 {v(b0+2*e,2)}, {v(b0+2*e,2)}, {v(b0+10,2)} op_sel_hi:[1,0]")
    A(f"s_or_b64 {s(sBad,2)}, {s(sBad,2)}, vcc")
    for b0 in B_:
        for e in range(4): A(f"v_pk_fma_f32 v[2:3], {v(b0+2*e,2)}, 0, v[2:3] op_sel_hi:[1,0,1]")
    for b0 in B_:
        for e in range(4): A(f"v_cvt_pk_bf16_f32 v{b0+32+e}, v{b0+2*e}, v{b0+2*e+1}")
    A("v_cmp_u_f32 vcc, v2, v3")
    for b0 in B_:
        for e in range(4): A(f"v_min_u32 v{b0+32+e}, -2, v{b0+32+e}")
    A(f"""
    s_or_b64 {s(sBad,2)}, {s(sBad,2)}, vcc
    s_cselect_b32 s4, 2, 1
    s_cmp_eq_u32 s{sFB}, 2
    s_cselect_b32 s5, 1, s4
    s_or_b32 s5, s5, s{sFo}
    s_cmp_lg_u32 s5, 1
    s_cbranch_scc1 L_anost
    buffer_store_dwordx4 {v(B_[0]+32,4)}, v{vK}, {ws}, s{sO} offen sc1
    buffer_store_dwordx4 {v(B_[1]+32,4)}, v{vK}, {ws}, s6 offen sc1
    s_mov_b32 s{sFo}, 2
    """)
    A.label("L_anost")
    A(f"v_mov_b32 v2, s4\nds_write_b32 v{vAF}, v2 offset:256")
    if WARM: A.warm_end("L_wa2", "L_wg_ret", WARM)
    A.label("L_anoflag")
    if stamps:
        ST(); A("s_waitcnt lgkmcnt(0)\ns_sub_u32 s98, s98, s96\ns_add_u32 s%d, s98, s%d" % (ST.base + 2 * ST.n, ST.base)); ST.n += 1
        ST.flush(ws, STAMP, sWave, 2, 3, sT0)
    A(f"s_cmp_eq_u32 s{sFB}, 2\ns_cbranch_scc1 L_end")
    lds_spin("L_as", M, vPF, 256, f"v_cmp_eq_u32 vcc, 0, v{M}")
    A(f"v_readfirstlane_b32 s5, v{M}\ns_max_u32 s4, s4, s5\ns_cmp_lt_u32 s4, 2\ns_cbranch_scc1 L_end")
    A(f"s_mov_b32 s{sFB}, 2\ns_mov_b32 s{sOff}, 0\ns_mov_b32 s{sCnt}, 64\ns_mov_b32 s{sKA}, s{sKb}\ns_waitcnt vmcnt(0)")
    for t in range(4): A(f"v_mov_b32 v{M+t}, 0xff800000")
    A.label("L_afb")
    A(f"buffer_load_dwordx4 {a(KS,4)}, v{vK}, {ws}, s{sKA} offen sc1")
    A("s_waitcnt vmcnt(0)")
    for t in range(4): A(f"{MF} {v(C+16*t,16)}, {a(KS,4)}, {a(Q+4*t,4)}, 0")
    A("s_nop 11")
    for t in range(4): maxtree(M + t, [C + 16 * t], False)
    A(f"s_add_u32 s{sKA}, s{sKA}, 1024\ns_sub_u32 s{sCnt}, s{sCnt}, 1\ns_cmp_lg_u32 s{sCnt}, 0\ns_cbranch_scc1 L_afb")
    build_c()
    for t in range(4): fill_c(t)
    zero_o()
    A(f"s_mov_b32 s{sCnt}, 32\ns_mov_b32 s{sKA}, s{sKVb}")
    A.label("L_afb2")
    A(f"""
    buffer_load_dwordx4 {rg(KRG[0])}, v{vK}, {ws}, s{sKA} offen sc1
    s_mov_b64 exec, {s(sMask,2)}
    buffer_load_dwordx4 {rg(VRG[0])}, v{vV}, {ws}, s{sKA} offen sc1
    buffer_load_dwordx4 {rg(VRG[0],4)}, v{vV}, {ws}, s{sKA} offen offset:512 sc1
    s_mov_b64 exec, -1
    s_waitcnt vmcnt(0)
    """)
    for t in range(4): A(f"{MF} {v(SB+16*t,16)}, {rg(KRG[0])}, {a(Q+4*t,4)}, {v(C+16*t,16)}")
    A("s_nop 8")
    for j in range(64): A(f"v_exp_f32 v{SB+j}, v{SB+j}")
    A("s_nop 2")
    for t in range(4):
        A(f"{SMF} {a(O+16*t,16)}, {rg(VRG[0])}, {v(SB+16*t,8)}, v{vIdx}")
        A(f"{SMF} {a(O+16*t,16)}, {rg(VRG[0],4)}, {v(SB+16*t+8,8)}, v{vIdx}")
    A(f"s_add_u32 s{sKA}, s{sKA}, 1024\ns_sub_u32 s{sCnt}, s{sCnt}, 1\ns_cmp_lg_u32 s{sCnt}, 0\ns_cbranch_scc1 L_afb2")
    A("s_nop 15")
    for x in send_items(): A(x)
    recv()
    A("s_branch L_afin")
    for f in slow: f()
    A.label("L_end")
    A("s_endpgm")
    if opt.get("cpf", 1): A.raw(f".fill (51200 - (. - {K})) / 4, 4, 0xbf800000")

    H_ = Asm()
    H_.raw(f"; @launch grid=(256,1,1) block=(512,1,1) lds={LDS}")
    H_.raw('.amdgcn_target "amdgcn-amd-amdhsa--gfx950"\n.text')
    H_.lines += A.lines
    H_.raw(f""".section .rodata,"a"
.p2align 6
.amdhsa_kernel {K}
  .amdhsa_next_free_vgpr {NV+NA}
  .amdhsa_next_free_sgpr 102
  .amdhsa_accum_offset {NV}
  .amdhsa_group_segment_fixed_size 0
  .amdhsa_kernarg_size 80
  .amdhsa_user_sgpr_count 2
  .amdhsa_user_sgpr_kernarg_segment_ptr 1
  .amdhsa_system_sgpr_workgroup_id_x 1
.end_amdhsa_kernel""")
    txt = H_.text()
    check_hazards(txt)
    return txt

if __name__ == "__main__":
    base = {"pfgo": 1}
    open("mega_s.s", "w").write(build(True, base))
    open("mega.s", "w").write(build(False, base))
    open("mega_tr.s", "w").write(build(True, dict(base, atrace=1)))
    open("mega_dbg.s", "w").write(build(True, dict(base, dbgout=10)))
    open("mega_pt.s", "w").write(build(False, dict(base, pretouch=1)))
    open("mega_nc.s", "w").write(build(False, dict(base, cpf=0)))
    open("mega_b.s", "w").write(build(True, dict(base, p1kv=0, p2early=0)))
    open("mega_c.s", "w").write(build(True, dict(base, p1kv=1, p2early=0)))
    open("mega_d.s", "w").write(build(True, dict(base, p1kv=0, p2early=1)))
```

```python
import sys, struct
from asmlib import *
from layout import *
NAME = 'recurrent_scan__softmax_full_mha__glu_gated_geglu__prompt'
def f2u(x): return struct.unpack("<I", struct.pack("<f", x))[0]
MF = "v_mfma_f32_32x32x16_bf16"
SMF = "v_smfmac_f32_32x32x32_bf16"
C1 = -2.0 * 1.4426950408889634 * 0.7978845608028654
C2 = C1 * 0.044715
NV, NA = 144, 112

SLOT = 16384
RB0 = 9472
KST = 1056
RKV = 10
PIECE = 528
XT = RB0 + 5 * SLOT
CMB = RB0 + 8 * SLOT
CMBW = 2 * 2304
CNT = CMB + 4 * CMBW
LDC = CNT + 1024
AFL = LDC + 1024
GO = AFL + 8 * 256
LDS = GO + 256
assert XT + 128 * PIECE <= CNT and LDS <= 163840 and 4 * RKV * KST == RB0 + 2 * SLOT

class Fifo:
    def __init__(self, cap): self.q = []; self.cap = cap; self.since = 0
    def push(self, tag, n=1): self.q += [tag] * n; self.since += n
    def need(self, tag):
        idx = [i for i, t in enumerate(self.q) if t == tag]
        if not idx: return None
        return min(len(self.q) - 1 - idx[-1], self.cap)
    def waited(self, n): self.q = self.q[max(0, len(self.q) - n):] if n else []
    def clear(self): self.q = []

def build(stamps=False, opt=None):
    opt = opt or {}
    TIMEOUT = opt.get("timeout", 200000)
    NG0 = opt.get('ng0', 4)
    PF2MASK = '0xffffffff'
    A = Asm()
    K = NAME + "_kernel"
    ST = Stamps(A, 70, stamps); ST.cyc = opt.get('cyc', False)
    sX, sWq, sWgu, sWd, sWo, sWS, sOut, sDbg = 8, 12, 16, 20, 24, 28, 32, 36
    sWave, sRB, sCG, sT0, sT1, sT2, sTag, sTO = 40, 41, 42, 43, 44, 45, 46, 47
    sGW, sMI, sNI, sM0, sQoff, sGoff, sDoff, sOoffW, sNeed, sFlag, sHst, sBlk, sNb = 48, 49, 50, 51, 52, 53, 54, 55, 56, 57, 58, 59, 60
    sHfl, sC, sD0, sD1, sHld, sXo, sHb, sSt = 61, 62, 64, 65, 66, 67, 68, 69
    sKA, sCnt, sKB2, sBad = 48, 51, 49, 52
    sFB, sOff, sQ, sKVb, sHead, sO, sKb, sFo = 50, 54, 55, 56, 57, 60, 61, 62
    sMask, sQ0, sFQ, sP3, sPKV = 58, 63, 65, 66, 67
    sKVs, sKVm = 52, 1
    ws = s(sWS, 4)
    vL, vT0, vT1, vT2, vHF = 1, 2, 3, 4, 5
    vDq0, vDq1, vDg0, vDg1, vDd0, vDd1 = 6, 7, 8, 9, 10, 11
    vTRn, vTRnH, vTRp0, vTRp0H, vTRp1, vTRp1H = 12, 13, 14, 15, 16, 17
    vCnt, vOne, vP, vL16, vFl, vL128 = 18, 19, 20, 21, 22, 23
    vH0, vO0 = 6, 7
    vCntR = 0
    slow = []
    vKo, vVo, vH1, vO1, vXo, vRW, vRR, vXR = 24, 25, 26, 27, 28, 29, 30, 31
    WFB = [32, 36, 112, 116, 120, 124]
    if opt.get('twice'): WFB = [32, 128, 112, 116, 120, 124]
    ACC0, ACC1, TMP, AD, XR, GR, SR = 40, 56, 72, 40, 104, 128, 112
    vmq = Fifo(63); lq = Fifo(15)
    uid = [0]
    lowprio = [False]
    def lab(p):
        uid[0] += 1; return f"L_{p}{uid[0]}"
    def vwait(tag):
        n = vmq.need(tag)
        if n is not None: A(f"s_waitcnt vmcnt({n})"); vmq.waited(n)
    def lwait(tag):
        n = lq.need(tag)
        if n is not None: A(f"s_waitcnt lgkmcnt({n})"); lq.waited(n)
    def lds(instr, tag):
        if len(lq.q) >= 15:
            A("s_waitcnt lgkmcnt(12)"); lq.waited(12)
        A(instr); lq.push(tag)
    def timeout_exit(lbl):
        A(f"s_sub_u32 s{sTO}, s{sTO}, 1\ns_cmp_lt_i32 s{sTO}, 0\ns_cbranch_scc1 {lbl}")
    def emask(n): return n if isinstance(n, str) else ("-1" if n == 64 else hex((1 << n) - 1))

    A.raw(f".globl {K}\n.p2align 8\n.type {K},@function\n{K}:")
    F0 = opt.get("front0"); FR = opt.get("front")
    A(f"""
    s_cmp_ge_u32 s2, 256
    s_cbranch_scc1 L_end
    """)
    if opt.get("twice"): A("v_mov_b32 v135, 0"); A.label("L_restart")
    def again():
        if opt.get("twice"):
            l = lab("tw")
            A(f"s_waitcnt vmcnt(0) lgkmcnt(0)\ns_barrier\ns_setprio 0\nv_readfirstlane_b32 s4, v135\ns_cmp_lg_u32 s4, 0\ns_cbranch_scc1 {l}\nv_mov_b32 v135, 1\ns_lshl_b32 s4, s40, 6\nv_add_u32 v0, s4, v1\ns_sleep 40\ns_branch L_restart")
            A.label(l)
    if opt.get("xhold") or opt.get("xgo") or opt.get("xln"): A("s_memrealtime s[100:101]")
    def hold(lbl, t):
        A.label(lbl)
        A(f"s_memrealtime s[98:99]\ns_waitcnt lgkmcnt(0)\ns_sub_u32 s98, s98, s100\ns_cmp_lt_u32 s98, {t}\ns_cbranch_scc1 {lbl}")
    if opt.get("scr"):
        A("s_and_b32 s4, s2, 7\ns_lshl_b32 s4, s4, 3\ns_bfe_u32 s5, s2, 0x30003\ns_and_b32 s2, s2, 0xc0\ns_or_b32 s2, s2, s4\ns_or_b32 s2, s2, s5")
    A(f"""
    s_load_dwordx4 s[4:7], s[0:1], 0
    s_load_dwordx2 s[24:25], s[0:1], 16
    s_load_dwordx4 s[16:19], s[0:1], 32
    s_load_dwordx4 s[20:23], s[0:1], 48
    s_load_dwordx4 s[36:39], s[0:1], 64
    """)
    if opt.get("cpf", 1):
        A(f"""
        s_getpc_b64 s[8:9]
        s_lshr_b32 s10, s2, 3
        s_lshl_b32 s10, s10, 7
        s_add_u32 s8, s8, s10
        s_addc_u32 s9, s9, 0
        v_lshlrev_b32 v2, 12, v0
        v_add_co_u32 v2, vcc, s8, v2
        v_mov_b32 v3, s9
        v_cmp_gt_u32 s[10:11], 12, v0
        v_addc_co_u32 v3, vcc, 0, v3, vcc
        s_and_saveexec_b64 s[12:13], s[10:11]
        s_cbranch_execz L_nocpf
        global_load_dword v143, v[2:3], off
        L_nocpf:
        s_mov_b64 exec, -1
        """)
    ST()
    A(f"""
    v_lshrrev_b32 v{vT0}, 6, v0
    v_and_b32 v{vL}, 63, v0
    s_and_b32 s{sT0}, s2, 7
    v_readfirstlane_b32 s{sWave}, v{vT0}
    s_lshr_b32 s{sT1}, s2, 3
    s_lshr_b32 s{sRB}, s{sT0}, 1
    s_lshl_b32 s{sRB}, s{sRB}, 3
    s_and_b32 s{sT2}, s{sT1}, 7
    s_add_u32 s{sRB}, s{sRB}, s{sT2}
    s_and_b32 s{sCG}, s{sT0}, 1
    s_lshl_b32 s{sCG}, s{sCG}, 2
    s_lshr_b32 s{sT2}, s{sT1}, 3
    s_add_u32 s{sCG}, s{sCG}, s{sT2}
    v_lshrrev_b32 v{vT0}, 3, v{vL}
    v_and_b32 v{vT1}, 7, v{vL}                  ; 16B piece
    v_lshlrev_b32 v{vT2}, 10, v{vT0}
    v_lshl_add_u32 v5, v{vT1}, 4, v{vT2}
    s_lshl_b32 s{sT0}, s{sRB}, 16
    s_lshl_b32 s{sT1}, s{sWave}, 13
    s_add_u32 s{sT0}, s{sT0}, s{sT1}            ; x rows of this wave (8 rows)
    s_mov_b32 s{sX+2}, {S*D*2}
    s_mov_b32 s{sX+3}, 0x00020000
    s_mov_b32 s{sWq+2}, {D*1536*2}
    s_mov_b32 s{sWq+3}, 0x00020000
    s_and_b32 s{sGW}, s{sWave}, 3
    s_and_b32 s{sMI}, s{sGW}, 1
    v_lshlrev_b32 v{vL16}, 4, v{vL}
    s_lshl_b32 s{sT1}, s{sGW}, 2
    s_add_u32 s{sT1}, s{sT1}, {CNT}
    v_lshlrev_b32 v{vCnt}, 2, v{vL}
    v_add_u32 v{vCnt}, {CNT+256}, v{vCnt}
    v_writelane_b32 v{vCnt}, s{sT1}, 0
    v_mov_b32 v{vOne}, 1
    v_and_b32 v{vFl}, 3, v{vL}
    v_lshlrev_b32 v{vCntR}, 2, v{vFl}
    v_add_u32 v{vCntR}, {CNT}, v{vCntR}
    s_mov_b32 s{sTO}, {TIMEOUT}
    s_waitcnt lgkmcnt(0)
    s_mov_b32 s{sX}, s4
    s_mov_b32 s{sX+1}, s5
    s_mov_b32 s{sWq}, s6
    s_mov_b32 s{sWq+1}, s7
    """)
    R = 40
    for cb in range(8):
        A(f"buffer_load_dwordx4 {v(R+4*cb,4)}, v5, {s(sX,4)}, s{sT0} offen offset:{cb*128}")
    SRDS = f"""
    s_mov_b32 s{sWS}, s38
    s_mov_b32 s{sWS+1}, s39
    s_mov_b32 s{sWS+2}, {WS_USED}
    s_mov_b32 s{sWS+3}, 0x00020000
    s_mov_b32 s{sDbg+2}, 256
    s_mov_b32 s{sDbg+3}, 0x00020000
    s_bitcmp1_b32 s{sWave}, 1
    s_cselect_b32 s{sWgu}, s18, s16
    s_cselect_b32 s{sWgu+1}, s19, s17
    s_mov_b32 s{sWgu+2}, {D*F*2}
    s_mov_b32 s{sWgu+3}, 0x00020000
    v_lshlrev_b32 v{vT2}, 1, v{vT0}
    v_and_b32 v{vT2}, 4, v{vT2}
    v_xor_b32 v{vT2}, v{vT2}, v{vT1}
    v_lshlrev_b32 v{vHF}, 4, v{vT2}
    s_lshl_b32 s{sM0}, s{sGW}, 12
    s_add_u32 s{sM0}, s{sM0}, {RB0}
    s_mul_i32 s{sBlk}, s{sCG}, 3
    s_add_u32 s{sT1}, s{sCG}, 1
    s_lshr_b32 s{sT1}, s{sT1}, 2
    s_sub_u32 s{sBlk}, s{sBlk}, s{sT1}
    v_mul_u32_u24 v{vDq0}, 3072, v{vT0}
    v_add_u32 v{vDq0}, v{vDq0}, v{vHF}
    v_add_u32 v{vDq1}, {8*3072-1024}, v{vDq0}
    s_mul_i32 s{sQoff}, s{sGW}, {32*3072}
    s_lshl_b32 s{sT2}, s{sCG}, 7
    s_add_u32 s{sQoff}, s{sQoff}, s{sT2}
    """
    A(SRDS)
    A(f"s_cmp_lt_u32 s{sWave}, 4\ns_cbranch_scc1 L_pre_a")
    BASE = [0, 3, 6, 8, 11, 14, 17, 19]
    DSEQ = [BASE[j] for j in range(8) if j % 4 != 3] + [BASE[j] + 1 for j in range(8)] + [BASE[j] + 2 for j in range(8)]
    CSTART = {0: 0, 6: 1, 14: 2}
    CMASK = [0x0fff0fff, 0xffffffff, 0xffffffff]
    def dma_pieces(kind, idx, slot):
        if kind == "q":
            panel = (1, 2, 0)[idx // 4]; o = (idx % 4) * 128 * 3072 + panel * 1024
            srd, so, v0_, v1_, o2 = sWq, sQoff, vDq0, vDq1, o + 16 * 3072
        elif kind == "g":
            o = (idx % 8) * 64 * 2752 + (idx // 8) * 128
            srd, so, v0_, v1_, o2 = sWgu, sGoff, vDg0, vDg1, o + 16 * 2752
        elif kind == "d":
            o = DSEQ[2 * idx] * 64 * 1024; o2 = DSEQ[2 * idx + 1] * 64 * 1024
            srd, so, v0_, v1_ = sWd, sDoff, vDd0, vDd1
        else:
            o = idx * 32 * 1024; o2 = o + 16 * 1024
            srd, so, v0_, v1_ = sWo, sOoffW, vDd0, vDd1
        tag = ("dma", kind, idx)
        def p0():
            A(f"s_add_u32 m0, s{sM0}, {slot*SLOT}\ns_add_u32 s{sD0}, s{so}, {o}")
            A(f"buffer_load_dwordx4 v{v0_}, {s(srd,4)}, s{sD0} offen lds"); vmq.push(tag)
        def p1():
            if lowprio[0]: A(f"s_add_u32 m0, s{sM0}, {slot*SLOT}\ns_nop 0")
            A(f"buffer_load_dwordx4 v{v1_}, {s(srd,4)}, s{sD0} offen offset:1024 lds"); vmq.push(tag)
        def p2():
            if lowprio[0]: A(f"s_add_u32 m0, s{sM0}, {slot*SLOT}")
            A(f"s_add_u32 s{sD0}, s{so}, {o2 - 2048}")
            A(f"buffer_load_dwordx4 v{v0_}, {s(srd,4)}, s{sD0} offen offset:2048 lds"); vmq.push(tag)
        def p3():
            if lowprio[0]: A(f"s_add_u32 m0, s{sM0}, {slot*SLOT}\ns_nop 0")
            A(f"buffer_load_dwordx4 v{v1_}, {s(srd,4)}, s{sD0} offen offset:3072 lds"); vmq.push(tag)
        if opt.get("xnodma") and not (kind == "q" and idx < 5): return []
        if opt.get("xhalfdma") and not (kind == "q" and idx < 5): return [p0, p1]
        return [p0, p1, p2, p3]
    def dma(kind, idx, slot):
        cap = opt.get("ldcap", 40)
        for p in dma_pieces(kind, idx, slot):
            if len(vmq.q) > cap:
                A(f"s_waitcnt vmcnt({cap})"); vmq.waited(cap)
            p()
    def ddq(g): return ("q", g, g % 8) if g < 12 else ("g", g - 12, g % 8)
    GUADDR = f"""
    v_mul_u32_u24 v{vDg0}, 2752, v{vT0}
    v_add_u32 v{vDg0}, v{vDg0}, v{vHF}
    v_add_u32 v{vDg1}, {8*2752-1024}, v{vDg0}
    s_mul_i32 s{sGoff}, s{sMI}, {32*2752}
    s_lshl_b32 s{sT0}, s{sBlk}, 7
    s_add_u32 s{sGoff}, s{sGoff}, s{sT0}
    """
    A(f"""
    ; L2 warm-up of this XCD's share of Wqkv (speed only): rows 16r + (l>>2), 4 lines, panel by wave
    v_bfe_u32 v{vP}, v{vL}, 2, 2
    v_mul_u32_u24 v{vP}, 3072, v{vP}
    v_lshl_add_u32 v{vP}, v{vFl}, 7, v{vP}
    v_lshrrev_b32 v{vKo}, 4, v{vL}
    v_lshl_add_u32 v{vP}, v{vKo}, 10, v{vP}
    s_lshr_b32 s{sT1}, s2, 3
    s_mul_i32 s{sT1}, s{sT1}, {16*3072}
    s_mul_i32 s{sT0}, s{sGW}, {4*3072}
    s_add_u32 s{sT1}, s{sT1}, s{sT0}
    s_and_b32 s{sT0}, s2, 1
    s_lshl_b32 s{sT0}, s{sT0}, 9
    s_add_u32 s{sT1}, s{sT1}, s{sT0}
    s_lshr_b32 s{sNI}, s{sGW}, 1
    v_bfe_u32 v{vT2}, v{vL}, 2, 2
    v_lshlrev_b32 v{vTRp0}, 7, v{vT2}
    v_bfe_u32 v{vKo}, v{vL}, 4, 1
    v_lshl_add_u32 v{vTRp0}, v{vKo}, 5, v{vTRp0}
    v_lshl_add_u32 v{vTRp0}, v{vFl}, 3, v{vTRp0}
    v_lshrrev_b32 v{vH1}, 1, v{vT2}             ; r>>1
    v_lshrrev_b32 v{vO1}, 5, v{vL}              ; half
    v_xor_b32 v{vFl}, s{sNI}, v{vH1}
    v_lshl_add_u32 v{vTRn}, v{vFl}, 6, v{vTRp0}
    v_lshl_add_u32 v{vTRn}, v{vO1}, 10, v{vTRn}
    v_add_u32 v{vTRn}, {RB0}, v{vTRn}
    v_add_u32 v{vTRnH}, 65536, v{vTRn}
    v_and_b32 v{vRW}, 31, v{vL}
    v_mul_u32_u24 v{vXR}, {PIECE}, v{vO1}
    v_lshl_add_u32 v{vXR}, v{vRW}, 4, v{vXR}
    s_mul_i32 s{sT0}, s{sMI}, {64*PIECE}
    s_add_u32 s{sT0}, s{sT0}, {XT}
    v_add_u32 v{vXR}, s{sT0}, v{vXR}
    s_mov_b64 exec, {'0xffffffff' if opt.get('p1kv', 1) else '0xffff'}
    buffer_load_dword v143, v{vP}, {s(sWq,4)}, s{sT1} offen offset:1024
    s_mov_b64 exec, -1
    ; all-ones marker into this wave's Q tiles (replaced by the result later)
    s_lshl_b32 s{sSt}, s{sRB}, 11
    s_lshl_b32 s{sT0}, s{sMI}, 10
    s_add_u32 s{sSt}, s{sSt}, s{sT0}
    s_lshl_b32 s{sT0}, s{sCG}, 18
    s_add_u32 s{sSt}, s{sSt}, s{sT0}
    s_lshl_b32 s{sT0}, s{sNI}, 17
    s_add_u32 s{sSt}, s{sSt}, s{sT0}
    s_add_u32 s{sD1}, s{sSt}, 65536
    v_mov_b32 v136, -1
    v_mov_b32 v137, -1
    v_mov_b32 v138, -1
    v_mov_b32 v139, -1
    v_lshlrev_b32 v140, 13, v{vO1}
    v_lshl_add_u32 v140, v{vRW}, 2, v140
    s_lshr_b32 s0, s{sSt}, 3
    s_add_u32 s0, s0, {MFO}
    s_mov_b32 s3, 1
    s_setprio {opt.get("glnprio", 1)}
    """)
    GE = opt.get("ge", 0)
    for g in range(GE): dma(*ddq(g))
    vmq.clear()
    A(f"s_waitcnt vmcnt({1 + 4 * GE})\ns_branch L_ln")
    GLATE = [x.strip() for x in (GUADDR + f"""
    s_mov_b32 s{sOut}, s22
    s_mov_b32 s{sOut+1}, s23
    s_mov_b32 s{sOut+2}, {S*D*2}
    s_mov_b32 s{sOut+3}, 0x00020000
    s_mov_b32 s{sWd+2}, {F*D*2}
    s_mov_b32 s{sWd+3}, 0x00020000
    s_mov_b32 s{sWo+2}, {D*D*2}
    s_mov_b32 s{sWo+3}, 0x00020000
    v_lshl_add_u32 v{vDd0}, v{vT0}, 10, v{vHF}
    v_add_u32 v{vDd1}, {8*1024-1024}, v{vDd0}
    s_lshl_b32 s{sT2}, s{sCG}, 7
    s_lshl_b32 s{sDoff}, s{sGW}, 14
    s_add_u32 s{sDoff}, s{sDoff}, s{sT2}
    s_lshl_b32 s{sOoffW}, s{sGW}, 17
    s_add_u32 s{sOoffW}, s{sOoffW}, s{sT2}
    s_lshl_b32 s{sXo}, s{sRB}, 16
    s_add_u32 s{sXo}, s{sXo}, s{sT2}
    s_and_b32 s{sNb}, s{sCG}, 3
    v_lshl_add_u32 v{vTRp0}, v{vH1}, 6, v{vTRp0}
    v_lshl_add_u32 v{vTRp0}, v{vO1}, 9, v{vTRp0}
    v_add_u32 v{vTRp0}, s{sM0}, v{vTRp0}
    s_lshl_b32 s{sT0}, s{sNI}, 6
    v_xor_b32 v{vTRp0}, s{sT0}, v{vTRp0}
    v_xor_b32 v{vTRp1}, 64, v{vTRp0}
    v_add_u32 v{vTRp0H}, 65536, v{vTRp0}
    v_add_u32 v{vTRp1H}, 65536, v{vTRp1}
    v_lshlrev_b32 v{vL128}, 7, v{vL}
    v_lshlrev_b32 v{vVo}, 16, v{vKo}
    v_lshl_add_u32 v{vVo}, v{vO1}, 8, v{vVo}
    v_and_b32 v{vT2}, 15, v{vL}
    v_lshl_add_u32 v{vVo}, v{vT2}, 4, v{vVo}
    v_add_u32 v{vVo}, {VF}, v{vVo}
    v_lshlrev_b32 v{vXo}, 10, v{vRW}
    v_lshl_add_u32 v{vXo}, v{vO1}, 3, v{vXo}
    v_lshl_add_u32 v{vRR}, v{vO1}, 3, v{vXo}
    s_lshl_b32 s{sT0}, s{sGW}, 12
    v_add_u32 v{vRW}, s{sT0}, v{vL16}
    s_and_b32 s{sKVs}, s2, 7
    s_lshl_b32 s{sKVs}, s{sKVs}, 2
    s_bfe_u32 s{sT0}, s2, 0x20003
    s_add_u32 s{sKVs}, s{sKVs}, s{sT0}
    s_lshl_b32 s{sKVs}, s{sKVs}, 16
    s_lshl_b32 s{sT0}, s{sNI}, 15
    s_add_u32 s{sKVs}, s{sKVs}, s{sT0}
    s_lshl_b32 s{sT0}, s{sMI}, 21
    s_add_u32 s{sKVs}, s{sKVs}, s{sT0}
    s_add_u32 s{sKVs}, s{sKVs}, {KF}
    s_mul_i32 s{sKVm}, s{sGW}, {RKV*KST}
    s_lshl_b32 s{sT0}, s{sMI}, 15
    s_add_u32 s{sXo}, s{sXo}, s{sT0}
    s_lshl_b32 s{sT0}, s{sNI}, 6
    s_add_u32 s{sXo}, s{sXo}, s{sT0}
    v_and_b32 v{vKo}, 0x33, v{vL}
    v_lshrrev_b32 v{vT2}, 1, v{vL}
    v_and_b32 v{vT2}, 4, v{vT2}
    v_lshlrev_b32 v{vO1}, 1, v{vL}
    v_and_b32 v{vO1}, 8, v{vO1}
    v_or3_b32 v{vKo}, v{vKo}, v{vT2}, v{vO1}
    v_lshlrev_b32 v{vKo}, 4, v{vKo}
    v_add_u32 v{vKo}, {KF}, v{vKo}
    s_mul_i32 s{sT0}, s{sMI}, {86*1024}
    v_add_u32 v{vH0}, s{sT0}, v{vL16}
    s_sub_u32 s{sT0}, {86*1024}, s{sT0}
    v_add_u32 v{vH1}, s{sT0}, v{vL16}
    s_lshl_b32 s{sT0}, s{sMI}, 15
    v_add_u32 v{vO0}, s{sT0}, v{vL16}
    v_xor_b32 v{vO1}, 32768, v{vO0}
    v_lshlrev_b32 v{vXR}, 10, v{vL}
    v_mov_b32 v{vT2}, 0
    v_mov_b32 v{vT0}, {hex(f2u(C1))}
    v_mov_b32 v{vT1}, {hex(f2u(C1))}
    s_lshl_b32 s{sT2}, s{sRB}, 1
    s_add_u32 s{sT2}, s{sT2}, s{sMI}
    s_mul_i32 s{sHst}, s{sT2}, {86*1024}
    s_lshl_b32 s{sT1}, s{sCG}, 1
    s_add_u32 s{sT1}, s{sT1}, s{sNI}
    s_lshl_b32 s{sFlag}, s{sT1}, 13
    s_lshl_b32 s{sT0}, s{sT2}, 7
    s_add_u32 s{sFlag}, s{sFlag}, s{sT0}
    s_add_u32 s{sFlag}, s{sFlag}, {FQ}
    s_lshl_b32 s{sT0}, s{sBlk}, 12
    s_lshl_b32 s{sT1}, s{sNI}, 11
    s_add_u32 s{sHst}, s{sHst}, s{sT0}
    s_add_u32 s{sHst}, s{sHst}, s{sT1}
    s_add_u32 s{sHst}, s{sHst}, {HF}
    s_lshl_b32 s{sHld}, s{sRB}, 14
    s_add_u32 s{sHld}, s{sHld}, {FH}
    s_lshl_b32 s{sT0}, s{sCG}, 9
    s_lshl_b32 s{sT1}, s{sGW}, 7
    s_add_u32 s{sHfl}, s{sT0}, s{sT1}
    s_add_u32 s{sHfl}, s{sHfl}, s{sHld}
    s_mul_i32 s{sHb}, s{sRB}, {2*86*1024}
    s_lshl_b32 s{sT0}, s{sGW}, 10
    s_add_u32 s{sHb}, s{sHb}, s{sT0}
    s_add_u32 s{sHb}, s{sHb}, {HF}
    s_mov_b32 s{sC}, {hex(f2u(QSCALE))}
    s_mov_b32 s{sC+1}, {hex(f2u(QSCALE))}
    """).split("\n") if x.strip()]
    vK, vV, vIdx, vAF, vPF, vF = 10, 11, 12, 13, 14, 15
    M, C, SB = 6, 16, 80
    aOnes, aPF, aP3, aPKV, aL128, aGo = 24, 25, 26, 27, 28, 29
    O, Q, KS = 0, 64, 104
    KRG = [("a", 80), ("a", 92)]
    VRG = [("a", 84), ("a", 96)]
    def rg(x, off=0, n=4): return (a if x[0] == "a" else v)(x[1] + off, n)
    def zero_o(n=64):
        for i in range(n): A(f"v_accvgpr_write_b32 a{O+i}, 0")
    A.label("L_pre_a")
    if opt.get("pretouch"):
        A(f"""
        s_mov_b32 s{sOut}, s22
        s_mov_b32 s{sOut+1}, s23
        s_mov_b32 s{sOut+2}, {S*D*2}
        s_mov_b32 s{sOut+3}, 0x00020000
        s_mov_b32 s{sWd+2}, {F*D*2}
        s_mov_b32 s{sWd+3}, 0x00020000
        s_mov_b32 s{sWo+2}, {D*D*2}
        s_mov_b32 s{sWo+3}, 0x00020000
        v_lshlrev_b32 v{vF}, 21, v{vL}
        s_lshl_b32 s{sT0}, s2, 7
        s_cmp_lg_u32 s{sMI}, 0
        s_cbranch_scc1 L_pt1
        s_mov_b64 exec, 0x1fff
        buffer_load_dword v143, v{vF}, {ws}, s{sT0} offen sc1
        s_mov_b64 exec, 1
        buffer_load_dword v143, v{vF}, {s(sWgu,4)}, s{sT0} offen
        s_branch L_pt2
        L_pt1:
        s_mov_b64 exec, 1
        buffer_load_dword v143, v{vF}, {s(sOut,4)}, s{sT0} offen sc1
        buffer_load_dword v143, v{vF}, {s(sWd,4)}, s{sT0} offen
        buffer_load_dword v143, v{vF}, {s(sWo,4)}, s{sT0} offen
        L_pt2:
        s_mov_b64 exec, -1
        """)
    A(f"""
    v_mov_b32 v{vF}, 0
    ds_write_b32 v{vCnt}, v{vF}
    ds_write_b32 v{vCnt}, v{vF} offset:512
    ds_write_b32 v{vCnt}, v{vF} offset:1024
    v_add_u32 v{vCnt}, 1024, v{vCnt}
    v_lshlrev_b32 v{aGo}, 2, v{vL}
    s_lshl_b32 s{sT0}, s{sWave}, 9
    s_add_u32 s{sT0}, s{sT0}, {AFL}
    v_add_u32 v{vAF}, s{sT0}, v{aGo}
    s_xor_b32 s{sT0}, s{sWave}, 2
    s_lshl_b32 s{sT0}, s{sT0}, 9
    s_add_u32 s{sT0}, s{sT0}, {AFL}
    v_add_u32 v{vPF}, s{sT0}, v{aGo}
    v_add_u32 v{aGo}, {GO}, v{aGo}
    ds_write_b32 v{vAF}, v{vF}
    ds_write_b32 v{vAF}, v{vF} offset:256
    ds_write_b32 v{aGo}, v{vF}
    v_bfe_u32 v{aP3}, v{vL}, 2, 2
    v_mul_u32_u24 v{aP3}, 3072, v{aP3}
    v_lshl_add_u32 v{aP3}, v{vFl}, 7, v{aP3}
    v_bfe_u32 v{aPF}, v{vL}, 4, 1
    v_xor_b32 v{aPF}, 1, v{aPF}
    v_lshl_add_u32 v{aP3}, v{aPF}, 11, v{aP3}
    s_lshr_b32 s7, s2, 3
    s_lshl_b32 s7, s7, 2
    s_add_u32 s7, s7, s{sWave}
    s_mul_i32 s7, s7, {4*3072}
    s_and_b32 s{sT0}, s2, 1
    s_lshl_b32 s{sT0}, s{sT0}, 9
    s_add_u32 s7, s7, s{sT0}
    s_and_b32 s{sT0}, s{sCG}, 3
    s_cmp_eq_u32 s{sT0}, 3
    s_addc_u32 s{sBlk}, s{sBlk}, 0
    v_lshrrev_b32 v30, 1, v{vL}
    v_mul_u32_u24 v30, 2752, v30
    v_and_b32 v31, 1, v{vL}
    v_mul_u32_u24 v31, 124, v31
    v_add_u32 v30, v30, v31
    s_and_b32 s68, s{sRB}, 7
    s_lshl_b32 s68, s68, 1
    s_add_u32 s68, s68, s{sMI}
    s_mul_i32 s68, s68, {16*2752}
    s_lshl_b32 s{sT0}, s{sBlk}, 7
    s_add_u32 s68, s68, s{sT0}
    ; all-ones marker into the two O tiles this wave will produce
    s_lshr_b32 s{sO}, s2, 5
    s_lshl_b32 s{sO}, s{sO}, 1
    s_add_u32 s{sO}, s{sO}, s{sMI}
    s_lshl_b32 s{sO}, s{sO}, 1
    s_lshr_b32 s{sT0}, s{sWave}, 1
    s_add_u32 s{sO}, s{sO}, s{sT0}
    s_lshl_b32 s{sO}, s{sO}, 16
    s_and_b32 s{sT0}, s2, 7
    s_lshl_b32 s{sT0}, s{sT0}, 12
    s_add_u32 s{sO}, s{sO}, s{sT0}
    s_bfe_u32 s{sT0}, s2, 0x20003
    s_lshl_b32 s{sT0}, s{sT0}, 10
    s_add_u32 s{sO}, s{sO}, s{sT0}
    s_add_u32 s{sO}, s{sO}, {OF}
    s_or_b32 s{sT1}, s2, s{sWave}
    s_cmp_lg_u32 s{sT1}, 0
    s_cbranch_scc1 L_pre_a2
    s_memrealtime s[4:5]
    s_waitcnt lgkmcnt(0)
    s_or_b32 s4, s4, 1
    v_mov_b32 v{vIdx}, s4
    buffer_store_dword v{vIdx}, v{vF}, {s(sDbg,4)}, 0 offen sc1
    """)
    A.label("L_pre_a2")
    if opt.get("pall"):
        A(f"""
        s_mov_b32 s{sWd+2}, {F*D*2}
        s_mov_b32 s{sWd+3}, 0x00020000
        s_mov_b32 s{sWo+2}, {D*D*2}
        s_mov_b32 s{sWo+3}, 0x00020000
        v_mul_u32_u24 v141, 2752, v{vL}
        s_and_b32 s{sT0}, s{sRB}, 7
        s_mul_i32 s{sT0}, s{sT0}, {64*2752}
        s_mul_i32 s{sT1}, s{sCG}, 384
        s_add_u32 s{sT0}, s{sT0}, s{sT1}
        s_mul_i32 s{sT1}, s{sMI}, 124
        s_add_u32 s{sT1}, s{sT0}, s{sT1}
        buffer_load_dword v143, v141, {s(sWgu,4)}, s{sT1} offen
        s_lshl_b32 s{sT1}, s{sMI}, 7
        s_add_u32 s{sT1}, s{sT0}, s{sT1}
        buffer_load_dword v143, v141, {s(sWgu,4)}, s{sT1} offen offset:252
        v_lshlrev_b32 v142, 10, v{vL}
        s_and_b32 s{sT0}, s{sRB}, 7
        s_lshl_b32 s{sT1}, s{sCG}, 7
        s_mul_i32 s{sT2}, s{sT0}, {172*1024}
        s_add_u32 s{sT2}, s{sT2}, s{sT1}
        s_lshl_b32 s4, s{sGW}, 16
        s_add_u32 s{sT2}, s{sT2}, s4
        buffer_load_dword v143, v142, {s(sWd,4)}, s{sT2} offen
        s_lshl_b32 s{sT0}, s{sT0}, 16
        s_add_u32 s{sT0}, s{sT0}, s{sT1}
        buffer_load_dword v143, v142, {s(sWo,4)}, s{sT0} offen
        s_waitcnt vmcnt(0)
        s_sleep 40
        """)
    A("s_mov_b32 s3, 0\ns_waitcnt vmcnt(0)")
    NEARLY = opt.get("nearly", 2)
    if GE: NEARLY = 0
    for g in range(NEARLY): dma(*ddq(g))
    if NEARLY > opt.get("p1at", 3):
        A(f"s_mov_b64 exec, {'0xffff0000' if opt.get('p1kv', 1) else '0xffffffff'}\nbuffer_load_dword v143, v{aP3}, {s(sWq,4)}, s7 offen")
        if opt.get("p2early", 1): A(f"s_mov_b64 exec, {PF2MASK}\nbuffer_load_dword v143, v30, {s(sWgu,4)}, s68 offen")
        A("s_mov_b64 exec, -1")
    vmq.clear()
    A.label("L_ln")
    ST()
    SA, TT, vXW = 104, 80, 112
    A(f"""
    s_mov_b32 s4, 0x3f803f80
    s_mov_b32 s5, 0x00003f80
    s_mov_b32 s6, 0x3f800000
    """)
    for i in range(32):
        a1 = SA + (i & 1); a2 = SA + 2 + (i & 1)
        A(f"v_dot2_f32_bf16 v{a1}, v{R+i}, s4, {'0' if i < 2 else 'v%d' % a1}")
        A(f"v_dot2_f32_bf16 v{a2}, v{R+i}, v{R+i}, {'0' if i < 2 else 'v%d' % a2}")
    m_, q_, mb_, rs_ = SA, SA + 2, SA + 4, SA + 6
    A(f"""
    s_lshr_b32 s{sT0}, s{sWave}, 2
    s_mul_i32 s{sT0}, s{sT0}, {64*PIECE}
    s_lshl_b32 s{sT1}, s{sGW}, 7
    v_add_f32 v{m_}, v{m_}, v{m_+1}
    v_add_f32 v{q_}, v{q_}, v{q_+1}
    s_add_u32 s{sT0}, s{sT0}, s{sT1}
    v_add_f32_dpp v{m_}, v{m_}, v{m_} quad_perm:[1,0,3,2] row_mask:0xf bank_mask:0xf
    v_add_f32_dpp v{q_}, v{q_}, v{q_} quad_perm:[1,0,3,2] row_mask:0xf bank_mask:0xf
    s_add_u32 s{sT0}, s{sT0}, {XT}
    v_add_f32_dpp v{m_}, v{m_}, v{m_} quad_perm:[2,3,0,1] row_mask:0xf bank_mask:0xf
    v_add_f32_dpp v{q_}, v{q_}, v{q_} quad_perm:[2,3,0,1] row_mask:0xf bank_mask:0xf
    v_mul_u32_u24 v{vXW}, {PIECE}, v{vT1}
    v_add_f32_dpp v{m_}, v{m_}, v{m_} row_half_mirror row_mask:0xf bank_mask:0xf
    v_add_f32_dpp v{q_}, v{q_}, v{q_} row_half_mirror row_mask:0xf bank_mask:0xf
    v_mul_f32 v{m_}, {hex(f2u(1.0/512))}, v{m_}
    v_mul_f32 v{q_}, {hex(f2u(1.0/512))}, v{q_}
    v_cvt_pk_bf16_f32 v{mb_}, v{m_}, v{m_}
    v_fma_f32 v{q_}, -v{m_}, v{m_}, v{q_}
    v_and_b32 v{mb_}, 0xffff0000, v{mb_}
    v_max_f32 v{q_}, 0, v{q_}
    v_xor_b32 v{mb_}, 0x80000000, v{mb_}
    v_cvt_pk_bf16_f32 v{q_}, v{q_}, v{q_}
    v_and_b32 v{q_}, 0xffff0000, v{q_}
    v_add_f32 v{q_}, {hex(f2u(1e-5))}, v{q_}
    v_cvt_pk_bf16_f32 v{q_}, v{q_}, v{q_}
    v_and_b32 v{q_}, 0xffff0000, v{q_}
    v_sqrt_f32 v{q_}, v{q_}
    v_lshl_add_u32 v{vXW}, v{vT0}, 4, v{vXW}
    v_cvt_pk_bf16_f32 v{q_}, v{q_}, v{q_}
    v_and_b32 v{q_}, 0xffff0000, v{q_}
    v_rcp_f32 v{rs_}, v{q_}
    v_rcp_f32 v{rs_+1}, v{q_}
    v_add_u32 v{vXW}, s{sT0}, v{vXW}
    """)
    for cb in range(8):
        t = TT + 8 * (cb & 1); r = R + 4 * cb
        for e in range(4):
            A(f"v_dot2_f32_bf16 v{t+2*e}, v{r+e}, s5, v{mb_}")
            A(f"v_dot2_f32_bf16 v{t+2*e+1}, v{r+e}, s6, v{mb_}")
        if cb > 0: A(f"ds_write_b128 v{vXW}, {v(R+4*(cb-1),4)} offset:{(cb-1)*8*PIECE}")
        else: A("s_nop 0")
        for e in range(4): A(f"v_pk_mul_f32 {v(t+2*e,2)}, {v(t+2*e,2)}, {v(rs_,2)}")
        for e in range(4): A(f"v_cvt_pk_bf16_f32 v{r+e}, v{t+2*e}, v{t+2*e+1}")
    A(f"ds_write_b128 v{vXW}, {v(R+28,4)} offset:{7*8*PIECE}")
    A("s_cmp_eq_u32 s3, 0\ns_cbranch_scc1 L_attn")

    def get_tag(vt, vz, lbl):
        A(f"v_mov_b32 v{vz}, 0")
        A.label(lbl)
        A(f"""
        buffer_load_dword v{vt}, v{vz}, {s(sDbg,4)}, 0 offen sc1
        s_waitcnt vmcnt(0)
        v_readfirstlane_b32 s{sTag}, v{vt}
        """)
        timeout_exit(lbl + "_x")
        A(f"s_cmp_eq_u32 s{sTag}, 0\ns_cbranch_scc1 {lbl}")
        A.label(lbl + "_x")
    def spin_flags(lbl, vf, voff, soff, nlanes, sleep=4, first=False):
        A.label(lbl)
        if first: A(f"s_sleep {sleep}")
        A(f"""
        s_mov_b64 exec, {emask(nlanes)}
        buffer_load_dword v{vf}, v{voff}, {ws}, s{soff} offen sc1
        s_waitcnt vmcnt(0)
        v_cmp_ne_u32 vcc, s{sTag}, v{vf}
        s_mov_b64 exec, -1
        s_cbranch_vccz {lbl}_x
        """)
        timeout_exit(lbl + "_x")
        if not first: A(f"s_sleep {sleep}")
        A(f"s_branch {lbl}")
        A.label(lbl + "_x")
    def lds_spin(lbl, vdst, vaddr, off, cmp, sleep=0):
        A.label(lbl)
        A(f"ds_read_b32 v{vdst}, v{vaddr} offset:{off}\ns_waitcnt lgkmcnt(0)\n{cmp}\ns_cbranch_vccz {lbl}_x")
        timeout_exit(lbl + "_x")
        if sleep: A(f"s_sleep {sleep}")
        A(f"s_branch {lbl}")
        A.label(lbl + "_x")

    def xn(ks): return a(4 * ks, 4) if ks < 28 else v(96 + 4 * (ks - 28), 4)
    def xread(ks): lds(f"ds_read_b128 {xn(ks)}, v{vXR} offset:{2*ks*PIECE}", "xn")
    def check(fresh, off=0, need=None, sleep=1, reg=None, tag="poll"):
        l = lab("chk"); nd = f"s{sNeed}" if need is None else str(need)
        vP = reg if reg is not None else 20
        cmp = f"v_cmp_gt_u32 vcc, {nd}, v{vP}"
        if lowprio[0]: cmp = f"s_setprio 3\n{cmp}\ns_setprio 0"
        if fresh:
            lds(f"ds_read_b32 v{vP}, v{vCntR} offset:{off}", tag)
        lwait(tag)
        A(f"{cmp}\ns_cbranch_vccnz {l}")
        A.label(l + "_x")
        def sp():
            A.label(l)
            A(f"ds_read_b32 v{vP}, v{vCntR} offset:{off}\ns_waitcnt lgkmcnt(0)\n{cmp}\ns_cbranch_vccz {l}_x")
            timeout_exit(l + "_x")
            if lp or sleep > 1: A(f"s_sleep {sleep}")
            A(f"s_branch {l}")
        lp = lowprio[0]
        slow.append(sp)
        if need is None: A(f"s_add_u32 s{sNeed}, s{sNeed}, 1")
    def segment(stages, hooks=None, LA=opt.get('la', 5)):
        hooks = hooks or {}
        NB = len(WFB); assert NB >= LA + 1
        flat = [(si, fi, fr) for si, st in enumerate(stages) for fi, fr in enumerate(st["frags"])]
        sq = []
        for i in range(len(flat) + LA):
            if i < len(flat):
                si, fi, fr = flat[i]; st = stages[si]; nfr = len(st["frags"])
                if fi == 0:
                    assert not sq
                    if "label" in st: A.label(st["label"])
                    if opt.get("atrace") and lowprio[0]:
                        A(f"s_waitcnt lgkmcnt(0)\ns_mov_b32 s99, m0\ns_mov_b32 m0, s0\ns_add_u32 s0, s0, 1\ns_setprio 3\nv_writelane_b32 v31, s100, m0\ns_setprio {0 if lowprio[0] else 1}\ns_memrealtime s[100:101]\ns_mov_b32 m0, s99"); lq.clear()
                    if st["sync"]: check(si == 0, *st.get("chk", ()))
                    if "pre" in st: st["pre"]()
                    sq += st["pieces"]
                lo, hi, o0, o1, _ = fr
                base = st["slot"] * SLOT; reg = lo
                if base >= 65536: base -= 65536; reg = hi
                w = WFB[i % NB]
                lds(f"ds_read_b64_tr_b16 {v(w,2)}, v{reg} offset:{base+o0}", ("fr", i))
                lds(f"ds_read_b64_tr_b16 {v(w+2,2)}, v{reg} offset:{base+o1}", ("fr", i))
                if fi == st.get("waitat", st.get("pubat", 2)) and st["nxt"] is not None: vwait(st["nxt"])
                if fi == st.get("pubat", 2) and st["pub"]: lds(f"ds_add_u32 v{vCnt}, v{vOne}", "add")
                if len(sq) * 2 > (nfr - fi) + (opt.get("odd", 1) and fi % 2 == 0 and 0) or fi % 2 == opt.get("odd", 1):
                    k = -(-len(sq) // (nfr - fi))
                    for _ in range(k): sq.pop(0)()
                if fi == nfr - 2 and si + 1 < len(stages) and stages[si + 1]["sync"]:
                    lds(f"ds_read_b32 v{vP}, v{vCntR} offset:{stages[si + 1].get('chk', (0,))[0]}", "poll")
                if (si, fi) in hooks: hooks[(si, fi)]()
            j = i - LA
            if j >= 0:
                if opt.get("pairw", 1) and j % 2 == 0 and lq.need(("fr", j + 1)) is not None and len(flat[j][2][4]) == 1: lwait(("fr", j + 1))
                lwait(("fr", j))
                for m in flat[j][2][4]:
                    if callable(m): m()
                    elif opt.get("xnogm") and lowprio[0]: A("s_nop 7")
                    else: A(m.format(w=v(WFB[j % NB], 4)))
    if F0: ST()
    if opt.get("xln"): hold("L_hln", opt["xln"])
    A("s_setprio 1\ns_waitcnt vmcnt(0) lgkmcnt(0)\ns_barrier" if GE else "s_setprio 1\ns_waitcnt lgkmcnt(0)\ns_barrier")
    ST()
    for ks in range(8): xread(ks)
    def qkv_epi(p):
        acc = (ACC0, ACC1, ACC0)[p]; pk = TMP + 8 * p
        def f():
            if p == 2:
                for i in range(8): A(f"v_pk_mul_f32 {v(acc+2*i,2)}, {v(acc+2*i,2)}, {s(sC,2)}")
            for i in range(8): A(f"v_cvt_pk_bf16_f32 v{pk+i}, v{acc+2*i}, v{acc+2*i+1}")
            for i in range(8): A(f"v_min_u32 v{pk+i}, -2, v{pk+i}")
            if p == 1:
                A(f"buffer_store_dwordx4 {v(pk,4)}, v{vVo}, {ws}, s{sSt} offen sc1")
                A(f"buffer_store_dwordx4 {v(pk+4,4)}, v{vVo}, {ws}, s{sSt} offen offset:512 sc1")
            else:
                vo = vKo if p == 0 else vL16
                A(f"s_add_u32 s{sT0}, s{sSt}, 65536")
                A(f"buffer_store_dwordx4 {v(pk,4)}, v{vo}, {ws}, s{sSt} offen sc1")
                A(f"buffer_store_dwordx4 {v(pk+4,4)}, v{vo}, {ws}, s{sT0} offen sc1")
            vmq.push("st", 2)
        return f
    stages = []
    for q in range(12):
        p, part = divmod(q, 4); acc = v((ACC0, ACC1, ACC0)[p], 16)
        frags = []
        for kk in range(8):
            ks = part * 8 + kk; c = "0" if ks == 0 else acc
            m = f"{MF} {acc}, {xn(ks)}, {{w}}, {c}" if p == 1 else f"{MF} {acc}, {{w}}, {xn(ks)}, {c}"
            frags.append((vTRn, vTRnH, kk * 2048, kk * 2048 + 512, [m]))
        stages.append(dict(slot=q % 8, frags=frags, pieces=[], nxt=None, sync=(q >= GE), pub=(q >= 1), pubat=0, chk=(1024, q + 1)))
    hooks = {(0, fi): (lambda fi=fi: [xread(8 + 3 * fi + e) for e in range(3)]) for fi in range(8)}
    def epi_items(p):
        acc = (ACC0, ACC1)[p]; pk = TMP + 8 * p
        L = [f"v_cvt_pk_bf16_f32 v{pk+i}, v{acc+2*i}, v{acc+2*i+1}" for i in range(8)]
        if p == 1:
            L += [f"buffer_store_dwordx4 {v(pk,4)}, v{vVo}, {ws}, s{sSt} offen sc1", f"buffer_store_dwordx4 {v(pk+4,4)}, v{vVo}, {ws}, s{sSt} offen offset:512 sc1"]
        else:
            L += [f"buffer_store_dwordx4 {v(pk,4)}, v{vKo}, {ws}, s{sSt} offen sc1", f"buffer_store_dwordx4 {v(pk+4,4)}, v{vKo}, {ws}, s{sD1} offen sc1",
                  f"buffer_load_dword v{vFl}, v{vT2}, {s(sDbg,4)}, 0 offen sc1"]
        return L
    qc = opt.get("qc", 0)
    GLATE[qc:qc] = [f"buffer_store_dwordx4 v[136:139], v{vL16}, {ws}, s{sSt} offen sc1", f"buffer_store_dwordx4 v[136:139], v{vL16}, {ws}, s{sD1} offen sc1",
                     f"buffer_store_dword v136, v140, {ws}, s0 offen sc1"]
    n1 = len(GLATE)
    KE = opt.get("ke", 7)
    slots1 = [(q, fi) for q in range(1, KE) for fi in range(8) if (q, fi) not in ((1, 0), (4, 0), (5, 0), (6, 0))]
    plan = {}
    for k, it in enumerate(GLATE): plan.setdefault(slots1[k * len(slots1) // n1], []).append(it)
    for p, q0 in ((0, KE), (1, 9)):
        sl = [(q, fi) for q in (q0, q0 + 1) for fi in range(1, 8)]
        its = epi_items(p)
        sl = [x_ for x_ in sl for _ in range(2 if p == 0 else opt.get("vd", 2))]
        for k, it in enumerate(its): plan.setdefault(sl[k], []).append(it)
    if opt.get("xnofill"):
        for x in GLATE:
            if "v31," not in x: A(x.replace("|", "\n"))
        plan = {k_: [i_ for i_ in its if i_ not in GLATE] for k_, its in plan.items()}
    for k_, its in plan.items():
        hooks[k_] = (lambda its=its: [A(x.replace("|", "\n")) for x in its])
    FF = opt.get("ff", 1)
    def kvflag(n):
        A(f"s_cmp_lg_u32 s{sTag}, 0\ns_cbranch_scc1 L_gtag_x")
        get_tag(vFl, vT2, "L_gtag")
        A(f"v_mov_b32 v{vFl}, s{sTag}\ns_waitcnt vmcnt({n})\ns_mov_b64 exec, 1\nbuffer_store_dword v{vFl}, v{vT2}, {ws}, s{sFlag} offen sc1\ns_mov_b64 exec, -1")
    FP = opt.get("fp", 0)
    if FP:
        hooks[(FP // 8, FP % 8)] = lambda: (A(f"s_waitcnt vmcnt(0)\nv_readfirstlane_b32 s{sTag}, v{vFl}"), kvflag(0))
    GLATE = []
    if stamps:
        for q in ((1, 4, 5, 6, 7, 8, 9, 10, 11) if FR else (1, 4, 8)): hooks[(q, 0)] = ST
    segment(stages, hooks)
    assert not GLATE
    if FP: A("s_nop 11")
    else:
        A(f"s_waitcnt vmcnt(2)\nv_readfirstlane_b32 s{sTag}, v{vFl}")
        if FF: kvflag(0); A("s_nop 3")
        else: A("s_nop 9")
    qkv_epi(2)()
    for h_, acc in enumerate((ACC1, ACC0)):
        A(f"{MF} {v(acc,16)}, {v(TMP+4*h_,4)}, {v(TMP+16+4*h_,4)}, 0")
    A(f"s_mov_b32 s{sT0}, {hex(f2u(-float(opt.get('offset', 80))))}\ns_nop 9")
    for h_, acc in enumerate((ACC1, ACC0)):
        for k in range(0, 15, 2):
            A(f"v_max3_f32 v{141+h_}, v{acc+k}, v{acc+k+1}, v{141+h_ if k else acc+15}")
    A(f"s_nop 1\nv_permlane32_swap_b32 v141, v142\nv_max_f32 v141, v141, v142\nv_sub_f32 v141, s{sT0}, v141\nv_min_u32 v141, -2, v141")
    A(f"buffer_store_dword v141, v140, {ws}, s0 offen sc1")
    ST()
    if not FF and not FP: kvflag(2)
    A(f"s_mov_b32 s{sC}, {hex(f2u(C2))}\ns_mov_b32 s{sC+1}, {hex(f2u(C2))}")
    lds(f"ds_add_u32 v{vCnt}, v{vOne}", "add")
    ST()
    if FR: again(); ST.flush(ws, STAMP, sWave, 2, 3, sT0); A("s_endpgm"); ST.on = False
    if opt.get("gexit"): A(f"ds_add_u32 v{vCnt}, v{vOne}\ns_waitcnt lgkmcnt(0)\ns_endpgm")
    LOOK = opt.get("look", 4)
    check(True, 1024, 12 + NG0)
    A(f"s_mov_b32 s{sNeed}, 12\ns_setprio 0")
    lowprio[0] = True
    if opt.get("atrace"): A(f"s_mov_b32 s0, 0\ns_memrealtime s[100:101]")
    def gslot(g): return 2 + (g + 2) % 6
    def ffn_dd(g):
        if g < 24: return ("g", g, gslot(g))
        if g < 35: return ("d", g - 24, gslot(g))
        return ("o", g - 35, gslot(g))
    E0 = 0
    vP2 = vVo
    G2 = opt.get("g2", 1)
    def kneed(k):
        b0 = 12 + NG0 + 1
        step = k - RKV
        if not G2: return b0 + step + 1
        return b0 + 1 if step == 0 else b0 + 2 + step // 2
    def kv_poll(): lds(f"ds_read_b32 v{vP2}, v{vCntR} offset:1024", "poll2")
    NI = opt.get("ni", 4)
    def kv_check(k, fresh=False):
        if k >= RKV and (fresh or k == RKV or kneed(k) != kneed(k - 1) or k == RKV + 8 - S0):
            check(fresh, 1024, kneed(k), sleep=opt.get('ksleep', 4), reg=vP2, tag="poll2")
    def kv_issue(k, fresh=False, chk=True):
        if chk: kv_check(k, fresh)
        A(f"s_add_u32 m0, s{sKVm}, {((k + E0) % RKV) * KST}\ns_add_u32 s{sT0}, s{sKVs}, {k*1024}")
        A(f"buffer_load_dwordx4 v{vL16}, {ws}, s{sT0} offen sc1 lds"); vmq.push(("kv", k))
    def kv_pub(k):
        vwait(("kv", k))
        for _ in range(1): lds(f"ds_add_u32 v{vCnt}, v{vOne} offset:512", "add")
    S0 = opt.get("s0", 4); KLAG = opt.get("klag", 2)
    A(f"s_cmp_lg_u32 s{sNb}, 3\ns_cbranch_scc1 L_ffn")
    check(True, 1024, 12 + NG0 + 1)
    check(True, 0, 12)
    vmq.clear()
    for k in range(NI, RKV): kv_issue(k)
    for k in range(NI, RKV): kv_pub(k)
    kvs = [RKV + st - S0 for st in range(S0, 8)]; npub = max(0, 8 - KLAG - S0); done = []
    def light_kv():
        nonlocal npub
        if done and npub: kv_pub(done.pop(0)); npub -= 1
        if kvs: k = kvs.pop(0); kv_issue(k, True); done.append(k)
    if opt.get("pfw", 1):
        P = [0, 128, 384, 512, 768, 896, 256, 640, 1024, 1152, 1280, 1404][:2 * opt.get('npf', 6)]
        PCAP = opt.get("pcap", 1)
        A(f"""
        s_setprio 3
        v_mul_u32_u24 v{TMP}, 2752, v{vL}
        s_setprio 0
        s_and_b32 s4, s{sRB}, 7
        s_mul_i32 s5, s4, {64*2752}
        s_lshr_b32 s6, s{sCG}, 2
        s_mul_i32 s7, s6, 1408
        s_add_u32 s5, s5, s7
        """)
        for i in range(len(P) // 2):
            lo_, hi_ = sorted(P[2*i:2*i+2])
            A(f"s_mul_i32 s{sT0}, s{sMI}, {hi_-lo_}\ns_add_u32 s{sT0}, s{sT0}, s5")
            A(f"buffer_load_dword v143, v{TMP}, {s(sWgu,4)}, s{sT0} offen offset:{lo_}\ns_waitcnt vmcnt({PCAP})")
            vmq.push("pf"); vmq.waited(PCAP)
            if i >= 2: light_kv()
    for g in range(8, 8 + LOOK): dma(*ffn_dd(g))
    while kvs or (done and npub): light_kv()
    A("s_waitcnt vmcnt(0)")
    lds(f"ds_add_u32 v{vCnt}, v{vOne}", "add")
    A(f"s_add_u32 s{sNeed}, s{sNeed}, 1\ns_setprio 3\nv_mov_b32 v{vP}, 0\nv_mov_b32 v{vP2}, 0\ns_setprio 0")
    A("s_branch L_ffn8")
    A.label("L_ffn")
    vmq.clear(); lq.clear()
    T1, U1 = TMP, [88, 90, 92, 94, 128, 130, 132, 134]
    AD1 = [v(40, 16), v(56, 16), v(96, 16), a(96, 16)]
    def gelu1():
        G, U = ACC0, ACC1
        A("s_setprio 3\ns_nop 9")
        for i in range(8): A(f"v_pk_mul_f32 {v(T1+2*i,2)}, {v(G+2*i,2)}, {v(G+2*i,2)}")
        for i in range(8): A(f"v_pk_fma_f32 {v(T1+2*i,2)}, {v(T1+2*i,2)}, {s(sC,2)}, {v(vT0,2)}")
        for i in range(8): A(f"v_pk_mul_f32 {v(U1[i],2)}, {v(U+2*i,2)}, {v(G+2*i,2)}")
        for i in range(8): A(f"v_pk_mul_f32 {v(T1+2*i,2)}, {v(T1+2*i,2)}, {v(G+2*i,2)}")
        A("s_setprio 0")
    def gelu2_groups(b):
        L = [f"v_exp_f32 v{T1+i}, v{T1+i}" for i in range(16)]
        L += [f"v_pk_add_f32 {v(T1+2*i,2)}, {v(T1+2*i,2)}, 1.0 op_sel_hi:[1,0]" for i in range(8)]
        L += [f"v_rcp_f32 v{T1+i}, v{T1+i}" for i in range(16)]
        L += [f"v_pk_mul_f32 {v(U1[i],2)}, {v(U1[i],2)}, {v(T1+2*i,2)}" for i in range(8)]
        L += [f"v_cvt_pk_bf16_f32 v{T1+i}, v{U1[i]}, v{U1[i]+1}" for i in range(8)]
        sizes = [4, 4, 4, 4, 8, 4, 4, 4, 4, 8, 8]
        G_ = []
        for n in sizes:
            grp = L[:n]; L = L[n:]
            G_.append(lambda grp=grp: A("s_setprio 3\n" + "\n".join(grp) + "\ns_setprio 0"))
        def store():
            l = lab("hskip")
            if b == 0: A(f"s_cmp_eq_u32 s{sNb}, 3\ns_cbranch_scc1 {l}")
            if b == 2: A(f"s_add_u32 s{sT0}, s{sCG}, s{sNI}\ns_cmp_eq_u32 s{sT0}, 8\ns_cbranch_scc1 {l}")
            A(f"s_add_u32 s{sT0}, s{sHst}, {b*4096}")
            A(f"buffer_store_dwordx4 {v(T1,4)}, v{vL16}, {ws}, s{sT0} offen sc1")
            A(f"buffer_store_dwordx4 {v(T1+4,4)}, v{vL16}, {ws}, s{sT0} offen offset:1024 sc1")
            A.label(l)
            vmq.since = 0
        return G_ + [store]
    def send_flag(b):
        def f():
            n = min(vmq.since, 63)
            A(f"s_waitcnt vmcnt({n})"); vmq.waited(n)
            A(f"s_add_u32 s{sT0}, s{sHfl}, {b*4096}\ns_mov_b64 exec, 1\nbuffer_store_dword v{vFl}, v{vT2}, {ws}, s{sT0} offen sc1\ns_mov_b64 exec, -1")
        return f
    NH = 12
    def hload(t):
        b = 8 * (t % NH)
        if DSEQ[t] == 21:
            A(f"s_and_b32 s{sT2}, s{sGW}, 2\ns_lshl_b32 s{sT2}, s{sT2}, 10\ns_sub_u32 s{sT2}, s{sHb}, s{sT2}\ns_add_u32 s{sT2}, s{sT2}, {DSEQ[t]*4096}")
        else:
            A(f"s_add_u32 s{sT2}, s{sHb}, {DSEQ[t]*4096}")
        A(f"buffer_load_dwordx4 {a(b,4)}, v{vH0}, {ws}, s{sT2} offen sc1")
        A(f"buffer_load_dwordx4 {a(b+4,4)}, v{vH1}, {ws}, s{sT2} offen sc1")
        vmq.push(("h", t), 2)
    def hflag_issue(c):
        A(f"s_add_u32 s{sT2}, s{sHld}, {c*4096}\ns_mov_b64 exec, {hex(CMASK[c])}")
        A(f"buffer_load_dword v{vHF}, v{vL128}, {ws}, s{sT2} offen sc1\ns_mov_b64 exec, -1")
        vmq.push(("hf", c))
    def hflag_check(c):
        vwait(("hf", c))
        l = f"L_hf{c}"
        A(f"s_setprio 3\nv_cmp_ne_u32 vcc, s{sTag}, v{vHF}\ns_setprio 0\ns_and_b32 vcc_lo, vcc_lo, {hex(CMASK[c])}\ns_cbranch_scc1 {l}_s")
        A.label(l + "_b")
        def sp():
            A.label(l + "_s")
            A(f"s_add_u32 s{sT2}, s{sHld}, {c*4096}\ns_setprio 3")
            spin_flags(l, vHF, vL128, sT2, hex(CMASK[c]), sleep=8)
            A(f"s_setprio 0\ns_branch {l}_b")
        slow.append(sp)
    def p4(ni):
        def f():
            l = lab("p4")
            A(f"""
            s_cmp_lg_u32 s{sNI}, {ni}
            s_cbranch_scc1 {l}_x
            s_and_b32 s{sT0}, s{sRB}, 7
            s_lshl_b32 s{sT1}, s{sCG}, 7
            s_cmp_eq_u32 s{sGW}, 3
            s_cbranch_scc1 {l}_o
            s_mul_i32 s{sT0}, s{sT0}, {172*1024}
            s_add_u32 s{sT0}, s{sT0}, s{sT1}
            s_lshl_b32 s{sT1}, s{sGW}, 16
            s_add_u32 s{sT0}, s{sT0}, s{sT1}
            buffer_load_dword v143, v{vXR}, {s(sWd,4)}, s{sT0} offen
            s_branch {l}_x
            """)
            A.label(l + "_o")
            A(f"s_lshl_b32 s{sT0}, s{sT0}, 16\ns_add_u32 s{sT0}, s{sT0}, s{sT1}\nbuffer_load_dword v143, v{vXR}, {s(sWo,4)}, s{sT0} offen")
            A.label(l + "_x")
        return f
    allp = []
    for g in range(NG0, 39): allp += [(g, p) for p in dma_pieces(*ffn_dd(g))]
    T0 = opt.get("t0", 2 if NG0 >= 4 else NG0 - 1); RATE = opt.get("rate", 6)
    NE = opt.get("ne", 0)
    pre0 = []
    while allp[0][0] < opt.get("np0", 0): pre0.append(allp.pop(0)[1])
    early = [[allp.pop(0)[1] for _ in range(4)] for _ in range(NE)]
    prep_ = []
    while allp[0][0] <= T0 + 1: prep_.append(allp.pop(0)[1])
    sched = []
    for st in range(35):
        take = []
        if st < NE: take = early[st]; assert st < T0
        if st >= T0:
            while allp and allp[0][0] <= st + LOOK and len(take) < RATE: take.append(allp.pop(0)[1])
        sched.append(take)
        if st == 7 and not FR: assert allp[0][0] == 8 + LOOK and len([1 for g, _ in allp if g == 8 + LOOK]) == 4
    assert not allp
    stages = []
    post = {}
    for st in range(35):
        frags = []
        if st < 24:
            for kk in range(4):
                ks = (st % 8) * 4 + kk
                for p, acc in enumerate((ACC0, ACC1)):
                    c = "0" if ks == 0 else v(acc, 16)
                    frags.append((vTRn, vTRnH, p * 8192 + kk * 2048, p * 8192 + kk * 2048 + 512, [f"{MF} {v(acc,16)}, {{w}}, {xn(ks)}, {c}"]))
        else:
            for kk in range(2):
                t = 2 * (st - 24) + kk; b = 8 * (t % NH)
                for ni, (lo, hi) in enumerate(((vTRp0, vTRp0H), (vTRp1, vTRp1H))):
                    ms = [(lambda t=t: vwait(("h", t)))] if ni == 0 else []
                    for mi in range(2):
                        d = AD1[2 * ni + mi]; c = "0" if t == 0 else d
                        ms.append(f"{MF} {d}, {{w}}, {a(b+4*mi,4)}, {c}")
                    frags.append((lo, hi, kk * 2048, kk * 2048 + 1024, ms))
        nx = ffn_dd(st + 1)
        stages.append(dict(slot=gslot(st), frags=frags, pieces=sched[st], nxt=("dma", nx[0], nx[1]),
                           sync=(st <= 25), pub=(st <= 24), pubat=(0 if st >= 23 else opt.get("pubat", 2)),
                           waitat=(3 if st >= 24 else (6 if st == 23 else opt.get("pubat", 2)))))
    assert LOOK <= 4
    stages[T0]["pre"] = lambda: (check(True, 1024, 12 + NG0 + 1) if opt.get("thr", 1) else None, [kv_issue(k) for k in range(NI, RKV)], [p_() for p_ in prep_])
    stages[8]["label"] = "L_ffn8"
    if pre0: assert T0 > 0; stages[0]["pre"] = lambda: [p_() for p_ in pre0]
    GATE = opt.get("gate", 31); GR_ = opt.get("gater", 17 if G2 else 33)
    if GATE:
        def gate():
            A("s_waitcnt lgkmcnt(0)"); lq.clear()
            for st_ in range(GATE, GATE + 2):
                if st_ < 35:
                    for p_ in stages[st_]["pieces"]: p_()
                    stages[st_]["pieces"] = []
            for k_ in sorted(k for k in hooks if k[0] in (GATE, GATE + 1)):
                hooks.pop(k_)()
            if opt.get("warm", 0):
                A("s_mov_b64 exec, 0\ns_branch L_wg"); A.label("L_wg_ret"); A("s_mov_b64 exec, -1")
            check(True, 1024, 12 + NG0 + 1 + GR_, sleep=4)
        stages[GATE]["pre"] = gate
    hooks = {}
    for b in range(3):
        st0 = 8 * (b + 1)
        stages[st0]["frags"][0][4].insert(0, gelu1)
        grp = gelu2_groups(b)
        pos = [(si, fi, k) for si in (st0, st0 + 1, st0 + 2) for fi, fr in enumerate(stages[si]["frags"]) for k, m in enumerate(fr[4]) if not callable(m)]
        if b == 2: pos = [p_ for p_ in pos for _ in range(opt.get('g3', 2))]
        for (si, fi, k), g_ in reversed(list(zip(pos, grp))):
            stages[si]["frags"][fi][4].insert(k + 1, g_)
        hooks[(st0 + 3, 6) if b < 2 else divmod(opt.get('f3', 105), 4)] = send_flag(b)
    def addhook(pos, f):
        old = hooks.get(pos)
        hooks[pos] = (lambda: (old(), f())) if old else f
    assert opt.get("thr", 1) or NI == RKV
    if NI < RKV: addhook((T0, 3), lambda: [kv_pub(k) for k in range(NI, RKV)])
    for k in range(RKV, 32):
        st = S0 + k - RKV
        nf = len(stages[st]["frags"]); nfp = len(stages[st - 1]["frags"])
        if k == RKV or kneed(k) != kneed(k - 1) or k == RKV + 8 - S0: addhook((st, 0), kv_poll)
        addhook((st, 2), lambda k=k: kv_check(k))
        addhook((st, nf // 2), lambda k=k: kv_issue(k, chk=False))
        addhook((st + KLAG, 0), lambda k=k: kv_pub(k))
    if opt.get("p4", 1): hooks[(opt.get("p4a", 10), 1)] = p4(0); hooks[(opt.get("p4b", 14), 1)] = p4(1)
    HL = opt.get("hl", 5)
    def hpos(t):
        u = t - HL
        if u >= 0: return (24 + u // 2, 2 * (u % 2) + 1)
        return (24 + (u // 2), 4 * (u % 2) + 2)
    for t in range(22):
        fs = []
        if t in CSTART: fs.append(lambda c=CSTART[t]: hflag_check(c))
        fs.append(lambda t=t: hload(t))
        if t + opt.get('hi', 2) in CSTART: fs.append(lambda c=CSTART[t + opt.get('hi', 2)]: hflag_issue(c))
        old = hooks.get(hpos(t))
        if old: fs.insert(0, old)
        hooks[hpos(t)] = (lambda fs=fs: [f() for f in fs])
    p0 = hpos(0); addhook((p0[0] - 1, 6), lambda: hflag_issue(0))
    XRAW = 136
    def xload():
        for q in range(4):
            A(f"buffer_load_dwordx2 {v(XRAW+2*q,2)}, v{vXo}, {s(sX,4)}, s{sXo} offen offset:{16*q}"); vmq.push("xr")
    addhook((28, 0), xload)
    def fo_addr(): A(f"s_lshl_b32 s{sT2}, s{sRB}, 12\ns_lshl_b32 s{sT0}, s{sGW}, 10\ns_add_u32 s{sT2}, s{sT2}, s{sT0}\ns_add_u32 s{sT2}, s{sT2}, {FO}")
    def fo_issue():
        fo_addr()
        A(f"s_mov_b64 exec, 0xff\nbuffer_load_dword v{vHF}, v{vL128}, {ws}, s{sT2} offen sc1\ns_mov_b64 exec, -1"); vmq.push("fo")
    def fo_check():
        vwait("fo")
        A(f"s_setprio 3\nv_cmp_ne_u32 vcc, s{sTag}, v{vHF}\ns_setprio 0\ns_and_b32 vcc_lo, vcc_lo, 0xff\ns_cbranch_scc1 L_fo_s")
        A.label("L_fo_b")
        def sp():
            A.label("L_fo_s")
            fo_addr(); A("s_setprio 3")
            spin_flags("L_fo", vHF, vL128, sT2, 8, sleep=8)
            A("s_setprio 0\ns_branch L_fo_b")
        slow.append(sp)
    def o_tile():
        A(f"s_lshr_b32 s4, s2, 5\ns_lshl_b32 s4, s4, 1\ns_add_u32 s4, s4, s{sMI}\ns_lshl_b32 s4, s4, 1\ns_add_u32 s4, s4, s{sNI}")
        A(f"s_and_b32 s5, s2, 7\ns_lshl_b32 s5, s5, 2\ns_bfe_u32 s6, s2, 0x20003\ns_add_u32 s5, s5, s6")
    def o_clear():
        o_tile()
        A(f"s_lshl_b32 s6, s4, 16\ns_lshl_b32 s7, s5, 10\ns_add_u32 s6, s6, s7\ns_add_u32 s6, s6, {OF}\ns_add_u32 s7, s6, 32768")
        A(f"buffer_store_dwordx4 v[136:139], v{vL16}, {ws}, s6 offen sc1\nbuffer_store_dwordx4 v[136:139], v{vL16}, {ws}, s7 offen sc1"); vmq.push("oc", 2)
    def o_flag():
        vwait("oc")
        A(f"s_lshl_b32 s6, s4, 12\ns_lshl_b32 s7, s5, 7\ns_add_u32 s6, s6, s7\ns_add_u32 s6, s6, {FO}")
        A(f"s_mov_b64 exec, 1\nbuffer_store_dword v{vFl}, v{vT2}, {ws}, s6 offen sc1\ns_mov_b64 exec, -1"); vmq.push("of")
    addhook((13, 6), o_clear); addhook((15, 6), o_flag)
    addhook((18, 6), fo_issue); addhook((20, 2), fo_check)
    if stamps:
        for st in (8, 16, 24): addhook((st, 0), ST)
    segment(stages, hooks)
    lowprio[0] = False
    ST()
    if opt.get("atrace"):
        A(f"s_lshl_b32 s{sT0}, s2, 4\ns_add_u32 s{sT0}, s{sT0}, s{sWave}\ns_lshl_b32 s{sT0}, s{sT0}, 8\ns_add_u32 s{sT0}, s{sT0}, {STAMP+MB}\nv_lshlrev_b32 v135, 2, v{vL}\nbuffer_store_dword v31, v135, {ws}, s{sT0} offen\ns_waitcnt vmcnt(0)")
    XF = [120, 122, 124, 126, 32, 34, 36, 38]
    WARM = opt.get("warm", 0)
    if WARM: A.warm_begin()
    vwait(("dma", "o", 3))
    for i in range(8):
        slot = gslot(35 + i // 2); base = slot * SLOT
        for ni, (lo, hi) in enumerate(((vTRp0, vTRp0H), (vTRp1, vTRp1H))):
            reg, b = (lo, base) if base < 65536 else (hi, base - 65536)
            lds(f"ds_read_b64_tr_b16 {a(8*i+4*ni,2)}, v{reg} offset:{b + (i%2)*2048}", "wo")
            lds(f"ds_read_b64_tr_b16 {a(8*i+4*ni+2,2)}, v{reg} offset:{b + (i%2)*2048 + 1024}", "wo")
    vR = [None, vKo, vVo, vXR]
    sHave, sNext = 4, 5
    A(f"""
    s_setprio {opt.get("tprio", 3)}
    s_lshl_b32 s7, s{sRB}, 16
    s_lshl_b32 s{sT0}, s{sGW}, 13
    s_add_u32 s7, s7, s{sT0}
    s_add_u32 s7, s7, {OF}
    s_add_u32 s6, s7, 4096
    s_mov_b32 s{sHave}, 0
    s_mov_b32 s{sNext}, 0
    s_mov_b32 s{sC}, {hex(f2u(-1.4426950408889634))}
    s_mov_b32 s{sC+1}, {hex(f2u(-1.4426950408889634))}
    v_xor_b32 v{vR[1]}, 4096, v{vRW}
    v_xor_b32 v{vR[2]}, 8192, v{vRW}
    v_xor_b32 v{vR[3]}, 12288, v{vRW}
    v_and_b32 v{vL128}, 7, v{vL}
    v_lshlrev_b32 v{vL128}, 10, v{vL128}
    v_bfe_u32 v{vFl}, v{vL}, 3, 1
    v_lshl_add_u32 v{vL128}, v{vFl}, 15, v{vL128}
    """)
    for r_ in [vRW] + vR[1:]: A(f"v_add_u32 v{r_}, {RB0 + 2*SLOT}, v{r_}")
    OFR = 56
    AS = [(v, 40), (a, 64), (a, 80), (a, 96)]
    def o_loads(u):
        for i in range(8):
            so = 7 if i < 4 else 6
            if u: A(f"s_bitcmp1_b32 s{sD0}, {i}\ns_cbranch_scc0 L_ol{u}_{i}")
            A(f"buffer_load_dwordx4 {v(OFR+8*i,4)}, v{vO0}, {ws}, s{so} offen offset:{(i%4)*1024} sc1")
            A(f"buffer_load_dwordx4 {v(OFR+8*i+4,4)}, v{vO1}, {ws}, s{so} offen offset:{(i%4)*1024} sc1")
            if u: A.label(f"L_ol{u}_{i}")
    def reduce_tile(dst, src, mid=None):
        for lt in range(1, 4):
            k_, b_ = src[lt]
            for q in range(4):
                lds(f"ds_write_b128 v{vRW}, {k_(b_+4*q,4)} offset:{(lt-1)*SLOT + q*1024}", "w")
        lds(f"ds_add_u32 v{vCnt}, v{vOne}", "add")
        check(True)
        for lt in range(1, 4):
            for q in range(4):
                lds(f"ds_read_b128 {v(40+16*lt+4*q,4)}, v{vR[lt]} offset:{(lt-1)*SLOT + q*1024}", ("r", lt))
        if mid: mid()
        lwait(("r", 1))
        for i in range(8): A(f"v_pk_add_f32 {v(40+2*i,2)}, {v(40+2*i,2)}, {v(56+2*i,2)}")
        lwait(("r", 3))
        for i in range(8): A(f"v_pk_add_f32 {v(72+2*i,2)}, {v(72+2*i,2)}, {v(88+2*i,2)}")
        for i in range(8): A(f"v_pk_add_f32 {v(dst+2*i,2)}, {v(40+2*i,2)}, {v(72+2*i,2)}")
    def mid0():
        vwait("xr")
        for i in range(8):
            A(f"v_lshlrev_b32 v{XF[i]}, 16, v{XRAW+i}")
            A(f"v_and_b32 v{XF[i]+1}, 0xffff0000, v{XRAW+i}")
    reduce_tile(GR, [(v, 40), (v, 56), (v, 96), (a, 96)], mid0)
    OG = 0
    Tv = 40
    silu = [f"v_pk_mul_f32 {v(Tv+2*i,2)}, {v(GR+2*i,2)}, {s(sC,2)}" for i in range(8)]
    silu += [f"v_exp_f32 v{Tv+i}, v{Tv+i}" for i in range(16)]
    silu += [f"v_add_u32 v{r_}, {3*SLOT}, v{r_}" for r_ in [vRW] + vR[1:]]
    silu += [f"v_pk_add_f32 {v(Tv+2*i,2)}, {v(Tv+2*i,2)}, 1.0 op_sel_hi:[1,0]" for i in range(8)]
    silu += [f"v_rcp_f32 v{Tv+i}, v{Tv+i}" for i in range(16)]
    silu += ["s_nop 0"] + [f"v_pk_mul_f32 {v(GR+2*i,2)}, {v(GR+2*i,2)}, {v(Tv+2*i,2)}" for i in range(8)]
    if opt.get("ogate"):
        while silu: A(silu.pop(0))
        A(f"v_and_b32 v{vP}, 3, v{vL}\nv_lshlrev_b32 v{vP}, 9, v{vP}\nv_add_u32 v{vP}, {AFL+256}, v{vP}")
        lds_spin("L_ow", vHF, vP, 0, f"v_cmp_eq_u32 vcc, 0, v{vHF}", sleep=opt["ogate"])
    for i in range(8):
        so = 7 if i < 4 else 6
        for mi, vo in enumerate((vO0, vO1)):
            A(f"buffer_load_dwordx4 {v(OFR+8*i+4*mi,4)}, v{vo}, {ws}, s{so} offen offset:{(i%4)*1024} sc1")
            for _ in range(4):
                if silu: A(silu.pop(0))
    assert not silu
    ST()
    def overify(i):
        o_ = OFR + 8 * i
        A(f"""
        v_max3_u32 v{vHF}, v{o_}, v{o_+1}, v{o_+2}
        v_max3_u32 v{vP}, v{o_+3}, v{o_+4}, v{o_+5}
        v_max3_u32 v{vHF}, v{vHF}, v{o_+6}, v{o_+7}
        v_max_u32 v{vHF}, v{vHF}, v{vP}
        v_cmp_eq_u32 vcc, -1, v{vHF}
        """)
    def omfma(i):
        for ni in range(2):
            for mi in range(2):
                k_, b_ = AS[2 * ni + mi]; d = k_(b_, 16)
                A(f"{MF} {d}, {a(8*i+4*ni,4)}, {v(OFR+8*i+4*mi,4)}, {d if i else 0}")
    for i in range(8):
        A(f"s_waitcnt vmcnt({14-2*i})")
        overify(i)
        A(f"s_cbranch_vccnz L_ofx")
        omfma(i)
        A(f"s_bitset1_b32 s{sHave}, {i}\ns_mov_b32 s{sNext}, {i+1}")
    A.label("L_odone")
    gen = Asm(); gen_lines_at = len(A.lines)
    sLd = sD0
    vPr, vPa = vFl, vL128
    PROBE = f"s_mov_b64 exec, 0xffff\nbuffer_load_dword v{vPr}, v{vPa}, {ws}, s7 offen offset:1020 sc1\ns_mov_b64 exec, -1"
    A.label("L_ofx")
    A(f"s_andn2_b32 s{sLd}, 0xff, s{sHave}")
    A.label("L_of")
    A("s_waitcnt vmcnt(0)")
    for i in range(8):
        o_ = OFR + 8 * i
        A(f"""
        s_bitcmp1_b32 s{sLd}, {i}
        s_cbranch_scc0 L_ov{i}
        v_max3_u32 v{vHF}, v{o_}, v{o_+1}, v{o_+2}
        v_max3_u32 v{vP}, v{o_+3}, v{o_+4}, v{o_+5}
        v_max3_u32 v{vHF}, v{vHF}, v{o_+6}, v{o_+7}
        v_max_u32 v{vHF}, v{vHF}, v{vP}
        v_cmp_eq_u32 vcc, -1, v{vHF}
        s_cbranch_vccnz L_ov{i}
        s_bitset1_b32 s{sHave}, {i}
        """)
        A.label(f"L_ov{i}")
    A(f"s_cmp_lt_i32 s{sTO}, 0\ns_cselect_b32 s{sHave}, 0xff, s{sHave}\ns_cmp_eq_u32 s{sHave}, 0xff\ns_cbranch_scc1 L_onp")
    DT = opt.get("dt", 4)
    sDir = sD1
    A(f"s_bcnt1_i32_b32 s{sDir}, s{sHave}\ns_cmp_ge_u32 s{sDir}, {8-DT}\ns_cbranch_scc1 L_odir")
    A(PROBE)
    A("s_branch L_onp")
    A.label("L_odir")
    A(f"s_andn2_b32 s{sLd}, 0xff, s{sHave}\ns_sub_u32 s{sTO}, s{sTO}, 1")
    o_loads("c")
    A.label("L_onp")
    for i in range(8):
        A(f"s_cmp_lg_u32 s{sNext}, {i}\ns_cbranch_scc1 L_om{i}\ns_bitcmp1_b32 s{sHave}, {i}\ns_cbranch_scc0 L_opr0")
        for ni in range(2):
            for mi in range(2):
                k_, b_ = AS[2 * ni + mi]; d = k_(b_, 16)
                A(f"{MF} {d}, {a(8*i+4*ni,4)}, {v(OFR+8*i+4*mi,4)}, {d if i else 0}")
        A(f"s_mov_b32 s{sNext}, {i+1}")
        A.label(f"L_om{i}")
    A("s_branch L_odone")
    moved = A.lines[gen_lines_at:]; del A.lines[gen_lines_at:]
    slow.append(lambda: A.lines.extend(moved))
    def sp():
        A.label("L_opr0")
        A(f"s_cmp_ge_u32 s{sDir}, {8-DT}\ns_cbranch_scc1 L_of")
        A.label("L_opr")
        A(f"""
        s_waitcnt vmcnt(0)
        v_cmp_ne_u32 vcc, -1, v{vPr}
        s_sub_u32 s{sTO}, s{sTO}, 1
        s_lshr_b32 s{sLd}, vcc_lo, 8
        s_and_b32 s{sLd}, s{sLd}, vcc_lo
        s_cmp_lt_i32 s{sTO}, 0
        s_cselect_b32 s{sLd}, 0xff, s{sLd}
        s_and_b32 s{sLd}, s{sLd}, 0xff
        s_andn2_b32 s{sLd}, s{sLd}, s{sHave}
        s_cbranch_scc1 L_opg
        s_sleep {opt.get("osleep", 2)}
        {PROBE}
        s_branch L_opr
        """)
        A.label("L_opg")
        o_loads("b")
        A("s_branch L_of")
    slow.append(sp)
    ST()
    A("s_nop 10")
    reduce_tile(40, AS)
    for i in range(8): A(f"v_pk_fma_f32 {v(40+2*i,2)}, {v(40+2*i,2)}, {v(GR+2*i,2)}, {v(XF[i],2)}")
    for i in range(8): A(f"v_cvt_pk_bf16_f32 v{56+i}, v{40+2*i}, v{41+2*i}")
    A("s_nop 1")
    for h in range(2):
        A(f"v_permlane32_swap_b32 v{56+4*h}, v{58+4*h}\nv_permlane32_swap_b32 v{57+4*h}, v{59+4*h}")
    for h in range(2):
        A(f"buffer_store_dwordx4 {v(56+4*h,4)}, v{vRR}, {s(sOut,4)}, s{sXo} offen offset:{32*h}{['', ' sc1', ' nt', ' sc0 sc1'][opt.get('om', 0)]}")
    if WARM: A.warm_end("L_wg", "L_wa2", WARM)
    if opt.get("xhold"):
        A.label("L_hold")
        A(f"s_memrealtime s[98:99]\ns_waitcnt lgkmcnt(0)\ns_sub_u32 s98, s98, s{sTag if opt.get('xtag') else 100}\ns_cmp_lt_u32 s98, {opt['xhold']}\ns_cbranch_scc1 L_hold")
    if stamps:
        ST.on = True
        if not FR: ST(); ST.flush(ws, STAMP, sWave, 2, 3, sT0)
        if opt.get("dbgout"):
            A(f"s_cmp_lg_u32 s2, {opt['dbgout']-1}\ns_cbranch_scc1 L_dbx\ns_cmp_lg_u32 s{sWave}, 4\ns_cbranch_scc1 L_dbx\nv_mov_b32 v2, 0")
            for i in range(1, ST.n):
                A(f"s_sub_u32 s4, s{ST.base+2*i}, s{ST.base}\nv_mov_b32 v3, s4\nbuffer_store_dword v3, v2, {s(sDbg,4)}, 0 offen offset:{4*i}\ns_nop 1")
            A.label("L_dbx")
    A("s_endpgm")
    for f in slow: f()
    slow.clear()

    ST.n = 2 if stamps else 0
    A.label("L_attn")
    lq.clear(); vmq.clear()
    for g in range(NEARLY): vmq.push(("dma", "q", g), 4)
    def pub_ld(g):
        d = ddq(g); vwait(("dma", d[0], d[1])); lds(f"ds_add_u32 v{vCnt}, v{vOne}", "add")
    def FS():
        if FR: ST()
    def p2():
        A(f"s_mov_b64 exec, {PF2MASK}\nbuffer_load_dword v143, v30, {s(sWgu,4)}, s68 offen\ns_mov_b64 exec, -1"); vmq.push("pf")
    FS()
    NB4 = max(opt.get("nb4", 4), NEARLY)
    for g in range(max(NEARLY, GE), NB4):
        dma(*ddq(g))
        if g == opt.get("p1at", 3):
            A(f"s_mov_b64 exec, {'0xffff0000' if opt.get('p1kv', 1) else '0xffffffff'}\nbuffer_load_dword v143, v{aP3}, {s(sWq,4)}, s7 offen\ns_mov_b64 exec, -1"); vmq.push("pf")
            if opt.get("p2early", 1): p2()
    pub_ld(0)
    A("s_waitcnt lgkmcnt(0)\ns_barrier"); lq.clear()
    ST()
    for g in range(1, NB4): pub_ld(g)
    for g in range(NB4, 5): dma(*ddq(g))
    FS()
    A(GUADDR)
    A(f"""
    s_and_b32 s{sT0}, s2, 7
    s_lshr_b32 s{sT1}, s2, 3
    s_and_b32 s{sT2}, s{sT1}, 3
    s_lshl_b32 s{sHead}, s{sT0}, 2
    s_add_u32 s{sHead}, s{sHead}, s{sT2}        ; head
    s_lshr_b32 s{sT1}, s{sT1}, 2
    s_lshl_b32 s{sT1}, s{sT1}, 1
    s_add_u32 s{sT1}, s{sT1}, s{sMI}
    s_lshr_b32 s4, s{sWave}, 1
    s_lshl_b32 s5, s{sHead}, 16
    s_lshl_b32 s{sQ}, s{sT1}, 12
    s_add_u32 s{sQ}, s{sQ}, s5
    s_lshl_b32 s6, s4, 11
    s_add_u32 s{sQ0}, s{sQ}, s6
    s_xor_b32 s6, s6, 2048
    s_add_u32 s{sQ}, s{sQ}, s6
    s_lshl_b32 s{sT1}, s{sT1}, 1
    s_add_u32 s{sT1}, s{sT1}, s4                ; 64-token row block kept by this wave
    s_lshl_b32 s{sFo}, s{sT1}, 12
    s_lshl_b32 s{sT0}, s{sHead}, 7
    s_add_u32 s{sFo}, s{sFo}, s{sT0}
    s_add_u32 s{sFo}, s{sFo}, {FO}
    s_add_u32 s{sKb}, s5, {KF}
    s_lshl_b32 s{sT0}, s4, 15
    s_add_u32 s{sKVb}, s{sKb}, s{sT0}
    v_mov_b32 v{vK}, v{vL16}
    v_lshrrev_b32 v{vV}, 5, v{vL}
    v_lshlrev_b32 v{vV}, 8, v{vV}
    v_and_b32 v{aPKV}, 15, v{vL}
    v_lshl_add_u32 v{vV}, v{aPKV}, 4, v{vV}
    v_add_u32 v{vV}, {VF-KF}, v{vV}
    s_mov_b32 s{sMask}, 0x0000ffff
    s_mov_b32 s{sMask+1}, 0x0000ffff
    s_mov_b32 s{sFB}, 1
    s_mov_b32 s{sOff}, {hex(f2u(-float(opt.get('offset', 80))))}
    v_mov_b32 v{vIdx}, 0xdddddddd
    v_and_b32 v{aOnes}, 27, v{vL}
    v_cmp_eq_u32 vcc, 16, v{aOnes}
    v_mov_b32 v{aOnes}, 0x3f803f80
    s_lshr_b32 s{sFQ}, s{sHead}, 1
    v_cndmask_b32 v{aOnes}, 0, v{aOnes}, vcc
    s_lshl_b32 s{sFQ}, s{sFQ}, 13
    s_add_u32 s{sFQ}, s{sFQ}, {FQ}
    v_lshlrev_b32 v{aL128}, 7, v{vL}
    s_lshr_b32 s{sP3}, s{sQ0}, 3
    s_add_u32 s{sP3}, s{sP3}, {MFO}
    s_lshr_b32 s{sPKV}, s{sQ}, 3
    s_add_u32 s{sPKV}, s{sPKV}, {MFO}
    v_and_b32 v{aPKV}, 31, v{vL}
    v_lshlrev_b32 v{aPKV}, 2, v{aPKV}
    """)
    assert VF - KF == 1 << 21
    for g in range(NB4, 5): pub_ld(g)
    check(True, 0, 1, sleep=opt.get("asleep", 2))
    FS()
    NPRE = 12 + NG0
    for g in range(5, NPRE):
        if g >= 9: check(True, 0, g - 7, sleep=opt.get('asleep', 2))
        if g == 12:
            pub_ld(11)
            if not opt.get("p2early", 1): p2()
        dma(*ddq(g))
        if g >= 7 and g < 16: FS()
        if 8 <= g <= 11:
            inits = [f"v_accvgpr_write_b32 a{x[1]+i}, v{aOnes}" if x[0] == "a" else f"v_mov_b32 v{x[1]+i}, v{aOnes}" for x in VRG for i in range(8)]
            inits += [f"v_accvgpr_write_b32 a{O+i}, 0" for i in range(64)]
            for x in inits[(g - 8) * 20:(g - 7) * 20]: A(x)
        if g == 11:
            A(f"v_mov_b32 v{vT1}, 0\nbuffer_load_dword v{vF}, v{vT1}, {s(sDbg,4)}, 0 offen sc1"); vmq.push("tag")
        if g > 5 and g != 12: pub_ld(g - 1)
    pub_ld(NPRE - 1)
    if FR: ST(); again(); ST.flush(ws, STAMP, sWave, 2, 3, sT0); A("s_endpgm"); ST.on = False; stamps = False
    if opt.get("aexit"): A("s_waitcnt lgkmcnt(0)\ns_endpgm")
    A(f"s_waitcnt vmcnt(0)\nv_readfirstlane_b32 s{sTag}, v{vF}\ns_cmp_lg_u32 s{sTag}, 0\ns_cbranch_scc1 L_atag_x")
    get_tag(vF, vT1, "L_atag")
    A(f"s_mov_b32 s{sFo}, 0")
    A(f"s_setprio 2\ns_cmp_lg_u32 s{sWave}, 0\ns_cbranch_scc1 L_aw")
    lds_spin("L_ag2", M, vCntR, 0, f"v_cmp_gt_u32 vcc, {opt.get('ag', 12)}, v{M}", sleep=2)
    ST()
    if opt.get("adelay"): A(f"s_sleep {opt['adelay']}")
    spin_flags("L_qf", vF, aL128, sFQ, 64, sleep=opt.get("qsleep", 2), first=bool(opt.get("qfirst", 0)))
    assert opt.get('ag', 12) >= 10
    A(f"ds_write_b32 v{aGo}, v{vOne}\ns_branch L_aw_x")
    A.label("L_aw")
    if WARM:
        A("s_mov_b64 exec, 0\ns_branch L_wa1"); A.label("L_wa1_ret"); A("s_mov_b64 exec, -1")
    if stamps: ST.n -= 1; ST()
    lds_spin("L_ag3", M, aGo, 0, f"v_cmp_eq_u32 vcc, 0, v{M}", sleep=1)
    A.label("L_aw_x")
    if opt.get("xgo"): hold("L_hgo", opt["xgo"])
    ST()
    if WARM: A.warm_begin()
    sKN = sKB2
    vOwn, vOneA, vKl, vVl, vPl = 2, 3, 4, 5, 6
    def qloads():
        for t in range(4):
            A(f"buffer_load_dwordx4 {v(SB+4*t,4)}, v{vK}, {ws}, s{sQ0 if t < 2 else sQ} offen offset:{(t&1)*1024} sc1")
        for t in range(4):
            A(f"buffer_load_dword v{M+t}, v{aPKV}, {ws}, s{sP3 if t < 2 else sPKV} offen offset:{(t&1)*128} sc1")
    def qverify():
        T_ = SB + 16
        for k in range(0, 15, 2):
            A(f"v_max3_u32 v{T_}, v{SB+k}, v{SB+k+1}, v{T_ if k else SB+15}")
        A(f"v_max3_u32 v{T_}, v{T_}, v{M}, v{M+1}\nv_max3_u32 v{T_}, v{T_}, v{M+2}, v{M+3}")
        A(f"v_cmp_eq_u32 vcc, -1, v{T_}")
    qloads()
    A(f"s_and_b32 s4, s{sWave}, 1\ns_lshl_b32 s4, s4, 21\ns_add_u32 s4, s4, s{sKVb}\ns_mul_i32 s5, s{sWave}, {RKV*KST}")
    for k0, n in [(k0, min(4, NI - k0)) for k0 in range(0, NI, 4)]:
        A(f"s_add_u32 s6, s4, {k0*1024}")
        for i in range(n):
            A(f"s_add_u32 m0, s5, {((k0 + i + E0) % RKV) * KST - i * 1024}\ns_nop 0")
            A(f"buffer_load_dwordx4 v{vK}, {ws}, s6 offen offset:{i*1024} sc1 lds")
    vVl1 = vF
    A(f"""
    v_subrev_u32 v{vOwn}, 1024, v{vCnt}
    v_mov_b32 v{vOneA}, 1
    ; constant cells of this wave's piece: lane 2p -> ones, 2p+1 -> zeros of step p
    v_lshrrev_b32 v32, 1, v{vL}
    v_mul_u32_u24 v32, {KST}, v32
    v_and_b32 v33, 1, v{vL}
    v_lshl_add_u32 v32, v33, 4, v32
    v_add_u32 v32, s5, v32
    v_cmp_eq_u32 vcc, 0, v33
    v_mov_b32 v36, 0x3f803f80
    s_lshr_b32 s4, s{sWave}, 1
    v_cndmask_b32 v36, 0, v36, vcc
    s_mul_i32 s4, s4, {2*RKV*KST}
    v_mov_b32 v37, v36
    v_mov_b32 v38, v36
    v_mov_b32 v39, v36
    s_mov_b64 exec, {hex((1 << (2*RKV)) - 1)}
    ds_write_b128 v32, v[36:39] offset:1024
    s_mov_b64 exec, -1
    v_add_u32 v{vKl}, s4, v{vK}
    s_sub_u32 s6, s4, {VF-KF-RKV*KST}
    v_add_u32 v{vVl}, s6, v{vV}
    v_add_u32 v{vVl1}, 512, v{vVl}
    s_add_u32 s4, s4, {RKV*KST+1024}
    v_cmp_eq_u32 vcc, 0, v{aOnes}
    v_mov_b32 v32, s4
    v_add_u32 v33, 16, v32
    v_cndmask_b32 v32, v32, v33, vcc
    v_cndmask_b32 v{vVl}, v32, v{vVl}, {s(sMask,2)}
    v_cndmask_b32 v{vVl1}, v32, v{vVl1}, {s(sMask,2)}
    s_waitcnt vmcnt({NI})
    """)
    qverify()
    A("s_cbranch_vccnz L_qre")
    A.label("L_qre_x")
    def sp():
        A.label("L_qre")
        qloads()
        A("s_waitcnt vmcnt(0)")
        qverify()
        A("s_cbranch_vccz L_qre_x")
        timeout_exit("L_qre_x")
        A("s_sleep 1\ns_branch L_qre")
    slow.append(sp)
    A(f"v_mov_b32 v{SB+32}, {NI}\ns_waitcnt vmcnt(0)\nds_add_u32 v{vOwn}, v{SB+32} offset:512")
    A(f"ds_add_u32 v{vOwn}, v{vOneA} offset:1024")
    for i in range(16): A(f"v_accvgpr_write_b32 a{Q+i}, v{SB+i}")
    def maxtree(dst, blocks, first):
        regs = [b + i for b in blocks for i in range(16)]
        if first:
            A(f"v_max3_f32 v{dst}, v{regs[0]}, v{regs[1]}, v{regs[2]}"); regs = regs[3:]
        while len(regs) >= 2:
            A(f"v_max3_f32 v{dst}, v{dst}, v{regs[0]}, v{regs[1]}"); regs = regs[2:]
        if regs: A(f"v_max_f32 v{dst}, v{dst}, v{regs[0]}")
    def build_c():
        T_ = SB
        for t in range(4): A(f"v_mov_b32 v{T_+t}, v{M+t}")
        A("s_nop 1")
        for t in range(4): A(f"v_permlane32_swap_b32 v{T_+t}, v{M+t}")
        for t in range(4): A(f"v_max_f32 v{M+t}, v{M+t}, v{T_+t}")
        for t in range(4): A(f"v_sub_f32 v{M+t}, s{sOff}, v{M+t}")
    def fill_c(t):
        for i in range(8): A(f"v_pk_mov_b32 {v(C+16*t+2*i,2)}, {v(M+(t&~1),2)}, {v(M+(t&~1),2)} op_sel:[{t&1},{t&1}]")
    def kvitems(slot, pos, add=True):
        L = [f"ds_read_b128 {rg(KRG[slot])}, v{vKl} offset:{pos*KST}", f"ds_read_b128 {rg(VRG[slot])}, v{vVl} offset:{pos*KST}",
             f"ds_read_b128 {rg(VRG[slot],4)}, v{vVl1} offset:{pos*KST}"]
        if add: L.append(f"ds_add_u32 v{vOwn}, v{vOneA} offset:1024")
        return L
    lds_spin("L_akv", SB + 8, vCntR, 512, f"v_cmp_gt_u32 vcc, {NI}, v{SB+8}")
    for x in kvitems(E0 & 1, E0): A(x)
    fill_c(0)
    A(f"s_nop 0\ns_waitcnt lgkmcnt(0)")
    A(f"{MF} {v(SB,16)}, {rg(KRG[E0 & 1])}, {a(Q,4)}, {v(C,16)}")
    for t in range(1, 4): fill_c(t)
    for i in range(4): A(f"v_pk_mov_b32 {v(SB+48+8+2*i,2)}, 0, 0")
    A(f"v_mov_b32 v{vPl}, {NI}\ns_mov_b32 s{sCnt}, 3\ns_mov_b32 s{sKN}, {3 if G2 else 2}")
    ST()
    if stamps: A("s_memtime s[96:97]")
    if WARM: A.warm_end("L_wa1", "L_wa1_ret", WARM)
    A(f"s_lshr_b32 s4, s{sWave}, 1\ns_mul_i32 s4, s4, {-4*RKV*KST}\ns_add_u32 s4, s4, {2*RKV*KST}")
    for d_, s_ in ((7, vKl), (8, vVl), (9, vVl1)): A(f"v_add_u32 v{d_}, s4, v{s_}")
    A.raw(".p2align 6")
    A.label("L_aloop")
    for r in range(RKV):
        sl = r & 1
        chk = not (G2 and r % 2 == 1)
        side = []
        if chk:
            l = lab("akc")
            side.append(f"v_cmp_gt_u32 vcc, s{sKN}, v{vPl}\ns_cbranch_vccnz {l}\n{l}_x:")
            def sp(l=l):
                A.label(l)
                A(f"ds_read_b32 v{vPl}, v{vCntR} offset:512\ns_waitcnt lgkmcnt(0)\nv_cmp_gt_u32 vcc, s{sKN}, v{vPl}\ns_cbranch_vccz {l}_x")
                timeout_exit(l + "_x")
                A(f"s_sleep 1\ns_branch {l}")
            slow.append(sp)
        side += kvitems(sl ^ 1, (r + 1) % RKV, add=chk)
        if not G2 or r % 2 == 1:
            side += [f"ds_read_b32 v{vPl}, v{vCntR} offset:512", f"s_add_u32 s{sKN}, s{sKN}, {2 if G2 else 1}"]
        SPR = opt.get("spr", 1)
        PAT = {0: "QeeeeeBeseeeeeAeeeee", 1: "QeeeseeBeeeseeeAeeesee", 2: "QeeeeseBeeeeseeAeeeese", 3: "QeeseeeBeeseeeeAeeseee"}[SPR]
        for t in range(4):
            X = SB + 16 * t
            tn = (t + 1) & 3; sn = sl if t < 3 else sl ^ 1
            tp = (t - 1) & 3; sp_ = sl if t > 0 else sl ^ 1
            if t == 3:
                assert not side
                if r == RKV - 1: side = [f"s_sub_u32 s{sCnt}, s{sCnt}, 1", f"s_cmp_lg_u32 s{sCnt}, 0"]
                if SPR == 0: A("s_waitcnt lgkmcnt(0)")
            e = 0; seenB = False
            for k, ch in enumerate(PAT):
                if ch == "Q": A(f"{MF} {v(SB+16*tn,16)}, {rg(KRG[sn])}, {a(Q+4*tn,4)}, {v(C+16*tn,16)}")
                elif ch == "B": A(f"{SMF} {a(O+16*tp,16)}, {rg(VRG[sp_],4)}, {v(SB+16*tp+8,8)}, v{vIdx}"); seenB = True
                elif ch == "A": A(f"{SMF} {a(O+16*t,16)}, {rg(VRG[sl])}, {v(X,8)}, v{vIdx}")
                elif ch == "e": A(f"v_exp_f32 v{X+e}, v{X+e}"); e += 1
                else:
                    last = "s" not in PAT[k + 1:]
                    if SPR == 0:
                        while side: A(side.pop(0))
                    elif t == 2 and last:
                        assert not side; A("s_waitcnt lgkmcnt(0)")
                    elif side and not (t == 0 and not seenB and "ds_read_b128" in side[0] and f"v{vKl} " not in side[0]):
                        A(side.pop(0))
            assert e == 16
    A("s_cbranch_scc1 L_aloop")
    assert G2
    PB = C + 32
    def send_items():
        L = [f"s_mul_i32 s{sT0}, s{sWave}, {CMBW}\ns_add_u32 s{sT0}, s{sT0}, {CMB}\nv_add_u32 v{PB+24}, s{sT0}, v{vK}\nv_lshl_add_u32 v{PB+25}, v{vL}, 2, s{sT0}\nv_mov_b32 v{PB+26}, s{sFB}"]
        for i in range(2):
            t = 2 + i
            L += [f"ds_write_b128 v{PB+24}, {a(O+16*t,4)} offset:{i*2304}", f"ds_write_b128 v{PB+24}, {a(O+16*t+4,4)} offset:{i*2304+1024}",
                  f"ds_write_b32 v{PB+25}, a{O+16*t+8} offset:{i*2304+2048}"]
        L += [f"ds_write_b32 v{vAF}, v{PB+26}",
              f"s_xor_b32 s{sT0}, s{sWave}, 2\ns_mul_i32 s{sT0}, s{sT0}, {CMBW}\ns_add_u32 s{sT0}, s{sT0}, {CMB}\nv_add_u32 v{PB+27}, s{sT0}, v{vK}\nv_lshl_add_u32 v{PB+28}, v{vL}, 2, s{sT0}"]
        return L
    def recv():
        lds_spin(lab("ax"), M, vPF, 0, f"v_cmp_gt_u32 vcc, s{sFB}, v{M}")
        for i in range(2):
            b = PB + 12 * i
            A(f"ds_read_b128 {v(b,4)}, v{PB+27} offset:{i*2304}")
            A(f"ds_read_b128 {v(b+4,4)}, v{PB+27} offset:{i*2304+1024}")
            A(f"ds_read_b32 v{b+8}, v{PB+28} offset:{i*2304+2048}")
    HB = [(vKl, vVl, vVl1, 0), (vKl, vVl, vVl1, 1), (7, 8, 9, 0), (7, 8, 9, 1)]
    snd = send_items()
    for u in range(8):
        hb, t = divmod(u, 2); sl = hb & 1
        X = SB + 16 * (u & 3); Xp = SB + 16 * ((u - 1) & 3); Xn = SB + 16 * ((u + 1) & 3)
        tp = 3 if u == 0 else (u - 1) & 1; sp_ = sl if t == 1 else sl ^ 1
        sn = sl if t == 0 else sl ^ 1
        if t == 1 and u < 7: A("s_waitcnt lgkmcnt(0)")
        if u < 7: A(f"{MF} {v(Xn,16)}, {rg(KRG[sn])}, {a(Q+4*(t^1),4)}, {v(C+16*(t^1),16)}")
        for j in range(5): A(f"v_exp_f32 v{X+j}, v{X+j}")
        A(f"{SMF} {a(O+16*tp,16)}, {rg(VRG[sp_],4)}, {v(Xp+8,8)}, v{vIdx}")
        A(f"v_exp_f32 v{X+5}, v{X+5}")
        if u == 0:
            l = lab("akc")
            A(f"v_cmp_gt_u32 vcc, 32, v{vPl}\ns_cbranch_vccnz {l}")
            A.label(l + "_x")
            def sp(l=l):
                A.label(l)
                A(f"ds_read_b32 v{vPl}, v{vCntR} offset:512\ns_waitcnt lgkmcnt(0)\nv_cmp_gt_u32 vcc, 32, v{vPl}\ns_cbranch_vccz {l}_x")
                timeout_exit(l + "_x")
                A(f"s_sleep 1\ns_branch {l}")
            slow.append(sp)
            A(f"ds_add_u32 v{vOwn}, v{vOneA} offset:1024")
        if t == 0 and hb < 3:
            k_, v0_, v1_, pos = HB[hb + 1]
            A(f"ds_read_b128 {rg(KRG[sl^1])}, v{k_} offset:{pos*KST}")
            A(f"ds_read_b128 {rg(VRG[sl^1])}, v{v0_} offset:{pos*KST}")
            A(f"ds_read_b128 {rg(VRG[sl^1],4)}, v{v1_} offset:{pos*KST}")
        if u == 6: recv()
        for j in range(6, 11):
            A(f"v_exp_f32 v{X+j}, v{X+j}")
            if u in (1, 3) and snd and (u == 3 or len(snd) > 4): A(snd.pop(0))
        A(f"{SMF} {a(O+16*t,16)}, {rg(VRG[sl])}, {v(X,8)}, v{vIdx}")
        for j in range(11, 16): A(f"v_exp_f32 v{X+j}, v{X+j}")
    assert not snd
    A("s_nop 2")
    A(f"{SMF} {a(O+16,16)}, {rg(VRG[1],4)}, {v(SB+48+8,8)}, v{vIdx}")
    ST()
    if stamps: A("s_memtime s[98:99]")
    A.label("L_afin")
    if WARM: A.warm_begin()
    for e in range(9): A(f"v_accvgpr_read_b32 v{C+e}, a{O+e}")
    A("s_nop 2")
    for e in range(9): A(f"v_accvgpr_read_b32 v{C+12+e}, a{O+16+e}")
    A(f"""
    v_mov_b32 v2, 0
    v_mov_b32 v3, 0
    s_mov_b32 s4, {hex(f2u(2.0**-110))}
    s_mov_b32 s5, {hex(f2u(2.0**120))}
    s_add_u32 s6, s{sO}, 32768
    s_waitcnt lgkmcnt(0)
    """)
    B_ = [C, C + 12]
    for b0 in B_: A(f"v_add_f32 v{b0+8}, v{b0+8}, v{b0+32+8}")
    for b0 in B_: A(f"v_rcp_f32 v{b0+10}, v{b0+8}")
    for b0 in B_:
        for e in range(4): A(f"v_pk_add_f32 {v(b0+2*e,2)}, {v(b0+2*e,2)}, {v(b0+32+2*e,2)}")
    A(f"""
    v_min_f32 v4, v{B_[0]+8}, v{B_[1]+8}
    v_max_f32 v5, v{B_[0]+8}, v{B_[1]+8}
    v_cmp_nle_f32 {s(sBad,2)}, s4, v4
    v_cmp_nge_f32 vcc, s5, v5
    """)
    for b0 in B_:
        for e in range(4): A(f"v_pk_mul_f32 {v(b0+2*e,2)}, {v(b0+2*e,2)}, {v(b0+10,2)} op_sel_hi:[1,0]")
    A(f"s_or_b64 {s(sBad,2)}, {s(sBad,2)}, vcc")
    for b0 in B_:
        for e in range(4): A(f"v_pk_fma_f32 v[2:3], {v(b0+2*e,2)}, 0, v[2:3] op_sel_hi:[1,0,1]")
    for b0 in B_:
        for e in range(4): A(f"v_cvt_pk_bf16_f32 v{b0+32+e}, v{b0+2*e}, v{b0+2*e+1}")
    A("v_cmp_u_f32 vcc, v2, v3")
    for b0 in B_:
        for e in range(4): A(f"v_min_u32 v{b0+32+e}, -2, v{b0+32+e}")
    A(f"""
    s_or_b64 {s(sBad,2)}, {s(sBad,2)}, vcc
    s_cselect_b32 s4, 2, 1
    s_cmp_eq_u32 s{sFB}, 2
    s_cselect_b32 s5, 1, s4
    s_or_b32 s5, s5, s{sFo}
    s_cmp_lg_u32 s5, 1
    s_cbranch_scc1 L_anost
    buffer_store_dwordx4 {v(B_[0]+32,4)}, v{vK}, {ws}, s{sO} offen sc1
    buffer_store_dwordx4 {v(B_[1]+32,4)}, v{vK}, {ws}, s6 offen sc1
    s_mov_b32 s{sFo}, 2
    """)
    A.label("L_anost")
    A(f"v_mov_b32 v2, s4\nds_write_b32 v{vAF}, v2 offset:256")
    if WARM: A.warm_end("L_wa2", "L_wg_ret", WARM)
    A.label("L_anoflag")
    if stamps:
        ST(); A("s_waitcnt lgkmcnt(0)\ns_sub_u32 s98, s98, s96\ns_add_u32 s%d, s98, s%d" % (ST.base + 2 * ST.n, ST.base)); ST.n += 1
        ST.flush(ws, STAMP, sWave, 2, 3, sT0)
    A(f"s_cmp_eq_u32 s{sFB}, 2\ns_cbranch_scc1 L_end")
    lds_spin("L_as", M, vPF, 256, f"v_cmp_eq_u32 vcc, 0, v{M}")
    A(f"v_readfirstlane_b32 s5, v{M}\ns_max_u32 s4, s4, s5\ns_cmp_lt_u32 s4, 2\ns_cbranch_scc1 L_end")
    A(f"s_mov_b32 s{sFB}, 2\ns_mov_b32 s{sOff}, 0\ns_mov_b32 s{sCnt}, 64\ns_mov_b32 s{sKA}, s{sKb}\ns_waitcnt vmcnt(0)")
    for t in range(4): A(f"v_mov_b32 v{M+t}, 0xff800000")
    A.label("L_afb")
    A(f"buffer_load_dwordx4 {a(KS,4)}, v{vK}, {ws}, s{sKA} offen sc1")
    A("s_waitcnt vmcnt(0)")
    for t in range(4): A(f"{MF} {v(C+16*t,16)}, {a(KS,4)}, {a(Q+4*t,4)}, 0")
    A("s_nop 11")
    for t in range(4): maxtree(M + t, [C + 16 * t], False)
    A(f"s_add_u32 s{sKA}, s{sKA}, 1024\ns_sub_u32 s{sCnt}, s{sCnt}, 1\ns_cmp_lg_u32 s{sCnt}, 0\ns_cbranch_scc1 L_afb")
    build_c()
    for t in range(4): fill_c(t)
    zero_o()
    A(f"s_mov_b32 s{sCnt}, 32\ns_mov_b32 s{sKA}, s{sKVb}")
    A.label("L_afb2")
    A(f"""
    buffer_load_dwordx4 {rg(KRG[0])}, v{vK}, {ws}, s{sKA} offen sc1
    s_mov_b64 exec, {s(sMask,2)}
    buffer_load_dwordx4 {rg(VRG[0])}, v{vV}, {ws}, s{sKA} offen sc1
    buffer_load_dwordx4 {rg(VRG[0],4)}, v{vV}, {ws}, s{sKA} offen offset:512 sc1
    s_mov_b64 exec, -1
    s_waitcnt vmcnt(0)
    """)
    for t in range(4): A(f"{MF} {v(SB+16*t,16)}, {rg(KRG[0])}, {a(Q+4*t,4)}, {v(C+16*t,16)}")
    A("s_nop 8")
    for j in range(64): A(f"v_exp_f32 v{SB+j}, v{SB+j}")
    A("s_nop 2")
    for t in range(4):
        A(f"{SMF} {a(O+16*t,16)}, {rg(VRG[0])}, {v(SB+16*t,8)}, v{vIdx}")
        A(f"{SMF} {a(O+16*t,16)}, {rg(VRG[0],4)}, {v(SB+16*t+8,8)}, v{vIdx}")
    A(f"s_add_u32 s{sKA}, s{sKA}, 1024\ns_sub_u32 s{sCnt}, s{sCnt}, 1\ns_cmp_lg_u32 s{sCnt}, 0\ns_cbranch_scc1 L_afb2")
    A("s_nop 15")
    for x in send_items(): A(x)
    recv()
    A("s_branch L_afin")
    for f in slow: f()
    A.label("L_end")
    A("s_endpgm")
    if opt.get("cpf", 1): A.raw(f".fill (51200 - (. - {K})) / 4, 4, 0xbf800000")

    H_ = Asm()
    H_.raw('''; Fused LayerNorm + QKV + softmax attention + GEGLU FFN + output projection (generated by gen/mega.py).
; queries (QK^T MFMA with -reference in C, exp2, sparse MFMA that takes the bf16 high halves of the fp32 P directly,
; row sums from a ones row). Waves 4-7 ("G"): QKV, gate/up + GELU, down, Wo GEMMs and the K/V LDS ring.
; finite are recomputed with the true row max. Cross-workgroup hand-offs: write-through stores + per-launch tag flags
; or all-ones markers; every wait is bounded.''')
    H_.raw(f"; @launch grid=(256,1,1) block=(512,1,1) lds={LDS}")
    H_.raw('.amdgcn_target "amdgcn-amd-amdhsa--gfx950"\n.text')
    H_.lines += A.lines
    H_.raw(f""".section .rodata,"a"
.p2align 6
.amdhsa_kernel {K}
  .amdhsa_next_free_vgpr {NV+NA}
  .amdhsa_next_free_sgpr 102
  .amdhsa_accum_offset {NV}
  .amdhsa_group_segment_fixed_size 0
  .amdhsa_kernarg_size 80
  .amdhsa_user_sgpr_count 2
  .amdhsa_user_sgpr_kernarg_segment_ptr 1
  .amdhsa_system_sgpr_workgroup_id_x 1
.end_amdhsa_kernel""")
    txt = H_.text()
    check_hazards(txt)
    return txt

if __name__ == "__main__":
    base = {"pfgo": 1}
    open("mega_s.s", "w").write(build(True, base))
    open("mega.s", "w").write(build(False, base))
    open("mega_tr.s", "w").write(build(True, dict(base, atrace=1)))
    open("mega_dbg.s", "w").write(build(True, dict(base, dbgout=10)))
    open("mega_pt.s", "w").write(build(False, dict(base, pretouch=1)))
    open("mega_nc.s", "w").write(build(False, dict(base, cpf=0)))
    open("mega_b.s", "w").write(build(True, dict(base, p1kv=0, p2early=0)))
    open("mega_c.s", "w").write(build(True, dict(base, p1kv=1, p2early=0)))
    open("mega_d.s", "w").write(build(True, dict(base, p1kv=0, p2early=1)))
```

```python
import sys, struct
from asmlib import *
from layout import *
NAME = 'recurrent_scan__softmax_full_mha__glu_gated_geglu__prompt'
def f2u(x): return struct.unpack("<I", struct.pack("<f", x))[0]
MF = "v_mfma_f32_32x32x16_bf16"
SMF = "v_smfmac_f32_32x32x32_bf16"
C1 = -2.0 * 1.4426950408889634 * 0.7978845608028654
C2 = C1 * 0.044715
NV, NA = 144, 112

SLOT = 16384
RB0 = 9472
KST = 1056
RKV = 10
PIECE = 528
XT = RB0 + 5 * SLOT
CMB = RB0 + 8 * SLOT
CMBW = 2 * 2304
CNT = CMB + 4 * CMBW
LDC = CNT + 1024
AFL = LDC + 1024
GO = AFL + 8 * 256
LDS = GO + 256
assert XT + 128 * PIECE <= CNT and LDS <= 163840 and 4 * RKV * KST == RB0 + 2 * SLOT

class Fifo:
    def __init__(self, cap): self.q = []; self.cap = cap; self.since = 0
    def push(self, tag, n=1): self.q += [tag] * n; self.since += n
    def need(self, tag):
        idx = [i for i, t in enumerate(self.q) if t == tag]
        if not idx: return None
        return min(len(self.q) - 1 - idx[-1], self.cap)
    def waited(self, n): self.q = self.q[max(0, len(self.q) - n):] if n else []
    def clear(self): self.q = []

def build(stamps=False, opt=None):
    opt = opt or {}
    TIMEOUT = opt.get("timeout", 200000)
    NG0 = opt.get('ng0', 4)
    PF2MASK = '0xffffffff'
    A = Asm()
    K = NAME + "_kernel"
    ST = Stamps(A, 70, stamps); ST.cyc = opt.get('cyc', False)
    sX, sWq, sWgu, sWd, sWo, sWS, sOut, sDbg = 8, 12, 16, 20, 24, 28, 32, 36
    sWave, sRB, sCG, sT0, sT1, sT2, sTag, sTO = 40, 41, 42, 43, 44, 45, 46, 47
    sGW, sMI, sNI, sM0, sQoff, sGoff, sDoff, sOoffW, sNeed, sFlag, sHst, sBlk, sNb = 48, 49, 50, 51, 52, 53, 54, 55, 56, 57, 58, 59, 60
    sHfl, sC, sD0, sD1, sHld, sXo, sHb, sSt = 61, 62, 64, 65, 66, 67, 68, 69
    sKA, sCnt, sKB2, sBad = 48, 51, 49, 52
    sFB, sOff, sQ, sKVb, sHead, sO, sKb, sFo = 50, 54, 55, 56, 57, 60, 61, 62
    sMask, sQ0, sFQ, sP3, sPKV = 58, 63, 65, 66, 67
    sKVs, sKVm = 52, 1
    ws = s(sWS, 4)
    vL, vT0, vT1, vT2, vHF = 1, 2, 3, 4, 5
    vDq0, vDq1, vDg0, vDg1, vDd0, vDd1 = 6, 7, 8, 9, 10, 11
    vTRn, vTRnH, vTRp0, vTRp0H, vTRp1, vTRp1H = 12, 13, 14, 15, 16, 17
    vCnt, vOne, vP, vL16, vFl, vL128 = 18, 19, 20, 21, 22, 23
    vH0, vO0 = 6, 7
    vCntR = 0
    slow = []
    vKo, vVo, vH1, vO1, vXo, vRW, vRR, vXR = 24, 25, 26, 27, 28, 29, 30, 31
    WFB = [32, 36, 112, 116, 120, 124]
    if opt.get('twice'): WFB = [32, 128, 112, 116, 120, 124]
    ACC0, ACC1, TMP, AD, XR, GR, SR = 40, 56, 72, 40, 104, 128, 112
    vmq = Fifo(63); lq = Fifo(15)
    uid = [0]
    lowprio = [False]
    def lab(p):
        uid[0] += 1; return f"L_{p}{uid[0]}"
    def vwait(tag):
        n = vmq.need(tag)
        if n is not None: A(f"s_waitcnt vmcnt({n})"); vmq.waited(n)
    def lwait(tag):
        n = lq.need(tag)
        if n is not None: A(f"s_waitcnt lgkmcnt({n})"); lq.waited(n)
    def lds(instr, tag):
        if len(lq.q) >= 15:
            A("s_waitcnt lgkmcnt(12)"); lq.waited(12)
        A(instr); lq.push(tag)
    def timeout_exit(lbl):
        A(f"s_sub_u32 s{sTO}, s{sTO}, 1\ns_cmp_lt_i32 s{sTO}, 0\ns_cbranch_scc1 {lbl}")
    def emask(n): return n if isinstance(n, str) else ("-1" if n == 64 else hex((1 << n) - 1))

    A.raw(f".globl {K}\n.p2align 8\n.type {K},@function\n{K}:")
    F0 = opt.get("front0"); FR = opt.get("front")
    A(f"""
    s_cmp_ge_u32 s2, 256
    s_cbranch_scc1 L_end
    """)
    if opt.get("twice"): A("v_mov_b32 v135, 0"); A.label("L_restart")
    def again():
        if opt.get("twice"):
            l = lab("tw")
            A(f"s_waitcnt vmcnt(0) lgkmcnt(0)\ns_barrier\ns_setprio 0\nv_readfirstlane_b32 s4, v135\ns_cmp_lg_u32 s4, 0\ns_cbranch_scc1 {l}\nv_mov_b32 v135, 1\ns_lshl_b32 s4, s40, 6\nv_add_u32 v0, s4, v1\ns_sleep 40\ns_branch L_restart")
            A.label(l)
    if opt.get("xhold") or opt.get("xgo") or opt.get("xln"): A("s_memrealtime s[100:101]")
    def hold(lbl, t):
        A.label(lbl)
        A(f"s_memrealtime s[98:99]\ns_waitcnt lgkmcnt(0)\ns_sub_u32 s98, s98, s100\ns_cmp_lt_u32 s98, {t}\ns_cbranch_scc1 {lbl}")
    if opt.get("scr"):
        A("s_and_b32 s4, s2, 7\ns_lshl_b32 s4, s4, 3\ns_bfe_u32 s5, s2, 0x30003\ns_and_b32 s2, s2, 0xc0\ns_or_b32 s2, s2, s4\ns_or_b32 s2, s2, s5")
    A(f"""
    s_load_dwordx4 s[4:7], s[0:1], 0
    s_load_dwordx2 s[24:25], s[0:1], 16
    s_load_dwordx4 s[16:19], s[0:1], 32
    s_load_dwordx4 s[20:23], s[0:1], 48
    s_load_dwordx4 s[36:39], s[0:1], 64
    """)
    if opt.get("cpf", 1):
        A(f"""
        s_getpc_b64 s[8:9]
        s_lshr_b32 s10, s2, 3
        s_lshl_b32 s10, s10, 7
        s_add_u32 s8, s8, s10
        s_addc_u32 s9, s9, 0
        v_lshlrev_b32 v2, 12, v0
        v_add_co_u32 v2, vcc, s8, v2
        v_mov_b32 v3, s9
        v_cmp_gt_u32 s[10:11], 12, v0
        v_addc_co_u32 v3, vcc, 0, v3, vcc
        s_and_saveexec_b64 s[12:13], s[10:11]
        s_cbranch_execz L_nocpf
        global_load_dword v143, v[2:3], off
        L_nocpf:
        s_mov_b64 exec, -1
        """)
    ST()
    A(f"""
    v_lshrrev_b32 v{vT0}, 6, v0
    v_and_b32 v{vL}, 63, v0
    s_and_b32 s{sT0}, s2, 7
    v_readfirstlane_b32 s{sWave}, v{vT0}
    s_lshr_b32 s{sT1}, s2, 3
    s_lshr_b32 s{sRB}, s{sT0}, 1
    s_lshl_b32 s{sRB}, s{sRB}, 3
    s_and_b32 s{sT2}, s{sT1}, 7
    s_add_u32 s{sRB}, s{sRB}, s{sT2}
    s_and_b32 s{sCG}, s{sT0}, 1
    s_lshl_b32 s{sCG}, s{sCG}, 2
    s_lshr_b32 s{sT2}, s{sT1}, 3
    s_add_u32 s{sCG}, s{sCG}, s{sT2}
    v_lshrrev_b32 v{vT0}, 3, v{vL}
    v_and_b32 v{vT1}, 7, v{vL}                  ; 16B piece
    v_lshlrev_b32 v{vT2}, 10, v{vT0}
    v_lshl_add_u32 v5, v{vT1}, 4, v{vT2}
    s_lshl_b32 s{sT0}, s{sRB}, 16
    s_lshl_b32 s{sT1}, s{sWave}, 13
    s_add_u32 s{sT0}, s{sT0}, s{sT1}            ; x rows of this wave (8 rows)
    s_mov_b32 s{sX+2}, {S*D*2}
    s_mov_b32 s{sX+3}, 0x00020000
    s_mov_b32 s{sWq+2}, {D*1536*2}
    s_mov_b32 s{sWq+3}, 0x00020000
    s_and_b32 s{sGW}, s{sWave}, 3
    s_and_b32 s{sMI}, s{sGW}, 1
    v_lshlrev_b32 v{vL16}, 4, v{vL}
    s_lshl_b32 s{sT1}, s{sGW}, 2
    s_add_u32 s{sT1}, s{sT1}, {CNT}
    v_lshlrev_b32 v{vCnt}, 2, v{vL}
    v_add_u32 v{vCnt}, {CNT+256}, v{vCnt}
    v_writelane_b32 v{vCnt}, s{sT1}, 0
    v_mov_b32 v{vOne}, 1
    v_and_b32 v{vFl}, 3, v{vL}
    v_lshlrev_b32 v{vCntR}, 2, v{vFl}
    v_add_u32 v{vCntR}, {CNT}, v{vCntR}
    s_mov_b32 s{sTO}, {TIMEOUT}
    s_waitcnt lgkmcnt(0)
    s_mov_b32 s{sX}, s4
    s_mov_b32 s{sX+1}, s5
    s_mov_b32 s{sWq}, s6
    s_mov_b32 s{sWq+1}, s7
    """)
    R = 40
    for cb in range(8):
        A(f"buffer_load_dwordx4 {v(R+4*cb,4)}, v5, {s(sX,4)}, s{sT0} offen offset:{cb*128}")
    SRDS = f"""
    s_mov_b32 s{sWS}, s38
    s_mov_b32 s{sWS+1}, s39
    s_mov_b32 s{sWS+2}, {WS_USED}
    s_mov_b32 s{sWS+3}, 0x00020000
    s_mov_b32 s{sDbg+2}, 256
    s_mov_b32 s{sDbg+3}, 0x00020000
    s_bitcmp1_b32 s{sWave}, 1
    s_cselect_b32 s{sWgu}, s18, s16
    s_cselect_b32 s{sWgu+1}, s19, s17
    s_mov_b32 s{sWgu+2}, {D*F*2}
    s_mov_b32 s{sWgu+3}, 0x00020000
    v_lshlrev_b32 v{vT2}, 1, v{vT0}
    v_and_b32 v{vT2}, 4, v{vT2}
    v_xor_b32 v{vT2}, v{vT2}, v{vT1}
    v_lshlrev_b32 v{vHF}, 4, v{vT2}
    s_lshl_b32 s{sM0}, s{sGW}, 12
    s_add_u32 s{sM0}, s{sM0}, {RB0}
    s_mul_i32 s{sBlk}, s{sCG}, 3
    s_add_u32 s{sT1}, s{sCG}, 1
    s_lshr_b32 s{sT1}, s{sT1}, 2
    s_sub_u32 s{sBlk}, s{sBlk}, s{sT1}
    v_mul_u32_u24 v{vDq0}, 3072, v{vT0}
    v_add_u32 v{vDq0}, v{vDq0}, v{vHF}
    v_add_u32 v{vDq1}, {8*3072-1024}, v{vDq0}
    s_mul_i32 s{sQoff}, s{sGW}, {32*3072}
    s_lshl_b32 s{sT2}, s{sCG}, 7
    s_add_u32 s{sQoff}, s{sQoff}, s{sT2}
    """
    A(SRDS)
    A(f"s_cmp_lt_u32 s{sWave}, 4\ns_cbranch_scc1 L_pre_a")
    BASE = [0, 3, 6, 8, 11, 14, 17, 19]
    DSEQ = [BASE[j] for j in range(8) if j % 4 != 3] + [BASE[j] + 1 for j in range(8)] + [BASE[j] + 2 for j in range(8)]
    CSTART = {0: 0, 6: 1, 14: 2}
    CMASK = [0x0fff0fff, 0xffffffff, 0xffffffff]
    def dma_pieces(kind, idx, slot):
        if kind == "q":
            panel = (1, 2, 0)[idx // 4]; o = (idx % 4) * 128 * 3072 + panel * 1024
            srd, so, v0_, v1_, o2 = sWq, sQoff, vDq0, vDq1, o + 16 * 3072
        elif kind == "g":
            o = (idx % 8) * 64 * 2752 + (idx // 8) * 128
            srd, so, v0_, v1_, o2 = sWgu, sGoff, vDg0, vDg1, o + 16 * 2752
        elif kind == "d":
            o = DSEQ[2 * idx] * 64 * 1024; o2 = DSEQ[2 * idx + 1] * 64 * 1024
            srd, so, v0_, v1_ = sWd, sDoff, vDd0, vDd1
        else:
            o = idx * 32 * 1024; o2 = o + 16 * 1024
            srd, so, v0_, v1_ = sWo, sOoffW, vDd0, vDd1
        tag = ("dma", kind, idx)
        def p0():
            A(f"s_add_u32 m0, s{sM0}, {slot*SLOT}\ns_add_u32 s{sD0}, s{so}, {o}")
            A(f"buffer_load_dwordx4 v{v0_}, {s(srd,4)}, s{sD0} offen lds"); vmq.push(tag)
        def p1():
            if lowprio[0]: A(f"s_add_u32 m0, s{sM0}, {slot*SLOT}\ns_nop 0")
            A(f"buffer_load_dwordx4 v{v1_}, {s(srd,4)}, s{sD0} offen offset:1024 lds"); vmq.push(tag)
        def p2():
            if lowprio[0]: A(f"s_add_u32 m0, s{sM0}, {slot*SLOT}")
            A(f"s_add_u32 s{sD0}, s{so}, {o2 - 2048}")
            A(f"buffer_load_dwordx4 v{v0_}, {s(srd,4)}, s{sD0} offen offset:2048 lds"); vmq.push(tag)
        def p3():
            if lowprio[0]: A(f"s_add_u32 m0, s{sM0}, {slot*SLOT}\ns_nop 0")
            A(f"buffer_load_dwordx4 v{v1_}, {s(srd,4)}, s{sD0} offen offset:3072 lds"); vmq.push(tag)
        if opt.get("xnodma") and not (kind == "q" and idx < 5): return []
        if opt.get("xhalfdma") and not (kind == "q" and idx < 5): return [p0, p1]
        return [p0, p1, p2, p3]
    def dma(kind, idx, slot):
        cap = opt.get("ldcap", 40)
        for p in dma_pieces(kind, idx, slot):
            if len(vmq.q) > cap:
                A(f"s_waitcnt vmcnt({cap})"); vmq.waited(cap)
            p()
    def ddq(g): return ("q", g, g % 8) if g < 12 else ("g", g - 12, g % 8)
    GUADDR = f"""
    v_mul_u32_u24 v{vDg0}, 2752, v{vT0}
    v_add_u32 v{vDg0}, v{vDg0}, v{vHF}
    v_add_u32 v{vDg1}, {8*2752-1024}, v{vDg0}
    s_mul_i32 s{sGoff}, s{sMI}, {32*2752}
    s_lshl_b32 s{sT0}, s{sBlk}, 7
    s_add_u32 s{sGoff}, s{sGoff}, s{sT0}
    """
    A(f"""
    ; L2 warm-up of this XCD's share of Wqkv (speed only): rows 16r + (l>>2), 4 lines, panel by wave
    v_bfe_u32 v{vP}, v{vL}, 2, 2
    v_mul_u32_u24 v{vP}, 3072, v{vP}
    v_lshl_add_u32 v{vP}, v{vFl}, 7, v{vP}
    v_lshrrev_b32 v{vKo}, 4, v{vL}
    v_lshl_add_u32 v{vP}, v{vKo}, 10, v{vP}
    s_lshr_b32 s{sT1}, s2, 3
    s_mul_i32 s{sT1}, s{sT1}, {16*3072}
    s_mul_i32 s{sT0}, s{sGW}, {4*3072}
    s_add_u32 s{sT1}, s{sT1}, s{sT0}
    s_and_b32 s{sT0}, s2, 1
    s_lshl_b32 s{sT0}, s{sT0}, 9
    s_add_u32 s{sT1}, s{sT1}, s{sT0}
    s_lshr_b32 s{sNI}, s{sGW}, 1
    v_bfe_u32 v{vT2}, v{vL}, 2, 2
    v_lshlrev_b32 v{vTRp0}, 7, v{vT2}
    v_bfe_u32 v{vKo}, v{vL}, 4, 1
    v_lshl_add_u32 v{vTRp0}, v{vKo}, 5, v{vTRp0}
    v_lshl_add_u32 v{vTRp0}, v{vFl}, 3, v{vTRp0}
    v_lshrrev_b32 v{vH1}, 1, v{vT2}             ; r>>1
    v_lshrrev_b32 v{vO1}, 5, v{vL}              ; half
    v_xor_b32 v{vFl}, s{sNI}, v{vH1}
    v_lshl_add_u32 v{vTRn}, v{vFl}, 6, v{vTRp0}
    v_lshl_add_u32 v{vTRn}, v{vO1}, 10, v{vTRn}
    v_add_u32 v{vTRn}, {RB0}, v{vTRn}
    v_add_u32 v{vTRnH}, 65536, v{vTRn}
    v_and_b32 v{vRW}, 31, v{vL}
    v_mul_u32_u24 v{vXR}, {PIECE}, v{vO1}
    v_lshl_add_u32 v{vXR}, v{vRW}, 4, v{vXR}
    s_mul_i32 s{sT0}, s{sMI}, {64*PIECE}
    s_add_u32 s{sT0}, s{sT0}, {XT}
    v_add_u32 v{vXR}, s{sT0}, v{vXR}
    s_mov_b64 exec, {'0xffffffff' if opt.get('p1kv', 1) else '0xffff'}
    buffer_load_dword v143, v{vP}, {s(sWq,4)}, s{sT1} offen offset:1024
    s_mov_b64 exec, -1
    ; all-ones marker into this wave's Q tiles (replaced by the result later)
    s_lshl_b32 s{sSt}, s{sRB}, 11
    s_lshl_b32 s{sT0}, s{sMI}, 10
    s_add_u32 s{sSt}, s{sSt}, s{sT0}
    s_lshl_b32 s{sT0}, s{sCG}, 18
    s_add_u32 s{sSt}, s{sSt}, s{sT0}
    s_lshl_b32 s{sT0}, s{sNI}, 17
    s_add_u32 s{sSt}, s{sSt}, s{sT0}
    s_add_u32 s{sD1}, s{sSt}, 65536
    v_mov_b32 v136, -1
    v_mov_b32 v137, -1
    v_mov_b32 v138, -1
    v_mov_b32 v139, -1
    v_lshlrev_b32 v140, 13, v{vO1}
    v_lshl_add_u32 v140, v{vRW}, 2, v140
    s_lshr_b32 s0, s{sSt}, 3
    s_add_u32 s0, s0, {MFO}
    s_mov_b32 s3, 1
    s_setprio {opt.get("glnprio", 1)}
    """)
    GE = opt.get("ge", 0)
    for g in range(GE): dma(*ddq(g))
    vmq.clear()
    A(f"s_waitcnt vmcnt({1 + 4 * GE})\ns_branch L_ln")
    GLATE = [x.strip() for x in (GUADDR + f"""
    s_mov_b32 s{sOut}, s22
    s_mov_b32 s{sOut+1}, s23
    s_mov_b32 s{sOut+2}, {S*D*2}
    s_mov_b32 s{sOut+3}, 0x00020000
    s_mov_b32 s{sWd+2}, {F*D*2}
    s_mov_b32 s{sWd+3}, 0x00020000
    s_mov_b32 s{sWo+2}, {D*D*2}
    s_mov_b32 s{sWo+3}, 0x00020000
    v_lshl_add_u32 v{vDd0}, v{vT0}, 10, v{vHF}
    v_add_u32 v{vDd1}, {8*1024-1024}, v{vDd0}
    s_lshl_b32 s{sT2}, s{sCG}, 7
    s_lshl_b32 s{sDoff}, s{sGW}, 14
    s_add_u32 s{sDoff}, s{sDoff}, s{sT2}
    s_lshl_b32 s{sOoffW}, s{sGW}, 17
    s_add_u32 s{sOoffW}, s{sOoffW}, s{sT2}
    s_lshl_b32 s{sXo}, s{sRB}, 16
    s_add_u32 s{sXo}, s{sXo}, s{sT2}
    s_and_b32 s{sNb}, s{sCG}, 3
    v_lshl_add_u32 v{vTRp0}, v{vH1}, 6, v{vTRp0}
    v_lshl_add_u32 v{vTRp0}, v{vO1}, 9, v{vTRp0}
    v_add_u32 v{vTRp0}, s{sM0}, v{vTRp0}
    s_lshl_b32 s{sT0}, s{sNI}, 6
    v_xor_b32 v{vTRp0}, s{sT0}, v{vTRp0}
    v_xor_b32 v{vTRp1}, 64, v{vTRp0}
    v_add_u32 v{vTRp0H}, 65536, v{vTRp0}
    v_add_u32 v{vTRp1H}, 65536, v{vTRp1}
    v_lshlrev_b32 v{vL128}, 7, v{vL}
    v_lshlrev_b32 v{vVo}, 16, v{vKo}
    v_lshl_add_u32 v{vVo}, v{vO1}, 8, v{vVo}
    v_and_b32 v{vT2}, 15, v{vL}
    v_lshl_add_u32 v{vVo}, v{vT2}, 4, v{vVo}
    v_add_u32 v{vVo}, {VF}, v{vVo}
    v_lshlrev_b32 v{vXo}, 10, v{vRW}
    v_lshl_add_u32 v{vXo}, v{vO1}, 3, v{vXo}
    v_lshl_add_u32 v{vRR}, v{vO1}, 3, v{vXo}
    s_lshl_b32 s{sT0}, s{sGW}, 12
    v_add_u32 v{vRW}, s{sT0}, v{vL16}
    s_and_b32 s{sKVs}, s2, 7
    s_lshl_b32 s{sKVs}, s{sKVs}, 2
    s_bfe_u32 s{sT0}, s2, 0x20003
    s_add_u32 s{sKVs}, s{sKVs}, s{sT0}
    s_lshl_b32 s{sKVs}, s{sKVs}, 16
    s_lshl_b32 s{sT0}, s{sNI}, 15
    s_add_u32 s{sKVs}, s{sKVs}, s{sT0}
    s_lshl_b32 s{sT0}, s{sMI}, 21
    s_add_u32 s{sKVs}, s{sKVs}, s{sT0}
    s_add_u32 s{sKVs}, s{sKVs}, {KF}
    s_mul_i32 s{sKVm}, s{sGW}, {RKV*KST}
    s_lshl_b32 s{sT0}, s{sMI}, 15
    s_add_u32 s{sXo}, s{sXo}, s{sT0}
    s_lshl_b32 s{sT0}, s{sNI}, 6
    s_add_u32 s{sXo}, s{sXo}, s{sT0}
    v_and_b32 v{vKo}, 0x33, v{vL}
    v_lshrrev_b32 v{vT2}, 1, v{vL}
    v_and_b32 v{vT2}, 4, v{vT2}
    v_lshlrev_b32 v{vO1}, 1, v{vL}
    v_and_b32 v{vO1}, 8, v{vO1}
    v_or3_b32 v{vKo}, v{vKo}, v{vT2}, v{vO1}
    v_lshlrev_b32 v{vKo}, 4, v{vKo}
    v_add_u32 v{vKo}, {KF}, v{vKo}
    s_mul_i32 s{sT0}, s{sMI}, {86*1024}
    v_add_u32 v{vH0}, s{sT0}, v{vL16}
    s_sub_u32 s{sT0}, {86*1024}, s{sT0}
    v_add_u32 v{vH1}, s{sT0}, v{vL16}
    s_lshl_b32 s{sT0}, s{sMI}, 15
    v_add_u32 v{vO0}, s{sT0}, v{vL16}
    v_xor_b32 v{vO1}, 32768, v{vO0}
    v_lshlrev_b32 v{vXR}, 10, v{vL}
    v_mov_b32 v{vT2}, 0
    v_mov_b32 v{vT0}, {hex(f2u(C1))}
    v_mov_b32 v{vT1}, {hex(f2u(C1))}
    s_lshl_b32 s{sT2}, s{sRB}, 1
    s_add_u32 s{sT2}, s{sT2}, s{sMI}
    s_mul_i32 s{sHst}, s{sT2}, {86*1024}
    s_lshl_b32 s{sT1}, s{sCG}, 1
    s_add_u32 s{sT1}, s{sT1}, s{sNI}
    s_lshl_b32 s{sFlag}, s{sT1}, 13
    s_lshl_b32 s{sT0}, s{sT2}, 7
    s_add_u32 s{sFlag}, s{sFlag}, s{sT0}
    s_add_u32 s{sFlag}, s{sFlag}, {FQ}
    s_lshl_b32 s{sT0}, s{sBlk}, 12
    s_lshl_b32 s{sT1}, s{sNI}, 11
    s_add_u32 s{sHst}, s{sHst}, s{sT0}
    s_add_u32 s{sHst}, s{sHst}, s{sT1}
    s_add_u32 s{sHst}, s{sHst}, {HF}
    s_lshl_b32 s{sHld}, s{sRB}, 14
    s_add_u32 s{sHld}, s{sHld}, {FH}
    s_lshl_b32 s{sT0}, s{sCG}, 9
    s_lshl_b32 s{sT1}, s{sGW}, 7
    s_add_u32 s{sHfl}, s{sT0}, s{sT1}
    s_add_u32 s{sHfl}, s{sHfl}, s{sHld}
    s_mul_i32 s{sHb}, s{sRB}, {2*86*1024}
    s_lshl_b32 s{sT0}, s{sGW}, 10
    s_add_u32 s{sHb}, s{sHb}, s{sT0}
    s_add_u32 s{sHb}, s{sHb}, {HF}
    s_mov_b32 s{sC}, {hex(f2u(QSCALE))}
    s_mov_b32 s{sC+1}, {hex(f2u(QSCALE))}
    """).split("\n") if x.strip()]
    vK, vV, vIdx, vAF, vPF, vF = 10, 11, 12, 13, 14, 15
    M, C, SB = 6, 16, 80
    aOnes, aPF, aP3, aPKV, aL128, aGo = 24, 25, 26, 27, 28, 29
    O, Q, KS = 0, 64, 104
    KRG = [("a", 80), ("a", 92)]
    VRG = [("a", 84), ("a", 96)]
    def rg(x, off=0, n=4): return (a if x[0] == "a" else v)(x[1] + off, n)
    def zero_o(n=64):
        for i in range(n): A(f"v_accvgpr_write_b32 a{O+i}, 0")
    A.label("L_pre_a")
    if opt.get("pretouch"):
        A(f"""
        s_mov_b32 s{sOut}, s22
        s_mov_b32 s{sOut+1}, s23
        s_mov_b32 s{sOut+2}, {S*D*2}
        s_mov_b32 s{sOut+3}, 0x00020000
        s_mov_b32 s{sWd+2}, {F*D*2}
        s_mov_b32 s{sWd+3}, 0x00020000
        s_mov_b32 s{sWo+2}, {D*D*2}
        s_mov_b32 s{sWo+3}, 0x00020000
        v_lshlrev_b32 v{vF}, 21, v{vL}
        s_lshl_b32 s{sT0}, s2, 7
        s_cmp_lg_u32 s{sMI}, 0
        s_cbranch_scc1 L_pt1
        s_mov_b64 exec, 0x1fff
        buffer_load_dword v143, v{vF}, {ws}, s{sT0} offen sc1
        s_mov_b64 exec, 1
        buffer_load_dword v143, v{vF}, {s(sWgu,4)}, s{sT0} offen
        s_branch L_pt2
        L_pt1:
        s_mov_b64 exec, 1
        buffer_load_dword v143, v{vF}, {s(sOut,4)}, s{sT0} offen sc1
        buffer_load_dword v143, v{vF}, {s(sWd,4)}, s{sT0} offen
        buffer_load_dword v143, v{vF}, {s(sWo,4)}, s{sT0} offen
        L_pt2:
        s_mov_b64 exec, -1
        """)
    A(f"""
    v_mov_b32 v{vF}, 0
    ds_write_b32 v{vCnt}, v{vF}
    ds_write_b32 v{vCnt}, v{vF} offset:512
    ds_write_b32 v{vCnt}, v{vF} offset:1024
    v_add_u32 v{vCnt}, 1024, v{vCnt}
    v_lshlrev_b32 v{aGo}, 2, v{vL}
    s_lshl_b32 s{sT0}, s{sWave}, 9
    s_add_u32 s{sT0}, s{sT0}, {AFL}
    v_add_u32 v{vAF}, s{sT0}, v{aGo}
    s_xor_b32 s{sT0}, s{sWave}, 2
    s_lshl_b32 s{sT0}, s{sT0}, 9
    s_add_u32 s{sT0}, s{sT0}, {AFL}
    v_add_u32 v{vPF}, s{sT0}, v{aGo}
    v_add_u32 v{aGo}, {GO}, v{aGo}
    ds_write_b32 v{vAF}, v{vF}
    ds_write_b32 v{vAF}, v{vF} offset:256
    ds_write_b32 v{aGo}, v{vF}
    v_bfe_u32 v{aP3}, v{vL}, 2, 2
    v_mul_u32_u24 v{aP3}, 3072, v{aP3}
    v_lshl_add_u32 v{aP3}, v{vFl}, 7, v{aP3}
    v_bfe_u32 v{aPF}, v{vL}, 4, 1
    v_xor_b32 v{aPF}, 1, v{aPF}
    v_lshl_add_u32 v{aP3}, v{aPF}, 11, v{aP3}
    s_lshr_b32 s7, s2, 3
    s_lshl_b32 s7, s7, 2
    s_add_u32 s7, s7, s{sWave}
    s_mul_i32 s7, s7, {4*3072}
    s_and_b32 s{sT0}, s2, 1
    s_lshl_b32 s{sT0}, s{sT0}, 9
    s_add_u32 s7, s7, s{sT0}
    s_and_b32 s{sT0}, s{sCG}, 3
    s_cmp_eq_u32 s{sT0}, 3
    s_addc_u32 s{sBlk}, s{sBlk}, 0
    v_lshrrev_b32 v30, 1, v{vL}
    v_mul_u32_u24 v30, 2752, v30
    v_and_b32 v31, 1, v{vL}
    v_mul_u32_u24 v31, 124, v31
    v_add_u32 v30, v30, v31
    s_and_b32 s68, s{sRB}, 7
    s_lshl_b32 s68, s68, 1
    s_add_u32 s68, s68, s{sMI}
    s_mul_i32 s68, s68, {16*2752}
    s_lshl_b32 s{sT0}, s{sBlk}, 7
    s_add_u32 s68, s68, s{sT0}
    ; all-ones marker into the two O tiles this wave will produce
    s_lshr_b32 s{sO}, s2, 5
    s_lshl_b32 s{sO}, s{sO}, 1
    s_add_u32 s{sO}, s{sO}, s{sMI}
    s_lshl_b32 s{sO}, s{sO}, 1
    s_lshr_b32 s{sT0}, s{sWave}, 1
    s_add_u32 s{sO}, s{sO}, s{sT0}
    s_lshl_b32 s{sO}, s{sO}, 16
    s_and_b32 s{sT0}, s2, 7
    s_lshl_b32 s{sT0}, s{sT0}, 12
    s_add_u32 s{sO}, s{sO}, s{sT0}
    s_bfe_u32 s{sT0}, s2, 0x20003
    s_lshl_b32 s{sT0}, s{sT0}, 10
    s_add_u32 s{sO}, s{sO}, s{sT0}
    s_add_u32 s{sO}, s{sO}, {OF}
    s_or_b32 s{sT1}, s2, s{sWave}
    s_cmp_lg_u32 s{sT1}, 0
    s_cbranch_scc1 L_pre_a2
    s_memrealtime s[4:5]
    s_waitcnt lgkmcnt(0)
    s_or_b32 s4, s4, 1
    v_mov_b32 v{vIdx}, s4
    buffer_store_dword v{vIdx}, v{vF}, {s(sDbg,4)}, 0 offen sc1
    """)
    A.label("L_pre_a2")
    if opt.get("pall"):
        A(f"""
        s_mov_b32 s{sWd+2}, {F*D*2}
        s_mov_b32 s{sWd+3}, 0x00020000
        s_mov_b32 s{sWo+2}, {D*D*2}
        s_mov_b32 s{sWo+3}, 0x00020000
        v_mul_u32_u24 v141, 2752, v{vL}
        s_and_b32 s{sT0}, s{sRB}, 7
        s_mul_i32 s{sT0}, s{sT0}, {64*2752}
        s_mul_i32 s{sT1}, s{sCG}, 384
        s_add_u32 s{sT0}, s{sT0}, s{sT1}
        s_mul_i32 s{sT1}, s{sMI}, 124
        s_add_u32 s{sT1}, s{sT0}, s{sT1}
        buffer_load_dword v143, v141, {s(sWgu,4)}, s{sT1} offen
        s_lshl_b32 s{sT1}, s{sMI}, 7
        s_add_u32 s{sT1}, s{sT0}, s{sT1}
        buffer_load_dword v143, v141, {s(sWgu,4)}, s{sT1} offen offset:252
        v_lshlrev_b32 v142, 10, v{vL}
        s_and_b32 s{sT0}, s{sRB}, 7
        s_lshl_b32 s{sT1}, s{sCG}, 7
        s_mul_i32 s{sT2}, s{sT0}, {172*1024}
        s_add_u32 s{sT2}, s{sT2}, s{sT1}
        s_lshl_b32 s4, s{sGW}, 16
        s_add_u32 s{sT2}, s{sT2}, s4
        buffer_load_dword v143, v142, {s(sWd,4)}, s{sT2} offen
        s_lshl_b32 s{sT0}, s{sT0}, 16
        s_add_u32 s{sT0}, s{sT0}, s{sT1}
        buffer_load_dword v143, v142, {s(sWo,4)}, s{sT0} offen
        s_waitcnt vmcnt(0)
        s_sleep 40
        """)
    A("s_mov_b32 s3, 0\ns_waitcnt vmcnt(0)")
    NEARLY = opt.get("nearly", 2)
    if GE: NEARLY = 0
    for g in range(NEARLY): dma(*ddq(g))
    if NEARLY > opt.get("p1at", 3):
        A(f"s_mov_b64 exec, {'0xffff0000' if opt.get('p1kv', 1) else '0xffffffff'}\nbuffer_load_dword v143, v{aP3}, {s(sWq,4)}, s7 offen")
        if opt.get("p2early", 1): A(f"s_mov_b64 exec, {PF2MASK}\nbuffer_load_dword v143, v30, {s(sWgu,4)}, s68 offen")
        A("s_mov_b64 exec, -1")
    vmq.clear()
    A.label("L_ln")
    ST()
    SA, TT, vXW = 104, 80, 112
    A(f"""
    s_mov_b32 s4, 0x3f803f80
    s_mov_b32 s5, 0x00003f80
    s_mov_b32 s6, 0x3f800000
    """)
    for i in range(32):
        a1 = SA + (i & 1); a2 = SA + 2 + (i & 1)
        A(f"v_dot2_f32_bf16 v{a1}, v{R+i}, s4, {'0' if i < 2 else 'v%d' % a1}")
        A(f"v_dot2_f32_bf16 v{a2}, v{R+i}, v{R+i}, {'0' if i < 2 else 'v%d' % a2}")
    m_, q_, mb_, rs_ = SA, SA + 2, SA + 4, SA + 6
    A(f"""
    s_lshr_b32 s{sT0}, s{sWave}, 2
    s_mul_i32 s{sT0}, s{sT0}, {64*PIECE}
    s_lshl_b32 s{sT1}, s{sGW}, 7
    v_add_f32 v{m_}, v{m_}, v{m_+1}
    v_add_f32 v{q_}, v{q_}, v{q_+1}
    s_add_u32 s{sT0}, s{sT0}, s{sT1}
    v_add_f32_dpp v{m_}, v{m_}, v{m_} quad_perm:[1,0,3,2] row_mask:0xf bank_mask:0xf
    v_add_f32_dpp v{q_}, v{q_}, v{q_} quad_perm:[1,0,3,2] row_mask:0xf bank_mask:0xf
    s_add_u32 s{sT0}, s{sT0}, {XT}
    v_add_f32_dpp v{m_}, v{m_}, v{m_} quad_perm:[2,3,0,1] row_mask:0xf bank_mask:0xf
    v_add_f32_dpp v{q_}, v{q_}, v{q_} quad_perm:[2,3,0,1] row_mask:0xf bank_mask:0xf
    v_mul_u32_u24 v{vXW}, {PIECE}, v{vT1}
    v_add_f32_dpp v{m_}, v{m_}, v{m_} row_half_mirror row_mask:0xf bank_mask:0xf
    v_add_f32_dpp v{q_}, v{q_}, v{q_} row_half_mirror row_mask:0xf bank_mask:0xf
    v_mul_f32 v{m_}, {hex(f2u(1.0/512))}, v{m_}
    v_mul_f32 v{q_}, {hex(f2u(1.0/512))}, v{q_}
    v_cvt_pk_bf16_f32 v{mb_}, v{m_}, v{m_}
    v_fma_f32 v{q_}, -v{m_}, v{m_}, v{q_}
    v_and_b32 v{mb_}, 0xffff0000, v{mb_}
    v_max_f32 v{q_}, 0, v{q_}
    v_xor_b32 v{mb_}, 0x80000000, v{mb_}
    v_cvt_pk_bf16_f32 v{q_}, v{q_}, v{q_}
    v_and_b32 v{q_}, 0xffff0000, v{q_}
    v_add_f32 v{q_}, {hex(f2u(1e-5))}, v{q_}
    v_cvt_pk_bf16_f32 v{q_}, v{q_}, v{q_}
    v_and_b32 v{q_}, 0xffff0000, v{q_}
    v_sqrt_f32 v{q_}, v{q_}
    v_lshl_add_u32 v{vXW}, v{vT0}, 4, v{vXW}
    v_cvt_pk_bf16_f32 v{q_}, v{q_}, v{q_}
    v_and_b32 v{q_}, 0xffff0000, v{q_}
    v_rcp_f32 v{rs_}, v{q_}
    v_rcp_f32 v{rs_+1}, v{q_}
    v_add_u32 v{vXW}, s{sT0}, v{vXW}
    """)
    for cb in range(8):
        t = TT + 8 * (cb & 1); r = R + 4 * cb
        for e in range(4):
            A(f"v_dot2_f32_bf16 v{t+2*e}, v{r+e}, s5, v{mb_}")
            A(f"v_dot2_f32_bf16 v{t+2*e+1}, v{r+e}, s6, v{mb_}")
        if cb > 0: A(f"ds_write_b128 v{vXW}, {v(R+4*(cb-1),4)} offset:{(cb-1)*8*PIECE}")
        else: A("s_nop 0")
        for e in range(4): A(f"v_pk_mul_f32 {v(t+2*e,2)}, {v(t+2*e,2)}, {v(rs_,2)}")
        for e in range(4): A(f"v_cvt_pk_bf16_f32 v{r+e}, v{t+2*e}, v{t+2*e+1}")
    A(f"ds_write_b128 v{vXW}, {v(R+28,4)} offset:{7*8*PIECE}")
    A("s_cmp_eq_u32 s3, 0\ns_cbranch_scc1 L_attn")

    def get_tag(vt, vz, lbl):
        A(f"v_mov_b32 v{vz}, 0")
        A.label(lbl)
        A(f"""
        buffer_load_dword v{vt}, v{vz}, {s(sDbg,4)}, 0 offen sc1
        s_waitcnt vmcnt(0)
        v_readfirstlane_b32 s{sTag}, v{vt}
        """)
        timeout_exit(lbl + "_x")
        A(f"s_cmp_eq_u32 s{sTag}, 0\ns_cbranch_scc1 {lbl}")
        A.label(lbl + "_x")
    def spin_flags(lbl, vf, voff, soff, nlanes, sleep=4, first=False):
        A.label(lbl)
        if first: A(f"s_sleep {sleep}")
        A(f"""
        s_mov_b64 exec, {emask(nlanes)}
        buffer_load_dword v{vf}, v{voff}, {ws}, s{soff} offen sc1
        s_waitcnt vmcnt(0)
        v_cmp_ne_u32 vcc, s{sTag}, v{vf}
        s_mov_b64 exec, -1
        s_cbranch_vccz {lbl}_x
        """)
        timeout_exit(lbl + "_x")
        if not first: A(f"s_sleep {sleep}")
        A(f"s_branch {lbl}")
        A.label(lbl + "_x")
    def lds_spin(lbl, vdst, vaddr, off, cmp, sleep=0):
        A.label(lbl)
        A(f"ds_read_b32 v{vdst}, v{vaddr} offset:{off}\ns_waitcnt lgkmcnt(0)\n{cmp}\ns_cbranch_vccz {lbl}_x")
        timeout_exit(lbl + "_x")
        if sleep: A(f"s_sleep {sleep}")
        A(f"s_branch {lbl}")
        A.label(lbl + "_x")

    def xn(ks): return a(4 * ks, 4) if ks < 28 else v(96 + 4 * (ks - 28), 4)
    def xread(ks): lds(f"ds_read_b128 {xn(ks)}, v{vXR} offset:{2*ks*PIECE}", "xn")
    def check(fresh, off=0, need=None, sleep=1, reg=None, tag="poll"):
        l = lab("chk"); nd = f"s{sNeed}" if need is None else str(need)
        vP = reg if reg is not None else 20
        cmp = f"v_cmp_gt_u32 vcc, {nd}, v{vP}"
        if lowprio[0]: cmp = f"s_setprio 3\n{cmp}\ns_setprio 0"
        if fresh:
            lds(f"ds_read_b32 v{vP}, v{vCntR} offset:{off}", tag)
        lwait(tag)
        A(f"{cmp}\ns_cbranch_vccnz {l}")
        A.label(l + "_x")
        def sp():
            A.label(l)
            A(f"ds_read_b32 v{vP}, v{vCntR} offset:{off}\ns_waitcnt lgkmcnt(0)\n{cmp}\ns_cbranch_vccz {l}_x")
            timeout_exit(l + "_x")
            if lp or sleep > 1: A(f"s_sleep {sleep}")
            A(f"s_branch {l}")
        lp = lowprio[0]
        slow.append(sp)
        if need is None: A(f"s_add_u32 s{sNeed}, s{sNeed}, 1")
    def segment(stages, hooks=None, LA=opt.get('la', 5)):
        hooks = hooks or {}
        NB = len(WFB); assert NB >= LA + 1
        flat = [(si, fi, fr) for si, st in enumerate(stages) for fi, fr in enumerate(st["frags"])]
        sq = []
        for i in range(len(flat) + LA):
            if i < len(flat):
                si, fi, fr = flat[i]; st = stages[si]; nfr = len(st["frags"])
                if fi == 0:
                    assert not sq
                    if "label" in st: A.label(st["label"])
                    if opt.get("atrace") and lowprio[0]:
                        A(f"s_waitcnt lgkmcnt(0)\ns_mov_b32 s99, m0\ns_mov_b32 m0, s0\ns_add_u32 s0, s0, 1\ns_setprio 3\nv_writelane_b32 v31, s100, m0\ns_setprio {0 if lowprio[0] else 1}\ns_memrealtime s[100:101]\ns_mov_b32 m0, s99"); lq.clear()
                    if st["sync"]: check(si == 0, *st.get("chk", ()))
                    if "pre" in st: st["pre"]()
                    sq += st["pieces"]
                lo, hi, o0, o1, _ = fr
                base = st["slot"] * SLOT; reg = lo
                if base >= 65536: base -= 65536; reg = hi
                w = WFB[i % NB]
                lds(f"ds_read_b64_tr_b16 {v(w,2)}, v{reg} offset:{base+o0}", ("fr", i))
                lds(f"ds_read_b64_tr_b16 {v(w+2,2)}, v{reg} offset:{base+o1}", ("fr", i))
                if fi == st.get("waitat", st.get("pubat", 2)) and st["nxt"] is not None: vwait(st["nxt"])
                if fi == st.get("pubat", 2) and st["pub"]: lds(f"ds_add_u32 v{vCnt}, v{vOne}", "add")
                if len(sq) * 2 > (nfr - fi) + (opt.get("odd", 1) and fi % 2 == 0 and 0) or fi % 2 == opt.get("odd", 1):
                    k = -(-len(sq) // (nfr - fi))
                    for _ in range(k): sq.pop(0)()
                if fi == nfr - 2 and si + 1 < len(stages) and stages[si + 1]["sync"]:
                    lds(f"ds_read_b32 v{vP}, v{vCntR} offset:{stages[si + 1].get('chk', (0,))[0]}", "poll")
                if (si, fi) in hooks: hooks[(si, fi)]()
            j = i - LA
            if j >= 0:
                if opt.get("pairw", 1) and j % 2 == 0 and lq.need(("fr", j + 1)) is not None and len(flat[j][2][4]) == 1: lwait(("fr", j + 1))
                lwait(("fr", j))
                for m in flat[j][2][4]:
                    if callable(m): m()
                    elif opt.get("xnogm") and lowprio[0]: A("s_nop 7")
                    else: A(m.format(w=v(WFB[j % NB], 4)))
    if F0: ST()
    if opt.get("xln"): hold("L_hln", opt["xln"])
    A("s_setprio 1\ns_waitcnt vmcnt(0) lgkmcnt(0)\ns_barrier" if GE else "s_setprio 1\ns_waitcnt lgkmcnt(0)\ns_barrier")
    ST()
    for ks in range(8): xread(ks)
    def qkv_epi(p):
        acc = (ACC0, ACC1, ACC0)[p]; pk = TMP + 8 * p
        def f():
            if p == 2:
                for i in range(8): A(f"v_pk_mul_f32 {v(acc+2*i,2)}, {v(acc+2*i,2)}, {s(sC,2)}")
            for i in range(8): A(f"v_cvt_pk_bf16_f32 v{pk+i}, v{acc+2*i}, v{acc+2*i+1}")
            for i in range(8): A(f"v_min_u32 v{pk+i}, -2, v{pk+i}")
            if p == 1:
                A(f"buffer_store_dwordx4 {v(pk,4)}, v{vVo}, {ws}, s{sSt} offen sc1")
                A(f"buffer_store_dwordx4 {v(pk+4,4)}, v{vVo}, {ws}, s{sSt} offen offset:512 sc1")
            else:
                vo = vKo if p == 0 else vL16
                A(f"s_add_u32 s{sT0}, s{sSt}, 65536")
                A(f"buffer_store_dwordx4 {v(pk,4)}, v{vo}, {ws}, s{sSt} offen sc1")
                A(f"buffer_store_dwordx4 {v(pk+4,4)}, v{vo}, {ws}, s{sT0} offen sc1")
            vmq.push("st", 2)
        return f
    stages = []
    for q in range(12):
        p, part = divmod(q, 4); acc = v((ACC0, ACC1, ACC0)[p], 16)
        frags = []
        for kk in range(8):
            ks = part * 8 + kk; c = "0" if ks == 0 else acc
            m = f"{MF} {acc}, {xn(ks)}, {{w}}, {c}" if p == 1 else f"{MF} {acc}, {{w}}, {xn(ks)}, {c}"
            frags.append((vTRn, vTRnH, kk * 2048, kk * 2048 + 512, [m]))
        stages.append(dict(slot=q % 8, frags=frags, pieces=[], nxt=None, sync=(q >= GE), pub=(q >= 1), pubat=0, chk=(1024, q + 1)))
    hooks = {(0, fi): (lambda fi=fi: [xread(8 + 3 * fi + e) for e in range(3)]) for fi in range(8)}
    def epi_items(p):
        acc = (ACC0, ACC1)[p]; pk = TMP + 8 * p
        L = [f"v_cvt_pk_bf16_f32 v{pk+i}, v{acc+2*i}, v{acc+2*i+1}" for i in range(8)]
        if p == 1:
            L += [f"buffer_store_dwordx4 {v(pk,4)}, v{vVo}, {ws}, s{sSt} offen sc1", f"buffer_store_dwordx4 {v(pk+4,4)}, v{vVo}, {ws}, s{sSt} offen offset:512 sc1"]
        else:
            L += [f"buffer_store_dwordx4 {v(pk,4)}, v{vKo}, {ws}, s{sSt} offen sc1", f"buffer_store_dwordx4 {v(pk+4,4)}, v{vKo}, {ws}, s{sD1} offen sc1",
                  f"buffer_load_dword v{vFl}, v{vT2}, {s(sDbg,4)}, 0 offen sc1"]
        return L
    qc = opt.get("qc", 0)
    GLATE[qc:qc] = [f"buffer_store_dwordx4 v[136:139], v{vL16}, {ws}, s{sSt} offen sc1", f"buffer_store_dwordx4 v[136:139], v{vL16}, {ws}, s{sD1} offen sc1",
                     f"buffer_store_dword v136, v140, {ws}, s0 offen sc1"]
    n1 = len(GLATE)
    KE = opt.get("ke", 7)
    slots1 = [(q, fi) for q in range(1, KE) for fi in range(8) if (q, fi) not in ((1, 0), (4, 0), (5, 0), (6, 0))]
    plan = {}
    for k, it in enumerate(GLATE): plan.setdefault(slots1[k * len(slots1) // n1], []).append(it)
    for p, q0 in ((0, KE), (1, 9)):
        sl = [(q, fi) for q in (q0, q0 + 1) for fi in range(1, 8)]
        its = epi_items(p)
        sl = [x_ for x_ in sl for _ in range(2 if p == 0 else opt.get("vd", 2))]
        for k, it in enumerate(its): plan.setdefault(sl[k], []).append(it)
    if opt.get("xnofill"):
        for x in GLATE:
            if "v31," not in x: A(x.replace("|", "\n"))
        plan = {k_: [i_ for i_ in its if i_ not in GLATE] for k_, its in plan.items()}
    for k_, its in plan.items():
        hooks[k_] = (lambda its=its: [A(x.replace("|", "\n")) for x in its])
    FF = opt.get("ff", 1)
    def kvflag(n):
        A(f"s_cmp_lg_u32 s{sTag}, 0\ns_cbranch_scc1 L_gtag_x")
        get_tag(vFl, vT2, "L_gtag")
        A(f"v_mov_b32 v{vFl}, s{sTag}\ns_waitcnt vmcnt({n})\ns_mov_b64 exec, 1\nbuffer_store_dword v{vFl}, v{vT2}, {ws}, s{sFlag} offen sc1\ns_mov_b64 exec, -1")
    FP = opt.get("fp", 0)
    if FP:
        hooks[(FP // 8, FP % 8)] = lambda: (A(f"s_waitcnt vmcnt(0)\nv_readfirstlane_b32 s{sTag}, v{vFl}"), kvflag(0))
    GLATE = []
    if stamps:
        for q in ((1, 4, 5, 6, 7, 8, 9, 10, 11) if FR else (1, 4, 8)): hooks[(q, 0)] = ST
    segment(stages, hooks)
    assert not GLATE
    if FP: A("s_nop 11")
    else:
        A(f"s_waitcnt vmcnt(2)\nv_readfirstlane_b32 s{sTag}, v{vFl}")
        if FF: kvflag(0); A("s_nop 3")
        else: A("s_nop 9")
    qkv_epi(2)()
    for h_, acc in enumerate((ACC1, ACC0)):
        A(f"{MF} {v(acc,16)}, {v(TMP+4*h_,4)}, {v(TMP+16+4*h_,4)}, 0")
    A(f"s_mov_b32 s{sT0}, {hex(f2u(-float(opt.get('offset', 80))))}\ns_nop 9")
    for h_, acc in enumerate((ACC1, ACC0)):
        for k in range(0, 15, 2):
            A(f"v_max3_f32 v{141+h_}, v{acc+k}, v{acc+k+1}, v{141+h_ if k else acc+15}")
    A(f"s_nop 1\nv_permlane32_swap_b32 v141, v142\nv_max_f32 v141, v141, v142\nv_sub_f32 v141, s{sT0}, v141\nv_min_u32 v141, -2, v141")
    A(f"buffer_store_dword v141, v140, {ws}, s0 offen sc1")
    ST()
    if not FF and not FP: kvflag(2)
    A(f"s_mov_b32 s{sC}, {hex(f2u(C2))}\ns_mov_b32 s{sC+1}, {hex(f2u(C2))}")
    lds(f"ds_add_u32 v{vCnt}, v{vOne}", "add")
    ST()
    if FR: again(); ST.flush(ws, STAMP, sWave, 2, 3, sT0); A("s_endpgm"); ST.on = False
    if opt.get("gexit"): A(f"ds_add_u32 v{vCnt}, v{vOne}\ns_waitcnt lgkmcnt(0)\ns_endpgm")
    LOOK = opt.get("look", 4)
    check(True, 1024, 12 + NG0)
    A(f"s_mov_b32 s{sNeed}, 12\ns_setprio 0")
    lowprio[0] = True
    if opt.get("atrace"): A(f"s_mov_b32 s0, 0\ns_memrealtime s[100:101]")
    def gslot(g): return 2 + (g + 2) % 6
    def ffn_dd(g):
        if g < 24: return ("g", g, gslot(g))
        if g < 35: return ("d", g - 24, gslot(g))
        return ("o", g - 35, gslot(g))
    E0 = 0
    vP2 = vVo
    G2 = opt.get("g2", 1)
    def kneed(k):
        b0 = 12 + NG0 + 1
        step = k - RKV
        if not G2: return b0 + step + 1
        return b0 + 1 if step == 0 else b0 + 2 + step // 2
    def kv_poll(): lds(f"ds_read_b32 v{vP2}, v{vCntR} offset:1024", "poll2")
    NI = opt.get("ni", 4)
    def kv_check(k, fresh=False):
        if k >= RKV and (fresh or k == RKV or kneed(k) != kneed(k - 1) or k == RKV + 8 - S0):
            check(fresh, 1024, kneed(k), sleep=opt.get('ksleep', 4), reg=vP2, tag="poll2")
    def kv_issue(k, fresh=False, chk=True):
        if chk: kv_check(k, fresh)
        A(f"s_add_u32 m0, s{sKVm}, {((k + E0) % RKV) * KST}\ns_add_u32 s{sT0}, s{sKVs}, {k*1024}")
        A(f"buffer_load_dwordx4 v{vL16}, {ws}, s{sT0} offen sc1 lds"); vmq.push(("kv", k))
    def kv_pub(k):
        vwait(("kv", k))
        for _ in range(1): lds(f"ds_add_u32 v{vCnt}, v{vOne} offset:512", "add")
    S0 = opt.get("s0", 4); KLAG = opt.get("klag", 2)
    A(f"s_cmp_lg_u32 s{sNb}, 3\ns_cbranch_scc1 L_ffn")
    check(True, 1024, 12 + NG0 + 1)
    check(True, 0, 12)
    vmq.clear()
    for k in range(NI, RKV): kv_issue(k)
    for k in range(NI, RKV): kv_pub(k)
    kvs = [RKV + st - S0 for st in range(S0, 8)]; npub = max(0, 8 - KLAG - S0); done = []
    def light_kv():
        nonlocal npub
        if done and npub: kv_pub(done.pop(0)); npub -= 1
        if kvs: k = kvs.pop(0); kv_issue(k, True); done.append(k)
    if opt.get("pfw", 1):
        P = [0, 128, 384, 512, 768, 896, 256, 640, 1024, 1152, 1280, 1404][:2 * opt.get('npf', 6)]
        PCAP = opt.get("pcap", 1)
        A(f"""
        s_setprio 3
        v_mul_u32_u24 v{TMP}, 2752, v{vL}
        s_setprio 0
        s_and_b32 s4, s{sRB}, 7
        s_mul_i32 s5, s4, {64*2752}
        s_lshr_b32 s6, s{sCG}, 2
        s_mul_i32 s7, s6, 1408
        s_add_u32 s5, s5, s7
        """)
        for i in range(len(P) // 2):
            lo_, hi_ = sorted(P[2*i:2*i+2])
            A(f"s_mul_i32 s{sT0}, s{sMI}, {hi_-lo_}\ns_add_u32 s{sT0}, s{sT0}, s5")
            A(f"buffer_load_dword v143, v{TMP}, {s(sWgu,4)}, s{sT0} offen offset:{lo_}\ns_waitcnt vmcnt({PCAP})")
            vmq.push("pf"); vmq.waited(PCAP)
            if i >= 2: light_kv()
    for g in range(8, 8 + LOOK): dma(*ffn_dd(g))
    while kvs or (done and npub): light_kv()
    A("s_waitcnt vmcnt(0)")
    lds(f"ds_add_u32 v{vCnt}, v{vOne}", "add")
    A(f"s_add_u32 s{sNeed}, s{sNeed}, 1\ns_setprio 3\nv_mov_b32 v{vP}, 0\nv_mov_b32 v{vP2}, 0\ns_setprio 0")
    A("s_branch L_ffn8")
    A.label("L_ffn")
    vmq.clear(); lq.clear()
    T1, U1 = TMP, [88, 90, 92, 94, 128, 130, 132, 134]
    AD1 = [v(40, 16), v(56, 16), v(96, 16), a(96, 16)]
    def gelu1():
        G, U = ACC0, ACC1
        A("s_setprio 3\ns_nop 9")
        for i in range(8): A(f"v_pk_mul_f32 {v(T1+2*i,2)}, {v(G+2*i,2)}, {v(G+2*i,2)}")
        for i in range(8): A(f"v_pk_fma_f32 {v(T1+2*i,2)}, {v(T1+2*i,2)}, {s(sC,2)}, {v(vT0,2)}")
        for i in range(8): A(f"v_pk_mul_f32 {v(U1[i],2)}, {v(U+2*i,2)}, {v(G+2*i,2)}")
        for i in range(8): A(f"v_pk_mul_f32 {v(T1+2*i,2)}, {v(T1+2*i,2)}, {v(G+2*i,2)}")
        A("s_setprio 0")
    def gelu2_groups(b):
        L = [f"v_exp_f32 v{T1+i}, v{T1+i}" for i in range(16)]
        L += [f"v_pk_add_f32 {v(T1+2*i,2)}, {v(T1+2*i,2)}, 1.0 op_sel_hi:[1,0]" for i in range(8)]
        L += [f"v_rcp_f32 v{T1+i}, v{T1+i}" for i in range(16)]
        L += [f"v_pk_mul_f32 {v(U1[i],2)}, {v(U1[i],2)}, {v(T1+2*i,2)}" for i in range(8)]
        L += [f"v_cvt_pk_bf16_f32 v{T1+i}, v{U1[i]}, v{U1[i]+1}" for i in range(8)]
        sizes = [4, 4, 4, 4, 8, 4, 4, 4, 4, 8, 8]
        G_ = []
        for n in sizes:
            grp = L[:n]; L = L[n:]
            G_.append(lambda grp=grp: A("s_setprio 3\n" + "\n".join(grp) + "\ns_setprio 0"))
        def store():
            l = lab("hskip")
            if b == 0: A(f"s_cmp_eq_u32 s{sNb}, 3\ns_cbranch_scc1 {l}")
            if b == 2: A(f"s_add_u32 s{sT0}, s{sCG}, s{sNI}\ns_cmp_eq_u32 s{sT0}, 8\ns_cbranch_scc1 {l}")
            A(f"s_add_u32 s{sT0}, s{sHst}, {b*4096}")
            A(f"buffer_store_dwordx4 {v(T1,4)}, v{vL16}, {ws}, s{sT0} offen sc1")
            A(f"buffer_store_dwordx4 {v(T1+4,4)}, v{vL16}, {ws}, s{sT0} offen offset:1024 sc1")
            A.label(l)
            vmq.since = 0
        return G_ + [store]
    def send_flag(b):
        def f():
            n = min(vmq.since, 63)
            A(f"s_waitcnt vmcnt({n})"); vmq.waited(n)
            A(f"s_add_u32 s{sT0}, s{sHfl}, {b*4096}\ns_mov_b64 exec, 1\nbuffer_store_dword v{vFl}, v{vT2}, {ws}, s{sT0} offen sc1\ns_mov_b64 exec, -1")
        return f
    NH = 12
    def hload(t):
        b = 8 * (t % NH)
        if DSEQ[t] == 21:
            A(f"s_and_b32 s{sT2}, s{sGW}, 2\ns_lshl_b32 s{sT2}, s{sT2}, 10\ns_sub_u32 s{sT2}, s{sHb}, s{sT2}\ns_add_u32 s{sT2}, s{sT2}, {DSEQ[t]*4096}")
        else:
            A(f"s_add_u32 s{sT2}, s{sHb}, {DSEQ[t]*4096}")
        A(f"buffer_load_dwordx4 {a(b,4)}, v{vH0}, {ws}, s{sT2} offen sc1")
        A(f"buffer_load_dwordx4 {a(b+4,4)}, v{vH1}, {ws}, s{sT2} offen sc1")
        vmq.push(("h", t), 2)
    def hflag_issue(c):
        A(f"s_add_u32 s{sT2}, s{sHld}, {c*4096}\ns_mov_b64 exec, {hex(CMASK[c])}")
        A(f"buffer_load_dword v{vHF}, v{vL128}, {ws}, s{sT2} offen sc1\ns_mov_b64 exec, -1")
        vmq.push(("hf", c))
    def hflag_check(c):
        vwait(("hf", c))
        l = f"L_hf{c}"
        A(f"s_setprio 3\nv_cmp_ne_u32 vcc, s{sTag}, v{vHF}\ns_setprio 0\ns_and_b32 vcc_lo, vcc_lo, {hex(CMASK[c])}\ns_cbranch_scc1 {l}_s")
        A.label(l + "_b")
        def sp():
            A.label(l + "_s")
            A(f"s_add_u32 s{sT2}, s{sHld}, {c*4096}\ns_setprio 3")
            spin_flags(l, vHF, vL128, sT2, hex(CMASK[c]), sleep=8)
            A(f"s_setprio 0\ns_branch {l}_b")
        slow.append(sp)
    def p4(ni):
        def f():
            l = lab("p4")
            A(f"""
            s_cmp_lg_u32 s{sNI}, {ni}
            s_cbranch_scc1 {l}_x
            s_and_b32 s{sT0}, s{sRB}, 7
            s_lshl_b32 s{sT1}, s{sCG}, 7
            s_cmp_eq_u32 s{sGW}, 3
            s_cbranch_scc1 {l}_o
            s_mul_i32 s{sT0}, s{sT0}, {172*1024}
            s_add_u32 s{sT0}, s{sT0}, s{sT1}
            s_lshl_b32 s{sT1}, s{sGW}, 16
            s_add_u32 s{sT0}, s{sT0}, s{sT1}
            buffer_load_dword v143, v{vXR}, {s(sWd,4)}, s{sT0} offen
            s_branch {l}_x
            """)
            A.label(l + "_o")
            A(f"s_lshl_b32 s{sT0}, s{sT0}, 16\ns_add_u32 s{sT0}, s{sT0}, s{sT1}\nbuffer_load_dword v143, v{vXR}, {s(sWo,4)}, s{sT0} offen")
            A.label(l + "_x")
        return f
    allp = []
    for g in range(NG0, 39): allp += [(g, p) for p in dma_pieces(*ffn_dd(g))]
    T0 = opt.get("t0", 2 if NG0 >= 4 else NG0 - 1); RATE = opt.get("rate", 6)
    NE = opt.get("ne", 0)
    pre0 = []
    while allp[0][0] < opt.get("np0", 0): pre0.append(allp.pop(0)[1])
    early = [[allp.pop(0)[1] for _ in range(4)] for _ in range(NE)]
    prep_ = []
    while allp[0][0] <= T0 + 1: prep_.append(allp.pop(0)[1])
    sched = []
    for st in range(35):
        take = []
        if st < NE: take = early[st]; assert st < T0
        if st >= T0:
            while allp and allp[0][0] <= st + LOOK and len(take) < RATE: take.append(allp.pop(0)[1])
        sched.append(take)
        if st == 7 and not FR: assert allp[0][0] == 8 + LOOK and len([1 for g, _ in allp if g == 8 + LOOK]) == 4
    assert not allp
    stages = []
    post = {}
    for st in range(35):
        frags = []
        if st < 24:
            for kk in range(4):
                ks = (st % 8) * 4 + kk
                for p, acc in enumerate((ACC0, ACC1)):
                    c = "0" if ks == 0 else v(acc, 16)
                    frags.append((vTRn, vTRnH, p * 8192 + kk * 2048, p * 8192 + kk * 2048 + 512, [f"{MF} {v(acc,16)}, {{w}}, {xn(ks)}, {c}"]))
        else:
            for kk in range(2):
                t = 2 * (st - 24) + kk; b = 8 * (t % NH)
                for ni, (lo, hi) in enumerate(((vTRp0, vTRp0H), (vTRp1, vTRp1H))):
                    ms = [(lambda t=t: vwait(("h", t)))] if ni == 0 else []
                    for mi in range(2):
                        d = AD1[2 * ni + mi]; c = "0" if t == 0 else d
                        ms.append(f"{MF} {d}, {{w}}, {a(b+4*mi,4)}, {c}")
                    frags.append((lo, hi, kk * 2048, kk * 2048 + 1024, ms))
        nx = ffn_dd(st + 1)
        stages.append(dict(slot=gslot(st), frags=frags, pieces=sched[st], nxt=("dma", nx[0], nx[1]),
                           sync=(st <= 25), pub=(st <= 24), pubat=(0 if st >= 23 else opt.get("pubat", 2)),
                           waitat=(3 if st >= 24 else (6 if st == 23 else opt.get("pubat", 2)))))
    assert LOOK <= 4
    stages[T0]["pre"] = lambda: (check(True, 1024, 12 + NG0 + 1) if opt.get("thr", 1) else None, [kv_issue(k) for k in range(NI, RKV)], [p_() for p_ in prep_])
    stages[8]["label"] = "L_ffn8"
    if pre0: assert T0 > 0; stages[0]["pre"] = lambda: [p_() for p_ in pre0]
    GATE = opt.get("gate", 31); GR_ = opt.get("gater", 17 if G2 else 33)
    if GATE:
        def gate():
            A("s_waitcnt lgkmcnt(0)"); lq.clear()
            for st_ in range(GATE, GATE + 2):
                if st_ < 35:
                    for p_ in stages[st_]["pieces"]: p_()
                    stages[st_]["pieces"] = []
            for k_ in sorted(k for k in hooks if k[0] in (GATE, GATE + 1)):
                hooks.pop(k_)()
            if opt.get("warm", 0):
                A("s_mov_b64 exec, 0\ns_branch L_wg"); A.label("L_wg_ret"); A("s_mov_b64 exec, -1")
            check(True, 1024, 12 + NG0 + 1 + GR_, sleep=4)
        stages[GATE]["pre"] = gate
    hooks = {}
    for b in range(3):
        st0 = 8 * (b + 1)
        stages[st0]["frags"][0][4].insert(0, gelu1)
        grp = gelu2_groups(b)
        pos = [(si, fi, k) for si in (st0, st0 + 1, st0 + 2) for fi, fr in enumerate(stages[si]["frags"]) for k, m in enumerate(fr[4]) if not callable(m)]
        if b == 2: pos = [p_ for p_ in pos for _ in range(opt.get('g3', 2))]
        for (si, fi, k), g_ in reversed(list(zip(pos, grp))):
            stages[si]["frags"][fi][4].insert(k + 1, g_)
        hooks[(st0 + 3, 6) if b < 2 else divmod(opt.get('f3', 105), 4)] = send_flag(b)
    def addhook(pos, f):
        old = hooks.get(pos)
        hooks[pos] = (lambda: (old(), f())) if old else f
    assert opt.get("thr", 1) or NI == RKV
    if NI < RKV: addhook((T0, 3), lambda: [kv_pub(k) for k in range(NI, RKV)])
    for k in range(RKV, 32):
        st = S0 + k - RKV
        nf = len(stages[st]["frags"]); nfp = len(stages[st - 1]["frags"])
        if k == RKV or kneed(k) != kneed(k - 1) or k == RKV + 8 - S0: addhook((st, 0), kv_poll)
        addhook((st, 2), lambda k=k: kv_check(k))
        addhook((st, nf // 2), lambda k=k: kv_issue(k, chk=False))
        addhook((st + KLAG, 0), lambda k=k: kv_pub(k))
    if opt.get("p4", 1): hooks[(opt.get("p4a", 10), 1)] = p4(0); hooks[(opt.get("p4b", 14), 1)] = p4(1)
    HL = opt.get("hl", 5)
    def hpos(t):
        u = t - HL
        if u >= 0: return (24 + u // 2, 2 * (u % 2) + 1)
        return (24 + (u // 2), 4 * (u % 2) + 2)
    for t in range(22):
        fs = []
        if t in CSTART: fs.append(lambda c=CSTART[t]: hflag_check(c))
        fs.append(lambda t=t: hload(t))
        if t + opt.get('hi', 2) in CSTART: fs.append(lambda c=CSTART[t + opt.get('hi', 2)]: hflag_issue(c))
        old = hooks.get(hpos(t))
        if old: fs.insert(0, old)
        hooks[hpos(t)] = (lambda fs=fs: [f() for f in fs])
    p0 = hpos(0); addhook((p0[0] - 1, 6), lambda: hflag_issue(0))
    XRAW = 136
    def xload():
        for q in range(4):
            A(f"buffer_load_dwordx2 {v(XRAW+2*q,2)}, v{vXo}, {s(sX,4)}, s{sXo} offen offset:{16*q}"); vmq.push("xr")
    AEPI = opt.get("aepi", 0)
    if not AEPI: addhook((28, 0), xload)
    def fo_addr(): A(f"s_lshl_b32 s{sT2}, s{sRB}, 12\ns_lshl_b32 s{sT0}, s{sGW}, 10\ns_add_u32 s{sT2}, s{sT2}, s{sT0}\ns_add_u32 s{sT2}, s{sT2}, {FO}")
    def fo_issue():
        fo_addr()
        A(f"s_mov_b64 exec, 0xff\nbuffer_load_dword v{vHF}, v{vL128}, {ws}, s{sT2} offen sc1\ns_mov_b64 exec, -1"); vmq.push("fo")
    def fo_check():
        vwait("fo")
        A(f"s_setprio 3\nv_cmp_ne_u32 vcc, s{sTag}, v{vHF}\ns_setprio 0\ns_and_b32 vcc_lo, vcc_lo, 0xff\ns_cbranch_scc1 L_fo_s")
        A.label("L_fo_b")
        def sp():
            A.label("L_fo_s")
            fo_addr(); A("s_setprio 3")
            spin_flags("L_fo", vHF, vL128, sT2, 8, sleep=8)
            A("s_setprio 0\ns_branch L_fo_b")
        slow.append(sp)
    def o_tile():
        A(f"s_lshr_b32 s4, s2, 5\ns_lshl_b32 s4, s4, 1\ns_add_u32 s4, s4, s{sMI}\ns_lshl_b32 s4, s4, 1\ns_add_u32 s4, s4, s{sNI}")
        A(f"s_and_b32 s5, s2, 7\ns_lshl_b32 s5, s5, 2\ns_bfe_u32 s6, s2, 0x20003\ns_add_u32 s5, s5, s6")
    def o_clear():
        o_tile()
        A(f"s_lshl_b32 s6, s4, 16\ns_lshl_b32 s7, s5, 10\ns_add_u32 s6, s6, s7\ns_add_u32 s6, s6, {OF}\ns_add_u32 s7, s6, 32768")
        A(f"buffer_store_dwordx4 v[136:139], v{vL16}, {ws}, s6 offen sc1\nbuffer_store_dwordx4 v[136:139], v{vL16}, {ws}, s7 offen sc1"); vmq.push("oc", 2)
    def o_flag():
        vwait("oc")
        A(f"s_lshl_b32 s6, s4, 12\ns_lshl_b32 s7, s5, 7\ns_add_u32 s6, s6, s7\ns_add_u32 s6, s6, {FO}")
        A(f"s_mov_b64 exec, 1\nbuffer_store_dword v{vFl}, v{vT2}, {ws}, s6 offen sc1\ns_mov_b64 exec, -1"); vmq.push("of")
    addhook((13, 6), o_clear); addhook((15, 6), o_flag)
    addhook((18, 6), fo_issue); addhook((20, 2), fo_check)
    if stamps:
        for st in (8, 16, 24): addhook((st, 0), ST)
    segment(stages, hooks)
    lowprio[0] = False
    ST()
    if opt.get("atrace"):
        A(f"s_lshl_b32 s{sT0}, s2, 4\ns_add_u32 s{sT0}, s{sT0}, s{sWave}\ns_lshl_b32 s{sT0}, s{sT0}, 8\ns_add_u32 s{sT0}, s{sT0}, {STAMP+MB}\nv_lshlrev_b32 v135, 2, v{vL}\nbuffer_store_dword v31, v135, {ws}, s{sT0} offen\ns_waitcnt vmcnt(0)")
    XF = [120, 122, 124, 126, 32, 34, 36, 38]
    WARM = opt.get("warm", 0)
    if WARM: A.warm_begin()
    vwait(("dma", "o", 3))
    for i in range(8):
        slot = gslot(35 + i // 2); base = slot * SLOT
        for ni, (lo, hi) in enumerate(((vTRp0, vTRp0H), (vTRp1, vTRp1H))):
            reg, b = (lo, base) if base < 65536 else (hi, base - 65536)
            lds(f"ds_read_b64_tr_b16 {a(8*i+4*ni,2)}, v{reg} offset:{b + (i%2)*2048}", "wo")
            lds(f"ds_read_b64_tr_b16 {a(8*i+4*ni+2,2)}, v{reg} offset:{b + (i%2)*2048 + 1024}", "wo")
    vR = [None, vKo, vVo, vXR]
    sHave, sNext = 4, 5
    A(f"""
    s_setprio {opt.get("tprio", 3)}
    s_lshl_b32 s7, s{sRB}, 16
    s_lshl_b32 s{sT0}, s{sGW}, 13
    s_add_u32 s7, s7, s{sT0}
    s_add_u32 s7, s7, {OF}
    s_add_u32 s6, s7, 4096
    s_mov_b32 s{sHave}, 0
    s_mov_b32 s{sNext}, 0
    s_mov_b32 s{sC}, {hex(f2u(-1.4426950408889634))}
    s_mov_b32 s{sC+1}, {hex(f2u(-1.4426950408889634))}
    v_xor_b32 v{vR[1]}, 4096, v{vRW}
    v_xor_b32 v{vR[2]}, 8192, v{vRW}
    v_xor_b32 v{vR[3]}, 12288, v{vRW}
    v_and_b32 v{vL128}, 7, v{vL}
    v_lshlrev_b32 v{vL128}, 10, v{vL128}
    v_bfe_u32 v{vFl}, v{vL}, 3, 1
    v_lshl_add_u32 v{vL128}, v{vFl}, 15, v{vL128}
    """)
    for r_ in [vRW] + vR[1:]: A(f"v_add_u32 v{r_}, {RB0 + 2*SLOT}, v{r_}")
    OFR = 56
    AS = [(v, 40), (a, 64), (a, 80), (a, 96)]
    def o_loads(u):
        for i in range(8):
            so = 7 if i < 4 else 6
            if u: A(f"s_bitcmp1_b32 s{sD0}, {i}\ns_cbranch_scc0 L_ol{u}_{i}")
            A(f"buffer_load_dwordx4 {v(OFR+8*i,4)}, v{vO0}, {ws}, s{so} offen offset:{(i%4)*1024} sc1")
            A(f"buffer_load_dwordx4 {v(OFR+8*i+4,4)}, v{vO1}, {ws}, s{so} offen offset:{(i%4)*1024} sc1")
            if u: A.label(f"L_ol{u}_{i}")
    def reduce_tile(dst, src, mid=None):
        for lt in range(1, 4):
            k_, b_ = src[lt]
            for q in range(4):
                lds(f"ds_write_b128 v{vRW}, {k_(b_+4*q,4)} offset:{(lt-1)*SLOT + q*1024}", "w")
        lds(f"ds_add_u32 v{vCnt}, v{vOne}", "add")
        check(True)
        for lt in range(1, 4):
            for q in range(4):
                lds(f"ds_read_b128 {v(40+16*lt+4*q,4)}, v{vR[lt]} offset:{(lt-1)*SLOT + q*1024}", ("r", lt))
        if mid: mid()
        lwait(("r", 1))
        for i in range(8): A(f"v_pk_add_f32 {v(40+2*i,2)}, {v(40+2*i,2)}, {v(56+2*i,2)}")
        lwait(("r", 3))
        for i in range(8): A(f"v_pk_add_f32 {v(72+2*i,2)}, {v(72+2*i,2)}, {v(88+2*i,2)}")
        for i in range(8): A(f"v_pk_add_f32 {v(dst+2*i,2)}, {v(40+2*i,2)}, {v(72+2*i,2)}")
    def mid0():
        vwait("xr")
        for i in range(8):
            A(f"v_lshlrev_b32 v{XF[i]}, 16, v{XRAW+i}")
            A(f"v_and_b32 v{XF[i]+1}, 0xffff0000, v{XRAW+i}")
    def put_tiles(src, where):
        for lt in range(4):
            k_, b_ = src[lt]; reg, off = where(lt)
            for q in range(4): lds(f"ds_write_b128 v{reg}, {k_(b_+4*q,4)} offset:{off + q*1024}", "w")
        lds(f"ds_add_u32 v{vCnt}, v{vOne} offset:512", "add")
    if AEPI:
        put_tiles([(v, 40), (v, 56), (v, 96), (a, 96)], lambda lt: (vRW, lt * SLOT))
        silu = []
        A(f"v_add_u32 v{vR[1]}, {4*SLOT}, v{vRW}\ns_lshl_b32 s{sT0}, s{sGW}, 13\nv_add_u32 v{vR[2]}, s{sT0}, v{vL16}")
        A(f"v_and_b32 v{vP}, 3, v{vL}\nv_lshlrev_b32 v{vP}, 9, v{vP}\nv_add_u32 v{vP}, {AFL+256}, v{vP}")
        lds_spin("L_ow", vHF, vP, 0, f"v_cmp_eq_u32 vcc, 0, v{vHF}", sleep=opt.get("owsleep", 2)); lq.clear()
    else:
        reduce_tile(GR, [(v, 40), (v, 56), (v, 96), (a, 96)], mid0)
        OG = 0
        Tv = 40
        silu = [f"v_pk_mul_f32 {v(Tv+2*i,2)}, {v(GR+2*i,2)}, {s(sC,2)}" for i in range(8)]
        silu += [f"v_exp_f32 v{Tv+i}, v{Tv+i}" for i in range(16)]
        silu += [f"v_add_u32 v{r_}, {3*SLOT}, v{r_}" for r_ in [vRW] + vR[1:]]
        silu += [f"v_pk_add_f32 {v(Tv+2*i,2)}, {v(Tv+2*i,2)}, 1.0 op_sel_hi:[1,0]" for i in range(8)]
        silu += [f"v_rcp_f32 v{Tv+i}, v{Tv+i}" for i in range(16)]
        silu += ["s_nop 0"] + [f"v_pk_mul_f32 {v(GR+2*i,2)}, {v(GR+2*i,2)}, {v(Tv+2*i,2)}" for i in range(8)]
    if opt.get("ogate") and not AEPI:
        while silu: A(silu.pop(0))
        A(f"v_and_b32 v{vP}, 3, v{vL}\nv_lshlrev_b32 v{vP}, 9, v{vP}\nv_add_u32 v{vP}, {AFL+256}, v{vP}")
        lds_spin("L_ow", vHF, vP, 0, f"v_cmp_eq_u32 vcc, 0, v{vHF}", sleep=opt["ogate"])
    for i in range(8):
        so = 7 if i < 4 else 6
        for mi, vo in enumerate((vO0, vO1)):
            A(f"buffer_load_dwordx4 {v(OFR+8*i+4*mi,4)}, v{vo}, {ws}, s{so} offen offset:{(i%4)*1024} sc1")
            for _ in range(4):
                if silu: A(silu.pop(0))
    assert not silu
    ST()
    def overify(i):
        o_ = OFR + 8 * i
        A(f"""
        v_max3_u32 v{vHF}, v{o_}, v{o_+1}, v{o_+2}
        v_max3_u32 v{vP}, v{o_+3}, v{o_+4}, v{o_+5}
        v_max3_u32 v{vHF}, v{vHF}, v{o_+6}, v{o_+7}
        v_max_u32 v{vHF}, v{vHF}, v{vP}
        v_cmp_eq_u32 vcc, -1, v{vHF}
        """)
    def omfma(i):
        for ni in range(2):
            for mi in range(2):
                k_, b_ = AS[2 * ni + mi]; d = k_(b_, 16)
                A(f"{MF} {d}, {a(8*i+4*ni,4)}, {v(OFR+8*i+4*mi,4)}, {d if i else 0}")
    for i in range(8):
        A(f"s_waitcnt vmcnt({14-2*i})")
        overify(i)
        A(f"s_cbranch_vccnz L_ofx")
        omfma(i)
        A(f"s_bitset1_b32 s{sHave}, {i}\ns_mov_b32 s{sNext}, {i+1}")
    A.label("L_odone")
    gen = Asm(); gen_lines_at = len(A.lines)
    sLd = sD0
    vPr, vPa = vFl, vL128
    PROBE = f"s_mov_b64 exec, 0xffff\nbuffer_load_dword v{vPr}, v{vPa}, {ws}, s7 offen offset:1020 sc1\ns_mov_b64 exec, -1"
    A.label("L_ofx")
    A(f"s_andn2_b32 s{sLd}, 0xff, s{sHave}")
    A.label("L_of")
    A("s_waitcnt vmcnt(0)")
    for i in range(8):
        o_ = OFR + 8 * i
        A(f"""
        s_bitcmp1_b32 s{sLd}, {i}
        s_cbranch_scc0 L_ov{i}
        v_max3_u32 v{vHF}, v{o_}, v{o_+1}, v{o_+2}
        v_max3_u32 v{vP}, v{o_+3}, v{o_+4}, v{o_+5}
        v_max3_u32 v{vHF}, v{vHF}, v{o_+6}, v{o_+7}
        v_max_u32 v{vHF}, v{vHF}, v{vP}
        v_cmp_eq_u32 vcc, -1, v{vHF}
        s_cbranch_vccnz L_ov{i}
        s_bitset1_b32 s{sHave}, {i}
        """)
        A.label(f"L_ov{i}")
    A(f"s_cmp_lt_i32 s{sTO}, 0\ns_cselect_b32 s{sHave}, 0xff, s{sHave}\ns_cmp_eq_u32 s{sHave}, 0xff\ns_cbranch_scc1 L_onp")
    DT = opt.get("dt", 4)
    sDir = sD1
    A(f"s_bcnt1_i32_b32 s{sDir}, s{sHave}\ns_cmp_ge_u32 s{sDir}, {8-DT}\ns_cbranch_scc1 L_odir")
    A(PROBE)
    A("s_branch L_onp")
    A.label("L_odir")
    A(f"s_andn2_b32 s{sLd}, 0xff, s{sHave}\ns_sub_u32 s{sTO}, s{sTO}, 1")
    o_loads("c")
    A.label("L_onp")
    for i in range(8):
        A(f"s_cmp_lg_u32 s{sNext}, {i}\ns_cbranch_scc1 L_om{i}\ns_bitcmp1_b32 s{sHave}, {i}\ns_cbranch_scc0 L_opr0")
        for ni in range(2):
            for mi in range(2):
                k_, b_ = AS[2 * ni + mi]; d = k_(b_, 16)
                A(f"{MF} {d}, {a(8*i+4*ni,4)}, {v(OFR+8*i+4*mi,4)}, {d if i else 0}")
        A(f"s_mov_b32 s{sNext}, {i+1}")
        A.label(f"L_om{i}")
    A("s_branch L_odone")
    moved = A.lines[gen_lines_at:]; del A.lines[gen_lines_at:]
    slow.append(lambda: A.lines.extend(moved))
    def sp():
        A.label("L_opr0")
        A(f"s_cmp_ge_u32 s{sDir}, {8-DT}\ns_cbranch_scc1 L_of")
        A.label("L_opr")
        A(f"""
        s_waitcnt vmcnt(0)
        v_cmp_ne_u32 vcc, -1, v{vPr}
        s_sub_u32 s{sTO}, s{sTO}, 1
        s_lshr_b32 s{sLd}, vcc_lo, 8
        s_and_b32 s{sLd}, s{sLd}, vcc_lo
        s_cmp_lt_i32 s{sTO}, 0
        s_cselect_b32 s{sLd}, 0xff, s{sLd}
        s_and_b32 s{sLd}, s{sLd}, 0xff
        s_andn2_b32 s{sLd}, s{sLd}, s{sHave}
        s_cbranch_scc1 L_opg
        s_sleep {opt.get("osleep", 2)}
        {PROBE}
        s_branch L_opr
        """)
        A.label("L_opg")
        o_loads("b")
        A("s_branch L_of")
    slow.append(sp)
    ST()
    A("s_nop 10")
    if AEPI:
        put_tiles(AS, lambda lt: (vR[1], lt * SLOT) if lt < 2 else (vR[2], (lt - 2) * 4096))
        A("s_waitcnt lgkmcnt(0)")
    else:
        reduce_tile(40, AS)
        for i in range(8): A(f"v_pk_fma_f32 {v(40+2*i,2)}, {v(40+2*i,2)}, {v(GR+2*i,2)}, {v(XF[i],2)}")
        for i in range(8): A(f"v_cvt_pk_bf16_f32 v{56+i}, v{40+2*i}, v{41+2*i}")
        A("s_nop 1")
        for h in range(2):
            A(f"v_permlane32_swap_b32 v{56+4*h}, v{58+4*h}\nv_permlane32_swap_b32 v{57+4*h}, v{59+4*h}")
        for h in range(2):
            A(f"buffer_store_dwordx4 {v(56+4*h,4)}, v{vRR}, {s(sOut,4)}, s{sXo} offen offset:{32*h}{['', ' sc1', ' nt', ' sc0 sc1'][opt.get('om', 0)]}")
    if WARM: A.warm_end("L_wg", "L_wa2", WARM)
    if opt.get("xhold"):
        A.label("L_hold")
        A(f"s_memrealtime s[98:99]\ns_waitcnt lgkmcnt(0)\ns_sub_u32 s98, s98, s{sTag if opt.get('xtag') else 100}\ns_cmp_lt_u32 s98, {opt['xhold']}\ns_cbranch_scc1 L_hold")
    if stamps:
        ST.on = True
        if not FR: ST(); ST.flush(ws, STAMP, sWave, 2, 3, sT0)
        if opt.get("dbgout"):
            A(f"s_cmp_lg_u32 s2, {opt['dbgout']-1}\ns_cbranch_scc1 L_dbx\ns_cmp_lg_u32 s{sWave}, 4\ns_cbranch_scc1 L_dbx\nv_mov_b32 v2, 0")
            for i in range(1, ST.n):
                A(f"s_sub_u32 s4, s{ST.base+2*i}, s{ST.base}\nv_mov_b32 v3, s4\nbuffer_store_dword v3, v2, {s(sDbg,4)}, 0 offen offset:{4*i}\ns_nop 1")
            A.label("L_dbx")
    A("s_endpgm")
    for f in slow: f()
    slow.clear()

    ST.n = 2 if stamps else 0
    A.label("L_attn")
    lq.clear(); vmq.clear()
    for g in range(NEARLY): vmq.push(("dma", "q", g), 4)
    def pub_ld(g):
        d = ddq(g); vwait(("dma", d[0], d[1])); lds(f"ds_add_u32 v{vCnt}, v{vOne}", "add")
    def FS():
        if FR: ST()
    def p2():
        A(f"s_mov_b64 exec, {PF2MASK}\nbuffer_load_dword v143, v30, {s(sWgu,4)}, s68 offen\ns_mov_b64 exec, -1"); vmq.push("pf")
    FS()
    NB4 = max(opt.get("nb4", 4), NEARLY)
    for g in range(max(NEARLY, GE), NB4):
        dma(*ddq(g))
        if g == opt.get("p1at", 3):
            A(f"s_mov_b64 exec, {'0xffff0000' if opt.get('p1kv', 1) else '0xffffffff'}\nbuffer_load_dword v143, v{aP3}, {s(sWq,4)}, s7 offen\ns_mov_b64 exec, -1"); vmq.push("pf")
            if opt.get("p2early", 1): p2()
    pub_ld(0)
    A("s_waitcnt lgkmcnt(0)\ns_barrier"); lq.clear()
    ST()
    for g in range(1, NB4): pub_ld(g)
    for g in range(NB4, 5): dma(*ddq(g))
    FS()
    A(GUADDR)
    A(f"""
    s_and_b32 s{sT0}, s2, 7
    s_lshr_b32 s{sT1}, s2, 3
    s_and_b32 s{sT2}, s{sT1}, 3
    s_lshl_b32 s{sHead}, s{sT0}, 2
    s_add_u32 s{sHead}, s{sHead}, s{sT2}        ; head
    s_lshr_b32 s{sT1}, s{sT1}, 2
    s_lshl_b32 s{sT1}, s{sT1}, 1
    s_add_u32 s{sT1}, s{sT1}, s{sMI}
    s_lshr_b32 s4, s{sWave}, 1
    s_lshl_b32 s5, s{sHead}, 16
    s_lshl_b32 s{sQ}, s{sT1}, 12
    s_add_u32 s{sQ}, s{sQ}, s5
    s_lshl_b32 s6, s4, 11
    s_add_u32 s{sQ0}, s{sQ}, s6
    s_xor_b32 s6, s6, 2048
    s_add_u32 s{sQ}, s{sQ}, s6
    s_lshl_b32 s{sT1}, s{sT1}, 1
    s_add_u32 s{sT1}, s{sT1}, s4                ; 64-token row block kept by this wave
    s_lshl_b32 s{sFo}, s{sT1}, 12
    s_lshl_b32 s{sT0}, s{sHead}, 7
    s_add_u32 s{sFo}, s{sFo}, s{sT0}
    s_add_u32 s{sFo}, s{sFo}, {FO}
    s_add_u32 s{sKb}, s5, {KF}
    s_lshl_b32 s{sT0}, s4, 15
    s_add_u32 s{sKVb}, s{sKb}, s{sT0}
    v_mov_b32 v{vK}, v{vL16}
    v_lshrrev_b32 v{vV}, 5, v{vL}
    v_lshlrev_b32 v{vV}, 8, v{vV}
    v_and_b32 v{aPKV}, 15, v{vL}
    v_lshl_add_u32 v{vV}, v{aPKV}, 4, v{vV}
    v_add_u32 v{vV}, {VF-KF}, v{vV}
    s_mov_b32 s{sMask}, 0x0000ffff
    s_mov_b32 s{sMask+1}, 0x0000ffff
    s_mov_b32 s{sFB}, 1
    s_mov_b32 s{sOff}, {hex(f2u(-float(opt.get('offset', 80))))}
    v_mov_b32 v{vIdx}, 0xdddddddd
    v_and_b32 v{aOnes}, 27, v{vL}
    v_cmp_eq_u32 vcc, 16, v{aOnes}
    v_mov_b32 v{aOnes}, 0x3f803f80
    s_lshr_b32 s{sFQ}, s{sHead}, 1
    v_cndmask_b32 v{aOnes}, 0, v{aOnes}, vcc
    s_lshl_b32 s{sFQ}, s{sFQ}, 13
    s_add_u32 s{sFQ}, s{sFQ}, {FQ}
    v_lshlrev_b32 v{aL128}, 7, v{vL}
    s_lshr_b32 s{sP3}, s{sQ0}, 3
    s_add_u32 s{sP3}, s{sP3}, {MFO}
    s_lshr_b32 s{sPKV}, s{sQ}, 3
    s_add_u32 s{sPKV}, s{sPKV}, {MFO}
    v_and_b32 v{aPKV}, 31, v{vL}
    v_lshlrev_b32 v{aPKV}, 2, v{aPKV}
    """)
    assert VF - KF == 1 << 21
    for g in range(NB4, 5): pub_ld(g)
    check(True, 0, 1, sleep=opt.get("asleep", 2))
    FS()
    NPRE = 12 + NG0
    for g in range(5, NPRE):
        if g >= 9: check(True, 0, g - 7, sleep=opt.get('asleep', 2))
        if g == 12:
            pub_ld(11)
            if not opt.get("p2early", 1) and opt.get("p2", 1): p2()
        dma(*ddq(g))
        if g >= 7 and g < 16: FS()
        if 8 <= g <= 11:
            inits = [f"v_accvgpr_write_b32 a{x[1]+i}, v{aOnes}" if x[0] == "a" else f"v_mov_b32 v{x[1]+i}, v{aOnes}" for x in VRG for i in range(8)]
            inits += [f"v_accvgpr_write_b32 a{O+i}, 0" for i in range(64)]
            for x in inits[(g - 8) * 20:(g - 7) * 20]: A(x)
        if g == 11:
            A(f"v_mov_b32 v{vT1}, 0\nbuffer_load_dword v{vF}, v{vT1}, {s(sDbg,4)}, 0 offen sc1"); vmq.push("tag")
        if g > 5 and g != 12: pub_ld(g - 1)
    pub_ld(NPRE - 1)
    if FR: ST(); again(); ST.flush(ws, STAMP, sWave, 2, 3, sT0); A("s_endpgm"); ST.on = False; stamps = False
    if opt.get("aexit"): A("s_waitcnt lgkmcnt(0)\ns_endpgm")
    A(f"s_waitcnt vmcnt(0)\nv_readfirstlane_b32 s{sTag}, v{vF}\ns_cmp_lg_u32 s{sTag}, 0\ns_cbranch_scc1 L_atag_x")
    get_tag(vF, vT1, "L_atag")
    A(f"s_mov_b32 s{sFo}, 0")
    A(f"s_setprio 2\ns_cmp_lg_u32 s{sWave}, 0\ns_cbranch_scc1 L_aw")
    lds_spin("L_ag2", M, vCntR, 0, f"v_cmp_gt_u32 vcc, {opt.get('ag', 12)}, v{M}", sleep=2)
    ST()
    if opt.get("adelay"): A(f"s_sleep {opt['adelay']}")
    spin_flags("L_qf", vF, aL128, sFQ, 64, sleep=opt.get("qsleep", 2), first=bool(opt.get("qfirst", 0)))
    assert opt.get('ag', 12) >= 10
    A(f"ds_write_b32 v{aGo}, v{vOne}\ns_branch L_aw_x")
    A.label("L_aw")
    if WARM:
        A("s_mov_b64 exec, 0\ns_branch L_wa1"); A.label("L_wa1_ret"); A("s_mov_b64 exec, -1")
    if stamps: ST.n -= 1; ST()
    lds_spin("L_ag3", M, aGo, 0, f"v_cmp_eq_u32 vcc, 0, v{M}", sleep=1)
    A.label("L_aw_x")
    if opt.get("xgo"): hold("L_hgo", opt["xgo"])
    ST()
    if WARM: A.warm_begin()
    sKN = sKB2
    vOwn, vOneA, vKl, vVl, vPl = 2, 3, 4, 5, 6
    def qloads():
        for t in range(4):
            A(f"buffer_load_dwordx4 {v(SB+4*t,4)}, v{vK}, {ws}, s{sQ0 if t < 2 else sQ} offen offset:{(t&1)*1024} sc1")
        for t in range(4):
            A(f"buffer_load_dword v{M+t}, v{aPKV}, {ws}, s{sP3 if t < 2 else sPKV} offen offset:{(t&1)*128} sc1")
    def qverify():
        T_ = SB + 16
        for k in range(0, 15, 2):
            A(f"v_max3_u32 v{T_}, v{SB+k}, v{SB+k+1}, v{T_ if k else SB+15}")
        A(f"v_max3_u32 v{T_}, v{T_}, v{M}, v{M+1}\nv_max3_u32 v{T_}, v{T_}, v{M+2}, v{M+3}")
        A(f"v_cmp_eq_u32 vcc, -1, v{T_}")
    qloads()
    A(f"s_and_b32 s4, s{sWave}, 1\ns_lshl_b32 s4, s4, 21\ns_add_u32 s4, s4, s{sKVb}\ns_mul_i32 s5, s{sWave}, {RKV*KST}")
    for k0, n in [(k0, min(4, NI - k0)) for k0 in range(0, NI, 4)]:
        A(f"s_add_u32 s6, s4, {k0*1024}")
        for i in range(n):
            A(f"s_add_u32 m0, s5, {((k0 + i + E0) % RKV) * KST - i * 1024}\ns_nop 0")
            A(f"buffer_load_dwordx4 v{vK}, {ws}, s6 offen offset:{i*1024} sc1 lds")
    vVl1 = vF
    A(f"""
    v_subrev_u32 v{vOwn}, 1024, v{vCnt}
    v_mov_b32 v{vOneA}, 1
    ; constant cells of this wave's piece: lane 2p -> ones, 2p+1 -> zeros of step p
    v_lshrrev_b32 v32, 1, v{vL}
    v_mul_u32_u24 v32, {KST}, v32
    v_and_b32 v33, 1, v{vL}
    v_lshl_add_u32 v32, v33, 4, v32
    v_add_u32 v32, s5, v32
    v_cmp_eq_u32 vcc, 0, v33
    v_mov_b32 v36, 0x3f803f80
    s_lshr_b32 s4, s{sWave}, 1
    v_cndmask_b32 v36, 0, v36, vcc
    s_mul_i32 s4, s4, {2*RKV*KST}
    v_mov_b32 v37, v36
    v_mov_b32 v38, v36
    v_mov_b32 v39, v36
    s_mov_b64 exec, {hex((1 << (2*RKV)) - 1)}
    ds_write_b128 v32, v[36:39] offset:1024
    s_mov_b64 exec, -1
    v_add_u32 v{vKl}, s4, v{vK}
    s_sub_u32 s6, s4, {VF-KF-RKV*KST}
    v_add_u32 v{vVl}, s6, v{vV}
    v_add_u32 v{vVl1}, 512, v{vVl}
    s_add_u32 s4, s4, {RKV*KST+1024}
    v_cmp_eq_u32 vcc, 0, v{aOnes}
    v_mov_b32 v32, s4
    v_add_u32 v33, 16, v32
    v_cndmask_b32 v32, v32, v33, vcc
    v_cndmask_b32 v{vVl}, v32, v{vVl}, {s(sMask,2)}
    v_cndmask_b32 v{vVl1}, v32, v{vVl1}, {s(sMask,2)}
    s_waitcnt vmcnt({NI})
    """)
    qverify()
    A("s_cbranch_vccnz L_qre")
    A.label("L_qre_x")
    def sp():
        A.label("L_qre")
        qloads()
        A("s_waitcnt vmcnt(0)")
        qverify()
        A("s_cbranch_vccz L_qre_x")
        timeout_exit("L_qre_x")
        A("s_sleep 1\ns_branch L_qre")
    slow.append(sp)
    A(f"v_mov_b32 v{SB+32}, {NI}\ns_waitcnt vmcnt(0)\nds_add_u32 v{vOwn}, v{SB+32} offset:512")
    A(f"ds_add_u32 v{vOwn}, v{vOneA} offset:1024")
    for i in range(16): A(f"v_accvgpr_write_b32 a{Q+i}, v{SB+i}")
    def maxtree(dst, blocks, first):
        regs = [b + i for b in blocks for i in range(16)]
        if first:
            A(f"v_max3_f32 v{dst}, v{regs[0]}, v{regs[1]}, v{regs[2]}"); regs = regs[3:]
        while len(regs) >= 2:
            A(f"v_max3_f32 v{dst}, v{dst}, v{regs[0]}, v{regs[1]}"); regs = regs[2:]
        if regs: A(f"v_max_f32 v{dst}, v{dst}, v{regs[0]}")
    def build_c():
        T_ = SB
        for t in range(4): A(f"v_mov_b32 v{T_+t}, v{M+t}")
        A("s_nop 1")
        for t in range(4): A(f"v_permlane32_swap_b32 v{T_+t}, v{M+t}")
        for t in range(4): A(f"v_max_f32 v{M+t}, v{M+t}, v{T_+t}")
        for t in range(4): A(f"v_sub_f32 v{M+t}, s{sOff}, v{M+t}")
    def fill_c(t):
        for i in range(8): A(f"v_pk_mov_b32 {v(C+16*t+2*i,2)}, {v(M+(t&~1),2)}, {v(M+(t&~1),2)} op_sel:[{t&1},{t&1}]")
    def kvitems(slot, pos, add=True):
        L = [f"ds_read_b128 {rg(KRG[slot])}, v{vKl} offset:{pos*KST}", f"ds_read_b128 {rg(VRG[slot])}, v{vVl} offset:{pos*KST}",
             f"ds_read_b128 {rg(VRG[slot],4)}, v{vVl1} offset:{pos*KST}"]
        if add: L.append(f"ds_add_u32 v{vOwn}, v{vOneA} offset:1024")
        return L
    lds_spin("L_akv", SB + 8, vCntR, 512, f"v_cmp_gt_u32 vcc, {NI}, v{SB+8}")
    for x in kvitems(E0 & 1, E0): A(x)
    fill_c(0)
    A(f"s_nop 0\ns_waitcnt lgkmcnt(0)")
    A(f"{MF} {v(SB,16)}, {rg(KRG[E0 & 1])}, {a(Q,4)}, {v(C,16)}")
    for t in range(1, 4): fill_c(t)
    for i in range(4): A(f"v_pk_mov_b32 {v(SB+48+8+2*i,2)}, 0, 0")
    A(f"v_mov_b32 v{vPl}, {NI}\ns_mov_b32 s{sCnt}, 3\ns_mov_b32 s{sKN}, {3 if G2 else 2}")
    ST()
    if stamps: A("s_memtime s[96:97]")
    if WARM: A.warm_end("L_wa1", "L_wa1_ret", WARM)
    A(f"s_lshr_b32 s4, s{sWave}, 1\ns_mul_i32 s4, s4, {-4*RKV*KST}\ns_add_u32 s4, s4, {2*RKV*KST}")
    for d_, s_ in ((7, vKl), (8, vVl), (9, vVl1)): A(f"v_add_u32 v{d_}, s4, v{s_}")
    A.raw(".p2align 6")
    A.label("L_aloop")
    for r in range(RKV):
        sl = r & 1
        chk = not (G2 and r % 2 == 1)
        side = []
        if chk:
            l = lab("akc")
            side.append(f"v_cmp_gt_u32 vcc, s{sKN}, v{vPl}\ns_cbranch_vccnz {l}\n{l}_x:")
            def sp(l=l):
                A.label(l)
                A(f"ds_read_b32 v{vPl}, v{vCntR} offset:512\ns_waitcnt lgkmcnt(0)\nv_cmp_gt_u32 vcc, s{sKN}, v{vPl}\ns_cbranch_vccz {l}_x")
                timeout_exit(l + "_x")
                A(f"s_sleep 1\ns_branch {l}")
            slow.append(sp)
        side += kvitems(sl ^ 1, (r + 1) % RKV, add=chk)
        if not G2 or r % 2 == 1:
            side += [f"ds_read_b32 v{vPl}, v{vCntR} offset:512", f"s_add_u32 s{sKN}, s{sKN}, {2 if G2 else 1}"]
        SPR = opt.get("spr", 1)
        PAT = {0: "QeeeeeBeseeeeeAeeeee", 1: "QeeeseeBeeeseeeAeeesee", 2: "QeeeeseBeeeeseeAeeeese", 3: "QeeseeeBeeseeeeAeeseee", 4: "QeeeeseeBeeseeeEAeesee", 5: "QeeseeBeeeeseeeEAeesee", 6: "QeeEseeBeeEseeEAeeEsee"}[SPR]
        for t in range(4):
            X = SB + 16 * t
            tn = (t + 1) & 3; sn = sl if t < 3 else sl ^ 1
            tp = (t - 1) & 3; sp_ = sl if t > 0 else sl ^ 1
            if t == 3:
                assert not side
                if r == RKV - 1: side = [f"s_sub_u32 s{sCnt}, s{sCnt}, 1", f"s_cmp_lg_u32 s{sCnt}, 0"]
                if SPR == 0: A("s_waitcnt lgkmcnt(0)")
            e = 0; seenB = False
            for k, ch in enumerate(PAT):
                if ch == "Q": A(f"{MF} {v(SB+16*tn,16)}, {rg(KRG[sn])}, {a(Q+4*tn,4)}, {v(C+16*tn,16)}")
                elif ch == "B": A(f"{SMF} {a(O+16*tp,16)}, {rg(VRG[sp_],4)}, {v(SB+16*tp+8,8)}, v{vIdx}"); seenB = True
                elif ch == "A": A(f"{SMF} {a(O+16*t,16)}, {rg(VRG[sl])}, {v(X,8)}, v{vIdx}")
                elif ch == "e": A(f"v_exp_f32{'_e64' if opt.get('e64') else ''} v{X+e}, v{X+e}"); e += 1
                elif ch == "E": A(f"v_exp_f32_e64 v{X+e}, v{X+e}" if SPR == 6 else f"v_exp_f32 v{X+e}, v{X+e}"); e += 1
                else:
                    last = "s" not in PAT[k + 1:]
                    if SPR == 0:
                        while side: A(side.pop(0))
                    elif t == 2 and last:
                        assert not side; A("s_waitcnt lgkmcnt(0)")
                    elif side and not (t == 0 and not seenB and "ds_read_b128" in side[0] and f"v{vKl} " not in side[0]):
                        A(side.pop(0))
            assert e == 16
    A("s_cbranch_scc1 L_aloop")
    assert G2
    PB = C + 32
    def send_items():
        L = [f"s_mul_i32 s{sT0}, s{sWave}, {CMBW}\ns_add_u32 s{sT0}, s{sT0}, {CMB}\nv_add_u32 v{PB+24}, s{sT0}, v{vK}\nv_lshl_add_u32 v{PB+25}, v{vL}, 2, s{sT0}\nv_mov_b32 v{PB+26}, s{sFB}"]
        for i in range(2):
            t = 2 + i
            L += [f"ds_write_b128 v{PB+24}, {a(O+16*t,4)} offset:{i*2304}", f"ds_write_b128 v{PB+24}, {a(O+16*t+4,4)} offset:{i*2304+1024}",
                  f"ds_write_b32 v{PB+25}, a{O+16*t+8} offset:{i*2304+2048}"]
        L += [f"ds_write_b32 v{vAF}, v{PB+26}",
              f"s_xor_b32 s{sT0}, s{sWave}, 2\ns_mul_i32 s{sT0}, s{sT0}, {CMBW}\ns_add_u32 s{sT0}, s{sT0}, {CMB}\nv_add_u32 v{PB+27}, s{sT0}, v{vK}\nv_lshl_add_u32 v{PB+28}, v{vL}, 2, s{sT0}"]
        return L
    def recv():
        lds_spin(lab("ax"), M, vPF, 0, f"v_cmp_gt_u32 vcc, s{sFB}, v{M}")
        for i in range(2):
            b = PB + 12 * i
            A(f"ds_read_b128 {v(b,4)}, v{PB+27} offset:{i*2304}")
            A(f"ds_read_b128 {v(b+4,4)}, v{PB+27} offset:{i*2304+1024}")
            A(f"ds_read_b32 v{b+8}, v{PB+28} offset:{i*2304+2048}")
    HB = [(vKl, vVl, vVl1, 0), (vKl, vVl, vVl1, 1), (7, 8, 9, 0), (7, 8, 9, 1)]
    snd = send_items()
    for u in range(8):
        hb, t = divmod(u, 2); sl = hb & 1
        X = SB + 16 * (u & 3); Xp = SB + 16 * ((u - 1) & 3); Xn = SB + 16 * ((u + 1) & 3)
        tp = 3 if u == 0 else (u - 1) & 1; sp_ = sl if t == 1 else sl ^ 1
        sn = sl if t == 0 else sl ^ 1
        if t == 1 and u < 7: A("s_waitcnt lgkmcnt(0)")
        if u < 7: A(f"{MF} {v(Xn,16)}, {rg(KRG[sn])}, {a(Q+4*(t^1),4)}, {v(C+16*(t^1),16)}")
        for j in range(5): A(f"v_exp_f32 v{X+j}, v{X+j}")
        A(f"{SMF} {a(O+16*tp,16)}, {rg(VRG[sp_],4)}, {v(Xp+8,8)}, v{vIdx}")
        A(f"v_exp_f32 v{X+5}, v{X+5}")
        if u == 0:
            l = lab("akc")
            A(f"v_cmp_gt_u32 vcc, 32, v{vPl}\ns_cbranch_vccnz {l}")
            A.label(l + "_x")
            def sp(l=l):
                A.label(l)
                A(f"ds_read_b32 v{vPl}, v{vCntR} offset:512\ns_waitcnt lgkmcnt(0)\nv_cmp_gt_u32 vcc, 32, v{vPl}\ns_cbranch_vccz {l}_x")
                timeout_exit(l + "_x")
                A(f"s_sleep 1\ns_branch {l}")
            slow.append(sp)
            A(f"ds_add_u32 v{vOwn}, v{vOneA} offset:1024")
        if t == 0 and hb < 3:
            k_, v0_, v1_, pos = HB[hb + 1]
            A(f"ds_read_b128 {rg(KRG[sl^1])}, v{k_} offset:{pos*KST}")
            A(f"ds_read_b128 {rg(VRG[sl^1])}, v{v0_} offset:{pos*KST}")
            A(f"ds_read_b128 {rg(VRG[sl^1],4)}, v{v1_} offset:{pos*KST}")
        if u == 6: recv()
        for j in range(6, 11):
            A(f"v_exp_f32 v{X+j}, v{X+j}")
            if u in (1, 3) and snd and (u == 3 or len(snd) > 4): A(snd.pop(0))
        A(f"{SMF} {a(O+16*t,16)}, {rg(VRG[sl])}, {v(X,8)}, v{vIdx}")
        for j in range(11, 16): A(f"v_exp_f32 v{X+j}, v{X+j}")
    assert not snd
    A("s_nop 2")
    A(f"{SMF} {a(O+16,16)}, {rg(VRG[1],4)}, {v(SB+48+8,8)}, v{vIdx}")
    ST()
    if stamps: A("s_memtime s[98:99]")
    A.label("L_afin")
    if WARM: A.warm_begin()
    for e in range(9): A(f"v_accvgpr_read_b32 v{C+e}, a{O+e}")
    A("s_nop 2")
    for e in range(9): A(f"v_accvgpr_read_b32 v{C+12+e}, a{O+16+e}")
    A(f"""
    v_mov_b32 v2, 0
    v_mov_b32 v3, 0
    s_mov_b32 s4, {hex(f2u(2.0**-110))}
    s_mov_b32 s5, {hex(f2u(2.0**120))}
    s_add_u32 s6, s{sO}, 32768
    s_waitcnt lgkmcnt(0)
    """)
    B_ = [C, C + 12]
    for b0 in B_: A(f"v_add_f32 v{b0+8}, v{b0+8}, v{b0+32+8}")
    for b0 in B_: A(f"v_rcp_f32 v{b0+10}, v{b0+8}")
    for b0 in B_:
        for e in range(4): A(f"v_pk_add_f32 {v(b0+2*e,2)}, {v(b0+2*e,2)}, {v(b0+32+2*e,2)}")
    A(f"""
    v_min_f32 v4, v{B_[0]+8}, v{B_[1]+8}
    v_max_f32 v5, v{B_[0]+8}, v{B_[1]+8}
    v_cmp_nle_f32 {s(sBad,2)}, s4, v4
    v_cmp_nge_f32 vcc, s5, v5
    """)
    for b0 in B_:
        for e in range(4): A(f"v_pk_mul_f32 {v(b0+2*e,2)}, {v(b0+2*e,2)}, {v(b0+10,2)} op_sel_hi:[1,0]")
    A(f"s_or_b64 {s(sBad,2)}, {s(sBad,2)}, vcc")
    for b0 in B_:
        for e in range(4): A(f"v_pk_fma_f32 v[2:3], {v(b0+2*e,2)}, 0, v[2:3] op_sel_hi:[1,0,1]")
    for b0 in B_:
        for e in range(4): A(f"v_cvt_pk_bf16_f32 v{b0+32+e}, v{b0+2*e}, v{b0+2*e+1}")
    A("v_cmp_u_f32 vcc, v2, v3")
    for b0 in B_:
        for e in range(4): A(f"v_min_u32 v{b0+32+e}, -2, v{b0+32+e}")
    A(f"""
    s_or_b64 {s(sBad,2)}, {s(sBad,2)}, vcc
    s_cselect_b32 s4, 2, 1
    s_cmp_eq_u32 s{sFB}, 2
    s_cselect_b32 s5, 1, s4
    s_or_b32 s5, s5, s{sFo}
    s_cmp_lg_u32 s5, 1
    s_cbranch_scc1 L_anost
    buffer_store_dwordx4 {v(B_[0]+32,4)}, v{vK}, {ws}, s{sO} offen sc1
    buffer_store_dwordx4 {v(B_[1]+32,4)}, v{vK}, {ws}, s6 offen sc1
    s_mov_b32 s{sFo}, 2
    """)
    A.label("L_anost")
    A(f"v_mov_b32 v2, s4\nds_write_b32 v{vAF}, v2 offset:256")
    if WARM: A.warm_end("L_wa2", "L_wg_ret", WARM)
    A.label("L_anoflag")
    def aflush():
        if stamps:
            ST(); A("s_waitcnt lgkmcnt(0)\ns_sub_u32 s98, s98, s96\ns_add_u32 s%d, s98, s%d" % (ST.base + 2 * ST.n, ST.base)); ST.n += 1
            ST.flush(ws, STAMP, sWave, 2, 3, sT0)
    if not AEPI: aflush()
    else: ST()
    LX = "L_aepi" if AEPI else "L_end"
    A(f"s_cmp_eq_u32 s{sFB}, 2\ns_cbranch_scc1 {LX}")
    lds_spin("L_as", M, vPF, 256, f"v_cmp_eq_u32 vcc, 0, v{M}")
    A(f"v_readfirstlane_b32 s5, v{M}\ns_max_u32 s4, s4, s5\ns_cmp_lt_u32 s4, 2\ns_cbranch_scc0 L_afb0")
    if AEPI:
        A.label("L_aepi")
        XW, XFa, PT, GV = 16, 24, 80, 40
        A(f"""
        s_mov_b32 s{sOut}, s22
        s_mov_b32 s{sOut+1}, s23
        s_mov_b32 s{sOut+2}, {S*D*2}
        s_mov_b32 s{sOut+3}, 0x00020000
        s_lshl_b32 s4, s{sRB}, 16
        s_lshl_b32 s5, s{sCG}, 7
        s_add_u32 s4, s4, s5
        s_and_b32 s5, s{sWave}, 1
        s_lshl_b32 s5, s5, 15
        s_add_u32 s4, s4, s5
        s_lshr_b32 s5, s{sWave}, 1
        s_lshl_b32 s5, s5, 6
        s_add_u32 s4, s4, s5
        v_and_b32 v2, 31, v{vL}
        v_lshlrev_b32 v2, 10, v2
        v_lshrrev_b32 v4, 5, v{vL}
        v_lshl_add_u32 v2, v4, 3, v2
        v_lshl_add_u32 v3, v4, 3, v2
        """)
        for q in range(4): A(f"buffer_load_dwordx2 {v(XW+2*q,2)}, v2, {s(sX,4)}, s4 offen offset:{16*q}")
        A(f"s_lshl_b32 s5, s{sWave}, 12\nv_add_u32 v4, s5, v{vK}\ns_lshl_b32 s5, s{sWave}, 13\nv_add_u32 v5, s5, v{vK}")
        for lt in range(4):
            A(f"v_xor_b32 v{6+lt}, {lt*4096}, v4\nv_add_u32 v{6+lt}, {RB0 + (2+lt)*SLOT}, v{6+lt}")
        A(f"s_mov_b32 s6, {hex(f2u(-1.4426950408889634))}\ns_mov_b32 s7, s6")
        def gather(dst, regs):
            for lt in range(4):
                for q in range(4): A(f"ds_read_b128 {v(PT+16*lt+4*q,4)}, v{regs[lt]} offset:{q*1024}")
                if lt == 2: A("s_waitcnt lgkmcnt(4)")
            for i in range(8): A(f"v_pk_add_f32 {v(PT+2*i,2)}, {v(PT+2*i,2)}, {v(PT+16+2*i,2)}")
            A("s_waitcnt lgkmcnt(0)")
            for i in range(8): A(f"v_pk_add_f32 {v(PT+32+2*i,2)}, {v(PT+32+2*i,2)}, {v(PT+48+2*i,2)}")
            for i in range(8): A(f"v_pk_add_f32 {v(dst+2*i,2)}, {v(PT+2*i,2)}, {v(PT+32+2*i,2)}")
        lds_spin("L_ad", 15, vCntR, 512, "v_cmp_gt_u32 vcc, 33, v15", sleep=1)
        gather(GV, [6, 7, 8, 9])
        for i in range(8): A(f"v_pk_mul_f32 {v(PT+2*i,2)}, {v(GV+2*i,2)}, s[6:7]")
        for i in range(16): A(f"v_exp_f32 v{PT+i}, v{PT+i}")
        A(f"v_add_u32 v6, {4*SLOT}, v6\nv_add_u32 v7, {4*SLOT}, v7\nv_xor_b32 v8, {2*8192}, v5\nv_xor_b32 v9, {3*8192}, v5\nv_add_u32 v9, 4096, v9")
        for i in range(8): A(f"v_pk_add_f32 {v(PT+2*i,2)}, {v(PT+2*i,2)}, 1.0 op_sel_hi:[1,0]")
        for i in range(16): A(f"v_rcp_f32 v{PT+i}, v{PT+i}")
        A("s_waitcnt vmcnt(0)")
        for i in range(8):
            A(f"v_lshlrev_b32 v{XFa+2*i}, 16, v{XW+i}\nv_and_b32 v{XFa+2*i+1}, 0xffff0000, v{XW+i}")
        for i in range(8): A(f"v_pk_mul_f32 {v(GV+2*i,2)}, {v(GV+2*i,2)}, {v(PT+2*i,2)}")
        lds_spin("L_ae", 15, vCntR, 512, "v_cmp_gt_u32 vcc, 34, v15", sleep=1)
        gather(PT, [6, 7, 8, 9])
        for i in range(8): A(f"v_pk_fma_f32 {v(PT+2*i,2)}, {v(PT+2*i,2)}, {v(GV+2*i,2)}, {v(XFa+2*i,2)}")
        for i in range(8): A(f"v_cvt_pk_bf16_f32 v{56+i}, v{PT+2*i}, v{PT+2*i+1}")
        A("s_nop 1")
        for h in range(2):
            A(f"v_permlane32_swap_b32 v{56+4*h}, v{58+4*h}\nv_permlane32_swap_b32 v{57+4*h}, v{59+4*h}")
        for h in range(2):
            A(f"buffer_store_dwordx4 {v(56+4*h,4)}, v3, {s(sOut,4)}, s4 offen offset:{32*h}")
        aflush()
    A("s_endpgm")
    A.label("L_afb0")
    A(f"s_mov_b32 s{sFB}, 2\ns_mov_b32 s{sOff}, 0\ns_mov_b32 s{sCnt}, 64\ns_mov_b32 s{sKA}, s{sKb}\ns_waitcnt vmcnt(0)")
    for t in range(4): A(f"v_mov_b32 v{M+t}, 0xff800000")
    A.label("L_afb")
    A(f"buffer_load_dwordx4 {a(KS,4)}, v{vK}, {ws}, s{sKA} offen sc1")
    A("s_waitcnt vmcnt(0)")
    for t in range(4): A(f"{MF} {v(C+16*t,16)}, {a(KS,4)}, {a(Q+4*t,4)}, 0")
    A("s_nop 11")
    for t in range(4): maxtree(M + t, [C + 16 * t], False)
    A(f"s_add_u32 s{sKA}, s{sKA}, 1024\ns_sub_u32 s{sCnt}, s{sCnt}, 1\ns_cmp_lg_u32 s{sCnt}, 0\ns_cbranch_scc1 L_afb")
    build_c()
    for t in range(4): fill_c(t)
    zero_o()
    A(f"s_mov_b32 s{sCnt}, 32\ns_mov_b32 s{sKA}, s{sKVb}")
    A.label("L_afb2")
    A(f"""
    buffer_load_dwordx4 {rg(KRG[0])}, v{vK}, {ws}, s{sKA} offen sc1
    s_mov_b64 exec, {s(sMask,2)}
    buffer_load_dwordx4 {rg(VRG[0])}, v{vV}, {ws}, s{sKA} offen sc1
    buffer_load_dwordx4 {rg(VRG[0],4)}, v{vV}, {ws}, s{sKA} offen offset:512 sc1
    s_mov_b64 exec, -1
    s_waitcnt vmcnt(0)
    """)
    for t in range(4): A(f"{MF} {v(SB+16*t,16)}, {rg(KRG[0])}, {a(Q+4*t,4)}, {v(C+16*t,16)}")
    A("s_nop 8")
    for j in range(64): A(f"v_exp_f32 v{SB+j}, v{SB+j}")
    A("s_nop 2")
    for t in range(4):
        A(f"{SMF} {a(O+16*t,16)}, {rg(VRG[0])}, {v(SB+16*t,8)}, v{vIdx}")
        A(f"{SMF} {a(O+16*t,16)}, {rg(VRG[0],4)}, {v(SB+16*t+8,8)}, v{vIdx}")
    A(f"s_add_u32 s{sKA}, s{sKA}, 1024\ns_sub_u32 s{sCnt}, s{sCnt}, 1\ns_cmp_lg_u32 s{sCnt}, 0\ns_cbranch_scc1 L_afb2")
    A("s_nop 15")
    for x in send_items(): A(x)
    recv()
    A("s_branch L_afin")
    for f in slow: f()
    A.label("L_end")
    A("s_endpgm")
    if opt.get("cpf", 1): A.raw(f".fill (51200 - (. - {K})) / 4, 4, 0xbf800000")

    H_ = Asm()
    H_.raw('''; Fused LayerNorm + QKV + softmax attention + GEGLU FFN + output projection (generated by gen/mega.py).
; queries (QK^T MFMA with -reference in C, exp2, sparse MFMA that takes the bf16 high halves of the fp32 P directly,
; row sums from a ones row). Waves 4-7 ("G"): QKV, gate/up + GELU, down, Wo GEMMs and the K/V LDS ring.
; finite are recomputed with the true row max. Cross-workgroup hand-offs: write-through stores + per-launch tag flags
; or all-ones markers; every wait is bounded.''')
    H_.raw(f"; @launch grid=(256,1,1) block=(512,1,1) lds={LDS}")
    H_.raw('.amdgcn_target "amdgcn-amd-amdhsa--gfx950"\n.text')
    H_.lines += A.lines
    H_.raw(f""".section .rodata,"a"
.p2align 6
.amdhsa_kernel {K}
  .amdhsa_next_free_vgpr {NV+NA}
  .amdhsa_next_free_sgpr 102
  .amdhsa_accum_offset {NV}
  .amdhsa_group_segment_fixed_size 0
  .amdhsa_kernarg_size 80
  .amdhsa_user_sgpr_count 2
  .amdhsa_user_sgpr_kernarg_segment_ptr 1
  .amdhsa_system_sgpr_workgroup_id_x 1
.end_amdhsa_kernel""")
    txt = H_.text()
    check_hazards(txt)
    return txt

if __name__ == "__main__":
    base = {"pfgo": 1}
    open("mega_s.s", "w").write(build(True, base))
    open("mega.s", "w").write(build(False, base))
    open("mega_tr.s", "w").write(build(True, dict(base, atrace=1)))
    open("mega_dbg.s", "w").write(build(True, dict(base, dbgout=10)))
    open("mega_pt.s", "w").write(build(False, dict(base, pretouch=1)))
    open("mega_nc.s", "w").write(build(False, dict(base, cpf=0)))
    open("mega_b.s", "w").write(build(True, dict(base, p1kv=0, p2early=0)))
    open("mega_c.s", "w").write(build(True, dict(base, p1kv=1, p2early=0)))
    open("mega_d.s", "w").write(build(True, dict(base, p1kv=0, p2early=1)))
```

```python
import sys, struct
from asmlib import *
from layout import *
NAME = 'recurrent_scan__softmax_full_mha__glu_gated_geglu__prompt'
def f2u(x): return struct.unpack("<I", struct.pack("<f", x))[0]
MF = "v_mfma_f32_32x32x16_bf16"
SMF = "v_smfmac_f32_32x32x32_bf16"
C1 = -2.0 * 1.4426950408889634 * 0.7978845608028654
C2 = C1 * 0.044715
NV, NA = 144, 112

SLOT = 16384
RB0 = 9472
KST = 1056
RKV = 10
PIECE = 528
XT = RB0 + 5 * SLOT
CMB = RB0 + 8 * SLOT
CMBW = 2 * 2304
CNT = CMB + 4 * CMBW
LDC = CNT + 1024
AFL = LDC + 1024
GO = AFL + 8 * 256
LDS = GO + 256
assert XT + 128 * PIECE <= CNT and LDS <= 163840 and 4 * RKV * KST == RB0 + 2 * SLOT

class Fifo:
    def __init__(self, cap): self.q = []; self.cap = cap; self.since = 0
    def push(self, tag, n=1): self.q += [tag] * n; self.since += n
    def need(self, tag):
        idx = [i for i, t in enumerate(self.q) if t == tag]
        if not idx: return None
        return min(len(self.q) - 1 - idx[-1], self.cap)
    def waited(self, n): self.q = self.q[max(0, len(self.q) - n):] if n else []
    def clear(self): self.q = []

def build(stamps=False, opt=None):
    opt = opt or {}
    TIMEOUT = opt.get("timeout", 200000)
    NG0 = opt.get('ng0', 4)
    PF2MASK = '0xffffffff'
    A = Asm()
    K = NAME + "_kernel"
    ST = Stamps(A, 70, stamps); ST.cyc = opt.get('cyc', False)
    sX, sWq, sWgu, sWd, sWo, sWS, sOut, sDbg = 8, 12, 16, 20, 24, 28, 32, 36
    sWave, sRB, sCG, sT0, sT1, sT2, sTag, sTO = 40, 41, 42, 43, 44, 45, 46, 47
    sGW, sMI, sNI, sM0, sQoff, sGoff, sDoff, sOoffW, sNeed, sFlag, sHst, sBlk, sNb = 48, 49, 50, 51, 52, 53, 54, 55, 56, 57, 58, 59, 60
    sHfl, sC, sD0, sD1, sHld, sXo, sHb, sSt = 61, 62, 64, 65, 66, 67, 68, 69
    sKA, sCnt, sKB2, sBad = 48, 51, 49, 52
    sFB, sOff, sQ, sKVb, sHead, sO, sKb, sFo = 50, 54, 55, 56, 57, 60, 61, 62
    sMask, sQ0, sFQ, sP3, sPKV = 58, 63, 65, 66, 67
    sKVs, sKVm = 52, 1
    ws = s(sWS, 4)
    vL, vT0, vT1, vT2, vHF = 1, 2, 3, 4, 5
    vDq0, vDq1, vDg0, vDg1, vDd0, vDd1 = 6, 7, 8, 9, 10, 11
    vTRn, vTRnH, vTRp0, vTRp0H, vTRp1, vTRp1H = 12, 13, 14, 15, 16, 17
    vCnt, vOne, vP, vL16, vFl, vL128 = 18, 19, 20, 21, 22, 23
    vH0, vO0 = 6, 7
    vCntR = 0
    slow = []
    vKo, vVo, vH1, vO1, vXo, vRW, vRR, vXR = 24, 25, 26, 27, 28, 29, 30, 31
    WFB = [32, 36, 112, 116, 120, 124]
    if opt.get('twice'): WFB = [32, 128, 112, 116, 120, 124]
    ACC0, ACC1, TMP, AD, XR, GR, SR = 40, 56, 72, 40, 104, 128, 112
    vmq = Fifo(63); lq = Fifo(15)
    uid = [0]
    lowprio = [False]
    def lab(p):
        uid[0] += 1; return f"L_{p}{uid[0]}"
    def vwait(tag):
        n = vmq.need(tag)
        if n is not None: A(f"s_waitcnt vmcnt({n})"); vmq.waited(n)
    def lwait(tag):
        n = lq.need(tag)
        if n is not None: A(f"s_waitcnt lgkmcnt({n})"); lq.waited(n)
    def lds(instr, tag):
        if len(lq.q) >= 15:
            A("s_waitcnt lgkmcnt(12)"); lq.waited(12)
        A(instr); lq.push(tag)
    def timeout_exit(lbl):
        A(f"s_sub_u32 s{sTO}, s{sTO}, 1\ns_cmp_lt_i32 s{sTO}, 0\ns_cbranch_scc1 {lbl}")
    def emask(n): return n if isinstance(n, str) else ("-1" if n == 64 else hex((1 << n) - 1))

    A.raw(f".globl {K}\n.p2align 8\n.type {K},@function\n{K}:")
    F0 = opt.get("front0"); FR = opt.get("front")
    A(f"""
    s_cmp_ge_u32 s2, 256
    s_cbranch_scc1 L_end
    """)
    if opt.get("twice"): A("v_mov_b32 v135, 0"); A.label("L_restart")
    def again():
        if opt.get("twice"):
            l = lab("tw")
            A(f"s_waitcnt vmcnt(0) lgkmcnt(0)\ns_barrier\ns_setprio 0\nv_readfirstlane_b32 s4, v135\ns_cmp_lg_u32 s4, 0\ns_cbranch_scc1 {l}\nv_mov_b32 v135, 1\ns_lshl_b32 s4, s40, 6\nv_add_u32 v0, s4, v1\ns_sleep 40\ns_branch L_restart")
            A.label(l)
    if opt.get("xhold") or opt.get("xgo") or opt.get("xln"): A("s_memrealtime s[100:101]")
    def hold(lbl, t):
        A.label(lbl)
        A(f"s_memrealtime s[98:99]\ns_waitcnt lgkmcnt(0)\ns_sub_u32 s98, s98, s100\ns_cmp_lt_u32 s98, {t}\ns_cbranch_scc1 {lbl}")
    if opt.get("scr"):
        A("s_and_b32 s4, s2, 7\ns_lshl_b32 s4, s4, 3\ns_bfe_u32 s5, s2, 0x30003\ns_and_b32 s2, s2, 0xc0\ns_or_b32 s2, s2, s4\ns_or_b32 s2, s2, s5")
    A(f"""
    s_load_dwordx4 s[4:7], s[0:1], 0
    """)
    REST = "s_load_dwordx2 s[24:25], s[0:1], 16\ns_load_dwordx4 s[16:19], s[0:1], 32\ns_load_dwordx4 s[20:23], s[0:1], 48\ns_load_dwordx4 s[36:39], s[0:1], 64"
    if not opt.get("ksplit"): A(REST)
    if opt.get("cpf", 1):
        A(f"""
        s_getpc_b64 s[8:9]
        s_lshr_b32 s10, s2, 3
        s_lshl_b32 s10, s10, 7
        s_add_u32 s8, s8, s10
        s_addc_u32 s9, s9, 0
        v_lshlrev_b32 v2, 12, v0
        v_add_co_u32 v2, vcc, s8, v2
        v_mov_b32 v3, s9
        v_cmp_gt_u32 s[10:11], 12, v0
        v_addc_co_u32 v3, vcc, 0, v3, vcc
        s_and_saveexec_b64 s[12:13], s[10:11]
        s_cbranch_execz L_nocpf
        global_load_dword v143, v[2:3], off
        L_nocpf:
        s_mov_b64 exec, -1
        """)
    ST()
    A(f"""
    v_lshrrev_b32 v{vT0}, 6, v0
    v_and_b32 v{vL}, 63, v0
    s_and_b32 s{sT0}, s2, 7
    v_readfirstlane_b32 s{sWave}, v{vT0}
    s_lshr_b32 s{sT1}, s2, 3
    s_lshr_b32 s{sRB}, s{sT0}, 1
    s_lshl_b32 s{sRB}, s{sRB}, 3
    s_and_b32 s{sT2}, s{sT1}, 7
    s_add_u32 s{sRB}, s{sRB}, s{sT2}
    s_and_b32 s{sCG}, s{sT0}, 1
    s_lshl_b32 s{sCG}, s{sCG}, 2
    s_lshr_b32 s{sT2}, s{sT1}, 3
    s_add_u32 s{sCG}, s{sCG}, s{sT2}
    """)
    MAP = opt.get("map", 0)
    if MAP & 1:
        A(f"s_lshl_b32 s{sRB}, s{sT0}, 2\ns_and_b32 s{sT2}, s{sT1}, 3\ns_add_u32 s{sRB}, s{sRB}, s{sT2}\ns_lshr_b32 s{sCG}, s{sT1}, 2")
    if MAP & 2:
        A(f"s_lshl_b32 s2, s{sT0}, 5\ns_and_b32 s{sT2}, s{sT1}, 3\ns_lshl_b32 s{sT2}, s{sT2}, 3\ns_or_b32 s2, s2, s{sT2}\ns_lshr_b32 s{sT2}, s{sT1}, 2\ns_or_b32 s2, s2, s{sT2}")
    if MAP & 4:
        A(f"s_mov_b32 s{sRB}, s{sT1}\ns_mov_b32 s{sCG}, s{sT0}")
    A(f"""
    v_lshrrev_b32 v{vT0}, 3, v{vL}
    v_and_b32 v{vT1}, 7, v{vL}                  ; 16B piece
    v_lshlrev_b32 v{vT2}, 10, v{vT0}
    v_lshl_add_u32 v5, v{vT1}, 4, v{vT2}
    s_lshl_b32 s{sT0}, s{sRB}, 16
    s_lshl_b32 s{sT1}, s{sWave}, 13
    s_add_u32 s{sT0}, s{sT0}, s{sT1}            ; x rows of this wave (8 rows)
    s_mov_b32 s{sX+2}, {S*D*2}
    s_mov_b32 s{sX+3}, 0x00020000
    s_mov_b32 s{sWq+2}, {D*1536*2}
    s_mov_b32 s{sWq+3}, 0x00020000
    s_and_b32 s{sGW}, s{sWave}, 3
    s_and_b32 s{sMI}, s{sGW}, 1
    v_lshlrev_b32 v{vL16}, 4, v{vL}
    s_lshl_b32 s{sT1}, s{sGW}, 2
    s_add_u32 s{sT1}, s{sT1}, {CNT}
    v_lshlrev_b32 v{vCnt}, 2, v{vL}
    v_add_u32 v{vCnt}, {CNT+256}, v{vCnt}
    v_writelane_b32 v{vCnt}, s{sT1}, 0
    v_mov_b32 v{vOne}, 1
    v_and_b32 v{vFl}, 3, v{vL}
    v_lshlrev_b32 v{vCntR}, 2, v{vFl}
    v_add_u32 v{vCntR}, {CNT}, v{vCntR}
    s_mov_b32 s{sTO}, {TIMEOUT}
    s_waitcnt lgkmcnt(0)
    s_mov_b32 s{sX}, s4
    s_mov_b32 s{sX+1}, s5
    s_mov_b32 s{sWq}, s6
    s_mov_b32 s{sWq+1}, s7
    """)
    R = 40
    if opt.get("ksplit"): A(REST)
    for cb in range(8):
        A(f"buffer_load_dwordx4 {v(R+4*cb,4)}, v5, {s(sX,4)}, s{sT0} offen offset:{cb*128}")
    if opt.get("ksplit"): A("s_waitcnt lgkmcnt(0)")
    SRDS = f"""
    s_mov_b32 s{sWS}, s38
    s_mov_b32 s{sWS+1}, s39
    s_mov_b32 s{sWS+2}, {WS_USED}
    s_mov_b32 s{sWS+3}, 0x00020000
    s_mov_b32 s{sDbg+2}, 256
    s_mov_b32 s{sDbg+3}, 0x00020000
    s_bitcmp1_b32 s{sWave}, 1
    s_cselect_b32 s{sWgu}, s18, s16
    s_cselect_b32 s{sWgu+1}, s19, s17
    s_mov_b32 s{sWgu+2}, {D*F*2}
    s_mov_b32 s{sWgu+3}, 0x00020000
    v_lshlrev_b32 v{vT2}, 1, v{vT0}
    v_and_b32 v{vT2}, 4, v{vT2}
    v_xor_b32 v{vT2}, v{vT2}, v{vT1}
    v_lshlrev_b32 v{vHF}, 4, v{vT2}
    s_lshl_b32 s{sM0}, s{sGW}, 12
    s_add_u32 s{sM0}, s{sM0}, {RB0}
    s_mul_i32 s{sBlk}, s{sCG}, 3
    s_add_u32 s{sT1}, s{sCG}, 1
    s_lshr_b32 s{sT1}, s{sT1}, 2
    s_sub_u32 s{sBlk}, s{sBlk}, s{sT1}
    v_mul_u32_u24 v{vDq0}, 3072, v{vT0}
    v_add_u32 v{vDq0}, v{vDq0}, v{vHF}
    v_add_u32 v{vDq1}, {8*3072-1024}, v{vDq0}
    s_mul_i32 s{sQoff}, s{sGW}, {32*3072}
    s_lshl_b32 s{sT2}, s{sCG}, 7
    s_add_u32 s{sQoff}, s{sQoff}, s{sT2}
    """
    A(SRDS)
    A(f"s_cmp_lt_u32 s{sWave}, 4\ns_cbranch_scc1 L_pre_a")
    BASE = [0, 3, 6, 8, 11, 14, 17, 19]
    DSEQ = [BASE[j] for j in range(8) if j % 4 != 3] + [BASE[j] + 1 for j in range(8)] + [BASE[j] + 2 for j in range(8)]
    CSTART = {0: 0, 6: 1, 14: 2}
    CMASK = [0x0fff0fff, 0xffffffff, 0xffffffff]
    def dma_pieces(kind, idx, slot):
        if kind == "q":
            panel = (1, 2, 0)[idx // 4]; o = (idx % 4) * 128 * 3072 + panel * 1024
            srd, so, v0_, v1_, o2 = sWq, sQoff, vDq0, vDq1, o + 16 * 3072
        elif kind == "g":
            o = (idx % 8) * 64 * 2752 + (idx // 8) * 128
            srd, so, v0_, v1_, o2 = sWgu, sGoff, vDg0, vDg1, o + 16 * 2752
        elif kind == "d":
            o = DSEQ[2 * idx] * 64 * 1024; o2 = DSEQ[2 * idx + 1] * 64 * 1024
            srd, so, v0_, v1_ = sWd, sDoff, vDd0, vDd1
        else:
            o = idx * 32 * 1024; o2 = o + 16 * 1024
            srd, so, v0_, v1_ = sWo, sOoffW, vDd0, vDd1
        tag = ("dma", kind, idx)
        def p0():
            A(f"s_add_u32 m0, s{sM0}, {slot*SLOT}\ns_add_u32 s{sD0}, s{so}, {o}")
            A(f"buffer_load_dwordx4 v{v0_}, {s(srd,4)}, s{sD0} offen lds"); vmq.push(tag)
        def p1():
            if lowprio[0]: A(f"s_add_u32 m0, s{sM0}, {slot*SLOT}\ns_nop 0")
            A(f"buffer_load_dwordx4 v{v1_}, {s(srd,4)}, s{sD0} offen offset:1024 lds"); vmq.push(tag)
        def p2():
            if lowprio[0]: A(f"s_add_u32 m0, s{sM0}, {slot*SLOT}")
            A(f"s_add_u32 s{sD0}, s{so}, {o2 - 2048}")
            A(f"buffer_load_dwordx4 v{v0_}, {s(srd,4)}, s{sD0} offen offset:2048 lds"); vmq.push(tag)
        def p3():
            if lowprio[0]: A(f"s_add_u32 m0, s{sM0}, {slot*SLOT}\ns_nop 0")
            A(f"buffer_load_dwordx4 v{v1_}, {s(srd,4)}, s{sD0} offen offset:3072 lds"); vmq.push(tag)
        if opt.get("xnodma") and not (kind == "q" and idx < 5): return []
        if opt.get("xhalfdma") and not (kind == "q" and idx < 5): return [p0, p1]
        return [p0, p1, p2, p3]
    def dma(kind, idx, slot):
        cap = opt.get("ldcap", 40)
        for p in dma_pieces(kind, idx, slot):
            if len(vmq.q) > cap:
                A(f"s_waitcnt vmcnt({cap})"); vmq.waited(cap)
            p()
    def ddq(g): return ("q", g, g % 8) if g < 12 else ("g", g - 12, g % 8)
    GUADDR = f"""
    v_mul_u32_u24 v{vDg0}, 2752, v{vT0}
    v_add_u32 v{vDg0}, v{vDg0}, v{vHF}
    v_add_u32 v{vDg1}, {8*2752-1024}, v{vDg0}
    s_mul_i32 s{sGoff}, s{sMI}, {32*2752}
    s_lshl_b32 s{sT0}, s{sBlk}, 7
    s_add_u32 s{sGoff}, s{sGoff}, s{sT0}
    """
    A(f"""
    ; L2 warm-up of this XCD's share of Wqkv (speed only): rows 16r + (l>>2), 4 lines, panel by wave
    v_bfe_u32 v{vP}, v{vL}, 2, 2
    v_mul_u32_u24 v{vP}, 3072, v{vP}
    v_lshl_add_u32 v{vP}, v{vFl}, 7, v{vP}
    v_lshrrev_b32 v{vKo}, 4, v{vL}
    v_lshl_add_u32 v{vP}, v{vKo}, 10, v{vP}
    s_lshr_b32 s{sT1}, s2, 3
    s_mul_i32 s{sT1}, s{sT1}, {16*3072}
    s_mul_i32 s{sT0}, s{sGW}, {4*3072}
    s_add_u32 s{sT1}, s{sT1}, s{sT0}
    s_and_b32 s{sT0}, s2, 1
    s_lshl_b32 s{sT0}, s{sT0}, 9
    s_add_u32 s{sT1}, s{sT1}, s{sT0}
    s_lshr_b32 s{sNI}, s{sGW}, 1
    v_bfe_u32 v{vT2}, v{vL}, 2, 2
    v_lshlrev_b32 v{vTRp0}, 7, v{vT2}
    v_bfe_u32 v{vKo}, v{vL}, 4, 1
    v_lshl_add_u32 v{vTRp0}, v{vKo}, 5, v{vTRp0}
    v_lshl_add_u32 v{vTRp0}, v{vFl}, 3, v{vTRp0}
    v_lshrrev_b32 v{vH1}, 1, v{vT2}             ; r>>1
    v_lshrrev_b32 v{vO1}, 5, v{vL}              ; half
    v_xor_b32 v{vFl}, s{sNI}, v{vH1}
    v_lshl_add_u32 v{vTRn}, v{vFl}, 6, v{vTRp0}
    v_lshl_add_u32 v{vTRn}, v{vO1}, 10, v{vTRn}
    v_add_u32 v{vTRn}, {RB0}, v{vTRn}
    v_add_u32 v{vTRnH}, 65536, v{vTRn}
    v_and_b32 v{vRW}, 31, v{vL}
    v_mul_u32_u24 v{vXR}, {PIECE}, v{vO1}
    v_lshl_add_u32 v{vXR}, v{vRW}, 4, v{vXR}
    s_mul_i32 s{sT0}, s{sMI}, {64*PIECE}
    s_add_u32 s{sT0}, s{sT0}, {XT}
    v_add_u32 v{vXR}, s{sT0}, v{vXR}
    s_mov_b64 exec, {'1' if MAP else ('0xffffffff' if opt.get('p1kv', 1) else '0xffff')}
    buffer_load_dword v143, v{vP}, {s(sWq,4)}, s{sT1} offen offset:1024
    s_mov_b64 exec, -1
    ; all-ones marker into this wave's Q tiles (replaced by the result later)
    s_lshl_b32 s{sSt}, s{sRB}, 11
    s_lshl_b32 s{sT0}, s{sMI}, 10
    s_add_u32 s{sSt}, s{sSt}, s{sT0}
    s_lshl_b32 s{sT0}, s{sCG}, 18
    s_add_u32 s{sSt}, s{sSt}, s{sT0}
    s_lshl_b32 s{sT0}, s{sNI}, 17
    s_add_u32 s{sSt}, s{sSt}, s{sT0}
    s_add_u32 s{sD1}, s{sSt}, 65536
    v_mov_b32 v136, -1
    v_mov_b32 v137, -1
    v_mov_b32 v138, -1
    v_mov_b32 v139, -1
    v_lshlrev_b32 v140, 13, v{vO1}
    v_lshl_add_u32 v140, v{vRW}, 2, v140
    s_lshr_b32 s0, s{sSt}, 3
    s_add_u32 s0, s0, {MFO}
    s_mov_b32 s3, 1
    s_setprio {opt.get("glnprio", 1)}
    """)
    GE = opt.get("ge", 0)
    for g in range(GE): dma(*ddq(g))
    vmq.clear()
    SA = 104
    def stats(younger):
        A("s_mov_b32 s4, 0x3f803f80")
        for i in range(32):
            if i % 8 == 0: A(f"s_waitcnt vmcnt({younger + 6 - i // 4})")
            a1 = SA + (i & 1); a2 = SA + 2 + (i & 1)
            A(f"v_dot2_f32_bf16 v{a1}, v{R+i}, s4, {'0' if i < 2 else 'v%d' % a1}")
            A(f"v_dot2_f32_bf16 v{a2}, v{R+i}, v{R+i}, {'0' if i < 2 else 'v%d' % a2}")
    INC = opt.get("inc", 0)
    if INC: stats(1 + 4 * GE); A("s_branch L_ln")
    else: A(f"s_waitcnt vmcnt({1 + 4 * GE})\ns_branch L_ln")
    GLATE = [x.strip() for x in (GUADDR + f"""
    s_mov_b32 s{sOut}, s22
    s_mov_b32 s{sOut+1}, s23
    s_mov_b32 s{sOut+2}, {S*D*2}
    s_mov_b32 s{sOut+3}, 0x00020000
    s_mov_b32 s{sWd+2}, {F*D*2}
    s_mov_b32 s{sWd+3}, 0x00020000
    s_mov_b32 s{sWo+2}, {D*D*2}
    s_mov_b32 s{sWo+3}, 0x00020000
    v_lshl_add_u32 v{vDd0}, v{vT0}, 10, v{vHF}
    v_add_u32 v{vDd1}, {8*1024-1024}, v{vDd0}
    s_lshl_b32 s{sT2}, s{sCG}, 7
    s_lshl_b32 s{sDoff}, s{sGW}, 14
    s_add_u32 s{sDoff}, s{sDoff}, s{sT2}
    s_lshl_b32 s{sOoffW}, s{sGW}, 17
    s_add_u32 s{sOoffW}, s{sOoffW}, s{sT2}
    s_lshl_b32 s{sXo}, s{sRB}, 16
    s_add_u32 s{sXo}, s{sXo}, s{sT2}
    s_and_b32 s{sNb}, s{sCG}, 3
    v_lshl_add_u32 v{vTRp0}, v{vH1}, 6, v{vTRp0}
    v_lshl_add_u32 v{vTRp0}, v{vO1}, 9, v{vTRp0}
    v_add_u32 v{vTRp0}, s{sM0}, v{vTRp0}
    s_lshl_b32 s{sT0}, s{sNI}, 6
    v_xor_b32 v{vTRp0}, s{sT0}, v{vTRp0}
    v_xor_b32 v{vTRp1}, 64, v{vTRp0}
    v_add_u32 v{vTRp0H}, 65536, v{vTRp0}
    v_add_u32 v{vTRp1H}, 65536, v{vTRp1}
    v_lshlrev_b32 v{vL128}, 7, v{vL}
    v_lshlrev_b32 v{vVo}, 16, v{vKo}
    v_lshl_add_u32 v{vVo}, v{vO1}, 8, v{vVo}
    v_and_b32 v{vT2}, 15, v{vL}
    v_lshl_add_u32 v{vVo}, v{vT2}, 4, v{vVo}
    v_add_u32 v{vVo}, {VF}, v{vVo}
    v_lshlrev_b32 v{vXo}, 10, v{vRW}
    v_lshl_add_u32 v{vXo}, v{vO1}, 3, v{vXo}
    v_lshl_add_u32 v{vRR}, v{vO1}, 3, v{vXo}
    s_lshl_b32 s{sT0}, s{sGW}, 12
    v_add_u32 v{vRW}, s{sT0}, v{vL16}
    s_and_b32 s{sKVs}, s2, 7
    s_lshl_b32 s{sKVs}, s{sKVs}, 2
    s_bfe_u32 s{sT0}, s2, 0x20003
    s_add_u32 s{sKVs}, s{sKVs}, s{sT0}
    s_lshl_b32 s{sKVs}, s{sKVs}, 16
    s_lshl_b32 s{sT0}, s{sNI}, 15
    s_add_u32 s{sKVs}, s{sKVs}, s{sT0}
    s_lshl_b32 s{sT0}, s{sMI}, 21
    s_add_u32 s{sKVs}, s{sKVs}, s{sT0}
    s_add_u32 s{sKVs}, s{sKVs}, {KF}
    s_mul_i32 s{sKVm}, s{sGW}, {RKV*KST}
    s_lshl_b32 s{sT0}, s{sMI}, 15
    s_add_u32 s{sXo}, s{sXo}, s{sT0}
    s_lshl_b32 s{sT0}, s{sNI}, 6
    s_add_u32 s{sXo}, s{sXo}, s{sT0}
    v_and_b32 v{vKo}, 0x33, v{vL}
    v_lshrrev_b32 v{vT2}, 1, v{vL}
    v_and_b32 v{vT2}, 4, v{vT2}
    v_lshlrev_b32 v{vO1}, 1, v{vL}
    v_and_b32 v{vO1}, 8, v{vO1}
    v_or3_b32 v{vKo}, v{vKo}, v{vT2}, v{vO1}
    v_lshlrev_b32 v{vKo}, 4, v{vKo}
    v_add_u32 v{vKo}, {KF}, v{vKo}
    s_mul_i32 s{sT0}, s{sMI}, {86*1024}
    v_add_u32 v{vH0}, s{sT0}, v{vL16}
    s_sub_u32 s{sT0}, {86*1024}, s{sT0}
    v_add_u32 v{vH1}, s{sT0}, v{vL16}
    s_lshl_b32 s{sT0}, s{sMI}, 15
    v_add_u32 v{vO0}, s{sT0}, v{vL16}
    v_xor_b32 v{vO1}, 32768, v{vO0}
    v_lshlrev_b32 v{vXR}, 10, v{vL}
    v_mov_b32 v{vT2}, 0
    v_mov_b32 v{vT0}, {hex(f2u(C1))}
    v_mov_b32 v{vT1}, {hex(f2u(C1))}
    s_lshl_b32 s{sT2}, s{sRB}, 1
    s_add_u32 s{sT2}, s{sT2}, s{sMI}
    s_mul_i32 s{sHst}, s{sT2}, {86*1024}
    s_lshl_b32 s{sT1}, s{sCG}, 1
    s_add_u32 s{sT1}, s{sT1}, s{sNI}
    s_lshl_b32 s{sFlag}, s{sT1}, 13
    s_lshl_b32 s{sT0}, s{sT2}, 7
    s_add_u32 s{sFlag}, s{sFlag}, s{sT0}
    s_add_u32 s{sFlag}, s{sFlag}, {FQ}
    s_lshl_b32 s{sT0}, s{sBlk}, 12
    s_lshl_b32 s{sT1}, s{sNI}, 11
    s_add_u32 s{sHst}, s{sHst}, s{sT0}
    s_add_u32 s{sHst}, s{sHst}, s{sT1}
    s_add_u32 s{sHst}, s{sHst}, {HF}
    s_lshl_b32 s{sHld}, s{sRB}, 14
    s_add_u32 s{sHld}, s{sHld}, {FH}
    s_lshl_b32 s{sT0}, s{sCG}, 9
    s_lshl_b32 s{sT1}, s{sGW}, 7
    s_add_u32 s{sHfl}, s{sT0}, s{sT1}
    s_add_u32 s{sHfl}, s{sHfl}, s{sHld}
    s_mul_i32 s{sHb}, s{sRB}, {2*86*1024}
    s_lshl_b32 s{sT0}, s{sGW}, 10
    s_add_u32 s{sHb}, s{sHb}, s{sT0}
    s_add_u32 s{sHb}, s{sHb}, {HF}
    s_mov_b32 s{sC}, {hex(f2u(QSCALE))}
    s_mov_b32 s{sC+1}, {hex(f2u(QSCALE))}
    """).split("\n") if x.strip()]
    vK, vV, vIdx, vAF, vPF, vF = 10, 11, 12, 13, 14, 15
    M, C, SB = 6, 16, 80
    aOnes, aPF, aP3, aPKV, aL128, aGo = 24, 25, 26, 27, 28, 29
    O, Q, KS = 0, 64, 104
    KRG = [("a", 80), ("a", 92)]
    VRG = [("a", 84), ("a", 96)]
    def rg(x, off=0, n=4): return (a if x[0] == "a" else v)(x[1] + off, n)
    def zero_o(n=64):
        for i in range(n): A(f"v_accvgpr_write_b32 a{O+i}, 0")
    A.label("L_pre_a")
    if opt.get("pretouch"):
        A(f"""
        s_mov_b32 s{sOut}, s22
        s_mov_b32 s{sOut+1}, s23
        s_mov_b32 s{sOut+2}, {S*D*2}
        s_mov_b32 s{sOut+3}, 0x00020000
        s_mov_b32 s{sWd+2}, {F*D*2}
        s_mov_b32 s{sWd+3}, 0x00020000
        s_mov_b32 s{sWo+2}, {D*D*2}
        s_mov_b32 s{sWo+3}, 0x00020000
        v_lshlrev_b32 v{vF}, 21, v{vL}
        s_lshl_b32 s{sT0}, s2, 7
        s_cmp_lg_u32 s{sMI}, 0
        s_cbranch_scc1 L_pt1
        s_mov_b64 exec, 0x1fff
        buffer_load_dword v143, v{vF}, {ws}, s{sT0} offen sc1
        s_mov_b64 exec, 1
        buffer_load_dword v143, v{vF}, {s(sWgu,4)}, s{sT0} offen
        s_branch L_pt2
        L_pt1:
        s_mov_b64 exec, 1
        buffer_load_dword v143, v{vF}, {s(sOut,4)}, s{sT0} offen sc1
        buffer_load_dword v143, v{vF}, {s(sWd,4)}, s{sT0} offen
        buffer_load_dword v143, v{vF}, {s(sWo,4)}, s{sT0} offen
        L_pt2:
        s_mov_b64 exec, -1
        """)
    A(f"""
    v_mov_b32 v{vF}, 0
    ds_write_b32 v{vCnt}, v{vF}
    ds_write_b32 v{vCnt}, v{vF} offset:512
    ds_write_b32 v{vCnt}, v{vF} offset:1024
    v_add_u32 v{vCnt}, 1024, v{vCnt}
    v_lshlrev_b32 v{aGo}, 2, v{vL}
    s_lshl_b32 s{sT0}, s{sWave}, 9
    s_add_u32 s{sT0}, s{sT0}, {AFL}
    v_add_u32 v{vAF}, s{sT0}, v{aGo}
    s_xor_b32 s{sT0}, s{sWave}, 2
    s_lshl_b32 s{sT0}, s{sT0}, 9
    s_add_u32 s{sT0}, s{sT0}, {AFL}
    v_add_u32 v{vPF}, s{sT0}, v{aGo}
    v_add_u32 v{aGo}, {GO}, v{aGo}
    ds_write_b32 v{vAF}, v{vF}
    ds_write_b32 v{vAF}, v{vF} offset:256
    ds_write_b32 v{aGo}, v{vF}
    v_bfe_u32 v{aP3}, v{vL}, 2, 2
    v_mul_u32_u24 v{aP3}, 3072, v{aP3}
    v_lshl_add_u32 v{aP3}, v{vFl}, 7, v{aP3}
    v_bfe_u32 v{aPF}, v{vL}, 4, 1
    v_xor_b32 v{aPF}, 1, v{aPF}
    v_lshl_add_u32 v{aP3}, v{aPF}, 11, v{aP3}
    s_lshr_b32 s7, s2, 3
    s_lshl_b32 s7, s7, 2
    s_add_u32 s7, s7, s{sWave}
    s_mul_i32 s7, s7, {4*3072}
    s_and_b32 s{sT0}, s2, 1
    s_lshl_b32 s{sT0}, s{sT0}, 9
    s_add_u32 s7, s7, s{sT0}
    s_and_b32 s{sT0}, s{sCG}, 3
    s_cmp_eq_u32 s{sT0}, 3
    s_addc_u32 s{sBlk}, s{sBlk}, 0
    v_lshrrev_b32 v30, 1, v{vL}
    v_mul_u32_u24 v30, 2752, v30
    v_and_b32 v31, 1, v{vL}
    v_mul_u32_u24 v31, 124, v31
    v_add_u32 v30, v30, v31
    s_and_b32 s68, s{sRB}, 7
    s_lshl_b32 s68, s68, 1
    s_add_u32 s68, s68, s{sMI}
    s_mul_i32 s68, s68, {16*2752}
    s_lshl_b32 s{sT0}, s{sBlk}, 7
    s_add_u32 s68, s68, s{sT0}
    ; all-ones marker into the two O tiles this wave will produce
    s_lshr_b32 s{sO}, s2, 5
    s_lshl_b32 s{sO}, s{sO}, 1
    s_add_u32 s{sO}, s{sO}, s{sMI}
    s_lshl_b32 s{sO}, s{sO}, 1
    s_lshr_b32 s{sT0}, s{sWave}, 1
    s_add_u32 s{sO}, s{sO}, s{sT0}
    s_lshl_b32 s{sO}, s{sO}, 16
    s_and_b32 s{sT0}, s2, 7
    s_lshl_b32 s{sT0}, s{sT0}, 12
    s_add_u32 s{sO}, s{sO}, s{sT0}
    s_bfe_u32 s{sT0}, s2, 0x20003
    s_lshl_b32 s{sT0}, s{sT0}, 10
    s_add_u32 s{sO}, s{sO}, s{sT0}
    s_add_u32 s{sO}, s{sO}, {OF}
    s_or_b32 s{sT1}, s2, s{sWave}
    s_cmp_lg_u32 s{sT1}, 0
    s_cbranch_scc1 L_pre_a2
    s_memrealtime s[4:5]
    s_waitcnt lgkmcnt(0)
    s_or_b32 s4, s4, 1
    v_mov_b32 v{vIdx}, s4
    buffer_store_dword v{vIdx}, v{vF}, {s(sDbg,4)}, 0 offen sc1
    """)
    A.label("L_pre_a2")
    if opt.get("pall"):
        A(f"""
        s_mov_b32 s{sWd+2}, {F*D*2}
        s_mov_b32 s{sWd+3}, 0x00020000
        s_mov_b32 s{sWo+2}, {D*D*2}
        s_mov_b32 s{sWo+3}, 0x00020000
        v_mul_u32_u24 v141, 2752, v{vL}
        s_and_b32 s{sT0}, s{sRB}, 7
        s_mul_i32 s{sT0}, s{sT0}, {64*2752}
        s_mul_i32 s{sT1}, s{sCG}, 384
        s_add_u32 s{sT0}, s{sT0}, s{sT1}
        s_mul_i32 s{sT1}, s{sMI}, 124
        s_add_u32 s{sT1}, s{sT0}, s{sT1}
        buffer_load_dword v143, v141, {s(sWgu,4)}, s{sT1} offen
        s_lshl_b32 s{sT1}, s{sMI}, 7
        s_add_u32 s{sT1}, s{sT0}, s{sT1}
        buffer_load_dword v143, v141, {s(sWgu,4)}, s{sT1} offen offset:252
        v_lshlrev_b32 v142, 10, v{vL}
        s_and_b32 s{sT0}, s{sRB}, 7
        s_lshl_b32 s{sT1}, s{sCG}, 7
        s_mul_i32 s{sT2}, s{sT0}, {172*1024}
        s_add_u32 s{sT2}, s{sT2}, s{sT1}
        s_lshl_b32 s4, s{sGW}, 16
        s_add_u32 s{sT2}, s{sT2}, s4
        buffer_load_dword v143, v142, {s(sWd,4)}, s{sT2} offen
        s_lshl_b32 s{sT0}, s{sT0}, 16
        s_add_u32 s{sT0}, s{sT0}, s{sT1}
        buffer_load_dword v143, v142, {s(sWo,4)}, s{sT0} offen
        s_waitcnt vmcnt(0)
        s_sleep 40
        """)
    A("s_mov_b32 s3, 0")
    if INC: assert GE; stats(0)
    else: A("s_waitcnt vmcnt(0)")
    NEARLY = opt.get("nearly", 2)
    if GE: NEARLY = 0
    for g in range(NEARLY): dma(*ddq(g))
    if NEARLY > opt.get("p1at", 3):
        A(f"s_mov_b64 exec, {'0xffff0000' if opt.get('p1kv', 1) else '0xffffffff'}\nbuffer_load_dword v143, v{aP3}, {s(sWq,4)}, s7 offen")
        if opt.get("p2early", 1): A(f"s_mov_b64 exec, {PF2MASK}\nbuffer_load_dword v143, v30, {s(sWgu,4)}, s68 offen")
        A("s_mov_b64 exec, -1")
    vmq.clear()
    A.label("L_ln")
    ST()
    SA, TT, vXW = 104, 80, 112
    A(f"""
    s_mov_b32 s4, 0x3f803f80
    s_mov_b32 s5, 0x00003f80
    s_mov_b32 s6, 0x3f800000
    """)
    for i in range(0 if INC else 32):
        a1 = SA + (i & 1); a2 = SA + 2 + (i & 1)
        A(f"v_dot2_f32_bf16 v{a1}, v{R+i}, s4, {'0' if i < 2 else 'v%d' % a1}")
        A(f"v_dot2_f32_bf16 v{a2}, v{R+i}, v{R+i}, {'0' if i < 2 else 'v%d' % a2}")
    m_, q_, mb_, rs_ = SA, SA + 2, SA + 4, SA + 6
    A(f"""
    s_lshr_b32 s{sT0}, s{sWave}, 2
    s_mul_i32 s{sT0}, s{sT0}, {64*PIECE}
    s_lshl_b32 s{sT1}, s{sGW}, 7
    v_add_f32 v{m_}, v{m_}, v{m_+1}
    v_add_f32 v{q_}, v{q_}, v{q_+1}
    s_add_u32 s{sT0}, s{sT0}, s{sT1}
    v_add_f32_dpp v{m_}, v{m_}, v{m_} quad_perm:[1,0,3,2] row_mask:0xf bank_mask:0xf
    v_add_f32_dpp v{q_}, v{q_}, v{q_} quad_perm:[1,0,3,2] row_mask:0xf bank_mask:0xf
    s_add_u32 s{sT0}, s{sT0}, {XT}
    v_add_f32_dpp v{m_}, v{m_}, v{m_} quad_perm:[2,3,0,1] row_mask:0xf bank_mask:0xf
    v_add_f32_dpp v{q_}, v{q_}, v{q_} quad_perm:[2,3,0,1] row_mask:0xf bank_mask:0xf
    v_mul_u32_u24 v{vXW}, {PIECE}, v{vT1}
    v_add_f32_dpp v{m_}, v{m_}, v{m_} row_half_mirror row_mask:0xf bank_mask:0xf
    v_add_f32_dpp v{q_}, v{q_}, v{q_} row_half_mirror row_mask:0xf bank_mask:0xf
    v_mul_f32 v{m_}, {hex(f2u(1.0/512))}, v{m_}
    v_mul_f32 v{q_}, {hex(f2u(1.0/512))}, v{q_}
    v_cvt_pk_bf16_f32 v{mb_}, v{m_}, v{m_}
    v_fma_f32 v{q_}, -v{m_}, v{m_}, v{q_}
    v_and_b32 v{mb_}, 0xffff0000, v{mb_}
    v_max_f32 v{q_}, 0, v{q_}
    v_xor_b32 v{mb_}, 0x80000000, v{mb_}
    v_cvt_pk_bf16_f32 v{q_}, v{q_}, v{q_}
    v_and_b32 v{q_}, 0xffff0000, v{q_}
    v_add_f32 v{q_}, {hex(f2u(1e-5))}, v{q_}
    v_cvt_pk_bf16_f32 v{q_}, v{q_}, v{q_}
    v_and_b32 v{q_}, 0xffff0000, v{q_}
    v_sqrt_f32 v{q_}, v{q_}
    v_lshl_add_u32 v{vXW}, v{vT0}, 4, v{vXW}
    v_cvt_pk_bf16_f32 v{q_}, v{q_}, v{q_}
    v_and_b32 v{q_}, 0xffff0000, v{q_}
    v_rcp_f32 v{rs_}, v{q_}
    v_rcp_f32 v{rs_+1}, v{q_}
    v_add_u32 v{vXW}, s{sT0}, v{vXW}
    """)
    for cb in range(8):
        t = TT + 8 * (cb & 1); r = R + 4 * cb
        for e in range(4):
            A(f"v_dot2_f32_bf16 v{t+2*e}, v{r+e}, s5, v{mb_}")
            A(f"v_dot2_f32_bf16 v{t+2*e+1}, v{r+e}, s6, v{mb_}")
        if cb > 0: A(f"ds_write_b128 v{vXW}, {v(R+4*(cb-1),4)} offset:{(cb-1)*8*PIECE}")
        else: A("s_nop 0")
        for e in range(4): A(f"v_pk_mul_f32 {v(t+2*e,2)}, {v(t+2*e,2)}, {v(rs_,2)}")
        for e in range(4): A(f"v_cvt_pk_bf16_f32 v{r+e}, v{t+2*e}, v{t+2*e+1}")
    A(f"ds_write_b128 v{vXW}, {v(R+28,4)} offset:{7*8*PIECE}")
    A("s_cmp_eq_u32 s3, 0\ns_cbranch_scc1 L_attn")

    def get_tag(vt, vz, lbl):
        A(f"v_mov_b32 v{vz}, 0")
        A.label(lbl)
        A(f"""
        buffer_load_dword v{vt}, v{vz}, {s(sDbg,4)}, 0 offen sc1
        s_waitcnt vmcnt(0)
        v_readfirstlane_b32 s{sTag}, v{vt}
        """)
        timeout_exit(lbl + "_x")
        A(f"s_cmp_eq_u32 s{sTag}, 0\ns_cbranch_scc1 {lbl}")
        A.label(lbl + "_x")
    def spin_flags(lbl, vf, voff, soff, nlanes, sleep=4, first=False):
        A.label(lbl)
        if first: A(f"s_sleep {sleep}")
        A(f"""
        s_mov_b64 exec, {emask(nlanes)}
        buffer_load_dword v{vf}, v{voff}, {ws}, s{soff} offen sc1
        s_waitcnt vmcnt(0)
        v_cmp_ne_u32 vcc, s{sTag}, v{vf}
        s_mov_b64 exec, -1
        s_cbranch_vccz {lbl}_x
        """)
        timeout_exit(lbl + "_x")
        if not first: A(f"s_sleep {sleep}")
        A(f"s_branch {lbl}")
        A.label(lbl + "_x")
    def lds_spin(lbl, vdst, vaddr, off, cmp, sleep=0):
        A.label(lbl)
        A(f"ds_read_b32 v{vdst}, v{vaddr} offset:{off}\ns_waitcnt lgkmcnt(0)\n{cmp}\ns_cbranch_vccz {lbl}_x")
        timeout_exit(lbl + "_x")
        if sleep: A(f"s_sleep {sleep}")
        A(f"s_branch {lbl}")
        A.label(lbl + "_x")

    def xn(ks): return a(4 * ks, 4) if ks < 28 else v(96 + 4 * (ks - 28), 4)
    def xread(ks): lds(f"ds_read_b128 {xn(ks)}, v{vXR} offset:{2*ks*PIECE}", "xn")
    def check(fresh, off=0, need=None, sleep=1, reg=None, tag="poll"):
        l = lab("chk"); nd = f"s{sNeed}" if need is None else str(need)
        vP = reg if reg is not None else 20
        cmp = f"v_cmp_gt_u32 vcc, {nd}, v{vP}"
        if lowprio[0]: cmp = f"s_setprio 3\n{cmp}\ns_setprio 0"
        if fresh:
            lds(f"ds_read_b32 v{vP}, v{vCntR} offset:{off}", tag)
        lwait(tag)
        A(f"{cmp}\ns_cbranch_vccnz {l}")
        A.label(l + "_x")
        def sp():
            A.label(l)
            A(f"ds_read_b32 v{vP}, v{vCntR} offset:{off}\ns_waitcnt lgkmcnt(0)\n{cmp}\ns_cbranch_vccz {l}_x")
            timeout_exit(l + "_x")
            if lp or sleep > 1: A(f"s_sleep {sleep}")
            A(f"s_branch {l}")
        lp = lowprio[0]
        slow.append(sp)
        if need is None: A(f"s_add_u32 s{sNeed}, s{sNeed}, 1")
    def segment(stages, hooks=None, LA=opt.get('la', 5)):
        hooks = hooks or {}
        NB = len(WFB); assert NB >= LA + 1
        flat = [(si, fi, fr) for si, st in enumerate(stages) for fi, fr in enumerate(st["frags"])]
        sq = []
        for i in range(len(flat) + LA):
            if i < len(flat):
                si, fi, fr = flat[i]; st = stages[si]; nfr = len(st["frags"])
                if fi == 0:
                    assert not sq
                    if "label" in st: A.label(st["label"])
                    if opt.get("atrace") and lowprio[0]:
                        A(f"s_waitcnt lgkmcnt(0)\ns_mov_b32 s99, m0\ns_mov_b32 m0, s0\ns_add_u32 s0, s0, 1\ns_setprio 3\nv_writelane_b32 v31, s100, m0\ns_setprio {0 if lowprio[0] else 1}\ns_memrealtime s[100:101]\ns_mov_b32 m0, s99"); lq.clear()
                    if st["sync"]: check(si == 0, *st.get("chk", ()))
                    if "pre" in st: st["pre"]()
                    sq += st["pieces"]
                lo, hi, o0, o1, _ = fr
                base = st["slot"] * SLOT; reg = lo
                if base >= 65536: base -= 65536; reg = hi
                w = WFB[i % NB]
                lds(f"ds_read_b64_tr_b16 {v(w,2)}, v{reg} offset:{base+o0}", ("fr", i))
                lds(f"ds_read_b64_tr_b16 {v(w+2,2)}, v{reg} offset:{base+o1}", ("fr", i))
                if fi == st.get("waitat", st.get("pubat", 2)) and st["nxt"] is not None: vwait(st["nxt"])
                if fi == st.get("pubat", 2) and st["pub"]: lds(f"ds_add_u32 v{vCnt}, v{vOne}", "add")
                if len(sq) * 2 > (nfr - fi) + (opt.get("odd", 1) and fi % 2 == 0 and 0) or fi % 2 == opt.get("odd", 1):
                    k = -(-len(sq) // (nfr - fi))
                    for _ in range(k): sq.pop(0)()
                if fi == nfr - 2 and si + 1 < len(stages) and stages[si + 1]["sync"]:
                    lds(f"ds_read_b32 v{vP}, v{vCntR} offset:{stages[si + 1].get('chk', (0,))[0]}", "poll")
                if (si, fi) in hooks: hooks[(si, fi)]()
            j = i - LA
            if j >= 0:
                if opt.get("pairw", 1) and j % 2 == 0 and lq.need(("fr", j + 1)) is not None and len(flat[j][2][4]) == 1: lwait(("fr", j + 1))
                lwait(("fr", j))
                for m in flat[j][2][4]:
                    if callable(m): m()
                    elif opt.get("xnogm") and lowprio[0]: A("s_nop 7")
                    else: A(m.format(w=v(WFB[j % NB], 4)))
    if F0: ST()
    if opt.get("xln"): hold("L_hln", opt["xln"])
    A("s_setprio 1\ns_waitcnt vmcnt(0) lgkmcnt(0)\ns_barrier" if GE else "s_setprio 1\ns_waitcnt lgkmcnt(0)\ns_barrier")
    ST()
    for ks in range(8): xread(ks)
    def qkv_epi(p):
        acc = (ACC0, ACC1, ACC0)[p]; pk = TMP + 8 * p
        def f():
            if p == 2:
                for i in range(8): A(f"v_pk_mul_f32 {v(acc+2*i,2)}, {v(acc+2*i,2)}, {s(sC,2)}")
            for i in range(8): A(f"v_cvt_pk_bf16_f32 v{pk+i}, v{acc+2*i}, v{acc+2*i+1}")
            for i in range(8): A(f"v_min_u32 v{pk+i}, -2, v{pk+i}")
            if p == 1:
                A(f"buffer_store_dwordx4 {v(pk,4)}, v{vVo}, {ws}, s{sSt} offen sc1")
                A(f"buffer_store_dwordx4 {v(pk+4,4)}, v{vVo}, {ws}, s{sSt} offen offset:512 sc1")
            else:
                vo = vKo if p == 0 else vL16
                A(f"s_add_u32 s{sT0}, s{sSt}, 65536")
                A(f"buffer_store_dwordx4 {v(pk,4)}, v{vo}, {ws}, s{sSt} offen sc1")
                A(f"buffer_store_dwordx4 {v(pk+4,4)}, v{vo}, {ws}, s{sT0} offen sc1")
            vmq.push("st", 2)
        return f
    stages = []
    for q in range(12):
        p, part = divmod(q, 4); acc = v((ACC0, ACC1, ACC0)[p], 16)
        frags = []
        for kk in range(8):
            ks = part * 8 + kk; c = "0" if ks == 0 else acc
            m = f"{MF} {acc}, {xn(ks)}, {{w}}, {c}" if p == 1 else f"{MF} {acc}, {{w}}, {xn(ks)}, {c}"
            frags.append((vTRn, vTRnH, kk * 2048, kk * 2048 + 512, [m]))
        stages.append(dict(slot=q % 8, frags=frags, pieces=[], nxt=None, sync=(q >= GE), pub=(q >= 1), pubat=0, chk=(1024, q + 1)))
    hooks = {(0, fi): (lambda fi=fi: [xread(8 + 3 * fi + e) for e in range(3)]) for fi in range(8)}
    def epi_items(p):
        acc = (ACC0, ACC1)[p]; pk = TMP + 8 * p
        L = [f"v_cvt_pk_bf16_f32 v{pk+i}, v{acc+2*i}, v{acc+2*i+1}" for i in range(8)]
        if p == 1:
            L += [f"buffer_store_dwordx4 {v(pk,4)}, v{vVo}, {ws}, s{sSt} offen sc1", f"buffer_store_dwordx4 {v(pk+4,4)}, v{vVo}, {ws}, s{sSt} offen offset:512 sc1"]
        else:
            L += [f"buffer_store_dwordx4 {v(pk,4)}, v{vKo}, {ws}, s{sSt} offen sc1", f"buffer_store_dwordx4 {v(pk+4,4)}, v{vKo}, {ws}, s{sD1} offen sc1",
                  f"buffer_load_dword v{vFl}, v{vT2}, {s(sDbg,4)}, 0 offen sc1"]
        return L
    qc = opt.get("qc", 0)
    GLATE[qc:qc] = [f"buffer_store_dwordx4 v[136:139], v{vL16}, {ws}, s{sSt} offen sc1", f"buffer_store_dwordx4 v[136:139], v{vL16}, {ws}, s{sD1} offen sc1",
                     f"buffer_store_dword v136, v140, {ws}, s0 offen sc1"]
    n1 = len(GLATE)
    KE = opt.get("ke", 7)
    slots1 = [(q, fi) for q in range(1, KE) for fi in range(8) if (q, fi) not in ((1, 0), (4, 0), (5, 0), (6, 0))]
    plan = {}
    for k, it in enumerate(GLATE): plan.setdefault(slots1[k * len(slots1) // n1], []).append(it)
    for p, q0 in ((0, KE), (1, 9)):
        sl = [(q, fi) for q in (q0, q0 + 1) for fi in range(1, 8)]
        its = epi_items(p)
        sl = [x_ for x_ in sl for _ in range(2 if p == 0 else opt.get("vd", 2))]
        for k, it in enumerate(its): plan.setdefault(sl[k], []).append(it)
    if opt.get("xnofill"):
        for x in GLATE:
            if "v31," not in x: A(x.replace("|", "\n"))
        plan = {k_: [i_ for i_ in its if i_ not in GLATE] for k_, its in plan.items()}
    for k_, its in plan.items():
        hooks[k_] = (lambda its=its: [A(x.replace("|", "\n")) for x in its])
    FF = opt.get("ff", 1)
    def kvflag(n):
        A(f"s_cmp_lg_u32 s{sTag}, 0\ns_cbranch_scc1 L_gtag_x")
        get_tag(vFl, vT2, "L_gtag")
        A(f"v_mov_b32 v{vFl}, s{sTag}\ns_waitcnt vmcnt({n})\ns_mov_b64 exec, 1\nbuffer_store_dword v{vFl}, v{vT2}, {ws}, s{sFlag} offen sc1\ns_mov_b64 exec, -1")
    FP = opt.get("fp", 0)
    if FP:
        hooks[(FP // 8, FP % 8)] = lambda: (A(f"s_waitcnt vmcnt(0)\nv_readfirstlane_b32 s{sTag}, v{vFl}"), kvflag(0))
    GLATE = []
    if stamps:
        for q in ((1, 4, 5, 6, 7, 8, 9, 10, 11) if FR else (1, 4, 8)): hooks[(q, 0)] = ST
    segment(stages, hooks)
    assert not GLATE
    if FP: A("s_nop 11")
    else:
        A(f"s_waitcnt vmcnt(2)\nv_readfirstlane_b32 s{sTag}, v{vFl}")
        if FF: kvflag(0); A("s_nop 3")
        else: A("s_nop 9")
    qkv_epi(2)()
    for h_, acc in enumerate((ACC1, ACC0)):
        A(f"{MF} {v(acc,16)}, {v(TMP+4*h_,4)}, {v(TMP+16+4*h_,4)}, 0")
    A(f"s_mov_b32 s{sT0}, {hex(f2u(-float(opt.get('offset', 80))))}\ns_nop 9")
    for h_, acc in enumerate((ACC1, ACC0)):
        for k in range(0, 15, 2):
            A(f"v_max3_f32 v{141+h_}, v{acc+k}, v{acc+k+1}, v{141+h_ if k else acc+15}")
    A(f"s_nop 1\nv_permlane32_swap_b32 v141, v142\nv_max_f32 v141, v141, v142\nv_sub_f32 v141, s{sT0}, v141\nv_min_u32 v141, -2, v141")
    A(f"buffer_store_dword v141, v140, {ws}, s0 offen sc1")
    ST()
    if not FF and not FP: kvflag(2)
    A(f"s_mov_b32 s{sC}, {hex(f2u(C2))}\ns_mov_b32 s{sC+1}, {hex(f2u(C2))}")
    lds(f"ds_add_u32 v{vCnt}, v{vOne}", "add")
    ST()
    if FR: again(); ST.flush(ws, STAMP, sWave, 2, 3, sT0); A("s_endpgm"); ST.on = False
    if opt.get("gexit"): A(f"ds_add_u32 v{vCnt}, v{vOne}\ns_waitcnt lgkmcnt(0)\ns_endpgm")
    LOOK = opt.get("look", 4)
    check(True, 1024, 12 + NG0)
    A(f"s_mov_b32 s{sNeed}, 12\ns_setprio 0")
    lowprio[0] = True
    if opt.get("atrace"): A(f"s_mov_b32 s0, 0\ns_memrealtime s[100:101]")
    def gslot(g): return 2 + (g + 2) % 6
    def ffn_dd(g):
        if g < 24: return ("g", g, gslot(g))
        if g < 35: return ("d", g - 24, gslot(g))
        return ("o", g - 35, gslot(g))
    E0 = 0
    vP2 = vVo
    G2 = opt.get("g2", 1)
    def kneed(k):
        b0 = 12 + NG0 + 1
        step = k - RKV
        if not G2: return b0 + step + 1
        return b0 + 1 if step == 0 else b0 + 2 + step // 2
    def kv_poll(): lds(f"ds_read_b32 v{vP2}, v{vCntR} offset:1024", "poll2")
    NI = opt.get("ni", 4)
    def kv_check(k, fresh=False):
        if k >= RKV and (fresh or k == RKV or kneed(k) != kneed(k - 1) or k == RKV + 8 - S0):
            check(fresh, 1024, kneed(k), sleep=opt.get('ksleep', 4), reg=vP2, tag="poll2")
    def kv_issue(k, fresh=False, chk=True):
        if chk: kv_check(k, fresh)
        A(f"s_add_u32 m0, s{sKVm}, {((k + E0) % RKV) * KST}\ns_add_u32 s{sT0}, s{sKVs}, {k*1024}")
        A(f"buffer_load_dwordx4 v{vL16}, {ws}, s{sT0} offen sc1 lds"); vmq.push(("kv", k))
    def kv_pub(k):
        vwait(("kv", k))
        for _ in range(1): lds(f"ds_add_u32 v{vCnt}, v{vOne} offset:512", "add")
    S0 = opt.get("s0", 4); KLAG = opt.get("klag", 2)
    A(f"s_cmp_lg_u32 s{sNb}, 3\ns_cbranch_scc1 L_ffn")
    check(True, 1024, 12 + NG0 + 1)
    check(True, 0, 12)
    vmq.clear()
    for k in range(NI, RKV): kv_issue(k)
    for k in range(NI, RKV): kv_pub(k)
    kvs = [RKV + st - S0 for st in range(S0, 8)]; npub = max(0, 8 - KLAG - S0); done = []
    def light_kv():
        nonlocal npub
        if done and npub: kv_pub(done.pop(0)); npub -= 1
        if kvs: k = kvs.pop(0); kv_issue(k, True); done.append(k)
    if opt.get("pfw", 1):
        P = [0, 128, 384, 512, 768, 896, 256, 640, 1024, 1152, 1280, 1404][:2 * opt.get('npf', 6)]
        PCAP = opt.get("pcap", 1)
        A(f"""
        s_setprio 3
        v_mul_u32_u24 v{TMP}, 2752, v{vL}
        s_setprio 0
        s_and_b32 s4, s{sRB}, 7
        s_mul_i32 s5, s4, {64*2752}
        s_lshr_b32 s6, s{sCG}, 2
        s_mul_i32 s7, s6, 1408
        s_add_u32 s5, s5, s7
        """)
        for i in range(len(P) // 2):
            lo_, hi_ = sorted(P[2*i:2*i+2])
            A(f"s_mul_i32 s{sT0}, s{sMI}, {hi_-lo_}\ns_add_u32 s{sT0}, s{sT0}, s5")
            A(f"buffer_load_dword v143, v{TMP}, {s(sWgu,4)}, s{sT0} offen offset:{lo_}\ns_waitcnt vmcnt({PCAP})")
            vmq.push("pf"); vmq.waited(PCAP)
            if i >= 2: light_kv()
    for g in range(8, 8 + LOOK): dma(*ffn_dd(g))
    while kvs or (done and npub): light_kv()
    A("s_waitcnt vmcnt(0)")
    lds(f"ds_add_u32 v{vCnt}, v{vOne}", "add")
    A(f"s_add_u32 s{sNeed}, s{sNeed}, 1\ns_setprio 3\nv_mov_b32 v{vP}, 0\nv_mov_b32 v{vP2}, 0\ns_setprio 0")
    A("s_branch L_ffn8")
    A.label("L_ffn")
    vmq.clear(); lq.clear()
    T1, U1 = TMP, [88, 90, 92, 94, 128, 130, 132, 134]
    AD1 = [v(40, 16), v(56, 16), v(96, 16), a(96, 16)]
    def gelu1():
        G, U = ACC0, ACC1
        A("s_setprio 3\ns_nop 9")
        for i in range(8): A(f"v_pk_mul_f32 {v(T1+2*i,2)}, {v(G+2*i,2)}, {v(G+2*i,2)}")
        for i in range(8): A(f"v_pk_fma_f32 {v(T1+2*i,2)}, {v(T1+2*i,2)}, {s(sC,2)}, {v(vT0,2)}")
        for i in range(8): A(f"v_pk_mul_f32 {v(U1[i],2)}, {v(U+2*i,2)}, {v(G+2*i,2)}")
        for i in range(8): A(f"v_pk_mul_f32 {v(T1+2*i,2)}, {v(T1+2*i,2)}, {v(G+2*i,2)}")
        A("s_setprio 0")
    def gelu2_groups(b):
        L = [f"v_exp_f32 v{T1+i}, v{T1+i}" for i in range(16)]
        L += [f"v_pk_add_f32 {v(T1+2*i,2)}, {v(T1+2*i,2)}, 1.0 op_sel_hi:[1,0]" for i in range(8)]
        L += [f"v_rcp_f32 v{T1+i}, v{T1+i}" for i in range(16)]
        L += [f"v_pk_mul_f32 {v(U1[i],2)}, {v(U1[i],2)}, {v(T1+2*i,2)}" for i in range(8)]
        L += [f"v_cvt_pk_bf16_f32 v{T1+i}, v{U1[i]}, v{U1[i]+1}" for i in range(8)]
        sizes = [4, 4, 4, 4, 8, 4, 4, 4, 4, 8, 8]
        G_ = []
        for n in sizes:
            grp = L[:n]; L = L[n:]
            G_.append(lambda grp=grp: A("s_setprio 3\n" + "\n".join(grp) + "\ns_setprio 0"))
        def store():
            l = lab("hskip")
            if b == 0: A(f"s_cmp_eq_u32 s{sNb}, 3\ns_cbranch_scc1 {l}")
            if b == 2: A(f"s_add_u32 s{sT0}, s{sCG}, s{sNI}\ns_cmp_eq_u32 s{sT0}, 8\ns_cbranch_scc1 {l}")
            A(f"s_add_u32 s{sT0}, s{sHst}, {b*4096}")
            A(f"buffer_store_dwordx4 {v(T1,4)}, v{vL16}, {ws}, s{sT0} offen sc1")
            A(f"buffer_store_dwordx4 {v(T1+4,4)}, v{vL16}, {ws}, s{sT0} offen offset:1024 sc1")
            A.label(l)
            vmq.since = 0
        return G_ + [store]
    def send_flag(b):
        def f():
            n = min(vmq.since, 63)
            A(f"s_waitcnt vmcnt({n})"); vmq.waited(n)
            A(f"s_add_u32 s{sT0}, s{sHfl}, {b*4096}\ns_mov_b64 exec, 1\nbuffer_store_dword v{vFl}, v{vT2}, {ws}, s{sT0} offen sc1\ns_mov_b64 exec, -1")
        return f
    NH = 12
    def hload(t):
        b = 8 * (t % NH)
        if DSEQ[t] == 21:
            A(f"s_and_b32 s{sT2}, s{sGW}, 2\ns_lshl_b32 s{sT2}, s{sT2}, 10\ns_sub_u32 s{sT2}, s{sHb}, s{sT2}\ns_add_u32 s{sT2}, s{sT2}, {DSEQ[t]*4096}")
        else:
            A(f"s_add_u32 s{sT2}, s{sHb}, {DSEQ[t]*4096}")
        A(f"buffer_load_dwordx4 {a(b,4)}, v{vH0}, {ws}, s{sT2} offen sc1")
        A(f"buffer_load_dwordx4 {a(b+4,4)}, v{vH1}, {ws}, s{sT2} offen sc1")
        vmq.push(("h", t), 2)
    def hflag_issue(c):
        A(f"s_add_u32 s{sT2}, s{sHld}, {c*4096}\ns_mov_b64 exec, {hex(CMASK[c])}")
        A(f"buffer_load_dword v{vHF}, v{vL128}, {ws}, s{sT2} offen sc1\ns_mov_b64 exec, -1")
        vmq.push(("hf", c))
    def hflag_check(c):
        vwait(("hf", c))
        l = f"L_hf{c}"
        A(f"s_setprio 3\nv_cmp_ne_u32 vcc, s{sTag}, v{vHF}\ns_setprio 0\ns_and_b32 vcc_lo, vcc_lo, {hex(CMASK[c])}\ns_cbranch_scc1 {l}_s")
        A.label(l + "_b")
        def sp():
            A.label(l + "_s")
            A(f"s_add_u32 s{sT2}, s{sHld}, {c*4096}\ns_setprio 3")
            spin_flags(l, vHF, vL128, sT2, hex(CMASK[c]), sleep=8)
            A(f"s_setprio 0\ns_branch {l}_b")
        slow.append(sp)
    def p4(ni):
        def f():
            l = lab("p4")
            A(f"""
            s_cmp_lg_u32 s{sNI}, {ni}
            s_cbranch_scc1 {l}_x
            s_and_b32 s{sT0}, s{sRB}, 7
            s_lshl_b32 s{sT1}, s{sCG}, 7
            s_cmp_eq_u32 s{sGW}, 3
            s_cbranch_scc1 {l}_o
            s_mul_i32 s{sT0}, s{sT0}, {172*1024}
            s_add_u32 s{sT0}, s{sT0}, s{sT1}
            s_lshl_b32 s{sT1}, s{sGW}, 16
            s_add_u32 s{sT0}, s{sT0}, s{sT1}
            buffer_load_dword v143, v{vXR}, {s(sWd,4)}, s{sT0} offen
            s_branch {l}_x
            """)
            A.label(l + "_o")
            A(f"s_lshl_b32 s{sT0}, s{sT0}, 16\ns_add_u32 s{sT0}, s{sT0}, s{sT1}\nbuffer_load_dword v143, v{vXR}, {s(sWo,4)}, s{sT0} offen")
            A.label(l + "_x")
        return f
    allp = []
    for g in range(NG0, 39): allp += [(g, p) for p in dma_pieces(*ffn_dd(g))]
    T0 = opt.get("t0", 2 if NG0 >= 4 else NG0 - 1); RATE = opt.get("rate", 6)
    NE = opt.get("ne", 0)
    pre0 = []
    while allp[0][0] < opt.get("np0", 0): pre0.append(allp.pop(0)[1])
    early = [[allp.pop(0)[1] for _ in range(4)] for _ in range(NE)]
    prep_ = []
    while allp[0][0] <= T0 + 1: prep_.append(allp.pop(0)[1])
    sched = []
    for st in range(35):
        take = []
        if st < NE: take = early[st]; assert st < T0
        if st >= T0:
            while allp and allp[0][0] <= st + LOOK and len(take) < RATE: take.append(allp.pop(0)[1])
        sched.append(take)
        if st == 7 and not FR: assert allp[0][0] == 8 + LOOK and len([1 for g, _ in allp if g == 8 + LOOK]) == 4
    assert not allp
    stages = []
    post = {}
    for st in range(35):
        frags = []
        if st < 24:
            for kk in range(4):
                ks = (st % 8) * 4 + kk
                for p, acc in enumerate((ACC0, ACC1)):
                    c = "0" if ks == 0 else v(acc, 16)
                    frags.append((vTRn, vTRnH, p * 8192 + kk * 2048, p * 8192 + kk * 2048 + 512, [f"{MF} {v(acc,16)}, {{w}}, {xn(ks)}, {c}"]))
        else:
            for kk in range(2):
                t = 2 * (st - 24) + kk; b = 8 * (t % NH)
                for ni, (lo, hi) in enumerate(((vTRp0, vTRp0H), (vTRp1, vTRp1H))):
                    ms = [(lambda t=t: vwait(("h", t)))] if ni == 0 else []
                    for mi in range(2):
                        d = AD1[2 * ni + mi]; c = "0" if t == 0 else d
                        ms.append(f"{MF} {d}, {{w}}, {a(b+4*mi,4)}, {c}")
                    frags.append((lo, hi, kk * 2048, kk * 2048 + 1024, ms))
        nx = ffn_dd(st + 1)
        stages.append(dict(slot=gslot(st), frags=frags, pieces=sched[st], nxt=("dma", nx[0], nx[1]),
                           sync=(st <= 25), pub=(st <= 24), pubat=(0 if st >= 23 else opt.get("pubat", 2)),
                           waitat=(3 if st >= 24 else (6 if st == 23 else opt.get("pubat", 2)))))
    assert LOOK <= 4
    stages[T0]["pre"] = lambda: (check(True, 1024, 12 + NG0 + 1) if opt.get("thr", 1) else None, [kv_issue(k) for k in range(NI, RKV)], [p_() for p_ in prep_])
    stages[8]["label"] = "L_ffn8"
    if pre0: assert T0 > 0; stages[0]["pre"] = lambda: [p_() for p_ in pre0]
    GATE = opt.get("gate", 31); GR_ = opt.get("gater", 17 if G2 else 33)
    if GATE:
        def gate():
            A("s_waitcnt lgkmcnt(0)"); lq.clear()
            for st_ in range(GATE, GATE + 2):
                if st_ < 35:
                    for p_ in stages[st_]["pieces"]: p_()
                    stages[st_]["pieces"] = []
            for k_ in sorted(k for k in hooks if k[0] in (GATE, GATE + 1)):
                hooks.pop(k_)()
            if opt.get("warm", 0):
                A("s_mov_b64 exec, 0\ns_branch L_wg"); A.label("L_wg_ret"); A("s_mov_b64 exec, -1")
            check(True, 1024, 12 + NG0 + 1 + GR_, sleep=4)
        stages[GATE]["pre"] = gate
    hooks = {}
    for b in range(3):
        st0 = 8 * (b + 1)
        stages[st0]["frags"][0][4].insert(0, gelu1)
        grp = gelu2_groups(b)
        pos = [(si, fi, k) for si in (st0, st0 + 1, st0 + 2) for fi, fr in enumerate(stages[si]["frags"]) for k, m in enumerate(fr[4]) if not callable(m)]
        if b == 2: pos = [p_ for p_ in pos for _ in range(opt.get('g3', 2))]
        for (si, fi, k), g_ in reversed(list(zip(pos, grp))):
            stages[si]["frags"][fi][4].insert(k + 1, g_)
        hooks[(st0 + 3, 6) if b < 2 else divmod(opt.get('f3', 105), 4)] = send_flag(b)
    def addhook(pos, f):
        old = hooks.get(pos)
        hooks[pos] = (lambda: (old(), f())) if old else f
    assert opt.get("thr", 1) or NI == RKV
    if NI < RKV: addhook((T0, 3), lambda: [kv_pub(k) for k in range(NI, RKV)])
    for k in range(RKV, 32):
        st = S0 + k - RKV
        nf = len(stages[st]["frags"]); nfp = len(stages[st - 1]["frags"])
        if k == RKV or kneed(k) != kneed(k - 1) or k == RKV + 8 - S0: addhook((st, 0), kv_poll)
        addhook((st, 2), lambda k=k: kv_check(k))
        addhook((st, nf // 2), lambda k=k: kv_issue(k, chk=False))
        addhook((st + KLAG, 0), lambda k=k: kv_pub(k))
    if opt.get("p4", 1): hooks[(opt.get("p4a", 10), 1)] = p4(0); hooks[(opt.get("p4b", 14), 1)] = p4(1)
    HL = opt.get("hl", 5)
    def hpos(t):
        u = t - HL
        if u >= 0: return (24 + u // 2, 2 * (u % 2) + 1)
        return (24 + (u // 2), 4 * (u % 2) + 2)
    for t in range(22):
        fs = []
        if t in CSTART: fs.append(lambda c=CSTART[t]: hflag_check(c))
        fs.append(lambda t=t: hload(t))
        if t + opt.get('hi', 2) in CSTART: fs.append(lambda c=CSTART[t + opt.get('hi', 2)]: hflag_issue(c))
        old = hooks.get(hpos(t))
        if old: fs.insert(0, old)
        hooks[hpos(t)] = (lambda fs=fs: [f() for f in fs])
    p0 = hpos(0); addhook((p0[0] - 1, 6), lambda: hflag_issue(0))
    XRAW = 136
    def xload():
        for q in range(4):
            A(f"buffer_load_dwordx2 {v(XRAW+2*q,2)}, v{vXo}, {s(sX,4)}, s{sXo} offen offset:{16*q}"); vmq.push("xr")
    AEPI = opt.get("aepi", 0)
    if not AEPI: addhook((28, 0), xload)
    def fo_addr(): A(f"s_lshl_b32 s{sT2}, s{sRB}, 12\ns_lshl_b32 s{sT0}, s{sGW}, 10\ns_add_u32 s{sT2}, s{sT2}, s{sT0}\ns_add_u32 s{sT2}, s{sT2}, {FO}")
    def fo_issue():
        fo_addr()
        A(f"s_mov_b64 exec, 0xff\nbuffer_load_dword v{vHF}, v{vL128}, {ws}, s{sT2} offen sc1\ns_mov_b64 exec, -1"); vmq.push("fo")
    def fo_check():
        vwait("fo")
        A(f"s_setprio 3\nv_cmp_ne_u32 vcc, s{sTag}, v{vHF}\ns_setprio 0\ns_and_b32 vcc_lo, vcc_lo, 0xff\ns_cbranch_scc1 L_fo_s")
        A.label("L_fo_b")
        def sp():
            A.label("L_fo_s")
            fo_addr(); A("s_setprio 3")
            spin_flags("L_fo", vHF, vL128, sT2, 8, sleep=8)
            A("s_setprio 0\ns_branch L_fo_b")
        slow.append(sp)
    def o_tile():
        A(f"s_lshr_b32 s4, s2, 5\ns_lshl_b32 s4, s4, 1\ns_add_u32 s4, s4, s{sMI}\ns_lshl_b32 s4, s4, 1\ns_add_u32 s4, s4, s{sNI}")
        A(f"s_and_b32 s5, s2, 7\ns_lshl_b32 s5, s5, 2\ns_bfe_u32 s6, s2, 0x20003\ns_add_u32 s5, s5, s6")
    def o_clear():
        o_tile()
        A(f"s_lshl_b32 s6, s4, 16\ns_lshl_b32 s7, s5, 10\ns_add_u32 s6, s6, s7\ns_add_u32 s6, s6, {OF}\ns_add_u32 s7, s6, 32768")
        A(f"buffer_store_dwordx4 v[136:139], v{vL16}, {ws}, s6 offen sc1\nbuffer_store_dwordx4 v[136:139], v{vL16}, {ws}, s7 offen sc1"); vmq.push("oc", 2)
    def o_flag():
        vwait("oc")
        A(f"s_lshl_b32 s6, s4, 12\ns_lshl_b32 s7, s5, 7\ns_add_u32 s6, s6, s7\ns_add_u32 s6, s6, {FO}")
        A(f"s_mov_b64 exec, 1\nbuffer_store_dword v{vFl}, v{vT2}, {ws}, s6 offen sc1\ns_mov_b64 exec, -1"); vmq.push("of")
    addhook((13, 6), o_clear); addhook((15, 6), o_flag)
    addhook((18, 6), fo_issue); addhook((20, 2), fo_check)
    if stamps:
        for st in (8, 16, 24): addhook((st, 0), ST)
    segment(stages, hooks)
    lowprio[0] = False
    ST()
    if opt.get("atrace"):
        A(f"s_lshl_b32 s{sT0}, s2, 4\ns_add_u32 s{sT0}, s{sT0}, s{sWave}\ns_lshl_b32 s{sT0}, s{sT0}, 8\ns_add_u32 s{sT0}, s{sT0}, {STAMP+MB}\nv_lshlrev_b32 v135, 2, v{vL}\nbuffer_store_dword v31, v135, {ws}, s{sT0} offen\ns_waitcnt vmcnt(0)")
    XF = [120, 122, 124, 126, 32, 34, 36, 38]
    WARM = opt.get("warm", 0)
    if WARM: A.warm_begin()
    vwait(("dma", "o", 3))
    for i in range(8):
        slot = gslot(35 + i // 2); base = slot * SLOT
        for ni, (lo, hi) in enumerate(((vTRp0, vTRp0H), (vTRp1, vTRp1H))):
            reg, b = (lo, base) if base < 65536 else (hi, base - 65536)
            lds(f"ds_read_b64_tr_b16 {a(8*i+4*ni,2)}, v{reg} offset:{b + (i%2)*2048}", "wo")
            lds(f"ds_read_b64_tr_b16 {a(8*i+4*ni+2,2)}, v{reg} offset:{b + (i%2)*2048 + 1024}", "wo")
    vR = [None, vKo, vVo, vXR]
    sHave, sNext = 4, 5
    A(f"""
    s_setprio {opt.get("tprio", 3)}
    s_lshl_b32 s7, s{sRB}, 16
    s_lshl_b32 s{sT0}, s{sGW}, 13
    s_add_u32 s7, s7, s{sT0}
    s_add_u32 s7, s7, {OF}
    s_add_u32 s6, s7, 4096
    s_mov_b32 s{sHave}, 0
    s_mov_b32 s{sNext}, 0
    s_mov_b32 s{sC}, {hex(f2u(-1.4426950408889634))}
    s_mov_b32 s{sC+1}, {hex(f2u(-1.4426950408889634))}
    v_xor_b32 v{vR[1]}, 4096, v{vRW}
    v_xor_b32 v{vR[2]}, 8192, v{vRW}
    v_xor_b32 v{vR[3]}, 12288, v{vRW}
    v_and_b32 v{vL128}, 7, v{vL}
    v_lshlrev_b32 v{vL128}, 10, v{vL128}
    v_bfe_u32 v{vFl}, v{vL}, 3, 1
    v_lshl_add_u32 v{vL128}, v{vFl}, 15, v{vL128}
    """)
    for r_ in [vRW] + vR[1:]: A(f"v_add_u32 v{r_}, {RB0 + 2*SLOT}, v{r_}")
    OFR = 56
    AS = [(v, 40), (a, 64), (a, 80), (a, 96)]
    def o_loads(u):
        for i in range(8):
            so = 7 if i < 4 else 6
            if u: A(f"s_bitcmp1_b32 s{sD0}, {i}\ns_cbranch_scc0 L_ol{u}_{i}")
            A(f"buffer_load_dwordx4 {v(OFR+8*i,4)}, v{vO0}, {ws}, s{so} offen offset:{(i%4)*1024} sc1")
            A(f"buffer_load_dwordx4 {v(OFR+8*i+4,4)}, v{vO1}, {ws}, s{so} offen offset:{(i%4)*1024} sc1")
            if u: A.label(f"L_ol{u}_{i}")
    def reduce_tile(dst, src, mid=None):
        for lt in range(1, 4):
            k_, b_ = src[lt]
            for q in range(4):
                lds(f"ds_write_b128 v{vRW}, {k_(b_+4*q,4)} offset:{(lt-1)*SLOT + q*1024}", "w")
        lds(f"ds_add_u32 v{vCnt}, v{vOne}", "add")
        check(True)
        for lt in range(1, 4):
            for q in range(4):
                lds(f"ds_read_b128 {v(40+16*lt+4*q,4)}, v{vR[lt]} offset:{(lt-1)*SLOT + q*1024}", ("r", lt))
        if mid: mid()
        lwait(("r", 1))
        for i in range(8): A(f"v_pk_add_f32 {v(40+2*i,2)}, {v(40+2*i,2)}, {v(56+2*i,2)}")
        lwait(("r", 3))
        for i in range(8): A(f"v_pk_add_f32 {v(72+2*i,2)}, {v(72+2*i,2)}, {v(88+2*i,2)}")
        for i in range(8): A(f"v_pk_add_f32 {v(dst+2*i,2)}, {v(40+2*i,2)}, {v(72+2*i,2)}")
    def mid0():
        vwait("xr")
        for i in range(8):
            A(f"v_lshlrev_b32 v{XF[i]}, 16, v{XRAW+i}")
            A(f"v_and_b32 v{XF[i]+1}, 0xffff0000, v{XRAW+i}")
    def put_tiles(src, where):
        for lt in range(4):
            k_, b_ = src[lt]; reg, off = where(lt)
            for q in range(4): lds(f"ds_write_b128 v{reg}, {k_(b_+4*q,4)} offset:{off + q*1024}", "w")
        lds(f"ds_add_u32 v{vCnt}, v{vOne} offset:512", "add")
    if AEPI:
        put_tiles([(v, 40), (v, 56), (v, 96), (a, 96)], lambda lt: (vRW, lt * SLOT))
        silu = []
        A(f"v_add_u32 v{vR[1]}, {4*SLOT}, v{vRW}\ns_lshl_b32 s{sT0}, s{sGW}, 13\nv_add_u32 v{vR[2]}, s{sT0}, v{vL16}")
        A(f"v_and_b32 v{vP}, 3, v{vL}\nv_lshlrev_b32 v{vP}, 9, v{vP}\nv_add_u32 v{vP}, {AFL+256}, v{vP}")
        lds_spin("L_ow", vHF, vP, 0, f"v_cmp_eq_u32 vcc, 0, v{vHF}", sleep=opt.get("owsleep", 2)); lq.clear()
    else:
        reduce_tile(GR, [(v, 40), (v, 56), (v, 96), (a, 96)], mid0)
        OG = 0
        Tv = 40
        silu = [f"v_pk_mul_f32 {v(Tv+2*i,2)}, {v(GR+2*i,2)}, {s(sC,2)}" for i in range(8)]
        silu += [f"v_exp_f32 v{Tv+i}, v{Tv+i}" for i in range(16)]
        silu += [f"v_add_u32 v{r_}, {3*SLOT}, v{r_}" for r_ in [vRW] + vR[1:]]
        silu += [f"v_pk_add_f32 {v(Tv+2*i,2)}, {v(Tv+2*i,2)}, 1.0 op_sel_hi:[1,0]" for i in range(8)]
        silu += [f"v_rcp_f32 v{Tv+i}, v{Tv+i}" for i in range(16)]
        silu += ["s_nop 0"] + [f"v_pk_mul_f32 {v(GR+2*i,2)}, {v(GR+2*i,2)}, {v(Tv+2*i,2)}" for i in range(8)]
    if opt.get("ogate") and not AEPI:
        while silu: A(silu.pop(0))
        A(f"v_and_b32 v{vP}, 3, v{vL}\nv_lshlrev_b32 v{vP}, 9, v{vP}\nv_add_u32 v{vP}, {AFL+256}, v{vP}")
        lds_spin("L_ow", vHF, vP, 0, f"v_cmp_eq_u32 vcc, 0, v{vHF}", sleep=opt["ogate"])
    for i in range(8):
        so = 7 if i < 4 else 6
        for mi, vo in enumerate((vO0, vO1)):
            A(f"buffer_load_dwordx4 {v(OFR+8*i+4*mi,4)}, v{vo}, {ws}, s{so} offen offset:{(i%4)*1024} sc1")
            for _ in range(4):
                if silu: A(silu.pop(0))
    assert not silu
    ST()
    def overify(i):
        o_ = OFR + 8 * i
        A(f"""
        v_max3_u32 v{vHF}, v{o_}, v{o_+1}, v{o_+2}
        v_max3_u32 v{vP}, v{o_+3}, v{o_+4}, v{o_+5}
        v_max3_u32 v{vHF}, v{vHF}, v{o_+6}, v{o_+7}
        v_max_u32 v{vHF}, v{vHF}, v{vP}
        v_cmp_eq_u32 vcc, -1, v{vHF}
        """)
    def omfma(i):
        for ni in range(2):
            for mi in range(2):
                k_, b_ = AS[2 * ni + mi]; d = k_(b_, 16)
                A(f"{MF} {d}, {a(8*i+4*ni,4)}, {v(OFR+8*i+4*mi,4)}, {d if i else 0}")
    for i in range(8):
        A(f"s_waitcnt vmcnt({14-2*i})")
        overify(i)
        A(f"s_cbranch_vccnz L_ofx")
        omfma(i)
        A(f"s_bitset1_b32 s{sHave}, {i}\ns_mov_b32 s{sNext}, {i+1}")
    A.label("L_odone")
    gen = Asm(); gen_lines_at = len(A.lines)
    sLd = sD0
    vPr, vPa = vFl, vL128
    PROBE = f"s_mov_b64 exec, 0xffff\nbuffer_load_dword v{vPr}, v{vPa}, {ws}, s7 offen offset:1020 sc1\ns_mov_b64 exec, -1"
    A.label("L_ofx")
    A(f"s_andn2_b32 s{sLd}, 0xff, s{sHave}")
    A.label("L_of")
    A("s_waitcnt vmcnt(0)")
    for i in range(8):
        o_ = OFR + 8 * i
        A(f"""
        s_bitcmp1_b32 s{sLd}, {i}
        s_cbranch_scc0 L_ov{i}
        v_max3_u32 v{vHF}, v{o_}, v{o_+1}, v{o_+2}
        v_max3_u32 v{vP}, v{o_+3}, v{o_+4}, v{o_+5}
        v_max3_u32 v{vHF}, v{vHF}, v{o_+6}, v{o_+7}
        v_max_u32 v{vHF}, v{vHF}, v{vP}
        v_cmp_eq_u32 vcc, -1, v{vHF}
        s_cbranch_vccnz L_ov{i}
        s_bitset1_b32 s{sHave}, {i}
        """)
        A.label(f"L_ov{i}")
    A(f"s_cmp_lt_i32 s{sTO}, 0\ns_cselect_b32 s{sHave}, 0xff, s{sHave}\ns_cmp_eq_u32 s{sHave}, 0xff\ns_cbranch_scc1 L_onp")
    DT = opt.get("dt", 4)
    sDir = sD1
    A(f"s_bcnt1_i32_b32 s{sDir}, s{sHave}\ns_cmp_ge_u32 s{sDir}, {8-DT}\ns_cbranch_scc1 L_odir")
    A(PROBE)
    A("s_branch L_onp")
    A.label("L_odir")
    A(f"s_andn2_b32 s{sLd}, 0xff, s{sHave}\ns_sub_u32 s{sTO}, s{sTO}, 1")
    o_loads("c")
    A.label("L_onp")
    for i in range(8):
        A(f"s_cmp_lg_u32 s{sNext}, {i}\ns_cbranch_scc1 L_om{i}\ns_bitcmp1_b32 s{sHave}, {i}\ns_cbranch_scc0 L_opr0")
        for ni in range(2):
            for mi in range(2):
                k_, b_ = AS[2 * ni + mi]; d = k_(b_, 16)
                A(f"{MF} {d}, {a(8*i+4*ni,4)}, {v(OFR+8*i+4*mi,4)}, {d if i else 0}")
        A(f"s_mov_b32 s{sNext}, {i+1}")
        A.label(f"L_om{i}")
    A("s_branch L_odone")
    moved = A.lines[gen_lines_at:]; del A.lines[gen_lines_at:]
    slow.append(lambda: A.lines.extend(moved))
    def sp():
        A.label("L_opr0")
        A(f"s_cmp_ge_u32 s{sDir}, {8-DT}\ns_cbranch_scc1 L_of")
        A.label("L_opr")
        A(f"""
        s_waitcnt vmcnt(0)
        v_cmp_ne_u32 vcc, -1, v{vPr}
        s_sub_u32 s{sTO}, s{sTO}, 1
        s_lshr_b32 s{sLd}, vcc_lo, 8
        s_and_b32 s{sLd}, s{sLd}, vcc_lo
        s_cmp_lt_i32 s{sTO}, 0
        s_cselect_b32 s{sLd}, 0xff, s{sLd}
        s_and_b32 s{sLd}, s{sLd}, 0xff
        s_andn2_b32 s{sLd}, s{sLd}, s{sHave}
        s_cbranch_scc1 L_opg
        s_sleep {opt.get("osleep", 2)}
        {PROBE}
        s_branch L_opr
        """)
        A.label("L_opg")
        o_loads("b")
        A("s_branch L_of")
    slow.append(sp)
    ST()
    A("s_nop 10")
    if AEPI:
        put_tiles(AS, lambda lt: (vR[1], lt * SLOT) if lt < 2 else (vR[2], (lt - 2) * 4096))
        A("s_waitcnt lgkmcnt(0)")
    else:
        reduce_tile(40, AS)
        for i in range(8): A(f"v_pk_fma_f32 {v(40+2*i,2)}, {v(40+2*i,2)}, {v(GR+2*i,2)}, {v(XF[i],2)}")
        for i in range(8): A(f"v_cvt_pk_bf16_f32 v{56+i}, v{40+2*i}, v{41+2*i}")
        A("s_nop 1")
        for h in range(2):
            A(f"v_permlane32_swap_b32 v{56+4*h}, v{58+4*h}\nv_permlane32_swap_b32 v{57+4*h}, v{59+4*h}")
        for h in range(2):
            A(f"buffer_store_dwordx4 {v(56+4*h,4)}, v{vRR}, {s(sOut,4)}, s{sXo} offen offset:{32*h}{['', ' sc1', ' nt', ' sc0 sc1'][opt.get('om', 0)]}")
    if WARM: A.warm_end("L_wg", "L_wa2", WARM)
    if opt.get("xhold"):
        A.label("L_hold")
        A(f"s_memrealtime s[98:99]\ns_waitcnt lgkmcnt(0)\ns_sub_u32 s98, s98, s{sTag if opt.get('xtag') else 100}\ns_cmp_lt_u32 s98, {opt['xhold']}\ns_cbranch_scc1 L_hold")
    if stamps:
        ST.on = True
        if not FR: ST(); ST.flush(ws, STAMP, sWave, 2, 3, sT0)
        if opt.get("dbgout"):
            A(f"s_cmp_lg_u32 s2, {opt['dbgout']-1}\ns_cbranch_scc1 L_dbx\ns_cmp_lg_u32 s{sWave}, 4\ns_cbranch_scc1 L_dbx\nv_mov_b32 v2, 0")
            for i in range(1, ST.n):
                A(f"s_sub_u32 s4, s{ST.base+2*i}, s{ST.base}\nv_mov_b32 v3, s4\nbuffer_store_dword v3, v2, {s(sDbg,4)}, 0 offen offset:{4*i}\ns_nop 1")
            A.label("L_dbx")
    A("s_endpgm")
    for f in slow: f()
    slow.clear()

    ST.n = 2 if stamps else 0
    A.label("L_attn")
    lq.clear(); vmq.clear()
    for g in range(NEARLY): vmq.push(("dma", "q", g), 4)
    def pub_ld(g):
        d = ddq(g); vwait(("dma", d[0], d[1])); lds(f"ds_add_u32 v{vCnt}, v{vOne}", "add")
    def FS():
        if FR: ST()
    def p2():
        A(f"s_mov_b64 exec, {PF2MASK}\nbuffer_load_dword v143, v30, {s(sWgu,4)}, s68 offen\ns_mov_b64 exec, -1"); vmq.push("pf")
    FS()
    NB4 = max(opt.get("nb4", 4), NEARLY)
    for g in range(max(NEARLY, GE), NB4):
        dma(*ddq(g))
        if g == opt.get("p1at", 3):
            A(f"s_mov_b64 exec, {'0xffff0000' if opt.get('p1kv', 1) else '0xffffffff'}\nbuffer_load_dword v143, v{aP3}, {s(sWq,4)}, s7 offen\ns_mov_b64 exec, -1"); vmq.push("pf")
            if opt.get("p2early", 1): p2()
    pub_ld(0)
    A("s_waitcnt lgkmcnt(0)\ns_barrier"); lq.clear()
    ST()
    for g in range(1, NB4): pub_ld(g)
    for g in range(NB4, 5): dma(*ddq(g))
    FS()
    A(GUADDR)
    A(f"""
    s_and_b32 s{sT0}, s2, 7
    s_lshr_b32 s{sT1}, s2, 3
    s_and_b32 s{sT2}, s{sT1}, 3
    s_lshl_b32 s{sHead}, s{sT0}, 2
    s_add_u32 s{sHead}, s{sHead}, s{sT2}        ; head
    s_lshr_b32 s{sT1}, s{sT1}, 2
    s_lshl_b32 s{sT1}, s{sT1}, 1
    s_add_u32 s{sT1}, s{sT1}, s{sMI}
    s_lshr_b32 s4, s{sWave}, 1
    s_lshl_b32 s5, s{sHead}, 16
    s_lshl_b32 s{sQ}, s{sT1}, 12
    s_add_u32 s{sQ}, s{sQ}, s5
    s_lshl_b32 s6, s4, 11
    s_add_u32 s{sQ0}, s{sQ}, s6
    s_xor_b32 s6, s6, 2048
    s_add_u32 s{sQ}, s{sQ}, s6
    s_lshl_b32 s{sT1}, s{sT1}, 1
    s_add_u32 s{sT1}, s{sT1}, s4                ; 64-token row block kept by this wave
    s_lshl_b32 s{sFo}, s{sT1}, 12
    s_lshl_b32 s{sT0}, s{sHead}, 7
    s_add_u32 s{sFo}, s{sFo}, s{sT0}
    s_add_u32 s{sFo}, s{sFo}, {FO}
    s_add_u32 s{sKb}, s5, {KF}
    s_lshl_b32 s{sT0}, s4, 15
    s_add_u32 s{sKVb}, s{sKb}, s{sT0}
    v_mov_b32 v{vK}, v{vL16}
    v_lshrrev_b32 v{vV}, 5, v{vL}
    v_lshlrev_b32 v{vV}, 8, v{vV}
    v_and_b32 v{aPKV}, 15, v{vL}
    v_lshl_add_u32 v{vV}, v{aPKV}, 4, v{vV}
    v_add_u32 v{vV}, {VF-KF}, v{vV}
    s_mov_b32 s{sMask}, 0x0000ffff
    s_mov_b32 s{sMask+1}, 0x0000ffff
    s_mov_b32 s{sFB}, 1
    s_mov_b32 s{sOff}, {hex(f2u(-float(opt.get('offset', 80))))}
    v_mov_b32 v{vIdx}, 0xdddddddd
    v_and_b32 v{aOnes}, 27, v{vL}
    v_cmp_eq_u32 vcc, 16, v{aOnes}
    v_mov_b32 v{aOnes}, 0x3f803f80
    s_lshr_b32 s{sFQ}, s{sHead}, 1
    v_cndmask_b32 v{aOnes}, 0, v{aOnes}, vcc
    s_lshl_b32 s{sFQ}, s{sFQ}, 13
    s_add_u32 s{sFQ}, s{sFQ}, {FQ}
    v_lshlrev_b32 v{aL128}, 7, v{vL}
    s_lshr_b32 s{sP3}, s{sQ0}, 3
    s_add_u32 s{sP3}, s{sP3}, {MFO}
    s_lshr_b32 s{sPKV}, s{sQ}, 3
    s_add_u32 s{sPKV}, s{sPKV}, {MFO}
    v_and_b32 v{aPKV}, 31, v{vL}
    v_lshlrev_b32 v{aPKV}, 2, v{aPKV}
    """)
    assert VF - KF == 1 << 21
    for g in range(NB4, 5): pub_ld(g)
    check(True, 0, 1, sleep=opt.get("asleep", 2))
    FS()
    NPRE = 12 + NG0
    for g in range(5, NPRE):
        if g >= 9: check(True, 0, g - 7, sleep=opt.get('asleep', 2))
        if g == 12:
            pub_ld(11)
            if not opt.get("p2early", 1) and opt.get("p2", 1): p2()
        dma(*ddq(g))
        if g >= 7 and g < 16: FS()
        if 8 <= g <= 11:
            inits = [f"v_accvgpr_write_b32 a{x[1]+i}, v{aOnes}" if x[0] == "a" else f"v_mov_b32 v{x[1]+i}, v{aOnes}" for x in VRG for i in range(8)]
            inits += [f"v_accvgpr_write_b32 a{O+i}, 0" for i in range(64)]
            for x in inits[(g - 8) * 20:(g - 7) * 20]: A(x)
        if g == 11:
            A(f"v_mov_b32 v{vT1}, 0\nbuffer_load_dword v{vF}, v{vT1}, {s(sDbg,4)}, 0 offen sc1"); vmq.push("tag")
        if g > 5 and g != 12: pub_ld(g - 1)
    pub_ld(NPRE - 1)
    if FR: ST(); again(); ST.flush(ws, STAMP, sWave, 2, 3, sT0); A("s_endpgm"); ST.on = False; stamps = False
    if opt.get("aexit"): A("s_waitcnt lgkmcnt(0)\ns_endpgm")
    A(f"s_waitcnt vmcnt(0)\nv_readfirstlane_b32 s{sTag}, v{vF}\ns_cmp_lg_u32 s{sTag}, 0\ns_cbranch_scc1 L_atag_x")
    get_tag(vF, vT1, "L_atag")
    A(f"s_mov_b32 s{sFo}, 0")
    A(f"s_setprio 2\ns_cmp_lg_u32 s{sWave}, 0\ns_cbranch_scc1 L_aw")
    lds_spin("L_ag2", M, vCntR, 0, f"v_cmp_gt_u32 vcc, {opt.get('ag', 12)}, v{M}", sleep=2)
    ST()
    if opt.get("adelay"): A(f"s_sleep {opt['adelay']}")
    spin_flags("L_qf", vF, aL128, sFQ, 64, sleep=opt.get("qsleep", 2), first=bool(opt.get("qfirst", 0)))
    assert opt.get('ag', 12) >= 10
    A(f"ds_write_b32 v{aGo}, v{vOne}\ns_branch L_aw_x")
    A.label("L_aw")
    if WARM:
        A("s_mov_b64 exec, 0\ns_branch L_wa1"); A.label("L_wa1_ret"); A("s_mov_b64 exec, -1")
    if stamps: ST.n -= 1; ST()
    lds_spin("L_ag3", M, aGo, 0, f"v_cmp_eq_u32 vcc, 0, v{M}", sleep=1)
    A.label("L_aw_x")
    if opt.get("xgo"): hold("L_hgo", opt["xgo"])
    ST()
    if WARM: A.warm_begin()
    sKN = sKB2
    vOwn, vOneA, vKl, vVl, vPl = 2, 3, 4, 5, 6
    def qloads():
        for t in range(4):
            A(f"buffer_load_dwordx4 {v(SB+4*t,4)}, v{vK}, {ws}, s{sQ0 if t < 2 else sQ} offen offset:{(t&1)*1024} sc1")
        for t in range(4):
            A(f"buffer_load_dword v{M+t}, v{aPKV}, {ws}, s{sP3 if t < 2 else sPKV} offen offset:{(t&1)*128} sc1")
    def qverify():
        T_ = SB + 16
        for k in range(0, 15, 2):
            A(f"v_max3_u32 v{T_}, v{SB+k}, v{SB+k+1}, v{T_ if k else SB+15}")
        A(f"v_max3_u32 v{T_}, v{T_}, v{M}, v{M+1}\nv_max3_u32 v{T_}, v{T_}, v{M+2}, v{M+3}")
        A(f"v_cmp_eq_u32 vcc, -1, v{T_}")
    qloads()
    A(f"s_and_b32 s4, s{sWave}, 1\ns_lshl_b32 s4, s4, 21\ns_add_u32 s4, s4, s{sKVb}\ns_mul_i32 s5, s{sWave}, {RKV*KST}")
    for k0, n in [(k0, min(4, NI - k0)) for k0 in range(0, NI, 4)]:
        A(f"s_add_u32 s6, s4, {k0*1024}")
        for i in range(n):
            A(f"s_add_u32 m0, s5, {((k0 + i + E0) % RKV) * KST - i * 1024}\ns_nop 0")
            A(f"buffer_load_dwordx4 v{vK}, {ws}, s6 offen offset:{i*1024} sc1 lds")
    vVl1 = vF
    A(f"""
    v_subrev_u32 v{vOwn}, 1024, v{vCnt}
    v_mov_b32 v{vOneA}, 1
    ; constant cells of this wave's piece: lane 2p -> ones, 2p+1 -> zeros of step p
    v_lshrrev_b32 v32, 1, v{vL}
    v_mul_u32_u24 v32, {KST}, v32
    v_and_b32 v33, 1, v{vL}
    v_lshl_add_u32 v32, v33, 4, v32
    v_add_u32 v32, s5, v32
    v_cmp_eq_u32 vcc, 0, v33
    v_mov_b32 v36, 0x3f803f80
    s_lshr_b32 s4, s{sWave}, 1
    v_cndmask_b32 v36, 0, v36, vcc
    s_mul_i32 s4, s4, {2*RKV*KST}
    v_mov_b32 v37, v36
    v_mov_b32 v38, v36
    v_mov_b32 v39, v36
    s_mov_b64 exec, {hex((1 << (2*RKV)) - 1)}
    ds_write_b128 v32, v[36:39] offset:1024
    s_mov_b64 exec, -1
    v_add_u32 v{vKl}, s4, v{vK}
    s_sub_u32 s6, s4, {VF-KF-RKV*KST}
    v_add_u32 v{vVl}, s6, v{vV}
    v_add_u32 v{vVl1}, 512, v{vVl}
    s_add_u32 s4, s4, {RKV*KST+1024}
    v_cmp_eq_u32 vcc, 0, v{aOnes}
    v_mov_b32 v32, s4
    v_add_u32 v33, 16, v32
    v_cndmask_b32 v32, v32, v33, vcc
    v_cndmask_b32 v{vVl}, v32, v{vVl}, {s(sMask,2)}
    v_cndmask_b32 v{vVl1}, v32, v{vVl1}, {s(sMask,2)}
    s_waitcnt vmcnt({NI})
    """)
    qverify()
    A("s_cbranch_vccnz L_qre")
    A.label("L_qre_x")
    def sp():
        A.label("L_qre")
        qloads()
        A("s_waitcnt vmcnt(0)")
        qverify()
        A("s_cbranch_vccz L_qre_x")
        timeout_exit("L_qre_x")
        A("s_sleep 1\ns_branch L_qre")
    slow.append(sp)
    A(f"v_mov_b32 v{SB+32}, {NI}\ns_waitcnt vmcnt(0)\nds_add_u32 v{vOwn}, v{SB+32} offset:512")
    A(f"ds_add_u32 v{vOwn}, v{vOneA} offset:1024")
    for i in range(16): A(f"v_accvgpr_write_b32 a{Q+i}, v{SB+i}")
    def maxtree(dst, blocks, first):
        regs = [b + i for b in blocks for i in range(16)]
        if first:
            A(f"v_max3_f32 v{dst}, v{regs[0]}, v{regs[1]}, v{regs[2]}"); regs = regs[3:]
        while len(regs) >= 2:
            A(f"v_max3_f32 v{dst}, v{dst}, v{regs[0]}, v{regs[1]}"); regs = regs[2:]
        if regs: A(f"v_max_f32 v{dst}, v{dst}, v{regs[0]}")
    def build_c():
        T_ = SB
        for t in range(4): A(f"v_mov_b32 v{T_+t}, v{M+t}")
        A("s_nop 1")
        for t in range(4): A(f"v_permlane32_swap_b32 v{T_+t}, v{M+t}")
        for t in range(4): A(f"v_max_f32 v{M+t}, v{M+t}, v{T_+t}")
        for t in range(4): A(f"v_sub_f32 v{M+t}, s{sOff}, v{M+t}")
    def fill_c(t):
        for i in range(8): A(f"v_pk_mov_b32 {v(C+16*t+2*i,2)}, {v(M+(t&~1),2)}, {v(M+(t&~1),2)} op_sel:[{t&1},{t&1}]")
    def kvitems(slot, pos, add=True):
        L = [f"ds_read_b128 {rg(KRG[slot])}, v{vKl} offset:{pos*KST}", f"ds_read_b128 {rg(VRG[slot])}, v{vVl} offset:{pos*KST}",
             f"ds_read_b128 {rg(VRG[slot],4)}, v{vVl1} offset:{pos*KST}"]
        if add: L.append(f"ds_add_u32 v{vOwn}, v{vOneA} offset:1024")
        return L
    lds_spin("L_akv", SB + 8, vCntR, 512, f"v_cmp_gt_u32 vcc, {NI}, v{SB+8}")
    for x in kvitems(E0 & 1, E0): A(x)
    fill_c(0)
    A(f"s_nop 0\ns_waitcnt lgkmcnt(0)")
    A(f"{MF} {v(SB,16)}, {rg(KRG[E0 & 1])}, {a(Q,4)}, {v(C,16)}")
    for t in range(1, 4): fill_c(t)
    for i in range(4): A(f"v_pk_mov_b32 {v(SB+48+8+2*i,2)}, 0, 0")
    A(f"v_mov_b32 v{vPl}, {NI}\ns_mov_b32 s{sCnt}, 3\ns_mov_b32 s{sKN}, {3 if G2 else 2}")
    ST()
    if stamps: A("s_memtime s[96:97]")
    if WARM: A.warm_end("L_wa1", "L_wa1_ret", WARM)
    A(f"s_lshr_b32 s4, s{sWave}, 1\ns_mul_i32 s4, s4, {-4*RKV*KST}\ns_add_u32 s4, s4, {2*RKV*KST}")
    for d_, s_ in ((7, vKl), (8, vVl), (9, vVl1)): A(f"v_add_u32 v{d_}, s4, v{s_}")
    A.raw(".p2align 6")
    A.label("L_aloop")
    for r in range(RKV):
        sl = r & 1
        chk = not (G2 and r % 2 == 1)
        side = []
        if chk:
            l = lab("akc")
            side.append(f"v_cmp_gt_u32 vcc, s{sKN}, v{vPl}\ns_cbranch_vccnz {l}\n{l}_x:")
            def sp(l=l):
                A.label(l)
                A(f"ds_read_b32 v{vPl}, v{vCntR} offset:512\ns_waitcnt lgkmcnt(0)\nv_cmp_gt_u32 vcc, s{sKN}, v{vPl}\ns_cbranch_vccz {l}_x")
                timeout_exit(l + "_x")
                A(f"s_sleep 1\ns_branch {l}")
            slow.append(sp)
        side += kvitems(sl ^ 1, (r + 1) % RKV, add=chk)
        if not G2 or r % 2 == 1:
            side += [f"ds_read_b32 v{vPl}, v{vCntR} offset:512", f"s_add_u32 s{sKN}, s{sKN}, {2 if G2 else 1}"]
        SPR = opt.get("spr", 1)
        PAT = {0: "QeeeeeBeseeeeeAeeeee", 1: "QeeeseeBeeeseeeAeeesee", 2: "QeeeeseBeeeeseeAeeeese", 3: "QeeseeeBeeseeeeAeeseee", 4: "QeeeeseeBeeseeeEAeesee", 5: "QeeseeBeeeeseeeEAeesee", 6: "QeeEseeBeeEseeEAeeEsee"}[SPR]
        for t in range(4):
            X = SB + 16 * t
            tn = (t + 1) & 3; sn = sl if t < 3 else sl ^ 1
            tp = (t - 1) & 3; sp_ = sl if t > 0 else sl ^ 1
            if t == 3:
                assert not side
                if r == RKV - 1: side = [f"s_sub_u32 s{sCnt}, s{sCnt}, 1", f"s_cmp_lg_u32 s{sCnt}, 0"]
                if SPR == 0: A("s_waitcnt lgkmcnt(0)")
            e = 0; seenB = False
            for k, ch in enumerate(PAT):
                if ch == "Q": A(f"{MF} {v(SB+16*tn,16)}, {rg(KRG[sn])}, {a(Q+4*tn,4)}, {v(C+16*tn,16)}")
                elif ch == "B": A(f"{SMF} {a(O+16*tp,16)}, {rg(VRG[sp_],4)}, {v(SB+16*tp+8,8)}, v{vIdx}"); seenB = True
                elif ch == "A": A(f"{SMF} {a(O+16*t,16)}, {rg(VRG[sl])}, {v(X,8)}, v{vIdx}")
                elif ch == "e": A(f"v_exp_f32{'_e64' if opt.get('e64') else ''} v{X+e}, v{X+e}"); e += 1
                elif ch == "E": A(f"v_exp_f32_e64 v{X+e}, v{X+e}" if SPR == 6 else f"v_exp_f32 v{X+e}, v{X+e}"); e += 1
                else:
                    last = "s" not in PAT[k + 1:]
                    if SPR == 0:
                        while side: A(side.pop(0))
                    elif t == 2 and last:
                        assert not side; A("s_waitcnt lgkmcnt(0)")
                    elif side and not (t == 0 and not seenB and "ds_read_b128" in side[0] and f"v{vKl} " not in side[0]):
                        A(side.pop(0))
            assert e == 16
    A("s_cbranch_scc1 L_aloop")
    assert G2
    PB = C + 32
    def send_items():
        L = [f"s_mul_i32 s{sT0}, s{sWave}, {CMBW}\ns_add_u32 s{sT0}, s{sT0}, {CMB}\nv_add_u32 v{PB+24}, s{sT0}, v{vK}\nv_lshl_add_u32 v{PB+25}, v{vL}, 2, s{sT0}\nv_mov_b32 v{PB+26}, s{sFB}"]
        for i in range(2):
            t = 2 + i
            L += [f"ds_write_b128 v{PB+24}, {a(O+16*t,4)} offset:{i*2304}", f"ds_write_b128 v{PB+24}, {a(O+16*t+4,4)} offset:{i*2304+1024}",
                  f"ds_write_b32 v{PB+25}, a{O+16*t+8} offset:{i*2304+2048}"]
        L += [f"ds_write_b32 v{vAF}, v{PB+26}",
              f"s_xor_b32 s{sT0}, s{sWave}, 2\ns_mul_i32 s{sT0}, s{sT0}, {CMBW}\ns_add_u32 s{sT0}, s{sT0}, {CMB}\nv_add_u32 v{PB+27}, s{sT0}, v{vK}\nv_lshl_add_u32 v{PB+28}, v{vL}, 2, s{sT0}"]
        return L
    def recv():
        lds_spin(lab("ax"), M, vPF, 0, f"v_cmp_gt_u32 vcc, s{sFB}, v{M}")
        for i in range(2):
            b = PB + 12 * i
            A(f"ds_read_b128 {v(b,4)}, v{PB+27} offset:{i*2304}")
            A(f"ds_read_b128 {v(b+4,4)}, v{PB+27} offset:{i*2304+1024}")
            A(f"ds_read_b32 v{b+8}, v{PB+28} offset:{i*2304+2048}")
    HB = [(vKl, vVl, vVl1, 0), (vKl, vVl, vVl1, 1), (7, 8, 9, 0), (7, 8, 9, 1)]
    snd = send_items()
    for u in range(8):
        hb, t = divmod(u, 2); sl = hb & 1
        X = SB + 16 * (u & 3); Xp = SB + 16 * ((u - 1) & 3); Xn = SB + 16 * ((u + 1) & 3)
        tp = 3 if u == 0 else (u - 1) & 1; sp_ = sl if t == 1 else sl ^ 1
        sn = sl if t == 0 else sl ^ 1
        if t == 1 and u < 7: A("s_waitcnt lgkmcnt(0)")
        if u < 7: A(f"{MF} {v(Xn,16)}, {rg(KRG[sn])}, {a(Q+4*(t^1),4)}, {v(C+16*(t^1),16)}")
        for j in range(5): A(f"v_exp_f32 v{X+j}, v{X+j}")
        A(f"{SMF} {a(O+16*tp,16)}, {rg(VRG[sp_],4)}, {v(Xp+8,8)}, v{vIdx}")
        A(f"v_exp_f32 v{X+5}, v{X+5}")
        if u == 0:
            l = lab("akc")
            A(f"v_cmp_gt_u32 vcc, 32, v{vPl}\ns_cbranch_vccnz {l}")
            A.label(l + "_x")
            def sp(l=l):
                A.label(l)
                A(f"ds_read_b32 v{vPl}, v{vCntR} offset:512\ns_waitcnt lgkmcnt(0)\nv_cmp_gt_u32 vcc, 32, v{vPl}\ns_cbranch_vccz {l}_x")
                timeout_exit(l + "_x")
                A(f"s_sleep 1\ns_branch {l}")
            slow.append(sp)
            A(f"ds_add_u32 v{vOwn}, v{vOneA} offset:1024")
        if t == 0 and hb < 3:
            k_, v0_, v1_, pos = HB[hb + 1]
            A(f"ds_read_b128 {rg(KRG[sl^1])}, v{k_} offset:{pos*KST}")
            A(f"ds_read_b128 {rg(VRG[sl^1])}, v{v0_} offset:{pos*KST}")
            A(f"ds_read_b128 {rg(VRG[sl^1],4)}, v{v1_} offset:{pos*KST}")
        if u == 6: recv()
        for j in range(6, 11):
            A(f"v_exp_f32 v{X+j}, v{X+j}")
            if u in (1, 3) and snd and (u == 3 or len(snd) > 4): A(snd.pop(0))
        A(f"{SMF} {a(O+16*t,16)}, {rg(VRG[sl])}, {v(X,8)}, v{vIdx}")
        for j in range(11, 16): A(f"v_exp_f32 v{X+j}, v{X+j}")
    assert not snd
    A("s_nop 2")
    A(f"{SMF} {a(O+16,16)}, {rg(VRG[1],4)}, {v(SB+48+8,8)}, v{vIdx}")
    ST()
    if stamps: A("s_memtime s[98:99]")
    A.label("L_afin")
    if WARM: A.warm_begin()
    for e in range(9): A(f"v_accvgpr_read_b32 v{C+e}, a{O+e}")
    A("s_nop 2")
    for e in range(9): A(f"v_accvgpr_read_b32 v{C+12+e}, a{O+16+e}")
    A(f"""
    v_mov_b32 v2, 0
    v_mov_b32 v3, 0
    s_mov_b32 s4, {hex(f2u(2.0**-110))}
    s_mov_b32 s5, {hex(f2u(2.0**120))}
    s_add_u32 s6, s{sO}, 32768
    s_waitcnt lgkmcnt(0)
    """)
    B_ = [C, C + 12]
    for b0 in B_: A(f"v_add_f32 v{b0+8}, v{b0+8}, v{b0+32+8}")
    for b0 in B_: A(f"v_rcp_f32 v{b0+10}, v{b0+8}")
    for b0 in B_:
        for e in range(4): A(f"v_pk_add_f32 {v(b0+2*e,2)}, {v(b0+2*e,2)}, {v(b0+32+2*e,2)}")
    A(f"""
    v_min_f32 v4, v{B_[0]+8}, v{B_[1]+8}
    v_max_f32 v5, v{B_[0]+8}, v{B_[1]+8}
    v_cmp_nle_f32 {s(sBad,2)}, s4, v4
    v_cmp_nge_f32 vcc, s5, v5
    """)
    for b0 in B_:
        for e in range(4): A(f"v_pk_mul_f32 {v(b0+2*e,2)}, {v(b0+2*e,2)}, {v(b0+10,2)} op_sel_hi:[1,0]")
    A(f"s_or_b64 {s(sBad,2)}, {s(sBad,2)}, vcc")
    for b0 in B_:
        for e in range(4): A(f"v_pk_fma_f32 v[2:3], {v(b0+2*e,2)}, 0, v[2:3] op_sel_hi:[1,0,1]")
    for b0 in B_:
        for e in range(4): A(f"v_cvt_pk_bf16_f32 v{b0+32+e}, v{b0+2*e}, v{b0+2*e+1}")
    A("v_cmp_u_f32 vcc, v2, v3")
    for b0 in B_:
        for e in range(4): A(f"v_min_u32 v{b0+32+e}, -2, v{b0+32+e}")
    A(f"""
    s_or_b64 {s(sBad,2)}, {s(sBad,2)}, vcc
    s_cselect_b32 s4, 2, 1
    s_cmp_eq_u32 s{sFB}, 2
    s_cselect_b32 s5, 1, s4
    s_or_b32 s5, s5, s{sFo}
    s_cmp_lg_u32 s5, 1
    s_cbranch_scc1 L_anost
    buffer_store_dwordx4 {v(B_[0]+32,4)}, v{vK}, {ws}, s{sO} offen sc1
    buffer_store_dwordx4 {v(B_[1]+32,4)}, v{vK}, {ws}, s6 offen sc1
    s_mov_b32 s{sFo}, 2
    """)
    A.label("L_anost")
    A(f"v_mov_b32 v2, s4\nds_write_b32 v{vAF}, v2 offset:256")
    if WARM: A.warm_end("L_wa2", "L_wg_ret", WARM)
    A.label("L_anoflag")
    def aflush():
        if stamps:
            ST(); A("s_waitcnt lgkmcnt(0)\ns_sub_u32 s98, s98, s96\ns_add_u32 s%d, s98, s%d" % (ST.base + 2 * ST.n, ST.base)); ST.n += 1
            ST.flush(ws, STAMP, sWave, 2, 3, sT0)
    if not AEPI: aflush()
    else: ST()
    LX = "L_aepi" if AEPI else "L_end"
    A(f"s_cmp_eq_u32 s{sFB}, 2\ns_cbranch_scc1 {LX}")
    lds_spin("L_as", M, vPF, 256, f"v_cmp_eq_u32 vcc, 0, v{M}")
    A(f"v_readfirstlane_b32 s5, v{M}\ns_max_u32 s4, s4, s5\ns_cmp_lt_u32 s4, 2\ns_cbranch_scc0 L_afb0")
    if AEPI:
        A.label("L_aepi")
        XW, XFa, PT, GV = 16, 24, 80, 40
        A(f"""
        s_mov_b32 s{sOut}, s22
        s_mov_b32 s{sOut+1}, s23
        s_mov_b32 s{sOut+2}, {S*D*2}
        s_mov_b32 s{sOut+3}, 0x00020000
        s_lshl_b32 s4, s{sRB}, 16
        s_lshl_b32 s5, s{sCG}, 7
        s_add_u32 s4, s4, s5
        s_and_b32 s5, s{sWave}, 1
        s_lshl_b32 s5, s5, 15
        s_add_u32 s4, s4, s5
        s_lshr_b32 s5, s{sWave}, 1
        s_lshl_b32 s5, s5, 6
        s_add_u32 s4, s4, s5
        v_and_b32 v2, 31, v{vL}
        v_lshlrev_b32 v2, 10, v2
        v_lshrrev_b32 v4, 5, v{vL}
        v_lshl_add_u32 v2, v4, 3, v2
        v_lshl_add_u32 v3, v4, 3, v2
        """)
        for q in range(4): A(f"buffer_load_dwordx2 {v(XW+2*q,2)}, v2, {s(sX,4)}, s4 offen offset:{16*q}")
        A(f"s_lshl_b32 s5, s{sWave}, 12\nv_add_u32 v4, s5, v{vK}\ns_lshl_b32 s5, s{sWave}, 13\nv_add_u32 v5, s5, v{vK}")
        for lt in range(4):
            A(f"v_xor_b32 v{6+lt}, {lt*4096}, v4\nv_add_u32 v{6+lt}, {RB0 + (2+lt)*SLOT}, v{6+lt}")
        A(f"s_mov_b32 s6, {hex(f2u(-1.4426950408889634))}\ns_mov_b32 s7, s6")
        def gather(dst, regs):
            for lt in range(4):
                for q in range(4): A(f"ds_read_b128 {v(PT+16*lt+4*q,4)}, v{regs[lt]} offset:{q*1024}")
                if lt == 2: A("s_waitcnt lgkmcnt(4)")
            for i in range(8): A(f"v_pk_add_f32 {v(PT+2*i,2)}, {v(PT+2*i,2)}, {v(PT+16+2*i,2)}")
            A("s_waitcnt lgkmcnt(0)")
            for i in range(8): A(f"v_pk_add_f32 {v(PT+32+2*i,2)}, {v(PT+32+2*i,2)}, {v(PT+48+2*i,2)}")
            for i in range(8): A(f"v_pk_add_f32 {v(dst+2*i,2)}, {v(PT+2*i,2)}, {v(PT+32+2*i,2)}")
        lds_spin("L_ad", 15, vCntR, 512, "v_cmp_gt_u32 vcc, 33, v15", sleep=1)
        gather(GV, [6, 7, 8, 9])
        for i in range(8): A(f"v_pk_mul_f32 {v(PT+2*i,2)}, {v(GV+2*i,2)}, s[6:7]")
        for i in range(16): A(f"v_exp_f32 v{PT+i}, v{PT+i}")
        A(f"v_add_u32 v6, {4*SLOT}, v6\nv_add_u32 v7, {4*SLOT}, v7\nv_xor_b32 v8, {2*8192}, v5\nv_xor_b32 v9, {3*8192}, v5\nv_add_u32 v9, 4096, v9")
        for i in range(8): A(f"v_pk_add_f32 {v(PT+2*i,2)}, {v(PT+2*i,2)}, 1.0 op_sel_hi:[1,0]")
        for i in range(16): A(f"v_rcp_f32 v{PT+i}, v{PT+i}")
        A("s_waitcnt vmcnt(0)")
        for i in range(8):
            A(f"v_lshlrev_b32 v{XFa+2*i}, 16, v{XW+i}\nv_and_b32 v{XFa+2*i+1}, 0xffff0000, v{XW+i}")
        for i in range(8): A(f"v_pk_mul_f32 {v(GV+2*i,2)}, {v(GV+2*i,2)}, {v(PT+2*i,2)}")
        lds_spin("L_ae", 15, vCntR, 512, "v_cmp_gt_u32 vcc, 34, v15", sleep=1)
        gather(PT, [6, 7, 8, 9])
        for i in range(8): A(f"v_pk_fma_f32 {v(PT+2*i,2)}, {v(PT+2*i,2)}, {v(GV+2*i,2)}, {v(XFa+2*i,2)}")
        for i in range(8): A(f"v_cvt_pk_bf16_f32 v{56+i}, v{PT+2*i}, v{PT+2*i+1}")
        A("s_nop 1")
        for h in range(2):
            A(f"v_permlane32_swap_b32 v{56+4*h}, v{58+4*h}\nv_permlane32_swap_b32 v{57+4*h}, v{59+4*h}")
        for h in range(2):
            A(f"buffer_store_dwordx4 {v(56+4*h,4)}, v3, {s(sOut,4)}, s4 offen offset:{32*h}")
        aflush()
    A("s_endpgm")
    A.label("L_afb0")
    A(f"s_mov_b32 s{sFB}, 2\ns_mov_b32 s{sOff}, 0\ns_mov_b32 s{sCnt}, 64\ns_mov_b32 s{sKA}, s{sKb}\ns_waitcnt vmcnt(0)")
    for t in range(4): A(f"v_mov_b32 v{M+t}, 0xff800000")
    A.label("L_afb")
    A(f"buffer_load_dwordx4 {a(KS,4)}, v{vK}, {ws}, s{sKA} offen sc1")
    A("s_waitcnt vmcnt(0)")
    for t in range(4): A(f"{MF} {v(C+16*t,16)}, {a(KS,4)}, {a(Q+4*t,4)}, 0")
    A("s_nop 11")
    for t in range(4): maxtree(M + t, [C + 16 * t], False)
    A(f"s_add_u32 s{sKA}, s{sKA}, 1024\ns_sub_u32 s{sCnt}, s{sCnt}, 1\ns_cmp_lg_u32 s{sCnt}, 0\ns_cbranch_scc1 L_afb")
    build_c()
    for t in range(4): fill_c(t)
    zero_o()
    A(f"s_mov_b32 s{sCnt}, 32\ns_mov_b32 s{sKA}, s{sKVb}")
    A.label("L_afb2")
    A(f"""
    buffer_load_dwordx4 {rg(KRG[0])}, v{vK}, {ws}, s{sKA} offen sc1
    s_mov_b64 exec, {s(sMask,2)}
    buffer_load_dwordx4 {rg(VRG[0])}, v{vV}, {ws}, s{sKA} offen sc1
    buffer_load_dwordx4 {rg(VRG[0],4)}, v{vV}, {ws}, s{sKA} offen offset:512 sc1
    s_mov_b64 exec, -1
    s_waitcnt vmcnt(0)
    """)
    for t in range(4): A(f"{MF} {v(SB+16*t,16)}, {rg(KRG[0])}, {a(Q+4*t,4)}, {v(C+16*t,16)}")
    A("s_nop 8")
    for j in range(64): A(f"v_exp_f32 v{SB+j}, v{SB+j}")
    A("s_nop 2")
    for t in range(4):
        A(f"{SMF} {a(O+16*t,16)}, {rg(VRG[0])}, {v(SB+16*t,8)}, v{vIdx}")
        A(f"{SMF} {a(O+16*t,16)}, {rg(VRG[0],4)}, {v(SB+16*t+8,8)}, v{vIdx}")
    A(f"s_add_u32 s{sKA}, s{sKA}, 1024\ns_sub_u32 s{sCnt}, s{sCnt}, 1\ns_cmp_lg_u32 s{sCnt}, 0\ns_cbranch_scc1 L_afb2")
    A("s_nop 15")
    for x in send_items(): A(x)
    recv()
    A("s_branch L_afin")
    for f in slow: f()
    A.label("L_end")
    A("s_endpgm")
    if opt.get("cpf", 1): A.raw(f".fill (51200 - (. - {K})) / 4, 4, 0xbf800000")

    H_ = Asm()
    H_.raw('''; Fused LayerNorm + QKV + softmax attention + GEGLU FFN + output projection (generated by gen/mega.py).
; queries (QK^T MFMA with -reference in C, exp2, sparse MFMA that takes the bf16 high halves of the fp32 P directly,
; row sums from a ones row). Waves 4-7 ("G"): QKV, gate/up + GELU, down, Wo GEMMs and the K/V LDS ring.
; finite are recomputed with the true row max. Cross-workgroup hand-offs: write-through stores + per-launch tag flags
; or all-ones markers; every wait is bounded.''')
    H_.raw(f"; @launch grid=(256,1,1) block=(512,1,1) lds={LDS}")
    H_.raw('.amdgcn_target "amdgcn-amd-amdhsa--gfx950"\n.text')
    H_.lines += A.lines
    H_.raw(f""".section .rodata,"a"
.p2align 6
.amdhsa_kernel {K}
  .amdhsa_next_free_vgpr {NV+NA}
  .amdhsa_next_free_sgpr 102
  .amdhsa_accum_offset {NV}
  .amdhsa_group_segment_fixed_size 0
  .amdhsa_kernarg_size 80
  .amdhsa_user_sgpr_count 2
  .amdhsa_user_sgpr_kernarg_segment_ptr 1
  .amdhsa_system_sgpr_workgroup_id_x 1
.end_amdhsa_kernel""")
    txt = H_.text()
    check_hazards(txt)
    return txt

if __name__ == "__main__":
    base = {"pfgo": 1}
    open("mega_s.s", "w").write(build(True, base))
    open("mega.s", "w").write(build(False, base))
    open("mega_tr.s", "w").write(build(True, dict(base, atrace=1)))
    open("mega_dbg.s", "w").write(build(True, dict(base, dbgout=10)))
    open("mega_pt.s", "w").write(build(False, dict(base, pretouch=1)))
    open("mega_nc.s", "w").write(build(False, dict(base, cpf=0)))
    open("mega_b.s", "w").write(build(True, dict(base, p1kv=0, p2early=0)))
    open("mega_c.s", "w").write(build(True, dict(base, p1kv=1, p2early=0)))
    open("mega_d.s", "w").write(build(True, dict(base, p1kv=0, p2early=1)))
```
